```python
import torch

def _softmax(x, axis=-1):
    return torch.softmax(x, dim=axis)
def _gelu(x):
    return torch.nn.functional.gelu(x, approximate="tanh")
def _silu(x):
    return torch.nn.functional.silu(x)
def _sigmoid(x):
    return torch.sigmoid(x)
def _layernorm(x, axis=-1, eps=1e-5):
    m = x.mean(dim=axis, keepdim=True)
    v = x.var(dim=axis, keepdim=True, unbiased=False)
    return (x - m) / torch.sqrt(v + eps)
def _scatter_add(tgt, idx, src, axis=0):
    return tgt.clone().index_add_(axis, idx, src)
def _segment_sum(src, seg, n):
    out = torch.zeros((n,) + src.shape[1:], dtype=src.dtype)
    return out.index_add_(0, seg, src)
def _pad(x, pw):
    flat = tuple(v for pair in reversed(pw) for v in pair)
    return torch.nn.functional.pad(x, flat)

kernel_name = 'standalone__edge_featured_mpnn_mpnn__graph'

def setup_inputs():

    _w = (lambda a: (lambda t: t.to(torch.bfloat16) if t.is_floating_point() else t)(torch.as_tensor(a)))
    N, deg, D, De = 50000, 16, 64, max(16, 1)
    E = N * deg
    H = 2 * D
    return {
        "x": _w((lambda *s: torch.randn(*s, dtype=torch.bfloat16) * 0.05)(N, D)),
        "e_attr": _w((lambda *s: torch.randn(*s, dtype=torch.bfloat16) * 0.8)(E, De)),
        "src": _w((lambda lo, hi, *s: torch.randint(lo, hi, s))(0, N, E).to(torch.int64)),
        "dst": _w((lambda lo, hi, *s: torch.randint(lo, hi, s))(0, N, E).to(torch.int64)),
        "w1": _w((lambda *s: torch.randn(*s, dtype=torch.bfloat16) * 0.8)(2 * D + De, H) * (1.0 / (2 * D + De) ** 0.5)),
        "b1": _w((lambda *s: torch.randn(*s, dtype=torch.bfloat16) * 0.8)(H) * 0.01),
        "w2": _w((lambda *s: torch.randn(*s, dtype=torch.bfloat16) * 0.05)(H, D) * (1.0 / H ** 0.5)),
        "b2": _w((lambda *s: torch.randn(*s, dtype=torch.bfloat16) * 0.05)(D) * 0.01),
    }

def reference(x, e_attr, src, dst, w1, b1, w2, b2):
    N, D = x.shape
    h_src = x[src]
    h_dst = x[dst]
    m_in = torch.concatenate([h_src, h_dst, e_attr], axis=-1)
    h = _silu(m_in @ w1 + b1)
    msg = h @ w2 + b2
    return _segment_sum(msg, dst, N)
```

```python
import re

TRANS = ('v_exp_', 'v_log_', 'v_rcp_', 'v_rsq_', 'v_sqrt_', 'v_sin_', 'v_cos_')

def regs_of(tok):
    tok = tok.strip()
    tok = tok.lstrip("-")
    if tok.startswith("sext(") and tok.endswith(")"): tok = tok[5:-1]
    if tok.startswith('|') and tok.endswith('|'): tok = tok[1:-1]
    m = re.fullmatch(r'abs\((.*)\)', tok)
    if m: tok = m.group(1)
    m = re.fullmatch(r'([vas])(\d+)', tok)
    if m: return [(m.group(1), int(m.group(2)))]
    m = re.fullmatch(r'([vas])\[(\d+):(\d+)\]', tok)
    if m: return [(m.group(1), i) for i in range(int(m.group(2)), int(m.group(3)) + 1)]
    if tok == 'vcc': return [('s', 'vcc_lo'), ('s', 'vcc_hi')]
    if tok in ('vcc_lo', 'vcc_hi'): return [('s', tok)]
    if tok == 'exec': return [('x', 'exec')]
    if tok in ('exec_lo', 'exec_hi'): return [('x', 'exec')]
    if tok == 'm0': return [('x', 'm0')]
    return []

class Ins:
    def __init__(self, text):
        self.text = text
        t = text.split(';')[0].strip()
        self.op = t.split()[0]
        rest = t[len(self.op):].strip()
        ops = []; depth = 0; cur = ''
        for ch in rest:
            if ch == '[': depth += 1
            if ch == ']': depth -= 1
            if ch == ',' and depth == 0: ops.append(cur.strip()); cur = ''
            else: cur += ch
        if cur.strip(): ops.append(cur.strip())
        self.mods = ''
        if ops:
            parts = ops[-1].split(None, 1)
            ops[-1] = parts[0]
            if len(parts) > 1: self.mods = parts[1]
        self.ops = ops
        op = self.op
        self.mfma = op.startswith('v_mfma') or op.startswith('v_smfmac')
        self.valu = op.startswith('v_') and not self.mfma
        self.trans = op.startswith(TRANS)
        self.vmem = op.startswith(('buffer_', 'global_', 'flat_'))
        self.ds = op.startswith('ds_')
        self.salu = op.startswith('s_')
        self.dpp = self.valu and ('_dpp' in op or re.search(r'row_|quad_perm|wave_', self.mods) is not None)
        self.lds_dma = self.vmem and (re.search(r'\blds\b', self.mods) is not None or '_lds_' in op)
        R = [regs_of(o) for o in ops]
        self.w = set(); self.r = set(); self.srcc = set(); self.srcab = set(); self.lanesel = set(); self.stdata = set()
        if self.mfma:
            self.w = set(R[0]); self.srcab = set(R[1]) | set(R[2]); self.srcc = set(R[3]) if len(R) > 3 else set()
            self.r = self.srcab | self.srcc
            self.passes = 8 if '32x32' in op else 4
        elif self.valu:
            nd = 1
            if re.match(r'v_(add|sub|subrev|addc|subb|subbrev)_co_', op) or op.startswith(('v_div_scale', 'v_mad_u64', 'v_mad_i64')): nd = 2
            if op.startswith('v_permlane') and 'swap' in op:
                self.w = set(R[0]) | set(R[1]); self.r = set(self.w)
            else:
                for x in R[:nd]: self.w |= set(x)
                for x in R[nd:]: self.r |= set(x)
            if op.startswith('v_cmpx'): self.w.add(('x', 'exec'))
            if op.startswith(('v_fmac', 'v_pk_fmac', 'v_writelane', 'v_dot2c')) or self.dpp or 'sdwa' in op: self.r |= set(R[0])
            if op.startswith(('v_readlane', 'v_writelane')) and len(R) > 2: self.lanesel = set(R[2])
        elif self.vmem:
            isst = 'store' in op or ('atomic' in op)
            if self.lds_dma:
                for x in R: self.r |= set(x)
                self.r.add(('x', 'm0'))
            elif isst:
                for x in R: self.r |= set(x)
                if op.startswith('buffer_'): self.stdata = set(R[0])
                else: self.stdata = set(R[1])
                if 'atomic' in op and 'sc0' in self.mods: self.w = set(R[0])
            else:
                self.w = set(R[0])
                for x in R[1:]: self.r |= set(x)
        elif self.ds:
            if op.startswith(('ds_read', 'ds_bpermute', 'ds_permute', 'ds_swizzle')) or '_rtn_' in op:
                self.w = set(R[0])
                for x in R[1:]: self.r |= set(x)
            else:
                for x in R: self.r |= set(x)
            if 'addtid' in op: self.r.add(('x', 'm0'))
        elif self.salu:
            if op.startswith(('s_cmp', 's_waitcnt', 's_nop', 's_branch', 's_cbranch', 's_barrier', 's_endpgm', 's_setprio', 's_sleep', 's_bitcmp', 's_setpc')):
                for x in R: self.r |= set(x)
            else:
                if R: self.w = set(R[0])
                for x in R[1:]: self.r |= set(x)
                if 'saveexec' in op: self.w.add(('x', 'exec'))
        self.states = 1
        if op == 's_nop': self.states = int(ops[0], 0) + 1

def need(p, c):
    n = 0
    EX = ('x', 'exec')
    if p.valu:
        wv = {x for x in p.w if x[0] in 'va'}
        ws = {x for x in p.w if x[0] == 's'}
        if c.dpp and wv & c.r: n = max(n, 2)
        if c.op.startswith(('v_readlane', 'v_readfirstlane')) and wv & c.r: n = max(n, 1)
        if c.op.startswith('v_permlane') and wv & c.r: n = max(n, 2)
        if c.mfma and wv & c.r: n = max(n, 2)
        if p.trans and c.valu and not c.trans and wv & c.r: n = max(n, 1)
        if c.valu and ws & c.r: n = max(n, 2)
        if c.valu and ws & c.lanesel: n = max(n, 4)
        if c.vmem and ws & c.r: n = max(n, 5)
        if ('sdwa' in p.op and 'dst_sel:DWORD' not in p.mods and 'dst_sel' in p.mods) and c.valu and wv & (c.r | c.w): n = max(n, 1)
        if EX in p.w:
            if c.mfma: n = max(n, 4)
            if c.dpp: n = max(n, 5)
            if c.op.startswith(('v_readlane', 'v_readfirstlane', 'v_writelane', 'v_permlane')): n = max(n, 4)
            if c.valu and EX in c.r: n = max(n, 2)
    if p.mfma:
        big = {8: 12, 4: 8}[p.passes]; ov = {8: 10, 4: 6}[p.passes]; war = {8: 7, 4: 3}[p.passes]
        if c.mfma:
            if p.w & c.srcab: n = max(n, big)
            if p.w & c.srcc and not (p.w == c.srcc and p.passes == c.passes): n = max(n, ov)
        elif c.valu:
            if p.w & (c.r | c.w): n = max(n, big)
            if p.srcc & c.w: n = max(n, war)
        elif c.vmem or c.ds:
            if p.w & (c.r | c.w): n = max(n, big)
            if p.srcc & c.w: n = max(n, war)
    if p.salu and ('x', 'm0') in p.w and (c.lds_dma or (c.ds and 'addtid' in c.op)): n = max(n, 1)
    if p.vmem and len(p.stdata) >= 3 and p.stdata & c.w: n = max(n, 2 if c.valu else 1)
    return n

class Asm:
    def __init__(self):
        self.items = []
        self.nops = 0
    def raw(self, s): self.items.append(s)
    def label(self, l): self.items.append(l + ':')
    def __call__(self, text):
        for line in text.split('\n'):
            line = line.strip()
            if not line or line.startswith(';'): continue
            if line.endswith(':') or line.startswith('.'):
                self.items.append(line); continue
            self._emit(Ins(line))
    def _emit(self, c):
        dist = 0; req = 0
        for p in reversed(self.items):
            if isinstance(p, str): continue
            if p.op in ('s_endpgm', 's_branch', 's_setpc_b64'): break
            n = need(p, c)
            if n - dist > req: req = n - dist
            dist += p.states
            if dist >= 20: break
        if req > 0:
            self.items.append(Ins(f's_nop {req-1}')); self.nops += 1
        self.items.append(c)
    def text(self):
        out = []
        for it in self.items:
            out.append(it if isinstance(it, str) else '    ' + it.text)
        return '\n'.join(out) + '\n'

def check_edge(asm, from_label_end, to_label, n=20):
    items = asm.items
    problems = []
    tgt = items.index(to_label + ':')
    after = [x for x in items[tgt:] if not isinstance(x, str)][:n]
    for bi, b in enumerate(items):
        if isinstance(b, str): continue
        if b.op.startswith(('s_cbranch', 's_branch')) and b.ops[0] == to_label:
            before = [x for x in items[:bi + 1] if not isinstance(x, str)][-n:]
            seq = before + after
            for ci in range(len(before), len(seq)):
                dist = 0
                for pi in range(ci - 1, -1, -1):
                    if pi < len(before):
                        nn = need(seq[pi], seq[ci])
                        if nn > dist: problems.append((seq[pi].text, seq[ci].text, nn, dist))
                    dist += seq[pi].states
    return problems

def check_all_edges(asm):
    labels = [x[:-1] for x in asm.items if isinstance(x, str) and x.endswith(':')]
    probs = []
    for l in labels: probs += check_edge(asm, None, l)
    return probs
```

```python
from asmlib import Asm
from gen import *

DEG, HIST, FLAG = 0, 1024, 1280
ELLPOS, WTOT, B1T, B2T = 2048, 3056, 3072, 3584
ELL, ROWS = 4096, 176
RING = ELL + ROWS * 256
MAP = RING
NSLOT = 14
XP = 1056
SLOT = 4 * XP + 1024
OACC = 4096
def K2_LDS(P): return RING + 4 * P.depth * SLOT

vN, vD, vQ, vY, vE = 0, 64, 128, 192, 224
vEX, vEE, vAX, vAE, vCX, vCE, vBX0, vBE0, vBX, vBE, vINFO, vDEG, vMAX = 240, 244, 245, 246, 247, 248, 249, 250, 251, 252, 253, 254, 255
aW1A, aW1C, aW1B, aW2, aBX, aBE = 0, 64, 80, 144, 208, 224
SX, SE, SW, SO = 12, 16, 20, 24
sB, sNB0, sNNODE, sWAVE, sM = 28, 29, 30, 31, 32
sXO = 36
sMASK, sSLOT, sRING0, sRING1, sT, sL, sLNEXT, sQROW = 40, 41, 42, 43, 44, 45, 46, 47
sLN2, sBAD, sNG = 48, 50, 52
sL0, sRB0 = 56, 64
def R(p, b, n): return f'{p}[{b}:{b+n-1}]'
def srdn(s): return f's[{s}:{s+3}]'

def mfma(d, A, B, C):
    return f'v_mfma_f32_32x32x16_bf16 {d}, {A}, {B}, {C}'
def m1(c, k, dst, first_c):
    A = R('a', aW1A + (c * 4 + k) * 4, 4) if k < 4 else R('a', aW1C + c * 4, 4)
    B = R('a', aBX + k * 4, 4) if k < 4 else R('a', aBE, 4)
    return mfma(R('v', dst, 16), A, B, R('v', first_c if k == 0 else dst, 16))

def gen_k2(P):
    D = P.depth; GAP = D + 1
    VW = 5 * (D - 1)
    a = Asm()
    a('.p2align 8'); a.label(NAME + '_kernel')
    a(f's_cmp_ge_u32 s2, {NB}'); a('s_cbranch_scc1 K2_end')
    a('s_load_dwordx2 s[10:11], s[0:1], 80')
    a('s_load_dwordx4 s[4:7], s[0:1], 0')
    a('s_load_dwordx2 s[8:9], s[0:1], 40')
    a('s_load_dwordx4 s[52:55], s[0:1], 56')
    a(f's_and_b32 s{sB}, s2, 7')
    a(f's_lshl_b32 s{sB}, s{sB}, 5')
    a('s_lshr_b32 s3, s2, 3')
    a(f's_add_u32 s{sB}, s{sB}, s3')
    a(f's_mul_i32 s{sNB0}, s{sB}, {BN}')
    a(f's_sub_u32 s{sNNODE}, {N}, s{sNB0}')
    a(f's_min_u32 s{sNNODE}, s{sNNODE}, {BN}')
    a('v_lshrrev_b32 v1, 6, v0')
    a('v_and_b32 v2, 63, v0')
    a(f'v_readfirstlane_b32 s{sWAVE}, v1')
    a('v_lshlrev_b32 v3, 10, v0')
    a(f'v_mov_b32 v4, {DUMMY}')
    a(f'v_cmp_gt_u32 vcc, {NCH}, v0')
    a('v_lshlrev_b32 v9, 4, v2')
    a(f's_lshl_b32 s33, s{sB}, 2')
    a(f's_add_u32 s33, s33, {WS_TAB}')
    a('v_cndmask_b32 v3, v4, v3, vcc')
    a('v_and_b32 v10, 3, v0')
    a('v_bfe_u32 v11, v0, 2, 4')
    a('v_lshl_add_u32 v10, v11, 3, v10')
    a('v_lshl_add_u32 v10, v1, 2, v10')
    a('v_cmp_gt_u32 vcc, 128, v0')
    a('s_waitcnt lgkmcnt(0)')
    srd(a, SW, 10, WS_SIZE)
    a(f'buffer_load_dword v8, v3, {srdn(SW)}, s33 offen')
    a('v_cndmask_b32 v10, v2, v10, vcc')
    a('v_lshlrev_b32 v10, 1, v10')
    a(f's_cmp_lt_u32 s{sWAVE}, 2')
    a('s_cselect_b64 s[8:9], s[8:9], s[52:53]')
    a(f's_cselect_b32 s34, {NLOG2E}, 1.0')
    a('global_load_ushort v10, v10, s[8:9]')
    a(f's_mov_b32 s35, {WS_W}')
    for i in range(52):
        if i and i % 4 == 0: a('s_add_u32 s35, s35, 4096')
        a(f'buffer_load_dwordx4 {R("a", 4*i, 4)}, v9, {srdn(SW)}, s35 offen offset:{(i%4)*1024}')
    a(f's_sub_u32 s{SX}, s4, {3*XP}')
    a(f's_subb_u32 s{SX+1}, s5, 0')
    a(f's_and_b32 s{SX+1}, s{SX+1}, 0xffff')
    a(f's_mov_b32 s{SX+2}, {N*128 + 3*XP}')
    a(f's_mov_b32 s{SX+3}, 0x20000')
    srd(a, SE, 6, E * 32)
    srd(a, SO, 54, N * 128)
    for j in range(4): a(f's_movk_i32 s{sXO+j}, {(3-j)*XP}')
    a(f's_mov_b32 s{sMASK}, 0xffffff')
    a(f's_mov_b32 s{sLN2}, {NLN2}'); a(f's_mov_b32 s{sLN2+1}, {NLN2}')
    a(f's_mov_b64 s[{sBAD}:{sBAD+1}], 0')
    a('v_mov_b32 v5, v4'); a('v_mov_b32 v6, v4'); a('v_mov_b32 v7, v4')
    a('v_lshlrev_b32 v3, 4, v0')
    for i in range(15): a(f'ds_write_b128 v3, v[4:7] offset:{ELL + 4096*i}')
    a('v_mov_b32 v12, 0'); a('v_mov_b32 v13, 0')
    a('v_lshlrev_b32 v14, 3, v0')
    a('ds_write_b64 v14, v[12:13]')
    a('v_lshlrev_b32 v15, 2, v0')
    a('s_waitcnt vmcnt(52)')
    a('v_lshlrev_b32 v10, 16, v10')
    a('v_mul_f32 v10, s34, v10')
    a(f'ds_write_b32 v15, v10 offset:{B1T}')
    a('v_lshrrev_b32 v16, 16, v8')
    a('v_and_b32 v17, 0xffff, v8')
    a('v_mov_b32 v18, v16')
    wave_scan(a, 18)
    a(f's_lshl_b32 s3, s{sWAVE}, 2')
    a('v_mov_b32 v19, s3')
    a('s_mov_b32 exec_lo, 0'); a('s_brev_b32 exec_hi, 1')
    a(f'ds_write_b32 v19, v18 offset:{WTOT}')
    a('s_mov_b64 exec, -1')
    a(f's_movk_i32 s3, {CH}')
    a('v_mad_u32_u24 v17, v0, s3, v17')
    a('v_sub_u32 v18, v18, v16')
    a('s_waitcnt lgkmcnt(0)')
    a('s_barrier')
    a(f'ds_read_b128 v[20:23], v12 offset:{WTOT}')
    a('s_waitcnt lgkmcnt(0)')
    for i in range(4): a(f'v_readfirstlane_b32 s{56+i}, v{20+i}')
    a('s_add_u32 s57, s57, s56'); a('s_add_u32 s58, s58, s57'); a(f's_add_u32 s{sM}, s59, s58')
    a(f's_cmp_gt_u32 s{sM}, {NSLOT*256}'); a('s_cbranch_scc1 K2_slow')
    a(f's_cmp_eq_u32 s{sWAVE}, 1'); a('s_cselect_b32 s3, s56, 0')
    a(f's_cmp_eq_u32 s{sWAVE}, 2'); a('s_cselect_b32 s3, s57, s3')
    a(f's_cmp_eq_u32 s{sWAVE}, 3'); a('s_cselect_b32 s3, s58, s3')
    a('v_add_u32 v18, s3, v18')
    a('v_sub_u32 v17, v17, v18')
    a('v_lshlrev_b32 v17, 3, v17')
    a('v_lshlrev_b32 v18, 2, v18')
    a.label('K2_map')
    for j in range(8):
        a(f'v_cmpx_lt_u32 vcc, {j}, v16')
        a(f'ds_write_b32 v18, v17 offset:{MAP + 4*j}')
    a('v_add_u32 v18, 32, v18')
    a('v_subrev_u32 v16, 8, v16')
    a('s_cbranch_execnz K2_map')
    a('s_mov_b64 exec, -1')
    a('s_waitcnt lgkmcnt(0)')
    a('s_barrier')
    vR, vI, vK = 32, 64, 80
    for i in range(NSLOT): a(f'ds_read_b32 v{vI+i}, v15 offset:{MAP + 1024*i}')
    for i in range(NSLOT):
        a(f's_waitcnt lgkmcnt({NSLOT-1-i})')
        if i: a(f'v_add_u32 v14, 2048, v14')
        a(f'v_add_u32 v{vI+i}, v{vI+i}, v14')
        a(f'buffer_load_dwordx2 {R("v", vR+2*i, 2)}, v{vI+i}, {srdn(SW)}, 0 offen{P.pol_rec}')
    a('v_mov_b32 v13, 1')
    a('v_mov_b32 v12, 2')
    for i in range(NSLOT):
        a(f's_waitcnt vmcnt({NSLOT-1-i})')
        a(f'v_lshlrev_b32_sdwa v{vI+i}, v12, v{vR+2*i} dst_sel:DWORD dst_unused:UNUSED_PAD src0_sel:DWORD src1_sel:BYTE_3')
        if i >= 11:
            a(f'v_cmp_ne_u32 vcc, 0, v{vI+i}')
            a('s_mov_b64 exec, vcc')
        a(f'ds_add_rtn_u32 v{vK+i}, v{vI+i}, v13 offset:{DEG}')
        if i >= 11: a('s_mov_b64 exec, -1')
    a('s_waitcnt lgkmcnt(0)')
    a('s_barrier')
    a(f'ds_read_b32 v16, v15 offset:{DEG + 4}')
    a('v_cmp_gt_u32 vcc, 224, v0')
    a('v_lshlrev_b32 v19, 2, v2')
    a('s_waitcnt lgkmcnt(0)')
    a('v_min_u32 v17, 63, v16')
    a('v_sub_u32 v17, 63, v17')
    a('v_lshlrev_b32 v17, 2, v17')
    a('s_mov_b64 exec, vcc')
    a(f'ds_add_rtn_u32 v18, v17, v13 offset:{HIST}')
    a('s_mov_b64 exec, -1')
    a('s_waitcnt lgkmcnt(0)')
    a('s_barrier')
    a(f'ds_read_b32 v20, v19 offset:{HIST}')
    a('s_waitcnt lgkmcnt(0)')
    a('v_mov_b32 v21, v20')
    wave_scan(a, 21)
    a('v_sub_u32 v20, v21, v20')
    a('ds_bpermute_b32 v20, v17, v20')
    for g in range(7):
        a(f'v_cmp_lt_u32 vcc, {32*g}, v21')
        a(f's_ff1_i32_b64 s{sL0+g}, vcc')
        a(f's_sub_u32 s{sL0+g}, 63, s{sL0+g}')
        a(f's_max_u32 s{sL0+g}, s{sL0+g}, 1')
    a(f's_cmp_ge_u32 s{sL0}, 63'); a('s_cbranch_scc1 K2_slow')
    order = [(0, GAP), (1, 0), (6, GAP), (2, 0), (5, GAP), (3, 0), (4, GAP)]
    a(f's_movk_i32 s3, {ELL // 256}')
    for g, gap in order:
        a(f's_lshl_b32 s{sRB0+g}, s3, 8')
        a(f'v_writelane_b32 v22, s{sRB0+g}, {g}')
        a(f's_add_u32 s3, s3, s{sL0+g}')
        a(f's_add_u32 s3, s3, {1+gap}')
    a(f's_cmp_gt_u32 s3, {ELL // 256 + ROWS}'); a('s_cbranch_scc1 K2_slow')
    a('s_waitcnt lgkmcnt(0)')
    a('v_add_u32 v20, v20, v18')
    a('v_lshrrev_b32 v23, 5, v20')
    a('v_lshlrev_b32 v23, 2, v23')
    a('ds_bpermute_b32 v22, v23, v22')
    a('v_and_b32 v20, 31, v20')
    a(f'v_add_u32 v24, s{sNB0}, v0')
    a('v_lshlrev_b32 v24, 7, v24')
    a('v_lshl_or_b32 v24, v16, 24, v24')
    a(f'v_cmp_gt_u32 vcc, s{sNNODE}, v0')
    a('s_waitcnt lgkmcnt(0)')
    a('v_lshl_add_u32 v22, v20, 2, v22')
    a('s_mov_b64 exec, vcc')
    a('ds_write_b32 v22, v24')
    a(f'ds_write_b32 v15, v22 offset:{ELLPOS + 4}')
    a('s_mov_b64 exec, -1')
    a(f's_mov_b32 s{sQROW}, s{sRB0}'); a(f's_mov_b32 s{sL}, s{sL0}'); a(f's_mov_b32 s{sLNEXT}, 0')
    for w, (ga, gb) in ((1, (1, 6)), (2, (2, 5)), (3, (3, 4))):
        a(f's_cmp_eq_u32 s{sWAVE}, {w}')
        a(f's_cselect_b32 s{sQROW}, s{sRB0+ga}, s{sQROW}')
        a(f's_cselect_b32 s{sL}, s{sL0+ga}, s{sL}')
        a(f's_cselect_b32 s{sLNEXT}, s{sL0+gb}, s{sLNEXT}')
    a('s_waitcnt lgkmcnt(0)')
    a('s_barrier')
    vP = 96
    for i in range(NSLOT): a(f'ds_read_b32 v{vP+i}, v{vI+i} offset:{ELLPOS}')
    a('v_and_b32 v16, 7, v2'); a('v_bfe_u32 v17, v2, 4, 1'); a('v_xor_b32 v16, v16, v17')
    a(f'v_lshlrev_b32 v{vCX}, 4, v16')
    a('v_and_b32 v16, 1, v2'); a(f'v_lshlrev_b32 v{vCE}, 4, v16')
    a('v_and_b32 v16, 3, v2'); a(f'v_mul_u32_u24 v16, {XP}, v16')
    a('v_bfe_u32 v17, v2, 2, 3'); a('v_lshl_add_u32 v16, v17, 7, v16')
    a('v_bfe_u32 v17, v2, 3, 1'); a('v_lshrrev_b32 v18, 5, v2'); a('v_xor_b32 v17, v17, v18')
    a(f'v_lshl_add_u32 v{vBX0}, v17, 4, v16')
    a('v_and_b32 v16, 31, v2'); a('v_lshlrev_b32 v16, 5, v16'); a('v_lshl_add_u32 v16, v18, 4, v16')
    a(f'v_add_u32 v{vBE0}, {4*XP}, v16')
    a('v_lshrrev_b32 v16, 3, v2'); a(f'v_lshl_add_u32 v{vAX}, v16, 4, s{sQROW}')
    a('v_lshrrev_b32 v16, 1, v2'); a(f'v_lshl_add_u32 v{vAE}, v16, 2, s{sQROW}')
    a(f's_mul_i32 s{sRING0}, s{sWAVE}, {D*SLOT}')
    a(f's_add_u32 s{sRING0}, s{sRING0}, {RING}')
    a(f's_add_u32 s{sRING1}, s{sRING0}, {D*SLOT}')
    a(f's_mov_b32 s{sSLOT}, s{sRING0}')
    a('s_waitcnt lgkmcnt(0)')
    for i in range(NSLOT):
        a(f'v_lshl_add_u32 v{vP+i}, v{vK+i}, 8, v{vP+i}')
        a(f'v_cmpx_ne_u32 vcc, 0, v{vI+i}')
        a(f'ds_write2_b32 v{vP+i}, v{vR+2*i}, v{vR+2*i+1} offset0:64 offset1:96')
    a('s_mov_b64 exec, -1')
    a('s_waitcnt lgkmcnt(0)')
    a('s_barrier')

    ell_read = [f'ds_read_b128 {R("v", vEX, 4)}, v{vAX}', f'ds_read_b32 v{vEE}, v{vAE} offset:128']
    ell_adv = [f'v_add_u32 v{vAX}, 256, v{vAX}', f'v_add_u32 v{vAE}, 256, v{vAE}']
    xaddr = [f'v_and_or_b32 v{vEX+j}, v{vEX+j}, s{sMASK}, v{vCX}' for j in range(4)]
    eaddr = f'v_add_u32 v{vEE}, v{vEE}, v{vCE}'
    m0x = f's_mov_b32 m0, s{sSLOT}'; m0e = f's_add_u32 m0, s{sSLOT}, {4*XP}'
    dmax = [f'buffer_load_dwordx4 v{vEX+j}, {srdn(SX)}, s{sXO+j} offen offset:{j*XP}{P.pol_x} lds' for j in range(4)]
    dmae = f'buffer_load_dwordx4 v{vEE}, {srdn(SE)}, 0 offen{P.pol_e} lds'
    adv = [f's_add_u32 s{sSLOT}, s{sSLOT}, {SLOT}', f's_cmp_eq_u32 s{sSLOT}, s{sRING1}', f's_cselect_b32 s{sSLOT}, s{sRING0}, s{sSLOT}']
    baddr = [f'v_add_u32 v{vBX}, s{sSLOT}, v{vBX0}', f'v_add_u32 v{vBE}, s{sSLOT}, v{vBE0}']
    bread = [f'ds_read_b128 {R("a", aBX+4*k, 4)}, v{vBX} offset:{32*k}' for k in range(4)] + [f'ds_read_b128 {R("a", aBE, 4)}, v{vBE}']
    PF = [m0x] + xaddr + [eaddr] + dmax + [m0e] + [adv[0]] + [dmae] + adv[1:] + ell_read + ell_adv + baddr

    for x in ell_read + ell_adv: a(x)
    for r in range(D):
        a('s_waitcnt lgkmcnt(0)')
        for x in PF: a(x)

    a.label('K2_group')
    a(f'v_mbcnt_lo_u32_b32 v{vE}, -1, 0'); a(f'v_mbcnt_hi_u32_b32 v{vE}, -1, v{vE}')
    a(f'v_and_b32 v{vE+1}, 31, v{vE}')
    a(f'v_lshl_add_u32 v{vE+1}, v{vE+1}, 2, s{sQROW}')
    a(f'v_and_b32 v{vE}, 32, v{vE}')
    a(f'v_lshlrev_b32 v{vE}, 3, v{vE}')
    a(f'ds_read_b32 v{vINFO}, v{vE+1}')
    for i in range(16): a(f'ds_read_b128 {R("v", vQ+4*i, 4)}, v{vE} offset:{B1T + 16*i}')
    a(f's_waitcnt vmcnt({VW})')
    for x in bread[:4]: a(x)
    a('s_waitcnt lgkmcnt(0)')
    pf = list(PF)
    for k in range(4):
        for c in range(4):
            a(mfma(R('v', vQ+16*c, 16), R('a', aW1B + (c*4+k)*4, 4), R('a', aBX+4*k, 4), R('v', vQ+16*c, 16)))
            if k == 0:
                for x in pf[:6]: a(x)
                pf = pf[6:]
        if k == 0:
            assert not pf
            a(f's_waitcnt vmcnt({VW})')
            a(bread[4])
        a(bread[k])
    a(f'v_bfe_u32 v{vDEG}, v{vINFO}, 24, 6')
    a(f's_lshl_b32 s3, s{sL}, 8')
    a(f's_add_u32 s{sQROW}, s{sQROW}, s3')
    a(f's_add_u32 s{sQROW}, s{sQROW}, 256')
    a(f's_mov_b32 s{sT}, 1')
    a('s_waitcnt lgkmcnt(0)')
    pf = list(PF)
    for k in range(5):
        a(m1(0, k, vN, vQ))
        n = 2 if k < 4 else 99
        for x in pf[:n]: a(x)
        pf = pf[n:]
    for c in range(4):
        cn = (c + 1) & 3
        if c == 3: a('s_waitcnt lgkmcnt(0)')
        for k in range(5):
            a(m1(cn, k, vN + 16*cn if c < 3 else vY, vQ + 16*cn))
            if c == 2:
                if k == 0: a(f's_waitcnt vmcnt({VW})')
                a(bread[k])
            for i in range(3*k, 3*k + (3 if k < 4 else 4)): a(f'v_exp_f32 v{vD+16*c+i}, v{vN+16*c+i}')
        for p in range(8):
            d = R('v', vD + 16*c + 2*p, 2)
            a(f'v_pk_add_f32 {d}, {d}, 1.0 op_sel_hi:[1,0]')
    a(f's_cmp_ge_u32 s{sT}, s{sL}'); a('s_cbranch_scc1 K2_flush')
    a('.p2align 3')
    a.label('K2_row')
    for c in range(4):
        cn = (c + 1) & 3
        y = vY + 16 * (c & 1); yn = vY + 16 * (cn & 1)
        S = [[] for _ in range(5)]
        V = [[] for _ in range(5)]
        if c == 0:
            S[0] = ['s_mov_b64 exec, -1']; V[0] = xaddr + [eaddr]
            S[1] = [m0x]; V[1] = dmax
            S[2] = [m0e]; V[2] = [dmae] + ell_read
            S[3] = [adv[0]]; V[3] = ell_adv
            S[4] = [adv[1]]; V[4] = [f'v_cmpx_lt_u32 vcc, s{sT}, v{vDEG}']
        if c == 1:
            S[0] = [adv[2]]; V[4] = baddr
            S[1] = [f's_add_u32 s{sT}, s{sT}, 1']
        if c == 2:
            S[0] = [f's_waitcnt vmcnt({VW})']
            for k in range(5): V[k] = [bread[k]]
        if c == 3:
            a('s_waitcnt lgkmcnt(0)')
            S[0] = [f's_cmp_lt_u32 s{sT}, s{sL}']
        L = []
        for k in range(5):
            L.append(m1(cn, k, yn, vQ + 16*cn)); L += S[k]
            for i in range(3*k, 3*k + (3 if k < 4 else 4)): L.append(f'v_exp_f32 v{vE+i}, v{y+i}')
            L += V[k]
        for x in L: a(x)
        a('.p2align 3')
        for p in range(8):
            yy, nn, dd, ee = R('v', y+2*p, 2), R('v', vN+16*c+2*p, 2), R('v', vD+16*c+2*p, 2), R('v', vE+2*p, 2)
            a(f'v_pk_fma_f32 {yy}, {yy}, {dd}, {nn}')
            a(f'v_pk_fma_f32 {dd}, {dd}, {ee}, {dd}')
            a(f'v_pk_fma_f32 {nn}, {nn}, {ee}, {yy}')
    a('s_cbranch_scc1 K2_row')
    a.label('K2_flush')
    a('s_mov_b64 exec, -1')
    for x in baddr: a(x)
    a(f'v_mbcnt_lo_u32_b32 v{vQ+32}, -1, 0'); a(f'v_mbcnt_hi_u32_b32 v{vQ+32}, -1, v{vQ+32}')
    a(f'v_and_b32 v{vQ+32}, 32, v{vQ+32}')
    a(f'v_lshlrev_b32 v{vQ+33}, 2, v{vQ+32}')
    for i in range(8): a(f'ds_read_b128 {R("v", vQ+4*i, 4)}, v{vQ+33} offset:{B2T + 16*i}')
    a(f'v_lshlrev_b32 v{vQ+32}, 1, v{vQ+32}')
    a(f'v_and_or_b32 v{vQ+32}, v{vINFO}, s{sMASK}, v{vQ+32}')
    a(f'v_cvt_f32_u32 v{vQ+34}, v{vDEG}')
    a(f'v_mov_b32 v{vMAX}, 0')
    def g3(c, i):
        u = 2*c + (i >> 1); dt = i & 1
        acc = R('v', vY + 16*dt, 16)
        return mfma(acc, R('a', aW2 + (dt*8+u)*4, 4), R('v', vE + 8*(c & 1) + 4*(i >> 1), 4), acc if u else '0')
    for c in range(4):
        for q in range(4):
            if c: a(g3(c-1, q))
            for p in range(2):
                d = vD + 16*c + 4*q + 2*p
                a(f'v_max3_f32 v{vMAX}, v{d}, v{d+1}, v{vMAX}')
                a(f'v_rcp_f32 v{d}, v{d}'); a(f'v_rcp_f32 v{d+1}, v{d+1}')
        for p in range(8):
            nn, dd = R('v', vN+16*c+2*p, 2), R('v', vD+16*c+2*p, 2)
            a(f'v_pk_mul_f32 {nn}, {nn}, {dd}')
        if c == 3:
            a('s_waitcnt lgkmcnt(0)')
            for p in range(16):
                qq = R('v', vQ+2*p, 2)
                a(f'v_pk_mul_f32 {qq}, {qq}, {R("v", vQ+34, 2)} op_sel_hi:[1,0]')
        for p in range(8):
            a(f'v_cvt_pk_bf16_f32 v{vE+8*(c&1)+p}, v{vN+16*c+2*p}, v{vN+16*c+2*p+1}')
    for q in range(4): a(g3(3, q))
    a(f's_mov_b32 s3, {f32(2.0**100)}')
    a(f'v_cmp_lt_f32 s[56:57], s3, v{vMAX}')
    a(f'v_cmp_ne_u32 s[58:59], 0, v{vDEG}')
    a(f'v_mov_b32 v{vMAX}, 0x207')
    for p in range(16):
        yy, qq = R('v', vY+2*p, 2), R('v', vQ+2*p, 2)
        a(f'v_pk_fma_f32 {yy}, {yy}, s[{sLN2}:{sLN2+1}], {qq}')
    a(f'v_cmp_class_f32 vcc, v{vY}, v{vMAX}')
    for p in range(16):
        a(f'v_mov_b32 v{vE+p}, 0')
    a('s_or_b64 vcc, vcc, s[56:57]')
    a('s_and_b64 vcc, vcc, s[58:59]')
    a(f's_or_b64 s[{sBAD}:{sBAD+1}], s[{sBAD}:{sBAD+1}], vcc')
    a('s_mov_b64 exec, s[58:59]')
    for p in range(16):
        a(f'v_cvt_pk_bf16_f32 v{vE+p}, v{vY+2*p}, v{vY+2*p+1}')
    a('s_mov_b64 exec, -1')
    for i in range(4):
        a(f'buffer_store_dwordx4 {R("v", vE+4*i, 4)}, v{vQ+32}, {srdn(SO)}, 0 offen offset:{16*i}{P.pol_out}')
    a(f's_mov_b32 s{sL}, s{sLNEXT}')
    a(f's_mov_b32 s{sLNEXT}, 0')
    a(f's_cmp_lg_u32 s{sL}, 0'); a('s_cbranch_scc1 K2_group')
    a(f's_cmp_eq_u64 s[{sBAD}:{sBAD+1}], 0')
    a('v_mov_b32 v1, 0'); a('v_mov_b32 v2, 1')
    a('s_cbranch_scc1 K2_nobad')
    a(f'ds_write_b32 v1, v2 offset:{FLAG}')
    a.label('K2_nobad')
    a('s_waitcnt lgkmcnt(0)')
    a('s_barrier')
    a(f'ds_read_b32 v2, v1 offset:{FLAG}')
    a('s_waitcnt lgkmcnt(0)')
    a('v_readfirstlane_b32 s3, v2')
    a('s_cmp_eq_u32 s3, 0'); a('s_cbranch_scc1 K2_end')

    a.label('K2_slow')
    a('s_mov_b64 exec, -1')
    a('s_waitcnt vmcnt(0) lgkmcnt(0)')
    a('s_barrier')
    vL, vS, vH, vT0, vT1, vOA = 240, 241, 242, 244, 245, 246
    a(f'v_mbcnt_lo_u32_b32 v{vL}, -1, 0'); a(f'v_mbcnt_hi_u32_b32 v{vL}, -1, v{vL}')
    a(f'v_and_b32 v{vS}, 31, v{vL}')
    a(f'v_lshrrev_b32 v{vH}, 5, v{vL}')
    a(f's_lshl_b32 s3, s{sWAVE}, 10')
    a(f'v_lshl_add_u32 v4, v{vL}, 4, s3')
    for i in range(4): a(f'v_mov_b32 v{i}, 0')
    for i in range(13): a(f'ds_write_b128 v4, v[0:3] offset:{OACC + 4096*i}')
    a('s_waitcnt lgkmcnt(0)')
    a('s_barrier')
    sC, sST, sCNT = 56, 57, 58
    a(f's_mov_b32 s{sC}, s{sWAVE}')
    a.label('K2_s_chunk')
    a(f's_lshl_b32 s3, s{sC}, 10')
    a(f'v_mov_b32 v{vT0}, s3')
    a(f'buffer_load_dword v{vT0}, v{vT0}, {srdn(SW)}, s33 offen')
    a('s_waitcnt vmcnt(0)')
    a(f'v_readfirstlane_b32 s3, v{vT0}')
    a(f's_lshr_b32 s{sCNT}, s3, 16')
    a('s_and_b32 s3, s3, 0xffff')
    a(f's_mul_i32 s{sST}, s{sC}, {CH}')
    a(f's_add_u32 s{sST}, s{sST}, s3')
    a.label('K2_s_batch')
    a(f's_cmp_lt_i32 s{sCNT}, 1'); a('s_cbranch_scc1 K2_s_next')
    a(f'v_add_lshl_u32 v{vT0}, v{vS}, s{sST}, 3')
    a(f'v_mov_b32 v{vT1}, {DUMMY}')
    a(f'v_cmp_gt_u32 s[60:61], s{sCNT}, v{vS}')
    a(f'v_cndmask_b32 v{vT0}, v{vT1}, v{vT0}, s[60:61]')
    a(f'buffer_load_dwordx2 v[{vT0}:{vT1}], v{vT0}, {srdn(SW)}, 0 offen')
    a(f'v_lshlrev_b32 v247, 8, v{vH}')
    for i in range(16): a(f'ds_read_b128 {R("v", vQ+4*i, 4)}, v247 offset:{B1T + 16*i}')
    a(f'v_lshlrev_b32 v247, 4, v{vH}')
    a('s_waitcnt vmcnt(0)')
    a(f'v_lshrrev_b32 v248, 24, v{vT0}')
    a(f'v_and_or_b32 v{vT0}, v{vT0}, s{sMASK}, v247')
    a(f'v_add_u32 v{vT1}, v{vT1}, v247')
    a(f'v_max_u32 v248, 1, v248')
    a(f'v_subrev_u32 v248, 1, v248')
    a(f'v_add_u32 v249, s{sNB0}, v248')
    a(f'v_lshl_add_u32 v249, v249, 7, v247')
    for k in range(4): a(f'buffer_load_dwordx4 {R("a", aBX+4*k, 4)}, v{vT0}, {srdn(SX)}, s{sXO} offen offset:{32*k}')
    a(f'buffer_load_dwordx4 {R("a", aBE, 4)}, v{vT1}, {srdn(SE)}, 0 offen')
    for k in range(4): a(f'buffer_load_dwordx4 {R("v", vE+4*k, 4)}, v249, {srdn(SX)}, s{sXO} offen offset:{32*k}')
    a(f'v_mul_u32_u24 v{vOA}, 260, v248')
    a(f'v_lshl_add_u32 v{vOA}, v{vH}, 7, v{vOA}')
    a('s_waitcnt vmcnt(0) lgkmcnt(0)')
    for c in range(4):
        q = R('v', vQ+16*c, 16)
        for k in range(4): a(mfma(q, R('a', aW1B + (c*4+k)*4, 4), R('v', vE+4*k, 4), q))
        for k in range(5): a(m1(c, k, vQ+16*c, vQ+16*c))
    for i in range(64): a(f'v_exp_f32 v{vD+i}, v{vQ+i}')
    for i in range(64): a(f'v_add_f32 v{vD+i}, 1.0, v{vD+i}')
    for i in range(64): a(f'v_rcp_f32 v{vD+i}, v{vD+i}')
    for i in range(64): a(f'v_mul_f32 v{vD+i}, v{vD+i}, v{vQ+i}')
    for i in range(32): a(f'v_cvt_pk_bf16_f32 v{vN+i}, v{vD+2*i}, v{vD+2*i+1}')
    a(f'v_lshlrev_b32 v247, 7, v{vH}')
    for i in range(8): a(f'ds_read_b128 {R("v", vQ+4*i, 4)}, v247 offset:{B2T + 16*i}')
    for dt in range(2):
        acc = R('v', vY + 16*dt, 16)
        for u in range(8): a(mfma(acc, R('a', aW2 + (dt*8+u)*4, 4), R('v', vN + 4*u, 4), acc if u else '0'))
    a('s_waitcnt lgkmcnt(0)')
    for i in range(32): a(f'v_fma_f32 v{vY+i}, v{vY+i}, s{sLN2}, v{vQ+i}')
    a('s_mov_b64 exec, s[60:61]')
    for i in range(32): a(f'ds_add_f32 v{vOA}, v{vY+i} offset:{OACC + 4*i}')
    a('s_mov_b64 exec, -1')
    a('s_waitcnt lgkmcnt(0)')
    a(f's_add_u32 s{sST}, s{sST}, 32')
    a(f's_sub_u32 s{sCNT}, s{sCNT}, 32')
    a('s_branch K2_s_batch')
    a.label('K2_s_next')
    a(f's_add_u32 s{sC}, s{sC}, 4')
    a(f's_cmp_lt_u32 s{sC}, {NCH}'); a('s_cbranch_scc1 K2_s_chunk')
    a('s_barrier')
    a(f's_lshl_b32 s3, s{sWAVE}, 1')
    a(f'v_add_u32 v1, s3, v{vH}')
    a.label('K2_s_out')
    a(f'v_cmp_gt_u32 vcc, s{sNNODE}, v1')
    a('v_mul_u32_u24 v4, 260, v1')
    a(f'v_lshl_add_u32 v4, v{vS}, 3, v4')
    a(f'v_add_u32 v4, {OACC}, v4')
    a(f'v_add_u32 v5, s{sNB0}, v1')
    a('v_lshlrev_b32 v5, 7, v5')
    a(f'v_lshl_add_u32 v5, v{vS}, 2, v5')
    a('s_and_b64 exec, exec, vcc')
    a('s_cbranch_execz K2_end')
    a('ds_read2_b32 v[2:3], v4 offset0:0 offset1:1')
    a('s_waitcnt lgkmcnt(0)')
    a('v_cvt_pk_bf16_f32 v2, v2, v3')
    a(f'buffer_store_dword v2, v5, {srdn(SO)}, 0 offen')
    a('v_add_u32 v1, 8, v1')
    a('s_branch K2_s_out')
    a.label('K2_end')
    a('s_endpgm')
    return a
```

```python
import sys, struct
from asmlib import Asm, check_all_edges

NAME = 'standalone__edge_featured_mpnn_mpnn__graph'
N, E = 50000, 800000
NB, BN = 256, 196
NCH, CH = 250, 3200
MAGIC = 85599
WS_REC, WS_TAB, WS_W = 0, 8 << 20, 9 << 20
WS_SIZE = 10 << 20
WS_STAMP = (9 << 20) + (512 << 10)
DUMMY = 0x40F00000
def f32(x): return struct.unpack('<I', struct.pack('<f', x))[0]
NLOG2E = f32(-1.4426950408889634)
NLN2 = f32(-0.6931471805599453)

class P:
    depth = 3
    stamp = 0
    pol_in = ' nt'
    pol_e = ''
    pol_x = ''
    pol_rec = ''
    pol_out = ''
    pol_k1st = ''

def srd(a, d, lo, size, hi=None):
    a(f's_mov_b32 s{d}, s{lo}')
    a(f's_and_b32 s{d+1}, s{lo+1}, 0xffff')
    a(f's_mov_b32 s{d+2}, {size}')
    a(f's_mov_b32 s{d+3}, 0x20000')

def wave_scan(a, v):
    for sh in (1, 2, 4, 8):
        a(f'v_add_u32_dpp v{v}, v{v}, v{v} row_shr:{sh} row_mask:0xf bank_mask:0xf bound_ctrl:0')
    a(f'v_add_u32_dpp v{v}, v{v}, v{v} row_bcast:15 row_mask:0xa bank_mask:0xf')
    a(f'v_add_u32_dpp v{v}, v{v}, v{v} row_bcast:31 row_mask:0xc bank_mask:0xf')

def descriptor(name, vgpr, accum, sgpr=96):
    return f'''.section .rodata,"a"
.p2align 6
.amdhsa_kernel {name}
  .amdhsa_next_free_vgpr {vgpr}
  .amdhsa_next_free_sgpr {sgpr}
  .amdhsa_accum_offset {accum}
  .amdhsa_group_segment_fixed_size 0
  .amdhsa_kernarg_size 88
  .amdhsa_user_sgpr_count 2
  .amdhsa_user_sgpr_kernarg_segment_ptr 1
  .amdhsa_system_sgpr_workgroup_id_x 1
.end_amdhsa_kernel
.text
'''

K1_T = 832
K1_HIST, K1_START, K1_STAGE = 0, 1024, 4096
K1_LDS = K1_STAGE + CH * 8

def gen_k1():
    a = Asm()
    a('.p2align 8'); a.label('bin_kernel')
    a('s_cmp_ge_u32 s2, %d' % (NCH + 4)); a('s_cbranch_scc1 K1_end')
    a('s_load_dwordx4 s[4:7], s[0:1], 16')
    a('s_load_dwordx2 s[8:9], s[0:1], 80')
    a('s_cmp_ge_u32 s2, %d' % NCH); a('s_cbranch_scc1 K1_prep')
    a('v_lshlrev_b32 v1, 2, v0')
    a('v_mov_b32 v2, 0')
    a('ds_write_b32 v1, v2')
    a('v_lshlrev_b32 v3, 4, v0')
    a(f's_mul_i32 s3, s2, {CH*4}')
    a(f's_mov_b32 s24, {MAGIC}')
    a(f's_movk_i32 s25, {-BN}')
    a(f's_mul_i32 s26, s2, {CH*32}')
    a(f'v_cmp_gt_u32 vcc, {CH//4}, v0')
    a('s_waitcnt lgkmcnt(0)')
    srd(a, 12, 6, E * 4)
    srd(a, 16, 4, E * 4)
    srd(a, 20, 8, WS_SIZE)
    a('s_mov_b64 s[10:11], vcc')
    a('s_mov_b64 exec, s[10:11]')
    a(f'buffer_load_dwordx4 v[4:7], v3, s[12:15], s3 offen{P.pol_in}')
    a(f'buffer_load_dwordx4 v[8:11], v3, s[16:19], s3 offen{P.pol_in}')
    a('v_mov_b32 v12, 1')
    a('v_lshlrev_b32 v13, 7, v0')
    a('v_add_u32 v13, s26, v13')
    a('s_barrier')
    a('s_waitcnt vmcnt(1)')
    for i in range(4):
        a(f'v_mul_u32_u24 v{14+i}, s24, v{4+i}')
    for i in range(4):
        a(f'v_lshrrev_b32 v{14+i}, 24, v{14+i}')
    for i in range(4):
        a(f'v_lshlrev_b32 v{18+i}, 2, v{14+i}')
        a(f'ds_add_rtn_u32 v{22+i}, v{18+i}, v12')
    for i in range(4):
        a(f'v_mad_i32_i24 v{4+i}, v{14+i}, s25, v{4+i}')
    for i in range(4):
        a(f'v_add_lshl_u32 v{4+i}, v{4+i}, 1, 24')
    a('s_waitcnt vmcnt(0)')
    for i in range(4):
        a(f'v_lshl_or_b32 v{26+2*i}, v{8+i}, 7, v{4+i}')
        if i == 0: a('v_mov_b32 v27, v13')
        else: a(f'v_add_u32 v{27+2*i}, {32*i}, v13')
    a('s_mov_b64 exec, -1')
    a('v_and_b32 v34, 63, v0')
    a('v_lshlrev_b32 v34, 4, v34')
    a('s_waitcnt lgkmcnt(0)')
    a('s_barrier')
    a(f'ds_read_b128 v[36:39], v34 offset:{K1_HIST}')
    a('s_waitcnt lgkmcnt(0)')
    a('v_add_u32 v41, v36, v37')
    a('v_add_u32 v42, v41, v38')
    a('v_add_u32 v43, v42, v39')
    a('v_mov_b32 v35, v43')
    wave_scan(a, 35)
    a('v_sub_u32 v40, v35, v43')
    a('v_add_u32 v43, v40, v42')
    a('v_add_u32 v42, v40, v41')
    a('v_add_u32 v41, v40, v36')
    a(f'ds_write_b128 v34, v[40:43] offset:{K1_START}')
    a('s_mov_b64 exec, s[10:11]')
    for i in range(4):
        a(f'ds_read_b32 v{14+i}, v{18+i} offset:{K1_START}')
    a('v_cmp_gt_u32 vcc, 64, v0')
    a('s_lshl_b32 s27, s2, 10')
    a(f's_add_u32 s27, s27, {WS_TAB}')
    a('s_and_b64 exec, vcc, -1')
    a('s_cbranch_execz K1_notab')
    for i in range(4):
        a(f'v_lshl_or_b32 v{36+i}, v{36+i}, 16, v{40+i}')
    a(f'buffer_store_dwordx4 v[36:39], v34, s[20:23], s27 offen{P.pol_k1st}')
    a.label('K1_notab')
    a('s_mov_b64 exec, s[10:11]')
    for i in range(4):
        a(f's_waitcnt lgkmcnt({3-i})' if i == 0 else f's_waitcnt lgkmcnt(3)')
        a(f'v_add_lshl_u32 v{14+i}, v{14+i}, v{22+i}, 3')
        a(f'ds_write_b64 v{14+i}, v[{26+2*i}:{27+2*i}] offset:{K1_STAGE}')
    a(f's_mul_i32 s27, s2, {CH*8}')
    a(f's_add_u32 s28, s27, {CH*4}')
    a('s_waitcnt lgkmcnt(0)')
    a('s_barrier')
    a(f'ds_read_b128 v[4:7], v3 offset:{K1_STAGE}')
    a(f'ds_read_b128 v[8:11], v3 offset:{K1_STAGE + CH*4}')
    a('s_waitcnt lgkmcnt(1)')
    a(f'buffer_store_dwordx4 v[4:7], v3, s[20:23], s27 offen{P.pol_k1st}')
    a('s_waitcnt lgkmcnt(0)')
    a(f'buffer_store_dwordx4 v[8:11], v3, s[20:23], s28 offen{P.pol_k1st}')
    a('s_endpgm')

    a.label('K1_prep')
    a('s_load_dwordx2 s[30:31], s[0:1], 32')
    a('s_load_dwordx2 s[32:33], s[0:1], 48')
    a('v_lshrrev_b32 v1, 6, v0')
    a('v_and_b32 v2, 31, v0')
    a('v_bfe_u32 v3, v0, 5, 1')
    a('v_readfirstlane_b32 s3, v1')
    a(f's_sub_u32 s24, s2, {NCH}')
    a('s_mul_i32 s24, s24, 13')
    a('s_add_u32 s24, s24, s3')
    a('v_and_b32 v1, 63, v0')
    a('v_lshlrev_b32 v1, 4, v1')
    a('s_lshl_b32 s27, s24, 10')
    a(f's_add_u32 s27, s27, {WS_W}')
    a('s_waitcnt lgkmcnt(0)')
    srd(a, 12, 30, 144 * 128 * 2)
    srd(a, 16, 32, 128 * 64 * 2)
    srd(a, 20, 8, WS_SIZE)
    a('s_cmp_ge_u32 s24, 36'); a('s_cbranch_scc1 K1_prep_w2')
    a('s_lshr_b32 s25, s24, 2')
    a('s_and_b32 s26, s24, 3')
    a('s_lshl_b32 s28, s26, 4')
    a('s_cmp_lt_u32 s24, 16'); a('s_cbranch_scc1 K1_prep_go')
    a('s_sub_u32 s25, s25, 5')
    a('s_add_u32 s28, s28, 64')
    a('s_cmp_ge_u32 s24, 20'); a('s_cbranch_scc1 K1_prep_go')
    a('s_mov_b32 s25, s26')
    a('s_movk_i32 s28, 128')
    a.label('K1_prep_go')
    a('s_lshl_b32 s28, s28, 8')
    a('s_lshl_b32 s25, s25, 6')
    a('s_add_u32 s28, s28, s25')
    a('v_lshlrev_b32 v4, 11, v3')
    a('v_lshl_add_u32 v4, v2, 1, v4')
    for j in range(8):
        a(f'buffer_load_ushort v{8+j}, v4, s[12:15], s28 offen offset:{256*j}')
    a(f's_mov_b32 s29, {NLOG2E}')
    a('s_waitcnt vmcnt(0)')
    for j in range(8):
        a(f'v_lshlrev_b32 v{8+j}, 16, v{8+j}')
    for j in range(8):
        a(f'v_mul_f32 v{8+j}, s29, v{8+j}')
    for j in range(4):
        a(f'v_cvt_pk_bf16_f32 v{16+j}, v{8+2*j}, v{9+2*j}')
    a('buffer_store_dwordx4 v[16:19], v1, s[20:23], s27 offen')
    a('s_endpgm')
    a.label('K1_prep_w2')
    a('s_sub_u32 s24, s24, 36')
    a('s_lshr_b32 s25, s24, 3')
    a('s_and_b32 s26, s24, 7')
    a('s_lshl_b32 s28, s26, 11')
    a('s_lshl_b32 s25, s25, 5')
    a('s_add_u32 s28, s28, s25')
    a('v_bfe_u32 v4, v2, 2, 1')
    a('v_lshlrev_b32 v4, 5, v4')
    a('v_and_b32 v5, 3, v2')
    a('v_add_u32 v4, v4, v5')
    a('v_lshrrev_b32 v5, 3, v2')
    a('v_lshl_add_u32 v4, v5, 2, v4')
    a('v_lshlrev_b32 v4, 1, v4')
    a('v_lshl_add_u32 v4, v3, 9, v4')
    for j in range(8):
        a(f'buffer_load_ushort v{8+j}, v4, s[16:19], s28 offen offset:{128*((j&3)+8*(j>>2))}')
    a('s_waitcnt vmcnt(0)')
    for j in range(4):
        a(f'v_lshl_or_b32 v{16+j}, v{9+2*j}, 16, v{8+2*j}')
    a('buffer_store_dwordx4 v[16:19], v1, s[20:23], s27 offen')
    a.label('K1_end')
    a('s_endpgm')
    return a

if __name__ == '__main__':
    from gen_k2 import gen_k2, K2_LDS
    for kv in sys.argv[2:]:
        k, v = kv.split('=')
        cur = getattr(P, k)
        setattr(P, k, int(v) if isinstance(cur, int) else (' ' + v.replace('+', ' ') if v else ''))
    k1 = gen_k1(); k2 = gen_k2(P)
    for nm, k in (('k1', k1), ('k2', k2)):
        pr = check_all_edges(k)
        for p in pr: print('HAZARD on branch edge', nm, p, file=sys.stderr)
        print(nm, 'instrs', sum(1 for x in k.items if not isinstance(x, str)), 'auto nops', k.nops, file=sys.stderr)
    head = open('cdna_kernels/' + NAME + '.s.ref').read().split('; Override launch')[0]
    out = head
    out += f'; @launch kernel=bin_kernel grid=({NCH+4},1,1) block=({K1_T},1,1) lds={K1_LDS}\n'
    out += f'; @launch kernel={NAME}_kernel grid=({NB},1,1) block=(256,1,1) lds={K2_LDS(P)}\n'
    out += '.amdgcn_target "amdgcn-amd-amdhsa--gfx950"\n.text\n'
    out += '.globl bin_kernel\n.type bin_kernel,@function\n' + k1.text()
    out += f'.globl {NAME}_kernel\n.type {NAME}_kernel,@function\n' + k2.text()
    out += descriptor('bin_kernel', 48, 48, 40)
    out += descriptor(NAME + '_kernel', 512, 256, 96)
    open(sys.argv[1], 'w').write(out)
```

```python
from asmlib import Asm
from gen import *

DEG, HIST, FLAG = 0, 1024, 1280
ELLPOS, WTOT, B1T, B2T = 2048, 3056, 3072, 3584
ELL, ROWS = 4096, 176
RING = ELL + ROWS * 256
MAP = RING
NSLOT = 14
XP = 1056
SLOT = 4 * XP + 1024
OACC = 4096
def K2_LDS(P): return RING + 4 * P.depth * SLOT

vN, vD, vQ, vY, vE = 0, 64, 128, 192, 224
vEX, vEE, vAX, vAE, vCX, vCE, vBX0, vBE0, vBX, vBE, vINFO, vDEG, vMAX = 240, 244, 245, 246, 247, 248, 249, 250, 251, 252, 253, 254, 255
aW1A, aW1C, aW1B, aW2, aBX, aBE = 0, 64, 80, 144, 208, 224
SX, SE, SW, SO = 12, 16, 20, 24
sB, sNB0, sNNODE, sWAVE, sM = 28, 29, 30, 31, 32
sXO = 36
sMASK, sSLOT, sRING0, sRING1, sT, sL, sLNEXT, sQROW = 40, 41, 42, 43, 44, 45, 46, 47
sLN2, sBAD, sNG = 48, 50, 52
sL0, sRB0 = 56, 64
def R(p, b, n): return f'{p}[{b}:{b+n-1}]'
def srdn(s): return f's[{s}:{s+3}]'

def mfma(d, A, B, C):
    return f'v_mfma_f32_32x32x16_bf16 {d}, {A}, {B}, {C}'
def m1(c, k, dst, first_c):
    A = R('a', aW1A + (c * 4 + k) * 4, 4) if k < 4 else R('a', aW1C + c * 4, 4)
    B = R('a', aBX + k * 4, 4) if k < 4 else R('a', aBE, 4)
    return mfma(R('v', dst, 16), A, B, R('v', first_c if k == 0 else dst, 16))

def gen_k2(P):
    D = P.depth; GAP = D + 1
    VW = 5 * (D - 1)
    a = Asm()
    def stamp(i, real=False):
        if not P.stamp: return
        a(f's_mem{"real" if real else ""}time s[74:75]'); a('s_waitcnt lgkmcnt(0)'); a(f's_mov_b32 s{76+i}, s74')
    a('.p2align 8'); a.label(NAME + '_kernel')
    a(f's_cmp_ge_u32 s2, {NB}'); a('s_cbranch_scc1 K2_end')
    stamp(0, True); stamp(1)
    a('s_load_dwordx2 s[10:11], s[0:1], 80')
    a('s_load_dwordx4 s[4:7], s[0:1], 0')
    a('s_load_dwordx2 s[8:9], s[0:1], 40')
    a('s_load_dwordx4 s[52:55], s[0:1], 56')
    a(f's_and_b32 s{sB}, s2, 7')
    a(f's_lshl_b32 s{sB}, s{sB}, 5')
    a('s_lshr_b32 s3, s2, 3')
    a(f's_add_u32 s{sB}, s{sB}, s3')
    a(f's_mul_i32 s{sNB0}, s{sB}, {BN}')
    a(f's_sub_u32 s{sNNODE}, {N}, s{sNB0}')
    a(f's_min_u32 s{sNNODE}, s{sNNODE}, {BN}')
    a('v_lshrrev_b32 v1, 6, v0')
    a('v_and_b32 v2, 63, v0')
    a(f'v_readfirstlane_b32 s{sWAVE}, v1')
    a('v_lshlrev_b32 v3, 10, v0')
    a(f'v_mov_b32 v4, {DUMMY}')
    a(f'v_cmp_gt_u32 vcc, {NCH}, v0')
    a('v_lshlrev_b32 v9, 4, v2')
    a(f's_lshl_b32 s33, s{sB}, 2')
    a(f's_add_u32 s33, s33, {WS_TAB}')
    a('v_cndmask_b32 v3, v4, v3, vcc')
    a('v_and_b32 v10, 3, v0')
    a('v_bfe_u32 v11, v0, 2, 4')
    a('v_lshl_add_u32 v10, v11, 3, v10')
    a('v_lshl_add_u32 v10, v1, 2, v10')
    a('v_cmp_gt_u32 vcc, 128, v0')
    a('s_waitcnt lgkmcnt(0)')
    srd(a, SW, 10, WS_SIZE)
    a(f'buffer_load_dword v8, v3, {srdn(SW)}, s33 offen')
    a('v_cndmask_b32 v10, v2, v10, vcc')
    a('v_lshlrev_b32 v10, 1, v10')
    a(f's_cmp_lt_u32 s{sWAVE}, 2')
    a('s_cselect_b64 s[8:9], s[8:9], s[52:53]')
    a(f's_cselect_b32 s34, {NLOG2E}, 1.0')
    a('global_load_ushort v10, v10, s[8:9]')
    a(f's_mov_b32 s35, {WS_W}')
    for i in range(52):
        if i and i % 4 == 0: a('s_add_u32 s35, s35, 4096')
        a(f'buffer_load_dwordx4 {R("a", 4*i, 4)}, v9, {srdn(SW)}, s35 offen offset:{(i%4)*1024}')
    a(f's_sub_u32 s{SX}, s4, {3*XP}')
    a(f's_subb_u32 s{SX+1}, s5, 0')
    a(f's_and_b32 s{SX+1}, s{SX+1}, 0xffff')
    a(f's_mov_b32 s{SX+2}, {N*128 + 3*XP}')
    a(f's_mov_b32 s{SX+3}, 0x20000')
    srd(a, SE, 6, E * 32)
    srd(a, SO, 54, N * 128)
    for j in range(4): a(f's_movk_i32 s{sXO+j}, {(3-j)*XP}')
    a(f's_mov_b32 s{sMASK}, 0xffffff')
    a(f's_mov_b32 s{sLN2}, {NLN2}'); a(f's_mov_b32 s{sLN2+1}, {NLN2}')
    a(f's_mov_b64 s[{sBAD}:{sBAD+1}], 0')
    if P.stamp: a(f's_mov_b32 s{76+7}, 0'); a(f's_mov_b32 s{76+8}, 0'); a(f's_mov_b32 s{76+15}, 0')
    a('v_mov_b32 v5, v4'); a('v_mov_b32 v6, v4'); a('v_mov_b32 v7, v4')
    a('v_lshlrev_b32 v3, 4, v0')
    for i in range(15): a(f'ds_write_b128 v3, v[4:7] offset:{ELL + 4096*i}')
    a('v_mov_b32 v12, 0'); a('v_mov_b32 v13, 0')
    a('v_lshlrev_b32 v14, 3, v0')
    a('ds_write_b64 v14, v[12:13]')
    a('v_lshlrev_b32 v15, 2, v0')
    stamp(2)
    a('s_waitcnt vmcnt(52)')
    stamp(3)
    a('v_lshlrev_b32 v10, 16, v10')
    a('v_mul_f32 v10, s34, v10')
    a(f'ds_write_b32 v15, v10 offset:{B1T}')
    a('v_lshrrev_b32 v16, 16, v8')
    a('v_and_b32 v17, 0xffff, v8')
    a('v_mov_b32 v18, v16')
    wave_scan(a, 18)
    a(f's_lshl_b32 s3, s{sWAVE}, 2')
    a('v_mov_b32 v19, s3')
    a('s_mov_b32 exec_lo, 0'); a('s_brev_b32 exec_hi, 1')
    a(f'ds_write_b32 v19, v18 offset:{WTOT}')
    a('s_mov_b64 exec, -1')
    a(f's_movk_i32 s3, {CH}')
    a('v_mad_u32_u24 v17, v0, s3, v17')
    a('v_sub_u32 v18, v18, v16')
    a('s_waitcnt lgkmcnt(0)')
    a('s_barrier')
    a(f'ds_read_b128 v[20:23], v12 offset:{WTOT}')
    a('s_waitcnt lgkmcnt(0)')
    for i in range(4): a(f'v_readfirstlane_b32 s{56+i}, v{20+i}')
    a('s_add_u32 s57, s57, s56'); a('s_add_u32 s58, s58, s57'); a(f's_add_u32 s{sM}, s59, s58')
    a(f's_cmp_gt_u32 s{sM}, {NSLOT*256}'); a('s_cbranch_scc1 K2_slow')
    a(f's_cmp_eq_u32 s{sWAVE}, 1'); a('s_cselect_b32 s3, s56, 0')
    a(f's_cmp_eq_u32 s{sWAVE}, 2'); a('s_cselect_b32 s3, s57, s3')
    a(f's_cmp_eq_u32 s{sWAVE}, 3'); a('s_cselect_b32 s3, s58, s3')
    a('v_add_u32 v18, s3, v18')
    a('v_sub_u32 v17, v17, v18')
    a('v_lshlrev_b32 v17, 3, v17')
    a('v_lshlrev_b32 v18, 2, v18')
    a.label('K2_map')
    for j in range(8):
        a(f'v_cmpx_lt_u32 vcc, {j}, v16')
        a(f'ds_write_b32 v18, v17 offset:{MAP + 4*j}')
    a('v_add_u32 v18, 32, v18')
    a('v_subrev_u32 v16, 8, v16')
    a('s_cbranch_execnz K2_map')
    a('s_mov_b64 exec, -1')
    a('s_waitcnt lgkmcnt(0)')
    a('s_barrier')
    stamp(4)
    vR, vI, vK = 32, 64, 80
    for i in range(NSLOT): a(f'ds_read_b32 v{vI+i}, v15 offset:{MAP + 1024*i}')
    for i in range(NSLOT):
        a(f's_waitcnt lgkmcnt({NSLOT-1-i})')
        if i: a(f'v_add_u32 v14, 2048, v14')
        a(f'v_add_u32 v{vI+i}, v{vI+i}, v14')
        a(f'buffer_load_dwordx2 {R("v", vR+2*i, 2)}, v{vI+i}, {srdn(SW)}, 0 offen{P.pol_rec}')
    a('v_mov_b32 v13, 1')
    a('v_mov_b32 v12, 2')
    for i in range(NSLOT):
        a(f's_waitcnt vmcnt({NSLOT-1-i})')
        a(f'v_lshlrev_b32_sdwa v{vI+i}, v12, v{vR+2*i} dst_sel:DWORD dst_unused:UNUSED_PAD src0_sel:DWORD src1_sel:BYTE_3')
        if i >= 11:
            a(f'v_cmp_ne_u32 vcc, 0, v{vI+i}')
            a('s_mov_b64 exec, vcc')
        a(f'ds_add_rtn_u32 v{vK+i}, v{vI+i}, v13 offset:{DEG}')
        if i >= 11: a('s_mov_b64 exec, -1')
    a('s_waitcnt lgkmcnt(0)')
    a('s_barrier')
    stamp(5)
    a(f'ds_read_b32 v16, v15 offset:{DEG + 4}')
    a('v_cmp_gt_u32 vcc, 224, v0')
    a('v_lshlrev_b32 v19, 2, v2')
    a('s_waitcnt lgkmcnt(0)')
    a('v_min_u32 v17, 63, v16')
    a('v_sub_u32 v17, 63, v17')
    a('v_lshlrev_b32 v17, 2, v17')
    a('s_mov_b64 exec, vcc')
    a(f'ds_add_rtn_u32 v18, v17, v13 offset:{HIST}')
    a('s_mov_b64 exec, -1')
    a('s_waitcnt lgkmcnt(0)')
    a('s_barrier')
    a(f'ds_read_b32 v20, v19 offset:{HIST}')
    a('s_waitcnt lgkmcnt(0)')
    a('v_mov_b32 v21, v20')
    wave_scan(a, 21)
    a('v_sub_u32 v20, v21, v20')
    a('ds_bpermute_b32 v20, v17, v20')
    for g in range(7):
        a(f'v_cmp_lt_u32 vcc, {32*g}, v21')
        a(f's_ff1_i32_b64 s{sL0+g}, vcc')
        a(f's_sub_u32 s{sL0+g}, 63, s{sL0+g}')
        a(f's_max_u32 s{sL0+g}, s{sL0+g}, 1')
    a(f's_cmp_ge_u32 s{sL0}, 63'); a('s_cbranch_scc1 K2_slow')
    order = [(0, GAP), (1, 0), (6, GAP), (2, 0), (5, GAP), (3, 0), (4, GAP)]
    a(f's_movk_i32 s3, {ELL // 256}')
    for g, gap in order:
        a(f's_lshl_b32 s{sRB0+g}, s3, 8')
        a(f'v_writelane_b32 v22, s{sRB0+g}, {g}')
        a(f's_add_u32 s3, s3, s{sL0+g}')
        a(f's_add_u32 s3, s3, {1+gap}')
    a(f's_cmp_gt_u32 s3, {ELL // 256 + ROWS}'); a('s_cbranch_scc1 K2_slow')
    a('s_waitcnt lgkmcnt(0)')
    a('v_add_u32 v20, v20, v18')
    a('v_lshrrev_b32 v23, 5, v20')
    a('v_lshlrev_b32 v23, 2, v23')
    a('ds_bpermute_b32 v22, v23, v22')
    a('v_and_b32 v20, 31, v20')
    a(f'v_add_u32 v24, s{sNB0}, v0')
    a('v_lshlrev_b32 v24, 7, v24')
    a('v_lshl_or_b32 v24, v16, 24, v24')
    a(f'v_cmp_gt_u32 vcc, s{sNNODE}, v0')
    a('s_waitcnt lgkmcnt(0)')
    a('v_lshl_add_u32 v22, v20, 2, v22')
    a('s_mov_b64 exec, vcc')
    a('ds_write_b32 v22, v24')
    a(f'ds_write_b32 v15, v22 offset:{ELLPOS + 4}')
    a('s_mov_b64 exec, -1')
    a(f's_mov_b32 s{sQROW}, s{sRB0}'); a(f's_mov_b32 s{sL}, s{sL0}'); a(f's_mov_b32 s{sLNEXT}, 0')
    for w, (ga, gb) in ((1, (1, 6)), (2, (2, 5)), (3, (3, 4))):
        a(f's_cmp_eq_u32 s{sWAVE}, {w}')
        a(f's_cselect_b32 s{sQROW}, s{sRB0+ga}, s{sQROW}')
        a(f's_cselect_b32 s{sL}, s{sL0+ga}, s{sL}')
        a(f's_cselect_b32 s{sLNEXT}, s{sL0+gb}, s{sLNEXT}')
    a('s_waitcnt lgkmcnt(0)')
    a('s_barrier')
    vP = 96
    for i in range(NSLOT): a(f'ds_read_b32 v{vP+i}, v{vI+i} offset:{ELLPOS}')
    a('v_and_b32 v16, 7, v2'); a('v_bfe_u32 v17, v2, 4, 1'); a('v_xor_b32 v16, v16, v17')
    a(f'v_lshlrev_b32 v{vCX}, 4, v16')
    a('v_and_b32 v16, 1, v2'); a(f'v_lshlrev_b32 v{vCE}, 4, v16')
    a('v_and_b32 v16, 3, v2'); a(f'v_mul_u32_u24 v16, {XP}, v16')
    a('v_bfe_u32 v17, v2, 2, 3'); a('v_lshl_add_u32 v16, v17, 7, v16')
    a('v_bfe_u32 v17, v2, 3, 1'); a('v_lshrrev_b32 v18, 5, v2'); a('v_xor_b32 v17, v17, v18')
    a(f'v_lshl_add_u32 v{vBX0}, v17, 4, v16')
    a('v_and_b32 v16, 31, v2'); a('v_lshlrev_b32 v16, 5, v16'); a('v_lshl_add_u32 v16, v18, 4, v16')
    a(f'v_add_u32 v{vBE0}, {4*XP}, v16')
    a('v_lshrrev_b32 v16, 3, v2'); a(f'v_lshl_add_u32 v{vAX}, v16, 4, s{sQROW}')
    a('v_lshrrev_b32 v16, 1, v2'); a(f'v_lshl_add_u32 v{vAE}, v16, 2, s{sQROW}')
    a(f's_mul_i32 s{sRING0}, s{sWAVE}, {D*SLOT}')
    a(f's_add_u32 s{sRING0}, s{sRING0}, {RING}')
    a(f's_add_u32 s{sRING1}, s{sRING0}, {D*SLOT}')
    a(f's_mov_b32 s{sSLOT}, s{sRING0}')
    a('s_waitcnt lgkmcnt(0)')
    for i in range(NSLOT):
        a(f'v_lshl_add_u32 v{vP+i}, v{vK+i}, 8, v{vP+i}')
        a(f'v_cmpx_ne_u32 vcc, 0, v{vI+i}')
        a(f'ds_write2_b32 v{vP+i}, v{vR+2*i}, v{vR+2*i+1} offset0:64 offset1:96')
    a('s_mov_b64 exec, -1')
    a('s_waitcnt lgkmcnt(0)')
    a('s_barrier')

    ell_read = [f'ds_read_b128 {R("v", vEX, 4)}, v{vAX}', f'ds_read_b32 v{vEE}, v{vAE} offset:128']
    ell_adv = [f'v_add_u32 v{vAX}, 256, v{vAX}', f'v_add_u32 v{vAE}, 256, v{vAE}']
    xaddr = [f'v_and_or_b32 v{vEX+j}, v{vEX+j}, s{sMASK}, v{vCX}' for j in range(4)]
    eaddr = f'v_add_u32 v{vEE}, v{vEE}, v{vCE}'
    m0x = f's_mov_b32 m0, s{sSLOT}'; m0e = f's_add_u32 m0, s{sSLOT}, {4*XP}'
    dmax = [f'buffer_load_dwordx4 v{vEX+j}, {srdn(SX)}, s{sXO+j} offen offset:{j*XP}{P.pol_x} lds' for j in range(4)]
    dmae = f'buffer_load_dwordx4 v{vEE}, {srdn(SE)}, 0 offen{P.pol_e} lds'
    adv = [f's_add_u32 s{sSLOT}, s{sSLOT}, {SLOT}', f's_cmp_eq_u32 s{sSLOT}, s{sRING1}', f's_cselect_b32 s{sSLOT}, s{sRING0}, s{sSLOT}']
    baddr = [f'v_add_u32 v{vBX}, s{sSLOT}, v{vBX0}', f'v_add_u32 v{vBE}, s{sSLOT}, v{vBE0}']
    bread = [f'ds_read_b128 {R("a", aBX+4*k, 4)}, v{vBX} offset:{32*k}' for k in range(4)] + [f'ds_read_b128 {R("a", aBE, 4)}, v{vBE}']
    PF = [m0x] + xaddr + [eaddr] + dmax + [m0e] + [adv[0]] + [dmae] + adv[1:] + ell_read + ell_adv + baddr

    stamp(6)
    for x in ell_read + ell_adv: a(x)
    for r in range(D):
        a('s_waitcnt lgkmcnt(0)')
        for x in PF: a(x)

    a.label('K2_group')
    a(f'v_mbcnt_lo_u32_b32 v{vE}, -1, 0'); a(f'v_mbcnt_hi_u32_b32 v{vE}, -1, v{vE}')
    a(f'v_and_b32 v{vE+1}, 31, v{vE}')
    a(f'v_lshl_add_u32 v{vE+1}, v{vE+1}, 2, s{sQROW}')
    a(f'v_and_b32 v{vE}, 32, v{vE}')
    a(f'v_lshlrev_b32 v{vE}, 3, v{vE}')
    a(f'ds_read_b32 v{vINFO}, v{vE+1}')
    for i in range(16): a(f'ds_read_b128 {R("v", vQ+4*i, 4)}, v{vE} offset:{B1T + 16*i}')
    a(f's_waitcnt vmcnt({VW})')
    for x in bread[:4]: a(x)
    a('s_waitcnt lgkmcnt(0)')
    pf = list(PF)
    for k in range(4):
        for c in range(4):
            a(mfma(R('v', vQ+16*c, 16), R('a', aW1B + (c*4+k)*4, 4), R('a', aBX+4*k, 4), R('v', vQ+16*c, 16)))
            if k == 0:
                for x in pf[:6]: a(x)
                pf = pf[6:]
        if k == 0:
            assert not pf
            a(f's_waitcnt vmcnt({VW})')
            a(bread[4])
        a(bread[k])
    a(f'v_bfe_u32 v{vDEG}, v{vINFO}, 24, 6')
    a(f's_lshl_b32 s3, s{sL}, 8')
    a(f's_add_u32 s{sQROW}, s{sQROW}, s3')
    a(f's_add_u32 s{sQROW}, s{sQROW}, 256')
    a(f's_mov_b32 s{sT}, 1')
    if P.stamp:
        a(f's_cmp_lg_u32 s{76+7}, 0'); a('s_cbranch_scc1 K2_st7'); stamp(7); a.label('K2_st7')
    a('s_waitcnt lgkmcnt(0)')
    pf = list(PF)
    for k in range(5):
        a(m1(0, k, vN, vQ))
        n = 2 if k < 4 else 99
        for x in pf[:n]: a(x)
        pf = pf[n:]
    for c in range(4):
        cn = (c + 1) & 3
        if c == 3: a('s_waitcnt lgkmcnt(0)')
        for k in range(5):
            a(m1(cn, k, vN + 16*cn if c < 3 else vY, vQ + 16*cn))
            if c == 2:
                if k == 0: a(f's_waitcnt vmcnt({VW})')
                a(bread[k])
            for i in range(3*k, 3*k + (3 if k < 4 else 4)): a(f'v_exp_f32 v{vD+16*c+i}, v{vN+16*c+i}')
        for p in range(8):
            d = R('v', vD + 16*c + 2*p, 2)
            a(f'v_pk_add_f32 {d}, {d}, 1.0 op_sel_hi:[1,0]')
    a(f's_cmp_ge_u32 s{sT}, s{sL}'); a('s_cbranch_scc1 K2_flush')
    a('.p2align 3')
    a.label('K2_row')
    for c in range(4):
        cn = (c + 1) & 3
        y = vY + 16 * (c & 1); yn = vY + 16 * (cn & 1)
        S = [[] for _ in range(5)]
        V = [[] for _ in range(5)]
        if c == 0:
            S[0] = ['s_mov_b64 exec, -1']; V[0] = xaddr + [eaddr]
            S[1] = [m0x]; V[1] = dmax
            S[2] = [m0e]; V[2] = [dmae] + ell_read
            S[3] = [adv[0]]; V[3] = ell_adv
            S[4] = [adv[1]]; V[4] = [f'v_cmpx_lt_u32 vcc, s{sT}, v{vDEG}']
        if c == 1:
            S[0] = [adv[2]]; V[4] = baddr
            S[1] = [f's_add_u32 s{sT}, s{sT}, 1']
        if c == 2:
            S[0] = [f's_waitcnt vmcnt({VW})']
            for k in range(5): V[k] = [bread[k]]
        if c == 3:
            a('s_waitcnt lgkmcnt(0)')
            S[0] = [f's_cmp_lt_u32 s{sT}, s{sL}']
        L = []
        for k in range(5):
            L.append(m1(cn, k, yn, vQ + 16*cn)); L += S[k]
            for i in range(3*k, 3*k + (3 if k < 4 else 4)): L.append(f'v_exp_f32 v{vE+i}, v{y+i}')
            L += V[k]
        for x in L: a(x)
        a('.p2align 3')
        for p in range(8):
            yy, nn, dd, ee = R('v', y+2*p, 2), R('v', vN+16*c+2*p, 2), R('v', vD+16*c+2*p, 2), R('v', vE+2*p, 2)
            a(f'v_pk_fma_f32 {yy}, {yy}, {dd}, {nn}')
            a(f'v_pk_fma_f32 {dd}, {dd}, {ee}, {dd}')
            a(f'v_pk_fma_f32 {nn}, {nn}, {ee}, {yy}')
    a('s_cbranch_scc1 K2_row')
    a.label('K2_flush')
    if P.stamp:
        a(f's_cmp_lg_u32 s{76+8}, 0'); a('s_cbranch_scc1 K2_st8'); stamp(8); a(f's_mov_b32 s{76+13}, s{sL}'); a(f's_mov_b32 s{76+14}, s{sLNEXT}'); a.label('K2_st8')
        stamp(9)
    a('s_mov_b64 exec, -1')
    for x in baddr: a(x)
    a(f'v_mbcnt_lo_u32_b32 v{vQ+32}, -1, 0'); a(f'v_mbcnt_hi_u32_b32 v{vQ+32}, -1, v{vQ+32}')
    a(f'v_and_b32 v{vQ+32}, 32, v{vQ+32}')
    a(f'v_lshlrev_b32 v{vQ+33}, 2, v{vQ+32}')
    for i in range(8): a(f'ds_read_b128 {R("v", vQ+4*i, 4)}, v{vQ+33} offset:{B2T + 16*i}')
    a(f'v_lshlrev_b32 v{vQ+32}, 1, v{vQ+32}')
    a(f'v_and_or_b32 v{vQ+32}, v{vINFO}, s{sMASK}, v{vQ+32}')
    a(f'v_cvt_f32_u32 v{vQ+34}, v{vDEG}')
    a(f'v_mov_b32 v{vMAX}, 0')
    def g3(c, i):
        u = 2*c + (i >> 1); dt = i & 1
        acc = R('v', vY + 16*dt, 16)
        return mfma(acc, R('a', aW2 + (dt*8+u)*4, 4), R('v', vE + 8*(c & 1) + 4*(i >> 1), 4), acc if u else '0')
    for c in range(4):
        for q in range(4):
            if c: a(g3(c-1, q))
            for p in range(2):
                d = vD + 16*c + 4*q + 2*p
                a(f'v_max3_f32 v{vMAX}, v{d}, v{d+1}, v{vMAX}')
                a(f'v_rcp_f32 v{d}, v{d}'); a(f'v_rcp_f32 v{d+1}, v{d+1}')
        for p in range(8):
            nn, dd = R('v', vN+16*c+2*p, 2), R('v', vD+16*c+2*p, 2)
            a(f'v_pk_mul_f32 {nn}, {nn}, {dd}')
        if c == 3:
            a('s_waitcnt lgkmcnt(0)')
            for p in range(16):
                qq = R('v', vQ+2*p, 2)
                a(f'v_pk_mul_f32 {qq}, {qq}, {R("v", vQ+34, 2)} op_sel_hi:[1,0]')
        for p in range(8):
            a(f'v_cvt_pk_bf16_f32 v{vE+8*(c&1)+p}, v{vN+16*c+2*p}, v{vN+16*c+2*p+1}')
    for q in range(4): a(g3(3, q))
    a(f's_mov_b32 s3, {f32(2.0**100)}')
    a(f'v_cmp_lt_f32 s[56:57], s3, v{vMAX}')
    a(f'v_cmp_ne_u32 s[58:59], 0, v{vDEG}')
    a(f'v_mov_b32 v{vMAX}, 0x207')
    for p in range(16):
        yy, qq = R('v', vY+2*p, 2), R('v', vQ+2*p, 2)
        a(f'v_pk_fma_f32 {yy}, {yy}, s[{sLN2}:{sLN2+1}], {qq}')
    a(f'v_cmp_class_f32 vcc, v{vY}, v{vMAX}')
    for p in range(16):
        a(f'v_mov_b32 v{vE+p}, 0')
    a('s_or_b64 vcc, vcc, s[56:57]')
    a('s_and_b64 vcc, vcc, s[58:59]')
    a(f's_or_b64 s[{sBAD}:{sBAD+1}], s[{sBAD}:{sBAD+1}], vcc')
    a('s_mov_b64 exec, s[58:59]')
    for p in range(16):
        a(f'v_cvt_pk_bf16_f32 v{vE+p}, v{vY+2*p}, v{vY+2*p+1}')
    a('s_mov_b64 exec, -1')
    for i in range(4):
        a(f'buffer_store_dwordx4 {R("v", vE+4*i, 4)}, v{vQ+32}, {srdn(SO)}, 0 offen offset:{16*i}{P.pol_out}')
    a(f's_mov_b32 s{sL}, s{sLNEXT}')
    a(f's_mov_b32 s{sLNEXT}, 0')
    a(f's_cmp_lg_u32 s{sL}, 0'); a('s_cbranch_scc1 K2_group')
    if P.stamp:
        stamp(10); a('s_waitcnt vmcnt(0)'); stamp(11); stamp(12, True)
        for i in range(16): a(f'v_writelane_b32 v1, s{76+i}, {i}')
        a('v_mbcnt_lo_u32_b32 v2, -1, 0'); a('v_mbcnt_hi_u32_b32 v2, -1, v2'); a('v_lshlrev_b32 v2, 2, v2')
        a('s_lshl_b32 s3, s2, 2'); a(f's_add_u32 s3, s3, s{sWAVE}'); a('s_lshl_b32 s3, s3, 6'); a(f's_add_u32 s3, s3, {WS_STAMP}')
        a('s_mov_b64 exec, 0xffff')
        a(f'buffer_store_dword v1, v2, {srdn(SW)}, s3 offen')
        a('s_mov_b64 exec, -1')
    a(f's_cmp_eq_u64 s[{sBAD}:{sBAD+1}], 0')
    a('v_mov_b32 v1, 0'); a('v_mov_b32 v2, 1')
    a('s_cbranch_scc1 K2_nobad')
    a(f'ds_write_b32 v1, v2 offset:{FLAG}')
    a.label('K2_nobad')
    a('s_waitcnt lgkmcnt(0)')
    a('s_barrier')
    a(f'ds_read_b32 v2, v1 offset:{FLAG}')
    a('s_waitcnt lgkmcnt(0)')
    a('v_readfirstlane_b32 s3, v2')
    a('s_cmp_eq_u32 s3, 0'); a('s_cbranch_scc1 K2_end')

    a.label('K2_slow')
    a('s_mov_b64 exec, -1')
    a('s_waitcnt vmcnt(0) lgkmcnt(0)')
    a('s_barrier')
    vL, vS, vH, vT0, vT1, vOA = 240, 241, 242, 244, 245, 246
    a(f'v_mbcnt_lo_u32_b32 v{vL}, -1, 0'); a(f'v_mbcnt_hi_u32_b32 v{vL}, -1, v{vL}')
    a(f'v_and_b32 v{vS}, 31, v{vL}')
    a(f'v_lshrrev_b32 v{vH}, 5, v{vL}')
    a(f's_lshl_b32 s3, s{sWAVE}, 10')
    a(f'v_lshl_add_u32 v4, v{vL}, 4, s3')
    for i in range(4): a(f'v_mov_b32 v{i}, 0')
    for i in range(13): a(f'ds_write_b128 v4, v[0:3] offset:{OACC + 4096*i}')
    a('s_waitcnt lgkmcnt(0)')
    a('s_barrier')
    sC, sST, sCNT = 56, 57, 58
    a(f's_mov_b32 s{sC}, s{sWAVE}')
    a.label('K2_s_chunk')
    a(f's_lshl_b32 s3, s{sC}, 10')
    a(f'v_mov_b32 v{vT0}, s3')
    a(f'buffer_load_dword v{vT0}, v{vT0}, {srdn(SW)}, s33 offen')
    a('s_waitcnt vmcnt(0)')
    a(f'v_readfirstlane_b32 s3, v{vT0}')
    a(f's_lshr_b32 s{sCNT}, s3, 16')
    a('s_and_b32 s3, s3, 0xffff')
    a(f's_mul_i32 s{sST}, s{sC}, {CH}')
    a(f's_add_u32 s{sST}, s{sST}, s3')
    a.label('K2_s_batch')
    a(f's_cmp_lt_i32 s{sCNT}, 1'); a('s_cbranch_scc1 K2_s_next')
    a(f'v_add_lshl_u32 v{vT0}, v{vS}, s{sST}, 3')
    a(f'v_mov_b32 v{vT1}, {DUMMY}')
    a(f'v_cmp_gt_u32 s[60:61], s{sCNT}, v{vS}')
    a(f'v_cndmask_b32 v{vT0}, v{vT1}, v{vT0}, s[60:61]')
    a(f'buffer_load_dwordx2 v[{vT0}:{vT1}], v{vT0}, {srdn(SW)}, 0 offen')
    a(f'v_lshlrev_b32 v247, 8, v{vH}')
    for i in range(16): a(f'ds_read_b128 {R("v", vQ+4*i, 4)}, v247 offset:{B1T + 16*i}')
    a(f'v_lshlrev_b32 v247, 4, v{vH}')
    a('s_waitcnt vmcnt(0)')
    a(f'v_lshrrev_b32 v248, 24, v{vT0}')
    a(f'v_and_or_b32 v{vT0}, v{vT0}, s{sMASK}, v247')
    a(f'v_add_u32 v{vT1}, v{vT1}, v247')
    a(f'v_max_u32 v248, 1, v248')
    a(f'v_subrev_u32 v248, 1, v248')
    a(f'v_add_u32 v249, s{sNB0}, v248')
    a(f'v_lshl_add_u32 v249, v249, 7, v247')
    for k in range(4): a(f'buffer_load_dwordx4 {R("a", aBX+4*k, 4)}, v{vT0}, {srdn(SX)}, s{sXO} offen offset:{32*k}')
    a(f'buffer_load_dwordx4 {R("a", aBE, 4)}, v{vT1}, {srdn(SE)}, 0 offen')
    for k in range(4): a(f'buffer_load_dwordx4 {R("v", vE+4*k, 4)}, v249, {srdn(SX)}, s{sXO} offen offset:{32*k}')
    a(f'v_mul_u32_u24 v{vOA}, 260, v248')
    a(f'v_lshl_add_u32 v{vOA}, v{vH}, 7, v{vOA}')
    a('s_waitcnt vmcnt(0) lgkmcnt(0)')
    for c in range(4):
        q = R('v', vQ+16*c, 16)
        for k in range(4): a(mfma(q, R('a', aW1B + (c*4+k)*4, 4), R('v', vE+4*k, 4), q))
        for k in range(5): a(m1(c, k, vQ+16*c, vQ+16*c))
    for i in range(64): a(f'v_exp_f32 v{vD+i}, v{vQ+i}')
    for i in range(64): a(f'v_add_f32 v{vD+i}, 1.0, v{vD+i}')
    for i in range(64): a(f'v_rcp_f32 v{vD+i}, v{vD+i}')
    for i in range(64): a(f'v_mul_f32 v{vD+i}, v{vD+i}, v{vQ+i}')
    for i in range(32): a(f'v_cvt_pk_bf16_f32 v{vN+i}, v{vD+2*i}, v{vD+2*i+1}')
    a(f'v_lshlrev_b32 v247, 7, v{vH}')
    for i in range(8): a(f'ds_read_b128 {R("v", vQ+4*i, 4)}, v247 offset:{B2T + 16*i}')
    for dt in range(2):
        acc = R('v', vY + 16*dt, 16)
        for u in range(8): a(mfma(acc, R('a', aW2 + (dt*8+u)*4, 4), R('v', vN + 4*u, 4), acc if u else '0'))
    a('s_waitcnt lgkmcnt(0)')
    for i in range(32): a(f'v_fma_f32 v{vY+i}, v{vY+i}, s{sLN2}, v{vQ+i}')
    a('s_mov_b64 exec, s[60:61]')
    for i in range(32): a(f'ds_add_f32 v{vOA}, v{vY+i} offset:{OACC + 4*i}')
    a('s_mov_b64 exec, -1')
    a('s_waitcnt lgkmcnt(0)')
    a(f's_add_u32 s{sST}, s{sST}, 32')
    a(f's_sub_u32 s{sCNT}, s{sCNT}, 32')
    a('s_branch K2_s_batch')
    a.label('K2_s_next')
    a(f's_add_u32 s{sC}, s{sC}, 4')
    a(f's_cmp_lt_u32 s{sC}, {NCH}'); a('s_cbranch_scc1 K2_s_chunk')
    a('s_barrier')
    a(f's_lshl_b32 s3, s{sWAVE}, 1')
    a(f'v_add_u32 v1, s3, v{vH}')
    a.label('K2_s_out')
    a(f'v_cmp_gt_u32 vcc, s{sNNODE}, v1')
    a('v_mul_u32_u24 v4, 260, v1')
    a(f'v_lshl_add_u32 v4, v{vS}, 3, v4')
    a(f'v_add_u32 v4, {OACC}, v4')
    a(f'v_add_u32 v5, s{sNB0}, v1')
    a('v_lshlrev_b32 v5, 7, v5')
    a(f'v_lshl_add_u32 v5, v{vS}, 2, v5')
    a('s_and_b64 exec, exec, vcc')
    a('s_cbranch_execz K2_end')
    a('ds_read2_b32 v[2:3], v4 offset0:0 offset1:1')
    a('s_waitcnt lgkmcnt(0)')
    a('v_cvt_pk_bf16_f32 v2, v2, v3')
    a(f'buffer_store_dword v2, v5, {srdn(SO)}, 0 offen')
    a('v_add_u32 v1, 8, v1')
    a('s_branch K2_s_out')
    a.label('K2_end')
    a('s_endpgm')
    return a
```

```python
from asmlib import Asm
from gen import *

DEG, HIST, FLAG = 0, 1024, 1280
ELLPOS, WTOT, B1T, B2T = 2048, 3056, 3072, 3584
ELL, ROWS = 4096, 176
RING = ELL + ROWS * 256
MAP = RING
NSLOT = 14
XP = 1056
SLOT = 4 * XP + 1024
OACC = 4096
def K2_LDS(P): return RING + 4 * P.depth * SLOT

vN, vD, vQ, vY, vE = 0, 64, 128, 192, 224
vEX, vEE, vAX, vAE, vCX, vCE, vBX0, vBE0, vBX, vBE, vINFO, vDEG, vMAX = 240, 244, 245, 246, 247, 248, 249, 250, 251, 252, 253, 254, 255
aW1A, aW1C, aW1B, aW2, aBX, aBE = 0, 64, 80, 144, 208, 224
SX, SE, SW, SO = 12, 16, 20, 24
sB, sNB0, sNNODE, sWAVE, sM = 28, 29, 30, 31, 32
sXO = 36
sMASK, sSLOT, sRING0, sRING1, sT, sL, sLNEXT, sQROW = 40, 41, 42, 43, 44, 45, 46, 47
sLN2, sBAD, sNG = 48, 50, 52
sL0, sRB0 = 56, 64
def R(p, b, n): return f'{p}[{b}:{b+n-1}]'
def srdn(s): return f's[{s}:{s+3}]'

def mfma(d, A, B, C):
    return f'v_mfma_f32_32x32x16_bf16 {d}, {A}, {B}, {C}'
def m1(c, k, dst, first_c):
    A = R('a', aW1A + (c * 4 + k) * 4, 4) if k < 4 else R('a', aW1C + c * 4, 4)
    B = R('a', aBX + k * 4, 4) if k < 4 else R('a', aBE, 4)
    return mfma(R('v', dst, 16), A, B, R('v', first_c if k == 0 else dst, 16))

def gen_k2(P):
    D = P.depth; GAP = D + 1
    VW = 5 * (D - 1)
    a = Asm()
    def stamp(i, real=False):
        if not P.stamp: return
        a(f's_mem{"real" if real else ""}time s[74:75]'); a('s_waitcnt lgkmcnt(0)'); a(f's_mov_b32 s{76+i}, s74')
    a('.p2align 8'); a.label(NAME + '_kernel')
    a(f's_cmp_ge_u32 s2, {NB}'); a('s_cbranch_scc1 K2_end')
    stamp(0, True); stamp(1)
    a('s_load_dwordx2 s[10:11], s[0:1], 80')
    a('s_load_dwordx4 s[4:7], s[0:1], 0')
    a('s_load_dwordx2 s[8:9], s[0:1], 40')
    a('s_load_dwordx4 s[52:55], s[0:1], 56')
    a(f's_and_b32 s{sB}, s2, 7')
    a(f's_lshl_b32 s{sB}, s{sB}, 5')
    a('s_lshr_b32 s3, s2, 3')
    a(f's_add_u32 s{sB}, s{sB}, s3')
    a(f's_mul_i32 s{sNB0}, s{sB}, {BN}')
    a(f's_sub_u32 s{sNNODE}, {N}, s{sNB0}')
    a(f's_min_u32 s{sNNODE}, s{sNNODE}, {BN}')
    a('v_lshrrev_b32 v1, 6, v0')
    a('v_and_b32 v2, 63, v0')
    a(f'v_readfirstlane_b32 s{sWAVE}, v1')
    a('v_lshlrev_b32 v3, 10, v0')
    a(f'v_mov_b32 v4, {DUMMY}')
    a(f'v_cmp_gt_u32 vcc, {NCH}, v0')
    a('v_lshlrev_b32 v9, 4, v2')
    a(f's_lshl_b32 s33, s{sB}, 2')
    a(f's_add_u32 s33, s33, {WS_TAB}')
    a('v_cndmask_b32 v3, v4, v3, vcc')
    a('v_and_b32 v10, 3, v0')
    a('v_bfe_u32 v11, v0, 2, 4')
    a('v_lshl_add_u32 v10, v11, 3, v10')
    a('v_lshl_add_u32 v10, v1, 2, v10')
    a('v_cmp_gt_u32 vcc, 128, v0')
    a('s_waitcnt lgkmcnt(0)')
    srd(a, SW, 10, WS_SIZE)
    a(f'buffer_load_dword v8, v3, {srdn(SW)}, s33 offen')
    a('v_cndmask_b32 v10, v2, v10, vcc')
    a('v_lshlrev_b32 v10, 1, v10')
    a(f's_cmp_lt_u32 s{sWAVE}, 2')
    a('s_cselect_b64 s[8:9], s[8:9], s[52:53]')
    a(f's_cselect_b32 s34, {NLOG2E}, 1.0')
    a('global_load_ushort v10, v10, s[8:9]')
    a(f's_mov_b32 s35, {WS_W}')
    for i in range(52):
        if i and i % 4 == 0: a('s_add_u32 s35, s35, 4096')
        a(f'buffer_load_dwordx4 {R("a", 4*i, 4)}, v9, {srdn(SW)}, s35 offen offset:{(i%4)*1024}')
    a(f's_sub_u32 s{SX}, s4, {3*XP}')
    a(f's_subb_u32 s{SX+1}, s5, 0')
    a(f's_and_b32 s{SX+1}, s{SX+1}, 0xffff')
    a(f's_mov_b32 s{SX+2}, {N*128 + 3*XP}')
    a(f's_mov_b32 s{SX+3}, 0x20000')
    srd(a, SE, 6, E * 32)
    srd(a, SO, 54, N * 128)
    for j in range(4): a(f's_movk_i32 s{sXO+j}, {(3-j)*XP}')
    a(f's_mov_b32 s{sMASK}, 0xffffff')
    a(f's_mov_b32 s{sLN2}, {NLN2}'); a(f's_mov_b32 s{sLN2+1}, {NLN2}')
    a(f's_mov_b64 s[{sBAD}:{sBAD+1}], 0')
    if P.stamp: a(f's_mov_b32 s{76+7}, 0'); a(f's_mov_b32 s{76+8}, 0'); a(f's_mov_b32 s{76+15}, 0')
    a('v_mov_b32 v5, v4'); a('v_mov_b32 v6, v4'); a('v_mov_b32 v7, v4')
    a('v_lshlrev_b32 v3, 4, v0')
    for i in range(15): a(f'ds_write_b128 v3, v[4:7] offset:{ELL + 4096*i}')
    a('v_mov_b32 v12, 0'); a('v_mov_b32 v13, 0')
    a('v_lshlrev_b32 v14, 3, v0')
    a('ds_write_b64 v14, v[12:13]')
    a('v_lshlrev_b32 v15, 2, v0')
    stamp(2)
    a('s_waitcnt vmcnt(52)')
    stamp(3)
    a('v_lshlrev_b32 v10, 16, v10')
    a('v_mul_f32 v10, s34, v10')
    a(f'ds_write_b32 v15, v10 offset:{B1T}')
    a('v_lshrrev_b32 v16, 16, v8')
    a('v_and_b32 v17, 0xffff, v8')
    a('v_mov_b32 v18, v16')
    wave_scan(a, 18)
    a(f's_lshl_b32 s3, s{sWAVE}, 2')
    a('v_mov_b32 v19, s3')
    a('s_mov_b32 exec_lo, 0'); a('s_brev_b32 exec_hi, 1')
    a(f'ds_write_b32 v19, v18 offset:{WTOT}')
    a('s_mov_b64 exec, -1')
    a(f's_movk_i32 s3, {CH}')
    a('v_mad_u32_u24 v17, v0, s3, v17')
    a('v_sub_u32 v18, v18, v16')
    a('s_waitcnt lgkmcnt(0)')
    a('s_barrier')
    a(f'ds_read_b128 v[20:23], v12 offset:{WTOT}')
    a('s_waitcnt lgkmcnt(0)')
    for i in range(4): a(f'v_readfirstlane_b32 s{56+i}, v{20+i}')
    a('s_add_u32 s57, s57, s56'); a('s_add_u32 s58, s58, s57'); a(f's_add_u32 s{sM}, s59, s58')
    a(f's_cmp_gt_u32 s{sM}, {NSLOT*256}'); a('s_cbranch_scc1 K2_slow')
    a(f's_cmp_eq_u32 s{sWAVE}, 1'); a('s_cselect_b32 s3, s56, 0')
    a(f's_cmp_eq_u32 s{sWAVE}, 2'); a('s_cselect_b32 s3, s57, s3')
    a(f's_cmp_eq_u32 s{sWAVE}, 3'); a('s_cselect_b32 s3, s58, s3')
    a('v_add_u32 v18, s3, v18')
    a('v_sub_u32 v17, v17, v18')
    a('v_lshlrev_b32 v17, 3, v17')
    a('v_lshlrev_b32 v18, 2, v18')
    a.label('K2_map')
    for j in range(8):
        a(f'v_cmpx_lt_u32 vcc, {j}, v16')
        a(f'ds_write_b32 v18, v17 offset:{MAP + 4*j}')
    a('v_add_u32 v18, 32, v18')
    a('v_subrev_u32 v16, 8, v16')
    a('s_cbranch_execnz K2_map')
    a('s_mov_b64 exec, -1')
    a('s_waitcnt lgkmcnt(0)')
    a('s_barrier')
    stamp(4)
    vR, vI, vK = 32, 64, 80
    for i in range(NSLOT): a(f'ds_read_b32 v{vI+i}, v15 offset:{MAP + 1024*i}')
    for i in range(NSLOT):
        a(f's_waitcnt lgkmcnt({NSLOT-1-i})')
        if i: a(f'v_add_u32 v14, 2048, v14')
        a(f'v_add_u32 v{vI+i}, v{vI+i}, v14')
        a(f'buffer_load_dwordx2 {R("v", vR+2*i, 2)}, v{vI+i}, {srdn(SW)}, 0 offen{P.pol_rec}')
    a('v_mov_b32 v13, 1')
    a('v_mov_b32 v12, 2')
    for i in range(NSLOT):
        a(f's_waitcnt vmcnt({NSLOT-1-i})')
        a(f'v_lshlrev_b32_sdwa v{vI+i}, v12, v{vR+2*i} dst_sel:DWORD dst_unused:UNUSED_PAD src0_sel:DWORD src1_sel:BYTE_3')
        if i >= 11:
            a(f'v_cmp_ne_u32 vcc, 0, v{vI+i}')
            a('s_mov_b64 exec, vcc')
        a(f'ds_add_rtn_u32 v{vK+i}, v{vI+i}, v13 offset:{DEG}')
        if i >= 11: a('s_mov_b64 exec, -1')
    a('s_waitcnt lgkmcnt(0)')
    a('s_barrier')
    stamp(5)
    a(f'ds_read_b32 v16, v15 offset:{DEG + 4}')
    a('v_cmp_gt_u32 vcc, 224, v0')
    a('v_lshlrev_b32 v19, 2, v2')
    a('s_waitcnt lgkmcnt(0)')
    a('v_min_u32 v17, 63, v16')
    a('v_sub_u32 v17, 63, v17')
    a('v_lshlrev_b32 v17, 2, v17')
    a('s_mov_b64 exec, vcc')
    a(f'ds_add_rtn_u32 v18, v17, v13 offset:{HIST}')
    a('s_mov_b64 exec, -1')
    a('s_waitcnt lgkmcnt(0)')
    a('s_barrier')
    a(f'ds_read_b32 v20, v19 offset:{HIST}')
    a('s_waitcnt lgkmcnt(0)')
    a('v_mov_b32 v21, v20')
    wave_scan(a, 21)
    a('v_sub_u32 v20, v21, v20')
    a('ds_bpermute_b32 v20, v17, v20')
    for g in range(7):
        a(f'v_cmp_lt_u32 vcc, {32*g}, v21')
        a(f's_ff1_i32_b64 s{sL0+g}, vcc')
        a(f's_sub_u32 s{sL0+g}, 63, s{sL0+g}')
        a(f's_max_u32 s{sL0+g}, s{sL0+g}, 1')
    a(f's_cmp_ge_u32 s{sL0}, 63'); a('s_cbranch_scc1 K2_slow')
    order = [(0, GAP), (1, 0), (6, GAP), (2, 0), (5, GAP), (3, 0), (4, GAP)]
    a(f's_movk_i32 s3, {ELL // 256}')
    for g, gap in order:
        a(f's_lshl_b32 s{sRB0+g}, s3, 8')
        a(f'v_writelane_b32 v22, s{sRB0+g}, {g}')
        a(f's_add_u32 s3, s3, s{sL0+g}')
        a(f's_add_u32 s3, s3, {1+gap}')
    a(f's_cmp_gt_u32 s3, {ELL // 256 + ROWS}'); a('s_cbranch_scc1 K2_slow')
    a('s_waitcnt lgkmcnt(0)')
    a('v_add_u32 v20, v20, v18')
    a('v_lshrrev_b32 v23, 5, v20')
    a('v_lshlrev_b32 v23, 2, v23')
    a('ds_bpermute_b32 v22, v23, v22')
    a('v_and_b32 v20, 31, v20')
    a(f'v_add_u32 v24, s{sNB0}, v0')
    a('v_lshlrev_b32 v24, 7, v24')
    a('v_lshl_or_b32 v24, v16, 24, v24')
    a(f'v_cmp_gt_u32 vcc, s{sNNODE}, v0')
    a('s_waitcnt lgkmcnt(0)')
    a('v_lshl_add_u32 v22, v20, 2, v22')
    a('s_mov_b64 exec, vcc')
    a('ds_write_b32 v22, v24')
    a(f'ds_write_b32 v15, v22 offset:{ELLPOS + 4}')
    a('s_mov_b64 exec, -1')
    a(f's_mov_b32 s{sQROW}, s{sRB0}'); a(f's_mov_b32 s{sL}, s{sL0}'); a(f's_mov_b32 s{sLNEXT}, 0')
    for w, (ga, gb) in ((1, (1, 6)), (2, (2, 5)), (3, (3, 4))):
        a(f's_cmp_eq_u32 s{sWAVE}, {w}')
        a(f's_cselect_b32 s{sQROW}, s{sRB0+ga}, s{sQROW}')
        a(f's_cselect_b32 s{sL}, s{sL0+ga}, s{sL}')
        a(f's_cselect_b32 s{sLNEXT}, s{sL0+gb}, s{sLNEXT}')
    a('s_waitcnt lgkmcnt(0)')
    a('s_barrier')
    vP = 96
    for i in range(NSLOT): a(f'ds_read_b32 v{vP+i}, v{vI+i} offset:{ELLPOS}')
    a('v_and_b32 v16, 7, v2'); a('v_bfe_u32 v17, v2, 4, 1'); a('v_xor_b32 v16, v16, v17')
    a(f'v_lshlrev_b32 v{vCX}, 4, v16')
    a('v_and_b32 v16, 1, v2'); a(f'v_lshlrev_b32 v{vCE}, 4, v16')
    a('v_and_b32 v16, 3, v2'); a(f'v_mul_u32_u24 v16, {XP}, v16')
    a('v_bfe_u32 v17, v2, 2, 3'); a('v_lshl_add_u32 v16, v17, 7, v16')
    a('v_bfe_u32 v17, v2, 3, 1'); a('v_lshrrev_b32 v18, 5, v2'); a('v_xor_b32 v17, v17, v18')
    a(f'v_lshl_add_u32 v{vBX0}, v17, 4, v16')
    a('v_and_b32 v16, 31, v2'); a('v_lshlrev_b32 v16, 5, v16'); a('v_lshl_add_u32 v16, v18, 4, v16')
    a(f'v_add_u32 v{vBE0}, {4*XP}, v16')
    a('v_lshrrev_b32 v16, 3, v2'); a(f'v_lshl_add_u32 v{vAX}, v16, 4, s{sQROW}')
    a('v_lshrrev_b32 v16, 1, v2'); a(f'v_lshl_add_u32 v{vAE}, v16, 2, s{sQROW}')
    a(f's_mul_i32 s{sRING0}, s{sWAVE}, {D*SLOT}')
    a(f's_add_u32 s{sRING0}, s{sRING0}, {RING}')
    a(f's_add_u32 s{sRING1}, s{sRING0}, {D*SLOT}')
    a(f's_mov_b32 s{sSLOT}, s{sRING0}')
    a('s_waitcnt lgkmcnt(0)')
    for i in range(NSLOT):
        a(f'v_lshl_add_u32 v{vP+i}, v{vK+i}, 8, v{vP+i}')
        a(f'v_cmpx_ne_u32 vcc, 0, v{vI+i}')
        a(f'ds_write2_b32 v{vP+i}, v{vR+2*i}, v{vR+2*i+1} offset0:64 offset1:96')
    a('s_mov_b64 exec, -1')
    a('s_waitcnt lgkmcnt(0)')
    a('s_barrier')

    ell_read = [f'ds_read_b128 {R("v", vEX, 4)}, v{vAX}', f'ds_read_b32 v{vEE}, v{vAE} offset:128']
    ell_adv = [f'v_add_u32 v{vAX}, 256, v{vAX}', f'v_add_u32 v{vAE}, 256, v{vAE}']
    xaddr = [f'v_and_or_b32 v{vEX+j}, v{vEX+j}, s{sMASK}, v{vCX}' for j in range(4)]
    eaddr = f'v_add_u32 v{vEE}, v{vEE}, v{vCE}'
    m0x = f's_mov_b32 m0, s{sSLOT}'; m0e = f's_add_u32 m0, s{sSLOT}, {4*XP}'
    dmax = [f'buffer_load_dwordx4 v{vEX+j}, {srdn(SX)}, s{sXO+j} offen offset:{j*XP}{P.pol_x} lds' for j in range(4)]
    dmae = f'buffer_load_dwordx4 v{vEE}, {srdn(SE)}, 0 offen{P.pol_e} lds'
    adv = [f's_add_u32 s{sSLOT}, s{sSLOT}, {SLOT}', f's_cmp_eq_u32 s{sSLOT}, s{sRING1}', f's_cselect_b32 s{sSLOT}, s{sRING0}, s{sSLOT}']
    baddr = [f'v_add_u32 v{vBX}, s{sSLOT}, v{vBX0}', f'v_add_u32 v{vBE}, s{sSLOT}, v{vBE0}']
    bread = [f'ds_read_b128 {R("a", aBX+4*k, 4)}, v{vBX} offset:{32*k}' for k in range(4)] + [f'ds_read_b128 {R("a", aBE, 4)}, v{vBE}']
    PF = [m0x] + xaddr + [eaddr] + dmax + [m0e] + [adv[0]] + [dmae] + adv[1:] + ell_read + ell_adv + baddr

    stamp(6)
    for x in ell_read + ell_adv: a(x)
    for r in range(D):
        a('s_waitcnt lgkmcnt(0)')
        for x in PF: a(x)

    a.label('K2_group')
    a(f'v_mbcnt_lo_u32_b32 v{vE}, -1, 0'); a(f'v_mbcnt_hi_u32_b32 v{vE}, -1, v{vE}')
    a(f'v_and_b32 v{vE+1}, 31, v{vE}')
    a(f'v_lshl_add_u32 v{vE+1}, v{vE+1}, 2, s{sQROW}')
    a(f'v_and_b32 v{vE}, 32, v{vE}')
    a(f'v_lshlrev_b32 v{vE}, 3, v{vE}')
    a(f'ds_read_b32 v{vINFO}, v{vE+1}')
    for i in range(16): a(f'ds_read_b128 {R("v", vQ+4*i, 4)}, v{vE} offset:{B1T + 16*i}')
    a(f's_waitcnt vmcnt({VW})')
    for x in bread[:4]: a(x)
    a('s_waitcnt lgkmcnt(0)')
    pf = list(PF)
    for k in range(4):
        for c in range(4):
            a(mfma(R('v', vQ+16*c, 16), R('a', aW1B + (c*4+k)*4, 4), R('a', aBX+4*k, 4), R('v', vQ+16*c, 16)))
            if k == 0:
                for x in pf[:6]: a(x)
                pf = pf[6:]
        if k == 0:
            assert not pf
            a(f's_waitcnt vmcnt({VW})')
            a(bread[4])
        a(bread[k])
    a(f'v_bfe_u32 v{vDEG}, v{vINFO}, 24, 6')
    a(f's_lshl_b32 s3, s{sL}, 8')
    a(f's_add_u32 s{sQROW}, s{sQROW}, s3')
    a(f's_add_u32 s{sQROW}, s{sQROW}, 256')
    a(f's_mov_b32 s{sT}, 1')
    if P.stamp:
        a(f's_cmp_lg_u32 s{76+7}, 0'); a('s_cbranch_scc1 K2_st7'); stamp(7); a.label('K2_st7')
    a('s_waitcnt lgkmcnt(0)')
    pf = list(PF)
    for k in range(5):
        a(m1(0, k, vN, vQ))
        n = 2 if k < 4 else 99
        for x in pf[:n]: a(x)
        pf = pf[n:]
    for c in range(4):
        cn = (c + 1) & 3
        if c == 3: a('s_waitcnt lgkmcnt(0)')
        for k in range(5):
            a(m1(cn, k, vN + 16*cn if c < 3 else vY, vQ + 16*cn))
            if c == 2:
                if k == 0: a(f's_waitcnt vmcnt({VW})')
                a(bread[k])
            for i in range(3*k, 3*k + (3 if k < 4 else 4)): a(f'v_exp_f32 v{vD+16*c+i}, v{vN+16*c+i}')
        for p in range(8):
            d = R('v', vD + 16*c + 2*p, 2)
            a(f'v_pk_add_f32 {d}, {d}, 1.0 op_sel_hi:[1,0]')
    a(f's_cmp_ge_u32 s{sT}, s{sL}'); a('s_cbranch_scc1 K2_flush')
    a('.p2align 3')
    a.label('K2_row')
    for c in range(4):
        cn = (c + 1) & 3
        y = vY + 16 * (c & 1); yn = vY + 16 * (cn & 1)
        S = [[] for _ in range(5)]
        V = [[] for _ in range(5)]
        if c == 0:
            S[0] = ['s_mov_b64 exec, -1']; V[0] = xaddr + [eaddr]
            S[1] = [m0x]; V[1] = dmax
            S[2] = [m0e]; V[2] = [dmae] + ell_read
            S[3] = [adv[0]]; V[3] = ell_adv
            S[4] = [adv[1]]; V[4] = [f'v_cmpx_lt_u32 vcc, s{sT}, v{vDEG}']
        if c == 1:
            S[0] = [adv[2]]; V[4] = baddr
            S[1] = [f's_add_u32 s{sT}, s{sT}, 1']
        if c == 2:
            S[0] = [f's_waitcnt vmcnt({VW})']
            for k in range(5): V[k] = [bread[k]]
        if c == 3:
            a('s_waitcnt lgkmcnt(0)')
            S[0] = [f's_cmp_lt_u32 s{sT}, s{sL}']
        L = []
        for k in range(5):
            L.append(m1(cn, k, yn, vQ + 16*cn)); L += S[k]
            for i in range(3*k, 3*k + (3 if k < 4 else 4)): L.append(f'v_exp_f32 v{vE+i}, v{y+i}')
            L += V[k]
        for x in L: a(x)
        a('.p2align 3')
        for p in range(8):
            yy, nn, dd, ee = R('v', y+2*p, 2), R('v', vN+16*c+2*p, 2), R('v', vD+16*c+2*p, 2), R('v', vE+2*p, 2)
            a(f'v_pk_fma_f32 {yy}, {yy}, {dd}, {nn}')
            a(f'v_pk_fma_f32 {dd}, {dd}, {ee}, {dd}')
            a(f'v_pk_fma_f32 {nn}, {nn}, {ee}, {yy}')
    a('s_cbranch_scc1 K2_row')
    a.label('K2_flush')
    if P.stamp:
        a(f's_cmp_lg_u32 s{76+8}, 0'); a('s_cbranch_scc1 K2_st8'); stamp(8); a(f's_mov_b32 s{76+13}, s{sL}'); a(f's_mov_b32 s{76+14}, s{sLNEXT}'); a.label('K2_st8')
        stamp(9)
    a('s_mov_b64 exec, -1')
    for x in baddr: a(x)
    a(f'v_mbcnt_lo_u32_b32 v{vQ+32}, -1, 0'); a(f'v_mbcnt_hi_u32_b32 v{vQ+32}, -1, v{vQ+32}')
    a(f'v_and_b32 v{vQ+32}, 32, v{vQ+32}')
    a(f'v_lshlrev_b32 v{vQ+33}, 2, v{vQ+32}')
    for i in range(8): a(f'ds_read_b128 {R("v", vQ+4*i, 4)}, v{vQ+33} offset:{B2T + 16*i}')
    a(f'v_lshlrev_b32 v{vQ+32}, 1, v{vQ+32}')
    a(f'v_and_or_b32 v{vQ+32}, v{vINFO}, s{sMASK}, v{vQ+32}')
    a(f'v_cvt_f32_u32 v{vQ+34}, v{vDEG}')
    a(f'v_mov_b32 v{vMAX}, 0')
    def g3(c, i):
        u = 2*c + (i >> 1); dt = i & 1
        acc = R('v', vY + 16*dt, 16)
        return mfma(acc, R('a', aW2 + (dt*8+u)*4, 4), R('v', vE + 8*(c & 1) + 4*(i >> 1), 4), acc if u else '0')
    for c in range(4):
        for q in range(4):
            if c: a(g3(c-1, q))
            for p in range(2):
                d = vD + 16*c + 4*q + 2*p
                a(f'v_max3_f32 v{vMAX}, v{d}, v{d+1}, v{vMAX}')
                a(f'v_rcp_f32 v{d}, v{d}'); a(f'v_rcp_f32 v{d+1}, v{d+1}')
        for p in range(8):
            nn, dd = R('v', vN+16*c+2*p, 2), R('v', vD+16*c+2*p, 2)
            a(f'v_pk_mul_f32 {nn}, {nn}, {dd}')
        if c == 3:
            a('s_waitcnt lgkmcnt(0)')
            for p in range(16):
                qq = R('v', vQ+2*p, 2)
                a(f'v_pk_mul_f32 {qq}, {qq}, {R("v", vQ+34, 2)} op_sel_hi:[1,0]')
        for p in range(8):
            a(f'v_cvt_pk_bf16_f32 v{vE+8*(c&1)+p}, v{vN+16*c+2*p}, v{vN+16*c+2*p+1}')
    for q in range(4): a(g3(3, q))
    a(f's_mov_b32 s3, {f32(2.0**100)}')
    a(f'v_cmp_lt_f32 s[56:57], s3, v{vMAX}')
    a(f'v_cmp_ne_u32 s[58:59], 0, v{vDEG}')
    a(f'v_mov_b32 v{vMAX}, 0x207')
    for p in range(16):
        yy, qq = R('v', vY+2*p, 2), R('v', vQ+2*p, 2)
        a(f'v_pk_fma_f32 {yy}, {yy}, s[{sLN2}:{sLN2+1}], {qq}')
    a(f'v_cmp_class_f32 vcc, v{vY}, v{vMAX}')
    for p in range(16):
        a(f'v_mov_b32 v{vE+p}, 0')
    a('s_or_b64 vcc, vcc, s[56:57]')
    a('s_and_b64 vcc, vcc, s[58:59]')
    a(f's_or_b64 s[{sBAD}:{sBAD+1}], s[{sBAD}:{sBAD+1}], vcc')
    a('s_mov_b64 exec, s[58:59]')
    for p in range(16):
        a(f'v_cvt_pk_bf16_f32 v{vE+p}, v{vY+2*p}, v{vY+2*p+1}')
    a('s_mov_b64 exec, -1')
    for i in range(4):
        a(f'buffer_store_dwordx4 {R("v", vE+4*i, 4)}, v{vQ+32}, {srdn(SO)}, 0 offen offset:{16*i}{P.pol_out}')
    a(f's_mov_b32 s{sL}, s{sLNEXT}')
    a(f's_mov_b32 s{sLNEXT}, 0')
    a(f's_cmp_lg_u32 s{sL}, 0'); a('s_cbranch_scc1 K2_group')
    if P.stamp:
        stamp(10); a('s_waitcnt vmcnt(0)'); stamp(11); stamp(12, True)
        for i in range(16): a(f'v_writelane_b32 v1, s{76+i}, {i}')
        a('v_mbcnt_lo_u32_b32 v2, -1, 0'); a('v_mbcnt_hi_u32_b32 v2, -1, v2'); a('v_lshlrev_b32 v2, 2, v2')
        a('s_lshl_b32 s3, s2, 2'); a(f's_add_u32 s3, s3, s{sWAVE}'); a('s_lshl_b32 s3, s3, 6'); a(f's_add_u32 s3, s3, {WS_STAMP}')
        a('s_mov_b64 exec, 0xffff')
        a(f'buffer_store_dword v1, v2, {srdn(SW)}, s3 offen')
        if P.stamp == 2:
            a('s_load_dwordx2 s[4:5], s[0:1], 72')
            a(f's_mov_b32 s6, {WS_STAMP - 64}')
            a(f'buffer_load_dword v3, v2, {srdn(SW)}, s6 offen')
            a('s_waitcnt vmcnt(0) lgkmcnt(0)')
            a('v_readlane_b32 s6, v3, 0'); a('v_readlane_b32 s7, v3, 1')
            a(f's_sub_u32 s6, s76, s6'); a(f's_sub_u32 s7, s76, s7'); a('s_sub_u32 s8, s88, s76')
            a('v_subrev_u32 v1, s77, v1')
            a('v_writelane_b32 v1, s6, 0'); a('v_writelane_b32 v1, s7, 1'); a('v_writelane_b32 v1, s8, 12')
            a(f's_cmp_lg_u32 s3, {WS_STAMP + 64*(4*100+3)}'); a('s_cbranch_scc1 K2_nodbg')
            a('global_store_dword v2, v1, s[4:5]')
            a.label('K2_nodbg')
        a('s_mov_b64 exec, -1')
    a(f's_cmp_eq_u64 s[{sBAD}:{sBAD+1}], 0')
    a('v_mov_b32 v1, 0'); a('v_mov_b32 v2, 1')
    a('s_cbranch_scc1 K2_nobad')
    a(f'ds_write_b32 v1, v2 offset:{FLAG}')
    a.label('K2_nobad')
    a('s_waitcnt lgkmcnt(0)')
    a('s_barrier')
    a(f'ds_read_b32 v2, v1 offset:{FLAG}')
    a('s_waitcnt lgkmcnt(0)')
    a('v_readfirstlane_b32 s3, v2')
    a('s_cmp_eq_u32 s3, 0'); a('s_cbranch_scc1 K2_end')

    a.label('K2_slow')
    a('s_mov_b64 exec, -1')
    a('s_waitcnt vmcnt(0) lgkmcnt(0)')
    a('s_barrier')
    vL, vS, vH, vT0, vT1, vOA = 240, 241, 242, 244, 245, 246
    a(f'v_mbcnt_lo_u32_b32 v{vL}, -1, 0'); a(f'v_mbcnt_hi_u32_b32 v{vL}, -1, v{vL}')
    a(f'v_and_b32 v{vS}, 31, v{vL}')
    a(f'v_lshrrev_b32 v{vH}, 5, v{vL}')
    a(f's_lshl_b32 s3, s{sWAVE}, 10')
    a(f'v_lshl_add_u32 v4, v{vL}, 4, s3')
    for i in range(4): a(f'v_mov_b32 v{i}, 0')
    for i in range(13): a(f'ds_write_b128 v4, v[0:3] offset:{OACC + 4096*i}')
    a('s_waitcnt lgkmcnt(0)')
    a('s_barrier')
    sC, sST, sCNT = 56, 57, 58
    a(f's_mov_b32 s{sC}, s{sWAVE}')
    a.label('K2_s_chunk')
    a(f's_lshl_b32 s3, s{sC}, 10')
    a(f'v_mov_b32 v{vT0}, s3')
    a(f'buffer_load_dword v{vT0}, v{vT0}, {srdn(SW)}, s33 offen')
    a('s_waitcnt vmcnt(0)')
    a(f'v_readfirstlane_b32 s3, v{vT0}')
    a(f's_lshr_b32 s{sCNT}, s3, 16')
    a('s_and_b32 s3, s3, 0xffff')
    a(f's_mul_i32 s{sST}, s{sC}, {CH}')
    a(f's_add_u32 s{sST}, s{sST}, s3')
    a.label('K2_s_batch')
    a(f's_cmp_lt_i32 s{sCNT}, 1'); a('s_cbranch_scc1 K2_s_next')
    a(f'v_add_lshl_u32 v{vT0}, v{vS}, s{sST}, 3')
    a(f'v_mov_b32 v{vT1}, {DUMMY}')
    a(f'v_cmp_gt_u32 s[60:61], s{sCNT}, v{vS}')
    a(f'v_cndmask_b32 v{vT0}, v{vT1}, v{vT0}, s[60:61]')
    a(f'buffer_load_dwordx2 v[{vT0}:{vT1}], v{vT0}, {srdn(SW)}, 0 offen')
    a(f'v_lshlrev_b32 v247, 8, v{vH}')
    for i in range(16): a(f'ds_read_b128 {R("v", vQ+4*i, 4)}, v247 offset:{B1T + 16*i}')
    a(f'v_lshlrev_b32 v247, 4, v{vH}')
    a('s_waitcnt vmcnt(0)')
    a(f'v_lshrrev_b32 v248, 24, v{vT0}')
    a(f'v_and_or_b32 v{vT0}, v{vT0}, s{sMASK}, v247')
    a(f'v_add_u32 v{vT1}, v{vT1}, v247')
    a(f'v_max_u32 v248, 1, v248')
    a(f'v_subrev_u32 v248, 1, v248')
    a(f'v_add_u32 v249, s{sNB0}, v248')
    a(f'v_lshl_add_u32 v249, v249, 7, v247')
    for k in range(4): a(f'buffer_load_dwordx4 {R("a", aBX+4*k, 4)}, v{vT0}, {srdn(SX)}, s{sXO} offen offset:{32*k}')
    a(f'buffer_load_dwordx4 {R("a", aBE, 4)}, v{vT1}, {srdn(SE)}, 0 offen')
    for k in range(4): a(f'buffer_load_dwordx4 {R("v", vE+4*k, 4)}, v249, {srdn(SX)}, s{sXO} offen offset:{32*k}')
    a(f'v_mul_u32_u24 v{vOA}, 260, v248')
    a(f'v_lshl_add_u32 v{vOA}, v{vH}, 7, v{vOA}')
    a('s_waitcnt vmcnt(0) lgkmcnt(0)')
    for c in range(4):
        q = R('v', vQ+16*c, 16)
        for k in range(4): a(mfma(q, R('a', aW1B + (c*4+k)*4, 4), R('v', vE+4*k, 4), q))
        for k in range(5): a(m1(c, k, vQ+16*c, vQ+16*c))
    for i in range(64): a(f'v_exp_f32 v{vD+i}, v{vQ+i}')
    for i in range(64): a(f'v_add_f32 v{vD+i}, 1.0, v{vD+i}')
    for i in range(64): a(f'v_rcp_f32 v{vD+i}, v{vD+i}')
    for i in range(64): a(f'v_mul_f32 v{vD+i}, v{vD+i}, v{vQ+i}')
    for i in range(32): a(f'v_cvt_pk_bf16_f32 v{vN+i}, v{vD+2*i}, v{vD+2*i+1}')
    a(f'v_lshlrev_b32 v247, 7, v{vH}')
    for i in range(8): a(f'ds_read_b128 {R("v", vQ+4*i, 4)}, v247 offset:{B2T + 16*i}')
    for dt in range(2):
        acc = R('v', vY + 16*dt, 16)
        for u in range(8): a(mfma(acc, R('a', aW2 + (dt*8+u)*4, 4), R('v', vN + 4*u, 4), acc if u else '0'))
    a('s_waitcnt lgkmcnt(0)')
    for i in range(32): a(f'v_fma_f32 v{vY+i}, v{vY+i}, s{sLN2}, v{vQ+i}')
    a('s_mov_b64 exec, s[60:61]')
    for i in range(32): a(f'ds_add_f32 v{vOA}, v{vY+i} offset:{OACC + 4*i}')
    a('s_mov_b64 exec, -1')
    a('s_waitcnt lgkmcnt(0)')
    a(f's_add_u32 s{sST}, s{sST}, 32')
    a(f's_sub_u32 s{sCNT}, s{sCNT}, 32')
    a('s_branch K2_s_batch')
    a.label('K2_s_next')
    a(f's_add_u32 s{sC}, s{sC}, 4')
    a(f's_cmp_lt_u32 s{sC}, {NCH}'); a('s_cbranch_scc1 K2_s_chunk')
    a('s_barrier')
    a(f's_lshl_b32 s3, s{sWAVE}, 1')
    a(f'v_add_u32 v1, s3, v{vH}')
    a.label('K2_s_out')
    a(f'v_cmp_gt_u32 vcc, s{sNNODE}, v1')
    a('v_mul_u32_u24 v4, 260, v1')
    a(f'v_lshl_add_u32 v4, v{vS}, 3, v4')
    a(f'v_add_u32 v4, {OACC}, v4')
    a(f'v_add_u32 v5, s{sNB0}, v1')
    a('v_lshlrev_b32 v5, 7, v5')
    a(f'v_lshl_add_u32 v5, v{vS}, 2, v5')
    a('s_and_b64 exec, exec, vcc')
    a('s_cbranch_execz K2_end')
    a('ds_read2_b32 v[2:3], v4 offset0:0 offset1:1')
    a('s_waitcnt lgkmcnt(0)')
    a('v_cvt_pk_bf16_f32 v2, v2, v3')
    a(f'buffer_store_dword v2, v5, {srdn(SO)}, 0 offen')
    a('v_add_u32 v1, 8, v1')
    a('s_branch K2_s_out')
    a.label('K2_end')
    a('s_endpgm')
    return a
```

```python
import sys, struct
from asmlib import Asm, check_all_edges

NAME = 'standalone__edge_featured_mpnn_mpnn__graph'
N, E = 50000, 800000
NB, BN = 256, 196
NCH, CH = 250, 3200
MAGIC = 85599
WS_REC, WS_TAB, WS_W = 0, 8 << 20, 9 << 20
WS_SIZE = 10 << 20
WS_STAMP = (9 << 20) + (512 << 10)
DUMMY = 0x40F00000
def f32(x): return struct.unpack('<I', struct.pack('<f', x))[0]
NLOG2E = f32(-1.4426950408889634)
NLN2 = f32(-0.6931471805599453)

class P:
    depth = 3
    stamp = 0
    pol_in = ' nt'
    pol_e = ''
    pol_x = ''
    pol_rec = ''
    pol_out = ''
    pol_k1st = ''

def srd(a, d, lo, size, hi=None):
    a(f's_mov_b32 s{d}, s{lo}')
    a(f's_and_b32 s{d+1}, s{lo+1}, 0xffff')
    a(f's_mov_b32 s{d+2}, {size}')
    a(f's_mov_b32 s{d+3}, 0x20000')

def wave_scan(a, v):
    for sh in (1, 2, 4, 8):
        a(f'v_add_u32_dpp v{v}, v{v}, v{v} row_shr:{sh} row_mask:0xf bank_mask:0xf bound_ctrl:0')
    a(f'v_add_u32_dpp v{v}, v{v}, v{v} row_bcast:15 row_mask:0xa bank_mask:0xf')
    a(f'v_add_u32_dpp v{v}, v{v}, v{v} row_bcast:31 row_mask:0xc bank_mask:0xf')

def descriptor(name, vgpr, accum, sgpr=96):
    return f'''.section .rodata,"a"
.p2align 6
.amdhsa_kernel {name}
  .amdhsa_next_free_vgpr {vgpr}
  .amdhsa_next_free_sgpr {sgpr}
  .amdhsa_accum_offset {accum}
  .amdhsa_group_segment_fixed_size 0
  .amdhsa_kernarg_size 88
  .amdhsa_user_sgpr_count 2
  .amdhsa_user_sgpr_kernarg_segment_ptr 1
  .amdhsa_system_sgpr_workgroup_id_x 1
.end_amdhsa_kernel
.text
'''

K1_T = 832
K1_HIST, K1_START, K1_STAGE = 0, 1024, 4096
K1_LDS = K1_STAGE + CH * 8

def gen_k1():
    a = Asm()
    a('.p2align 8'); a.label('bin_kernel')
    a('s_cmp_ge_u32 s2, %d' % (NCH + 4)); a('s_cbranch_scc1 K1_end')
    if P.stamp == 2: a('s_memrealtime s[34:35]')
    a('s_load_dwordx4 s[4:7], s[0:1], 16')
    a('s_load_dwordx2 s[8:9], s[0:1], 80')
    a('s_cmp_ge_u32 s2, %d' % NCH); a('s_cbranch_scc1 K1_prep')
    a('v_lshlrev_b32 v1, 2, v0')
    a('v_mov_b32 v2, 0')
    a('ds_write_b32 v1, v2')
    a('v_lshlrev_b32 v3, 4, v0')
    a(f's_mul_i32 s3, s2, {CH*4}')
    a(f's_mov_b32 s24, {MAGIC}')
    a(f's_movk_i32 s25, {-BN}')
    a(f's_mul_i32 s26, s2, {CH*32}')
    a(f'v_cmp_gt_u32 vcc, {CH//4}, v0')
    a('s_waitcnt lgkmcnt(0)')
    srd(a, 12, 6, E * 4)
    srd(a, 16, 4, E * 4)
    srd(a, 20, 8, WS_SIZE)
    a('s_mov_b64 s[10:11], vcc')
    a('s_mov_b64 exec, s[10:11]')
    a(f'buffer_load_dwordx4 v[4:7], v3, s[12:15], s3 offen{P.pol_in}')
    a(f'buffer_load_dwordx4 v[8:11], v3, s[16:19], s3 offen{P.pol_in}')
    a('v_mov_b32 v12, 1')
    a('v_lshlrev_b32 v13, 7, v0')
    a('v_add_u32 v13, s26, v13')
    a('s_barrier')
    a('s_waitcnt vmcnt(1)')
    for i in range(4):
        a(f'v_mul_u32_u24 v{14+i}, s24, v{4+i}')
    for i in range(4):
        a(f'v_lshrrev_b32 v{14+i}, 24, v{14+i}')
    for i in range(4):
        a(f'v_lshlrev_b32 v{18+i}, 2, v{14+i}')
        a(f'ds_add_rtn_u32 v{22+i}, v{18+i}, v12')
    for i in range(4):
        a(f'v_mad_i32_i24 v{4+i}, v{14+i}, s25, v{4+i}')
    for i in range(4):
        a(f'v_add_lshl_u32 v{4+i}, v{4+i}, 1, 24')
    a('s_waitcnt vmcnt(0)')
    for i in range(4):
        a(f'v_lshl_or_b32 v{26+2*i}, v{8+i}, 7, v{4+i}')
        if i == 0: a('v_mov_b32 v27, v13')
        else: a(f'v_add_u32 v{27+2*i}, {32*i}, v13')
    a('s_mov_b64 exec, -1')
    a('v_and_b32 v34, 63, v0')
    a('v_lshlrev_b32 v34, 4, v34')
    a('s_waitcnt lgkmcnt(0)')
    a('s_barrier')
    a(f'ds_read_b128 v[36:39], v34 offset:{K1_HIST}')
    a('s_waitcnt lgkmcnt(0)')
    a('v_add_u32 v41, v36, v37')
    a('v_add_u32 v42, v41, v38')
    a('v_add_u32 v43, v42, v39')
    a('v_mov_b32 v35, v43')
    wave_scan(a, 35)
    a('v_sub_u32 v40, v35, v43')
    a('v_add_u32 v43, v40, v42')
    a('v_add_u32 v42, v40, v41')
    a('v_add_u32 v41, v40, v36')
    a(f'ds_write_b128 v34, v[40:43] offset:{K1_START}')
    a('s_mov_b64 exec, s[10:11]')
    for i in range(4):
        a(f'ds_read_b32 v{14+i}, v{18+i} offset:{K1_START}')
    a('v_cmp_gt_u32 vcc, 64, v0')
    a('s_lshl_b32 s27, s2, 10')
    a(f's_add_u32 s27, s27, {WS_TAB}')
    a('s_and_b64 exec, vcc, -1')
    a('s_cbranch_execz K1_notab')
    for i in range(4):
        a(f'v_lshl_or_b32 v{36+i}, v{36+i}, 16, v{40+i}')
    a(f'buffer_store_dwordx4 v[36:39], v34, s[20:23], s27 offen{P.pol_k1st}')
    a.label('K1_notab')
    a('s_mov_b64 exec, s[10:11]')
    for i in range(4):
        a(f's_waitcnt lgkmcnt({3-i})' if i == 0 else f's_waitcnt lgkmcnt(3)')
        a(f'v_add_lshl_u32 v{14+i}, v{14+i}, v{22+i}, 3')
        a(f'ds_write_b64 v{14+i}, v[{26+2*i}:{27+2*i}] offset:{K1_STAGE}')
    a(f's_mul_i32 s27, s2, {CH*8}')
    a(f's_add_u32 s28, s27, {CH*4}')
    a('s_waitcnt lgkmcnt(0)')
    a('s_barrier')
    a(f'ds_read_b128 v[4:7], v3 offset:{K1_STAGE}')
    a(f'ds_read_b128 v[8:11], v3 offset:{K1_STAGE + CH*4}')
    a('s_waitcnt lgkmcnt(1)')
    a(f'buffer_store_dwordx4 v[4:7], v3, s[20:23], s27 offen{P.pol_k1st}')
    a('s_waitcnt lgkmcnt(0)')
    a(f'buffer_store_dwordx4 v[8:11], v3, s[20:23], s28 offen{P.pol_k1st}')
    if P.stamp == 2:
        a('s_cmp_lg_u32 s2, 100'); a('s_cbranch_scc1 K1_end')
        a('s_load_dwordx2 s[4:5], s[0:1], 72')
        a('s_waitcnt vmcnt(0)'); a('s_memrealtime s[36:37]'); a('s_waitcnt lgkmcnt(0)')
        a('v_mov_b32 v4, s34'); a('v_mov_b32 v5, s36'); a(f'v_mov_b32 v6, {WS_STAMP - 64}')
        a('v_cmp_eq_u32 vcc, 0, v0'); a('s_and_b64 exec, vcc, exec'); a('s_cbranch_execz K1_end')
        a('buffer_store_dwordx2 v[4:5], v6, s[20:23], 0 offen')
        a('v_sub_u32 v4, v5, v4'); a('v_mov_b32 v5, 0x1111'); a('global_store_dwordx2 v0, v[4:5], s[4:5]')
    a('s_endpgm')

    a.label('K1_prep')
    a('s_load_dwordx2 s[30:31], s[0:1], 32')
    a('s_load_dwordx2 s[32:33], s[0:1], 48')
    a('v_lshrrev_b32 v1, 6, v0')
    a('v_and_b32 v2, 31, v0')
    a('v_bfe_u32 v3, v0, 5, 1')
    a('v_readfirstlane_b32 s3, v1')
    a(f's_sub_u32 s24, s2, {NCH}')
    a('s_mul_i32 s24, s24, 13')
    a('s_add_u32 s24, s24, s3')
    a('v_and_b32 v1, 63, v0')
    a('v_lshlrev_b32 v1, 4, v1')
    a('s_lshl_b32 s27, s24, 10')
    a(f's_add_u32 s27, s27, {WS_W}')
    a('s_waitcnt lgkmcnt(0)')
    srd(a, 12, 30, 144 * 128 * 2)
    srd(a, 16, 32, 128 * 64 * 2)
    srd(a, 20, 8, WS_SIZE)
    a('s_cmp_ge_u32 s24, 36'); a('s_cbranch_scc1 K1_prep_w2')
    a('s_lshr_b32 s25, s24, 2')
    a('s_and_b32 s26, s24, 3')
    a('s_lshl_b32 s28, s26, 4')
    a('s_cmp_lt_u32 s24, 16'); a('s_cbranch_scc1 K1_prep_go')
    a('s_sub_u32 s25, s25, 5')
    a('s_add_u32 s28, s28, 64')
    a('s_cmp_ge_u32 s24, 20'); a('s_cbranch_scc1 K1_prep_go')
    a('s_mov_b32 s25, s26')
    a('s_movk_i32 s28, 128')
    a.label('K1_prep_go')
    a('s_lshl_b32 s28, s28, 8')
    a('s_lshl_b32 s25, s25, 6')
    a('s_add_u32 s28, s28, s25')
    a('v_lshlrev_b32 v4, 11, v3')
    a('v_lshl_add_u32 v4, v2, 1, v4')
    for j in range(8):
        a(f'buffer_load_ushort v{8+j}, v4, s[12:15], s28 offen offset:{256*j}')
    a(f's_mov_b32 s29, {NLOG2E}')
    a('s_waitcnt vmcnt(0)')
    for j in range(8):
        a(f'v_lshlrev_b32 v{8+j}, 16, v{8+j}')
    for j in range(8):
        a(f'v_mul_f32 v{8+j}, s29, v{8+j}')
    for j in range(4):
        a(f'v_cvt_pk_bf16_f32 v{16+j}, v{8+2*j}, v{9+2*j}')
    a('buffer_store_dwordx4 v[16:19], v1, s[20:23], s27 offen')
    a('s_endpgm')
    a.label('K1_prep_w2')
    a('s_sub_u32 s24, s24, 36')
    a('s_lshr_b32 s25, s24, 3')
    a('s_and_b32 s26, s24, 7')
    a('s_lshl_b32 s28, s26, 11')
    a('s_lshl_b32 s25, s25, 5')
    a('s_add_u32 s28, s28, s25')
    a('v_bfe_u32 v4, v2, 2, 1')
    a('v_lshlrev_b32 v4, 5, v4')
    a('v_and_b32 v5, 3, v2')
    a('v_add_u32 v4, v4, v5')
    a('v_lshrrev_b32 v5, 3, v2')
    a('v_lshl_add_u32 v4, v5, 2, v4')
    a('v_lshlrev_b32 v4, 1, v4')
    a('v_lshl_add_u32 v4, v3, 9, v4')
    for j in range(8):
        a(f'buffer_load_ushort v{8+j}, v4, s[16:19], s28 offen offset:{128*((j&3)+8*(j>>2))}')
    a('s_waitcnt vmcnt(0)')
    for j in range(4):
        a(f'v_lshl_or_b32 v{16+j}, v{9+2*j}, 16, v{8+2*j}')
    a('buffer_store_dwordx4 v[16:19], v1, s[20:23], s27 offen')
    a.label('K1_end')
    a('s_endpgm')
    return a

if __name__ == '__main__':
    from gen_k2 import gen_k2, K2_LDS
    for kv in sys.argv[2:]:
        k, v = kv.split('=')
        cur = getattr(P, k)
        setattr(P, k, int(v) if isinstance(cur, int) else (' ' + v.replace('+', ' ') if v else ''))
    k1 = gen_k1(); k2 = gen_k2(P)
    for nm, k in (('k1', k1), ('k2', k2)):
        pr = check_all_edges(k)
        for p in pr: print('HAZARD on branch edge', nm, p, file=sys.stderr)
        print(nm, 'instrs', sum(1 for x in k.items if not isinstance(x, str)), 'auto nops', k.nops, file=sys.stderr)
    head = open('cdna_kernels/' + NAME + '.s.ref').read().split('; Override launch')[0]
    out = head
    out += f'; @launch kernel=bin_kernel grid=({NCH+4},1,1) block=({K1_T},1,1) lds={K1_LDS}\n'
    out += f'; @launch kernel={NAME}_kernel grid=({NB},1,1) block=(256,1,1) lds={K2_LDS(P)}\n'
    out += '.amdgcn_target "amdgcn-amd-amdhsa--gfx950"\n.text\n'
    out += '.globl bin_kernel\n.type bin_kernel,@function\n' + k1.text()
    out += f'.globl {NAME}_kernel\n.type {NAME}_kernel,@function\n' + k2.text()
    out += descriptor('bin_kernel', 48, 48, 40)
    out += descriptor(NAME + '_kernel', 512, 256, 96)
    open(sys.argv[1], 'w').write(out)
```

```python
from asmlib import Asm
from gen import *

CNT, HIST, FLAG = 0, 2048, 2304
ELLPOS, B1T, B2T, TT = 4096, 6144, 6656, 7168
EX, EE = 8192, 40960
RING = 73728
NSLOT = 15
MAP = RING
WST = MAP + 4 * NSLOT * 256
XP = 1056
SLOT = 4 * XP + 1024
OACC = 8192
def K2_LDS(P): return max(RING + 4 * P.depth * SLOT, WST + 52 * 1024)

PATTERN = [(0, 0, 'H', 1), (2, 0, 'H', 2), (3, 0, 'H', 2), (3, 1, 'H', 16), (2, 1, 'H', 9), (0, 0, 'S', 30),
           (1, 1, 'H', 14), (1, 0, 'S', 32), (2, 0, 'S', 28), (3, 0, 'S', 28), (0, 1, 'H', 16), (2, 1, 'S', 14), (1, 1, 'S', 4)]
def pattern_table():
    free = {(w, ph): list(range(32)) for w in range(4) for ph in range(2)}
    T = [None] * BN; p = 0; segs = []
    for w, ph, t, n in PATTERN: segs.append((w, ph, t, p, n)); p += n
    assert p == BN
    for t0 in 'HS':
        for w, ph, t, p0, n in segs:
            if t != t0: continue
            for i in range(n):
                pos = free[(w, ph)].pop(0)
                if t == 'H': assert pos < 16; free[(w, ph)].remove(pos + 16)
                T[p0 + i] = (((w * 2 + ph) * 4096 + pos * 4 + 128) << 16) | (64 if t == 'H' else 128)
    assert all(not v for v in free.values())
    return T + [128] * (256 - BN)

vN, vD, vQ, vY, vE = 0, 64, 128, 192, 224
vEX, vEE, vAX, vAE, vCX, vCE, vBX0, vBE0, vBX, vBE, vINFO, vDEG, vMAX = 240, 244, 245, 246, 247, 248, 249, 250, 251, 252, 253, 254, 255
aW1A, aW1C, aW1B, aW2, aBX, aBE, aJUNK = 0, 64, 80, 144, 208, 224, 228
SX, SE, SW, SO = 12, 16, 20, 24
sB, sNB0, sNNODE, sWAVE = 28, 29, 30, 31
sXO = 36
s128, sSLOT, sRING0, sRING1, sT, sL, sLNEXT, sQROW = 40, 41, 42, 43, 44, 45, 46, 47
sLN2, sBAD = 48, 50
sJ, sJUMP, sINC = 62, 63, 64
def R(p, b, n): return f'{p}[{b}:{b+n-1}]'
def srdn(s): return f's[{s}:{s+3}]'

def mfma(d, A, B, C):
    return f'v_mfma_f32_32x32x16_bf16 {d}, {A}, {B}, {C}'
def m1(c, k, dst, first_c):
    A = R('a', aW1A + (c * 4 + k) * 4, 4) if k < 4 else R('a', aW1C + c * 4, 4)
    B = R('a', aBX + k * 4, 4) if k < 4 else R('a', aBE, 4)
    return mfma(R('v', dst, 16), A, B, R('v', first_c if k == 0 else dst, 16))

def gen_k2(P):
    D = P.depth
    VW = 5 * (D - 1)
    a = Asm()
    def stamp(i, real=False):
        if not P.stamp: return
        a(f's_mem{"real" if real else ""}time s[74:75]'); a('s_waitcnt lgkmcnt(0)'); a(f's_mov_b32 s{76+i}, s74')
    a('.p2align 8'); a.label(NAME + '_kernel')
    a(f's_cmp_ge_u32 s2, {NB}'); a('s_cbranch_scc1 K2_end')
    stamp(0, True); stamp(1)
    a('s_load_dwordx2 s[10:11], s[0:1], 80')
    a('s_load_dwordx4 s[4:7], s[0:1], 0')
    a('s_load_dwordx2 s[8:9], s[0:1], 40')
    a('s_load_dwordx4 s[52:55], s[0:1], 56')
    a('s_getpc_b64 s[56:57]')
    a.label('K2_pc')
    a('v_lshlrev_b32 v15, 2, v0')
    a('s_add_u32 s58, s56, K2_table-K2_pc')
    a('s_addc_u32 s59, s57, 0')
    nv = 0
    if P.codepre:
        a('v_lshlrev_b32 v3, 6, v0')
        a('v_min_u32 v3, K2_slow-K2_pc, v3')
        a(f'global_load_dword a{aJUNK}, v3, s[56:57]')
    a('global_load_dword v11, v15, s[58:59]')
    a(f's_and_b32 s{sB}, s2, 7')
    a(f's_lshl_b32 s{sB}, s{sB}, 5')
    a('s_lshr_b32 s3, s2, 3')
    a(f's_add_u32 s{sB}, s{sB}, s3')
    a(f's_mul_i32 s{sNB0}, s{sB}, {BN}')
    a(f's_sub_u32 s{sNNODE}, {N}, s{sNB0}')
    a(f's_min_u32 s{sNNODE}, s{sNNODE}, {BN}')
    a('v_lshrrev_b32 v1, 6, v0')
    a('v_and_b32 v2, 63, v0')
    a(f'v_readfirstlane_b32 s{sWAVE}, v1')
    a('v_lshlrev_b32 v3, 10, v0')
    a(f'v_mov_b32 v4, {DUMMY}')
    a(f'v_cmp_gt_u32 vcc, {NCH}, v0')
    a('v_lshlrev_b32 v9, 4, v2')
    a(f's_lshl_b32 s33, s{sB}, 2')
    a(f's_add_u32 s33, s33, {WS_TAB}')
    a('v_cndmask_b32 v3, v4, v3, vcc')
    a(f's_mov_b32 s{SW+2}, {WS_SIZE}')
    a(f's_mov_b32 s{SW+3}, 0x20000')
    a('v_mov_b32 v5, v4'); a('v_mov_b32 v6, v4'); a('v_mov_b32 v7, v4')
    a(f's_mul_i32 s3, s{sWAVE}, {NSLOT*256}')
    a(f's_add_u32 s32, s3, {MAP}')
    a('v_add_u32 v14, s32, v9')
    a('v_lshlrev_b32 v21, 4, v0')
    a(f'v_add_u32 v13, {EX}, v21')
    init = [f'ds_write_b128 v14, v[4:7] offset:{min(1024*i, NSLOT*256-1024)}' for i in range(4)]
    init += [f'ds_write_b128 v13, v[4:7] offset:{4096*i}' for i in range(16)]
    for i in range(P.init1): a(init.pop(0))
    a('s_waitcnt lgkmcnt(0)')
    if P.stamp == 3: stamp(13)
    a(f's_mov_b32 s{SW}, s10')
    a(f's_and_b32 s{SW+1}, s11, 0xffff')
    a(f'buffer_load_dword v8, v3, {srdn(SW)}, s33 offen')
    a('v_and_b32 v10, 3, v0')
    a('v_bfe_u32 v12, v0, 2, 4')
    a('v_cmp_gt_u32 vcc, 128, v0')
    a('v_lshl_add_u32 v10, v12, 3, v10')
    a('v_lshl_add_u32 v10, v1, 2, v10')
    a('v_cndmask_b32 v10, v2, v10, vcc')
    a('v_lshlrev_b32 v10, 1, v10')
    a(f's_cmp_lt_u32 s{sWAVE}, 2')
    a('s_cselect_b64 s[8:9], s[8:9], s[52:53]')
    a(f's_cselect_b32 s34, {NLOG2E}, 1.0')
    a('global_load_ushort v10, v10, s[8:9]')
    a(f's_mul_i32 s3, s{sWAVE}, {13*1024}')
    a(f's_add_u32 s35, s3, {WS_W}')
    a(f's_add_u32 m0, s3, {WST}')
    n2 = P.init2
    for i in range(13):
        if i and i % 4 == 0: a('s_add_u32 s35, s35, 4096'); a('s_add_u32 m0, m0, 4096')
        if n2 and init: a(init.pop(0)); n2 -= 1
        a(f'buffer_load_dwordx4 v9, {srdn(SW)}, s35 offen offset:{(i%4)*1024} lds')
    a(f's_sub_u32 s{SX}, s4, {3*XP}')
    a(f's_subb_u32 s{SX+1}, s5, 0')
    a(f's_and_b32 s{SX+1}, s{SX+1}, 0xffff')
    a(f's_mov_b32 s{SX+2}, {N*128 + 3*XP}')
    a(f's_mov_b32 s{SX+3}, 0x20000')
    srd(a, SE, 6, E * 32)
    srd(a, SO, 54, N * 128)
    for j in range(4): a(f's_movk_i32 s{sXO+j}, {(3-j)*XP}')
    a(f's_movk_i32 s{s128}, 128')
    a(f's_mov_b32 s{sLN2}, {NLN2}'); a(f's_mov_b32 s{sLN2+1}, {NLN2}')
    a(f's_mov_b64 s[{sBAD}:{sBAD+1}], 0')
    if P.stamp: a(f's_mov_b32 s{76+7}, 0'); a(f's_mov_b32 s{76+8}, 0'); a(f's_mov_b32 s{76+15}, 0')
    a(f's_movk_i32 s3, {CH}')
    stamp(2)
    a('s_waitcnt vmcnt(14)')
    stamp(3)
    a('v_lshrrev_b32 v16, 16, v8')
    a('v_and_b32 v17, 0xffff, v8')
    a('v_mov_b32 v18, v16')
    a('v_mad_u32_u24 v17, v0, s3, v17')
    wave_scan(a, 18)
    a(f'ds_write_b32 v15, v11 offset:{TT}')
    a('v_readlane_b32 s3, v18, 63')
    a('v_sub_u32 v18, v18, v16')
    a('v_sub_u32 v17, v17, v18')
    a('v_lshlrev_b32 v17, 3, v17')
    a('v_lshl_add_u32 v18, v18, 2, s32')
    a(f's_cmp_gt_u32 s3, {NSLOT*64}')
    a('s_cselect_b32 s65, 1, 0')
    a('s_cbranch_scc1 K2_nomap')
    a.label('K2_map')
    for j in range(8):
        a(f'v_cmpx_lt_u32 vcc, {j}, v16')
        a(f'ds_write_b32 v18, v17 offset:{4*j}')
    a('v_add_u32 v18, 32, v18')
    a('v_subrev_u32 v16, 8, v16')
    a('s_cbranch_execnz K2_map')
    a('s_mov_b64 exec, -1')
    a.label('K2_nomap')
    stamp(4)
    vR, vI, vK, vP = 32, 64, 80, 96
    a('v_lshlrev_b32 v19, 2, v2')
    a('v_add_u32 v18, s32, v19')
    for i in range(NSLOT): a(f'ds_read_b32 v{vI+i}, v18 offset:{256*i}')
    a('v_lshlrev_b32 v14, 3, v2')
    a('s_movk_i32 s3, 4096')
    for i in range(NSLOT):
        a(f's_waitcnt lgkmcnt({NSLOT-1-i})')
        a(f'v_add_u32 v{vI+i}, v{vI+i}, v14')
        a(f'buffer_load_dwordx2 {R("v", vR+2*i, 2)}, v{vI+i}, {srdn(SW)}, {"s3" if i >= 8 else "0"} offen offset:{512*(i%8)}{P.pol_rec}')
    def xprefetch():
        a(f'v_add_lshl_u32 v29, v0, s{sNB0}, 7')
        a(f'buffer_load_dword a{aJUNK}, v29, {srdn(SX)}, s{sXO} offen')
        if P.xpre:
            a('s_lshr_b32 s3, s2, 3')
            a(f's_mul_i32 s3, s3, {256*P.xpre}')
            a('v_add_lshl_u32 v29, v0, s3, 7')
            for i in range(P.xpre):
                if i: a('v_add_u32 v29, 0x8000, v29')
                a(f'buffer_load_dword a{aJUNK}, v29, {srdn(SX)}, s{sXO} offen')
    npre = 0
    if P.prepos == 0: npre = 1 + P.xpre; xprefetch()
    for x in init: a(x)
    for i in range(4): a(f'v_mov_b32 v{4+i}, 0')
    a('ds_write_b128 v21, v[4:7]')
    a(f's_waitcnt vmcnt({NSLOT + npre})')
    a('v_lshlrev_b32 v10, 16, v10')
    a('v_mul_f32 v10, s34, v10')
    a(f'ds_write_b32 v15, v10 offset:{B1T}')
    a(f'v_add_u32 v3, {WST}, v9')
    a('s_waitcnt lgkmcnt(0)')
    a('s_barrier')
    C = []
    C += ['v_and_b32 v16, 7, v2', 'v_lshrrev_b32 v18, 5, v2', 'v_xor_b32 v16, v16, v18', f'v_lshlrev_b32 v{vCX}, 4, v16']
    C += ['v_and_b32 v17, 1, v2', f'v_lshlrev_b32 v{vCE}, 4, v17']
    C += ['v_bfe_u32 v16, v2, 1, 2', f'v_mul_u32_u24 v16, {XP}, v16', 'v_bfe_u32 v20, v2, 3, 2', 'v_lshl_add_u32 v16, v20, 7, v16',
          'v_lshl_add_u32 v16, v17, 9, v16', 'v_xor_b32 v20, v17, v18', f'v_lshl_add_u32 v{vBX0}, v20, 4, v16']
    C += ['v_bfe_u32 v16, v2, 1, 4', 'v_lshl_add_u32 v16, v17, 4, v16', 'v_lshlrev_b32 v16, 5, v16', 'v_lshl_add_u32 v16, v18, 4, v16',
          f'v_add_u32 v{vBE0}, {4*XP}, v16']
    C += [f's_lshl_b32 s{sQROW}, s{sWAVE}, 13', f's_add_u32 s{sQROW}, s{sQROW}, {EX}']
    C += ['v_lshrrev_b32 v16, 3, v2', f'v_lshl_add_u32 v{vAX}, v16, 4, s{sQROW}']
    C += ['v_lshrrev_b32 v16, 1, v2', f'v_lshl_add_u32 v{vAE}, v16, 2, s{sQROW}']
    C += ['v_and_b32 v16, 31, v2', 'v_lshlrev_b32 v16, 2, v16', 'v_lshl_add_u32 v16, v18, 12, v16', f'v_add_u32 v25, s{sQROW}, v16']
    C += [f's_mul_i32 s{sRING0}, s{sWAVE}, {D*SLOT}', f's_add_u32 s{sRING0}, s{sRING0}, {RING}',
          f's_add_u32 s{sRING1}, s{sRING0}, {D*SLOT}', f's_mov_b32 s{sSLOT}, s{sRING0}']
    C += ['v_mov_b32 v13, 1', 'v_mov_b32 v12, 0', 'v_lshlrev_b32 v14, 3, v0', f'v_add_u32 v24, s{sNB0}, v0',
          f'v_cmp_gt_u32 vcc, {BN}, v0', 's_mov_b64 s[66:67], vcc', f'v_cmp_gt_u32 s[68:69], s{sNNODE}, v0']
    for i in range(52):
        a(f'ds_read_b128 {R("a", 4*i, 4)}, v3 offset:{1024*i}')
        if C: a(C.pop(0))
    assert not C
    if P.stamp == 3: stamp(14)
    for i in range(NSLOT):
        a(f's_waitcnt vmcnt({NSLOT-1-i+npre})')
        a(f'v_lshrrev_b32 v{vI+i}, 16, v{vR+2*i}')
        if i >= 11:
            a(f'v_cmp_ne_u32 vcc, 0, v{vI+i}')
            a('s_mov_b64 exec, vcc')
        a(f'ds_add_rtn_u32 v{vK+i}, v{vI+i}, v13 offset:{CNT}')
        if i >= 11: a('s_mov_b64 exec, -1')
    if P.prepos == 1: xprefetch()
    a('s_waitcnt lgkmcnt(0)')
    a('s_barrier')
    stamp(5)
    a('s_mov_b64 exec, s[66:67]')
    a(f'ds_read_b64 v[16:17], v14 offset:{CNT + 8}')
    a('s_waitcnt lgkmcnt(0)')
    a('v_add_u32 v16, v16, v17')
    a('v_min_u32 v17, 63, v16')
    a('v_sub_u32 v17, 63, v17')
    a('v_lshlrev_b32 v17, 2, v17')
    a(f'ds_add_rtn_u32 v18, v17, v13 offset:{HIST}')
    a('s_mov_b64 exec, -1')
    a('s_waitcnt lgkmcnt(0)')
    a('s_barrier')
    a(f'ds_read_b32 v20, v19 offset:{HIST}')
    a('s_waitcnt lgkmcnt(0)')
    a('v_mov_b32 v21, v20')
    wave_scan(a, 21)
    a('v_sub_u32 v20, v21, v20')
    a('ds_bpermute_b32 v20, v17, v20')
    a('s_mov_b64 exec, s[68:69]')
    a('v_subrev_u32 v21, 1, v16')
    a('v_lshrrev_b32 v26, 1, v16')
    a('v_lshl_or_b32 v26, v26, 16, v24')
    a('v_or_b32 v26, 0xc00000, v26')
    a('s_waitcnt lgkmcnt(0)')
    a('v_add_lshl_u32 v20, v20, v18, 2')
    a(f'ds_read_b32 v22, v20 offset:{TT}')
    a('s_waitcnt lgkmcnt(0)')
    a('v_and_b32 v27, 0xffff, v22')
    a('v_bfe_u32 v28, v22, 6, 1')
    a('v_mul_u32_u24 v21, v21, v27')
    a('v_lshl_add_u32 v23, v21, 16, v22')
    a('v_lshlrev_b32 v27, 1, v27')
    a('v_sub_u32 v27, 0x10000, v27')
    a('v_add_u32 v23, v23, v27')
    a('v_bfe_u32 v27, v22, 28, 1')
    a('v_lshl_add_u32 v27, v27, 2, v14')
    a(f'ds_write_b32 v27, v22 offset:{ELLPOS + 8}')
    a('v_xor_b32 v27, 4, v27')
    a(f'ds_write_b32 v27, v23 offset:{ELLPOS + 8}')
    a('v_add_u32 v16, v16, v28')
    a('v_lshrrev_b32 v16, v28, v16')
    a('v_lshrrev_b32 v22, 16, v22')
    a('v_lshl_or_b32 v24, v28, 22, v24')
    a('v_cmp_lt_u32 s[70:71], 31, v16')
    a('v_lshl_or_b32 v24, v16, 16, v24')
    a(f'ds_write_b32 v22, v24 offset:{EX - 128}')
    a('v_cmpx_ne_u32 vcc, 0, v28')
    a(f'ds_write_b32 v22, v26 offset:{EX - 64}')
    a('s_or_b32 s70, s70, s65')
    a('s_mov_b64 exec, s[70:71]')
    a(f'ds_write_b32 v12, v13 offset:{FLAG}')
    a('s_mov_b64 exec, -1')
    a('s_waitcnt lgkmcnt(0)')
    a('s_barrier')

    ell_read = [f'ds_read_b128 {R("v", vEX, 4)}, v{vAX}', f'ds_read_b32 v{vEE}, v{vAE} offset:{EE-EX}']
    jump = [f's_sub_u32 s{sJ}, s{sJ}, 1', f's_cselect_b32 s{sINC}, s{sJUMP}, s{s128}']
    ell_adv = [f'v_add_u32 v{vAX}, s{sINC}, v{vAX}', f'v_add_u32 v{vAE}, s{sINC}, v{vAE}']
    xaddr = [f'v_mad_u32_u16 v{vEX+j}, v{vEX+j}, s{s128}, v{vCX}' for j in range(4)]
    eaddr = f'v_add_u32 v{vEE}, v{vEE}, v{vCE}'
    m0x = f's_mov_b32 m0, s{sSLOT}'; m0e = f's_add_u32 m0, s{sSLOT}, {4*XP}'
    dmax = [f'buffer_load_dwordx4 v{vEX+j}, {srdn(SX)}, s{sXO+j} offen offset:{j*XP}{P.pol_x} lds' for j in range(4)]
    dmae = f'buffer_load_dwordx4 v{vEE}, {srdn(SE)}, 0 offen{P.pol_e} lds'
    adv = [f's_add_u32 s{sSLOT}, s{sSLOT}, {SLOT}', f's_cmp_eq_u32 s{sSLOT}, s{sRING1}', f's_cselect_b32 s{sSLOT}, s{sRING0}, s{sSLOT}']
    baddr = [f'v_add_u32 v{vBX}, s{sSLOT}, v{vBX0}', f'v_add_u32 v{vBE}, s{sSLOT}, v{vBE0}']
    bread = [f'ds_read_b128 {R("a", aBX+4*k, 4)}, v{vBX} offset:{32*k}' for k in range(4)] + [f'ds_read_b128 {R("a", aBE, 4)}, v{vBE}']
    PFa = [m0x] + xaddr + [eaddr] + dmax + [m0e] + [adv[0]] + [dmae] + adv[1:]
    PFb = ell_read + jump + ell_adv
    PF = PFa + PFb + baddr

    a(f'ds_read_b32 v16, v12 offset:{FLAG}')
    a('ds_read_b32 v17, v25')
    for x in ell_read: a(x)
    for i in range(10): a(f'ds_read_b32 v{vP+i}, v{vI+i} offset:{ELLPOS}')
    a(f's_waitcnt lgkmcnt(10)')
    for i in range(10, NSLOT): a(f'ds_read_b32 v{vP+i}, v{vI+i} offset:{ELLPOS}')
    a('v_readfirstlane_b32 s3, v16')
    a('v_bfe_u32 v17, v17, 16, 6')
    a('s_cmp_lg_u32 s3, 0'); a('s_cbranch_scc1 K2_slow')
    for x in PFa: a(x)
    for sh in (1, 2, 4, 8): a(f'v_max_u32_dpp v17, v17, v17 row_shr:{sh} row_mask:0xf bank_mask:0xf bound_ctrl:0')
    a('v_max_u32_dpp v17, v17, v17 row_bcast:15 row_mask:0xa bank_mask:0xf')
    a('s_waitcnt lgkmcnt(0)')
    a(f'v_readlane_b32 s{sL}, v17, 31')
    a(f'v_readlane_b32 s{sLNEXT}, v17, 63')
    for i in range(NSLOT):
        a(f'v_mul_i32_i24_sdwa v{vK+i}, v{vK+i}, sext(v{vP+i}) dst_sel:DWORD dst_unused:UNUSED_PAD src0_sel:DWORD src1_sel:WORD_0')
        a(f'v_cmpx_ne_u32 vcc, 0, v{vI+i}')
        a(f'v_add_u32_sdwa v{vP+i}, v{vK+i}, v{vP+i} dst_sel:DWORD dst_unused:UNUSED_PAD src0_sel:DWORD src1_sel:WORD_1')
        a(f'ds_write2st64_b32 v{vP+i}, v{vR+2*i}, v{vR+2*i+1} offset0:{EX//256} offset1:{EE//256}')
    a('s_mov_b64 exec, -1')
    a(f's_max_u32 s{sL}, s{sL}, 1')
    a(f's_max_u32 s{sLNEXT}, s{sLNEXT}, 1')
    a(f's_lshl_b32 s3, s{sL}, 7')
    a(f's_sub_u32 s{sJUMP}, 4096, s3')
    a(f's_mov_b32 s{sJ}, s{sL}')
    for x in jump + ell_adv: a(x)
    a('s_waitcnt lgkmcnt(0)')
    a('s_barrier')
    stamp(6)
    for x in PFb: a(x)
    for r in range(1, D):
        a('s_waitcnt lgkmcnt(0)')
        for x in PF: a(x)

    a.label('K2_group')
    a(f'v_lshrrev_b32 v{vE+1}, 3, v{vBE0}')
    a(f'v_and_b32 v{vE}, 16, v{vBE0}')
    a(f'v_and_b32 v{vE+1}, -4, v{vE+1}')
    a(f'v_lshlrev_b32 v{vE}, 4, v{vE}')
    a(f's_sub_u32 s3, s{sQROW}, {4*XP//8}')
    a(f'v_add_u32 v{vE+1}, s3, v{vE+1}')
    a(f'ds_read_b32 v{vINFO}, v{vE+1}')
    for i in range(16): a(f'ds_read_b128 {R("v", vQ+4*i, 4)}, v{vE} offset:{B1T + 16*i}')
    a(f's_waitcnt vmcnt({VW})')
    for x in bread[:4]: a(x)
    a('s_waitcnt lgkmcnt(0)')
    pf = list(PF)
    for k in range(4):
        for c in range(4):
            a(mfma(R('v', vQ+16*c, 16), R('a', aW1B + (c*4+k)*4, 4), R('a', aBX+4*k, 4), R('v', vQ+16*c, 16)))
            for x in pf[:2]: a(x)
            pf = pf[2:]
    assert not pf
    a(f's_waitcnt vmcnt({VW})')
    for x in bread: a(x)
    a(f'v_bfe_u32 v{vDEG}, v{vINFO}, 16, 6')
    a(f's_add_u32 s{sQROW}, s{sQROW}, 4096')
    a(f's_mov_b32 s{sT}, 1')
    if P.stamp:
        a(f's_cmp_lg_u32 s{76+7}, 0'); a('s_cbranch_scc1 K2_st7'); stamp(7); stamp(15, True); a.label('K2_st7')
    a('s_waitcnt lgkmcnt(0)')
    pf = list(PF)
    for k in range(5):
        a(m1(0, k, vN, vQ))
        n = 3 if k < 4 else 99
        for x in pf[:n]: a(x)
        pf = pf[n:]
    for c in range(4):
        cn = (c + 1) & 3
        if c == 3: a('s_waitcnt lgkmcnt(0)')
        for k in range(5):
            a(m1(cn, k, vN + 16*cn if c < 3 else vY, vQ + 16*cn))
            if c == 2:
                if k == 0: a(f's_waitcnt vmcnt({VW})')
                a(bread[k])
            for i in range(3*k, 3*k + (3 if k < 4 else 4)): a(f'v_exp_f32 v{vD+16*c+i}, v{vN+16*c+i}')
        for p in range(8):
            d = R('v', vD + 16*c + 2*p, 2)
            a(f'v_pk_add_f32 {d}, {d}, 1.0 op_sel_hi:[1,0]')
    a(f's_cmp_ge_u32 s{sT}, s{sL}'); a('s_cbranch_scc1 K2_flush')
    a('.p2align 3')
    a.label('K2_row')
    for c in range(4):
        cn = (c + 1) & 3
        y = vY + 16 * (c & 1); yn = vY + 16 * (cn & 1)
        S = [[] for _ in range(5)]
        V = [[] for _ in range(5)]
        if c == 0:
            S[0] = ['s_mov_b64 exec, -1']; V[0] = [xaddr[0], dmax[0], xaddr[1]]
            S[1] = [jump[0]]; V[1] = [dmax[1], xaddr[2]]
            S[2] = [jump[1]]; V[2] = [dmax[2], xaddr[3]]
            S[3] = []; V[3] = [dmax[3], eaddr, ell_read[0], ell_adv[0]]
            S[4] = [m0e]; V[4] = [dmae, ell_read[1], ell_adv[1], f'v_cmpx_lt_u32 vcc, s{sT}, v{vDEG}']
        if c == 1:
            S[0] = [adv[0]]; S[1] = [adv[1]]; S[2] = [adv[2]]
            S[3] = [f's_add_u32 s{sT}, s{sT}, 1']
            V[4] = baddr
        if c == 2:
            S[0] = [f's_waitcnt vmcnt({VW})']
            for k in range(5): V[k] = [bread[k]]
        if c == 3:
            a('s_waitcnt lgkmcnt(0)')
            S[0] = [f's_cmp_lt_u32 s{sT}, s{sL}']
            S[1] = [m0x]
        L = []
        for k in range(5):
            L.append(m1(cn, k, yn, vQ + 16*cn)); L += S[k]
            for i in range(3*k, 3*k + (3 if k < 4 else 4)): L.append(f'v_exp_f32 v{vE+i}, v{y+i}')
            L += V[k]
        for x in L: a(x)
        a('.p2align 3')
        for p in range(8):
            yy, nn, dd, ee = R('v', y+2*p, 2), R('v', vN+16*c+2*p, 2), R('v', vD+16*c+2*p, 2), R('v', vE+2*p, 2)
            a(f'v_pk_fma_f32 {yy}, {yy}, {dd}, {nn}')
            a(f'v_pk_fma_f32 {dd}, {dd}, {ee}, {dd}')
            a(f'v_pk_fma_f32 {nn}, {nn}, {ee}, {yy}')
    a('s_cbranch_scc1 K2_row')
    idx = a.items.index('K2_row:')
    from asmlib import Ins
    a.items.insert(idx - 1, Ins(m0x))
    a.label('K2_flush')
    if P.stamp:
        a(f's_cmp_lg_u32 s{76+8}, 0'); a('s_cbranch_scc1 K2_st8'); stamp(8)
        if P.stamp != 3: a(f's_mov_b32 s{76+13}, s{sL}'); a(f's_mov_b32 s{76+14}, s{sLNEXT}')
        a.label('K2_st8')
        stamp(9)
    a('s_mov_b64 exec, -1')
    for x in baddr: a(x)
    a(f'v_and_b32 v{vQ+32}, 16, v{vBE0}')
    a(f'v_lshlrev_b32 v{vQ+33}, 3, v{vQ+32}')
    for i in range(8): a(f'ds_read_b128 {R("v", vQ+4*i, 4)}, v{vQ+33} offset:{B2T + 16*i}')
    a(f'v_lshlrev_b32 v{vQ+32}, 2, v{vQ+32}')
    a(f'v_mad_u32_u16 v{vQ+32}, v{vINFO}, s{s128}, v{vQ+32}')
    a(f'v_cvt_f32_u32 v{vQ+34}, v{vDEG}')
    a(f'v_mov_b32 v{vMAX}, 0')
    def g3(c, i):
        u = 2*c + (i >> 1); dt = i & 1
        acc = R('v', vY + 16*dt, 16)
        return mfma(acc, R('a', aW2 + (dt*8+u)*4, 4), R('v', vE + 8*(c & 1) + 4*(i >> 1), 4), acc if u else '0')
    for c in range(4):
        for q in range(4):
            if c: a(g3(c-1, q))
            for p in range(2):
                d = vD + 16*c + 4*q + 2*p
                a(f'v_max3_f32 v{vMAX}, v{d}, v{d+1}, v{vMAX}')
                a(f'v_rcp_f32 v{d}, v{d}'); a(f'v_rcp_f32 v{d+1}, v{d+1}')
        for p in range(8):
            nn, dd = R('v', vN+16*c+2*p, 2), R('v', vD+16*c+2*p, 2)
            a(f'v_pk_mul_f32 {nn}, {nn}, {dd}')
        if c == 3:
            a('s_waitcnt lgkmcnt(0)')
            for p in range(16):
                qq = R('v', vQ+2*p, 2)
                a(f'v_pk_mul_f32 {qq}, {qq}, {R("v", vQ+34, 2)} op_sel_hi:[1,0]')
        for p in range(8):
            a(f'v_cvt_pk_bf16_f32 v{vE+8*(c&1)+p}, v{vN+16*c+2*p}, v{vN+16*c+2*p+1}')
    for q in range(4): a(g3(3, q))
    a(f's_mov_b32 s3, {f32(2.0**100)}')
    a(f'v_bfe_u32 v{vQ+33}, v{vINFO}, 22, 2')
    a(f'v_cmp_ne_u32 s[58:59], 0, v{vQ+33}')
    a(f'v_cmp_ne_u32 s[60:61], 3, v{vQ+33}')
    a(f'v_cmpx_ne_u32 vcc, 0, v{vDEG}')
    a(f'v_cmp_lt_f32 s[56:57], s3, v{vMAX}')
    a(f'v_mov_b32 v{vMAX}, 0x207')
    for p in range(16):
        yy, qq = R('v', vY+2*p, 2), R('v', vQ+2*p, 2)
        a(f'v_pk_fma_f32 {qq}, {yy}, s[{sLN2}:{sLN2+1}], {qq}')
    a(f'v_cmp_class_f32 vcc, v{vQ}, v{vMAX}')
    a(f's_or_b64 s[{sBAD}:{sBAD+1}], s[{sBAD}:{sBAD+1}], s[56:57]')
    a('s_mov_b64 exec, s[58:59]')
    a(f's_or_b64 s[{sBAD}:{sBAD+1}], s[{sBAD}:{sBAD+1}], vcc')
    a('s_cbranch_execz K2_nopair')
    for i in range(32):
        a(f'v_add_f32_dpp v{vQ+i}, v{vQ+i}, v{vQ+i} quad_perm:[1,0,3,2] row_mask:0xf bank_mask:0xf')
    a.label('K2_nopair')
    a('s_mov_b64 exec, s[60:61]')
    for i in range(4):
        for p in range(4*i, 4*i+4): a(f'v_cvt_pk_bf16_f32 v{vE+p}, v{vQ+2*p}, v{vQ+2*p+1}')
        a(f'buffer_store_dwordx4 {R("v", vE+4*i, 4)}, v{vQ+32}, {srdn(SO)}, 0 offen offset:{16*i}{P.pol_out}')
    a('s_mov_b64 exec, -1')
    a(f's_mov_b32 s{sL}, s{sLNEXT}')
    a(f's_mov_b32 s{sLNEXT}, 0')
    a(f's_cmp_lg_u32 s{sL}, 0'); a('s_cbranch_scc1 K2_group')
    if P.stamp:
        stamp(10); a('s_waitcnt vmcnt(0)'); stamp(11); stamp(12, True)
        for i in range(16): a(f'v_writelane_b32 v1, s{76+i}, {i}')
        a('v_mbcnt_lo_u32_b32 v2, -1, 0'); a('v_mbcnt_hi_u32_b32 v2, -1, v2'); a('v_lshlrev_b32 v2, 2, v2')
        a('s_lshl_b32 s3, s2, 2'); a(f's_add_u32 s3, s3, s{sWAVE}'); a('s_lshl_b32 s3, s3, 6'); a(f's_add_u32 s3, s3, {WS_STAMP}')
        a('s_mov_b64 exec, 0xffff')
        a(f'buffer_store_dword v1, v2, {srdn(SW)}, s3 offen')
        a('s_mov_b64 exec, -1')
    a(f's_cmp_eq_u64 s[{sBAD}:{sBAD+1}], 0')
    a('v_mov_b32 v1, 0'); a('v_mov_b32 v2, 1')
    a('s_cbranch_scc1 K2_nobad')
    a(f'ds_write_b32 v1, v2 offset:{FLAG}')
    a.label('K2_nobad')
    a('s_waitcnt lgkmcnt(0)')
    a('s_barrier')
    a(f'ds_read_b32 v2, v1 offset:{FLAG}')
    a('s_waitcnt lgkmcnt(0)')
    a('v_readfirstlane_b32 s3, v2')
    a('s_cmp_lg_u32 s3, 0'); a('s_cbranch_scc1 K2_slow')
    a.label('K2_end')
    a('s_endpgm')

    a.label('K2_slow')
    a('s_mov_b64 exec, -1')
    a('s_waitcnt vmcnt(0) lgkmcnt(0)')
    a('s_barrier')
    vL, vS, vH, vT0, vT1, vOA = 240, 241, 242, 244, 245, 246
    a(f'v_mbcnt_lo_u32_b32 v{vL}, -1, 0'); a(f'v_mbcnt_hi_u32_b32 v{vL}, -1, v{vL}')
    a(f'v_and_b32 v{vS}, 31, v{vL}')
    a(f'v_lshrrev_b32 v{vH}, 5, v{vL}')
    a(f's_lshl_b32 s3, s{sWAVE}, 10')
    a(f'v_lshl_add_u32 v4, v{vL}, 4, s3')
    for i in range(4): a(f'v_mov_b32 v{i}, 0')
    for i in range(13): a(f'ds_write_b128 v4, v[0:3] offset:{OACC + 4096*i}')
    a('s_waitcnt lgkmcnt(0)')
    a('s_barrier')
    sC, sST, sCNT = 56, 57, 58
    a(f's_mov_b32 s{sC}, s{sWAVE}')
    a.label('K2_s_chunk')
    a(f's_lshl_b32 s3, s{sC}, 10')
    a(f'v_mov_b32 v{vT0}, s3')
    a(f'buffer_load_dword v{vT0}, v{vT0}, {srdn(SW)}, s33 offen')
    a('s_waitcnt vmcnt(0)')
    a(f'v_readfirstlane_b32 s3, v{vT0}')
    a(f's_lshr_b32 s{sCNT}, s3, 16')
    a('s_and_b32 s3, s3, 0xffff')
    a(f's_mul_i32 s{sST}, s{sC}, {CH}')
    a(f's_add_u32 s{sST}, s{sST}, s3')
    a.label('K2_s_batch')
    a(f's_cmp_lt_i32 s{sCNT}, 1'); a('s_cbranch_scc1 K2_s_next')
    a(f'v_add_lshl_u32 v{vT0}, v{vS}, s{sST}, 3')
    a(f'v_mov_b32 v{vT1}, {DUMMY}')
    a(f'v_cmp_gt_u32 s[60:61], s{sCNT}, v{vS}')
    a(f'v_cndmask_b32 v{vT0}, v{vT1}, v{vT0}, s[60:61]')
    a(f'buffer_load_dwordx2 v[{vT0}:{vT1}], v{vT0}, {srdn(SW)}, 0 offen')
    a(f'v_lshlrev_b32 v247, 8, v{vH}')
    for i in range(16): a(f'ds_read_b128 {R("v", vQ+4*i, 4)}, v247 offset:{B1T + 16*i}')
    a(f'v_lshlrev_b32 v247, 4, v{vH}')
    a('s_waitcnt vmcnt(0)')
    a(f'v_lshrrev_b32 v248, 19, v{vT0}')
    a(f'v_mad_u32_u16 v{vT0}, v{vT0}, s{s128}, v247')
    a(f'v_add_u32 v{vT1}, v{vT1}, v247')
    a(f'v_max_u32 v248, 1, v248')
    a(f'v_subrev_u32 v248, 1, v248')
    a(f'v_add_u32 v249, s{sNB0}, v248')
    a(f'v_lshl_add_u32 v249, v249, 7, v247')
    for k in range(4): a(f'buffer_load_dwordx4 {R("a", aBX+4*k, 4)}, v{vT0}, {srdn(SX)}, s{sXO} offen offset:{32*k}')
    a(f'buffer_load_dwordx4 {R("a", aBE, 4)}, v{vT1}, {srdn(SE)}, 0 offen')
    for k in range(4): a(f'buffer_load_dwordx4 {R("v", vE+4*k, 4)}, v249, {srdn(SX)}, s{sXO} offen offset:{32*k}')
    a(f'v_mul_u32_u24 v{vOA}, 260, v248')
    a(f'v_lshl_add_u32 v{vOA}, v{vH}, 7, v{vOA}')
    a('s_waitcnt vmcnt(0) lgkmcnt(0)')
    for c in range(4):
        q = R('v', vQ+16*c, 16)
        for k in range(4): a(mfma(q, R('a', aW1B + (c*4+k)*4, 4), R('v', vE+4*k, 4), q))
        for k in range(5): a(m1(c, k, vQ+16*c, vQ+16*c))
    for i in range(64): a(f'v_exp_f32 v{vD+i}, v{vQ+i}')
    for i in range(64): a(f'v_add_f32 v{vD+i}, 1.0, v{vD+i}')
    for i in range(64): a(f'v_rcp_f32 v{vD+i}, v{vD+i}')
    for i in range(64): a(f'v_mul_f32 v{vD+i}, v{vD+i}, v{vQ+i}')
    for i in range(32): a(f'v_cvt_pk_bf16_f32 v{vN+i}, v{vD+2*i}, v{vD+2*i+1}')
    a(f'v_lshlrev_b32 v247, 7, v{vH}')
    for i in range(8): a(f'ds_read_b128 {R("v", vQ+4*i, 4)}, v247 offset:{B2T + 16*i}')
    for dt in range(2):
        acc = R('v', vY + 16*dt, 16)
        for u in range(8): a(mfma(acc, R('a', aW2 + (dt*8+u)*4, 4), R('v', vN + 4*u, 4), acc if u else '0'))
    a('s_waitcnt lgkmcnt(0)')
    for i in range(32): a(f'v_fma_f32 v{vY+i}, v{vY+i}, s{sLN2}, v{vQ+i}')
    a('s_mov_b64 exec, s[60:61]')
    for i in range(32): a(f'ds_add_f32 v{vOA}, v{vY+i} offset:{OACC + 4*i}')
    a('s_mov_b64 exec, -1')
    a('s_waitcnt lgkmcnt(0)')
    a(f's_add_u32 s{sST}, s{sST}, 32')
    a(f's_sub_u32 s{sCNT}, s{sCNT}, 32')
    a('s_branch K2_s_batch')
    a.label('K2_s_next')
    a(f's_add_u32 s{sC}, s{sC}, 4')
    a(f's_cmp_lt_u32 s{sC}, {NCH}'); a('s_cbranch_scc1 K2_s_chunk')
    a('s_barrier')
    a(f's_lshl_b32 s3, s{sWAVE}, 1')
    a(f'v_add_u32 v1, s3, v{vH}')
    a.label('K2_s_out')
    a(f'v_cmp_gt_u32 vcc, s{sNNODE}, v1')
    a('v_mul_u32_u24 v4, 260, v1')
    a(f'v_lshl_add_u32 v4, v{vS}, 3, v4')
    a(f'v_add_u32 v4, {OACC}, v4')
    a(f'v_add_u32 v5, s{sNB0}, v1')
    a('v_lshlrev_b32 v5, 7, v5')
    a(f'v_lshl_add_u32 v5, v{vS}, 2, v5')
    a('s_and_b64 exec, exec, vcc')
    a('s_cbranch_execz K2_s_end')
    a('ds_read2_b32 v[2:3], v4 offset0:0 offset1:1')
    a('s_waitcnt lgkmcnt(0)')
    a('v_cvt_pk_bf16_f32 v2, v2, v3')
    a(f'buffer_store_dword v2, v5, {srdn(SO)}, 0 offen')
    a('v_add_u32 v1, 8, v1')
    a('s_branch K2_s_out')
    a.label('K2_s_end')
    a('s_endpgm')
    a('.p2align 7')
    a.raw('.type K2_table,@object')
    a.label('K2_table')
    T = pattern_table()
    for i in range(0, 256, 8): a.raw('.long ' + ', '.join(hex(x) for x in T[i:i+8]))
    a.raw('.size K2_table, 1024')
    return a
```

```python
import sys, struct
from asmlib import Asm, check_all_edges

NAME = 'standalone__edge_featured_mpnn_mpnn__graph'
N, E = 50000, 800000
NB, BN = 256, 196
NCH, CH = 250, 3200
MAGIC = 85599
WS_REC, WS_TAB, WS_W = 0, 8 << 20, 9 << 20
WS_SIZE = 10 << 20
WS_STAMP = (9 << 20) + (512 << 10)
DUMMY = 0x4000FFFF
def f32(x): return struct.unpack('<I', struct.pack('<f', x))[0]
NLOG2E = f32(-1.4426950408889634)
NLN2 = f32(-0.6931471805599453)

class P:
    depth = 3
    stamp = 0
    classes = 1
    xpre = 0
    prepos = 1
    init1 = 8
    init2 = 4
    codepre = 1
    pol_in = ' nt'
    pol_e = ''
    pol_x = ''
    pol_rec = ''
    pol_out = ''
    pol_k1st = ''

def srd(a, d, lo, size, hi=None):
    a(f's_mov_b32 s{d}, s{lo}')
    a(f's_and_b32 s{d+1}, s{lo+1}, 0xffff')
    a(f's_mov_b32 s{d+2}, {size}')
    a(f's_mov_b32 s{d+3}, 0x20000')

def wave_scan(a, v):
    for sh in (1, 2, 4, 8):
        a(f'v_add_u32_dpp v{v}, v{v}, v{v} row_shr:{sh} row_mask:0xf bank_mask:0xf bound_ctrl:0')
    a(f'v_add_u32_dpp v{v}, v{v}, v{v} row_bcast:15 row_mask:0xa bank_mask:0xf')
    a(f'v_add_u32_dpp v{v}, v{v}, v{v} row_bcast:31 row_mask:0xc bank_mask:0xf')

def descriptor(name, vgpr, accum, sgpr=96):
    return f'''.section .rodata,"a"
.p2align 6
.amdhsa_kernel {name}
  .amdhsa_next_free_vgpr {vgpr}
  .amdhsa_next_free_sgpr {sgpr}
  .amdhsa_accum_offset {accum}
  .amdhsa_group_segment_fixed_size 0
  .amdhsa_kernarg_size 88
  .amdhsa_user_sgpr_count 2
  .amdhsa_user_sgpr_kernarg_segment_ptr 1
  .amdhsa_system_sgpr_workgroup_id_x 1
.end_amdhsa_kernel
.text
'''

K1_T = 832
K1_HIST, K1_START, K1_STAGE = 0, 1024, 4096
K1_LDS = K1_STAGE + CH * 8

def gen_k1():
    a = Asm()
    a('.p2align 8'); a.label('bin_kernel')
    a('s_cmp_ge_u32 s2, %d' % (NCH + 4)); a('s_cbranch_scc1 K1_end')
    if P.stamp == 2: a('s_memrealtime s[34:35]')
    a('s_load_dwordx4 s[4:7], s[0:1], 16')
    a('s_load_dwordx2 s[8:9], s[0:1], 80')
    a('s_cmp_ge_u32 s2, %d' % NCH); a('s_cbranch_scc1 K1_prep')
    a('v_lshlrev_b32 v1, 2, v0')
    a('v_mov_b32 v2, 0')
    a('ds_write_b32 v1, v2')
    a('v_lshlrev_b32 v3, 4, v0')
    a(f's_mul_i32 s3, s2, {CH*4}')
    a(f's_mov_b32 s24, {MAGIC}')
    a(f's_movk_i32 s25, {-BN}')
    a(f's_mul_i32 s26, s2, {CH*32}')
    a(f'v_cmp_gt_u32 vcc, {CH//4}, v0')
    a('s_waitcnt lgkmcnt(0)')
    srd(a, 12, 6, E * 4)
    srd(a, 16, 4, E * 4)
    srd(a, 20, 8, WS_SIZE)
    a('s_mov_b64 s[10:11], vcc')
    a('s_mov_b64 exec, s[10:11]')
    a(f'buffer_load_dwordx4 v[4:7], v3, s[12:15], s3 offen{P.pol_in}')
    a(f'buffer_load_dwordx4 v[8:11], v3, s[16:19], s3 offen{P.pol_in}')
    a('v_mov_b32 v12, 1')
    a('v_lshlrev_b32 v13, 7, v0')
    a('v_add_u32 v13, s26, v13')
    a('s_barrier')
    a('s_waitcnt vmcnt(1)')
    for i in range(4):
        a(f'v_mul_u32_u24 v{14+i}, s24, v{4+i}')
    for i in range(4):
        a(f'v_lshrrev_b32 v{14+i}, 24, v{14+i}')
    for i in range(4):
        a(f'v_lshlrev_b32 v{18+i}, 2, v{14+i}')
        a(f'ds_add_rtn_u32 v{22+i}, v{18+i}, v12')
    for i in range(4):
        a(f'v_mad_i32_i24 v{4+i}, v{14+i}, s25, v{4+i}')
    for i in range(4):
        a(f'v_add_lshl_u32 v{4+i}, v{4+i}, 1, 19')
    a('s_waitcnt vmcnt(0)')
    for i in range(4):
        a(f'v_add_u32 v{14+i}, {32768 - N//2}, v{8+i}')
        a(f'v_and_b32 v{14+i}, {0x8000 if P.classes else 0}, v{14+i}')
        a(f'v_lshl_or_b32 v{14+i}, v{14+i}, 3, v{8+i}')
        a(f'v_or_b32 v{26+2*i}, v{14+i}, v{4+i}')
        if i == 0: a('v_mov_b32 v27, v13')
        else: a(f'v_add_u32 v{27+2*i}, {32*i}, v13')
    a('s_mov_b64 exec, -1')
    a('v_and_b32 v34, 63, v0')
    a('v_lshlrev_b32 v34, 4, v34')
    a('s_waitcnt lgkmcnt(0)')
    a('s_barrier')
    a(f'ds_read_b128 v[36:39], v34 offset:{K1_HIST}')
    a('s_waitcnt lgkmcnt(0)')
    a('v_add_u32 v41, v36, v37')
    a('v_add_u32 v42, v41, v38')
    a('v_add_u32 v43, v42, v39')
    a('v_mov_b32 v35, v43')
    wave_scan(a, 35)
    a('v_sub_u32 v40, v35, v43')
    a('v_add_u32 v43, v40, v42')
    a('v_add_u32 v42, v40, v41')
    a('v_add_u32 v41, v40, v36')
    a(f'ds_write_b128 v34, v[40:43] offset:{K1_START}')
    a('s_mov_b64 exec, s[10:11]')
    for i in range(4):
        a(f'ds_read_b32 v{14+i}, v{18+i} offset:{K1_START}')
    a('v_cmp_gt_u32 vcc, 64, v0')
    a('s_lshl_b32 s27, s2, 10')
    a(f's_add_u32 s27, s27, {WS_TAB}')
    a('s_and_b64 exec, vcc, -1')
    a('s_cbranch_execz K1_notab')
    for i in range(4):
        a(f'v_lshl_or_b32 v{36+i}, v{36+i}, 16, v{40+i}')
    a(f'buffer_store_dwordx4 v[36:39], v34, s[20:23], s27 offen{P.pol_k1st}')
    a.label('K1_notab')
    a('s_mov_b64 exec, s[10:11]')
    for i in range(4):
        a(f's_waitcnt lgkmcnt({3-i})' if i == 0 else f's_waitcnt lgkmcnt(3)')
        a(f'v_add_lshl_u32 v{14+i}, v{14+i}, v{22+i}, 3')
        a(f'ds_write_b64 v{14+i}, v[{26+2*i}:{27+2*i}] offset:{K1_STAGE}')
    a(f's_mul_i32 s27, s2, {CH*8}')
    a(f's_add_u32 s28, s27, {CH*4}')
    a('s_waitcnt lgkmcnt(0)')
    a('s_barrier')
    a(f'ds_read_b128 v[4:7], v3 offset:{K1_STAGE}')
    a(f'ds_read_b128 v[8:11], v3 offset:{K1_STAGE + CH*4}')
    a('s_waitcnt lgkmcnt(1)')
    a(f'buffer_store_dwordx4 v[4:7], v3, s[20:23], s27 offen{P.pol_k1st}')
    a('s_waitcnt lgkmcnt(0)')
    a(f'buffer_store_dwordx4 v[8:11], v3, s[20:23], s28 offen{P.pol_k1st}')
    if P.stamp == 2:
        a('s_cmp_lg_u32 s2, 100'); a('s_cbranch_scc1 K1_end')
        a('s_load_dwordx2 s[4:5], s[0:1], 72')
        a('s_waitcnt vmcnt(0)'); a('s_memrealtime s[36:37]'); a('s_waitcnt lgkmcnt(0)')
        a('v_mov_b32 v4, s34'); a('v_mov_b32 v5, s36'); a(f'v_mov_b32 v6, {WS_STAMP - 64}')
        a('v_cmp_eq_u32 vcc, 0, v0'); a('s_and_b64 exec, vcc, exec'); a('s_cbranch_execz K1_end')
        a('buffer_store_dwordx2 v[4:5], v6, s[20:23], 0 offen')
        a('v_sub_u32 v4, v5, v4'); a('v_mov_b32 v5, 0x1111'); a('global_store_dwordx2 v0, v[4:5], s[4:5]')
    a('s_endpgm')

    a.label('K1_prep')
    a('s_load_dwordx2 s[30:31], s[0:1], 32')
    a('s_load_dwordx2 s[32:33], s[0:1], 48')
    a('v_lshrrev_b32 v1, 6, v0')
    a('v_and_b32 v2, 31, v0')
    a('v_bfe_u32 v3, v0, 5, 1')
    a('v_readfirstlane_b32 s3, v1')
    a(f's_sub_u32 s24, s2, {NCH}')
    a('s_mul_i32 s24, s24, 13')
    a('s_add_u32 s24, s24, s3')
    a('v_and_b32 v1, 63, v0')
    a('v_lshlrev_b32 v1, 4, v1')
    a('s_lshl_b32 s27, s24, 10')
    a(f's_add_u32 s27, s27, {WS_W}')
    a('s_waitcnt lgkmcnt(0)')
    srd(a, 12, 30, 144 * 128 * 2)
    srd(a, 16, 32, 128 * 64 * 2)
    srd(a, 20, 8, WS_SIZE)
    a('s_cmp_ge_u32 s24, 36'); a('s_cbranch_scc1 K1_prep_w2')
    a('s_lshr_b32 s25, s24, 2')
    a('s_and_b32 s26, s24, 3')
    a('s_lshl_b32 s28, s26, 4')
    a('s_cmp_lt_u32 s24, 16'); a('s_cbranch_scc1 K1_prep_go')
    a('s_sub_u32 s25, s25, 5')
    a('s_add_u32 s28, s28, 64')
    a('s_cmp_ge_u32 s24, 20'); a('s_cbranch_scc1 K1_prep_go')
    a('s_mov_b32 s25, s26')
    a('s_movk_i32 s28, 128')
    a.label('K1_prep_go')
    a('s_lshl_b32 s28, s28, 8')
    a('s_lshl_b32 s25, s25, 6')
    a('s_add_u32 s28, s28, s25')
    a('v_lshlrev_b32 v4, 11, v3')
    a('v_lshl_add_u32 v4, v2, 1, v4')
    for j in range(8):
        a(f'buffer_load_ushort v{8+j}, v4, s[12:15], s28 offen offset:{256*j}')
    a(f's_mov_b32 s29, {NLOG2E}')
    a('s_waitcnt vmcnt(0)')
    for j in range(8):
        a(f'v_lshlrev_b32 v{8+j}, 16, v{8+j}')
    for j in range(8):
        a(f'v_mul_f32 v{8+j}, s29, v{8+j}')
    for j in range(4):
        a(f'v_cvt_pk_bf16_f32 v{16+j}, v{8+2*j}, v{9+2*j}')
    a('buffer_store_dwordx4 v[16:19], v1, s[20:23], s27 offen')
    a('s_endpgm')
    a.label('K1_prep_w2')
    a('s_sub_u32 s24, s24, 36')
    a('s_lshr_b32 s25, s24, 3')
    a('s_and_b32 s26, s24, 7')
    a('s_lshl_b32 s28, s26, 11')
    a('s_lshl_b32 s25, s25, 5')
    a('s_add_u32 s28, s28, s25')
    a('v_bfe_u32 v4, v2, 2, 1')
    a('v_lshlrev_b32 v4, 5, v4')
    a('v_and_b32 v5, 3, v2')
    a('v_add_u32 v4, v4, v5')
    a('v_lshrrev_b32 v5, 3, v2')
    a('v_lshl_add_u32 v4, v5, 2, v4')
    a('v_lshlrev_b32 v4, 1, v4')
    a('v_lshl_add_u32 v4, v3, 9, v4')
    for j in range(8):
        a(f'buffer_load_ushort v{8+j}, v4, s[16:19], s28 offen offset:{128*((j&3)+8*(j>>2))}')
    a('s_waitcnt vmcnt(0)')
    for j in range(4):
        a(f'v_lshl_or_b32 v{16+j}, v{9+2*j}, 16, v{8+2*j}')
    a('buffer_store_dwordx4 v[16:19], v1, s[20:23], s27 offen')
    a.label('K1_end')
    a('s_endpgm')
    return a

if __name__ == '__main__':
    from gen_k2 import gen_k2, K2_LDS
    for kv in sys.argv[2:]:
        k, v = kv.split('=')
        cur = getattr(P, k)
        setattr(P, k, int(v) if isinstance(cur, int) else (' ' + v.replace('+', ' ') if v else ''))
    k1 = gen_k1(); k2 = gen_k2(P)
    for nm, k in (('k1', k1), ('k2', k2)):
        pr = check_all_edges(k)
        for p in pr: print('HAZARD on branch edge', nm, p, file=sys.stderr)
        print(nm, 'instrs', sum(1 for x in k.items if not isinstance(x, str)), 'auto nops', k.nops, file=sys.stderr)
    head = open('cdna_kernels/' + NAME + '.s.ref').read().split('; Override launch')[0]
    out = head
    out += f'; @launch kernel=bin_kernel grid=({NCH+4},1,1) block=({K1_T},1,1) lds={K1_LDS}\n'
    out += f'; @launch kernel={NAME}_kernel grid=({NB},1,1) block=(256,1,1) lds={K2_LDS(P)}\n'
    out += '.amdgcn_target "amdgcn-amd-amdhsa--gfx950"\n.text\n'
    out += '.globl bin_kernel\n.type bin_kernel,@function\n' + k1.text()
    out += f'.globl {NAME}_kernel\n.type {NAME}_kernel,@function\n' + k2.text()
    out += descriptor('bin_kernel', 48, 48, 40)
    out += descriptor(NAME + '_kernel', 512, 256, 96)
    open(sys.argv[1], 'w').write(out)
```

```python
import sys, struct
from asmlib import Asm, Ins, check_all_edges

NAME = 'standalone__edge_featured_mpnn_mpnn__graph'
N, E = 50000, 800000
NB, BN = 256, 196
NCH, CH = 250, 3200
MAGIC = 85599
WS_REC, WS_TAB, WS_W = 0, 8 << 20, 9 << 20
WS_SIZE = 10 << 20
WS_STAMP = (9 << 20) + (512 << 10)
DUMMY = 0x4000FFFF
def f32(x): return struct.unpack('<I', struct.pack('<f', x))[0]
NLOG2E = f32(-1.4426950408889634)
NLN2 = f32(-0.6931471805599453)

class P:
    depth = 3
    stamp = 0
    efrac = 100
    xfrac = 100
    limit = 3000
    force = 0
    pol_in = ' nt'
    pol_e = ''
    pol_x = ''
    pol_out = ''

CNT, HIST, FLAG = 0, 3328, 3584
HB, START, B1T, B2T, TT = 4096, 5120, 6144, 6656, 7168
EX, EE = 8192, 40960
RING = 73728
NSLOT = 15
MAP = RING
WST = MAP + 16384
STAGE = WST
XP = 1056
SLOT = 4 * XP + 1024
OACC = 8192
def lds_bytes(): return max(RING + 4 * P.depth * SLOT, WST + 52 * 1024)

PATTERN = [(0, 0, 'H', 1), (2, 0, 'H', 2), (3, 0, 'H', 2), (3, 1, 'H', 16), (2, 1, 'H', 9), (0, 0, 'S', 30),
           (1, 1, 'H', 14), (1, 0, 'S', 32), (2, 0, 'S', 28), (3, 0, 'S', 28), (0, 1, 'H', 16), (2, 1, 'S', 14), (1, 1, 'S', 4)]
def pattern_table():
    free = {(w, ph): list(range(32)) for w in range(4) for ph in range(2)}
    T = [None] * BN; p = 0; segs = []
    for w, ph, t, n in PATTERN: segs.append((w, ph, t, p, n)); p += n
    assert p == BN
    for t0 in 'HS':
        for w, ph, t, p0, n in segs:
            if t != t0: continue
            for i in range(n):
                pos = free[(w, ph)].pop(0)
                if t == 'H': assert pos < 16; free[(w, ph)].remove(pos + 16)
                T[p0 + i] = (((w * 2 + ph) * 4096 + pos * 4 + 128) << 16) | (64 if t == 'H' else 128)
    assert all(not v for v in free.values())
    return T + [128] * (256 - BN)

vN, vD, vQ, vY, vE = 0, 64, 128, 192, 224
vEX, vEE, vAX, vAE, vCX, vCE, vBX0, vBE0, vBX, vBE, vINFO, vDEG, vMAX = 240, 244, 245, 246, 247, 248, 249, 250, 251, 252, 253, 254, 255
aW1A, aW1C, aW1B, aW2, aBX, aBE, aJUNK = 0, 64, 80, 144, 208, 224, 228
SX, SE, SW, SO, SD, SS = 12, 16, 20, 24, 68, 72
sB, sNB0, sNNODE, sWAVE, sMAP, sCOL = 28, 29, 30, 31, 32, 33
sXO = 36
s128, sSLOT, sRING0, sRING1, sT, sL, sLNEXT, sQROW = 40, 41, 42, 43, 44, 45, 46, 47
sLN2, sBAD = 48, 50
sJ, sJUMP, sINC = 52, 53, 54
sSLOW, sCNT = 66, 67
mLO, mBN, mNN = 's[76:77]', 's[78:79]', 's[80:81]'
sTAG, sTAG8, sTAG8S = 82, 83, 84
def R(p, b, n): return f'{p}[{b}:{b+n-1}]'
def srdn(s): return f's[{s}:{s+3}]'
SDWA = 'dst_sel:DWORD dst_unused:UNUSED_PAD src0_sel:DWORD src1_sel:'

def srd(a, d, lo, size):
    a(f's_mov_b32 s{d}, s{lo}'); a(f's_and_b32 s{d+1}, s{lo+1}, 0xffff')
    a(f's_mov_b32 s{d+2}, {size}'); a(f's_mov_b32 s{d+3}, 0x20000')
def wave_scan(a, v, fill=()):
    fill = list(fill)
    steps = [f'row_shr:{sh} row_mask:0xf bank_mask:0xf bound_ctrl:0' for sh in (1, 2, 4, 8)]
    steps += ['row_bcast:15 row_mask:0xa bank_mask:0xf', 'row_bcast:31 row_mask:0xc bank_mask:0xf']
    for s in steps:
        for x in fill[:2]: a(x)
        fill = fill[2:]
        a(f'v_add_u32_dpp v{v}, v{v}, v{v} {s}')
    for x in fill: a(x)
def mfma(d, A, B, C): return f'v_mfma_f32_32x32x16_bf16 {d}, {A}, {B}, {C}'
def m1(c, k, dst, first_c):
    A = R('a', aW1A + (c * 4 + k) * 4, 4) if k < 4 else R('a', aW1C + c * 4, 4)
    B = R('a', aBX + k * 4, 4) if k < 4 else R('a', aBE, 4)
    return mfma(R('v', dst, 16), A, B, R('v', first_c if k == 0 else dst, 16))
def isize(x):
    op = x.split()[0]
    if op.startswith(('v_mfma', 'v_pk_', 'buffer_', 'ds_', 'global_', 'v_mad_', 'v_max3', 'v_cvt_pk', 'v_lshl_add', 'v_bfe')) or op.endswith(('_e64', '_dpp', '_sdwa')): return 8
    for t in x.replace(',', ' ').split()[1:]:
        try: v = int(t, 0)
        except ValueError: continue
        if not -16 <= v <= 64 and not op.startswith(('s_movk', 's_waitcnt', 's_nop')): return 8
    return 4

def prep_offsets(a, vl, v1, v2, t0, t1):
    a(f'v_and_b32 v{t0}, 31, v{vl}'); a(f'v_lshrrev_b32 v{t1}, 5, v{vl}')
    a(f'v_lshlrev_b32 v{v1}, 11, v{t1}'); a(f'v_lshl_add_u32 v{v1}, v{t0}, 1, v{v1}')
    a(f'v_lshlrev_b32 v{v2}, 9, v{t1}')
    a(f'v_bfe_u32 v{t1}, v{t0}, 2, 1'); a(f'v_lshl_add_u32 v{v2}, v{t1}, 6, v{v2}')
    a(f'v_and_b32 v{t1}, 3, v{t0}'); a(f'v_lshl_add_u32 v{v2}, v{t1}, 1, v{v2}')
    a(f'v_lshrrev_b32 v{t1}, 3, v{t0}'); a(f'v_lshl_add_u32 v{v2}, v{t1}, 3, v{v2}')
def prep_w1_load(a, sidx, voff, vd, s0, s1):
    a(f's_and_b32 s{s0}, s{sidx}, 3'); a(f's_lshr_b32 s{s1}, s{sidx}, 2')
    a(f's_cmp_eq_u32 s{s1}, 4')
    a(f's_cselect_b32 s{s1}, s{s0}, s{s1}'); a(f's_cselect_b32 s{s0}, 8, s{s0}')
    a(f's_lshl_b32 s{s0}, s{s0}, 12'); a(f's_lshl_b32 s{s1}, s{s1}, 6'); a(f's_add_u32 s{s0}, s{s0}, s{s1}')
    a(f's_cmp_ge_u32 s{sidx}, 20'); a(f's_cselect_b32 s{s1}, {64*256 - 5*64}, 0'); a(f's_add_u32 s{s0}, s{s0}, s{s1}')
    for j in range(8): a(f'buffer_load_ushort v{vd+j}, v{voff}, {srdn(SD)}, s{s0} offen offset:{256*j}')
def prep_w2_load(a, sidx, voff, vd, s0, s1):
    a(f's_sub_u32 s{s0}, s{sidx}, 36'); a(f's_lshr_b32 s{s1}, s{s0}, 3'); a(f's_and_b32 s{s0}, s{s0}, 7')
    a(f's_lshl_b32 s{s0}, s{s0}, 11'); a(f's_lshl_b32 s{s1}, s{s1}, 5'); a(f's_add_u32 s{s0}, s{s0}, s{s1}')
    for j in range(8): a(f'buffer_load_ushort v{vd+j}, v{voff}, {srdn(SS)}, s{s0} offen offset:{128*((j&3)+8*(j>>2))}')
def prep_w1_pack(a, vd):
    for j in range(8): a(f'v_lshlrev_b32 v{vd+j}, 16, v{vd+j}')
    for j in range(8): a(f'v_mul_f32 v{vd+j}, {NLOG2E}, v{vd+j}')
    for j in range(4): a(f'v_cvt_pk_bf16_f32 v{vd+j}, v{vd+2*j}, v{vd+2*j+1}')
def prep_w2_pack(a, vd):
    for j in range(4): a(f'v_lshl_or_b32 v{vd+j}, v{vd+2*j+1}, 16, v{vd+2*j}')

def gen():
    D = P.depth
    VW = 5 * (D - 1)
    a = Asm()
    def stamp(i, real=False):
        if not P.stamp: return
        a(f's_mem{"real" if real else ""}time s[86:87]'); a('s_waitcnt lgkmcnt(0)'); a(f's_mov_b32 s{88+i}, s86')
    def poll(name, load, check, first_issued=False):
        a(f's_movk_i32 s{sCNT}, {P.limit}')
        if first_issued: a(f's_branch {name}_chk')
        a.label(name)
        load()
        a.label(name + '_chk')
        a('s_waitcnt vmcnt(0)')
        check()
        a(f's_cbranch_scc0 {name}_ok')
        a(f's_sub_u32 s{sCNT}, s{sCNT}, 1')
        a(f's_cbranch_scc0 {name}')
        a(f's_mov_b32 s{sSLOW}, 1')
        a.label(name + '_ok')

    a('.p2align 8'); a.label(NAME + '_kernel')
    a(f's_cmp_ge_u32 s2, {NB}'); a('s_cbranch_scc1 L_end')
    stamp(0, True); stamp(1)
    a('s_load_dwordx8 s[4:11], s[0:1], 0')
    a('s_load_dwordx4 s[60:63], s[0:1], 64')
    a('s_load_dwordx2 s[64:65], s[0:1], 80')
    a('s_load_dwordx8 s[52:59], s[0:1], 32')
    a(f's_memrealtime s[{sTAG}:{sTAG+1}]')
    a('s_getpc_b64 s[14:15]')
    a.label('L_pc')
    a('v_lshlrev_b32 v15, 2, v0')
    a('s_add_u32 s14, s14, L_table-L_pc')
    a('s_addc_u32 s15, s15, 0')
    a('global_load_dword v11, v15, s[14:15]')
    a('v_lshrrev_b32 v1, 6, v0')
    a('v_and_b32 v2, 63, v0')
    a(f'v_readfirstlane_b32 s{sWAVE}, v1')
    a('v_lshlrev_b32 v21, 4, v0')
    for i in range(4): a(f'v_mov_b32 v{4+i}, 0')
    a('ds_write_b128 v21, v[4:7]')
    a(f'ds_write_b32 v15, v4 offset:{HB}')
    a('v_mov_b32 v12, 0')
    a('v_mov_b32 v13, 1')
    a('v_lshlrev_b32 v9, 4, v2')
    a('v_cmp_gt_u32 vcc, 128, v0')
    a(f's_mul_i32 s3, s2, {CH*4}')
    for s in (SD, SS): a(f's_mov_b32 s{s+2}, {E*4}'); a(f's_mov_b32 s{s+3}, 0x20000')
    a(f's_mov_b64 {mLO}, vcc')
    a('s_add_u32 s34, s3, 4096'); a('s_add_u32 s35, s3, 8192'); a('s_add_u32 s36, s3, 12288')
    a(f's_mov_b32 s{sSLOW}, 0')
    a('s_waitcnt lgkmcnt(0)')
    vDs, vSr, vB, vRk, vRec = 32, 48, 64, 80, 96
    a(f's_mov_b32 s{SD}, s10'); a(f's_and_b32 s{SD+1}, s11, 0xffff')
    a(f's_mov_b32 s{SS}, s8'); a(f's_and_b32 s{SS+1}, s9, 0xffff')
    a(f's_or_b32 s37, s2, s{sWAVE}')
    a('s_cbranch_scc1 L_notag')
    if P.force != 1:
        a(f's_or_b32 s{sTAG}, s{sTAG}, 1')
        a(f'v_mov_b32 v4, s{sTAG}'); a(f'v_mov_b32 v5, s{sTAG+1}')
        a('s_mov_b64 exec, 1')
        a('global_store_dwordx2 v12, v[4:5], s[62:63] sc1')
        a('s_mov_b64 exec, -1')
    a.label('L_notag')
    a(f's_cmp_ge_u32 s2, {NCH}'); a('s_cbranch_scc1 L_prep_load')
    for srdn_, vb in ((SD, vDs), (SS, vSr)):
        for i, so in enumerate(('s3', 's34', 's35')):
            a(f'buffer_load_dwordx4 {R("v", vb+4*i, 4)}, v21, {srdn(srdn_)}, {so} offen{P.pol_in}')
        a(f'buffer_load_dword v{vb+12}, v15, {srdn(srdn_)}, s36 offen{P.pol_in}')
    a.label('L_setup')
    a('v_and_b32 v10, 3, v0')
    a('v_bfe_u32 v16, v0, 2, 4')
    a('v_lshl_add_u32 v10, v16, 3, v10')
    a('v_lshl_add_u32 v10, v1, 2, v10')
    a(f'v_cndmask_b32 v10, v2, v10, {mLO}')
    a('v_lshlrev_b32 v10, 1, v10')
    a(f's_cmp_lt_u32 s{sWAVE}, 2')
    a('s_cselect_b64 s[54:55], s[54:55], s[58:59]')
    a(f's_cselect_b32 s34, {NLOG2E}, 1.0')
    a('global_load_ushort v10, v10, s[54:55]')
    for i in range(4): a(f'v_mov_b32 v{4+i}, {DUMMY}')
    a(f'v_add_u32 v3, {EX + 16384}, v21')
    init = [f'ds_write_b128 v21, v[4:7] offset:{EX + 4096*i}' for i in range(4)]
    init += [f'ds_write_b128 v3, v[4:7] offset:{4096*i}' for i in range(16)]
    C = []
    C += [f's_and_b32 s{sB}, s2, 7', f's_lshl_b32 s{sB}, s{sB}, 5', 's_lshr_b32 s3, s2, 3', f's_add_u32 s{sB}, s{sB}, s3',
          f's_mul_i32 s{sNB0}, s{sB}, {BN}', f's_sub_u32 s{sNNODE}, {N}, s{sNB0}', f's_min_u32 s{sNNODE}, s{sNNODE}, {BN}',
          f's_lshl_b32 s{sCOL}, s{sB}, 3', f's_add_u32 s{sCOL}, s{sCOL}, {WS_TAB}']
    C += [f's_sub_u32 s{SX}, s4, {3*XP}', f's_subb_u32 s{SX+1}, s5, 0', f's_and_b32 s{SX+1}, s{SX+1}, 0xffff',
          f's_mov_b32 s{SX+2}, {(N*128 + 3*XP) * P.xfrac // 100}', f's_mov_b32 s{SX+3}, 0x20000']
    for d, lo, size in ((SE, 6, E * 32 * P.efrac // 100), (SO, 60, N * 128), (SW, 64, WS_SIZE)):
        C += [f's_mov_b32 s{d}, s{lo}', f's_and_b32 s{d+1}, s{lo+1}, 0xffff', f's_mov_b32 s{d+2}, {size}', f's_mov_b32 s{d+3}, 0x20000']
    C += [f's_movk_i32 s{sXO+j}, {(3-j)*XP}' for j in range(4)]
    C += [f's_movk_i32 s{s128}, 128', f's_mov_b32 s{sLN2}, {NLN2}', f's_mov_b32 s{sLN2+1}, {NLN2}', f's_mov_b64 s[{sBAD}:{sBAD+1}], 0']
    C += [f's_lshl_b32 s{sMAP}, s{sWAVE}, 12', f's_add_u32 s{sMAP}, s{sMAP}, {MAP}']
    C += [f's_lshl_b32 s{sQROW}, s{sWAVE}, 13', f's_add_u32 s{sQROW}, s{sQROW}, {EX}']
    C += [f's_mul_i32 s{sRING0}, s{sWAVE}, {D*SLOT}', f's_add_u32 s{sRING0}, s{sRING0}, {RING}',
          f's_add_u32 s{sRING1}, s{sRING0}, {D*SLOT}', f's_mov_b32 s{sSLOT}, s{sRING0}']
    C += ['v_and_b32 v16, 7, v2', 'v_lshrrev_b32 v18, 5, v2', 'v_xor_b32 v16, v16, v18', f'v_lshlrev_b32 v{vCX}, 4, v16']
    C += ['v_and_b32 v17, 1, v2', f'v_lshlrev_b32 v{vCE}, 4, v17']
    C += ['v_bfe_u32 v16, v2, 1, 2', f'v_mul_u32_u24 v16, {XP}, v16', 'v_bfe_u32 v20, v2, 3, 2', 'v_lshl_add_u32 v16, v20, 7, v16',
          'v_lshl_add_u32 v16, v17, 9, v16', 'v_xor_b32 v20, v17, v18', f'v_lshl_add_u32 v{vBX0}, v20, 4, v16']
    C += ['v_bfe_u32 v16, v2, 1, 4', 'v_lshl_add_u32 v16, v17, 4, v16', 'v_lshlrev_b32 v16, 5, v16', 'v_lshl_add_u32 v16, v18, 4, v16',
          f'v_add_u32 v{vBE0}, {4*XP}, v16']
    C += ['v_lshrrev_b32 v16, 3, v2', f'v_lshl_add_u32 v{vAX}, v16, 4, s{sQROW}']
    C += ['v_lshrrev_b32 v16, 1, v2', f'v_lshl_add_u32 v{vAE}, v16, 2, s{sQROW}']
    C += ['v_and_b32 v16, 31, v2', 'v_lshlrev_b32 v16, 2, v16', 'v_lshl_add_u32 v16, v18, 12, v16', f'v_add_u32 v25, s{sQROW}, v16']
    C += [f'v_add_u32 v24, s{sNB0}, v0', f'v_cmp_gt_u32 vcc, {BN}, v0', f'v_cmp_gt_u32 {mNN}, s{sNNODE}, v0', f's_mov_b64 {mBN}, vcc']
    C += ['v_lshlrev_b32 v19, 2, v2', 'v_lshlrev_b32 v14, 3, v2', 'v_lshlrev_b32 v30, 11, v0', f'v_mul_u32_u24 v31, {CH}, v0']
    C += [f's_mul_i32 s3, s2, {CH*32}', 'v_lshl_add_u32 v22, v0, 7, s3', f's_add_u32 s3, s3, {3072*32}', f'v_lshl_add_u32 v{vRec+25}, v0, 5, s3',
          'v_mov_b32 v23, 0x1000000', f's_mov_b32 s55, {MAGIC}', 's_movk_i32 s56, -49', 's_movk_i32 s57, 335', 's_mov_b32 s58, 0x1c0000']
    C += [f'v_add_u32 v{vRec+2*i+1}, {((i>>2)*1024 + (i&3))*32}, v22' for i in range(12)]
    while init or C:
        if init: a(init.pop(0))
        for x in C[:6]: a(x)
        C = C[6:]
    a('s_waitcnt lgkmcnt(0)')
    a('s_barrier')
    tagload = lambda: a('global_load_dwordx2 v[16:17], v12, s[62:63] sc1')
    def tagcheck():
        a(f'v_readfirstlane_b32 s{sTAG}, v16'); a(f'v_readfirstlane_b32 s{sTAG8}, v17')
        a(f's_cmp_eq_u32 s{sTAG}, 0')
    a(f's_cmp_ge_u32 s2, {NCH}'); a('s_cbranch_scc1 L_prep_store')
    a('s_waitcnt vmcnt(5)')
    stamp(2)
    tagload()
    for i in range(13): a(f'v_mul_u32_u24 v{vB+i}, s55, v{vDs+i}')
    for i in range(13): a(f'v_lshlrev_b32_sdwa v{vB+i}, 2, v{vB+i} {SDWA}BYTE_3')
    for i in range(13):
        if i == 12: a(f's_mov_b64 exec, {mLO}')
        a(f'ds_add_rtn_u32 v{vRk+i}, v{vB+i}, v13 offset:{HB}')
    a('s_mov_b64 exec, -1')
    for i in range(13): a(f'v_mad_i32_i24 v{vDs+i}, v{vB+i}, s56, v{vDs+i}')
    a('s_waitcnt vmcnt(1)')
    for i in range(13): a(f'v_mad_u32_u24 v{vRec+2*i}, v{vSr+i}, s57, v23')
    a('s_waitcnt lgkmcnt(0)')
    a('s_barrier')
    a(f'ds_read_b128 v[26:29], v9 offset:{HB}')
    a(f'ds_write_b32 v15, v11 offset:{TT}')
    F = []
    for i in range(13): F.append(f'v_lshrrev_b32 v{vRec+2*i}, 4, v{vRec+2*i}')
    for i in range(13): F.append(f'v_and_or_b32 v{vRec+2*i}, v{vRec+2*i}, s58, v{vSr+i}')
    for i in range(13): F.append(f'v_lshl_add_u32 v{vRec+2*i}, v{vDs+i}, 20, v{vRec+2*i}')
    for x in F[:20]: a(x)
    a('s_waitcnt lgkmcnt(1)')
    a('v_add_u32 v5, v26, v27'); a('v_add_u32 v6, v5, v28'); a('v_add_u32 v7, v6, v29')
    a('v_mov_b32 v3, v7')
    wave_scan(a, 3, F[20:32])
    a('v_sub_u32 v4, v3, v7'); a('v_add_u32 v7, v4, v6'); a('v_add_u32 v6, v4, v5'); a('v_add_u32 v5, v4, v26')
    a(f'ds_write_b128 v9, v[4:7] offset:{START}')
    for i in range(13): a(f'ds_read_b32 v{vB+i}, v{vB+i} offset:{START}')
    for x in F[32:]: a(x)
    a('v_lshlrev_b32 v10, 16, v10')
    a('v_mul_f32 v10, s34, v10')
    a(f's_mov_b32 s3, {STAGE // 8}')
    for i in range(13): a(f'v_add_u32 v{vRk+i}, s3, v{vRk+i}')
    a('s_waitcnt lgkmcnt(0)')
    for i in range(13): a(f'v_add_lshl_u32 v{vB+i}, v{vB+i}, v{vRk+i}, 3')
    for i in range(13):
        if i == 12: a(f's_mov_b64 exec, {mLO}')
        a(f'ds_write_b64 v{vB+i}, {R("v", vRec+2*i, 2)}')
    a('s_mov_b64 exec, -1')
    a(f'ds_write_b32 v15, v10 offset:{B1T}')
    a(f'v_add_u32 v3, {STAGE}, v21')
    a(f's_mul_i32 s3, s2, {CH*8}')
    for i in range(4): a(f'v_lshl_or_b32 v{26+i}, v{26+i}, 12, v{4+i}')
    a(f's_cmp_eq_u32 s{sWAVE}, 0')
    a('s_cselect_b64 s[56:57], -1, 0')
    a('s_waitcnt lgkmcnt(0)')
    a('s_barrier')
    for i in range(7): a(f'ds_read_b128 {R("v", 32+4*i, 4)}, v3 offset:{4096*i}')
    for i in range(7):
        a(f's_waitcnt lgkmcnt({6-i})')
        if i == 6: a('s_mov_b64 exec, s[56:57]')
        a(f'buffer_store_dwordx4 {R("v", 32+4*i, 4)}, v21, {srdn(SW)}, s3 offen sc1')
        if i < 6: a('s_add_u32 s3, s3, 4096')
    a('s_mov_b64 exec, -1')
    a.label('L_publish')
    stamp(3)
    a('v_min_u32 v3, 5, v2')
    a(f'v_add_u32 v3, {NCH}, v3')
    a('v_lshlrev_b32 v20, 11, v3')
    wload = lambda: a(f'buffer_load_dwordx2 v[122:123], v20, {srdn(SW)}, s{sCOL} offen sc1')
    wload()
    poll('L_ptag', tagload, tagcheck, first_issued=True)
    a(f's_and_b32 s{sTAG8}, s{sTAG8}, 0xff')
    a(f's_lshl_b32 s{sTAG8S}, s{sTAG8}, 24')
    a('s_barrier')
    a(f's_cmp_lg_u32 s{sSLOW}, 0'); a('s_cbranch_scc1 L_nomap')
    a(f's_cmp_lg_u32 s{sWAVE}, 3'); a('s_cbranch_scc1 L_norow')
    if P.force == 2: a('s_cmp_eq_u32 s2, 7'); a('s_cbranch_scc1 L_norow')
    for i in range(4):
        a(f'v_or_b32 v{32+2*i}, s{sTAG8S}, v{26+i}')
        a(f'v_mov_b32 v{33+2*i}, s{sTAG}')
    a('s_lshl_b32 s3, s2, 11'); a(f's_add_u32 s3, s3, {WS_TAB}')
    a('v_lshlrev_b32 v3, 5, v2')
    a(f'buffer_store_dwordx4 v[32:35], v3, {srdn(SW)}, s3 offen sc1')
    a(f'buffer_store_dwordx4 v[36:39], v3, {srdn(SW)}, s3 offen offset:16 sc1')
    a.label('L_norow')
    stamp(4)
    def tcheck(v):
        def f():
            a(f'v_cmp_ne_u32 s[56:57], s{sTAG}, v{v+1}')
            a(f'v_cmp_ne_u32_sdwa vcc, v{v}, s{sTAG8} src0_sel:BYTE_3 src1_sel:DWORD')
            a('s_or_b64 vcc, vcc, s[56:57]')
        return f
    tcheck(122)()
    a('s_cbranch_scc0 L_pw_ok')
    poll('L_pw', wload, tcheck(122))
    a(f's_mul_i32 s3, s{sWAVE}, {13*1024}')
    a(f's_add_u32 s35, s3, {WS_W}')
    a(f's_add_u32 m0, s3, {WST}')
    for i in range(13):
        if i and i % 4 == 0: a('s_add_u32 m0, m0, 4096'); a('s_add_u32 s35, s35, 4096')
        a(f'buffer_load_dwordx4 v9, {srdn(SW)}, s35 offen offset:{(i%4)*1024} sc1 lds')
    poll('L_pt', lambda: a(f'buffer_load_dwordx2 v[16:17], v30, {srdn(SW)}, s{sCOL} offen sc1'), tcheck(16))
    stamp(5)
    a('v_bfe_u32 v17, v16, 12, 12')
    a('v_and_b32 v16, 0xfff, v16')
    a('v_mov_b32 v18, v17')
    wave_scan(a, 18, ['v_add_u32 v16, v16, v31', 'v_cmp_lt_u32 s[56:57], 16, v17', 'v_cmp_lt_u32 s[58:59], 8, v17',
                      'v_cmp_lt_u32 s[60:61], 0, v17', 'v_cmp_lt_u32 vcc, 24, v17', f'v_mov_b32 v4, {DUMMY}', f'v_add_u32 v20, s{sMAP}, v19'])
    a('v_sub_u32 v3, v18, v17')
    a('v_readlane_b32 s3, v18, 63')
    a('v_sub_u32 v16, v16, v3')
    a(f'v_lshl_add_u32 v18, v3, 2, s{sMAP}')
    a('v_lshlrev_b32 v16, 3, v16')
    a(f's_cmp_gt_u32 s3, {NSLOT*64}')
    a(f's_cselect_b32 s{sSLOW}, 1, s{sSLOW}')
    a(f's_cmp_lg_u32 s{sSLOW}, 0'); a('s_cbranch_scc1 L_nomap')
    a('v_lshl_add_u32 v3, s3, 2, v20')
    for m, j0 in (('s[56:57]', 16), ('s[58:59]', 8), ('s[60:61]', 0)):
        a(f's_mov_b64 exec, {m}')
        for j in range(j0 + 7, j0 - 1, -1): a(f'ds_write_b32 v18, v16 offset:{4*j}')
    a('s_mov_b64 exec, -1')
    a('ds_write_b32 v3, v4')
    a('s_cbranch_vccz L_nomap')
    a.label('L_map')
    for j in range(24, 28):
        a(f'v_cmpx_lt_u32 vcc, {j}, v17')
        a(f'ds_write_b32 v18, v16 offset:{4*j}')
    a('v_add_u32 v18, 16, v18')
    a('v_subrev_u32 v17, 4, v17')
    a('s_cbranch_execnz L_map')
    a('s_mov_b64 exec, -1')
    a.label('L_nomap')
    vR, vI, vK, vP = 32, 64, 80, 96
    a(f'v_add_u32 v20, s{sMAP}, v19')
    for i in range(NSLOT): a(f'ds_read_b32 v{vI+i}, v20 offset:{256*i}')
    a('s_movk_i32 s3, 4096')
    for lo, hi in ((0, 5), (5, 10), (10, 15)):
        a(f's_waitcnt lgkmcnt({NSLOT-hi})')
        for i in range(lo, hi): a(f'v_add_u32 v{vI+i}, v{vI+i}, v14')
        for i in range(lo, hi):
            a(f'buffer_load_dwordx2 {R("v", vR+2*i, 2)}, v{vI+i}, {srdn(SW)}, {"s3" if i >= 8 else "0"} offen offset:{512*(i%8)} sc1')
    a('v_lshlrev_b32 v29, 7, v24')
    a(f'buffer_load_dword a{aJUNK}, v29, {srdn(SX)}, s{sXO} offen')
    a(f'v_add_u32 v3, {WST}, v9')
    stamp(6)
    a('s_barrier')
    for i in range(52): a(f'ds_read_b128 {R("a", 4*i, 4)}, v3 offset:{1024*i}')
    for lo, hi in ((0, 6), (6, 11), (11, 15)):
        a(f's_waitcnt vmcnt({NSLOT-hi+1})')
        for i in range(lo, hi): a(f'v_lshrrev_b32 v{vI+i}, 16, v{vR+2*i}')
        if lo == 11:
            for i in range(lo, hi): a(f'v_cmp_ne_u32 s[{58+2*(i-lo)}:{59+2*(i-lo)}], 0, v{vI+i}')
        for i in range(lo, hi):
            if lo == 11: a(f's_mov_b64 exec, s[{58+2*(i-lo)}:{59+2*(i-lo)}]')
            a(f'ds_add_rtn_u32 v{vK+i}, v{vI+i}, v13 offset:{CNT}')
    a(f's_mov_b64 exec, {mBN}')
    a('s_waitcnt lgkmcnt(0)')
    a('s_barrier')
    stamp(7)
    a(f'ds_read_b128 v[4:7], v21 offset:{CNT + 16}')
    a('s_waitcnt lgkmcnt(0)')
    a('v_add_u32 v5, v4, v5'); a('v_add_u32 v6, v5, v6'); a('v_add_u32 v16, v6, v7')
    a('v_min_u32 v17, 63, v16')
    a('v_sub_u32 v17, 63, v17')
    a('v_lshlrev_b32 v17, 2, v17')
    a(f'ds_add_rtn_u32 v18, v17, v13 offset:{HIST}')
    a('v_sub_u32 v26, v16, v4'); a('v_sub_u32 v27, v16, v5'); a('v_sub_u32 v28, v16, v6')
    a('v_lshrrev_b32 v23, 1, v16')
    a('v_lshl_or_b32 v23, v23, 16, v24')
    a('v_or_b32 v23, 0xc00000, v23')
    a('s_mov_b64 exec, -1')
    a('s_waitcnt lgkmcnt(0)')
    a('s_barrier')
    a(f'ds_read_b32 v20, v19 offset:{HIST}')
    a(f'v_mov_b32 v3, {(32768 - 4) << 16}')
    a(f'ds_write_b32 v12, v3 offset:{CNT}')
    a('s_waitcnt lgkmcnt(1)')
    a('v_mov_b32 v3, v20')
    wave_scan(a, 3)
    a('v_sub_u32 v20, v3, v20')
    a('ds_bpermute_b32 v20, v17, v20')
    a(f's_mov_b64 exec, {mNN}')
    a('s_waitcnt lgkmcnt(0)')
    a('v_add_lshl_u32 v20, v20, v18, 2')
    a(f'ds_read_b32 v22, v20 offset:{TT}')
    a('s_waitcnt lgkmcnt(0)')
    a('v_and_b32 v3, 0x10000000, v22')
    a('v_lshlrev_b32 v29, 16, v22')
    a('v_cmp_ne_u32 vcc, 0, v3')
    a('v_bfe_u32 v3, v22, 6, 1')
    a('v_add_u32 v16, v16, v3')
    a('v_cndmask_b32 v7, v6, v12, vcc'); a('v_cndmask_b32 v6, v5, v28, vcc')
    a('v_cndmask_b32 v5, v4, v27, vcc'); a('v_cndmask_b32 v4, v12, v26, vcc')
    for i in range(4): a(f'v_mad_u32_u24 v{4+i}, v{4+i}, v29, v22')
    a('v_lshrrev_b32 v16, v3, v16')
    a('v_lshrrev_b32 v22, 16, v22')
    a('v_lshl_or_b32 v24, v3, 22, v24')
    a('v_cmp_lt_u32 s[56:57], 30, v16')
    a('v_lshl_or_b32 v24, v16, 16, v24')
    a('v_cmp_ne_u32 vcc, 0, v3')
    a(f'ds_write_b128 v21, v[4:7] offset:{CNT + 16}')
    a(f'ds_write_b32 v22, v24 offset:{EX - 128}')
    a('s_mov_b64 exec, vcc')
    a(f'ds_write_b32 v22, v23 offset:{EX - 64}')
    a(f's_or_b32 s56, s56, s{sSLOW}')
    a('s_mov_b64 exec, s[56:57]')
    a(f'ds_write_b32 v12, v13 offset:{FLAG}')
    a('s_mov_b64 exec, -1')
    a('s_waitcnt lgkmcnt(0)')
    a('s_barrier')

    ell_read = [f'ds_read_b128 {R("v", vEX, 4)}, v{vAX}', f'ds_read_b32 v{vEE}, v{vAE} offset:{EE-EX}']
    jump = [f's_sub_u32 s{sJ}, s{sJ}, 1', f's_cselect_b32 s{sINC}, s{sJUMP}, s{s128}']
    ell_adv = [f'v_add_u32 v{vAX}, s{sINC}, v{vAX}', f'v_add_u32 v{vAE}, s{sINC}, v{vAE}']
    xaddr = [f'v_mad_u32_u16 v{vEX+j}, v{vEX+j}, s{s128}, v{vCX}' for j in range(4)]
    eaddr = f'v_add_u32 v{vEE}, v{vEE}, v{vCE}'
    m0x = f's_mov_b32 m0, s{sSLOT}'; m0e = f's_add_u32 m0, s{sSLOT}, {4*XP}'
    dmax = [f'buffer_load_dwordx4 v{vEX+j}, {srdn(SX)}, s{sXO+j} offen offset:{j*XP}{P.pol_x} lds' for j in range(4)]
    dmae = f'buffer_load_dwordx4 v{vEE}, {srdn(SE)}, 0 offen{P.pol_e} lds'
    adv = [f's_add_u32 s{sSLOT}, s{sSLOT}, {SLOT}', f's_cmp_eq_u32 s{sSLOT}, s{sRING1}', f's_cselect_b32 s{sSLOT}, s{sRING0}, s{sSLOT}']
    baddr = [f'v_add_u32 v{vBX}, s{sSLOT}, v{vBX0}', f'v_add_u32 v{vBE}, s{sSLOT}, v{vBE0}']
    bread = [f'ds_read_b128 {R("a", aBX+4*k, 4)}, v{vBX} offset:{32*k}' for k in range(4)] + [f'ds_read_b128 {R("a", aBE, 4)}, v{vBE}']
    PFa = [m0x] + xaddr + [eaddr] + dmax + [m0e] + [adv[0]] + [dmae] + adv[1:]
    PFb = ell_read + jump + ell_adv
    PF = PFa + PFb + baddr

    a(f'ds_read_b32 v16, v12 offset:{FLAG}')
    for i in range(NSLOT - 1): a(f'ds_read_b32 v{vP+i}, v{vI+i} offset:{CNT}')
    a(f's_waitcnt lgkmcnt({NSLOT - 6})')
    a(f'ds_read_b32 v{vP+NSLOT-1}, v{vI+NSLOT-1} offset:{CNT}')
    a('ds_read_b32 v17, v25')
    for x in ell_read: a(x)
    a('v_readfirstlane_b32 s3, v16')
    a('s_cmp_lg_u32 s3, 0'); a('s_cbranch_scc1 L_slow')
    for lo, hi in ((0, 5), (5, 10), (10, 15)):
        if lo: a(f's_waitcnt lgkmcnt({NSLOT - hi + 3 if hi < NSLOT else 0})')
        for i in range(lo, hi): a(f'v_mul_u32_u24_sdwa v{vK+i}, v{vK+i}, v{vP+i} {SDWA}WORD_0')
        for i in range(lo, hi): a(f'v_add_u32_sdwa v{vP+i}, v{vK+i}, v{vP+i} {SDWA}WORD_1')
    for i in range(NSLOT):
        if i >= 11: a(f's_mov_b64 exec, s[{58+2*(i-11)}:{59+2*(i-11)}]')
        a(f'ds_write2st64_b32 v{vP+i}, v{vR+2*i}, v{vR+2*i+1} offset0:{EX//256} offset1:{EE//256}')
    a('s_mov_b64 exec, -1')
    a('v_bfe_u32 v17, v17, 16, 6')
    for x in PFa: a(x)
    for sh in (1, 2, 4, 8): a(f'v_max_u32_dpp v17, v17, v17 row_shr:{sh} row_mask:0xf bank_mask:0xf bound_ctrl:0')
    a('v_max_u32_dpp v17, v17, v17 row_bcast:15 row_mask:0xa bank_mask:0xf')
    a(f'v_add_u32 v{vAX}, 128, v{vAX}'); a(f'v_add_u32 v{vAE}, 128, v{vAE}')
    a(f'v_readlane_b32 s{sL}, v17, 31')
    a(f'v_readlane_b32 s{sLNEXT}, v17, 63')
    a('s_waitcnt lgkmcnt(0)')
    a('s_barrier')
    stamp(8)
    for x in ell_read: a(x)
    a(f's_max_u32 s{sL}, s{sL}, 1')
    a(f's_max_u32 s{sLNEXT}, s{sLNEXT}, 1')
    a(f's_lshl_b32 s3, s{sL}, 7')
    a(f's_sub_u32 s{sJUMP}, 4096, s3')
    a(f's_sub_u32 s{sJ}, s{sL}, 1')
    for x in jump + ell_adv: a(x)
    if P.stamp: a(f's_mov_b32 s{88+9}, 0'); a(f's_mov_b32 s{88+10}, 0')
    for r in range(1, D):
        a('s_waitcnt lgkmcnt(0)')
        for x in PF: a(x)

    a.label('L_group')
    a(f'v_lshrrev_b32 v{vE+1}, 3, v{vBE0}')
    a(f'v_and_b32 v{vE}, 16, v{vBE0}')
    a(f'v_and_b32 v{vE+1}, -4, v{vE+1}')
    a(f'v_lshlrev_b32 v{vE}, 4, v{vE}')
    a(f's_sub_u32 s3, s{sQROW}, {4*XP//8}')
    a(f'v_add_u32 v{vE+1}, s3, v{vE+1}')
    a(f'ds_read_b32 v{vINFO}, v{vE+1}')
    for i in range(16): a(f'ds_read_b128 {R("v", vQ+4*i, 4)}, v{vE} offset:{B1T + 16*i}')
    a(f's_waitcnt vmcnt({VW})')
    for x in bread[:4]: a(x)
    a('s_waitcnt lgkmcnt(0)')
    pf = list(PF)
    for k in range(4):
        for c in range(4):
            a(mfma(R('v', vQ+16*c, 16), R('a', aW1B + (c*4+k)*4, 4), R('a', aBX+4*k, 4), R('v', vQ+16*c, 16)))
            for x in pf[:2]: a(x)
            pf = pf[2:]
    assert not pf
    a(f's_waitcnt vmcnt({VW})')
    for x in bread: a(x)
    a(f'v_bfe_u32 v{vDEG}, v{vINFO}, 16, 6')
    a(f's_add_u32 s{sQROW}, s{sQROW}, 4096')
    a(f's_mov_b32 s{sT}, 1')
    if P.stamp:
        a(f's_cmp_lg_u32 s{88+9}, 0'); a('s_cbranch_scc1 L_st9'); stamp(9); a.label('L_st9')
    a('s_waitcnt lgkmcnt(0)')
    pf = list(PF)
    for k in range(5):
        a(m1(0, k, vN, vQ))
        n = 3 if k < 4 else 99
        for x in pf[:n]: a(x)
        pf = pf[n:]
    for c in range(4):
        cn = (c + 1) & 3
        if c == 3: a('s_waitcnt lgkmcnt(0)')
        for k in range(5):
            a(m1(cn, k, vN + 16*cn if c < 3 else vY, vQ + 16*cn))
            if c == 2:
                if k == 0: a(f's_waitcnt vmcnt({VW})')
                a(bread[k])
            for i in range(3*k, 3*k + (3 if k < 4 else 4)): a(f'v_exp_f32 v{vD+16*c+i}, v{vN+16*c+i}')
        for p in range(8):
            d = R('v', vD + 16*c + 2*p, 2)
            a(f'v_pk_add_f32 {d}, {d}, 1.0 op_sel_hi:[1,0]')
    a(f's_cmp_ge_u32 s{sT}, s{sL}'); a('s_cbranch_scc1 L_flush')
    a(m0x)
    a(m1(1, 0, vY + 16, vQ + 16))
    a('.p2align 3')
    a.label('L_row')
    for c in range(4):
        cn = (c + 1) & 3
        y = vY + 16 * (c & 1); yn = vY + 16 * (cn & 1)
        S = [[] for _ in range(5)]
        V = [[] for _ in range(5)]
        if c == 0:
            S[1] = ['s_mov_b64 exec, -1']; V[1] = xaddr[:2]
            S[2] = [jump[0]]; V[2] = xaddr[2:]
            S[3] = [jump[1]]; V[3] = [eaddr]
            V[4] = dmax + [m0e, ell_read[0], dmae, ell_read[1]] + ell_adv + [f'v_cmpx_lt_u32 vcc, s{sT}, v{vDEG}']
        if c == 1:
            S[0] = [adv[0]]; S[1] = [adv[1]]; S[2] = [adv[2]]
            S[3] = [f's_add_u32 s{sT}, s{sT}, 1']
            V[4] = baddr
        if c == 2:
            for k in range(5): S[k] = [bread[k]]
            S[0].insert(0, f's_waitcnt vmcnt({VW})')
            S[4].insert(0, 's_waitcnt lgkmcnt(3)')
        if c == 3:
            S[0] = ['s_waitcnt lgkmcnt(0)']
            S[1] = [f's_cmp_lt_u32 s{sT}, s{sL}']
            S[2] = [m0x]
        L = []
        for k in range(5):
            if (c, k) != (0, 0): L.append(m1(cn, k, yn, vQ + 16*cn))
            L += S[k]
            for i in range(3*k, 3*k + (3 if k < 4 else 4)): L.append(f'v_exp_f32 v{vE+i}, v{y+i}')
            L += V[k]
        if sum(isize(x) for x in L) % 8:
            i = max(i for i, x in enumerate(L) if x.startswith('v_exp_f32 '))
            L[i] = L[i].replace('v_exp_f32 ', 'v_exp_f32_e64 ')
        for x in L: a(x)
        for p in range(8):
            yy, nn, dd, ee = R('v', y+2*p, 2), R('v', vN+16*c+2*p, 2), R('v', vD+16*c+2*p, 2), R('v', vE+2*p, 2)
            a(f'v_pk_fma_f32 {yy}, {yy}, {dd}, {nn}')
            a(f'v_pk_fma_f32 {dd}, {dd}, {ee}, {dd}')
            a(f'v_pk_fma_f32 {nn}, {nn}, {ee}, {yy}')
    a(m1(1, 0, vY + 16, vQ + 16))
    a('s_cbranch_scc1 L_row')
    a.label('L_flush')
    if P.stamp:
        a(f's_cmp_lg_u32 s{88+10}, 0'); a('s_cbranch_scc1 L_st10'); stamp(10); a.label('L_st10')
        stamp(11)
    a('s_mov_b64 exec, -1')
    for x in baddr: a(x)
    a(f'v_and_b32 v{vQ+32}, 16, v{vBE0}')
    a(f'v_lshlrev_b32 v{vQ+33}, 3, v{vQ+32}')
    for i in range(8): a(f'ds_read_b128 {R("v", vQ+4*i, 4)}, v{vQ+33} offset:{B2T + 16*i}')
    a(f'v_lshlrev_b32 v{vQ+32}, 2, v{vQ+32}')
    a(f'v_mad_u32_u16 v{vQ+32}, v{vINFO}, s{s128}, v{vQ+32}')
    a(f'v_cvt_f32_u32 v{vQ+34}, v{vDEG}')
    a(f'v_mov_b32 v{vMAX}, 0')
    def g3(c, i):
        u = 2*c + (i >> 1); dt = i & 1
        acc = R('v', vY + 16*dt, 16)
        return mfma(acc, R('a', aW2 + (dt*8+u)*4, 4), R('v', vE + 8*(c & 1) + 4*(i >> 1), 4), acc if u else '0')
    for c in range(4):
        for q in range(4):
            if c: a(g3(c-1, q))
            for p in range(2):
                d = vD + 16*c + 4*q + 2*p
                a(f'v_max3_f32 v{vMAX}, v{d}, v{d+1}, v{vMAX}')
                a(f'v_rcp_f32 v{d}, v{d}'); a(f'v_rcp_f32 v{d+1}, v{d+1}')
        for p in range(8):
            nn, dd = R('v', vN+16*c+2*p, 2), R('v', vD+16*c+2*p, 2)
            a(f'v_pk_mul_f32 {nn}, {nn}, {dd}')
        if c == 3:
            a('s_waitcnt lgkmcnt(0)')
            for p in range(16):
                qq = R('v', vQ+2*p, 2)
                a(f'v_pk_mul_f32 {qq}, {qq}, {R("v", vQ+34, 2)} op_sel_hi:[1,0]')
        for p in range(8):
            a(f'v_cvt_pk_bf16_f32 v{vE+8*(c&1)+p}, v{vN+16*c+2*p}, v{vN+16*c+2*p+1}')
    for q in range(4): a(g3(3, q))
    a(f's_mov_b32 s3, {f32(2.0**100)}')
    a(f'v_bfe_u32 v{vQ+33}, v{vINFO}, 22, 2')
    a(f'v_cmp_ne_u32 s[58:59], 0, v{vQ+33}')
    a(f'v_cmp_ne_u32 s[60:61], 3, v{vQ+33}')
    a(f'v_cmpx_ne_u32 vcc, 0, v{vDEG}')
    a(f'v_cmp_lt_f32 s[56:57], s3, v{vMAX}')
    a(f'v_mov_b32 v{vMAX}, 0x207')
    for p in range(16):
        yy, qq = R('v', vY+2*p, 2), R('v', vQ+2*p, 2)
        a(f'v_pk_fma_f32 {qq}, {yy}, s[{sLN2}:{sLN2+1}], {qq}')
    a(f'v_cmp_class_f32 vcc, v{vQ}, v{vMAX}')
    a(f's_or_b64 s[{sBAD}:{sBAD+1}], s[{sBAD}:{sBAD+1}], s[56:57]')
    a('s_mov_b64 exec, s[58:59]')
    a(f's_or_b64 s[{sBAD}:{sBAD+1}], s[{sBAD}:{sBAD+1}], vcc')
    a('s_cbranch_execz L_nopair')
    for i in range(32):
        a(f'v_add_f32_dpp v{vQ+i}, v{vQ+i}, v{vQ+i} quad_perm:[1,0,3,2] row_mask:0xf bank_mask:0xf')
    a.label('L_nopair')
    a('s_mov_b64 exec, s[60:61]')
    for i in range(4):
        for p in range(4*i, 4*i+4): a(f'v_cvt_pk_bf16_f32 v{vE+p}, v{vQ+2*p}, v{vQ+2*p+1}')
        a(f'buffer_store_dwordx4 {R("v", vE+4*i, 4)}, v{vQ+32}, {srdn(SO)}, 0 offen offset:{16*i}{P.pol_out}')
    a('s_mov_b64 exec, -1')
    a(f's_mov_b32 s{sL}, s{sLNEXT}')
    a(f's_mov_b32 s{sLNEXT}, 0')
    a(f's_cmp_lg_u32 s{sL}, 0'); a('s_cbranch_scc1 L_group')
    if P.stamp:
        a('s_waitcnt vmcnt(0)'); stamp(12); stamp(13, True)
        for i in range(14): a(f'v_writelane_b32 v1, s{88+i}, {i}')
        a(f'v_writelane_b32 v1, s{sCNT}, 14')
        a('v_mbcnt_lo_u32_b32 v2, -1, 0'); a('v_mbcnt_hi_u32_b32 v2, -1, v2'); a('v_lshlrev_b32 v2, 2, v2')
        a('s_lshl_b32 s3, s2, 2'); a(f's_add_u32 s3, s3, s{sWAVE}'); a('s_lshl_b32 s3, s3, 6'); a(f's_add_u32 s3, s3, {WS_STAMP}')
        a('s_mov_b64 exec, 0xffff')
        a(f'buffer_store_dword v1, v2, {srdn(SW)}, s3 offen')
        a('s_mov_b64 exec, -1')
    a(f's_cmp_eq_u64 s[{sBAD}:{sBAD+1}], 0')
    a('v_mov_b32 v1, 0'); a('v_mov_b32 v2, 1')
    a('s_cbranch_scc1 L_nobad')
    a(f'ds_write_b32 v1, v2 offset:{FLAG}')
    a.label('L_nobad')
    a('s_waitcnt lgkmcnt(0)')
    a('s_barrier')
    a(f'ds_read_b32 v2, v1 offset:{FLAG}')
    a('s_waitcnt lgkmcnt(0)')
    a('v_readfirstlane_b32 s3, v2')
    a('s_cmp_lg_u32 s3, 0'); a('s_cbranch_scc1 L_slow')
    a.label('L_end')
    a('s_endpgm')

    a.label('L_prep_load')
    srd(a, SD, 52, 144 * 128 * 2); srd(a, SS, 56, 128 * 64 * 2)
    prep_offsets(a, 2, 26, 27, 28, 29)
    a(f's_sub_u32 s85, s2, {NCH}'); a('s_lshl_b32 s85, s85, 2'); a(f's_add_u32 s85, s85, s{sWAVE}')
    prep_w1_load(a, 85, 26, 32, 34, 35)
    a('s_add_u32 s3, s85, 24'); a('s_min_u32 s3, s3, 35')
    prep_w1_load(a, 3, 26, 40, 34, 35)
    a('s_add_u32 s3, s85, 28'); a('s_max_u32 s3, s3, 36')
    prep_w2_load(a, 3, 27, 48, 34, 35)
    a('s_branch L_setup')
    a.label('L_prep_store')
    a('s_waitcnt vmcnt(0)')
    tagload()
    prep_w1_pack(a, 32); prep_w1_pack(a, 40); prep_w2_pack(a, 48)
    for add, lim, vd in ((0, None, 32), (24, 's_min_u32 s3, s3, 35', 40), (28, 's_max_u32 s3, s3, 36', 48)):
        a(f's_add_u32 s3, s85, {add}')
        if lim: a(lim)
        a('s_lshl_b32 s3, s3, 10'); a(f's_add_u32 s3, s3, {WS_W}')
        a(f'buffer_store_dwordx4 {R("v", vd, 4)}, v9, {srdn(SW)}, s3 offen sc1')
    a('v_lshlrev_b32 v10, 16, v10')
    a('v_mul_f32 v10, s34, v10')
    a(f'ds_write_b32 v15, v10 offset:{B1T}')
    a(f'ds_write_b32 v15, v11 offset:{TT}')
    for i in range(4): a(f'v_mov_b32 v{26+i}, 0')
    a('s_waitcnt lgkmcnt(0)')
    a('s_branch L_publish')

    a.label('L_slow')
    a('s_mov_b64 exec, -1')
    a('s_waitcnt vmcnt(0) lgkmcnt(0)')
    a('s_load_dwordx2 s[52:53], s[0:1], 32')
    a('s_load_dwordx2 s[56:57], s[0:1], 48')
    a('s_load_dwordx4 s[8:11], s[0:1], 16')
    a('s_barrier')
    vL, vS, vH, vT0, vT1, vOA, vD4 = 240, 241, 242, 244, 245, 246, 252
    a(f'v_mbcnt_lo_u32_b32 v{vL}, -1, 0'); a(f'v_mbcnt_hi_u32_b32 v{vL}, -1, v{vL}')
    a(f'v_and_b32 v{vS}, 31, v{vL}')
    a(f'v_lshrrev_b32 v{vH}, 5, v{vL}')
    a(f's_lshl_b32 s3, s{sWAVE}, 10')
    a(f'v_lshl_add_u32 v4, v{vL}, 4, s3')
    for i in range(4): a(f'v_mov_b32 v{i}, 0')
    for i in range(13): a(f'ds_write_b128 v4, v[0:3] offset:{OACC + 4096*i}')
    a('s_waitcnt lgkmcnt(0)')
    srd(a, SD, 52, 144 * 128 * 2); srd(a, SS, 56, 128 * 64 * 2)
    prep_offsets(a, vL, 26, 27, 28, 29)
    a(f'v_add_u32 v4, {WST}, v4')
    a(f's_mov_b32 s85, s{sWAVE}')
    a.label('L_s_w1')
    prep_w1_load(a, 85, 26, 32, 34, 35)
    a('s_waitcnt vmcnt(0)')
    prep_w1_pack(a, 32)
    a('ds_write_b128 v4, v[32:35]')
    a('v_add_u32 v4, 4096, v4')
    a('s_add_u32 s85, s85, 4'); a('s_waitcnt lgkmcnt(0)'); a('s_cmp_lt_u32 s85, 36'); a('s_cbranch_scc1 L_s_w1')
    a.label('L_s_w2')
    prep_w2_load(a, 85, 27, 32, 34, 35)
    a('s_waitcnt vmcnt(0)')
    prep_w2_pack(a, 32)
    a('ds_write_b128 v4, v[32:35]')
    a('v_add_u32 v4, 4096, v4')
    a('s_add_u32 s85, s85, 4'); a('s_waitcnt lgkmcnt(0)'); a('s_cmp_lt_u32 s85, 52'); a('s_cbranch_scc1 L_s_w2')
    a('s_barrier')
    a(f'v_lshlrev_b32 v4, 4, v{vL}'); a(f'v_add_u32 v4, {WST}, v4')
    for i in range(52): a(f'ds_read_b128 {R("a", 4*i, 4)}, v4 offset:{1024*i}')
    srd(a, SD, 10, E * 4); srd(a, SS, 8, E * 4)
    sE0, sJj = 56, 57
    a(f's_lshl_b32 s{sE0}, s{sWAVE}, 9')
    a(f'v_lshlrev_b32 v243, 4, v{vS}')
    a.label('L_s_blk')
    a(f'buffer_load_dwordx4 {R("v", vD4, 4)}, v243, {srdn(SD)}, s{sE0} offen')
    a(f's_mov_b32 s{sJj}, 0')
    a('s_waitcnt vmcnt(0)')
    a.label('L_s_sub')
    a(f'v_subrev_u32 v248, s{sNB0}, v{vD4}')
    a(f'v_cmp_gt_u32 s[60:61], s{sNNODE}, v248')
    a('s_cmp_eq_u64 s[60:61], 0'); a('s_cbranch_scc1 L_s_next')
    a(f's_add_u32 s3, s{sE0}, s{sJj}')
    a(f'buffer_load_dword v{vT0}, v243, {srdn(SS)}, s3 offen')
    a(f'v_lshlrev_b32 v247, 8, v{vH}')
    for i in range(16): a(f'ds_read_b128 {R("v", vQ+4*i, 4)}, v247 offset:{B1T + 16*i}')
    a(f'v_lshlrev_b32 v247, 4, v{vH}')
    a(f'v_add_lshl_u32 v{vT1}, v243, s3, 3')
    a(f'v_add_u32 v{vT1}, v{vT1}, v247')
    a(f'v_lshl_add_u32 v249, v{vD4}, 7, v247')
    a(f'v_mul_u32_u24 v{vOA}, 260, v248')
    a(f'v_lshl_add_u32 v{vOA}, v{vH}, 7, v{vOA}')
    a('s_waitcnt vmcnt(0)')
    a(f'v_lshl_add_u32 v{vT0}, v{vT0}, 7, v247')
    a('s_mov_b64 exec, s[60:61]')
    for k in range(4): a(f'buffer_load_dwordx4 {R("a", aBX+4*k, 4)}, v{vT0}, {srdn(SX)}, s{sXO} offen offset:{32*k}')
    a(f'buffer_load_dwordx4 {R("a", aBE, 4)}, v{vT1}, {srdn(SE)}, 0 offen')
    for k in range(4): a(f'buffer_load_dwordx4 {R("v", vE+4*k, 4)}, v249, {srdn(SX)}, s{sXO} offen offset:{32*k}')
    a('s_waitcnt vmcnt(0) lgkmcnt(0)')
    for c in range(4):
        q = R('v', vQ+16*c, 16)
        for k in range(4): a(mfma(q, R('a', aW1B + (c*4+k)*4, 4), R('v', vE+4*k, 4), q))
        for k in range(5): a(m1(c, k, vQ+16*c, vQ+16*c))
    for i in range(64): a(f'v_exp_f32 v{vD+i}, v{vQ+i}')
    for i in range(64): a(f'v_add_f32 v{vD+i}, 1.0, v{vD+i}')
    for i in range(64): a(f'v_rcp_f32 v{vD+i}, v{vD+i}')
    for i in range(64): a(f'v_mul_f32 v{vD+i}, v{vD+i}, v{vQ+i}')
    for i in range(32): a(f'v_cvt_pk_bf16_f32 v{vN+i}, v{vD+2*i}, v{vD+2*i+1}')
    a(f'v_lshlrev_b32 v247, 7, v{vH}')
    for i in range(8): a(f'ds_read_b128 {R("v", vQ+4*i, 4)}, v247 offset:{B2T + 16*i}')
    for dt in range(2):
        acc = R('v', vY + 16*dt, 16)
        for u in range(8): a(mfma(acc, R('a', aW2 + (dt*8+u)*4, 4), R('v', vN + 4*u, 4), acc if u else '0'))
    a('s_waitcnt lgkmcnt(0)')
    for i in range(32): a(f'v_fma_f32 v{vY+i}, v{vY+i}, s{sLN2}, v{vQ+i}')
    for i in range(32): a(f'ds_add_f32 v{vOA}, v{vY+i} offset:{OACC + 4*i}')
    a('s_mov_b64 exec, -1')
    a('s_waitcnt lgkmcnt(0)')
    a.label('L_s_next')
    for i in range(3): a(f'v_mov_b32 v{vD4+i}, v{vD4+i+1}')
    a(f's_add_u32 s{sJj}, s{sJj}, 4')
    a(f's_cmp_lt_u32 s{sJj}, 16'); a('s_cbranch_scc1 L_s_sub')
    a(f's_add_u32 s{sE0}, s{sE0}, 2048')
    a(f's_cmp_lt_u32 s{sE0}, {E*4}'); a('s_cbranch_scc1 L_s_blk')
    a('s_barrier')
    a(f's_lshl_b32 s3, s{sWAVE}, 1')
    a(f'v_add_u32 v1, s3, v{vH}')
    a.label('L_s_out')
    a(f'v_cmp_gt_u32 vcc, s{sNNODE}, v1')
    a('v_mul_u32_u24 v4, 260, v1')
    a(f'v_lshl_add_u32 v4, v{vS}, 3, v4')
    a(f'v_add_u32 v4, {OACC}, v4')
    a(f'v_add_u32 v5, s{sNB0}, v1')
    a('v_lshlrev_b32 v5, 7, v5')
    a(f'v_lshl_add_u32 v5, v{vS}, 2, v5')
    a('s_and_b64 exec, exec, vcc')
    a('s_cbranch_execz L_s_end')
    a('ds_read2_b32 v[2:3], v4 offset0:0 offset1:1')
    a('s_waitcnt lgkmcnt(0)')
    a('v_cvt_pk_bf16_f32 v2, v2, v3')
    a(f'buffer_store_dword v2, v5, {srdn(SO)}, 0 offen')
    a('v_add_u32 v1, 8, v1')
    a('s_branch L_s_out')
    a.label('L_s_end')
    a('s_endpgm')
    a('.p2align 7')
    a.raw('.type L_table,@object')
    a.label('L_table')
    T = pattern_table()
    for i in range(0, 256, 8): a.raw('.long ' + ', '.join(hex(x) for x in T[i:i+8]))
    a.raw('.size L_table, 1024')
    return a

if __name__ == '__main__':
    for kv in sys.argv[2:]:
        k, v = kv.split('=')
        cur = getattr(P, k)
        setattr(P, k, int(v) if isinstance(cur, int) else (' ' + v.replace('+', ' ') if v else ''))
    k = gen()
    for p in check_all_edges(k): print('HAZARD on branch edge', p, file=sys.stderr)
    print('instrs', sum(1 for x in k.items if not isinstance(x, str)), 'auto nops', k.nops, file=sys.stderr)
    out = open('cdna_kernels/' + NAME + '.s.ref').read().split('; Override launch')[0]
    out += f'; @launch grid=({NB},1,1) block=(256,1,1) lds={lds_bytes()}\n'
    out += '.amdgcn_target "amdgcn-amd-amdhsa--gfx950"\n.text\n'
    out += f'.globl {NAME}_kernel\n.type {NAME}_kernel,@function\n' + k.text()
    out += f'''.section .rodata,"a"
.p2align 6
.amdhsa_kernel {NAME}_kernel
  .amdhsa_next_free_vgpr 512
  .amdhsa_next_free_sgpr 102
  .amdhsa_accum_offset 256
  .amdhsa_group_segment_fixed_size 0
  .amdhsa_kernarg_size 88
  .amdhsa_user_sgpr_count 2
  .amdhsa_user_sgpr_kernarg_segment_ptr 1
  .amdhsa_system_sgpr_workgroup_id_x 1
.end_amdhsa_kernel
'''
    open(sys.argv[1], 'w').write(out)
```

```python
import sys, struct
from asmlib import Asm, Ins, check_all_edges

NAME = 'standalone__edge_featured_mpnn_mpnn__graph'
N, E = 50000, 800000
NB, BN = 256, 196
NCH, CH = 250, 3200
MAGIC = 85599
WS_REC, WS_TAB, WS_W = 0, 8 << 20, 9 << 20
WS_SIZE = 10 << 20
WS_STAMP = (9 << 20) + (512 << 10)
DUMMY = 0x4000FFFF
def f32(x): return struct.unpack('<I', struct.pack('<f', x))[0]
NLOG2E = f32(-1.4426950408889634)
NLN2 = f32(-0.6931471805599453)

class P:
    depth = 3
    stamp = 0
    efrac = 100
    xfrac = 100
    limit = 3000
    diag = 0
    force = 0
    pol_in = ' nt'
    pol_e = ''
    pol_x = ''
    pol_out = ''

CNT, HIST, FLAG = 0, 3328, 3584
HB, START, B1T, B2T, TT = 4096, 5120, 6144, 6656, 7168
EX, EE = 8192, 40960
RING = 73728
NSLOT = 15
MAP = RING
WST = MAP + 16384
STAGE = WST
XP = 1056
SLOT = 4 * XP + 1024
OACC = 8192
def lds_bytes(): return max(RING + 4 * P.depth * SLOT, WST + 52 * 1024)

PATTERN = [(0, 0, 'H', 1), (2, 0, 'H', 2), (3, 0, 'H', 2), (3, 1, 'H', 16), (2, 1, 'H', 9), (0, 0, 'S', 30),
           (1, 1, 'H', 14), (1, 0, 'S', 32), (2, 0, 'S', 28), (3, 0, 'S', 28), (0, 1, 'H', 16), (2, 1, 'S', 14), (1, 1, 'S', 4)]
def pattern_table():
    free = {(w, ph): list(range(32)) for w in range(4) for ph in range(2)}
    T = [None] * BN; p = 0; segs = []
    for w, ph, t, n in PATTERN: segs.append((w, ph, t, p, n)); p += n
    assert p == BN
    for t0 in 'HS':
        for w, ph, t, p0, n in segs:
            if t != t0: continue
            for i in range(n):
                pos = free[(w, ph)].pop(0)
                if t == 'H': assert pos < 16; free[(w, ph)].remove(pos + 16)
                T[p0 + i] = (((w * 2 + ph) * 4096 + pos * 4 + 128) << 16) | (64 if t == 'H' else 128)
    assert all(not v for v in free.values())
    return T + [128] * (256 - BN)

vN, vD, vQ, vY, vE = 0, 64, 128, 192, 224
vEX, vEE, vAX, vAE, vCX, vCE, vBX0, vBE0, vBX, vBE, vINFO, vDEG, vMAX = 240, 244, 245, 246, 247, 248, 249, 250, 251, 252, 253, 254, 255
aW1A, aW1C, aW1B, aW2, aBX, aBE, aJUNK = 0, 64, 80, 144, 208, 224, 228
SX, SE, SW, SO, SD, SS = 12, 16, 20, 24, 68, 72
sB, sNB0, sNNODE, sWAVE, sMAP, sCOL = 28, 29, 30, 31, 32, 33
sXO = 36
s128, sSLOT, sRING0, sRING1, sT, sL, sLNEXT, sQROW = 40, 41, 42, 43, 44, 45, 46, 47
sLN2, sBAD = 48, 50
sJ, sJUMP, sINC = 52, 53, 54
sSLOW, sCNT = 66, 67
mLO, mBN, mNN = 's[76:77]', 's[78:79]', 's[80:81]'
sTAG, sTAG8, sTAG8S = 82, 83, 84
def R(p, b, n): return f'{p}[{b}:{b+n-1}]'
def srdn(s): return f's[{s}:{s+3}]'
SDWA = 'dst_sel:DWORD dst_unused:UNUSED_PAD src0_sel:DWORD src1_sel:'

def srd(a, d, lo, size):
    a(f's_mov_b32 s{d}, s{lo}'); a(f's_and_b32 s{d+1}, s{lo+1}, 0xffff')
    a(f's_mov_b32 s{d+2}, {size}'); a(f's_mov_b32 s{d+3}, 0x20000')
def wave_scan(a, v, fill=()):
    fill = list(fill)
    steps = [f'row_shr:{sh} row_mask:0xf bank_mask:0xf bound_ctrl:0' for sh in (1, 2, 4, 8)]
    steps += ['row_bcast:15 row_mask:0xa bank_mask:0xf', 'row_bcast:31 row_mask:0xc bank_mask:0xf']
    for s in steps:
        for x in fill[:2]: a(x)
        fill = fill[2:]
        a(f'v_add_u32_dpp v{v}, v{v}, v{v} {s}')
    for x in fill: a(x)
def mfma(d, A, B, C): return f'v_mfma_f32_32x32x16_bf16 {d}, {A}, {B}, {C}'
def m1(c, k, dst, first_c):
    A = R('a', aW1A + (c * 4 + k) * 4, 4) if k < 4 else R('a', aW1C + c * 4, 4)
    B = R('a', aBX + k * 4, 4) if k < 4 else R('a', aBE, 4)
    return mfma(R('v', dst, 16), A, B, R('v', first_c if k == 0 else dst, 16))
def isize(x):
    op = x.split()[0]
    if op.startswith(('v_mfma', 'v_pk_', 'buffer_', 'ds_', 'global_', 'v_mad_', 'v_max3', 'v_cvt_pk', 'v_lshl_add', 'v_bfe')) or op.endswith(('_e64', '_dpp', '_sdwa')): return 8
    for t in x.replace(',', ' ').split()[1:]:
        try: v = int(t, 0)
        except ValueError: continue
        if not -16 <= v <= 64 and not op.startswith(('s_movk', 's_waitcnt', 's_nop')): return 8
    return 4

def prep_offsets(a, vl, v1, v2, t0, t1):
    a(f'v_and_b32 v{t0}, 31, v{vl}'); a(f'v_lshrrev_b32 v{t1}, 5, v{vl}')
    a(f'v_lshlrev_b32 v{v1}, 11, v{t1}'); a(f'v_lshl_add_u32 v{v1}, v{t0}, 1, v{v1}')
    a(f'v_lshlrev_b32 v{v2}, 9, v{t1}')
    a(f'v_bfe_u32 v{t1}, v{t0}, 2, 1'); a(f'v_lshl_add_u32 v{v2}, v{t1}, 6, v{v2}')
    a(f'v_and_b32 v{t1}, 3, v{t0}'); a(f'v_lshl_add_u32 v{v2}, v{t1}, 1, v{v2}')
    a(f'v_lshrrev_b32 v{t1}, 3, v{t0}'); a(f'v_lshl_add_u32 v{v2}, v{t1}, 3, v{v2}')
def prep_w1_load(a, sidx, voff, vd, s0, s1):
    a(f's_and_b32 s{s0}, s{sidx}, 3'); a(f's_lshr_b32 s{s1}, s{sidx}, 2')
    a(f's_cmp_eq_u32 s{s1}, 4')
    a(f's_cselect_b32 s{s1}, s{s0}, s{s1}'); a(f's_cselect_b32 s{s0}, 8, s{s0}')
    a(f's_lshl_b32 s{s0}, s{s0}, 12'); a(f's_lshl_b32 s{s1}, s{s1}, 6'); a(f's_add_u32 s{s0}, s{s0}, s{s1}')
    a(f's_cmp_ge_u32 s{sidx}, 20'); a(f's_cselect_b32 s{s1}, {64*256 - 5*64}, 0'); a(f's_add_u32 s{s0}, s{s0}, s{s1}')
    for j in range(8): a(f'buffer_load_ushort v{vd+j}, v{voff}, {srdn(SD)}, s{s0} offen offset:{256*j}')
def prep_w2_load(a, sidx, voff, vd, s0, s1):
    a(f's_sub_u32 s{s0}, s{sidx}, 36'); a(f's_lshr_b32 s{s1}, s{s0}, 3'); a(f's_and_b32 s{s0}, s{s0}, 7')
    a(f's_lshl_b32 s{s0}, s{s0}, 11'); a(f's_lshl_b32 s{s1}, s{s1}, 5'); a(f's_add_u32 s{s0}, s{s0}, s{s1}')
    for j in range(8): a(f'buffer_load_ushort v{vd+j}, v{voff}, {srdn(SS)}, s{s0} offen offset:{128*((j&3)+8*(j>>2))}')
def prep_w1_pack(a, vd):
    for j in range(8): a(f'v_lshlrev_b32 v{vd+j}, 16, v{vd+j}')
    for j in range(8): a(f'v_mul_f32 v{vd+j}, {NLOG2E}, v{vd+j}')
    for j in range(4): a(f'v_cvt_pk_bf16_f32 v{vd+j}, v{vd+2*j}, v{vd+2*j+1}')
def prep_w2_pack(a, vd):
    for j in range(4): a(f'v_lshl_or_b32 v{vd+j}, v{vd+2*j+1}, 16, v{vd+2*j}')

def gen():
    D = P.depth
    VW = 5 * (D - 1)
    a = Asm()
    def stamp(i, real=False):
        if not P.stamp: return
        a(f's_mem{"real" if real else ""}time s[86:87]'); a('s_waitcnt lgkmcnt(0)'); a(f's_mov_b32 s{88+i}, s86')
    def poll(name, load, check, first_issued=False):
        a(f's_movk_i32 s{sCNT}, {P.limit}')
        if first_issued: a(f's_branch {name}_chk')
        a.label(name)
        load()
        a.label(name + '_chk')
        a('s_waitcnt vmcnt(0)')
        check()
        a(f's_cbranch_scc0 {name}_ok')
        a(f's_sub_u32 s{sCNT}, s{sCNT}, 1')
        a(f's_cbranch_scc0 {name}')
        a(f's_mov_b32 s{sSLOW}, 1')
        a.label(name + '_ok')

    a('.p2align 8'); a.label(NAME + '_kernel')
    a(f's_cmp_ge_u32 s2, {NB}'); a('s_cbranch_scc1 L_end')
    stamp(0, True); stamp(1)
    a('s_load_dwordx8 s[4:11], s[0:1], 0')
    a('s_load_dwordx4 s[60:63], s[0:1], 64')
    a('s_load_dwordx2 s[64:65], s[0:1], 80')
    a('s_load_dwordx8 s[52:59], s[0:1], 32')
    a(f's_memrealtime s[{sTAG}:{sTAG+1}]')
    a('s_getpc_b64 s[14:15]')
    a.label('L_pc')
    a('v_lshlrev_b32 v15, 2, v0')
    a('s_add_u32 s14, s14, L_table-L_pc')
    a('s_addc_u32 s15, s15, 0')
    a('global_load_dword v11, v15, s[14:15]')
    a('v_lshrrev_b32 v1, 6, v0')
    a('v_and_b32 v2, 63, v0')
    a(f'v_readfirstlane_b32 s{sWAVE}, v1')
    a('v_lshlrev_b32 v21, 4, v0')
    for i in range(4): a(f'v_mov_b32 v{4+i}, 0')
    a('ds_write_b128 v21, v[4:7]')
    a(f'ds_write_b32 v15, v4 offset:{HB}')
    a('v_mov_b32 v12, 0')
    a('v_mov_b32 v13, 1')
    a('v_lshlrev_b32 v9, 4, v2')
    a('v_cmp_gt_u32 vcc, 128, v0')
    a(f's_mul_i32 s3, s2, {CH*4}')
    for s in (SD, SS): a(f's_mov_b32 s{s+2}, {E*4}'); a(f's_mov_b32 s{s+3}, 0x20000')
    a(f's_mov_b64 {mLO}, vcc')
    a('s_add_u32 s34, s3, 4096'); a('s_add_u32 s35, s3, 8192'); a('s_add_u32 s36, s3, 12288')
    a(f's_mov_b32 s{sSLOW}, 0')
    a('s_waitcnt lgkmcnt(0)')
    vDs, vSr, vB, vRk, vRec = 32, 48, 64, 80, 96
    a(f's_mov_b32 s{SD}, s10'); a(f's_and_b32 s{SD+1}, s11, 0xffff')
    a(f's_mov_b32 s{SS}, s8'); a(f's_and_b32 s{SS+1}, s9, 0xffff')
    a(f's_or_b32 s37, s2, s{sWAVE}')
    a('s_cbranch_scc1 L_notag')
    if P.force != 1:
        a(f's_or_b32 s{sTAG}, s{sTAG}, 1')
        a(f'v_mov_b32 v4, s{sTAG}'); a(f'v_mov_b32 v5, s{sTAG+1}')
        a('s_mov_b64 exec, 1')
        a('global_store_dwordx2 v12, v[4:5], s[62:63] sc1')
        a('s_mov_b64 exec, -1')
    a.label('L_notag')
    a(f's_cmp_ge_u32 s2, {NCH}'); a('s_cbranch_scc1 L_prep_load')
    for srdn_, vb in ((SD, vDs), (SS, vSr)):
        for i, so in enumerate(('s3', 's34', 's35')):
            a(f'buffer_load_dwordx4 {R("v", vb+4*i, 4)}, v21, {srdn(srdn_)}, {so} offen{P.pol_in}')
        a(f'buffer_load_dword v{vb+12}, v15, {srdn(srdn_)}, s36 offen{P.pol_in}')
    a.label('L_setup')
    a('v_and_b32 v10, 3, v0')
    a('v_bfe_u32 v16, v0, 2, 4')
    a('v_lshl_add_u32 v10, v16, 3, v10')
    a('v_lshl_add_u32 v10, v1, 2, v10')
    a(f'v_cndmask_b32 v10, v2, v10, {mLO}')
    a('v_lshlrev_b32 v10, 1, v10')
    a(f's_cmp_lt_u32 s{sWAVE}, 2')
    a('s_cselect_b64 s[54:55], s[54:55], s[58:59]')
    a(f's_cselect_b32 s34, {NLOG2E}, 1.0')
    a('global_load_ushort v10, v10, s[54:55]')
    for i in range(4): a(f'v_mov_b32 v{4+i}, {DUMMY}')
    a(f'v_add_u32 v3, {EX + 16384}, v21')
    init = [f'ds_write_b128 v21, v[4:7] offset:{EX + 4096*i}' for i in range(4)]
    init += [f'ds_write_b128 v3, v[4:7] offset:{4096*i}' for i in range(16)]
    C = []
    C += [f's_and_b32 s{sB}, s2, 7', f's_lshl_b32 s{sB}, s{sB}, 5', 's_lshr_b32 s3, s2, 3', f's_add_u32 s{sB}, s{sB}, s3',
          f's_mul_i32 s{sNB0}, s{sB}, {BN}', f's_sub_u32 s{sNNODE}, {N}, s{sNB0}', f's_min_u32 s{sNNODE}, s{sNNODE}, {BN}',
          f's_lshl_b32 s{sCOL}, s{sB}, 3', f's_add_u32 s{sCOL}, s{sCOL}, {WS_TAB}']
    C += [f's_sub_u32 s{SX}, s4, {3*XP}', f's_subb_u32 s{SX+1}, s5, 0', f's_and_b32 s{SX+1}, s{SX+1}, 0xffff',
          f's_mov_b32 s{SX+2}, {(N*128 + 3*XP) * P.xfrac // 100}', f's_mov_b32 s{SX+3}, 0x20000']
    for d, lo, size in ((SE, 6, E * 32 * P.efrac // 100), (SO, 60, N * 128), (SW, 64, WS_SIZE)):
        C += [f's_mov_b32 s{d}, s{lo}', f's_and_b32 s{d+1}, s{lo+1}, 0xffff', f's_mov_b32 s{d+2}, {size}', f's_mov_b32 s{d+3}, 0x20000']
    C += [f's_movk_i32 s{sXO+j}, {(3-j)*XP}' for j in range(4)]
    C += [f's_movk_i32 s{s128}, 128', f's_mov_b32 s{sLN2}, {NLN2}', f's_mov_b32 s{sLN2+1}, {NLN2}', f's_mov_b64 s[{sBAD}:{sBAD+1}], 0']
    C += [f's_lshl_b32 s{sMAP}, s{sWAVE}, 12', f's_add_u32 s{sMAP}, s{sMAP}, {MAP}']
    C += [f's_lshl_b32 s{sQROW}, s{sWAVE}, 13', f's_add_u32 s{sQROW}, s{sQROW}, {EX}']
    C += [f's_mul_i32 s{sRING0}, s{sWAVE}, {D*SLOT}', f's_add_u32 s{sRING0}, s{sRING0}, {RING}',
          f's_add_u32 s{sRING1}, s{sRING0}, {D*SLOT}', f's_mov_b32 s{sSLOT}, s{sRING0}']
    C += ['v_and_b32 v16, 7, v2', 'v_lshrrev_b32 v18, 5, v2', 'v_xor_b32 v16, v16, v18', f'v_lshlrev_b32 v{vCX}, 4, v16']
    C += ['v_and_b32 v17, 1, v2', f'v_lshlrev_b32 v{vCE}, 4, v17']
    C += ['v_bfe_u32 v16, v2, 1, 2', f'v_mul_u32_u24 v16, {XP}, v16', 'v_bfe_u32 v20, v2, 3, 2', 'v_lshl_add_u32 v16, v20, 7, v16',
          'v_lshl_add_u32 v16, v17, 9, v16', 'v_xor_b32 v20, v17, v18', f'v_lshl_add_u32 v{vBX0}, v20, 4, v16']
    C += ['v_bfe_u32 v16, v2, 1, 4', 'v_lshl_add_u32 v16, v17, 4, v16', 'v_lshlrev_b32 v16, 5, v16', 'v_lshl_add_u32 v16, v18, 4, v16',
          f'v_add_u32 v{vBE0}, {4*XP}, v16']
    C += ['v_lshrrev_b32 v16, 3, v2', f'v_lshl_add_u32 v{vAX}, v16, 4, s{sQROW}']
    C += ['v_lshrrev_b32 v16, 1, v2', f'v_lshl_add_u32 v{vAE}, v16, 2, s{sQROW}']
    C += ['v_and_b32 v16, 31, v2', 'v_lshlrev_b32 v16, 2, v16', 'v_lshl_add_u32 v16, v18, 12, v16', f'v_add_u32 v25, s{sQROW}, v16']
    C += [f'v_add_u32 v24, s{sNB0}, v0', f'v_cmp_gt_u32 vcc, {BN}, v0', f'v_cmp_gt_u32 {mNN}, s{sNNODE}, v0', f's_mov_b64 {mBN}, vcc']
    C += ['v_lshlrev_b32 v19, 2, v2', 'v_lshlrev_b32 v14, 3, v2', 'v_lshlrev_b32 v30, 11, v0', f'v_mul_u32_u24 v31, {CH}, v0']
    C += [f's_mul_i32 s3, s2, {CH*32}', 'v_lshl_add_u32 v22, v0, 7, s3', f's_add_u32 s3, s3, {3072*32}', f'v_lshl_add_u32 v{vRec+25}, v0, 5, s3',
          'v_mov_b32 v23, 0x1000000', f's_mov_b32 s55, {MAGIC}', 's_movk_i32 s56, -49', 's_movk_i32 s57, 335', 's_mov_b32 s58, 0x1c0000']
    C += [f'v_add_u32 v{vRec+2*i+1}, {((i>>2)*1024 + (i&3))*32}, v22' for i in range(12)]
    while init or C:
        if init: a(init.pop(0))
        for x in C[:6]: a(x)
        C = C[6:]
    a('s_waitcnt lgkmcnt(0)')
    a('s_barrier')
    tagload = lambda: a('global_load_dwordx2 v[16:17], v12, s[62:63] sc1')
    def tagcheck():
        a(f'v_readfirstlane_b32 s{sTAG}, v16'); a(f'v_readfirstlane_b32 s{sTAG8}, v17')
        a(f's_cmp_eq_u32 s{sTAG}, 0')
    a(f's_cmp_ge_u32 s2, {NCH}'); a('s_cbranch_scc1 L_prep_store')
    a('s_waitcnt vmcnt(5)')
    stamp(2)
    tagload()
    for i in range(13): a(f'v_mul_u32_u24 v{vB+i}, s55, v{vDs+i}')
    for i in range(13): a(f'v_lshlrev_b32_sdwa v{vB+i}, 2, v{vB+i} {SDWA}BYTE_3')
    for i in range(13):
        if i == 12: a(f's_mov_b64 exec, {mLO}')
        a(f'ds_add_rtn_u32 v{vRk+i}, v{vB+i}, v13 offset:{HB}')
    a('s_mov_b64 exec, -1')
    for i in range(13): a(f'v_mad_i32_i24 v{vDs+i}, v{vB+i}, s56, v{vDs+i}')
    a('s_waitcnt vmcnt(1)')
    for i in range(13): a(f'v_mad_u32_u24 v{vRec+2*i}, v{vSr+i}, s57, v23')
    a('s_waitcnt lgkmcnt(0)')
    a('s_barrier')
    a(f'ds_read_b128 v[26:29], v9 offset:{HB}')
    a(f'ds_write_b32 v15, v11 offset:{TT}')
    F = []
    for i in range(13): F.append(f'v_lshrrev_b32 v{vRec+2*i}, 4, v{vRec+2*i}')
    for i in range(13): F.append(f'v_and_or_b32 v{vRec+2*i}, v{vRec+2*i}, s58, v{vSr+i}')
    for i in range(13): F.append(f'v_lshl_add_u32 v{vRec+2*i}, v{vDs+i}, 20, v{vRec+2*i}')
    for x in F[:20]: a(x)
    a('s_waitcnt lgkmcnt(1)')
    a('v_add_u32 v5, v26, v27'); a('v_add_u32 v6, v5, v28'); a('v_add_u32 v7, v6, v29')
    a('v_mov_b32 v3, v7')
    wave_scan(a, 3, F[20:32])
    a('v_sub_u32 v4, v3, v7'); a('v_add_u32 v7, v4, v6'); a('v_add_u32 v6, v4, v5'); a('v_add_u32 v5, v4, v26')
    a(f'ds_write_b128 v9, v[4:7] offset:{START}')
    for i in range(13): a(f'ds_read_b32 v{vB+i}, v{vB+i} offset:{START}')
    for x in F[32:]: a(x)
    a('v_lshlrev_b32 v10, 16, v10')
    a('v_mul_f32 v10, s34, v10')
    a(f's_mov_b32 s3, {STAGE // 8}')
    for i in range(13): a(f'v_add_u32 v{vRk+i}, s3, v{vRk+i}')
    a('s_waitcnt lgkmcnt(0)')
    for i in range(13): a(f'v_add_lshl_u32 v{vB+i}, v{vB+i}, v{vRk+i}, 3')
    for i in range(13):
        if i == 12: a(f's_mov_b64 exec, {mLO}')
        a(f'ds_write_b64 v{vB+i}, {R("v", vRec+2*i, 2)}')
    a('s_mov_b64 exec, -1')
    a(f'ds_write_b32 v15, v10 offset:{B1T}')
    a(f'v_add_u32 v3, {STAGE}, v21')
    a(f's_mul_i32 s3, s2, {CH*8}')
    for i in range(4): a(f'v_lshl_or_b32 v{26+i}, v{26+i}, 12, v{4+i}')
    a(f's_cmp_eq_u32 s{sWAVE}, 0')
    a('s_cselect_b64 s[56:57], -1, 0')
    a('s_waitcnt lgkmcnt(0)')
    a('s_barrier')
    for i in range(7): a(f'ds_read_b128 {R("v", 32+4*i, 4)}, v3 offset:{4096*i}')
    for i in range(7):
        a(f's_waitcnt lgkmcnt({6-i})')
        if i == 6: a('s_mov_b64 exec, s[56:57]')
        a(f'buffer_store_dwordx4 {R("v", 32+4*i, 4)}, v21, {srdn(SW)}, s3 offen sc1')
        if i < 6: a('s_add_u32 s3, s3, 4096')
    a('s_mov_b64 exec, -1')
    a.label('L_publish')
    stamp(3)
    a('v_min_u32 v3, 5, v2')
    a(f'v_add_u32 v3, {NCH}, v3')
    a('v_lshlrev_b32 v20, 11, v3')
    wload = lambda: a(f'buffer_load_dwordx2 v[122:123], v20, {srdn(SW)}, s{sCOL} offen sc1')
    wload()
    poll('L_ptag', tagload, tagcheck, first_issued=True)
    a(f's_and_b32 s{sTAG8}, s{sTAG8}, 0xff')
    a(f's_lshl_b32 s{sTAG8S}, s{sTAG8}, 24')
    a('s_barrier')
    a(f's_cmp_lg_u32 s{sSLOW}, 0'); a('s_cbranch_scc1 L_nomap')
    a(f's_cmp_lg_u32 s{sWAVE}, 3'); a('s_cbranch_scc1 L_norow')
    if P.force == 2: a('s_cmp_eq_u32 s2, 7'); a('s_cbranch_scc1 L_norow')
    for i in range(4):
        a(f'v_or_b32 v{32+2*i}, s{sTAG8S}, v{26+i}')
        a(f'v_mov_b32 v{33+2*i}, s{sTAG}')
    a('s_lshl_b32 s3, s2, 11'); a(f's_add_u32 s3, s3, {WS_TAB}')
    a('v_lshlrev_b32 v3, 5, v2')
    a(f'buffer_store_dwordx4 v[32:35], v3, {srdn(SW)}, s3 offen sc1')
    a(f'buffer_store_dwordx4 v[36:39], v3, {srdn(SW)}, s3 offen offset:16 sc1')
    a.label('L_norow')
    stamp(4)
    def tcheck(v):
        def f():
            a(f'v_cmp_ne_u32 s[56:57], s{sTAG}, v{v+1}')
            a(f'v_cmp_ne_u32_sdwa vcc, v{v}, s{sTAG8} src0_sel:BYTE_3 src1_sel:DWORD')
            a('s_or_b64 vcc, vcc, s[56:57]')
        return f
    tcheck(122)()
    a('s_cbranch_scc0 L_pw_ok')
    poll('L_pw', wload, tcheck(122))
    a(f's_mul_i32 s3, s{sWAVE}, {13*1024}')
    a(f's_add_u32 s35, s3, {WS_W}')
    a(f's_add_u32 m0, s3, {WST}')
    for i in range(13):
        if i and i % 4 == 0: a('s_add_u32 m0, m0, 4096'); a('s_add_u32 s35, s35, 4096')
        a(f'buffer_load_dwordx4 v9, {srdn(SW)}, s35 offen offset:{(i%4)*1024} sc1 lds')
    poll('L_pt', lambda: a(f'buffer_load_dwordx2 v[16:17], v30, {srdn(SW)}, s{sCOL} offen sc1'), tcheck(16))
    stamp(5)
    a('v_bfe_u32 v17, v16, 12, 12')
    a('v_and_b32 v16, 0xfff, v16')
    a('v_mov_b32 v18, v17')
    wave_scan(a, 18, ['v_add_u32 v16, v16, v31', 'v_cmp_lt_u32 s[56:57], 16, v17', 'v_cmp_lt_u32 s[58:59], 8, v17',
                      'v_cmp_lt_u32 s[60:61], 0, v17', 'v_cmp_lt_u32 vcc, 24, v17', f'v_mov_b32 v4, {DUMMY}', f'v_add_u32 v20, s{sMAP}, v19'])
    a('v_sub_u32 v3, v18, v17')
    a('v_readlane_b32 s3, v18, 63')
    a('v_sub_u32 v16, v16, v3')
    a(f'v_lshl_add_u32 v18, v3, 2, s{sMAP}')
    a('v_lshlrev_b32 v16, 3, v16')
    a(f's_cmp_gt_u32 s3, {NSLOT*64}')
    a(f's_cselect_b32 s{sSLOW}, 1, s{sSLOW}')
    a(f's_cmp_lg_u32 s{sSLOW}, 0'); a('s_cbranch_scc1 L_nomap')
    a('v_lshl_add_u32 v3, s3, 2, v20')
    for m, j0 in (('s[56:57]', 16), ('s[58:59]', 8), ('s[60:61]', 0)):
        a(f's_mov_b64 exec, {m}')
        for j in range(j0 + 7, j0 - 1, -1): a(f'ds_write_b32 v18, v16 offset:{4*j}')
    a('s_mov_b64 exec, -1')
    a('ds_write_b32 v3, v4')
    a('s_cbranch_vccz L_nomap')
    a.label('L_map')
    for j in range(24, 28):
        a(f'v_cmpx_lt_u32 vcc, {j}, v17')
        a(f'ds_write_b32 v18, v16 offset:{4*j}')
    a('v_add_u32 v18, 16, v18')
    a('v_subrev_u32 v17, 4, v17')
    a('s_cbranch_execnz L_map')
    a('s_mov_b64 exec, -1')
    a.label('L_nomap')
    vR, vI, vK, vP = 32, 64, 80, 96
    a(f'v_add_u32 v20, s{sMAP}, v19')
    for i in range(NSLOT): a(f'ds_read_b32 v{vI+i}, v20 offset:{256*i}')
    a('s_movk_i32 s3, 4096')
    for lo, hi in ((0, 5), (5, 10), (10, 15)):
        a(f's_waitcnt lgkmcnt({NSLOT-hi})')
        for i in range(lo, hi): a(f'v_add_u32 v{vI+i}, v{vI+i}, v14')
        for i in range(lo, hi):
            a(f'buffer_load_dwordx2 {R("v", vR+2*i, 2)}, v{vI+i}, {srdn(SW)}, {"s3" if i >= 8 else "0"} offen offset:{512*(i%8)} sc1')
    a('v_lshlrev_b32 v29, 7, v24')
    a(f'buffer_load_dword a{aJUNK}, v29, {srdn(SX)}, s{sXO} offen')
    a(f'v_add_u32 v3, {WST}, v9')
    stamp(6)
    a('s_barrier')
    for i in range(52): a(f'ds_read_b128 {R("a", 4*i, 4)}, v3 offset:{1024*i}')
    for lo, hi in ((0, 6), (6, 11), (11, 15)):
        a(f's_waitcnt vmcnt({NSLOT-hi+1})')
        for i in range(lo, hi): a(f'v_lshrrev_b32 v{vI+i}, 16, v{vR+2*i}')
        if lo == 11:
            for i in range(lo, hi): a(f'v_cmp_ne_u32 s[{58+2*(i-lo)}:{59+2*(i-lo)}], 0, v{vI+i}')
        for i in range(lo, hi):
            if lo == 11: a(f's_mov_b64 exec, s[{58+2*(i-lo)}:{59+2*(i-lo)}]')
            a(f'ds_add_rtn_u32 v{vK+i}, v{vI+i}, v13 offset:{CNT}')
    a(f's_mov_b64 exec, {mBN}')
    a('s_waitcnt lgkmcnt(0)')
    a('s_barrier')
    stamp(7)
    a(f'ds_read_b128 v[4:7], v21 offset:{CNT + 16}')
    a('s_waitcnt lgkmcnt(0)')
    a('v_add_u32 v5, v4, v5'); a('v_add_u32 v6, v5, v6'); a('v_add_u32 v16, v6, v7')
    a('v_min_u32 v17, 63, v16')
    a('v_sub_u32 v17, 63, v17')
    a('v_lshlrev_b32 v17, 2, v17')
    a(f'ds_add_rtn_u32 v18, v17, v13 offset:{HIST}')
    a('v_sub_u32 v26, v16, v4'); a('v_sub_u32 v27, v16, v5'); a('v_sub_u32 v28, v16, v6')
    a('v_lshrrev_b32 v23, 1, v16')
    a('v_lshl_or_b32 v23, v23, 16, v24')
    a('v_or_b32 v23, 0xc00000, v23')
    a('s_mov_b64 exec, -1')
    a('s_waitcnt lgkmcnt(0)')
    a('s_barrier')
    a(f'ds_read_b32 v20, v19 offset:{HIST}')
    a(f'v_mov_b32 v3, {(32768 - 4) << 16}')
    a(f'ds_write_b32 v12, v3 offset:{CNT}')
    a('s_waitcnt lgkmcnt(1)')
    a('v_mov_b32 v3, v20')
    wave_scan(a, 3)
    a('v_sub_u32 v20, v3, v20')
    a('ds_bpermute_b32 v20, v17, v20')
    a(f's_mov_b64 exec, {mNN}')
    a('s_waitcnt lgkmcnt(0)')
    a('v_add_lshl_u32 v20, v20, v18, 2')
    a(f'ds_read_b32 v22, v20 offset:{TT}')
    a('s_waitcnt lgkmcnt(0)')
    a('v_and_b32 v3, 0x10000000, v22')
    a('v_lshlrev_b32 v29, 16, v22')
    a('v_cmp_ne_u32 vcc, 0, v3')
    a('v_bfe_u32 v3, v22, 6, 1')
    a('v_add_u32 v16, v16, v3')
    a('v_cndmask_b32 v7, v6, v12, vcc'); a('v_cndmask_b32 v6, v5, v28, vcc')
    a('v_cndmask_b32 v5, v4, v27, vcc'); a('v_cndmask_b32 v4, v12, v26, vcc')
    for i in range(4): a(f'v_mad_u32_u24 v{4+i}, v{4+i}, v29, v22')
    a('v_lshrrev_b32 v16, v3, v16')
    a('v_lshrrev_b32 v22, 16, v22')
    a('v_lshl_or_b32 v24, v3, 22, v24')
    a('v_cmp_lt_u32 s[56:57], 30, v16')
    a('v_lshl_or_b32 v24, v16, 16, v24')
    a('v_cmp_ne_u32 vcc, 0, v3')
    a(f'ds_write_b128 v21, v[4:7] offset:{CNT + 16}')
    a(f'ds_write_b32 v22, v24 offset:{EX - 128}')
    a('s_mov_b64 exec, vcc')
    a(f'ds_write_b32 v22, v23 offset:{EX - 64}')
    a(f's_or_b32 s56, s56, s{sSLOW}')
    a('s_mov_b64 exec, s[56:57]')
    a(f'ds_write_b32 v12, v13 offset:{FLAG}')
    a('s_mov_b64 exec, -1')
    a('s_waitcnt lgkmcnt(0)')
    a('s_barrier')

    ell_read = [f'ds_read_b128 {R("v", vEX, 4)}, v{vAX}', f'ds_read_b32 v{vEE}, v{vAE} offset:{EE-EX}']
    jump = [f's_sub_u32 s{sJ}, s{sJ}, 1', f's_cselect_b32 s{sINC}, s{sJUMP}, s{s128}']
    ell_adv = [f'v_add_u32 v{vAX}, s{sINC}, v{vAX}', f'v_add_u32 v{vAE}, s{sINC}, v{vAE}']
    xaddr = [f'v_mad_u32_u16 v{vEX+j}, v{vEX+j}, s{s128}, v{vCX}' for j in range(4)]
    eaddr = f'v_add_u32 v{vEE}, v{vEE}, v{vCE}'
    m0x = f's_mov_b32 m0, s{sSLOT}'; m0e = f's_add_u32 m0, s{sSLOT}, {4*XP}'
    dmax = [f'buffer_load_dwordx4 v{vEX+j}, {srdn(SX)}, s{sXO+j} offen offset:{j*XP}{P.pol_x} lds' for j in range(4)]
    dmae = f'buffer_load_dwordx4 v{vEE}, {srdn(SE)}, 0 offen{P.pol_e} lds'
    adv = [f's_add_u32 s{sSLOT}, s{sSLOT}, {SLOT}', f's_cmp_eq_u32 s{sSLOT}, s{sRING1}', f's_cselect_b32 s{sSLOT}, s{sRING0}, s{sSLOT}']
    baddr = [f'v_add_u32 v{vBX}, s{sSLOT}, v{vBX0}', f'v_add_u32 v{vBE}, s{sSLOT}, v{vBE0}']
    bread = [f'ds_read_b128 {R("a", aBX+4*k, 4)}, v{vBX} offset:{32*k}' for k in range(4)] + [f'ds_read_b128 {R("a", aBE, 4)}, v{vBE}']
    PFa = [m0x] + xaddr + [eaddr] + dmax + [m0e] + [adv[0]] + [dmae] + adv[1:]
    PFb = ell_read + jump + ell_adv
    PF = PFa + PFb + baddr

    a(f'ds_read_b32 v16, v12 offset:{FLAG}')
    for i in range(NSLOT - 1): a(f'ds_read_b32 v{vP+i}, v{vI+i} offset:{CNT}')
    a(f's_waitcnt lgkmcnt({NSLOT - 6})')
    a(f'ds_read_b32 v{vP+NSLOT-1}, v{vI+NSLOT-1} offset:{CNT}')
    a('ds_read_b32 v17, v25')
    for x in ell_read: a(x)
    a('v_readfirstlane_b32 s3, v16')
    a('s_cmp_lg_u32 s3, 0'); a('s_cbranch_scc1 L_slow')
    for lo, hi in ((0, 5), (5, 10), (10, 15)):
        if lo: a(f's_waitcnt lgkmcnt({NSLOT - hi + 3 if hi < NSLOT else 0})')
        for i in range(lo, hi): a(f'v_mul_u32_u24_sdwa v{vK+i}, v{vK+i}, v{vP+i} {SDWA}WORD_0')
        for i in range(lo, hi): a(f'v_add_u32_sdwa v{vP+i}, v{vK+i}, v{vP+i} {SDWA}WORD_1')
    for i in range(NSLOT):
        if i >= 11: a(f's_mov_b64 exec, s[{58+2*(i-11)}:{59+2*(i-11)}]')
        a(f'ds_write2st64_b32 v{vP+i}, v{vR+2*i}, v{vR+2*i+1} offset0:{EX//256} offset1:{EE//256}')
    a('s_mov_b64 exec, -1')
    a('v_bfe_u32 v17, v17, 16, 6')
    for x in PFa: a(x)
    for sh in (1, 2, 4, 8): a(f'v_max_u32_dpp v17, v17, v17 row_shr:{sh} row_mask:0xf bank_mask:0xf bound_ctrl:0')
    a('v_max_u32_dpp v17, v17, v17 row_bcast:15 row_mask:0xa bank_mask:0xf')
    a(f'v_add_u32 v{vAX}, 128, v{vAX}'); a(f'v_add_u32 v{vAE}, 128, v{vAE}')
    a(f'v_readlane_b32 s{sL}, v17, 31')
    a(f'v_readlane_b32 s{sLNEXT}, v17, 63')
    a('s_waitcnt lgkmcnt(0)')
    a('s_barrier')
    stamp(8)
    for x in ell_read: a(x)
    a(f's_max_u32 s{sL}, s{sL}, 1')
    a(f's_max_u32 s{sLNEXT}, s{sLNEXT}, 1')
    a(f's_lshl_b32 s3, s{sL}, 7')
    a(f's_sub_u32 s{sJUMP}, 4096, s3')
    a(f's_sub_u32 s{sJ}, s{sL}, 1')
    for x in jump + ell_adv: a(x)
    if P.stamp: a(f's_mov_b32 s{88+9}, 0'); a(f's_mov_b32 s{88+10}, 0')
    for r in range(1, D):
        a('s_waitcnt lgkmcnt(0)')
        for x in PF: a(x)

    a.label('L_group')
    a(f'v_lshrrev_b32 v{vE+1}, 3, v{vBE0}')
    a(f'v_and_b32 v{vE}, 16, v{vBE0}')
    a(f'v_and_b32 v{vE+1}, -4, v{vE+1}')
    a(f'v_lshlrev_b32 v{vE}, 4, v{vE}')
    a(f's_sub_u32 s3, s{sQROW}, {4*XP//8}')
    a(f'v_add_u32 v{vE+1}, s3, v{vE+1}')
    a(f'ds_read_b32 v{vINFO}, v{vE+1}')
    for i in range(16): a(f'ds_read_b128 {R("v", vQ+4*i, 4)}, v{vE} offset:{B1T + 16*i}')
    a(f's_waitcnt vmcnt({VW})')
    for x in bread[:4]: a(x)
    a('s_waitcnt lgkmcnt(0)')
    pf = list(PF)
    for k in range(4):
        for c in range(4):
            a(mfma(R('v', vQ+16*c, 16), R('a', aW1B + (c*4+k)*4, 4), R('a', aBX+4*k, 4), R('v', vQ+16*c, 16)))
            for x in pf[:2]: a(x)
            pf = pf[2:]
    assert not pf
    a(f's_waitcnt vmcnt({VW})')
    for x in bread: a(x)
    a(f'v_bfe_u32 v{vDEG}, v{vINFO}, 16, 6')
    a(f's_add_u32 s{sQROW}, s{sQROW}, 4096')
    a(f's_mov_b32 s{sT}, 1')
    if P.stamp:
        a(f's_cmp_lg_u32 s{88+9}, 0'); a('s_cbranch_scc1 L_st9'); stamp(9); a.label('L_st9')
    a('s_waitcnt lgkmcnt(0)')
    pf = list(PF)
    for k in range(5):
        a(m1(0, k, vN, vQ))
        n = 3 if k < 4 else 99
        for x in pf[:n]: a(x)
        pf = pf[n:]
    for c in range(4):
        cn = (c + 1) & 3
        if c == 3: a('s_waitcnt lgkmcnt(0)')
        for k in range(5):
            a(m1(cn, k, vN + 16*cn if c < 3 else vY, vQ + 16*cn))
            if c == 2:
                if k == 0: a(f's_waitcnt vmcnt({VW})')
                a(bread[k])
            for i in range(3*k, 3*k + (3 if k < 4 else 4)): a(f'v_exp_f32 v{vD+16*c+i}, v{vN+16*c+i}')
        for p in range(8):
            d = R('v', vD + 16*c + 2*p, 2)
            a(f'v_pk_add_f32 {d}, {d}, 1.0 op_sel_hi:[1,0]')
    a(f's_cmp_ge_u32 s{sT}, s{sL}'); a('s_cbranch_scc1 L_flush')
    a(m0x)
    a(m1(1, 0, vY + 16, vQ + 16))
    a('.p2align 3')
    a.label('L_row')
    for c in range(4):
        cn = (c + 1) & 3
        y = vY + 16 * (c & 1); yn = vY + 16 * (cn & 1)
        S = [[] for _ in range(5)]
        V = [[] for _ in range(5)]
        if c == 0:
            S[1] = ['s_mov_b64 exec, -1']; V[1] = xaddr[:2]
            S[2] = [jump[0]]; V[2] = xaddr[2:]
            S[3] = [jump[1]]; V[3] = [eaddr]
            V[4] = dmax + [m0e, ell_read[0], dmae, ell_read[1]] + ell_adv + [f'v_cmpx_lt_u32 vcc, s{sT}, v{vDEG}']
        if c == 1:
            S[0] = [adv[0]]; S[1] = [adv[1]]; S[2] = [adv[2]]
            S[3] = [f's_add_u32 s{sT}, s{sT}, 1']
            V[4] = baddr
        if c == 2:
            for k in range(5): S[k] = [bread[k]]
            S[0].insert(0, f's_waitcnt vmcnt({VW})')
            S[4].insert(0, 's_waitcnt lgkmcnt(3)')
        if c == 3:
            S[0] = ['s_waitcnt lgkmcnt(0)']
            S[1] = [f's_cmp_lt_u32 s{sT}, s{sL}']
            S[2] = [m0x]
        L = []
        for k in range(5):
            if (c, k) != (0, 0): L.append(m1(cn, k, yn, vQ + 16*cn))
            L += S[k]
            for i in range(3*k, 3*k + (3 if k < 4 else 4)): L.append(f'v_exp_f32 v{vE+i}, v{y+i}')
            L += V[k]
        if sum(isize(x) for x in L) % 8:
            i = max(i for i, x in enumerate(L) if x.startswith('v_exp_f32 '))
            L[i] = L[i].replace('v_exp_f32 ', 'v_exp_f32_e64 ')
        for x in L: a(x)
        for p in range(8):
            yy, nn, dd, ee = R('v', y+2*p, 2), R('v', vN+16*c+2*p, 2), R('v', vD+16*c+2*p, 2), R('v', vE+2*p, 2)
            a(f'v_pk_fma_f32 {yy}, {yy}, {dd}, {nn}')
            a(f'v_pk_fma_f32 {dd}, {dd}, {ee}, {dd}')
            a(f'v_pk_fma_f32 {nn}, {nn}, {ee}, {yy}')
    a(m1(1, 0, vY + 16, vQ + 16))
    a('s_cbranch_scc1 L_row')
    a.label('L_flush')
    if P.stamp:
        a(f's_cmp_lg_u32 s{88+10}, 0'); a('s_cbranch_scc1 L_st10'); stamp(10); a.label('L_st10')
        stamp(11)
    a('s_mov_b64 exec, -1')
    for x in baddr: a(x)
    a(f'v_and_b32 v{vQ+32}, 16, v{vBE0}')
    a(f'v_lshlrev_b32 v{vQ+33}, 3, v{vQ+32}')
    for i in range(8): a(f'ds_read_b128 {R("v", vQ+4*i, 4)}, v{vQ+33} offset:{B2T + 16*i}')
    a(f'v_lshlrev_b32 v{vQ+32}, 2, v{vQ+32}')
    a(f'v_mad_u32_u16 v{vQ+32}, v{vINFO}, s{s128}, v{vQ+32}')
    a(f'v_cvt_f32_u32 v{vQ+34}, v{vDEG}')
    a(f'v_mov_b32 v{vMAX}, 0')
    def g3(c, i):
        u = 2*c + (i >> 1); dt = i & 1
        acc = R('v', vY + 16*dt, 16)
        return mfma(acc, R('a', aW2 + (dt*8+u)*4, 4), R('v', vE + 8*(c & 1) + 4*(i >> 1), 4), acc if u else '0')
    for c in range(4):
        for q in range(4):
            if c: a(g3(c-1, q))
            for p in range(2):
                d = vD + 16*c + 4*q + 2*p
                a(f'v_max3_f32 v{vMAX}, v{d}, v{d+1}, v{vMAX}')
                a(f'v_rcp_f32 v{d}, v{d}'); a(f'v_rcp_f32 v{d+1}, v{d+1}')
        for p in range(8):
            nn, dd = R('v', vN+16*c+2*p, 2), R('v', vD+16*c+2*p, 2)
            a(f'v_pk_mul_f32 {nn}, {nn}, {dd}')
        if c == 3:
            a('s_waitcnt lgkmcnt(0)')
            for p in range(16):
                qq = R('v', vQ+2*p, 2)
                a(f'v_pk_mul_f32 {qq}, {qq}, {R("v", vQ+34, 2)} op_sel_hi:[1,0]')
        for p in range(8):
            a(f'v_cvt_pk_bf16_f32 v{vE+8*(c&1)+p}, v{vN+16*c+2*p}, v{vN+16*c+2*p+1}')
    for q in range(4): a(g3(3, q))
    a(f's_mov_b32 s3, {f32(2.0**100)}')
    a(f'v_bfe_u32 v{vQ+33}, v{vINFO}, 22, 2')
    a(f'v_cmp_ne_u32 s[58:59], 0, v{vQ+33}')
    a(f'v_cmp_ne_u32 s[60:61], 3, v{vQ+33}')
    a(f'v_cmpx_ne_u32 vcc, 0, v{vDEG}')
    a(f'v_cmp_lt_f32 s[56:57], s3, v{vMAX}')
    a(f'v_mov_b32 v{vMAX}, 0x207')
    for p in range(16):
        yy, qq = R('v', vY+2*p, 2), R('v', vQ+2*p, 2)
        a(f'v_pk_fma_f32 {qq}, {yy}, s[{sLN2}:{sLN2+1}], {qq}')
    a(f'v_cmp_class_f32 vcc, v{vQ}, v{vMAX}')
    a(f's_or_b64 s[{sBAD}:{sBAD+1}], s[{sBAD}:{sBAD+1}], s[56:57]')
    a('s_mov_b64 exec, s[58:59]')
    a(f's_or_b64 s[{sBAD}:{sBAD+1}], s[{sBAD}:{sBAD+1}], vcc')
    a('s_cbranch_execz L_nopair')
    for i in range(32):
        a(f'v_add_f32_dpp v{vQ+i}, v{vQ+i}, v{vQ+i} quad_perm:[1,0,3,2] row_mask:0xf bank_mask:0xf')
    a.label('L_nopair')
    a('s_mov_b64 exec, s[60:61]')
    for i in range(4):
        for p in range(4*i, 4*i+4): a(f'v_cvt_pk_bf16_f32 v{vE+p}, v{vQ+2*p}, v{vQ+2*p+1}')
        a(f'buffer_store_dwordx4 {R("v", vE+4*i, 4)}, v{vQ+32}, {srdn(SO)}, 0 offen offset:{16*i}{P.pol_out}')
    a('s_mov_b64 exec, -1')
    a(f's_mov_b32 s{sL}, s{sLNEXT}')
    a(f's_mov_b32 s{sLNEXT}, 0')
    a(f's_cmp_lg_u32 s{sL}, 0'); a('s_cbranch_scc1 L_group')
    if P.stamp:
        a('s_waitcnt vmcnt(0)'); stamp(12); stamp(13, True)
        for i in range(14): a(f'v_writelane_b32 v1, s{88+i}, {i}')
        a(f'v_writelane_b32 v1, s{sCNT}, 14')
        a('v_mbcnt_lo_u32_b32 v2, -1, 0'); a('v_mbcnt_hi_u32_b32 v2, -1, v2'); a('v_lshlrev_b32 v2, 2, v2')
        a('s_lshl_b32 s3, s2, 2'); a(f's_add_u32 s3, s3, s{sWAVE}'); a('s_lshl_b32 s3, s3, 6'); a(f's_add_u32 s3, s3, {WS_STAMP}')
        a('s_mov_b64 exec, 0xffff')
        a(f'buffer_store_dword v1, v2, {srdn(SW)}, s3 offen')
        a('s_mov_b64 exec, -1')
    a(f's_cmp_eq_u64 s[{sBAD}:{sBAD+1}], 0')
    a('v_mov_b32 v1, 0'); a('v_mov_b32 v2, 1')
    a('s_cbranch_scc1 L_nobad')
    a(f'ds_write_b32 v1, v2 offset:{FLAG}')
    a.label('L_nobad')
    a('s_waitcnt lgkmcnt(0)')
    a('s_barrier')
    a(f'ds_read_b32 v2, v1 offset:{FLAG}')
    a('s_waitcnt lgkmcnt(0)')
    a('v_readfirstlane_b32 s3, v2')
    a('s_cmp_lg_u32 s3, 0'); a('s_cbranch_scc1 L_slow')
    if P.diag:
        a.label('L_diag')
        a('s_memrealtime s[86:87]'); a('s_waitcnt lgkmcnt(0)')
        a(f's_sub_u32 s86, s86, s{sTAG}'); a(f's_cmp_lt_u32 s86, {P.diag}'); a('s_cbranch_scc1 L_diag')
    a.label('L_end')
    a('s_endpgm')

    a.label('L_prep_load')
    srd(a, SD, 52, 144 * 128 * 2); srd(a, SS, 56, 128 * 64 * 2)
    prep_offsets(a, 2, 26, 27, 28, 29)
    a(f's_sub_u32 s85, s2, {NCH}'); a('s_lshl_b32 s85, s85, 2'); a(f's_add_u32 s85, s85, s{sWAVE}')
    prep_w1_load(a, 85, 26, 32, 34, 35)
    a('s_add_u32 s3, s85, 24'); a('s_min_u32 s3, s3, 35')
    prep_w1_load(a, 3, 26, 40, 34, 35)
    a('s_add_u32 s3, s85, 28'); a('s_max_u32 s3, s3, 36')
    prep_w2_load(a, 3, 27, 48, 34, 35)
    a('s_branch L_setup')
    a.label('L_prep_store')
    a('s_waitcnt vmcnt(0)')
    tagload()
    prep_w1_pack(a, 32); prep_w1_pack(a, 40); prep_w2_pack(a, 48)
    for add, lim, vd in ((0, None, 32), (24, 's_min_u32 s3, s3, 35', 40), (28, 's_max_u32 s3, s3, 36', 48)):
        a(f's_add_u32 s3, s85, {add}')
        if lim: a(lim)
        a('s_lshl_b32 s3, s3, 10'); a(f's_add_u32 s3, s3, {WS_W}')
        a(f'buffer_store_dwordx4 {R("v", vd, 4)}, v9, {srdn(SW)}, s3 offen sc1')
    a('v_lshlrev_b32 v10, 16, v10')
    a('v_mul_f32 v10, s34, v10')
    a(f'ds_write_b32 v15, v10 offset:{B1T}')
    a(f'ds_write_b32 v15, v11 offset:{TT}')
    for i in range(4): a(f'v_mov_b32 v{26+i}, 0')
    a('s_waitcnt lgkmcnt(0)')
    a('s_branch L_publish')

    a.label('L_slow')
    a('s_mov_b64 exec, -1')
    a('s_waitcnt vmcnt(0) lgkmcnt(0)')
    a('s_load_dwordx2 s[52:53], s[0:1], 32')
    a('s_load_dwordx2 s[56:57], s[0:1], 48')
    a('s_load_dwordx4 s[8:11], s[0:1], 16')
    a('s_barrier')
    vL, vS, vH, vT0, vT1, vOA, vD4 = 240, 241, 242, 244, 245, 246, 252
    a(f'v_mbcnt_lo_u32_b32 v{vL}, -1, 0'); a(f'v_mbcnt_hi_u32_b32 v{vL}, -1, v{vL}')
    a(f'v_and_b32 v{vS}, 31, v{vL}')
    a(f'v_lshrrev_b32 v{vH}, 5, v{vL}')
    a(f's_lshl_b32 s3, s{sWAVE}, 10')
    a(f'v_lshl_add_u32 v4, v{vL}, 4, s3')
    for i in range(4): a(f'v_mov_b32 v{i}, 0')
    for i in range(13): a(f'ds_write_b128 v4, v[0:3] offset:{OACC + 4096*i}')
    a('s_waitcnt lgkmcnt(0)')
    srd(a, SD, 52, 144 * 128 * 2); srd(a, SS, 56, 128 * 64 * 2)
    prep_offsets(a, vL, 26, 27, 28, 29)
    a(f'v_add_u32 v4, {WST}, v4')
    a(f's_mov_b32 s85, s{sWAVE}')
    a.label('L_s_w1')
    prep_w1_load(a, 85, 26, 32, 34, 35)
    a('s_waitcnt vmcnt(0)')
    prep_w1_pack(a, 32)
    a('ds_write_b128 v4, v[32:35]')
    a('v_add_u32 v4, 4096, v4')
    a('s_add_u32 s85, s85, 4'); a('s_waitcnt lgkmcnt(0)'); a('s_cmp_lt_u32 s85, 36'); a('s_cbranch_scc1 L_s_w1')
    a.label('L_s_w2')
    prep_w2_load(a, 85, 27, 32, 34, 35)
    a('s_waitcnt vmcnt(0)')
    prep_w2_pack(a, 32)
    a('ds_write_b128 v4, v[32:35]')
    a('v_add_u32 v4, 4096, v4')
    a('s_add_u32 s85, s85, 4'); a('s_waitcnt lgkmcnt(0)'); a('s_cmp_lt_u32 s85, 52'); a('s_cbranch_scc1 L_s_w2')
    a('s_barrier')
    a(f'v_lshlrev_b32 v4, 4, v{vL}'); a(f'v_add_u32 v4, {WST}, v4')
    for i in range(52): a(f'ds_read_b128 {R("a", 4*i, 4)}, v4 offset:{1024*i}')
    srd(a, SD, 10, E * 4); srd(a, SS, 8, E * 4)
    sE0, sJj = 56, 57
    a(f's_lshl_b32 s{sE0}, s{sWAVE}, 9')
    a(f'v_lshlrev_b32 v243, 4, v{vS}')
    a.label('L_s_blk')
    a(f'buffer_load_dwordx4 {R("v", vD4, 4)}, v243, {srdn(SD)}, s{sE0} offen')
    a(f's_mov_b32 s{sJj}, 0')
    a('s_waitcnt vmcnt(0)')
    a.label('L_s_sub')
    a(f'v_subrev_u32 v248, s{sNB0}, v{vD4}')
    a(f'v_cmp_gt_u32 s[60:61], s{sNNODE}, v248')
    a('s_cmp_eq_u64 s[60:61], 0'); a('s_cbranch_scc1 L_s_next')
    a(f's_add_u32 s3, s{sE0}, s{sJj}')
    a(f'buffer_load_dword v{vT0}, v243, {srdn(SS)}, s3 offen')
    a(f'v_lshlrev_b32 v247, 8, v{vH}')
    for i in range(16): a(f'ds_read_b128 {R("v", vQ+4*i, 4)}, v247 offset:{B1T + 16*i}')
    a(f'v_lshlrev_b32 v247, 4, v{vH}')
    a(f'v_add_lshl_u32 v{vT1}, v243, s3, 3')
    a(f'v_add_u32 v{vT1}, v{vT1}, v247')
    a(f'v_lshl_add_u32 v249, v{vD4}, 7, v247')
    a(f'v_mul_u32_u24 v{vOA}, 260, v248')
    a(f'v_lshl_add_u32 v{vOA}, v{vH}, 7, v{vOA}')
    a('s_waitcnt vmcnt(0)')
    a(f'v_lshl_add_u32 v{vT0}, v{vT0}, 7, v247')
    a('s_mov_b64 exec, s[60:61]')
    for k in range(4): a(f'buffer_load_dwordx4 {R("a", aBX+4*k, 4)}, v{vT0}, {srdn(SX)}, s{sXO} offen offset:{32*k}')
    a(f'buffer_load_dwordx4 {R("a", aBE, 4)}, v{vT1}, {srdn(SE)}, 0 offen')
    for k in range(4): a(f'buffer_load_dwordx4 {R("v", vE+4*k, 4)}, v249, {srdn(SX)}, s{sXO} offen offset:{32*k}')
    a('s_waitcnt vmcnt(0) lgkmcnt(0)')
    for c in range(4):
        q = R('v', vQ+16*c, 16)
        for k in range(4): a(mfma(q, R('a', aW1B + (c*4+k)*4, 4), R('v', vE+4*k, 4), q))
        for k in range(5): a(m1(c, k, vQ+16*c, vQ+16*c))
    for i in range(64): a(f'v_exp_f32 v{vD+i}, v{vQ+i}')
    for i in range(64): a(f'v_add_f32 v{vD+i}, 1.0, v{vD+i}')
    for i in range(64): a(f'v_rcp_f32 v{vD+i}, v{vD+i}')
    for i in range(64): a(f'v_mul_f32 v{vD+i}, v{vD+i}, v{vQ+i}')
    for i in range(32): a(f'v_cvt_pk_bf16_f32 v{vN+i}, v{vD+2*i}, v{vD+2*i+1}')
    a(f'v_lshlrev_b32 v247, 7, v{vH}')
    for i in range(8): a(f'ds_read_b128 {R("v", vQ+4*i, 4)}, v247 offset:{B2T + 16*i}')
    for dt in range(2):
        acc = R('v', vY + 16*dt, 16)
        for u in range(8): a(mfma(acc, R('a', aW2 + (dt*8+u)*4, 4), R('v', vN + 4*u, 4), acc if u else '0'))
    a('s_waitcnt lgkmcnt(0)')
    for i in range(32): a(f'v_fma_f32 v{vY+i}, v{vY+i}, s{sLN2}, v{vQ+i}')
    for i in range(32): a(f'ds_add_f32 v{vOA}, v{vY+i} offset:{OACC + 4*i}')
    a('s_mov_b64 exec, -1')
    a('s_waitcnt lgkmcnt(0)')
    a.label('L_s_next')
    for i in range(3): a(f'v_mov_b32 v{vD4+i}, v{vD4+i+1}')
    a(f's_add_u32 s{sJj}, s{sJj}, 4')
    a(f's_cmp_lt_u32 s{sJj}, 16'); a('s_cbranch_scc1 L_s_sub')
    a(f's_add_u32 s{sE0}, s{sE0}, 2048')
    a(f's_cmp_lt_u32 s{sE0}, {E*4}'); a('s_cbranch_scc1 L_s_blk')
    a('s_barrier')
    a(f's_lshl_b32 s3, s{sWAVE}, 1')
    a(f'v_add_u32 v1, s3, v{vH}')
    a.label('L_s_out')
    a(f'v_cmp_gt_u32 vcc, s{sNNODE}, v1')
    a('v_mul_u32_u24 v4, 260, v1')
    a(f'v_lshl_add_u32 v4, v{vS}, 3, v4')
    a(f'v_add_u32 v4, {OACC}, v4')
    a(f'v_add_u32 v5, s{sNB0}, v1')
    a('v_lshlrev_b32 v5, 7, v5')
    a(f'v_lshl_add_u32 v5, v{vS}, 2, v5')
    a('s_and_b64 exec, exec, vcc')
    a('s_cbranch_execz L_s_end')
    a('ds_read2_b32 v[2:3], v4 offset0:0 offset1:1')
    a('s_waitcnt lgkmcnt(0)')
    a('v_cvt_pk_bf16_f32 v2, v2, v3')
    a(f'buffer_store_dword v2, v5, {srdn(SO)}, 0 offen')
    a('v_add_u32 v1, 8, v1')
    a('s_branch L_s_out')
    a.label('L_s_end')
    a('s_endpgm')
    a('.p2align 7')
    a.raw('.type L_table,@object')
    a.label('L_table')
    T = pattern_table()
    for i in range(0, 256, 8): a.raw('.long ' + ', '.join(hex(x) for x in T[i:i+8]))
    a.raw('.size L_table, 1024')
    return a

if __name__ == '__main__':
    for kv in sys.argv[2:]:
        k, v = kv.split('=')
        cur = getattr(P, k)
        setattr(P, k, int(v) if isinstance(cur, int) else (' ' + v.replace('+', ' ') if v else ''))
    k = gen()
    for p in check_all_edges(k): print('HAZARD on branch edge', p, file=sys.stderr)
    print('instrs', sum(1 for x in k.items if not isinstance(x, str)), 'auto nops', k.nops, file=sys.stderr)
    out = open('cdna_kernels/' + NAME + '.s.ref').read().split('; Override launch')[0]
    out += f'; @launch grid=({NB},1,1) block=(256,1,1) lds={lds_bytes()}\n'
    out += '.amdgcn_target "amdgcn-amd-amdhsa--gfx950"\n.text\n'
    out += f'.globl {NAME}_kernel\n.type {NAME}_kernel,@function\n' + k.text()
    out += f'''.section .rodata,"a"
.p2align 6
.amdhsa_kernel {NAME}_kernel
  .amdhsa_next_free_vgpr 512
  .amdhsa_next_free_sgpr 102
  .amdhsa_accum_offset 256
  .amdhsa_group_segment_fixed_size 0
  .amdhsa_kernarg_size 88
  .amdhsa_user_sgpr_count 2
  .amdhsa_user_sgpr_kernarg_segment_ptr 1
  .amdhsa_system_sgpr_workgroup_id_x 1
.end_amdhsa_kernel
'''
    open(sys.argv[1], 'w').write(out)
```

```python
import sys, struct
from asmlib import Asm, Ins, check_all_edges

NAME = 'standalone__edge_featured_mpnn_mpnn__graph'
N, E = 50000, 800000
NB, BN = 256, 196
NCH, CH = 250, 3200
MAGIC = 85599
WS_REC, WS_TAB, WS_W = 0, 8 << 20, 9 << 20
WS_SIZE = 10 << 20
WS_STAMP = (9 << 20) + (512 << 10)
DUMMY = 0x4000FFFF
def f32(x): return struct.unpack('<I', struct.pack('<f', x))[0]
NLOG2E = f32(-1.4426950408889634)
NLN2 = f32(-0.6931471805599453)

class P:
    depth = 3
    stamp = 0
    efrac = 100
    xfrac = 100
    limit = 3000
    epre = ''
    diag = 0
    force = 0
    pol_in = ' nt'
    pol_e = ''
    pol_x = ''
    pol_out = ''

CNT, HIST, FLAG = 0, 3328, 3584
HB, START, B1T, B2T, TT = 4096, 5120, 6144, 6656, 7168
EX, EE = 8192, 40960
RING = 73728
NSLOT = 15
MAP = RING
WST = MAP + 16384
STAGE = WST
XP = 1056
SLOT = 4 * XP + 1024
OACC = 8192
def lds_bytes(): return max(RING + 4 * P.depth * SLOT, WST + 52 * 1024)

PATTERN = [(0, 0, 'H', 1), (2, 0, 'H', 2), (3, 0, 'H', 2), (3, 1, 'H', 16), (2, 1, 'H', 9), (0, 0, 'S', 30),
           (1, 1, 'H', 14), (1, 0, 'S', 32), (2, 0, 'S', 28), (3, 0, 'S', 28), (0, 1, 'H', 16), (2, 1, 'S', 14), (1, 1, 'S', 4)]
def pattern_table():
    free = {(w, ph): list(range(32)) for w in range(4) for ph in range(2)}
    T = [None] * BN; p = 0; segs = []
    for w, ph, t, n in PATTERN: segs.append((w, ph, t, p, n)); p += n
    assert p == BN
    for t0 in 'HS':
        for w, ph, t, p0, n in segs:
            if t != t0: continue
            for i in range(n):
                pos = free[(w, ph)].pop(0)
                if t == 'H': assert pos < 16; free[(w, ph)].remove(pos + 16)
                T[p0 + i] = (((w * 2 + ph) * 4096 + pos * 4 + 128) << 16) | (64 if t == 'H' else 128)
    assert all(not v for v in free.values())
    return T + [128] * (256 - BN)

vN, vD, vQ, vY, vE = 0, 64, 128, 192, 224
vEX, vEE, vAX, vAE, vCX, vCE, vBX0, vBE0, vBX, vBE, vINFO, vDEG, vMAX = 240, 244, 245, 246, 247, 248, 249, 250, 251, 252, 253, 254, 255
aW1A, aW1C, aW1B, aW2, aBX, aBE, aJUNK = 0, 64, 80, 144, 208, 224, 228
SX, SE, SW, SO, SD, SS = 12, 16, 20, 24, 68, 72
sB, sNB0, sNNODE, sWAVE, sMAP, sCOL = 28, 29, 30, 31, 32, 33
sXO = 36
s128, sSLOT, sRING0, sRING1, sT, sL, sLNEXT, sQROW = 40, 41, 42, 43, 44, 45, 46, 47
sLN2, sBAD = 48, 50
sJ, sJUMP, sINC = 52, 53, 54
sSLOW, sCNT = 66, 67
mLO, mBN, mNN = 's[76:77]', 's[78:79]', 's[80:81]'
sTAG, sTAG8, sTAG8S = 82, 83, 84
def R(p, b, n): return f'{p}[{b}:{b+n-1}]'
def srdn(s): return f's[{s}:{s+3}]'
SDWA = 'dst_sel:DWORD dst_unused:UNUSED_PAD src0_sel:DWORD src1_sel:'

def srd(a, d, lo, size):
    a(f's_mov_b32 s{d}, s{lo}'); a(f's_and_b32 s{d+1}, s{lo+1}, 0xffff')
    a(f's_mov_b32 s{d+2}, {size}'); a(f's_mov_b32 s{d+3}, 0x20000')
def wave_scan(a, v, fill=()):
    fill = list(fill)
    steps = [f'row_shr:{sh} row_mask:0xf bank_mask:0xf bound_ctrl:0' for sh in (1, 2, 4, 8)]
    steps += ['row_bcast:15 row_mask:0xa bank_mask:0xf', 'row_bcast:31 row_mask:0xc bank_mask:0xf']
    for s in steps:
        for x in fill[:2]: a(x)
        fill = fill[2:]
        a(f'v_add_u32_dpp v{v}, v{v}, v{v} {s}')
    for x in fill: a(x)
def mfma(d, A, B, C): return f'v_mfma_f32_32x32x16_bf16 {d}, {A}, {B}, {C}'
def m1(c, k, dst, first_c):
    A = R('a', aW1A + (c * 4 + k) * 4, 4) if k < 4 else R('a', aW1C + c * 4, 4)
    B = R('a', aBX + k * 4, 4) if k < 4 else R('a', aBE, 4)
    return mfma(R('v', dst, 16), A, B, R('v', first_c if k == 0 else dst, 16))
def isize(x):
    op = x.split()[0]
    if op.startswith(('v_mfma', 'v_pk_', 'buffer_', 'ds_', 'global_', 'v_mad_', 'v_max3', 'v_cvt_pk', 'v_lshl_add', 'v_bfe')) or op.endswith(('_e64', '_dpp', '_sdwa')): return 8
    for t in x.replace(',', ' ').split()[1:]:
        try: v = int(t, 0)
        except ValueError: continue
        if not -16 <= v <= 64 and not op.startswith(('s_movk', 's_waitcnt', 's_nop')): return 8
    return 4

def prep_offsets(a, vl, v1, v2, t0, t1):
    a(f'v_and_b32 v{t0}, 31, v{vl}'); a(f'v_lshrrev_b32 v{t1}, 5, v{vl}')
    a(f'v_lshlrev_b32 v{v1}, 11, v{t1}'); a(f'v_lshl_add_u32 v{v1}, v{t0}, 1, v{v1}')
    a(f'v_lshlrev_b32 v{v2}, 9, v{t1}')
    a(f'v_bfe_u32 v{t1}, v{t0}, 2, 1'); a(f'v_lshl_add_u32 v{v2}, v{t1}, 6, v{v2}')
    a(f'v_and_b32 v{t1}, 3, v{t0}'); a(f'v_lshl_add_u32 v{v2}, v{t1}, 1, v{v2}')
    a(f'v_lshrrev_b32 v{t1}, 3, v{t0}'); a(f'v_lshl_add_u32 v{v2}, v{t1}, 3, v{v2}')
def prep_w1_load(a, sidx, voff, vd, s0, s1):
    a(f's_and_b32 s{s0}, s{sidx}, 3'); a(f's_lshr_b32 s{s1}, s{sidx}, 2')
    a(f's_cmp_eq_u32 s{s1}, 4')
    a(f's_cselect_b32 s{s1}, s{s0}, s{s1}'); a(f's_cselect_b32 s{s0}, 8, s{s0}')
    a(f's_lshl_b32 s{s0}, s{s0}, 12'); a(f's_lshl_b32 s{s1}, s{s1}, 6'); a(f's_add_u32 s{s0}, s{s0}, s{s1}')
    a(f's_cmp_ge_u32 s{sidx}, 20'); a(f's_cselect_b32 s{s1}, {64*256 - 5*64}, 0'); a(f's_add_u32 s{s0}, s{s0}, s{s1}')
    for j in range(8): a(f'buffer_load_ushort v{vd+j}, v{voff}, {srdn(SD)}, s{s0} offen offset:{256*j}')
def prep_w2_load(a, sidx, voff, vd, s0, s1):
    a(f's_sub_u32 s{s0}, s{sidx}, 36'); a(f's_lshr_b32 s{s1}, s{s0}, 3'); a(f's_and_b32 s{s0}, s{s0}, 7')
    a(f's_lshl_b32 s{s0}, s{s0}, 11'); a(f's_lshl_b32 s{s1}, s{s1}, 5'); a(f's_add_u32 s{s0}, s{s0}, s{s1}')
    for j in range(8): a(f'buffer_load_ushort v{vd+j}, v{voff}, {srdn(SS)}, s{s0} offen offset:{128*((j&3)+8*(j>>2))}')
def prep_w1_pack(a, vd):
    for j in range(8): a(f'v_lshlrev_b32 v{vd+j}, 16, v{vd+j}')
    for j in range(8): a(f'v_mul_f32 v{vd+j}, {NLOG2E}, v{vd+j}')
    for j in range(4): a(f'v_cvt_pk_bf16_f32 v{vd+j}, v{vd+2*j}, v{vd+2*j+1}')
def prep_w2_pack(a, vd):
    for j in range(4): a(f'v_lshl_or_b32 v{vd+j}, v{vd+2*j+1}, 16, v{vd+2*j}')

def gen():
    D = P.depth
    VW = 5 * (D - 1)
    a = Asm()
    def stamp(i, real=False):
        if not P.stamp: return
        a(f's_mem{"real" if real else ""}time s[86:87]'); a('s_waitcnt lgkmcnt(0)'); a(f's_mov_b32 s{88+i}, s86')
    def poll(name, load, check, first_issued=False):
        a(f's_movk_i32 s{sCNT}, {P.limit}')
        if first_issued: a(f's_branch {name}_chk')
        a.label(name)
        load()
        a.label(name + '_chk')
        a('s_waitcnt vmcnt(0)')
        check()
        a(f's_cbranch_scc0 {name}_ok')
        a(f's_sub_u32 s{sCNT}, s{sCNT}, 1')
        a(f's_cbranch_scc0 {name}')
        a(f's_mov_b32 s{sSLOW}, 1')
        a.label(name + '_ok')

    epre = [int(ch) for ch in P.epre.strip()]
    def warm(pos):
        n = 0
        for i, p in enumerate(epre):
            if p != pos: continue
            if i < 4:
                a(f'v_add_u32 v124, {i*32768}, v22')
                if i == 3: a(f'v_min_u32 v124, v124, v125')
                a(f'buffer_load_dword a{aJUNK}, v124, {srdn(SE)}, 0 offen')
            else:
                a(f'v_lshlrev_b32 v124, 7, v24')
                a(f'buffer_load_dword a{aJUNK}, v124, {srdn(SX)}, s{sXO} offen')
            n += 1
        return n
    a('.p2align 8'); a.label(NAME + '_kernel')
    a(f's_cmp_ge_u32 s2, {NB}'); a('s_cbranch_scc1 L_end')
    stamp(0, True); stamp(1)
    a('s_load_dwordx8 s[4:11], s[0:1], 0')
    a('s_load_dwordx4 s[60:63], s[0:1], 64')
    a('s_load_dwordx2 s[64:65], s[0:1], 80')
    a('s_load_dwordx8 s[52:59], s[0:1], 32')
    a(f's_memrealtime s[{sTAG}:{sTAG+1}]')
    a('s_getpc_b64 s[14:15]')
    a.label('L_pc')
    a('v_lshlrev_b32 v15, 2, v0')
    a('s_add_u32 s14, s14, L_table-L_pc')
    a('s_addc_u32 s15, s15, 0')
    a('global_load_dword v11, v15, s[14:15]')
    a('v_lshrrev_b32 v1, 6, v0')
    a('v_and_b32 v2, 63, v0')
    a(f'v_readfirstlane_b32 s{sWAVE}, v1')
    a('v_lshlrev_b32 v21, 4, v0')
    for i in range(4): a(f'v_mov_b32 v{4+i}, 0')
    a('ds_write_b128 v21, v[4:7]')
    a(f'ds_write_b32 v15, v4 offset:{HB}')
    a('v_mov_b32 v12, 0')
    a('v_mov_b32 v13, 1')
    a('v_lshlrev_b32 v9, 4, v2')
    a('v_cmp_gt_u32 vcc, 128, v0')
    a(f's_mul_i32 s3, s2, {CH*4}')
    for s in (SD, SS): a(f's_mov_b32 s{s+2}, {E*4}'); a(f's_mov_b32 s{s+3}, 0x20000')
    a(f's_mov_b64 {mLO}, vcc')
    a('s_add_u32 s34, s3, 4096'); a('s_add_u32 s35, s3, 8192'); a('s_add_u32 s36, s3, 12288')
    a(f's_mov_b32 s{sSLOW}, 0')
    a('s_waitcnt lgkmcnt(0)')
    vDs, vSr, vB, vRk, vRec = 32, 48, 64, 80, 96
    a(f's_mov_b32 s{SD}, s10'); a(f's_and_b32 s{SD+1}, s11, 0xffff')
    a(f's_mov_b32 s{SS}, s8'); a(f's_and_b32 s{SS+1}, s9, 0xffff')
    a(f's_or_b32 s37, s2, s{sWAVE}')
    a('s_cbranch_scc1 L_notag')
    if P.force != 1:
        a(f's_or_b32 s{sTAG}, s{sTAG}, 1')
        a(f'v_mov_b32 v4, s{sTAG}'); a(f'v_mov_b32 v5, s{sTAG+1}')
        a('s_mov_b64 exec, 1')
        a('global_store_dwordx2 v12, v[4:5], s[62:63] sc1')
        a('s_mov_b64 exec, -1')
    a.label('L_notag')
    a(f's_cmp_ge_u32 s2, {NCH}'); a('s_cbranch_scc1 L_prep_load')
    for srdn_, vb in ((SD, vDs), (SS, vSr)):
        for i, so in enumerate(('s3', 's34', 's35')):
            a(f'buffer_load_dwordx4 {R("v", vb+4*i, 4)}, v21, {srdn(srdn_)}, {so} offen{P.pol_in}')
        a(f'buffer_load_dword v{vb+12}, v15, {srdn(srdn_)}, s36 offen{P.pol_in}')
    a.label('L_setup')
    a('v_and_b32 v10, 3, v0')
    a('v_bfe_u32 v16, v0, 2, 4')
    a('v_lshl_add_u32 v10, v16, 3, v10')
    a('v_lshl_add_u32 v10, v1, 2, v10')
    a(f'v_cndmask_b32 v10, v2, v10, {mLO}')
    a('v_lshlrev_b32 v10, 1, v10')
    a(f's_cmp_lt_u32 s{sWAVE}, 2')
    a('s_cselect_b64 s[54:55], s[54:55], s[58:59]')
    a(f's_cselect_b32 s34, {NLOG2E}, 1.0')
    a('global_load_ushort v10, v10, s[54:55]')
    for i in range(4): a(f'v_mov_b32 v{4+i}, {DUMMY}')
    a(f'v_add_u32 v3, {EX + 16384}, v21')
    init = [f'ds_write_b128 v21, v[4:7] offset:{EX + 4096*i}' for i in range(4)]
    init += [f'ds_write_b128 v3, v[4:7] offset:{4096*i}' for i in range(16)]
    C = []
    C += [f's_and_b32 s{sB}, s2, 7', f's_lshl_b32 s{sB}, s{sB}, 5', 's_lshr_b32 s3, s2, 3', f's_add_u32 s{sB}, s{sB}, s3',
          f's_mul_i32 s{sNB0}, s{sB}, {BN}', f's_sub_u32 s{sNNODE}, {N}, s{sNB0}', f's_min_u32 s{sNNODE}, s{sNNODE}, {BN}',
          f's_lshl_b32 s{sCOL}, s{sB}, 3', f's_add_u32 s{sCOL}, s{sCOL}, {WS_TAB}']
    C += [f's_sub_u32 s{SX}, s4, {3*XP}', f's_subb_u32 s{SX+1}, s5, 0', f's_and_b32 s{SX+1}, s{SX+1}, 0xffff',
          f's_mov_b32 s{SX+2}, {(N*128 + 3*XP) * P.xfrac // 100}', f's_mov_b32 s{SX+3}, 0x20000']
    for d, lo, size in ((SE, 6, E * 32 * P.efrac // 100), (SO, 60, N * 128), (SW, 64, WS_SIZE)):
        C += [f's_mov_b32 s{d}, s{lo}', f's_and_b32 s{d+1}, s{lo+1}, 0xffff', f's_mov_b32 s{d+2}, {size}', f's_mov_b32 s{d+3}, 0x20000']
    C += [f's_movk_i32 s{sXO+j}, {(3-j)*XP}' for j in range(4)]
    C += [f's_movk_i32 s{s128}, 128', f's_mov_b32 s{sLN2}, {NLN2}', f's_mov_b32 s{sLN2+1}, {NLN2}', f's_mov_b64 s[{sBAD}:{sBAD+1}], 0']
    C += [f's_lshl_b32 s{sMAP}, s{sWAVE}, 12', f's_add_u32 s{sMAP}, s{sMAP}, {MAP}']
    C += [f's_lshl_b32 s{sQROW}, s{sWAVE}, 13', f's_add_u32 s{sQROW}, s{sQROW}, {EX}']
    C += [f's_mul_i32 s{sRING0}, s{sWAVE}, {D*SLOT}', f's_add_u32 s{sRING0}, s{sRING0}, {RING}',
          f's_add_u32 s{sRING1}, s{sRING0}, {D*SLOT}', f's_mov_b32 s{sSLOT}, s{sRING0}']
    C += ['v_and_b32 v16, 7, v2', 'v_lshrrev_b32 v18, 5, v2', 'v_xor_b32 v16, v16, v18', f'v_lshlrev_b32 v{vCX}, 4, v16']
    C += ['v_and_b32 v17, 1, v2', f'v_lshlrev_b32 v{vCE}, 4, v17']
    C += ['v_bfe_u32 v16, v2, 1, 2', f'v_mul_u32_u24 v16, {XP}, v16', 'v_bfe_u32 v20, v2, 3, 2', 'v_lshl_add_u32 v16, v20, 7, v16',
          'v_lshl_add_u32 v16, v17, 9, v16', 'v_xor_b32 v20, v17, v18', f'v_lshl_add_u32 v{vBX0}, v20, 4, v16']
    C += ['v_bfe_u32 v16, v2, 1, 4', 'v_lshl_add_u32 v16, v17, 4, v16', 'v_lshlrev_b32 v16, 5, v16', 'v_lshl_add_u32 v16, v18, 4, v16',
          f'v_add_u32 v{vBE0}, {4*XP}, v16']
    C += ['v_lshrrev_b32 v16, 3, v2', f'v_lshl_add_u32 v{vAX}, v16, 4, s{sQROW}']
    C += ['v_lshrrev_b32 v16, 1, v2', f'v_lshl_add_u32 v{vAE}, v16, 2, s{sQROW}']
    C += ['v_and_b32 v16, 31, v2', 'v_lshlrev_b32 v16, 2, v16', 'v_lshl_add_u32 v16, v18, 12, v16', f'v_add_u32 v25, s{sQROW}, v16']
    C += [f'v_add_u32 v24, s{sNB0}, v0', f'v_cmp_gt_u32 vcc, {BN}, v0', f'v_cmp_gt_u32 {mNN}, s{sNNODE}, v0', f's_mov_b64 {mBN}, vcc']
    C += ['v_lshlrev_b32 v19, 2, v2', 'v_lshlrev_b32 v14, 3, v2', 'v_lshlrev_b32 v30, 11, v0', f'v_mul_u32_u24 v31, {CH}, v0']
    C += [f's_mul_i32 s3, s2, {CH*32}', 'v_lshl_add_u32 v22, v0, 7, s3', f's_add_u32 s3, s3, {3072*32}', f'v_lshl_add_u32 v{vRec+25}, v0, 5, s3',
          'v_mov_b32 v23, 0x1000000', f's_mov_b32 s55, {MAGIC}', 's_movk_i32 s56, -49', 's_movk_i32 s57, 335', 's_mov_b32 s58, 0x1c0000']
    C += [f'v_add_u32 v{vRec+2*i+1}, {((i>>2)*1024 + (i&3))*32}, v22' for i in range(12)]
    while init or C:
        if init: a(init.pop(0))
        for x in C[:6]: a(x)
        C = C[6:]
    if epre: a(f's_mul_i32 s3, s2, {CH*32}'); a(f's_add_u32 s3, s3, {CH*32-128}'); a('v_mov_b32 v125, s3')
    n0 = warm(0)
    a('s_waitcnt lgkmcnt(0)')
    a('s_barrier')
    tagload = lambda: a('global_load_dwordx2 v[16:17], v12, s[62:63] sc1')
    def tagcheck():
        a(f'v_readfirstlane_b32 s{sTAG}, v16'); a(f'v_readfirstlane_b32 s{sTAG8}, v17')
        a(f's_cmp_eq_u32 s{sTAG}, 0')
    a(f's_cmp_ge_u32 s2, {NCH}'); a('s_cbranch_scc1 L_prep_store')
    a(f's_waitcnt vmcnt({5+n0})')
    stamp(2)
    tagload()
    n1 = warm(1)
    for i in range(13): a(f'v_mul_u32_u24 v{vB+i}, s55, v{vDs+i}')
    for i in range(13): a(f'v_lshlrev_b32_sdwa v{vB+i}, 2, v{vB+i} {SDWA}BYTE_3')
    for i in range(13):
        if i == 12: a(f's_mov_b64 exec, {mLO}')
        a(f'ds_add_rtn_u32 v{vRk+i}, v{vB+i}, v13 offset:{HB}')
    a('s_mov_b64 exec, -1')
    for i in range(13): a(f'v_mad_i32_i24 v{vDs+i}, v{vB+i}, s56, v{vDs+i}')
    a(f's_waitcnt vmcnt({1+n0+n1})')
    for i in range(13): a(f'v_mad_u32_u24 v{vRec+2*i}, v{vSr+i}, s57, v23')
    a('s_waitcnt lgkmcnt(0)')
    a('s_barrier')
    a(f'ds_read_b128 v[26:29], v9 offset:{HB}')
    a(f'ds_write_b32 v15, v11 offset:{TT}')
    F = []
    for i in range(13): F.append(f'v_lshrrev_b32 v{vRec+2*i}, 4, v{vRec+2*i}')
    for i in range(13): F.append(f'v_and_or_b32 v{vRec+2*i}, v{vRec+2*i}, s58, v{vSr+i}')
    for i in range(13): F.append(f'v_lshl_add_u32 v{vRec+2*i}, v{vDs+i}, 20, v{vRec+2*i}')
    for x in F[:20]: a(x)
    a('s_waitcnt lgkmcnt(1)')
    a('v_add_u32 v5, v26, v27'); a('v_add_u32 v6, v5, v28'); a('v_add_u32 v7, v6, v29')
    a('v_mov_b32 v3, v7')
    wave_scan(a, 3, F[20:32])
    a('v_sub_u32 v4, v3, v7'); a('v_add_u32 v7, v4, v6'); a('v_add_u32 v6, v4, v5'); a('v_add_u32 v5, v4, v26')
    a(f'ds_write_b128 v9, v[4:7] offset:{START}')
    for i in range(13): a(f'ds_read_b32 v{vB+i}, v{vB+i} offset:{START}')
    for x in F[32:]: a(x)
    a('v_lshlrev_b32 v10, 16, v10')
    a('v_mul_f32 v10, s34, v10')
    a(f's_mov_b32 s3, {STAGE // 8}')
    for i in range(13): a(f'v_add_u32 v{vRk+i}, s3, v{vRk+i}')
    a('s_waitcnt lgkmcnt(0)')
    for i in range(13): a(f'v_add_lshl_u32 v{vB+i}, v{vB+i}, v{vRk+i}, 3')
    for i in range(13):
        if i == 12: a(f's_mov_b64 exec, {mLO}')
        a(f'ds_write_b64 v{vB+i}, {R("v", vRec+2*i, 2)}')
    a('s_mov_b64 exec, -1')
    a(f'ds_write_b32 v15, v10 offset:{B1T}')
    a(f'v_add_u32 v3, {STAGE}, v21')
    a(f's_mul_i32 s3, s2, {CH*8}')
    for i in range(4): a(f'v_lshl_or_b32 v{26+i}, v{26+i}, 12, v{4+i}')
    a(f's_cmp_eq_u32 s{sWAVE}, 0')
    a('s_cselect_b64 s[56:57], -1, 0')
    a('s_waitcnt lgkmcnt(0)')
    a('s_barrier')
    for i in range(7): a(f'ds_read_b128 {R("v", 32+4*i, 4)}, v3 offset:{4096*i}')
    for i in range(7):
        a(f's_waitcnt lgkmcnt({6-i})')
        if i == 6: a('s_mov_b64 exec, s[56:57]')
        a(f'buffer_store_dwordx4 {R("v", 32+4*i, 4)}, v21, {srdn(SW)}, s3 offen sc1')
        if i < 6: a('s_add_u32 s3, s3, 4096')
    a('s_mov_b64 exec, -1')
    a.label('L_publish')
    stamp(3)
    a('v_min_u32 v3, 5, v2')
    a(f'v_add_u32 v3, {NCH}, v3')
    a('v_lshlrev_b32 v20, 11, v3')
    wload = lambda: a(f'buffer_load_dwordx2 v[122:123], v20, {srdn(SW)}, s{sCOL} offen sc1')
    wload()
    poll('L_ptag', tagload, tagcheck, first_issued=True)
    a(f's_and_b32 s{sTAG8}, s{sTAG8}, 0xff')
    a(f's_lshl_b32 s{sTAG8S}, s{sTAG8}, 24')
    a('s_barrier')
    a(f's_cmp_lg_u32 s{sSLOW}, 0'); a('s_cbranch_scc1 L_nomap')
    a(f's_cmp_lg_u32 s{sWAVE}, 3'); a('s_cbranch_scc1 L_norow')
    if P.force == 2: a('s_cmp_eq_u32 s2, 7'); a('s_cbranch_scc1 L_norow')
    for i in range(4):
        a(f'v_or_b32 v{32+2*i}, s{sTAG8S}, v{26+i}')
        a(f'v_mov_b32 v{33+2*i}, s{sTAG}')
    a('s_lshl_b32 s3, s2, 11'); a(f's_add_u32 s3, s3, {WS_TAB}')
    a('v_lshlrev_b32 v3, 5, v2')
    a(f'buffer_store_dwordx4 v[32:35], v3, {srdn(SW)}, s3 offen sc1')
    a(f'buffer_store_dwordx4 v[36:39], v3, {srdn(SW)}, s3 offen offset:16 sc1')
    a.label('L_norow')
    stamp(4)
    def tcheck(v):
        def f():
            a(f'v_cmp_ne_u32 s[56:57], s{sTAG}, v{v+1}')
            a(f'v_cmp_ne_u32_sdwa vcc, v{v}, s{sTAG8} src0_sel:BYTE_3 src1_sel:DWORD')
            a('s_or_b64 vcc, vcc, s[56:57]')
        return f
    tcheck(122)()
    a('s_cbranch_scc0 L_pw_ok')
    poll('L_pw', wload, tcheck(122))
    a(f's_mul_i32 s3, s{sWAVE}, {13*1024}')
    a(f's_add_u32 s35, s3, {WS_W}')
    a(f's_add_u32 m0, s3, {WST}')
    for i in range(13):
        if i and i % 4 == 0: a('s_add_u32 m0, m0, 4096'); a('s_add_u32 s35, s35, 4096')
        a(f'buffer_load_dwordx4 v9, {srdn(SW)}, s35 offen offset:{(i%4)*1024} sc1 lds')
    poll('L_pt', lambda: a(f'buffer_load_dwordx2 v[16:17], v30, {srdn(SW)}, s{sCOL} offen sc1'), tcheck(16))
    stamp(5)
    warm(2)
    a('v_bfe_u32 v17, v16, 12, 12')
    a('v_and_b32 v16, 0xfff, v16')
    a('v_mov_b32 v18, v17')
    wave_scan(a, 18, ['v_add_u32 v16, v16, v31', 'v_cmp_lt_u32 s[56:57], 16, v17', 'v_cmp_lt_u32 s[58:59], 8, v17',
                      'v_cmp_lt_u32 s[60:61], 0, v17', 'v_cmp_lt_u32 vcc, 24, v17', f'v_mov_b32 v4, {DUMMY}', f'v_add_u32 v20, s{sMAP}, v19'])
    a('v_sub_u32 v3, v18, v17')
    a('v_readlane_b32 s3, v18, 63')
    a('v_sub_u32 v16, v16, v3')
    a(f'v_lshl_add_u32 v18, v3, 2, s{sMAP}')
    a('v_lshlrev_b32 v16, 3, v16')
    a(f's_cmp_gt_u32 s3, {NSLOT*64}')
    a(f's_cselect_b32 s{sSLOW}, 1, s{sSLOW}')
    a(f's_cmp_lg_u32 s{sSLOW}, 0'); a('s_cbranch_scc1 L_nomap')
    a('v_lshl_add_u32 v3, s3, 2, v20')
    for m, j0 in (('s[56:57]', 16), ('s[58:59]', 8), ('s[60:61]', 0)):
        a(f's_mov_b64 exec, {m}')
        for j in range(j0 + 7, j0 - 1, -1): a(f'ds_write_b32 v18, v16 offset:{4*j}')
    a('s_mov_b64 exec, -1')
    a('ds_write_b32 v3, v4')
    a('s_cbranch_vccz L_nomap')
    a.label('L_map')
    for j in range(24, 28):
        a(f'v_cmpx_lt_u32 vcc, {j}, v17')
        a(f'ds_write_b32 v18, v16 offset:{4*j}')
    a('v_add_u32 v18, 16, v18')
    a('v_subrev_u32 v17, 4, v17')
    a('s_cbranch_execnz L_map')
    a('s_mov_b64 exec, -1')
    a.label('L_nomap')
    vR, vI, vK, vP = 32, 64, 80, 96
    a(f'v_add_u32 v20, s{sMAP}, v19')
    for i in range(NSLOT): a(f'ds_read_b32 v{vI+i}, v20 offset:{256*i}')
    a('s_movk_i32 s3, 4096')
    for lo, hi in ((0, 5), (5, 10), (10, 15)):
        a(f's_waitcnt lgkmcnt({NSLOT-hi})')
        for i in range(lo, hi): a(f'v_add_u32 v{vI+i}, v{vI+i}, v14')
        for i in range(lo, hi):
            a(f'buffer_load_dwordx2 {R("v", vR+2*i, 2)}, v{vI+i}, {srdn(SW)}, {"s3" if i >= 8 else "0"} offen offset:{512*(i%8)} sc1')
    a('v_lshlrev_b32 v29, 7, v24')
    a(f'buffer_load_dword a{aJUNK}, v29, {srdn(SX)}, s{sXO} offen')
    n3 = warm(3)
    a(f'v_add_u32 v3, {WST}, v9')
    stamp(6)
    a('s_barrier')
    for i in range(52): a(f'ds_read_b128 {R("a", 4*i, 4)}, v3 offset:{1024*i}')
    for lo, hi in ((0, 6), (6, 11), (11, 15)):
        a(f's_waitcnt vmcnt({NSLOT-hi+1+n3})')
        for i in range(lo, hi): a(f'v_lshrrev_b32 v{vI+i}, 16, v{vR+2*i}')
        if lo == 11:
            for i in range(lo, hi): a(f'v_cmp_ne_u32 s[{58+2*(i-lo)}:{59+2*(i-lo)}], 0, v{vI+i}')
        for i in range(lo, hi):
            if lo == 11: a(f's_mov_b64 exec, s[{58+2*(i-lo)}:{59+2*(i-lo)}]')
            a(f'ds_add_rtn_u32 v{vK+i}, v{vI+i}, v13 offset:{CNT}')
    if 4 in epre: a('s_mov_b64 exec, -1'); warm(4)
    a(f's_mov_b64 exec, {mBN}')
    a('s_waitcnt lgkmcnt(0)')
    a('s_barrier')
    stamp(7)
    a(f'ds_read_b128 v[4:7], v21 offset:{CNT + 16}')
    a('s_waitcnt lgkmcnt(0)')
    a('v_add_u32 v5, v4, v5'); a('v_add_u32 v6, v5, v6'); a('v_add_u32 v16, v6, v7')
    a('v_min_u32 v17, 63, v16')
    a('v_sub_u32 v17, 63, v17')
    a('v_lshlrev_b32 v17, 2, v17')
    a(f'ds_add_rtn_u32 v18, v17, v13 offset:{HIST}')
    a('v_sub_u32 v26, v16, v4'); a('v_sub_u32 v27, v16, v5'); a('v_sub_u32 v28, v16, v6')
    a('v_lshrrev_b32 v23, 1, v16')
    a('v_lshl_or_b32 v23, v23, 16, v24')
    a('v_or_b32 v23, 0xc00000, v23')
    a('s_mov_b64 exec, -1')
    a('s_waitcnt lgkmcnt(0)')
    a('s_barrier')
    a(f'ds_read_b32 v20, v19 offset:{HIST}')
    a(f'v_mov_b32 v3, {(32768 - 4) << 16}')
    a(f'ds_write_b32 v12, v3 offset:{CNT}')
    a('s_waitcnt lgkmcnt(1)')
    a('v_mov_b32 v3, v20')
    wave_scan(a, 3)
    a('v_sub_u32 v20, v3, v20')
    a('ds_bpermute_b32 v20, v17, v20')
    a(f's_mov_b64 exec, {mNN}')
    a('s_waitcnt lgkmcnt(0)')
    a('v_add_lshl_u32 v20, v20, v18, 2')
    a(f'ds_read_b32 v22, v20 offset:{TT}')
    a('s_waitcnt lgkmcnt(0)')
    a('v_and_b32 v3, 0x10000000, v22')
    a('v_lshlrev_b32 v29, 16, v22')
    a('v_cmp_ne_u32 vcc, 0, v3')
    a('v_bfe_u32 v3, v22, 6, 1')
    a('v_add_u32 v16, v16, v3')
    a('v_cndmask_b32 v7, v6, v12, vcc'); a('v_cndmask_b32 v6, v5, v28, vcc')
    a('v_cndmask_b32 v5, v4, v27, vcc'); a('v_cndmask_b32 v4, v12, v26, vcc')
    for i in range(4): a(f'v_mad_u32_u24 v{4+i}, v{4+i}, v29, v22')
    a('v_lshrrev_b32 v16, v3, v16')
    a('v_lshrrev_b32 v22, 16, v22')
    a('v_lshl_or_b32 v24, v3, 22, v24')
    a('v_cmp_lt_u32 s[56:57], 30, v16')
    a('v_lshl_or_b32 v24, v16, 16, v24')
    a('v_cmp_ne_u32 vcc, 0, v3')
    a(f'ds_write_b128 v21, v[4:7] offset:{CNT + 16}')
    a(f'ds_write_b32 v22, v24 offset:{EX - 128}')
    a('s_mov_b64 exec, vcc')
    a(f'ds_write_b32 v22, v23 offset:{EX - 64}')
    a(f's_or_b32 s56, s56, s{sSLOW}')
    a('s_mov_b64 exec, s[56:57]')
    a(f'ds_write_b32 v12, v13 offset:{FLAG}')
    a('s_mov_b64 exec, -1')
    a('s_waitcnt lgkmcnt(0)')
    a('s_barrier')

    ell_read = [f'ds_read_b128 {R("v", vEX, 4)}, v{vAX}', f'ds_read_b32 v{vEE}, v{vAE} offset:{EE-EX}']
    jump = [f's_sub_u32 s{sJ}, s{sJ}, 1', f's_cselect_b32 s{sINC}, s{sJUMP}, s{s128}']
    ell_adv = [f'v_add_u32 v{vAX}, s{sINC}, v{vAX}', f'v_add_u32 v{vAE}, s{sINC}, v{vAE}']
    xaddr = [f'v_mad_u32_u16 v{vEX+j}, v{vEX+j}, s{s128}, v{vCX}' for j in range(4)]
    eaddr = f'v_add_u32 v{vEE}, v{vEE}, v{vCE}'
    m0x = f's_mov_b32 m0, s{sSLOT}'; m0e = f's_add_u32 m0, s{sSLOT}, {4*XP}'
    dmax = [f'buffer_load_dwordx4 v{vEX+j}, {srdn(SX)}, s{sXO+j} offen offset:{j*XP}{P.pol_x} lds' for j in range(4)]
    dmae = f'buffer_load_dwordx4 v{vEE}, {srdn(SE)}, 0 offen{P.pol_e} lds'
    adv = [f's_add_u32 s{sSLOT}, s{sSLOT}, {SLOT}', f's_cmp_eq_u32 s{sSLOT}, s{sRING1}', f's_cselect_b32 s{sSLOT}, s{sRING0}, s{sSLOT}']
    baddr = [f'v_add_u32 v{vBX}, s{sSLOT}, v{vBX0}', f'v_add_u32 v{vBE}, s{sSLOT}, v{vBE0}']
    bread = [f'ds_read_b128 {R("a", aBX+4*k, 4)}, v{vBX} offset:{32*k}' for k in range(4)] + [f'ds_read_b128 {R("a", aBE, 4)}, v{vBE}']
    PFa = [m0x] + xaddr + [eaddr] + dmax + [m0e] + [adv[0]] + [dmae] + adv[1:]
    PFb = ell_read + jump + ell_adv
    PF = PFa + PFb + baddr

    a(f'ds_read_b32 v16, v12 offset:{FLAG}')
    for i in range(NSLOT - 1): a(f'ds_read_b32 v{vP+i}, v{vI+i} offset:{CNT}')
    a(f's_waitcnt lgkmcnt({NSLOT - 6})')
    a(f'ds_read_b32 v{vP+NSLOT-1}, v{vI+NSLOT-1} offset:{CNT}')
    a('ds_read_b32 v17, v25')
    for x in ell_read: a(x)
    a('v_readfirstlane_b32 s3, v16')
    a('s_cmp_lg_u32 s3, 0'); a('s_cbranch_scc1 L_slow')
    for lo, hi in ((0, 5), (5, 10), (10, 15)):
        if lo: a(f's_waitcnt lgkmcnt({NSLOT - hi + 3 if hi < NSLOT else 0})')
        for i in range(lo, hi): a(f'v_mul_u32_u24_sdwa v{vK+i}, v{vK+i}, v{vP+i} {SDWA}WORD_0')
        for i in range(lo, hi): a(f'v_add_u32_sdwa v{vP+i}, v{vK+i}, v{vP+i} {SDWA}WORD_1')
    for i in range(NSLOT):
        if i >= 11: a(f's_mov_b64 exec, s[{58+2*(i-11)}:{59+2*(i-11)}]')
        a(f'ds_write2st64_b32 v{vP+i}, v{vR+2*i}, v{vR+2*i+1} offset0:{EX//256} offset1:{EE//256}')
    a('s_mov_b64 exec, -1')
    a('v_bfe_u32 v17, v17, 16, 6')
    for x in PFa: a(x)
    for sh in (1, 2, 4, 8): a(f'v_max_u32_dpp v17, v17, v17 row_shr:{sh} row_mask:0xf bank_mask:0xf bound_ctrl:0')
    a('v_max_u32_dpp v17, v17, v17 row_bcast:15 row_mask:0xa bank_mask:0xf')
    a(f'v_add_u32 v{vAX}, 128, v{vAX}'); a(f'v_add_u32 v{vAE}, 128, v{vAE}')
    a(f'v_readlane_b32 s{sL}, v17, 31')
    a(f'v_readlane_b32 s{sLNEXT}, v17, 63')
    a('s_waitcnt lgkmcnt(0)')
    a('s_barrier')
    stamp(8)
    for x in ell_read: a(x)
    a(f's_max_u32 s{sL}, s{sL}, 1')
    a(f's_max_u32 s{sLNEXT}, s{sLNEXT}, 1')
    a(f's_lshl_b32 s3, s{sL}, 7')
    a(f's_sub_u32 s{sJUMP}, 4096, s3')
    a(f's_sub_u32 s{sJ}, s{sL}, 1')
    for x in jump + ell_adv: a(x)
    if P.stamp: a(f's_mov_b32 s{88+9}, 0'); a(f's_mov_b32 s{88+10}, 0')
    for r in range(1, D):
        a('s_waitcnt lgkmcnt(0)')
        for x in PF: a(x)

    a.label('L_group')
    a(f'v_lshrrev_b32 v{vE+1}, 3, v{vBE0}')
    a(f'v_and_b32 v{vE}, 16, v{vBE0}')
    a(f'v_and_b32 v{vE+1}, -4, v{vE+1}')
    a(f'v_lshlrev_b32 v{vE}, 4, v{vE}')
    a(f's_sub_u32 s3, s{sQROW}, {4*XP//8}')
    a(f'v_add_u32 v{vE+1}, s3, v{vE+1}')
    a(f'ds_read_b32 v{vINFO}, v{vE+1}')
    for i in range(16): a(f'ds_read_b128 {R("v", vQ+4*i, 4)}, v{vE} offset:{B1T + 16*i}')
    a(f's_waitcnt vmcnt({VW})')
    for x in bread[:4]: a(x)
    a('s_waitcnt lgkmcnt(0)')
    pf = list(PF)
    for k in range(4):
        for c in range(4):
            a(mfma(R('v', vQ+16*c, 16), R('a', aW1B + (c*4+k)*4, 4), R('a', aBX+4*k, 4), R('v', vQ+16*c, 16)))
            for x in pf[:2]: a(x)
            pf = pf[2:]
    assert not pf
    a(f's_waitcnt vmcnt({VW})')
    for x in bread: a(x)
    a(f'v_bfe_u32 v{vDEG}, v{vINFO}, 16, 6')
    a(f's_add_u32 s{sQROW}, s{sQROW}, 4096')
    a(f's_mov_b32 s{sT}, 1')
    if P.stamp:
        a(f's_cmp_lg_u32 s{88+9}, 0'); a('s_cbranch_scc1 L_st9'); stamp(9); a.label('L_st9')
    a('s_waitcnt lgkmcnt(0)')
    pf = list(PF)
    for k in range(5):
        a(m1(0, k, vN, vQ))
        n = 3 if k < 4 else 99
        for x in pf[:n]: a(x)
        pf = pf[n:]
    for c in range(4):
        cn = (c + 1) & 3
        if c == 3: a('s_waitcnt lgkmcnt(0)')
        for k in range(5):
            a(m1(cn, k, vN + 16*cn if c < 3 else vY, vQ + 16*cn))
            if c == 2:
                if k == 0: a(f's_waitcnt vmcnt({VW})')
                a(bread[k])
            for i in range(3*k, 3*k + (3 if k < 4 else 4)): a(f'v_exp_f32 v{vD+16*c+i}, v{vN+16*c+i}')
        for p in range(8):
            d = R('v', vD + 16*c + 2*p, 2)
            a(f'v_pk_add_f32 {d}, {d}, 1.0 op_sel_hi:[1,0]')
    a(f's_cmp_ge_u32 s{sT}, s{sL}'); a('s_cbranch_scc1 L_flush')
    a(m0x)
    a(m1(1, 0, vY + 16, vQ + 16))
    a('.p2align 3')
    a.label('L_row')
    for c in range(4):
        cn = (c + 1) & 3
        y = vY + 16 * (c & 1); yn = vY + 16 * (cn & 1)
        S = [[] for _ in range(5)]
        V = [[] for _ in range(5)]
        if c == 0:
            S[1] = ['s_mov_b64 exec, -1']; V[1] = xaddr[:2]
            S[2] = [jump[0]]; V[2] = xaddr[2:]
            S[3] = [jump[1]]; V[3] = [eaddr]
            V[4] = dmax + [m0e, ell_read[0], dmae, ell_read[1]] + ell_adv + [f'v_cmpx_lt_u32 vcc, s{sT}, v{vDEG}']
        if c == 1:
            S[0] = [adv[0]]; S[1] = [adv[1]]; S[2] = [adv[2]]
            S[3] = [f's_add_u32 s{sT}, s{sT}, 1']
            V[4] = baddr
        if c == 2:
            for k in range(5): S[k] = [bread[k]]
            S[0].insert(0, f's_waitcnt vmcnt({VW})')
            S[4].insert(0, 's_waitcnt lgkmcnt(3)')
        if c == 3:
            S[0] = ['s_waitcnt lgkmcnt(0)']
            S[1] = [f's_cmp_lt_u32 s{sT}, s{sL}']
            S[2] = [m0x]
        L = []
        for k in range(5):
            if (c, k) != (0, 0): L.append(m1(cn, k, yn, vQ + 16*cn))
            L += S[k]
            for i in range(3*k, 3*k + (3 if k < 4 else 4)): L.append(f'v_exp_f32 v{vE+i}, v{y+i}')
            L += V[k]
        if sum(isize(x) for x in L) % 8:
            i = max(i for i, x in enumerate(L) if x.startswith('v_exp_f32 '))
            L[i] = L[i].replace('v_exp_f32 ', 'v_exp_f32_e64 ')
        for x in L: a(x)
        for p in range(8):
            yy, nn, dd, ee = R('v', y+2*p, 2), R('v', vN+16*c+2*p, 2), R('v', vD+16*c+2*p, 2), R('v', vE+2*p, 2)
            a(f'v_pk_fma_f32 {yy}, {yy}, {dd}, {nn}')
            a(f'v_pk_fma_f32 {dd}, {dd}, {ee}, {dd}')
            a(f'v_pk_fma_f32 {nn}, {nn}, {ee}, {yy}')
    a(m1(1, 0, vY + 16, vQ + 16))
    a('s_cbranch_scc1 L_row')
    a.label('L_flush')
    if P.stamp:
        a(f's_cmp_lg_u32 s{88+10}, 0'); a('s_cbranch_scc1 L_st10'); stamp(10); a.label('L_st10')
        stamp(11)
    a('s_mov_b64 exec, -1')
    for x in baddr: a(x)
    a(f'v_and_b32 v{vQ+32}, 16, v{vBE0}')
    a(f'v_lshlrev_b32 v{vQ+33}, 3, v{vQ+32}')
    for i in range(8): a(f'ds_read_b128 {R("v", vQ+4*i, 4)}, v{vQ+33} offset:{B2T + 16*i}')
    a(f'v_lshlrev_b32 v{vQ+32}, 2, v{vQ+32}')
    a(f'v_mad_u32_u16 v{vQ+32}, v{vINFO}, s{s128}, v{vQ+32}')
    a(f'v_cvt_f32_u32 v{vQ+34}, v{vDEG}')
    a(f'v_mov_b32 v{vMAX}, 0')
    def g3(c, i):
        u = 2*c + (i >> 1); dt = i & 1
        acc = R('v', vY + 16*dt, 16)
        return mfma(acc, R('a', aW2 + (dt*8+u)*4, 4), R('v', vE + 8*(c & 1) + 4*(i >> 1), 4), acc if u else '0')
    for c in range(4):
        for q in range(4):
            if c: a(g3(c-1, q))
            for p in range(2):
                d = vD + 16*c + 4*q + 2*p
                a(f'v_max3_f32 v{vMAX}, v{d}, v{d+1}, v{vMAX}')
                a(f'v_rcp_f32 v{d}, v{d}'); a(f'v_rcp_f32 v{d+1}, v{d+1}')
        for p in range(8):
            nn, dd = R('v', vN+16*c+2*p, 2), R('v', vD+16*c+2*p, 2)
            a(f'v_pk_mul_f32 {nn}, {nn}, {dd}')
        if c == 3:
            a('s_waitcnt lgkmcnt(0)')
            for p in range(16):
                qq = R('v', vQ+2*p, 2)
                a(f'v_pk_mul_f32 {qq}, {qq}, {R("v", vQ+34, 2)} op_sel_hi:[1,0]')
        for p in range(8):
            a(f'v_cvt_pk_bf16_f32 v{vE+8*(c&1)+p}, v{vN+16*c+2*p}, v{vN+16*c+2*p+1}')
    for q in range(4): a(g3(3, q))
    a(f's_mov_b32 s3, {f32(2.0**100)}')
    a(f'v_bfe_u32 v{vQ+33}, v{vINFO}, 22, 2')
    a(f'v_cmp_ne_u32 s[58:59], 0, v{vQ+33}')
    a(f'v_cmp_ne_u32 s[60:61], 3, v{vQ+33}')
    a(f'v_cmpx_ne_u32 vcc, 0, v{vDEG}')
    a(f'v_cmp_lt_f32 s[56:57], s3, v{vMAX}')
    a(f'v_mov_b32 v{vMAX}, 0x207')
    for p in range(16):
        yy, qq = R('v', vY+2*p, 2), R('v', vQ+2*p, 2)
        a(f'v_pk_fma_f32 {qq}, {yy}, s[{sLN2}:{sLN2+1}], {qq}')
    a(f'v_cmp_class_f32 vcc, v{vQ}, v{vMAX}')
    a(f's_or_b64 s[{sBAD}:{sBAD+1}], s[{sBAD}:{sBAD+1}], s[56:57]')
    a('s_mov_b64 exec, s[58:59]')
    a(f's_or_b64 s[{sBAD}:{sBAD+1}], s[{sBAD}:{sBAD+1}], vcc')
    a('s_cbranch_execz L_nopair')
    for i in range(32):
        a(f'v_add_f32_dpp v{vQ+i}, v{vQ+i}, v{vQ+i} quad_perm:[1,0,3,2] row_mask:0xf bank_mask:0xf')
    a.label('L_nopair')
    a('s_mov_b64 exec, s[60:61]')
    for i in range(4):
        for p in range(4*i, 4*i+4): a(f'v_cvt_pk_bf16_f32 v{vE+p}, v{vQ+2*p}, v{vQ+2*p+1}')
        a(f'buffer_store_dwordx4 {R("v", vE+4*i, 4)}, v{vQ+32}, {srdn(SO)}, 0 offen offset:{16*i}{P.pol_out}')
    a('s_mov_b64 exec, -1')
    a(f's_mov_b32 s{sL}, s{sLNEXT}')
    a(f's_mov_b32 s{sLNEXT}, 0')
    a(f's_cmp_lg_u32 s{sL}, 0'); a('s_cbranch_scc1 L_group')
    if P.stamp:
        a('s_waitcnt vmcnt(0)'); stamp(12); stamp(13, True)
        for i in range(14): a(f'v_writelane_b32 v1, s{88+i}, {i}')
        a(f'v_writelane_b32 v1, s{sCNT}, 14')
        a('v_mbcnt_lo_u32_b32 v2, -1, 0'); a('v_mbcnt_hi_u32_b32 v2, -1, v2'); a('v_lshlrev_b32 v2, 2, v2')
        a('s_lshl_b32 s3, s2, 2'); a(f's_add_u32 s3, s3, s{sWAVE}'); a('s_lshl_b32 s3, s3, 6'); a(f's_add_u32 s3, s3, {WS_STAMP}')
        a('s_mov_b64 exec, 0xffff')
        a(f'buffer_store_dword v1, v2, {srdn(SW)}, s3 offen')
        a('s_mov_b64 exec, -1')
    a(f's_cmp_eq_u64 s[{sBAD}:{sBAD+1}], 0')
    a('v_mov_b32 v1, 0'); a('v_mov_b32 v2, 1')
    a('s_cbranch_scc1 L_nobad')
    a(f'ds_write_b32 v1, v2 offset:{FLAG}')
    a.label('L_nobad')
    a('s_waitcnt lgkmcnt(0)')
    a('s_barrier')
    a(f'ds_read_b32 v2, v1 offset:{FLAG}')
    a('s_waitcnt lgkmcnt(0)')
    a('v_readfirstlane_b32 s3, v2')
    a('s_cmp_lg_u32 s3, 0'); a('s_cbranch_scc1 L_slow')
    if P.diag:
        a.label('L_diag')
        a('s_memrealtime s[86:87]'); a('s_waitcnt lgkmcnt(0)')
        a(f's_sub_u32 s86, s86, s{sTAG}'); a(f's_cmp_lt_u32 s86, {P.diag}'); a('s_cbranch_scc1 L_diag')
    a.label('L_end')
    a('s_endpgm')

    a.label('L_prep_load')
    srd(a, SD, 52, 144 * 128 * 2); srd(a, SS, 56, 128 * 64 * 2)
    prep_offsets(a, 2, 26, 27, 28, 29)
    a(f's_sub_u32 s85, s2, {NCH}'); a('s_lshl_b32 s85, s85, 2'); a(f's_add_u32 s85, s85, s{sWAVE}')
    prep_w1_load(a, 85, 26, 32, 34, 35)
    a('s_add_u32 s3, s85, 24'); a('s_min_u32 s3, s3, 35')
    prep_w1_load(a, 3, 26, 40, 34, 35)
    a('s_add_u32 s3, s85, 28'); a('s_max_u32 s3, s3, 36')
    prep_w2_load(a, 3, 27, 48, 34, 35)
    a('s_branch L_setup')
    a.label('L_prep_store')
    a('s_waitcnt vmcnt(0)')
    tagload()
    prep_w1_pack(a, 32); prep_w1_pack(a, 40); prep_w2_pack(a, 48)
    for add, lim, vd in ((0, None, 32), (24, 's_min_u32 s3, s3, 35', 40), (28, 's_max_u32 s3, s3, 36', 48)):
        a(f's_add_u32 s3, s85, {add}')
        if lim: a(lim)
        a('s_lshl_b32 s3, s3, 10'); a(f's_add_u32 s3, s3, {WS_W}')
        a(f'buffer_store_dwordx4 {R("v", vd, 4)}, v9, {srdn(SW)}, s3 offen sc1')
    a('v_lshlrev_b32 v10, 16, v10')
    a('v_mul_f32 v10, s34, v10')
    a(f'ds_write_b32 v15, v10 offset:{B1T}')
    a(f'ds_write_b32 v15, v11 offset:{TT}')
    for i in range(4): a(f'v_mov_b32 v{26+i}, 0')
    a('s_waitcnt lgkmcnt(0)')
    a('s_branch L_publish')

    a.label('L_slow')
    a('s_mov_b64 exec, -1')
    a('s_waitcnt vmcnt(0) lgkmcnt(0)')
    a('s_load_dwordx2 s[52:53], s[0:1], 32')
    a('s_load_dwordx2 s[56:57], s[0:1], 48')
    a('s_load_dwordx4 s[8:11], s[0:1], 16')
    a('s_barrier')
    vL, vS, vH, vT0, vT1, vOA, vD4 = 240, 241, 242, 244, 245, 246, 252
    a(f'v_mbcnt_lo_u32_b32 v{vL}, -1, 0'); a(f'v_mbcnt_hi_u32_b32 v{vL}, -1, v{vL}')
    a(f'v_and_b32 v{vS}, 31, v{vL}')
    a(f'v_lshrrev_b32 v{vH}, 5, v{vL}')
    a(f's_lshl_b32 s3, s{sWAVE}, 10')
    a(f'v_lshl_add_u32 v4, v{vL}, 4, s3')
    for i in range(4): a(f'v_mov_b32 v{i}, 0')
    for i in range(13): a(f'ds_write_b128 v4, v[0:3] offset:{OACC + 4096*i}')
    a('s_waitcnt lgkmcnt(0)')
    srd(a, SD, 52, 144 * 128 * 2); srd(a, SS, 56, 128 * 64 * 2)
    prep_offsets(a, vL, 26, 27, 28, 29)
    a(f'v_add_u32 v4, {WST}, v4')
    a(f's_mov_b32 s85, s{sWAVE}')
    a.label('L_s_w1')
    prep_w1_load(a, 85, 26, 32, 34, 35)
    a('s_waitcnt vmcnt(0)')
    prep_w1_pack(a, 32)
    a('ds_write_b128 v4, v[32:35]')
    a('v_add_u32 v4, 4096, v4')
    a('s_add_u32 s85, s85, 4'); a('s_waitcnt lgkmcnt(0)'); a('s_cmp_lt_u32 s85, 36'); a('s_cbranch_scc1 L_s_w1')
    a.label('L_s_w2')
    prep_w2_load(a, 85, 27, 32, 34, 35)
    a('s_waitcnt vmcnt(0)')
    prep_w2_pack(a, 32)
    a('ds_write_b128 v4, v[32:35]')
    a('v_add_u32 v4, 4096, v4')
    a('s_add_u32 s85, s85, 4'); a('s_waitcnt lgkmcnt(0)'); a('s_cmp_lt_u32 s85, 52'); a('s_cbranch_scc1 L_s_w2')
    a('s_barrier')
    a(f'v_lshlrev_b32 v4, 4, v{vL}'); a(f'v_add_u32 v4, {WST}, v4')
    for i in range(52): a(f'ds_read_b128 {R("a", 4*i, 4)}, v4 offset:{1024*i}')
    srd(a, SD, 10, E * 4); srd(a, SS, 8, E * 4)
    sE0, sJj = 56, 57
    a(f's_lshl_b32 s{sE0}, s{sWAVE}, 9')
    a(f'v_lshlrev_b32 v243, 4, v{vS}')
    a.label('L_s_blk')
    a(f'buffer_load_dwordx4 {R("v", vD4, 4)}, v243, {srdn(SD)}, s{sE0} offen')
    a(f's_mov_b32 s{sJj}, 0')
    a('s_waitcnt vmcnt(0)')
    a.label('L_s_sub')
    a(f'v_subrev_u32 v248, s{sNB0}, v{vD4}')
    a(f'v_cmp_gt_u32 s[60:61], s{sNNODE}, v248')
    a('s_cmp_eq_u64 s[60:61], 0'); a('s_cbranch_scc1 L_s_next')
    a(f's_add_u32 s3, s{sE0}, s{sJj}')
    a(f'buffer_load_dword v{vT0}, v243, {srdn(SS)}, s3 offen')
    a(f'v_lshlrev_b32 v247, 8, v{vH}')
    for i in range(16): a(f'ds_read_b128 {R("v", vQ+4*i, 4)}, v247 offset:{B1T + 16*i}')
    a(f'v_lshlrev_b32 v247, 4, v{vH}')
    a(f'v_add_lshl_u32 v{vT1}, v243, s3, 3')
    a(f'v_add_u32 v{vT1}, v{vT1}, v247')
    a(f'v_lshl_add_u32 v249, v{vD4}, 7, v247')
    a(f'v_mul_u32_u24 v{vOA}, 260, v248')
    a(f'v_lshl_add_u32 v{vOA}, v{vH}, 7, v{vOA}')
    a('s_waitcnt vmcnt(0)')
    a(f'v_lshl_add_u32 v{vT0}, v{vT0}, 7, v247')
    a('s_mov_b64 exec, s[60:61]')
    for k in range(4): a(f'buffer_load_dwordx4 {R("a", aBX+4*k, 4)}, v{vT0}, {srdn(SX)}, s{sXO} offen offset:{32*k}')
    a(f'buffer_load_dwordx4 {R("a", aBE, 4)}, v{vT1}, {srdn(SE)}, 0 offen')
    for k in range(4): a(f'buffer_load_dwordx4 {R("v", vE+4*k, 4)}, v249, {srdn(SX)}, s{sXO} offen offset:{32*k}')
    a('s_waitcnt vmcnt(0) lgkmcnt(0)')
    for c in range(4):
        q = R('v', vQ+16*c, 16)
        for k in range(4): a(mfma(q, R('a', aW1B + (c*4+k)*4, 4), R('v', vE+4*k, 4), q))
        for k in range(5): a(m1(c, k, vQ+16*c, vQ+16*c))
    for i in range(64): a(f'v_exp_f32 v{vD+i}, v{vQ+i}')
    for i in range(64): a(f'v_add_f32 v{vD+i}, 1.0, v{vD+i}')
    for i in range(64): a(f'v_rcp_f32 v{vD+i}, v{vD+i}')
    for i in range(64): a(f'v_mul_f32 v{vD+i}, v{vD+i}, v{vQ+i}')
    for i in range(32): a(f'v_cvt_pk_bf16_f32 v{vN+i}, v{vD+2*i}, v{vD+2*i+1}')
    a(f'v_lshlrev_b32 v247, 7, v{vH}')
    for i in range(8): a(f'ds_read_b128 {R("v", vQ+4*i, 4)}, v247 offset:{B2T + 16*i}')
    for dt in range(2):
        acc = R('v', vY + 16*dt, 16)
        for u in range(8): a(mfma(acc, R('a', aW2 + (dt*8+u)*4, 4), R('v', vN + 4*u, 4), acc if u else '0'))
    a('s_waitcnt lgkmcnt(0)')
    for i in range(32): a(f'v_fma_f32 v{vY+i}, v{vY+i}, s{sLN2}, v{vQ+i}')
    for i in range(32): a(f'ds_add_f32 v{vOA}, v{vY+i} offset:{OACC + 4*i}')
    a('s_mov_b64 exec, -1')
    a('s_waitcnt lgkmcnt(0)')
    a.label('L_s_next')
    for i in range(3): a(f'v_mov_b32 v{vD4+i}, v{vD4+i+1}')
    a(f's_add_u32 s{sJj}, s{sJj}, 4')
    a(f's_cmp_lt_u32 s{sJj}, 16'); a('s_cbranch_scc1 L_s_sub')
    a(f's_add_u32 s{sE0}, s{sE0}, 2048')
    a(f's_cmp_lt_u32 s{sE0}, {E*4}'); a('s_cbranch_scc1 L_s_blk')
    a('s_barrier')
    a(f's_lshl_b32 s3, s{sWAVE}, 1')
    a(f'v_add_u32 v1, s3, v{vH}')
    a.label('L_s_out')
    a(f'v_cmp_gt_u32 vcc, s{sNNODE}, v1')
    a('v_mul_u32_u24 v4, 260, v1')
    a(f'v_lshl_add_u32 v4, v{vS}, 3, v4')
    a(f'v_add_u32 v4, {OACC}, v4')
    a(f'v_add_u32 v5, s{sNB0}, v1')
    a('v_lshlrev_b32 v5, 7, v5')
    a(f'v_lshl_add_u32 v5, v{vS}, 2, v5')
    a('s_and_b64 exec, exec, vcc')
    a('s_cbranch_execz L_s_end')
    a('ds_read2_b32 v[2:3], v4 offset0:0 offset1:1')
    a('s_waitcnt lgkmcnt(0)')
    a('v_cvt_pk_bf16_f32 v2, v2, v3')
    a(f'buffer_store_dword v2, v5, {srdn(SO)}, 0 offen')
    a('v_add_u32 v1, 8, v1')
    a('s_branch L_s_out')
    a.label('L_s_end')
    a('s_endpgm')
    a('.p2align 7')
    a.raw('.type L_table,@object')
    a.label('L_table')
    T = pattern_table()
    for i in range(0, 256, 8): a.raw('.long ' + ', '.join(hex(x) for x in T[i:i+8]))
    a.raw('.size L_table, 1024')
    return a

if __name__ == '__main__':
    for kv in sys.argv[2:]:
        k, v = kv.split('=')
        cur = getattr(P, k)
        setattr(P, k, int(v) if isinstance(cur, int) else (' ' + v.replace('+', ' ') if v else ''))
    k = gen()
    for p in check_all_edges(k): print('HAZARD on branch edge', p, file=sys.stderr)
    print('instrs', sum(1 for x in k.items if not isinstance(x, str)), 'auto nops', k.nops, file=sys.stderr)
    out = open('cdna_kernels/' + NAME + '.s.ref').read().split('; Override launch')[0]
    out += f'; @launch grid=({NB},1,1) block=(256,1,1) lds={lds_bytes()}\n'
    out += '.amdgcn_target "amdgcn-amd-amdhsa--gfx950"\n.text\n'
    out += f'.globl {NAME}_kernel\n.type {NAME}_kernel,@function\n' + k.text()
    out += f'''.section .rodata,"a"
.p2align 6
.amdhsa_kernel {NAME}_kernel
  .amdhsa_next_free_vgpr 512
  .amdhsa_next_free_sgpr 102
  .amdhsa_accum_offset 256
  .amdhsa_group_segment_fixed_size 0
  .amdhsa_kernarg_size 88
  .amdhsa_user_sgpr_count 2
  .amdhsa_user_sgpr_kernarg_segment_ptr 1
  .amdhsa_system_sgpr_workgroup_id_x 1
.end_amdhsa_kernel
'''
    open(sys.argv[1], 'w').write(out)
```

```python
import sys, struct
from asmlib import Asm, Ins, check_all_edges

NAME = 'standalone__edge_featured_mpnn_mpnn__graph'
N, E = 50000, 800000
NB, BN = 256, 196
NCH, CH = 250, 3200
MAGIC = 85599
WS_REC, WS_TAB, WS_W = 0, 8 << 20, 9 << 20
WS_SIZE = 10 << 20
WS_STAMP = (9 << 20) + (512 << 10)
DUMMY = 0x4000FFFF
def f32(x): return struct.unpack('<I', struct.pack('<f', x))[0]
NLOG2E = f32(-1.4426950408889634)
NLN2 = f32(-0.6931471805599453)

class P:
    depth = 3
    stamp = 0
    efrac = 100
    xfrac = 100
    limit = 3000
    estr = 128
    srcpos = 8
    epre = ' 1344'
    diag = 0
    force = 0
    pol_in = ' nt'
    pol_e = ''
    pol_x = ''
    pol_out = ''

CNT, HIST, FLAG = 0, 3328, 3584
HB, START, B1T, B2T, TT = 4096, 5120, 6144, 6656, 7168
EX, EE = 8192, 40960
RING = 73728
NSLOT = 15
MAP = RING
WST = MAP + 16384
STAGE = WST
XP = 1056
SLOT = 4 * XP + 1024
OACC = 8192
def lds_bytes(): return max(RING + 4 * P.depth * SLOT, WST + 52 * 1024)

PATTERN = [(0, 0, 'H', 1), (2, 0, 'H', 2), (3, 0, 'H', 2), (3, 1, 'H', 16), (2, 1, 'H', 9), (0, 0, 'S', 30),
           (1, 1, 'H', 14), (1, 0, 'S', 32), (2, 0, 'S', 28), (3, 0, 'S', 28), (0, 1, 'H', 16), (2, 1, 'S', 14), (1, 1, 'S', 4)]
def pattern_table():
    free = {(w, ph): list(range(32)) for w in range(4) for ph in range(2)}
    T = [None] * BN; p = 0; segs = []
    for w, ph, t, n in PATTERN: segs.append((w, ph, t, p, n)); p += n
    assert p == BN
    for t0 in 'HS':
        for w, ph, t, p0, n in segs:
            if t != t0: continue
            for i in range(n):
                pos = free[(w, ph)].pop(0)
                if t == 'H': assert pos < 16; free[(w, ph)].remove(pos + 16)
                T[p0 + i] = (((w * 2 + ph) * 4096 + pos * 4 + 128) << 16) | (64 if t == 'H' else 128)
    assert all(not v for v in free.values())
    return T + [128] * (256 - BN)

vN, vD, vQ, vY, vE = 0, 64, 128, 192, 224
vEX, vEE, vAX, vAE, vCX, vCE, vBX0, vBE0, vBX, vBE, vINFO, vDEG, vMAX = 240, 244, 245, 246, 247, 248, 249, 250, 251, 252, 253, 254, 255
aW1A, aW1C, aW1B, aW2, aBX, aBE, aJUNK = 0, 64, 80, 144, 208, 224, 228
SX, SE, SW, SO, SD, SS = 12, 16, 20, 24, 68, 72
sB, sNB0, sNNODE, sWAVE, sMAP, sCOL = 28, 29, 30, 31, 32, 33
sXO = 36
s128, sSLOT, sRING0, sRING1, sT, sL, sLNEXT, sQROW = 40, 41, 42, 43, 44, 45, 46, 47
sLN2, sBAD = 48, 50
sJ, sJUMP, sINC = 52, 53, 54
sSLOW, sCNT = 66, 67
mLO, mBN, mNN = 's[76:77]', 's[78:79]', 's[80:81]'
sTAG, sTAG8, sTAG8S = 82, 83, 84
def R(p, b, n): return f'{p}[{b}:{b+n-1}]'
def srdn(s): return f's[{s}:{s+3}]'
SDWA = 'dst_sel:DWORD dst_unused:UNUSED_PAD src0_sel:DWORD src1_sel:'

def srd(a, d, lo, size):
    a(f's_mov_b32 s{d}, s{lo}'); a(f's_and_b32 s{d+1}, s{lo+1}, 0xffff')
    a(f's_mov_b32 s{d+2}, {size}'); a(f's_mov_b32 s{d+3}, 0x20000')
def wave_scan(a, v, fill=()):
    fill = list(fill)
    steps = [f'row_shr:{sh} row_mask:0xf bank_mask:0xf bound_ctrl:0' for sh in (1, 2, 4, 8)]
    steps += ['row_bcast:15 row_mask:0xa bank_mask:0xf', 'row_bcast:31 row_mask:0xc bank_mask:0xf']
    for s in steps:
        for x in fill[:2]: a(x)
        fill = fill[2:]
        a(f'v_add_u32_dpp v{v}, v{v}, v{v} {s}')
    for x in fill: a(x)
def mfma(d, A, B, C): return f'v_mfma_f32_32x32x16_bf16 {d}, {A}, {B}, {C}'
def m1(c, k, dst, first_c):
    A = R('a', aW1A + (c * 4 + k) * 4, 4) if k < 4 else R('a', aW1C + c * 4, 4)
    B = R('a', aBX + k * 4, 4) if k < 4 else R('a', aBE, 4)
    return mfma(R('v', dst, 16), A, B, R('v', first_c if k == 0 else dst, 16))
def isize(x):
    op = x.split()[0]
    if op.startswith(('v_mfma', 'v_pk_', 'buffer_', 'ds_', 'global_', 'v_mad_', 'v_max3', 'v_cvt_pk', 'v_lshl_add', 'v_bfe')) or op.endswith(('_e64', '_dpp', '_sdwa')): return 8
    for t in x.replace(',', ' ').split()[1:]:
        try: v = int(t, 0)
        except ValueError: continue
        if not -16 <= v <= 64 and not op.startswith(('s_movk', 's_waitcnt', 's_nop')): return 8
    return 4

def prep_offsets(a, vl, v1, v2, t0, t1):
    a(f'v_and_b32 v{t0}, 31, v{vl}'); a(f'v_lshrrev_b32 v{t1}, 5, v{vl}')
    a(f'v_lshlrev_b32 v{v1}, 11, v{t1}'); a(f'v_lshl_add_u32 v{v1}, v{t0}, 1, v{v1}')
    a(f'v_lshlrev_b32 v{v2}, 9, v{t1}')
    a(f'v_bfe_u32 v{t1}, v{t0}, 2, 1'); a(f'v_lshl_add_u32 v{v2}, v{t1}, 6, v{v2}')
    a(f'v_and_b32 v{t1}, 3, v{t0}'); a(f'v_lshl_add_u32 v{v2}, v{t1}, 1, v{v2}')
    a(f'v_lshrrev_b32 v{t1}, 3, v{t0}'); a(f'v_lshl_add_u32 v{v2}, v{t1}, 3, v{v2}')
def prep_w1_load(a, sidx, voff, vd, s0, s1):
    a(f's_and_b32 s{s0}, s{sidx}, 3'); a(f's_lshr_b32 s{s1}, s{sidx}, 2')
    a(f's_cmp_eq_u32 s{s1}, 4')
    a(f's_cselect_b32 s{s1}, s{s0}, s{s1}'); a(f's_cselect_b32 s{s0}, 8, s{s0}')
    a(f's_lshl_b32 s{s0}, s{s0}, 12'); a(f's_lshl_b32 s{s1}, s{s1}, 6'); a(f's_add_u32 s{s0}, s{s0}, s{s1}')
    a(f's_cmp_ge_u32 s{sidx}, 20'); a(f's_cselect_b32 s{s1}, {64*256 - 5*64}, 0'); a(f's_add_u32 s{s0}, s{s0}, s{s1}')
    for j in range(8): a(f'buffer_load_ushort v{vd+j}, v{voff}, {srdn(SD)}, s{s0} offen offset:{256*j}')
def prep_w2_load(a, sidx, voff, vd, s0, s1):
    a(f's_sub_u32 s{s0}, s{sidx}, 36'); a(f's_lshr_b32 s{s1}, s{s0}, 3'); a(f's_and_b32 s{s0}, s{s0}, 7')
    a(f's_lshl_b32 s{s0}, s{s0}, 11'); a(f's_lshl_b32 s{s1}, s{s1}, 5'); a(f's_add_u32 s{s0}, s{s0}, s{s1}')
    for j in range(8): a(f'buffer_load_ushort v{vd+j}, v{voff}, {srdn(SS)}, s{s0} offen offset:{128*((j&3)+8*(j>>2))}')
def prep_w1_pack(a, vd):
    for j in range(8): a(f'v_lshlrev_b32 v{vd+j}, 16, v{vd+j}')
    for j in range(8): a(f'v_mul_f32 v{vd+j}, {NLOG2E}, v{vd+j}')
    for j in range(4): a(f'v_cvt_pk_bf16_f32 v{vd+j}, v{vd+2*j}, v{vd+2*j+1}')
def prep_w2_pack(a, vd):
    for j in range(4): a(f'v_lshl_or_b32 v{vd+j}, v{vd+2*j+1}, 16, v{vd+2*j}')

def gen():
    D = P.depth
    VW = 5 * (D - 1)
    a = Asm()
    def stamp(i, real=False):
        if not P.stamp: return
        a(f's_mem{"real" if real else ""}time s[86:87]'); a('s_waitcnt lgkmcnt(0)'); a(f's_mov_b32 s{88+i}, s86')
    def poll(name, load, check, first_issued=False):
        a(f's_movk_i32 s{sCNT}, {P.limit}')
        if first_issued: a(f's_branch {name}_chk')
        a.label(name)
        load()
        a.label(name + '_chk')
        a('s_waitcnt vmcnt(0)')
        check()
        a(f's_cbranch_scc0 {name}_ok')
        a(f's_sub_u32 s{sCNT}, s{sCNT}, 1')
        a(f's_cbranch_scc0 {name}')
        a(f's_mov_b32 s{sSLOW}, 1')
        a.label(name + '_ok')

    epre = [int(ch) for ch in P.epre.strip()]
    def warm(pos):
        n = 0
        for i, p in enumerate(epre):
            if p != pos: continue
            if i < 4:
                a(f'v_add_u32 v124, {i*256*P.estr}, v126')
                if (i + 1) * 256 * P.estr > CH * 32: a(f'v_min_u32 v124, v124, v125')
                a(f'buffer_load_dword a{aJUNK}, v124, {srdn(SE)}, 0 offen')
            else:
                a(f'v_lshlrev_b32 v124, 7, v24')
                a(f'buffer_load_dword a{aJUNK}, v124, {srdn(SX)}, s{sXO} offen')
            n += 1
        return n
    a('.p2align 8'); a.label(NAME + '_kernel')
    a(f's_cmp_ge_u32 s2, {NB}'); a('s_cbranch_scc1 L_end')
    stamp(0, True); stamp(1)
    a('s_load_dwordx8 s[4:11], s[0:1], 0')
    a('s_load_dwordx4 s[60:63], s[0:1], 64')
    a('s_load_dwordx2 s[64:65], s[0:1], 80')
    a('s_load_dwordx8 s[52:59], s[0:1], 32')
    a(f's_memrealtime s[{sTAG}:{sTAG+1}]')
    a('s_getpc_b64 s[14:15]')
    a.label('L_pc')
    a('v_lshlrev_b32 v15, 2, v0')
    a('s_add_u32 s14, s14, L_table-L_pc')
    a('s_addc_u32 s15, s15, 0')
    a('global_load_dword v11, v15, s[14:15]')
    a('v_lshrrev_b32 v1, 6, v0')
    a('v_and_b32 v2, 63, v0')
    a(f'v_readfirstlane_b32 s{sWAVE}, v1')
    a('v_lshlrev_b32 v21, 4, v0')
    for i in range(4): a(f'v_mov_b32 v{4+i}, 0')
    a('ds_write_b128 v21, v[4:7]')
    a(f'ds_write_b32 v15, v4 offset:{HB}')
    a('v_mov_b32 v12, 0')
    a('v_mov_b32 v13, 1')
    a('v_lshlrev_b32 v9, 4, v2')
    a('v_cmp_gt_u32 vcc, 128, v0')
    a(f's_mul_i32 s3, s2, {CH*4}')
    for s in (SD, SS): a(f's_mov_b32 s{s+2}, {E*4}'); a(f's_mov_b32 s{s+3}, 0x20000')
    a(f's_mov_b64 {mLO}, vcc')
    a(f's_mov_b32 s{sSLOW}, 0')
    a('s_waitcnt lgkmcnt(0)')
    vDs, vSr, vB, vRk, vRec = 32, 48, 64, 80, 96
    a(f's_mov_b32 s{SD}, s10'); a(f's_and_b32 s{SD+1}, s11, 0xffff')
    a(f's_mov_b32 s{SS}, s8'); a(f's_and_b32 s{SS+1}, s9, 0xffff')
    for i in range(4): a(f's_add_u32 s{8+i}, s3, {4096*i}')
    a(f's_or_b32 s37, s2, s{sWAVE}')
    a('s_cbranch_scc1 L_notag')
    if P.force != 1:
        a(f's_or_b32 s{sTAG}, s{sTAG}, 1')
        a(f'v_mov_b32 v4, s{sTAG}'); a(f'v_mov_b32 v5, s{sTAG+1}')
        a('s_mov_b64 exec, 1')
        a('global_store_dwordx2 v12, v[4:5], s[62:63] sc1')
        a('s_mov_b64 exec, -1')
    a.label('L_notag')
    a(f's_cmp_ge_u32 s2, {NCH}'); a('s_cbranch_scc1 L_prep_load')
    def edge_loads(srdn_, vb, so):
        for i in range(3): a(f'buffer_load_dwordx4 {R("v", vb+4*i, 4)}, v21, {srdn(srdn_)}, s{so+i} offen{P.pol_in}')
        a(f'buffer_load_dword v{vb+12}, v15, {srdn(srdn_)}, s{so+3} offen{P.pol_in}')
    edge_loads(SD, vDs, 8)
    a.label('L_setup')
    a('v_and_b32 v10, 3, v0')
    a('v_bfe_u32 v16, v0, 2, 4')
    a('v_lshl_add_u32 v10, v16, 3, v10')
    a('v_lshl_add_u32 v10, v1, 2, v10')
    a(f'v_cndmask_b32 v10, v2, v10, {mLO}')
    a('v_lshlrev_b32 v10, 1, v10')
    a(f's_cmp_lt_u32 s{sWAVE}, 2')
    a('s_cselect_b64 s[54:55], s[54:55], s[58:59]')
    a(f's_cselect_b32 s34, {NLOG2E}, 1.0')
    a('global_load_ushort v10, v10, s[54:55]')
    for i in range(4): a(f'v_mov_b32 v{4+i}, {DUMMY}')
    a(f'v_add_u32 v3, {EX + 16384}, v21')
    init = [f'ds_write_b128 v21, v[4:7] offset:{EX + 4096*i}' for i in range(4)]
    init += [f'ds_write_b128 v3, v[4:7] offset:{4096*i}' for i in range(16)]
    C = []
    C += [f's_and_b32 s{sB}, s2, 7', f's_lshl_b32 s{sB}, s{sB}, 5', 's_lshr_b32 s3, s2, 3', f's_add_u32 s{sB}, s{sB}, s3',
          f's_mul_i32 s{sNB0}, s{sB}, {BN}', f's_sub_u32 s{sNNODE}, {N}, s{sNB0}', f's_min_u32 s{sNNODE}, s{sNNODE}, {BN}',
          f's_lshl_b32 s{sCOL}, s{sB}, 3', f's_add_u32 s{sCOL}, s{sCOL}, {WS_TAB}']
    C += [f's_sub_u32 s{SX}, s4, {3*XP}', f's_subb_u32 s{SX+1}, s5, 0', f's_and_b32 s{SX+1}, s{SX+1}, 0xffff',
          f's_mov_b32 s{SX+2}, {(N*128 + 3*XP) * P.xfrac // 100}', f's_mov_b32 s{SX+3}, 0x20000']
    for d, lo, size in ((SE, 6, E * 32 * P.efrac // 100), (SO, 60, N * 128), (SW, 64, WS_SIZE)):
        C += [f's_mov_b32 s{d}, s{lo}', f's_and_b32 s{d+1}, s{lo+1}, 0xffff', f's_mov_b32 s{d+2}, {size}', f's_mov_b32 s{d+3}, 0x20000']
    C += [f's_movk_i32 s{sXO+j}, {(3-j)*XP}' for j in range(4)]
    C += [f's_movk_i32 s{s128}, 128', f's_mov_b32 s{sLN2}, {NLN2}', f's_mov_b32 s{sLN2+1}, {NLN2}', f's_mov_b64 s[{sBAD}:{sBAD+1}], 0']
    C += [f's_lshl_b32 s{sMAP}, s{sWAVE}, 12', f's_add_u32 s{sMAP}, s{sMAP}, {MAP}']
    C += [f's_lshl_b32 s{sQROW}, s{sWAVE}, 13', f's_add_u32 s{sQROW}, s{sQROW}, {EX}']
    C += [f's_mul_i32 s{sRING0}, s{sWAVE}, {D*SLOT}', f's_add_u32 s{sRING0}, s{sRING0}, {RING}',
          f's_add_u32 s{sRING1}, s{sRING0}, {D*SLOT}', f's_mov_b32 s{sSLOT}, s{sRING0}']
    C += ['v_and_b32 v16, 7, v2', 'v_lshrrev_b32 v18, 5, v2', 'v_xor_b32 v16, v16, v18', f'v_lshlrev_b32 v{vCX}, 4, v16']
    C += ['v_and_b32 v17, 1, v2', f'v_lshlrev_b32 v{vCE}, 4, v17']
    C += ['v_bfe_u32 v16, v2, 1, 2', f'v_mul_u32_u24 v16, {XP}, v16', 'v_bfe_u32 v20, v2, 3, 2', 'v_lshl_add_u32 v16, v20, 7, v16',
          'v_lshl_add_u32 v16, v17, 9, v16', 'v_xor_b32 v20, v17, v18', f'v_lshl_add_u32 v{vBX0}, v20, 4, v16']
    C += ['v_bfe_u32 v16, v2, 1, 4', 'v_lshl_add_u32 v16, v17, 4, v16', 'v_lshlrev_b32 v16, 5, v16', 'v_lshl_add_u32 v16, v18, 4, v16',
          f'v_add_u32 v{vBE0}, {4*XP}, v16']
    C += ['v_lshrrev_b32 v16, 3, v2', f'v_lshl_add_u32 v{vAX}, v16, 4, s{sQROW}']
    C += ['v_lshrrev_b32 v16, 1, v2', f'v_lshl_add_u32 v{vAE}, v16, 2, s{sQROW}']
    C += ['v_and_b32 v16, 31, v2', 'v_lshlrev_b32 v16, 2, v16', 'v_lshl_add_u32 v16, v18, 12, v16', f'v_add_u32 v25, s{sQROW}, v16']
    C += [f'v_add_u32 v24, s{sNB0}, v0', f'v_cmp_gt_u32 vcc, {BN}, v0', f'v_cmp_gt_u32 {mNN}, s{sNNODE}, v0', f's_mov_b64 {mBN}, vcc']
    C += ['v_lshlrev_b32 v19, 2, v2', 'v_lshlrev_b32 v14, 3, v2', 'v_lshlrev_b32 v30, 11, v0', f'v_mul_u32_u24 v31, {CH}, v0']
    C += [f's_mul_i32 s3, s2, {CH*32}', 'v_lshl_add_u32 v22, v0, 7, s3', f's_add_u32 s3, s3, {3072*32}', f'v_lshl_add_u32 v{vRec+25}, v0, 5, s3',
          'v_mov_b32 v23, 0x1000000', f's_mov_b32 s55, {MAGIC}', 's_movk_i32 s56, -49', 's_movk_i32 s57, 335', 's_mov_b32 s58, 0x1c0000']
    C += [f'v_add_u32 v{vRec+2*i+1}, {((i>>2)*1024 + (i&3))*32}, v22' for i in range(12)]
    k = 0
    while init or C:
        if init: a(init.pop(0))
        for x in C[:6]: a(x)
        C = C[6:]
        k += 1
        if k == P.srcpos:
            a(f's_cmp_ge_u32 s2, {NCH}'); a('s_cbranch_scc1 L_nosrc')
            edge_loads(SS, vSr, 8)
            a.label('L_nosrc')
    if epre:
        a(f's_mul_i32 s3, s2, {CH*32}'); a(f'v_mul_u32_u24 v126, {P.estr}, v0'); a('v_add_u32 v126, s3, v126')
        a(f's_add_u32 s3, s3, {CH*32-128}'); a('v_mov_b32 v125, s3')
    n0 = warm(0)
    a('s_waitcnt lgkmcnt(0)')
    a('s_barrier')
    tagload = lambda: a('global_load_dwordx2 v[16:17], v12, s[62:63] sc1')
    def tagcheck():
        a(f'v_readfirstlane_b32 s{sTAG}, v16'); a(f'v_readfirstlane_b32 s{sTAG8}, v17')
        a(f's_cmp_eq_u32 s{sTAG}, 0')
    a(f's_cmp_ge_u32 s2, {NCH}'); a('s_cbranch_scc1 L_prep_store')
    a(f's_waitcnt vmcnt({5+n0})')
    stamp(2)
    tagload()
    n1 = warm(1)
    for i in range(13): a(f'v_mul_u32_u24 v{vB+i}, s55, v{vDs+i}')
    for i in range(13): a(f'v_lshlrev_b32_sdwa v{vB+i}, 2, v{vB+i} {SDWA}BYTE_3')
    for i in range(13):
        if i == 12: a(f's_mov_b64 exec, {mLO}')
        a(f'ds_add_rtn_u32 v{vRk+i}, v{vB+i}, v13 offset:{HB}')
    a('s_mov_b64 exec, -1')
    for i in range(13): a(f'v_mad_i32_i24 v{vDs+i}, v{vB+i}, s56, v{vDs+i}')
    a(f's_waitcnt vmcnt({1+n0+n1})')
    for i in range(13): a(f'v_mad_u32_u24 v{vRec+2*i}, v{vSr+i}, s57, v23')
    a('s_waitcnt lgkmcnt(0)')
    a('s_barrier')
    a(f'ds_read_b128 v[26:29], v9 offset:{HB}')
    a(f'ds_write_b32 v15, v11 offset:{TT}')
    F = []
    for i in range(13): F.append(f'v_lshrrev_b32 v{vRec+2*i}, 4, v{vRec+2*i}')
    for i in range(13): F.append(f'v_and_or_b32 v{vRec+2*i}, v{vRec+2*i}, s58, v{vSr+i}')
    for i in range(13): F.append(f'v_lshl_add_u32 v{vRec+2*i}, v{vDs+i}, 20, v{vRec+2*i}')
    for x in F[:20]: a(x)
    a('s_waitcnt lgkmcnt(1)')
    a('v_add_u32 v5, v26, v27'); a('v_add_u32 v6, v5, v28'); a('v_add_u32 v7, v6, v29')
    a('v_mov_b32 v3, v7')
    wave_scan(a, 3, F[20:32])
    a('v_sub_u32 v4, v3, v7'); a('v_add_u32 v7, v4, v6'); a('v_add_u32 v6, v4, v5'); a('v_add_u32 v5, v4, v26')
    a(f'ds_write_b128 v9, v[4:7] offset:{START}')
    for i in range(13): a(f'ds_read_b32 v{vB+i}, v{vB+i} offset:{START}')
    for x in F[32:]: a(x)
    a('v_lshlrev_b32 v10, 16, v10')
    a('v_mul_f32 v10, s34, v10')
    a(f's_mov_b32 s3, {STAGE // 8}')
    for i in range(13): a(f'v_add_u32 v{vRk+i}, s3, v{vRk+i}')
    a('s_waitcnt lgkmcnt(0)')
    for i in range(13): a(f'v_add_lshl_u32 v{vB+i}, v{vB+i}, v{vRk+i}, 3')
    for i in range(13):
        if i == 12: a(f's_mov_b64 exec, {mLO}')
        a(f'ds_write_b64 v{vB+i}, {R("v", vRec+2*i, 2)}')
    a('s_mov_b64 exec, -1')
    a(f'ds_write_b32 v15, v10 offset:{B1T}')
    a(f'v_add_u32 v3, {STAGE}, v21')
    a(f's_mul_i32 s3, s2, {CH*8}')
    for i in range(4): a(f'v_lshl_or_b32 v{26+i}, v{26+i}, 12, v{4+i}')
    a(f's_cmp_eq_u32 s{sWAVE}, 0')
    a('s_cselect_b64 s[56:57], -1, 0')
    a('s_waitcnt lgkmcnt(0)')
    a('s_barrier')
    for i in range(7): a(f'ds_read_b128 {R("v", 32+4*i, 4)}, v3 offset:{4096*i}')
    for i in range(7):
        a(f's_waitcnt lgkmcnt({6-i})')
        if i == 6: a('s_mov_b64 exec, s[56:57]')
        a(f'buffer_store_dwordx4 {R("v", 32+4*i, 4)}, v21, {srdn(SW)}, s3 offen sc1')
        if i < 6: a('s_add_u32 s3, s3, 4096')
    a('s_mov_b64 exec, -1')
    a.label('L_publish')
    stamp(3)
    a('v_min_u32 v3, 5, v2')
    a(f'v_add_u32 v3, {NCH}, v3')
    a('v_lshlrev_b32 v20, 11, v3')
    wload = lambda: a(f'buffer_load_dwordx2 v[122:123], v20, {srdn(SW)}, s{sCOL} offen sc1')
    wload()
    poll('L_ptag', tagload, tagcheck, first_issued=True)
    a(f's_and_b32 s{sTAG8}, s{sTAG8}, 0xff')
    a(f's_lshl_b32 s{sTAG8S}, s{sTAG8}, 24')
    a('s_barrier')
    a(f's_cmp_lg_u32 s{sSLOW}, 0'); a('s_cbranch_scc1 L_nomap')
    a(f's_cmp_lg_u32 s{sWAVE}, 3'); a('s_cbranch_scc1 L_norow')
    if P.force == 2: a('s_cmp_eq_u32 s2, 7'); a('s_cbranch_scc1 L_norow')
    for i in range(4):
        a(f'v_or_b32 v{32+2*i}, s{sTAG8S}, v{26+i}')
        a(f'v_mov_b32 v{33+2*i}, s{sTAG}')
    a('s_lshl_b32 s3, s2, 11'); a(f's_add_u32 s3, s3, {WS_TAB}')
    a('v_lshlrev_b32 v3, 5, v2')
    a(f'buffer_store_dwordx4 v[32:35], v3, {srdn(SW)}, s3 offen sc1')
    a(f'buffer_store_dwordx4 v[36:39], v3, {srdn(SW)}, s3 offen offset:16 sc1')
    a.label('L_norow')
    stamp(4)
    def tcheck(v):
        def f():
            a(f'v_cmp_ne_u32 s[56:57], s{sTAG}, v{v+1}')
            a(f'v_cmp_ne_u32_sdwa vcc, v{v}, s{sTAG8} src0_sel:BYTE_3 src1_sel:DWORD')
            a('s_or_b64 vcc, vcc, s[56:57]')
        return f
    tcheck(122)()
    a('s_cbranch_scc0 L_pw_ok')
    poll('L_pw', wload, tcheck(122))
    a(f's_mul_i32 s3, s{sWAVE}, {13*1024}')
    a(f's_add_u32 s35, s3, {WS_W}')
    a(f's_add_u32 m0, s3, {WST}')
    for i in range(13):
        if i and i % 4 == 0: a('s_add_u32 m0, m0, 4096'); a('s_add_u32 s35, s35, 4096')
        a(f'buffer_load_dwordx4 v9, {srdn(SW)}, s35 offen offset:{(i%4)*1024} sc1 lds')
    poll('L_pt', lambda: a(f'buffer_load_dwordx2 v[16:17], v30, {srdn(SW)}, s{sCOL} offen sc1'), tcheck(16))
    stamp(5)
    warm(2)
    a('v_bfe_u32 v17, v16, 12, 12')
    a('v_and_b32 v16, 0xfff, v16')
    a('v_mov_b32 v18, v17')
    wave_scan(a, 18, ['v_add_u32 v16, v16, v31', 'v_cmp_lt_u32 s[56:57], 16, v17', 'v_cmp_lt_u32 s[58:59], 8, v17',
                      'v_cmp_lt_u32 s[60:61], 0, v17', 'v_cmp_lt_u32 vcc, 24, v17', f'v_mov_b32 v4, {DUMMY}', f'v_add_u32 v20, s{sMAP}, v19'])
    a('v_sub_u32 v3, v18, v17')
    a('v_readlane_b32 s3, v18, 63')
    a('v_sub_u32 v16, v16, v3')
    a(f'v_lshl_add_u32 v18, v3, 2, s{sMAP}')
    a('v_lshlrev_b32 v16, 3, v16')
    a(f's_cmp_gt_u32 s3, {NSLOT*64}')
    a(f's_cselect_b32 s{sSLOW}, 1, s{sSLOW}')
    a(f's_cmp_lg_u32 s{sSLOW}, 0'); a('s_cbranch_scc1 L_nomap')
    a('v_lshl_add_u32 v3, s3, 2, v20')
    for m, j0 in (('s[56:57]', 16), ('s[58:59]', 8), ('s[60:61]', 0)):
        a(f's_mov_b64 exec, {m}')
        for j in range(j0 + 7, j0 - 1, -1): a(f'ds_write_b32 v18, v16 offset:{4*j}')
    a('s_mov_b64 exec, -1')
    a('ds_write_b32 v3, v4')
    a('s_cbranch_vccz L_nomap')
    a.label('L_map')
    for j in range(24, 28):
        a(f'v_cmpx_lt_u32 vcc, {j}, v17')
        a(f'ds_write_b32 v18, v16 offset:{4*j}')
    a('v_add_u32 v18, 16, v18')
    a('v_subrev_u32 v17, 4, v17')
    a('s_cbranch_execnz L_map')
    a('s_mov_b64 exec, -1')
    a.label('L_nomap')
    vR, vI, vK, vP = 32, 64, 80, 96
    a(f'v_add_u32 v20, s{sMAP}, v19')
    for i in range(NSLOT): a(f'ds_read_b32 v{vI+i}, v20 offset:{256*i}')
    a('s_movk_i32 s3, 4096')
    for lo, hi in ((0, 5), (5, 10), (10, 15)):
        a(f's_waitcnt lgkmcnt({NSLOT-hi})')
        for i in range(lo, hi): a(f'v_add_u32 v{vI+i}, v{vI+i}, v14')
        for i in range(lo, hi):
            a(f'buffer_load_dwordx2 {R("v", vR+2*i, 2)}, v{vI+i}, {srdn(SW)}, {"s3" if i >= 8 else "0"} offen offset:{512*(i%8)} sc1')
    a('v_lshlrev_b32 v29, 7, v24')
    a(f'buffer_load_dword a{aJUNK}, v29, {srdn(SX)}, s{sXO} offen')
    n3 = warm(3)
    a(f'v_add_u32 v3, {WST}, v9')
    stamp(6)
    a('s_barrier')
    for i in range(52): a(f'ds_read_b128 {R("a", 4*i, 4)}, v3 offset:{1024*i}')
    for lo, hi in ((0, 6), (6, 11), (11, 15)):
        a(f's_waitcnt vmcnt({NSLOT-hi+1+n3})')
        for i in range(lo, hi): a(f'v_lshrrev_b32 v{vI+i}, 16, v{vR+2*i}')
        if lo == 11:
            for i in range(lo, hi): a(f'v_cmp_ne_u32 s[{58+2*(i-lo)}:{59+2*(i-lo)}], 0, v{vI+i}')
        for i in range(lo, hi):
            if lo == 11: a(f's_mov_b64 exec, s[{58+2*(i-lo)}:{59+2*(i-lo)}]')
            a(f'ds_add_rtn_u32 v{vK+i}, v{vI+i}, v13 offset:{CNT}')
    if 4 in epre: a('s_mov_b64 exec, -1'); warm(4)
    a(f's_mov_b64 exec, {mBN}')
    a('s_waitcnt lgkmcnt(0)')
    a('s_barrier')
    stamp(7)
    a(f'ds_read_b128 v[4:7], v21 offset:{CNT + 16}')
    a('s_waitcnt lgkmcnt(0)')
    a('v_add_u32 v5, v4, v5'); a('v_add_u32 v6, v5, v6'); a('v_add_u32 v16, v6, v7')
    a('v_min_u32 v17, 63, v16')
    a('v_sub_u32 v17, 63, v17')
    a('v_lshlrev_b32 v17, 2, v17')
    a(f'ds_add_rtn_u32 v18, v17, v13 offset:{HIST}')
    a('v_sub_u32 v26, v16, v4'); a('v_sub_u32 v27, v16, v5'); a('v_sub_u32 v28, v16, v6')
    a('v_lshrrev_b32 v23, 1, v16')
    a('v_lshl_or_b32 v23, v23, 16, v24')
    a('v_or_b32 v23, 0xc00000, v23')
    a('s_mov_b64 exec, -1')
    a('s_waitcnt lgkmcnt(0)')
    a('s_barrier')
    a(f'ds_read_b32 v20, v19 offset:{HIST}')
    a(f'v_mov_b32 v3, {(32768 - 4) << 16}')
    a(f'ds_write_b32 v12, v3 offset:{CNT}')
    a('s_waitcnt lgkmcnt(1)')
    a('v_mov_b32 v3, v20')
    wave_scan(a, 3)
    a('v_sub_u32 v20, v3, v20')
    a('ds_bpermute_b32 v20, v17, v20')
    a(f's_mov_b64 exec, {mNN}')
    a('s_waitcnt lgkmcnt(0)')
    a('v_add_lshl_u32 v20, v20, v18, 2')
    a(f'ds_read_b32 v22, v20 offset:{TT}')
    a('s_waitcnt lgkmcnt(0)')
    a('v_and_b32 v3, 0x10000000, v22')
    a('v_lshlrev_b32 v29, 16, v22')
    a('v_cmp_ne_u32 vcc, 0, v3')
    a('v_bfe_u32 v3, v22, 6, 1')
    a('v_add_u32 v16, v16, v3')
    a('v_cndmask_b32 v7, v6, v12, vcc'); a('v_cndmask_b32 v6, v5, v28, vcc')
    a('v_cndmask_b32 v5, v4, v27, vcc'); a('v_cndmask_b32 v4, v12, v26, vcc')
    for i in range(4): a(f'v_mad_u32_u24 v{4+i}, v{4+i}, v29, v22')
    a('v_lshrrev_b32 v16, v3, v16')
    a('v_lshrrev_b32 v22, 16, v22')
    a('v_lshl_or_b32 v24, v3, 22, v24')
    a('v_cmp_lt_u32 s[56:57], 30, v16')
    a('v_lshl_or_b32 v24, v16, 16, v24')
    a('v_cmp_ne_u32 vcc, 0, v3')
    a(f'ds_write_b128 v21, v[4:7] offset:{CNT + 16}')
    a(f'ds_write_b32 v22, v24 offset:{EX - 128}')
    a('s_mov_b64 exec, vcc')
    a(f'ds_write_b32 v22, v23 offset:{EX - 64}')
    a(f's_or_b32 s56, s56, s{sSLOW}')
    a('s_mov_b64 exec, s[56:57]')
    a(f'ds_write_b32 v12, v13 offset:{FLAG}')
    a('s_mov_b64 exec, -1')
    a('s_waitcnt lgkmcnt(0)')
    a('s_barrier')

    ell_read = [f'ds_read_b128 {R("v", vEX, 4)}, v{vAX}', f'ds_read_b32 v{vEE}, v{vAE} offset:{EE-EX}']
    jump = [f's_sub_u32 s{sJ}, s{sJ}, 1', f's_cselect_b32 s{sINC}, s{sJUMP}, s{s128}']
    ell_adv = [f'v_add_u32 v{vAX}, s{sINC}, v{vAX}', f'v_add_u32 v{vAE}, s{sINC}, v{vAE}']
    xaddr = [f'v_mad_u32_u16 v{vEX+j}, v{vEX+j}, s{s128}, v{vCX}' for j in range(4)]
    eaddr = f'v_add_u32 v{vEE}, v{vEE}, v{vCE}'
    m0x = f's_mov_b32 m0, s{sSLOT}'; m0e = f's_add_u32 m0, s{sSLOT}, {4*XP}'
    dmax = [f'buffer_load_dwordx4 v{vEX+j}, {srdn(SX)}, s{sXO+j} offen offset:{j*XP}{P.pol_x} lds' for j in range(4)]
    dmae = f'buffer_load_dwordx4 v{vEE}, {srdn(SE)}, 0 offen{P.pol_e} lds'
    adv = [f's_add_u32 s{sSLOT}, s{sSLOT}, {SLOT}', f's_cmp_eq_u32 s{sSLOT}, s{sRING1}', f's_cselect_b32 s{sSLOT}, s{sRING0}, s{sSLOT}']
    baddr = [f'v_add_u32 v{vBX}, s{sSLOT}, v{vBX0}', f'v_add_u32 v{vBE}, s{sSLOT}, v{vBE0}']
    bread = [f'ds_read_b128 {R("a", aBX+4*k, 4)}, v{vBX} offset:{32*k}' for k in range(4)] + [f'ds_read_b128 {R("a", aBE, 4)}, v{vBE}']
    PFa = [m0x] + xaddr + [eaddr] + dmax + [m0e] + [adv[0]] + [dmae] + adv[1:]
    PFb = ell_read + jump + ell_adv
    PF = PFa + PFb + baddr

    a(f'ds_read_b32 v16, v12 offset:{FLAG}')
    for i in range(NSLOT - 1): a(f'ds_read_b32 v{vP+i}, v{vI+i} offset:{CNT}')
    a(f's_waitcnt lgkmcnt({NSLOT - 6})')
    a(f'ds_read_b32 v{vP+NSLOT-1}, v{vI+NSLOT-1} offset:{CNT}')
    a('ds_read_b32 v17, v25')
    for x in ell_read: a(x)
    a('v_readfirstlane_b32 s3, v16')
    a('s_cmp_lg_u32 s3, 0'); a('s_cbranch_scc1 L_slow')
    for lo, hi in ((0, 5), (5, 10), (10, 15)):
        if lo: a(f's_waitcnt lgkmcnt({NSLOT - hi + 3 if hi < NSLOT else 0})')
        for i in range(lo, hi): a(f'v_mul_u32_u24_sdwa v{vK+i}, v{vK+i}, v{vP+i} {SDWA}WORD_0')
        for i in range(lo, hi): a(f'v_add_u32_sdwa v{vP+i}, v{vK+i}, v{vP+i} {SDWA}WORD_1')
    for i in range(NSLOT):
        if i >= 11: a(f's_mov_b64 exec, s[{58+2*(i-11)}:{59+2*(i-11)}]')
        a(f'ds_write2st64_b32 v{vP+i}, v{vR+2*i}, v{vR+2*i+1} offset0:{EX//256} offset1:{EE//256}')
    a('s_mov_b64 exec, -1')
    a('v_bfe_u32 v17, v17, 16, 6')
    for x in PFa: a(x)
    for sh in (1, 2, 4, 8): a(f'v_max_u32_dpp v17, v17, v17 row_shr:{sh} row_mask:0xf bank_mask:0xf bound_ctrl:0')
    a('v_max_u32_dpp v17, v17, v17 row_bcast:15 row_mask:0xa bank_mask:0xf')
    a(f'v_add_u32 v{vAX}, 128, v{vAX}'); a(f'v_add_u32 v{vAE}, 128, v{vAE}')
    a(f'v_readlane_b32 s{sL}, v17, 31')
    a(f'v_readlane_b32 s{sLNEXT}, v17, 63')
    a('s_waitcnt lgkmcnt(0)')
    a('s_barrier')
    stamp(8)
    for x in ell_read: a(x)
    a(f's_max_u32 s{sL}, s{sL}, 1')
    a(f's_max_u32 s{sLNEXT}, s{sLNEXT}, 1')
    a(f's_lshl_b32 s3, s{sL}, 7')
    a(f's_sub_u32 s{sJUMP}, 4096, s3')
    a(f's_sub_u32 s{sJ}, s{sL}, 1')
    for x in jump + ell_adv: a(x)
    if P.stamp: a(f's_mov_b32 s{88+9}, 0'); a(f's_mov_b32 s{88+10}, 0')
    for r in range(1, D):
        a('s_waitcnt lgkmcnt(0)')
        for x in PF: a(x)

    a.label('L_group')
    a(f'v_lshrrev_b32 v{vE+1}, 3, v{vBE0}')
    a(f'v_and_b32 v{vE}, 16, v{vBE0}')
    a(f'v_and_b32 v{vE+1}, -4, v{vE+1}')
    a(f'v_lshlrev_b32 v{vE}, 4, v{vE}')
    a(f's_sub_u32 s3, s{sQROW}, {4*XP//8}')
    a(f'v_add_u32 v{vE+1}, s3, v{vE+1}')
    a(f'ds_read_b32 v{vINFO}, v{vE+1}')
    for i in range(16): a(f'ds_read_b128 {R("v", vQ+4*i, 4)}, v{vE} offset:{B1T + 16*i}')
    a(f's_waitcnt vmcnt({VW})')
    for x in bread[:4]: a(x)
    a('s_waitcnt lgkmcnt(0)')
    pf = list(PF)
    for k in range(4):
        for c in range(4):
            a(mfma(R('v', vQ+16*c, 16), R('a', aW1B + (c*4+k)*4, 4), R('a', aBX+4*k, 4), R('v', vQ+16*c, 16)))
            for x in pf[:2]: a(x)
            pf = pf[2:]
    assert not pf
    a(f's_waitcnt vmcnt({VW})')
    for x in bread: a(x)
    a(f'v_bfe_u32 v{vDEG}, v{vINFO}, 16, 6')
    a(f's_add_u32 s{sQROW}, s{sQROW}, 4096')
    a(f's_mov_b32 s{sT}, 1')
    if P.stamp:
        a(f's_cmp_lg_u32 s{88+9}, 0'); a('s_cbranch_scc1 L_st9'); stamp(9); a.label('L_st9')
    a('s_waitcnt lgkmcnt(0)')
    pf = list(PF)
    for k in range(5):
        a(m1(0, k, vN, vQ))
        n = 3 if k < 4 else 99
        for x in pf[:n]: a(x)
        pf = pf[n:]
    for c in range(4):
        cn = (c + 1) & 3
        if c == 3: a('s_waitcnt lgkmcnt(0)')
        for k in range(5):
            a(m1(cn, k, vN + 16*cn if c < 3 else vY, vQ + 16*cn))
            if c == 2:
                if k == 0: a(f's_waitcnt vmcnt({VW})')
                a(bread[k])
            for i in range(3*k, 3*k + (3 if k < 4 else 4)): a(f'v_exp_f32 v{vD+16*c+i}, v{vN+16*c+i}')
        for p in range(8):
            d = R('v', vD + 16*c + 2*p, 2)
            a(f'v_pk_add_f32 {d}, {d}, 1.0 op_sel_hi:[1,0]')
    a(f's_cmp_ge_u32 s{sT}, s{sL}'); a('s_cbranch_scc1 L_flush')
    a(m0x)
    a(m1(1, 0, vY + 16, vQ + 16))
    a('.p2align 3')
    a.label('L_row')
    for c in range(4):
        cn = (c + 1) & 3
        y = vY + 16 * (c & 1); yn = vY + 16 * (cn & 1)
        S = [[] for _ in range(5)]
        V = [[] for _ in range(5)]
        if c == 0:
            S[1] = ['s_mov_b64 exec, -1']; V[1] = xaddr[:2]
            S[2] = [jump[0]]; V[2] = xaddr[2:]
            S[3] = [jump[1]]; V[3] = [eaddr]
            V[4] = dmax + [m0e, ell_read[0], dmae, ell_read[1]] + ell_adv + [f'v_cmpx_lt_u32 vcc, s{sT}, v{vDEG}']
        if c == 1:
            S[0] = [adv[0]]; S[1] = [adv[1]]; S[2] = [adv[2]]
            S[3] = [f's_add_u32 s{sT}, s{sT}, 1']
            V[4] = baddr
        if c == 2:
            for k in range(5): S[k] = [bread[k]]
            S[0].insert(0, f's_waitcnt vmcnt({VW})')
            S[4].insert(0, 's_waitcnt lgkmcnt(3)')
        if c == 3:
            S[0] = ['s_waitcnt lgkmcnt(0)']
            S[1] = [f's_cmp_lt_u32 s{sT}, s{sL}']
            S[2] = [m0x]
        L = []
        for k in range(5):
            if (c, k) != (0, 0): L.append(m1(cn, k, yn, vQ + 16*cn))
            L += S[k]
            for i in range(3*k, 3*k + (3 if k < 4 else 4)): L.append(f'v_exp_f32 v{vE+i}, v{y+i}')
            L += V[k]
        if sum(isize(x) for x in L) % 8:
            i = max(i for i, x in enumerate(L) if x.startswith('v_exp_f32 '))
            L[i] = L[i].replace('v_exp_f32 ', 'v_exp_f32_e64 ')
        for x in L: a(x)
        for p in range(8):
            yy, nn, dd, ee = R('v', y+2*p, 2), R('v', vN+16*c+2*p, 2), R('v', vD+16*c+2*p, 2), R('v', vE+2*p, 2)
            a(f'v_pk_fma_f32 {yy}, {yy}, {dd}, {nn}')
            a(f'v_pk_fma_f32 {dd}, {dd}, {ee}, {dd}')
            a(f'v_pk_fma_f32 {nn}, {nn}, {ee}, {yy}')
    a(m1(1, 0, vY + 16, vQ + 16))
    a('s_cbranch_scc1 L_row')
    a.label('L_flush')
    if P.stamp:
        a(f's_cmp_lg_u32 s{88+10}, 0'); a('s_cbranch_scc1 L_st10'); stamp(10); a.label('L_st10')
        stamp(11)
    a('s_mov_b64 exec, -1')
    for x in baddr: a(x)
    a(f'v_and_b32 v{vQ+32}, 16, v{vBE0}')
    a(f'v_lshlrev_b32 v{vQ+33}, 3, v{vQ+32}')
    for i in range(8): a(f'ds_read_b128 {R("v", vQ+4*i, 4)}, v{vQ+33} offset:{B2T + 16*i}')
    a(f'v_lshlrev_b32 v{vQ+32}, 2, v{vQ+32}')
    a(f'v_mad_u32_u16 v{vQ+32}, v{vINFO}, s{s128}, v{vQ+32}')
    a(f'v_cvt_f32_u32 v{vQ+34}, v{vDEG}')
    a(f'v_mov_b32 v{vMAX}, 0')
    def g3(c, i):
        u = 2*c + (i >> 1); dt = i & 1
        acc = R('v', vY + 16*dt, 16)
        return mfma(acc, R('a', aW2 + (dt*8+u)*4, 4), R('v', vE + 8*(c & 1) + 4*(i >> 1), 4), acc if u else '0')
    for c in range(4):
        for q in range(4):
            if c: a(g3(c-1, q))
            for p in range(2):
                d = vD + 16*c + 4*q + 2*p
                a(f'v_max3_f32 v{vMAX}, v{d}, v{d+1}, v{vMAX}')
                a(f'v_rcp_f32 v{d}, v{d}'); a(f'v_rcp_f32 v{d+1}, v{d+1}')
        for p in range(8):
            nn, dd = R('v', vN+16*c+2*p, 2), R('v', vD+16*c+2*p, 2)
            a(f'v_pk_mul_f32 {nn}, {nn}, {dd}')
        if c == 3:
            a('s_waitcnt lgkmcnt(0)')
            for p in range(16):
                qq = R('v', vQ+2*p, 2)
                a(f'v_pk_mul_f32 {qq}, {qq}, {R("v", vQ+34, 2)} op_sel_hi:[1,0]')
        for p in range(8):
            a(f'v_cvt_pk_bf16_f32 v{vE+8*(c&1)+p}, v{vN+16*c+2*p}, v{vN+16*c+2*p+1}')
    for q in range(4): a(g3(3, q))
    a(f's_mov_b32 s3, {f32(2.0**100)}')
    a(f'v_bfe_u32 v{vQ+33}, v{vINFO}, 22, 2')
    a(f'v_cmp_ne_u32 s[58:59], 0, v{vQ+33}')
    a(f'v_cmp_ne_u32 s[60:61], 3, v{vQ+33}')
    a(f'v_cmpx_ne_u32 vcc, 0, v{vDEG}')
    a(f'v_cmp_lt_f32 s[56:57], s3, v{vMAX}')
    a(f'v_mov_b32 v{vMAX}, 0x207')
    for p in range(16):
        yy, qq = R('v', vY+2*p, 2), R('v', vQ+2*p, 2)
        a(f'v_pk_fma_f32 {qq}, {yy}, s[{sLN2}:{sLN2+1}], {qq}')
    a(f'v_cmp_class_f32 vcc, v{vQ}, v{vMAX}')
    a(f's_or_b64 s[{sBAD}:{sBAD+1}], s[{sBAD}:{sBAD+1}], s[56:57]')
    a('s_mov_b64 exec, s[58:59]')
    a(f's_or_b64 s[{sBAD}:{sBAD+1}], s[{sBAD}:{sBAD+1}], vcc')
    a('s_cbranch_execz L_nopair')
    for i in range(32):
        a(f'v_add_f32_dpp v{vQ+i}, v{vQ+i}, v{vQ+i} quad_perm:[1,0,3,2] row_mask:0xf bank_mask:0xf')
    a.label('L_nopair')
    a('s_mov_b64 exec, s[60:61]')
    for i in range(4):
        for p in range(4*i, 4*i+4): a(f'v_cvt_pk_bf16_f32 v{vE+p}, v{vQ+2*p}, v{vQ+2*p+1}')
        a(f'buffer_store_dwordx4 {R("v", vE+4*i, 4)}, v{vQ+32}, {srdn(SO)}, 0 offen offset:{16*i}{P.pol_out}')
    a('s_mov_b64 exec, -1')
    a(f's_mov_b32 s{sL}, s{sLNEXT}')
    a(f's_mov_b32 s{sLNEXT}, 0')
    a(f's_cmp_lg_u32 s{sL}, 0'); a('s_cbranch_scc1 L_group')
    if P.stamp:
        a('s_waitcnt vmcnt(0)'); stamp(12); stamp(13, True)
        for i in range(14): a(f'v_writelane_b32 v1, s{88+i}, {i}')
        a(f'v_writelane_b32 v1, s{sCNT}, 14')
        a('v_mbcnt_lo_u32_b32 v2, -1, 0'); a('v_mbcnt_hi_u32_b32 v2, -1, v2'); a('v_lshlrev_b32 v2, 2, v2')
        a('s_lshl_b32 s3, s2, 2'); a(f's_add_u32 s3, s3, s{sWAVE}'); a('s_lshl_b32 s3, s3, 6'); a(f's_add_u32 s3, s3, {WS_STAMP}')
        a('s_mov_b64 exec, 0xffff')
        a(f'buffer_store_dword v1, v2, {srdn(SW)}, s3 offen')
        a('s_mov_b64 exec, -1')
    a(f's_cmp_eq_u64 s[{sBAD}:{sBAD+1}], 0')
    a('v_mov_b32 v1, 0'); a('v_mov_b32 v2, 1')
    a('s_cbranch_scc1 L_nobad')
    a(f'ds_write_b32 v1, v2 offset:{FLAG}')
    a.label('L_nobad')
    a('s_waitcnt lgkmcnt(0)')
    a('s_barrier')
    a(f'ds_read_b32 v2, v1 offset:{FLAG}')
    a('s_waitcnt lgkmcnt(0)')
    a('v_readfirstlane_b32 s3, v2')
    a('s_cmp_lg_u32 s3, 0'); a('s_cbranch_scc1 L_slow')
    if P.diag:
        a.label('L_diag')
        a('s_memrealtime s[86:87]'); a('s_waitcnt lgkmcnt(0)')
        a(f's_sub_u32 s86, s86, s{sTAG}'); a(f's_cmp_lt_u32 s86, {P.diag}'); a('s_cbranch_scc1 L_diag')
    a.label('L_end')
    a('s_endpgm')

    a.label('L_prep_load')
    srd(a, SD, 52, 144 * 128 * 2); srd(a, SS, 56, 128 * 64 * 2)
    prep_offsets(a, 2, 26, 27, 28, 29)
    a(f's_sub_u32 s85, s2, {NCH}'); a('s_lshl_b32 s85, s85, 2'); a(f's_add_u32 s85, s85, s{sWAVE}')
    prep_w1_load(a, 85, 26, 32, 34, 35)
    a('s_add_u32 s3, s85, 24'); a('s_min_u32 s3, s3, 35')
    prep_w1_load(a, 3, 26, 40, 34, 35)
    a('s_add_u32 s3, s85, 28'); a('s_max_u32 s3, s3, 36')
    prep_w2_load(a, 3, 27, 48, 34, 35)
    a('s_branch L_setup')
    a.label('L_prep_store')
    a('s_waitcnt vmcnt(0)')
    tagload()
    prep_w1_pack(a, 32); prep_w1_pack(a, 40); prep_w2_pack(a, 48)
    for add, lim, vd in ((0, None, 32), (24, 's_min_u32 s3, s3, 35', 40), (28, 's_max_u32 s3, s3, 36', 48)):
        a(f's_add_u32 s3, s85, {add}')
        if lim: a(lim)
        a('s_lshl_b32 s3, s3, 10'); a(f's_add_u32 s3, s3, {WS_W}')
        a(f'buffer_store_dwordx4 {R("v", vd, 4)}, v9, {srdn(SW)}, s3 offen sc1')
    a('v_lshlrev_b32 v10, 16, v10')
    a('v_mul_f32 v10, s34, v10')
    a(f'ds_write_b32 v15, v10 offset:{B1T}')
    a(f'ds_write_b32 v15, v11 offset:{TT}')
    for i in range(4): a(f'v_mov_b32 v{26+i}, 0')
    a('s_waitcnt lgkmcnt(0)')
    a('s_branch L_publish')

    a.label('L_slow')
    a('s_mov_b64 exec, -1')
    a('s_waitcnt vmcnt(0) lgkmcnt(0)')
    a('s_load_dwordx2 s[52:53], s[0:1], 32')
    a('s_load_dwordx2 s[56:57], s[0:1], 48')
    a('s_load_dwordx4 s[8:11], s[0:1], 16')
    a('s_barrier')
    vL, vS, vH, vT0, vT1, vOA, vD4 = 240, 241, 242, 244, 245, 246, 252
    a(f'v_mbcnt_lo_u32_b32 v{vL}, -1, 0'); a(f'v_mbcnt_hi_u32_b32 v{vL}, -1, v{vL}')
    a(f'v_and_b32 v{vS}, 31, v{vL}')
    a(f'v_lshrrev_b32 v{vH}, 5, v{vL}')
    a(f's_lshl_b32 s3, s{sWAVE}, 10')
    a(f'v_lshl_add_u32 v4, v{vL}, 4, s3')
    for i in range(4): a(f'v_mov_b32 v{i}, 0')
    for i in range(13): a(f'ds_write_b128 v4, v[0:3] offset:{OACC + 4096*i}')
    a('s_waitcnt lgkmcnt(0)')
    srd(a, SD, 52, 144 * 128 * 2); srd(a, SS, 56, 128 * 64 * 2)
    prep_offsets(a, vL, 26, 27, 28, 29)
    a(f'v_add_u32 v4, {WST}, v4')
    a(f's_mov_b32 s85, s{sWAVE}')
    a.label('L_s_w1')
    prep_w1_load(a, 85, 26, 32, 34, 35)
    a('s_waitcnt vmcnt(0)')
    prep_w1_pack(a, 32)
    a('ds_write_b128 v4, v[32:35]')
    a('v_add_u32 v4, 4096, v4')
    a('s_add_u32 s85, s85, 4'); a('s_waitcnt lgkmcnt(0)'); a('s_cmp_lt_u32 s85, 36'); a('s_cbranch_scc1 L_s_w1')
    a.label('L_s_w2')
    prep_w2_load(a, 85, 27, 32, 34, 35)
    a('s_waitcnt vmcnt(0)')
    prep_w2_pack(a, 32)
    a('ds_write_b128 v4, v[32:35]')
    a('v_add_u32 v4, 4096, v4')
    a('s_add_u32 s85, s85, 4'); a('s_waitcnt lgkmcnt(0)'); a('s_cmp_lt_u32 s85, 52'); a('s_cbranch_scc1 L_s_w2')
    a('s_barrier')
    a(f'v_lshlrev_b32 v4, 4, v{vL}'); a(f'v_add_u32 v4, {WST}, v4')
    for i in range(52): a(f'ds_read_b128 {R("a", 4*i, 4)}, v4 offset:{1024*i}')
    srd(a, SD, 10, E * 4); srd(a, SS, 8, E * 4)
    sE0, sJj = 56, 57
    a(f's_lshl_b32 s{sE0}, s{sWAVE}, 9')
    a(f'v_lshlrev_b32 v243, 4, v{vS}')
    a.label('L_s_blk')
    a(f'buffer_load_dwordx4 {R("v", vD4, 4)}, v243, {srdn(SD)}, s{sE0} offen')
    a(f's_mov_b32 s{sJj}, 0')
    a('s_waitcnt vmcnt(0)')
    a.label('L_s_sub')
    a(f'v_subrev_u32 v248, s{sNB0}, v{vD4}')
    a(f'v_cmp_gt_u32 s[60:61], s{sNNODE}, v248')
    a('s_cmp_eq_u64 s[60:61], 0'); a('s_cbranch_scc1 L_s_next')
    a(f's_add_u32 s3, s{sE0}, s{sJj}')
    a(f'buffer_load_dword v{vT0}, v243, {srdn(SS)}, s3 offen')
    a(f'v_lshlrev_b32 v247, 8, v{vH}')
    for i in range(16): a(f'ds_read_b128 {R("v", vQ+4*i, 4)}, v247 offset:{B1T + 16*i}')
    a(f'v_lshlrev_b32 v247, 4, v{vH}')
    a(f'v_add_lshl_u32 v{vT1}, v243, s3, 3')
    a(f'v_add_u32 v{vT1}, v{vT1}, v247')
    a(f'v_lshl_add_u32 v249, v{vD4}, 7, v247')
    a(f'v_mul_u32_u24 v{vOA}, 260, v248')
    a(f'v_lshl_add_u32 v{vOA}, v{vH}, 7, v{vOA}')
    a('s_waitcnt vmcnt(0)')
    a(f'v_lshl_add_u32 v{vT0}, v{vT0}, 7, v247')
    a('s_mov_b64 exec, s[60:61]')
    for k in range(4): a(f'buffer_load_dwordx4 {R("a", aBX+4*k, 4)}, v{vT0}, {srdn(SX)}, s{sXO} offen offset:{32*k}')
    a(f'buffer_load_dwordx4 {R("a", aBE, 4)}, v{vT1}, {srdn(SE)}, 0 offen')
    for k in range(4): a(f'buffer_load_dwordx4 {R("v", vE+4*k, 4)}, v249, {srdn(SX)}, s{sXO} offen offset:{32*k}')
    a('s_waitcnt vmcnt(0) lgkmcnt(0)')
    for c in range(4):
        q = R('v', vQ+16*c, 16)
        for k in range(4): a(mfma(q, R('a', aW1B + (c*4+k)*4, 4), R('v', vE+4*k, 4), q))
        for k in range(5): a(m1(c, k, vQ+16*c, vQ+16*c))
    for i in range(64): a(f'v_exp_f32 v{vD+i}, v{vQ+i}')
    for i in range(64): a(f'v_add_f32 v{vD+i}, 1.0, v{vD+i}')
    for i in range(64): a(f'v_rcp_f32 v{vD+i}, v{vD+i}')
    for i in range(64): a(f'v_mul_f32 v{vD+i}, v{vD+i}, v{vQ+i}')
    for i in range(32): a(f'v_cvt_pk_bf16_f32 v{vN+i}, v{vD+2*i}, v{vD+2*i+1}')
    a(f'v_lshlrev_b32 v247, 7, v{vH}')
    for i in range(8): a(f'ds_read_b128 {R("v", vQ+4*i, 4)}, v247 offset:{B2T + 16*i}')
    for dt in range(2):
        acc = R('v', vY + 16*dt, 16)
        for u in range(8): a(mfma(acc, R('a', aW2 + (dt*8+u)*4, 4), R('v', vN + 4*u, 4), acc if u else '0'))
    a('s_waitcnt lgkmcnt(0)')
    for i in range(32): a(f'v_fma_f32 v{vY+i}, v{vY+i}, s{sLN2}, v{vQ+i}')
    for i in range(32): a(f'ds_add_f32 v{vOA}, v{vY+i} offset:{OACC + 4*i}')
    a('s_mov_b64 exec, -1')
    a('s_waitcnt lgkmcnt(0)')
    a.label('L_s_next')
    for i in range(3): a(f'v_mov_b32 v{vD4+i}, v{vD4+i+1}')
    a(f's_add_u32 s{sJj}, s{sJj}, 4')
    a(f's_cmp_lt_u32 s{sJj}, 16'); a('s_cbranch_scc1 L_s_sub')
    a(f's_add_u32 s{sE0}, s{sE0}, 2048')
    a(f's_cmp_lt_u32 s{sE0}, {E*4}'); a('s_cbranch_scc1 L_s_blk')
    a('s_barrier')
    a(f's_lshl_b32 s3, s{sWAVE}, 1')
    a(f'v_add_u32 v1, s3, v{vH}')
    a.label('L_s_out')
    a(f'v_cmp_gt_u32 vcc, s{sNNODE}, v1')
    a('v_mul_u32_u24 v4, 260, v1')
    a(f'v_lshl_add_u32 v4, v{vS}, 3, v4')
    a(f'v_add_u32 v4, {OACC}, v4')
    a(f'v_add_u32 v5, s{sNB0}, v1')
    a('v_lshlrev_b32 v5, 7, v5')
    a(f'v_lshl_add_u32 v5, v{vS}, 2, v5')
    a('s_and_b64 exec, exec, vcc')
    a('s_cbranch_execz L_s_end')
    a('ds_read2_b32 v[2:3], v4 offset0:0 offset1:1')
    a('s_waitcnt lgkmcnt(0)')
    a('v_cvt_pk_bf16_f32 v2, v2, v3')
    a(f'buffer_store_dword v2, v5, {srdn(SO)}, 0 offen')
    a('v_add_u32 v1, 8, v1')
    a('s_branch L_s_out')
    a.label('L_s_end')
    a('s_endpgm')
    a('.p2align 7')
    a.raw('.type L_table,@object')
    a.label('L_table')
    T = pattern_table()
    for i in range(0, 256, 8): a.raw('.long ' + ', '.join(hex(x) for x in T[i:i+8]))
    a.raw('.size L_table, 1024')
    return a

if __name__ == '__main__':
    for kv in sys.argv[2:]:
        k, v = kv.split('=')
        cur = getattr(P, k)
        setattr(P, k, int(v) if isinstance(cur, int) else (' ' + v.replace('+', ' ') if v else ''))
    k = gen()
    for p in check_all_edges(k): print('HAZARD on branch edge', p, file=sys.stderr)
    print('instrs', sum(1 for x in k.items if not isinstance(x, str)), 'auto nops', k.nops, file=sys.stderr)
    out = open('cdna_kernels/' + NAME + '.s.ref').read().split('; Override launch')[0]
    out += f'; @launch grid=({NB},1,1) block=(256,1,1) lds={lds_bytes()}\n'
    out += '.amdgcn_target "amdgcn-amd-amdhsa--gfx950"\n.text\n'
    out += f'.globl {NAME}_kernel\n.type {NAME}_kernel,@function\n' + k.text()
    out += f'''.section .rodata,"a"
.p2align 6
.amdhsa_kernel {NAME}_kernel
  .amdhsa_next_free_vgpr 512
  .amdhsa_next_free_sgpr 102
  .amdhsa_accum_offset 256
  .amdhsa_group_segment_fixed_size 0
  .amdhsa_kernarg_size 88
  .amdhsa_user_sgpr_count 2
  .amdhsa_user_sgpr_kernarg_segment_ptr 1
  .amdhsa_system_sgpr_workgroup_id_x 1
.end_amdhsa_kernel
'''
    open(sys.argv[1], 'w').write(out)
```

```python
import sys, struct
from asmlib import Asm, Ins, check_all_edges

NAME = 'standalone__edge_featured_mpnn_mpnn__graph'
N, E = 50000, 800000
NB, BN = 256, 196
NCH, CH = 250, 3200
MAGIC = 85599
WS_REC, WS_TAB, WS_W = 0, 8 << 20, 9 << 20
WS_SIZE = 10 << 20
WS_STAMP = (9 << 20) + (512 << 10)
DUMMY = 0x4000FFFF
def f32(x): return struct.unpack('<I', struct.pack('<f', x))[0]
NLOG2E = f32(-1.4426950408889634)
NLN2 = f32(-0.6931471805599453)

class P:
    depth = 3
    stamp = 0
    efrac = 100
    xfrac = 100
    limit = 3000
    classes = 4
    estr = 128
    srcpos = 8
    epre = ' 1344'
    diag = 0
    force = 0
    pol_in = ' nt'
    pol_e = ''
    pol_x = ''
    pol_out = ''

CNT, HIST, FLAG = 0, 3328, 3584
HB, START, B1T, B2T, TT = 4096, 5120, 6144, 6656, 7168
EX, EE = 8192, 40960
RING = 73728
NSLOT = 15
MAP = RING
WST = MAP + 16384
STAGE = WST
XP = 1056
SLOT = 4 * XP + 1024
OACC = 8192
def lds_bytes(): return max(RING + 4 * P.depth * SLOT, WST + 52 * 1024)

PATTERN = [(0, 0, 'H', 1), (2, 0, 'H', 2), (3, 0, 'H', 2), (3, 1, 'H', 16), (2, 1, 'H', 9), (0, 0, 'S', 30),
           (1, 1, 'H', 14), (1, 0, 'S', 32), (2, 0, 'S', 28), (3, 0, 'S', 28), (0, 1, 'H', 16), (2, 1, 'S', 14), (1, 1, 'S', 4)]
def pattern_table():
    free = {(w, ph): list(range(32)) for w in range(4) for ph in range(2)}
    T = [None] * BN; p = 0; segs = []
    for w, ph, t, n in PATTERN: segs.append((w, ph, t, p, n)); p += n
    assert p == BN
    for t0 in 'HS':
        for w, ph, t, p0, n in segs:
            if t != t0: continue
            for i in range(n):
                pos = free[(w, ph)].pop(0)
                if t == 'H': assert pos < 16; free[(w, ph)].remove(pos + 16)
                T[p0 + i] = (((w * 2 + ph) * 4096 + pos * 4 + 128) << 16) | (64 if t == 'H' else 128)
    assert all(not v for v in free.values())
    return T + [128] * (256 - BN)

vN, vD, vQ, vY, vE = 0, 64, 128, 192, 224
vEX, vEE, vAX, vAE, vCX, vCE, vBX0, vBE0, vBX, vBE, vINFO, vDEG, vMAX = 240, 244, 245, 246, 247, 248, 249, 250, 251, 252, 253, 254, 255
aW1A, aW1C, aW1B, aW2, aBX, aBE, aJUNK = 0, 64, 80, 144, 208, 224, 228
SX, SE, SW, SO, SD, SS = 12, 16, 20, 24, 68, 72
sB, sNB0, sNNODE, sWAVE, sMAP, sCOL = 28, 29, 30, 31, 32, 33
sXO = 36
s128, sSLOT, sRING0, sRING1, sT, sL, sLNEXT, sQROW = 40, 41, 42, 43, 44, 45, 46, 47
sLN2, sBAD = 48, 50
sJ, sJUMP, sINC = 52, 53, 54
sSLOW, sCNT = 66, 67
mLO, mBN, mNN = 's[76:77]', 's[78:79]', 's[80:81]'
sTAG, sTAG8, sTAG8S = 82, 83, 84
def R(p, b, n): return f'{p}[{b}:{b+n-1}]'
def srdn(s): return f's[{s}:{s+3}]'
SDWA = 'dst_sel:DWORD dst_unused:UNUSED_PAD src0_sel:DWORD src1_sel:'

def srd(a, d, lo, size):
    a(f's_mov_b32 s{d}, s{lo}'); a(f's_and_b32 s{d+1}, s{lo+1}, 0xffff')
    a(f's_mov_b32 s{d+2}, {size}'); a(f's_mov_b32 s{d+3}, 0x20000')
def wave_scan(a, v, fill=()):
    fill = list(fill)
    steps = [f'row_shr:{sh} row_mask:0xf bank_mask:0xf bound_ctrl:0' for sh in (1, 2, 4, 8)]
    steps += ['row_bcast:15 row_mask:0xa bank_mask:0xf', 'row_bcast:31 row_mask:0xc bank_mask:0xf']
    for s in steps:
        for x in fill[:2]: a(x)
        fill = fill[2:]
        a(f'v_add_u32_dpp v{v}, v{v}, v{v} {s}')
    for x in fill: a(x)
def mfma(d, A, B, C): return f'v_mfma_f32_32x32x16_bf16 {d}, {A}, {B}, {C}'
def m1(c, k, dst, first_c):
    A = R('a', aW1A + (c * 4 + k) * 4, 4) if k < 4 else R('a', aW1C + c * 4, 4)
    B = R('a', aBX + k * 4, 4) if k < 4 else R('a', aBE, 4)
    return mfma(R('v', dst, 16), A, B, R('v', first_c if k == 0 else dst, 16))
def isize(x):
    op = x.split()[0]
    if op.startswith(('v_mfma', 'v_pk_', 'buffer_', 'ds_', 'global_', 'v_mad_', 'v_max3', 'v_cvt_pk', 'v_lshl_add', 'v_bfe', 'v_writelane', 's_memreal')) or op.endswith(('_e64', '_dpp', '_sdwa')): return 8
    for t in x.replace(',', ' ').split()[1:]:
        try: v = int(t, 0)
        except ValueError: continue
        if not -16 <= v <= 64 and not op.startswith(('s_movk', 's_waitcnt', 's_nop')): return 8
    return 4

def prep_offsets(a, vl, v1, v2, t0, t1):
    a(f'v_and_b32 v{t0}, 31, v{vl}'); a(f'v_lshrrev_b32 v{t1}, 5, v{vl}')
    a(f'v_lshlrev_b32 v{v1}, 11, v{t1}'); a(f'v_lshl_add_u32 v{v1}, v{t0}, 1, v{v1}')
    a(f'v_lshlrev_b32 v{v2}, 9, v{t1}')
    a(f'v_bfe_u32 v{t1}, v{t0}, 2, 1'); a(f'v_lshl_add_u32 v{v2}, v{t1}, 6, v{v2}')
    a(f'v_and_b32 v{t1}, 3, v{t0}'); a(f'v_lshl_add_u32 v{v2}, v{t1}, 1, v{v2}')
    a(f'v_lshrrev_b32 v{t1}, 3, v{t0}'); a(f'v_lshl_add_u32 v{v2}, v{t1}, 3, v{v2}')
def prep_w1_load(a, sidx, voff, vd, s0, s1):
    a(f's_and_b32 s{s0}, s{sidx}, 3'); a(f's_lshr_b32 s{s1}, s{sidx}, 2')
    a(f's_cmp_eq_u32 s{s1}, 4')
    a(f's_cselect_b32 s{s1}, s{s0}, s{s1}'); a(f's_cselect_b32 s{s0}, 8, s{s0}')
    a(f's_lshl_b32 s{s0}, s{s0}, 12'); a(f's_lshl_b32 s{s1}, s{s1}, 6'); a(f's_add_u32 s{s0}, s{s0}, s{s1}')
    a(f's_cmp_ge_u32 s{sidx}, 20'); a(f's_cselect_b32 s{s1}, {64*256 - 5*64}, 0'); a(f's_add_u32 s{s0}, s{s0}, s{s1}')
    for j in range(8): a(f'buffer_load_ushort v{vd+j}, v{voff}, {srdn(SD)}, s{s0} offen offset:{256*j}')
def prep_w2_load(a, sidx, voff, vd, s0, s1):
    a(f's_sub_u32 s{s0}, s{sidx}, 36'); a(f's_lshr_b32 s{s1}, s{s0}, 3'); a(f's_and_b32 s{s0}, s{s0}, 7')
    a(f's_lshl_b32 s{s0}, s{s0}, 11'); a(f's_lshl_b32 s{s1}, s{s1}, 5'); a(f's_add_u32 s{s0}, s{s0}, s{s1}')
    for j in range(8): a(f'buffer_load_ushort v{vd+j}, v{voff}, {srdn(SS)}, s{s0} offen offset:{128*((j&3)+8*(j>>2))}')
def prep_w1_pack(a, vd):
    for j in range(8): a(f'v_lshlrev_b32 v{vd+j}, 16, v{vd+j}')
    for j in range(8): a(f'v_mul_f32 v{vd+j}, {NLOG2E}, v{vd+j}')
    for j in range(4): a(f'v_cvt_pk_bf16_f32 v{vd+j}, v{vd+2*j}, v{vd+2*j+1}')
def prep_w2_pack(a, vd):
    for j in range(4): a(f'v_lshl_or_b32 v{vd+j}, v{vd+2*j+1}, 16, v{vd+2*j}')

def gen():
    D = P.depth
    VW = 5 * (D - 1)
    a = Asm()
    def stamp(i, real=False):
        if not P.stamp: return
        if P.stamp == 3: real = True
        a(f's_mem{"real" if real else ""}time s[86:87]'); a('s_waitcnt lgkmcnt(0)'); a(f's_mov_b32 s{88+i}, s86')
    def poll(name, load, check, first_issued=False):
        a(f's_movk_i32 s{sCNT}, {P.limit}')
        if first_issued: a(f's_branch {name}_chk')
        a.label(name)
        load()
        a.label(name + '_chk')
        a('s_waitcnt vmcnt(0)')
        check()
        a(f's_cbranch_scc0 {name}_ok')
        a(f's_sub_u32 s{sCNT}, s{sCNT}, 1')
        a(f's_cbranch_scc0 {name}')
        a(f's_mov_b32 s{sSLOW}, 1')
        a.label(name + '_ok')

    epre = [int(ch) for ch in P.epre.strip()]
    def warm(pos):
        n = 0
        for i, p in enumerate(epre):
            if p != pos: continue
            if i < 4:
                a(f'v_add_u32 v124, {i*256*P.estr}, v126')
                if (i + 1) * 256 * P.estr > CH * 32: a(f'v_min_u32 v124, v124, v125')
                a(f'buffer_load_dword a{aJUNK}, v124, {srdn(SE)}, 0 offen')
            else:
                a(f'v_lshlrev_b32 v124, 7, v24')
                a(f'buffer_load_dword a{aJUNK}, v124, {srdn(SX)}, s{sXO} offen')
            n += 1
        return n
    a('.p2align 8'); a.label(NAME + '_kernel')
    a(f's_cmp_ge_u32 s2, {NB}'); a('s_cbranch_scc1 L_end')
    stamp(0, True); stamp(1)
    a('s_load_dwordx8 s[4:11], s[0:1], 0')
    a('s_load_dwordx4 s[60:63], s[0:1], 64')
    a('s_load_dwordx2 s[64:65], s[0:1], 80')
    a('s_load_dwordx8 s[52:59], s[0:1], 32')
    a(f's_memrealtime s[{sTAG}:{sTAG+1}]')
    a('s_getpc_b64 s[14:15]')
    a.label('L_pc')
    a('v_lshlrev_b32 v15, 2, v0')
    a('s_add_u32 s14, s14, L_table-L_pc')
    a('s_addc_u32 s15, s15, 0')
    a('global_load_dword v11, v15, s[14:15]')
    a('v_lshrrev_b32 v1, 6, v0')
    a('v_and_b32 v2, 63, v0')
    a(f'v_readfirstlane_b32 s{sWAVE}, v1')
    a('v_lshlrev_b32 v21, 4, v0')
    for i in range(4): a(f'v_mov_b32 v{4+i}, 0')
    a('ds_write_b128 v21, v[4:7]')
    a(f'ds_write_b32 v15, v4 offset:{HB}')
    a('v_mov_b32 v12, 0')
    a('v_mov_b32 v13, 1')
    a('v_lshlrev_b32 v9, 4, v2')
    a('v_cmp_gt_u32 vcc, 128, v0')
    a(f's_mul_i32 s3, s2, {CH*4}')
    for s in (SD, SS): a(f's_mov_b32 s{s+2}, {E*4}'); a(f's_mov_b32 s{s+3}, 0x20000')
    a(f's_mov_b64 {mLO}, vcc')
    a(f's_mov_b32 s{sSLOW}, 0')
    a('s_waitcnt lgkmcnt(0)')
    vDs, vSr, vB, vRk, vRec = 32, 48, 64, 80, 96
    a(f's_mov_b32 s{SD}, s10'); a(f's_and_b32 s{SD+1}, s11, 0xffff')
    a(f's_mov_b32 s{SS}, s8'); a(f's_and_b32 s{SS+1}, s9, 0xffff')
    for i in range(4): a(f's_add_u32 s{8+i}, s3, {4096*i}')
    a(f's_or_b32 s37, s2, s{sWAVE}')
    a('s_cbranch_scc1 L_notag')
    if P.force != 1:
        a(f's_or_b32 s{sTAG}, s{sTAG}, 1')
        a(f'v_mov_b32 v4, s{sTAG}'); a(f'v_mov_b32 v5, s{sTAG+1}')
        a('s_mov_b64 exec, 1')
        a('global_store_dwordx2 v12, v[4:5], s[62:63] sc1')
        a('s_mov_b64 exec, -1')
    a.label('L_notag')
    a(f's_cmp_ge_u32 s2, {NCH}'); a('s_cbranch_scc1 L_prep_load')
    def edge_loads(srdn_, vb, so):
        for i in range(3): a(f'buffer_load_dwordx4 {R("v", vb+4*i, 4)}, v21, {srdn(srdn_)}, s{so+i} offen{P.pol_in}')
        a(f'buffer_load_dword v{vb+12}, v15, {srdn(srdn_)}, s{so+3} offen{P.pol_in}')
    edge_loads(SD, vDs, 8)
    a.label('L_setup')
    a('v_and_b32 v10, 3, v0')
    a('v_bfe_u32 v16, v0, 2, 4')
    a('v_lshl_add_u32 v10, v16, 3, v10')
    a('v_lshl_add_u32 v10, v1, 2, v10')
    a(f'v_cndmask_b32 v10, v2, v10, {mLO}')
    a('v_lshlrev_b32 v10, 1, v10')
    a(f's_cmp_lt_u32 s{sWAVE}, 2')
    a('s_cselect_b64 s[54:55], s[54:55], s[58:59]')
    a(f's_cselect_b32 s34, {NLOG2E}, 1.0')
    a('global_load_ushort v10, v10, s[54:55]')
    for i in range(4): a(f'v_mov_b32 v{4+i}, {DUMMY}')
    a(f'v_add_u32 v3, {EX + 16384}, v21')
    init = [f'ds_write_b128 v21, v[4:7] offset:{EX + 4096*i}' for i in range(4)]
    init += [f'ds_write_b128 v3, v[4:7] offset:{4096*i}' for i in range(16)]
    C = []
    C += [f's_and_b32 s{sB}, s2, 7', f's_lshl_b32 s{sB}, s{sB}, 5', 's_lshr_b32 s3, s2, 3', f's_add_u32 s{sB}, s{sB}, s3',
          f's_mul_i32 s{sNB0}, s{sB}, {BN}', f's_sub_u32 s{sNNODE}, {N}, s{sNB0}', f's_min_u32 s{sNNODE}, s{sNNODE}, {BN}',
          f's_lshl_b32 s{sCOL}, s{sB}, 3', f's_add_u32 s{sCOL}, s{sCOL}, {WS_TAB}']
    C += [f's_sub_u32 s{SX}, s4, {3*XP}', f's_subb_u32 s{SX+1}, s5, 0', f's_and_b32 s{SX+1}, s{SX+1}, 0xffff',
          f's_mov_b32 s{SX+2}, {(N*128 + 3*XP) * P.xfrac // 100}', f's_mov_b32 s{SX+3}, 0x20000']
    for d, lo, size in ((SE, 6, E * 32 * P.efrac // 100), (SO, 60, N * 128), (SW, 64, WS_SIZE)):
        C += [f's_mov_b32 s{d}, s{lo}', f's_and_b32 s{d+1}, s{lo+1}, 0xffff', f's_mov_b32 s{d+2}, {size}', f's_mov_b32 s{d+3}, 0x20000']
    C += [f's_movk_i32 s{sXO+j}, {(3-j)*XP}' for j in range(4)]
    C += [f's_movk_i32 s{s128}, 128', f's_mov_b32 s{sLN2}, {NLN2}', f's_mov_b32 s{sLN2+1}, {NLN2}', f's_mov_b64 s[{sBAD}:{sBAD+1}], 0']
    C += [f's_lshl_b32 s{sMAP}, s{sWAVE}, 12', f's_add_u32 s{sMAP}, s{sMAP}, {MAP}']
    C += [f's_lshl_b32 s{sQROW}, s{sWAVE}, 13', f's_add_u32 s{sQROW}, s{sQROW}, {EX}']
    C += [f's_mul_i32 s{sRING0}, s{sWAVE}, {D*SLOT}', f's_add_u32 s{sRING0}, s{sRING0}, {RING}',
          f's_add_u32 s{sRING1}, s{sRING0}, {D*SLOT}', f's_mov_b32 s{sSLOT}, s{sRING0}']
    C += ['v_and_b32 v16, 7, v2', 'v_lshrrev_b32 v18, 5, v2', 'v_xor_b32 v16, v16, v18', f'v_lshlrev_b32 v{vCX}, 4, v16']
    C += ['v_and_b32 v17, 1, v2', f'v_lshlrev_b32 v{vCE}, 4, v17']
    C += ['v_bfe_u32 v16, v2, 1, 2', f'v_mul_u32_u24 v16, {XP}, v16', 'v_bfe_u32 v20, v2, 3, 2', 'v_lshl_add_u32 v16, v20, 7, v16',
          'v_lshl_add_u32 v16, v17, 9, v16', 'v_xor_b32 v20, v17, v18', f'v_lshl_add_u32 v{vBX0}, v20, 4, v16']
    C += ['v_bfe_u32 v16, v2, 1, 4', 'v_lshl_add_u32 v16, v17, 4, v16', 'v_lshlrev_b32 v16, 5, v16', 'v_lshl_add_u32 v16, v18, 4, v16',
          f'v_add_u32 v{vBE0}, {4*XP}, v16']
    C += ['v_lshrrev_b32 v16, 3, v2', f'v_lshl_add_u32 v{vAX}, v16, 4, s{sQROW}']
    C += ['v_lshrrev_b32 v16, 1, v2', f'v_lshl_add_u32 v{vAE}, v16, 2, s{sQROW}']
    C += ['v_and_b32 v16, 31, v2', 'v_lshlrev_b32 v16, 2, v16', 'v_lshl_add_u32 v16, v18, 12, v16', f'v_add_u32 v25, s{sQROW}, v16']
    C += [f'v_add_u32 v24, s{sNB0}, v0', f'v_cmp_gt_u32 vcc, {BN}, v0', f'v_cmp_gt_u32 {mNN}, s{sNNODE}, v0', f's_mov_b64 {mBN}, vcc']
    C += ['v_lshlrev_b32 v19, 2, v2', 'v_lshlrev_b32 v14, 3, v2', 'v_lshlrev_b32 v30, 11, v0', f'v_mul_u32_u24 v31, {CH}, v0']
    C += [f's_mul_i32 s3, s2, {CH*32}', 'v_lshl_add_u32 v22, v0, 7, s3', f's_add_u32 s3, s3, {3072*32}', f'v_lshl_add_u32 v{vRec+25}, v0, 5, s3',
          'v_mov_b32 v23, 0x1000000', f's_mov_b32 s55, {MAGIC}', 's_movk_i32 s56, -49', f's_movk_i32 s57, {167 if P.classes == 22 else 335}', f's_mov_b32 s59, {-167 if P.classes == 22 else 0x180000}', 'v_mov_b32 v127, 0x1ffffff', f's_mov_b32 s58, {0x100000 | {1: 0, 2: 0x80000}.get(P.classes, 0xc0000)}']
    C += [f'v_add_u32 v{vRec+2*i+1}, {((i>>2)*1024 + (i&3))*32}, v22' for i in range(12)]
    k = 0
    while init or C:
        if init: a(init.pop(0))
        for x in C[:6]: a(x)
        C = C[6:]
        k += 1
        if k == P.srcpos:
            a(f's_cmp_ge_u32 s2, {NCH}'); a('s_cbranch_scc1 L_nosrc')
            edge_loads(SS, vSr, 8)
            a.label('L_nosrc')
    if epre:
        a(f's_mul_i32 s3, s2, {CH*32}'); a(f'v_mul_u32_u24 v126, {P.estr}, v0'); a('v_add_u32 v126, s3, v126')
        a(f's_add_u32 s3, s3, {CH*32-128}'); a('v_mov_b32 v125, s3')
    n0 = warm(0)
    a('s_waitcnt lgkmcnt(0)')
    a('s_barrier')
    tagload = lambda: a('global_load_dwordx2 v[16:17], v12, s[62:63] sc1')
    def tagcheck():
        a(f'v_readfirstlane_b32 s{sTAG}, v16'); a(f'v_readfirstlane_b32 s{sTAG8}, v17')
        a(f's_cmp_eq_u32 s{sTAG}, 0')
    a(f's_cmp_ge_u32 s2, {NCH}'); a('s_cbranch_scc1 L_prep_store')
    a(f's_waitcnt vmcnt({5+n0})')
    stamp(2)
    tagload()
    n1 = warm(1)
    for i in range(13): a(f'v_mul_u32_u24 v{vB+i}, s55, v{vDs+i}')
    for i in range(13): a(f'v_lshlrev_b32_sdwa v{vB+i}, 2, v{vB+i} {SDWA}BYTE_3')
    for i in range(13):
        if i == 12: a(f's_mov_b64 exec, {mLO}')
        a(f'ds_add_rtn_u32 v{vRk+i}, v{vB+i}, v13 offset:{HB}')
    a('s_mov_b64 exec, -1')
    for i in range(13): a(f'v_mad_i32_i24 v{vDs+i}, v{vB+i}, s56, v{vDs+i}')
    a(f's_waitcnt vmcnt({1+n0+n1})')
    npf = 4 * len([p for p in epre[:3]])
    for i in range(13):
        if P.classes == 22 and i >= npf: a(f'v_mad_i32_i24 v{vRec+2*i}, v{vSr+i}, s59, v127')
        else: a(f'v_mad_u32_u24 v{vRec+2*i}, v{vSr+i}, s57, v23')
        if P.classes == 32 and i >= npf: a(f'v_max_u32 v{vRec+2*i}, 0x1400000, v{vRec+2*i}')
    a('s_waitcnt lgkmcnt(0)')
    a('s_barrier')
    a(f'ds_read_b128 v[26:29], v9 offset:{HB}')
    a(f'ds_write_b32 v15, v11 offset:{TT}')
    F = []
    for i in range(13): F.append(f'v_lshrrev_b32 v{vRec+2*i}, 4, v{vRec+2*i}')
    for i in range(13): F.append(f'v_and_or_b32 v{vRec+2*i}, v{vRec+2*i}, s{59 if P.classes == 32 and i < npf else 58}, v{vSr+i}')
    for i in range(13): F.append(f'v_lshl_add_u32 v{vRec+2*i}, v{vDs+i}, 20, v{vRec+2*i}')
    for x in F[:20]: a(x)
    a('s_waitcnt lgkmcnt(1)')
    a('v_add_u32 v5, v26, v27'); a('v_add_u32 v6, v5, v28'); a('v_add_u32 v7, v6, v29')
    a('v_mov_b32 v3, v7')
    wave_scan(a, 3, F[20:32])
    a('v_sub_u32 v4, v3, v7'); a('v_add_u32 v7, v4, v6'); a('v_add_u32 v6, v4, v5'); a('v_add_u32 v5, v4, v26')
    a(f'ds_write_b128 v9, v[4:7] offset:{START}')
    for i in range(13): a(f'ds_read_b32 v{vB+i}, v{vB+i} offset:{START}')
    for x in F[32:]: a(x)
    a('v_lshlrev_b32 v10, 16, v10')
    a('v_mul_f32 v10, s34, v10')
    a(f's_mov_b32 s3, {STAGE // 8}')
    for i in range(13): a(f'v_add_u32 v{vRk+i}, s3, v{vRk+i}')
    a('s_waitcnt lgkmcnt(0)')
    for i in range(13): a(f'v_add_lshl_u32 v{vB+i}, v{vB+i}, v{vRk+i}, 3')
    for i in range(13):
        if i == 12: a(f's_mov_b64 exec, {mLO}')
        a(f'ds_write_b64 v{vB+i}, {R("v", vRec+2*i, 2)}')
    a('s_mov_b64 exec, -1')
    a(f'ds_write_b32 v15, v10 offset:{B1T}')
    a(f'v_add_u32 v3, {STAGE}, v21')
    a(f's_mul_i32 s3, s2, {CH*8}')
    for i in range(4): a(f'v_lshl_or_b32 v{26+i}, v{26+i}, 12, v{4+i}')
    a(f's_cmp_eq_u32 s{sWAVE}, 0')
    a('s_cselect_b64 s[56:57], -1, 0')
    a('s_waitcnt lgkmcnt(0)')
    a('s_barrier')
    for i in range(7): a(f'ds_read_b128 {R("v", 32+4*i, 4)}, v3 offset:{4096*i}')
    for i in range(7):
        a(f's_waitcnt lgkmcnt({6-i})')
        if i == 6: a('s_mov_b64 exec, s[56:57]')
        a(f'buffer_store_dwordx4 {R("v", 32+4*i, 4)}, v21, {srdn(SW)}, s3 offen sc1')
        if i < 6: a('s_add_u32 s3, s3, 4096')
    a('s_mov_b64 exec, -1')
    a.label('L_publish')
    stamp(3)
    a('v_min_u32 v3, 5, v2')
    a(f'v_add_u32 v3, {NCH}, v3')
    a('v_lshlrev_b32 v20, 11, v3')
    wload = lambda: a(f'buffer_load_dwordx2 v[122:123], v20, {srdn(SW)}, s{sCOL} offen sc1')
    wload()
    poll('L_ptag', tagload, tagcheck, first_issued=True)
    a(f's_and_b32 s{sTAG8}, s{sTAG8}, 0xff')
    a(f's_lshl_b32 s{sTAG8S}, s{sTAG8}, 24')
    a('s_barrier')
    a(f's_cmp_lg_u32 s{sSLOW}, 0'); a('s_cbranch_scc1 L_nomap')
    a(f's_cmp_lg_u32 s{sWAVE}, 3'); a('s_cbranch_scc1 L_norow')
    if P.force == 2: a('s_cmp_eq_u32 s2, 7'); a('s_cbranch_scc1 L_norow')
    for i in range(4):
        a(f'v_or_b32 v{32+2*i}, s{sTAG8S}, v{26+i}')
        a(f'v_mov_b32 v{33+2*i}, s{sTAG}')
    a('s_lshl_b32 s3, s2, 11'); a(f's_add_u32 s3, s3, {WS_TAB}')
    a('v_lshlrev_b32 v3, 5, v2')
    a(f'buffer_store_dwordx4 v[32:35], v3, {srdn(SW)}, s3 offen sc1')
    a(f'buffer_store_dwordx4 v[36:39], v3, {srdn(SW)}, s3 offen offset:16 sc1')
    a.label('L_norow')
    stamp(4)
    def tcheck(v):
        def f():
            a(f'v_cmp_ne_u32 s[56:57], s{sTAG}, v{v+1}')
            a(f'v_cmp_ne_u32_sdwa vcc, v{v}, s{sTAG8} src0_sel:BYTE_3 src1_sel:DWORD')
            a('s_or_b64 vcc, vcc, s[56:57]')
        return f
    tcheck(122)()
    a('s_cbranch_scc0 L_pw_ok')
    poll('L_pw', wload, tcheck(122))
    a(f's_mul_i32 s3, s{sWAVE}, {13*1024}')
    a(f's_add_u32 s35, s3, {WS_W}')
    a(f's_add_u32 m0, s3, {WST}')
    for i in range(13):
        if i and i % 4 == 0: a('s_add_u32 m0, m0, 4096'); a('s_add_u32 s35, s35, 4096')
        a(f'buffer_load_dwordx4 v9, {srdn(SW)}, s35 offen offset:{(i%4)*1024} sc1 lds')
    poll('L_pt', lambda: a(f'buffer_load_dwordx2 v[16:17], v30, {srdn(SW)}, s{sCOL} offen sc1'), tcheck(16))
    stamp(5)
    warm(2)
    a('v_bfe_u32 v17, v16, 12, 12')
    a('v_and_b32 v16, 0xfff, v16')
    a('v_mov_b32 v18, v17')
    wave_scan(a, 18, ['v_add_u32 v16, v16, v31', 'v_cmp_lt_u32 s[56:57], 16, v17', 'v_cmp_lt_u32 s[58:59], 8, v17',
                      'v_cmp_lt_u32 s[60:61], 0, v17', 'v_cmp_lt_u32 vcc, 24, v17', f'v_mov_b32 v4, {DUMMY}', f'v_add_u32 v20, s{sMAP}, v19'])
    a('v_sub_u32 v3, v18, v17')
    a('v_readlane_b32 s3, v18, 63')
    a('v_sub_u32 v16, v16, v3')
    a(f'v_lshl_add_u32 v18, v3, 2, s{sMAP}')
    a('v_lshlrev_b32 v16, 3, v16')
    a(f's_cmp_gt_u32 s3, {NSLOT*64}')
    a(f's_cselect_b32 s{sSLOW}, 1, s{sSLOW}')
    a(f's_cmp_lg_u32 s{sSLOW}, 0'); a('s_cbranch_scc1 L_nomap')
    a('v_lshl_add_u32 v3, s3, 2, v20')
    for m, j0 in (('s[56:57]', 16), ('s[58:59]', 8), ('s[60:61]', 0)):
        a(f's_mov_b64 exec, {m}')
        for j in range(j0 + 7, j0 - 1, -1): a(f'ds_write_b32 v18, v16 offset:{4*j}')
    a('s_mov_b64 exec, -1')
    a('ds_write_b32 v3, v4')
    a('s_cbranch_vccz L_nomap')
    a.label('L_map')
    for j in range(24, 28):
        a(f'v_cmpx_lt_u32 vcc, {j}, v17')
        a(f'ds_write_b32 v18, v16 offset:{4*j}')
    a('v_add_u32 v18, 16, v18')
    a('v_subrev_u32 v17, 4, v17')
    a('s_cbranch_execnz L_map')
    a('s_mov_b64 exec, -1')
    a.label('L_nomap')
    vR, vI, vK, vP = 32, 64, 80, 96
    a(f'v_add_u32 v20, s{sMAP}, v19')
    for i in range(NSLOT): a(f'ds_read_b32 v{vI+i}, v20 offset:{256*i}')
    a('s_movk_i32 s3, 4096')
    for lo, hi in ((0, 5), (5, 10), (10, 15)):
        a(f's_waitcnt lgkmcnt({NSLOT-hi})')
        for i in range(lo, hi): a(f'v_add_u32 v{vI+i}, v{vI+i}, v14')
        for i in range(lo, hi):
            a(f'buffer_load_dwordx2 {R("v", vR+2*i, 2)}, v{vI+i}, {srdn(SW)}, {"s3" if i >= 8 else "0"} offen offset:{512*(i%8)} sc1')
    a('v_lshlrev_b32 v29, 7, v24')
    a(f'buffer_load_dword a{aJUNK}, v29, {srdn(SX)}, s{sXO} offen')
    n3 = warm(3)
    a(f'v_add_u32 v3, {WST}, v9')
    stamp(6)
    a('s_barrier')
    for i in range(52): a(f'ds_read_b128 {R("a", 4*i, 4)}, v3 offset:{1024*i}')
    for lo, hi in ((0, 6), (6, 11), (11, 15)):
        a(f's_waitcnt vmcnt({NSLOT-hi+1+n3})')
        for i in range(lo, hi): a(f'v_lshrrev_b32 v{vI+i}, 16, v{vR+2*i}')
        if lo == 11:
            for i in range(lo, hi): a(f'v_cmp_ne_u32 s[{58+2*(i-lo)}:{59+2*(i-lo)}], 0, v{vI+i}')
        for i in range(lo, hi):
            if lo == 11: a(f's_mov_b64 exec, s[{58+2*(i-lo)}:{59+2*(i-lo)}]')
            a(f'ds_add_rtn_u32 v{vK+i}, v{vI+i}, v13 offset:{CNT}')
    if 4 in epre: a('s_mov_b64 exec, -1'); warm(4)
    a(f's_mov_b64 exec, {mBN}')
    a('s_waitcnt lgkmcnt(0)')
    a('s_barrier')
    stamp(7)
    a(f'ds_read_b128 v[4:7], v21 offset:{CNT + 16}')
    a('s_waitcnt lgkmcnt(0)')
    a('v_add_u32 v5, v4, v5'); a('v_add_u32 v6, v5, v6'); a('v_add_u32 v16, v6, v7')
    a('v_min_u32 v17, 63, v16')
    a('v_sub_u32 v17, 63, v17')
    a('v_lshlrev_b32 v17, 2, v17')
    a(f'ds_add_rtn_u32 v18, v17, v13 offset:{HIST}')
    a('v_sub_u32 v26, v16, v4'); a('v_sub_u32 v27, v16, v5'); a('v_sub_u32 v28, v16, v6')
    a('v_lshrrev_b32 v23, 1, v16')
    a('v_lshl_or_b32 v23, v23, 16, v24')
    a('v_or_b32 v23, 0xc00000, v23')
    a('s_mov_b64 exec, -1')
    a('s_waitcnt lgkmcnt(0)')
    a('s_barrier')
    a(f'ds_read_b32 v20, v19 offset:{HIST}')
    a(f'v_mov_b32 v3, {(32768 - 4) << 16}')
    a(f'ds_write_b32 v12, v3 offset:{CNT}')
    a('s_waitcnt lgkmcnt(1)')
    a('v_mov_b32 v3, v20')
    wave_scan(a, 3)
    a('v_sub_u32 v20, v3, v20')
    a('ds_bpermute_b32 v20, v17, v20')
    a(f's_mov_b64 exec, {mNN}')
    a('s_waitcnt lgkmcnt(0)')
    a('v_add_lshl_u32 v20, v20, v18, 2')
    a(f'ds_read_b32 v22, v20 offset:{TT}')
    a('s_waitcnt lgkmcnt(0)')
    a('v_and_b32 v3, 0x10000000, v22')
    a('v_lshlrev_b32 v29, 16, v22')
    a('v_cmp_ne_u32 vcc, 0, v3')
    a('v_bfe_u32 v3, v22, 6, 1')
    a('v_add_u32 v16, v16, v3')
    a('v_cndmask_b32 v7, v6, v12, vcc'); a('v_cndmask_b32 v6, v5, v28, vcc')
    a('v_cndmask_b32 v5, v4, v27, vcc'); a('v_cndmask_b32 v4, v12, v26, vcc')
    for i in range(4): a(f'v_mad_u32_u24 v{4+i}, v{4+i}, v29, v22')
    a('v_lshrrev_b32 v16, v3, v16')
    a('v_lshrrev_b32 v22, 16, v22')
    a('v_lshl_or_b32 v24, v3, 22, v24')
    a('v_cmp_lt_u32 s[56:57], 30, v16')
    a('v_lshl_or_b32 v24, v16, 16, v24')
    a('v_cmp_ne_u32 vcc, 0, v3')
    a(f'ds_write_b128 v21, v[4:7] offset:{CNT + 16}')
    a(f'ds_write_b32 v22, v24 offset:{EX - 128}')
    a('s_mov_b64 exec, vcc')
    a(f'ds_write_b32 v22, v23 offset:{EX - 64}')
    a(f's_or_b32 s56, s56, s{sSLOW}')
    a('s_mov_b64 exec, s[56:57]')
    a(f'ds_write_b32 v12, v13 offset:{FLAG}')
    a('s_mov_b64 exec, -1')
    a('s_waitcnt lgkmcnt(0)')
    a('s_barrier')

    ell_read = [f'ds_read_b128 {R("v", vEX, 4)}, v{vAX}', f'ds_read_b32 v{vEE}, v{vAE} offset:{EE-EX}']
    jump = [f's_sub_u32 s{sJ}, s{sJ}, 1', f's_cselect_b32 s{sINC}, s{sJUMP}, s{s128}']
    ell_adv = [f'v_add_u32 v{vAX}, s{sINC}, v{vAX}', f'v_add_u32 v{vAE}, s{sINC}, v{vAE}']
    xaddr = [f'v_mad_u32_u16 v{vEX+j}, v{vEX+j}, s{s128}, v{vCX}' for j in range(4)]
    eaddr = f'v_add_u32 v{vEE}, v{vEE}, v{vCE}'
    m0x = f's_mov_b32 m0, s{sSLOT}'; m0e = f's_add_u32 m0, s{sSLOT}, {4*XP}'
    dmax = [f'buffer_load_dwordx4 v{vEX+j}, {srdn(SX)}, s{sXO+j} offen offset:{j*XP}{P.pol_x} lds' for j in range(4)]
    dmae = f'buffer_load_dwordx4 v{vEE}, {srdn(SE)}, 0 offen{P.pol_e} lds'
    adv = [f's_add_u32 s{sSLOT}, s{sSLOT}, {SLOT}', f's_cmp_eq_u32 s{sSLOT}, s{sRING1}', f's_cselect_b32 s{sSLOT}, s{sRING0}, s{sSLOT}']
    baddr = [f'v_add_u32 v{vBX}, s{sSLOT}, v{vBX0}', f'v_add_u32 v{vBE}, s{sSLOT}, v{vBE0}']
    bread = [f'ds_read_b128 {R("a", aBX+4*k, 4)}, v{vBX} offset:{32*k}' for k in range(4)] + [f'ds_read_b128 {R("a", aBE, 4)}, v{vBE}']
    PFa = [m0x] + xaddr + [eaddr] + dmax + [m0e] + [adv[0]] + [dmae] + adv[1:]
    PFb = ell_read + jump + ell_adv
    PF = PFa + PFb + baddr

    a(f'ds_read_b32 v16, v12 offset:{FLAG}')
    for i in range(NSLOT - 1): a(f'ds_read_b32 v{vP+i}, v{vI+i} offset:{CNT}')
    a(f's_waitcnt lgkmcnt({NSLOT - 6})')
    a(f'ds_read_b32 v{vP+NSLOT-1}, v{vI+NSLOT-1} offset:{CNT}')
    a('ds_read_b32 v17, v25')
    for x in ell_read: a(x)
    a('v_readfirstlane_b32 s3, v16')
    a('s_cmp_lg_u32 s3, 0'); a('s_cbranch_scc1 L_slow')
    for lo, hi in ((0, 5), (5, 10), (10, 15)):
        if lo: a(f's_waitcnt lgkmcnt({NSLOT - hi + 3 if hi < NSLOT else 0})')
        for i in range(lo, hi): a(f'v_mul_u32_u24_sdwa v{vK+i}, v{vK+i}, v{vP+i} {SDWA}WORD_0')
        for i in range(lo, hi): a(f'v_add_u32_sdwa v{vP+i}, v{vK+i}, v{vP+i} {SDWA}WORD_1')
    for i in range(NSLOT):
        if i >= 11: a(f's_mov_b64 exec, s[{58+2*(i-11)}:{59+2*(i-11)}]')
        a(f'ds_write2st64_b32 v{vP+i}, v{vR+2*i}, v{vR+2*i+1} offset0:{EX//256} offset1:{EE//256}')
    a('s_mov_b64 exec, -1')
    a('v_bfe_u32 v17, v17, 16, 6')
    for x in PFa: a(x)
    for sh in (1, 2, 4, 8): a(f'v_max_u32_dpp v17, v17, v17 row_shr:{sh} row_mask:0xf bank_mask:0xf bound_ctrl:0')
    a('v_max_u32_dpp v17, v17, v17 row_bcast:15 row_mask:0xa bank_mask:0xf')
    a(f'v_add_u32 v{vAX}, 128, v{vAX}'); a(f'v_add_u32 v{vAE}, 128, v{vAE}')
    a(f'v_readlane_b32 s{sL}, v17, 31')
    a(f'v_readlane_b32 s{sLNEXT}, v17, 63')
    a('s_waitcnt lgkmcnt(0)')
    a('s_barrier')
    stamp(8)
    for x in ell_read: a(x)
    a(f's_max_u32 s{sL}, s{sL}, 1')
    a(f's_max_u32 s{sLNEXT}, s{sLNEXT}, 1')
    a(f's_lshl_b32 s3, s{sL}, 7')
    a(f's_sub_u32 s{sJUMP}, 4096, s3')
    a(f's_sub_u32 s{sJ}, s{sL}, 1')
    for x in jump + ell_adv: a(x)
    if P.stamp: a(f's_mov_b32 s{88+9}, 0'); a(f's_mov_b32 s{88+10}, 0')
    for r in range(1, D):
        a('s_waitcnt lgkmcnt(0)')
        for x in PF: a(x)

    a.label('L_group')
    a(f'v_lshrrev_b32 v{vE+1}, 3, v{vBE0}')
    a(f'v_and_b32 v{vE}, 16, v{vBE0}')
    a(f'v_and_b32 v{vE+1}, -4, v{vE+1}')
    a(f'v_lshlrev_b32 v{vE}, 4, v{vE}')
    a(f's_sub_u32 s3, s{sQROW}, {4*XP//8}')
    a(f'v_add_u32 v{vE+1}, s3, v{vE+1}')
    a(f'ds_read_b32 v{vINFO}, v{vE+1}')
    for i in range(16): a(f'ds_read_b128 {R("v", vQ+4*i, 4)}, v{vE} offset:{B1T + 16*i}')
    a(f's_waitcnt vmcnt({VW})')
    for x in bread[:4]: a(x)
    a('s_waitcnt lgkmcnt(0)')
    pf = list(PF)
    for k in range(4):
        for c in range(4):
            a(mfma(R('v', vQ+16*c, 16), R('a', aW1B + (c*4+k)*4, 4), R('a', aBX+4*k, 4), R('v', vQ+16*c, 16)))
            for x in pf[:2]: a(x)
            pf = pf[2:]
    assert not pf
    a(f's_waitcnt vmcnt({VW})')
    for x in bread: a(x)
    a(f'v_bfe_u32 v{vDEG}, v{vINFO}, 16, 6')
    a(f's_add_u32 s{sQROW}, s{sQROW}, 4096')
    a(f's_mov_b32 s{sT}, 1')
    if P.stamp:
        a(f's_cmp_lg_u32 s{88+9}, 0'); a('s_cbranch_scc1 L_st9'); stamp(9); a.label('L_st9')
    a('s_waitcnt lgkmcnt(0)')
    pf = list(PF)
    for k in range(5):
        a(m1(0, k, vN, vQ))
        n = 3 if k < 4 else 99
        for x in pf[:n]: a(x)
        pf = pf[n:]
    for c in range(4):
        cn = (c + 1) & 3
        if c == 3: a('s_waitcnt lgkmcnt(0)')
        for k in range(5):
            a(m1(cn, k, vN + 16*cn if c < 3 else vY, vQ + 16*cn))
            if c == 2:
                if k == 0: a(f's_waitcnt vmcnt({VW})')
                a(bread[k])
            for i in range(3*k, 3*k + (3 if k < 4 else 4)): a(f'v_exp_f32 v{vD+16*c+i}, v{vN+16*c+i}')
        for p in range(8):
            d = R('v', vD + 16*c + 2*p, 2)
            a(f'v_pk_add_f32 {d}, {d}, 1.0 op_sel_hi:[1,0]')
    a(f's_cmp_ge_u32 s{sT}, s{sL}'); a('s_cbranch_scc1 L_flush')
    a(m0x)
    a(m1(1, 0, vY + 16, vQ + 16))
    a('.p2align 3')
    a.label('L_row')
    for c in range(4):
        cn = (c + 1) & 3
        y = vY + 16 * (c & 1); yn = vY + 16 * (cn & 1)
        S = [[] for _ in range(5)]
        V = [[] for _ in range(5)]
        if c == 0:
            S[1] = ['s_mov_b64 exec, -1']; V[1] = xaddr[:2]
            S[2] = [jump[0]]; V[2] = xaddr[2:]
            S[3] = [jump[1]]; V[3] = [eaddr]
            V[4] = dmax + [m0e, ell_read[0], dmae, ell_read[1]] + ell_adv + [f'v_cmpx_lt_u32 vcc, s{sT}, v{vDEG}']
        if c == 1:
            S[0] = [adv[0]]; S[1] = [adv[1]]; S[2] = [adv[2]]
            S[3] = [f's_add_u32 s{sT}, s{sT}, 1']
            V[4] = baddr
        if c == 2:
            for k in range(5): S[k] = [bread[k]]
            S[0].insert(0, f's_waitcnt vmcnt({VW})')
            S[4].insert(0, 's_waitcnt lgkmcnt(3)')
        if c == 3:
            S[0] = ['s_waitcnt lgkmcnt(0)']
            if P.stamp == 2: S[0] = ['s_memrealtime s[86:87]', 's_waitcnt lgkmcnt(0)', f's_mov_b32 m0, s{sT}', 's_nop 0', f'v_writelane_b32 v{vMAX}, s86, m0']
            S[1] = [f's_cmp_lt_u32 s{sT}, s{sL}']
            S[2] = [m0x]
        L = []
        for k in range(5):
            if (c, k) != (0, 0): L.append(m1(cn, k, yn, vQ + 16*cn))
            L += S[k]
            for i in range(3*k, 3*k + (3 if k < 4 else 4)): L.append(f'v_exp_f32 v{vE+i}, v{y+i}')
            L += V[k]
        if sum(isize(x) for x in L) % 8:
            i = max(i for i, x in enumerate(L) if x.startswith('v_exp_f32 '))
            L[i] = L[i].replace('v_exp_f32 ', 'v_exp_f32_e64 ')
        for x in L: a(x)
        for p in range(8):
            yy, nn, dd, ee = R('v', y+2*p, 2), R('v', vN+16*c+2*p, 2), R('v', vD+16*c+2*p, 2), R('v', vE+2*p, 2)
            a(f'v_pk_fma_f32 {yy}, {yy}, {dd}, {nn}')
            a(f'v_pk_fma_f32 {dd}, {dd}, {ee}, {dd}')
            a(f'v_pk_fma_f32 {nn}, {nn}, {ee}, {yy}')
    a(m1(1, 0, vY + 16, vQ + 16))
    a('s_cbranch_scc1 L_row')
    a.label('L_flush')
    if P.stamp:
        a(f's_cmp_lg_u32 s{88+10}, 0'); a('s_cbranch_scc1 L_st10'); stamp(10); a.label('L_st10')
        stamp(11)
    a('s_mov_b64 exec, -1')
    if P.stamp == 2:
        a(f'v_writelane_b32 v{vMAX}, s{sL}, 0')
        a(f'v_mbcnt_lo_u32_b32 v{vE}, -1, 0'); a(f'v_mbcnt_hi_u32_b32 v{vE}, -1, v{vE}'); a(f'v_lshlrev_b32 v{vE}, 2, v{vE}')
        a('s_lshl_b32 s3, s2, 2'); a(f's_add_u32 s3, s3, s{sWAVE}'); a('s_lshl_b32 s3, s3, 8'); a(f's_add_u32 s3, s3, {WS_STAMP + 65536}')
        a(f's_cmp_eq_u32 s{sLNEXT}, 0'); a('s_cselect_b32 s56, 128, 0'); a('s_add_u32 s3, s3, s56')
        a('s_mov_b32 exec_hi, 0')
        a(f'buffer_store_dword v{vMAX}, v{vE}, {srdn(SW)}, s3 offen')
        a('s_mov_b64 exec, -1')
    for x in baddr: a(x)
    a(f'v_and_b32 v{vQ+32}, 16, v{vBE0}')
    a(f'v_lshlrev_b32 v{vQ+33}, 3, v{vQ+32}')
    for i in range(8): a(f'ds_read_b128 {R("v", vQ+4*i, 4)}, v{vQ+33} offset:{B2T + 16*i}')
    a(f'v_lshlrev_b32 v{vQ+32}, 2, v{vQ+32}')
    a(f'v_mad_u32_u16 v{vQ+32}, v{vINFO}, s{s128}, v{vQ+32}')
    a(f'v_cvt_f32_u32 v{vQ+34}, v{vDEG}')
    a(f'v_mov_b32 v{vMAX}, 0')
    def g3(c, i):
        u = 2*c + (i >> 1); dt = i & 1
        acc = R('v', vY + 16*dt, 16)
        return mfma(acc, R('a', aW2 + (dt*8+u)*4, 4), R('v', vE + 8*(c & 1) + 4*(i >> 1), 4), acc if u else '0')
    for c in range(4):
        for q in range(4):
            if c: a(g3(c-1, q))
            for p in range(2):
                d = vD + 16*c + 4*q + 2*p
                a(f'v_max3_f32 v{vMAX}, v{d}, v{d+1}, v{vMAX}')
                a(f'v_rcp_f32 v{d}, v{d}'); a(f'v_rcp_f32 v{d+1}, v{d+1}')
        for p in range(8):
            nn, dd = R('v', vN+16*c+2*p, 2), R('v', vD+16*c+2*p, 2)
            a(f'v_pk_mul_f32 {nn}, {nn}, {dd}')
        if c == 3:
            a('s_waitcnt lgkmcnt(0)')
            for p in range(16):
                qq = R('v', vQ+2*p, 2)
                a(f'v_pk_mul_f32 {qq}, {qq}, {R("v", vQ+34, 2)} op_sel_hi:[1,0]')
        for p in range(8):
            a(f'v_cvt_pk_bf16_f32 v{vE+8*(c&1)+p}, v{vN+16*c+2*p}, v{vN+16*c+2*p+1}')
    for q in range(4): a(g3(3, q))
    a(f's_mov_b32 s3, {f32(2.0**100)}')
    a(f'v_bfe_u32 v{vQ+33}, v{vINFO}, 22, 2')
    a(f'v_cmp_ne_u32 s[58:59], 0, v{vQ+33}')
    a(f'v_cmp_ne_u32 s[60:61], 3, v{vQ+33}')
    a(f'v_cmpx_ne_u32 vcc, 0, v{vDEG}')
    a(f'v_cmp_lt_f32 s[56:57], s3, v{vMAX}')
    a(f'v_mov_b32 v{vMAX}, 0x207')
    for p in range(16):
        yy, qq = R('v', vY+2*p, 2), R('v', vQ+2*p, 2)
        a(f'v_pk_fma_f32 {qq}, {yy}, s[{sLN2}:{sLN2+1}], {qq}')
    a(f'v_cmp_class_f32 vcc, v{vQ}, v{vMAX}')
    a(f's_or_b64 s[{sBAD}:{sBAD+1}], s[{sBAD}:{sBAD+1}], s[56:57]')
    a('s_mov_b64 exec, s[58:59]')
    a(f's_or_b64 s[{sBAD}:{sBAD+1}], s[{sBAD}:{sBAD+1}], vcc')
    a('s_cbranch_execz L_nopair')
    for i in range(32):
        a(f'v_add_f32_dpp v{vQ+i}, v{vQ+i}, v{vQ+i} quad_perm:[1,0,3,2] row_mask:0xf bank_mask:0xf')
    a.label('L_nopair')
    a('s_mov_b64 exec, s[60:61]')
    for i in range(4):
        for p in range(4*i, 4*i+4): a(f'v_cvt_pk_bf16_f32 v{vE+p}, v{vQ+2*p}, v{vQ+2*p+1}')
        a(f'buffer_store_dwordx4 {R("v", vE+4*i, 4)}, v{vQ+32}, {srdn(SO)}, 0 offen offset:{16*i}{P.pol_out}')
    a('s_mov_b64 exec, -1')
    a(f's_mov_b32 s{sL}, s{sLNEXT}')
    a(f's_mov_b32 s{sLNEXT}, 0')
    a(f's_cmp_lg_u32 s{sL}, 0'); a('s_cbranch_scc1 L_group')
    if P.stamp:
        a('s_waitcnt vmcnt(0)'); stamp(12); stamp(13, True)
        for i in range(14): a(f'v_writelane_b32 v1, s{88+i}, {i}')
        a(f'v_writelane_b32 v1, s{sCNT}, 14')
        a('v_mbcnt_lo_u32_b32 v2, -1, 0'); a('v_mbcnt_hi_u32_b32 v2, -1, v2'); a('v_lshlrev_b32 v2, 2, v2')
        a('s_lshl_b32 s3, s2, 2'); a(f's_add_u32 s3, s3, s{sWAVE}'); a('s_lshl_b32 s3, s3, 6'); a(f's_add_u32 s3, s3, {WS_STAMP}')
        a('s_mov_b64 exec, 0xffff')
        a(f'buffer_store_dword v1, v2, {srdn(SW)}, s3 offen')
        a('s_mov_b64 exec, -1')
    a(f's_cmp_eq_u64 s[{sBAD}:{sBAD+1}], 0')
    a('v_mov_b32 v1, 0'); a('v_mov_b32 v2, 1')
    a('s_cbranch_scc1 L_nobad')
    a(f'ds_write_b32 v1, v2 offset:{FLAG}')
    a.label('L_nobad')
    a('s_waitcnt lgkmcnt(0)')
    a('s_barrier')
    a(f'ds_read_b32 v2, v1 offset:{FLAG}')
    a('s_waitcnt lgkmcnt(0)')
    a('v_readfirstlane_b32 s3, v2')
    a('s_cmp_lg_u32 s3, 0'); a('s_cbranch_scc1 L_slow')
    if P.diag:
        a.label('L_diag')
        a('s_memrealtime s[86:87]'); a('s_waitcnt lgkmcnt(0)')
        a(f's_sub_u32 s86, s86, s{sTAG}'); a(f's_cmp_lt_u32 s86, {P.diag}'); a('s_cbranch_scc1 L_diag')
    a.label('L_end')
    a('s_endpgm')

    a.label('L_prep_load')
    srd(a, SD, 52, 144 * 128 * 2); srd(a, SS, 56, 128 * 64 * 2)
    prep_offsets(a, 2, 26, 27, 28, 29)
    a(f's_sub_u32 s85, s2, {NCH}'); a('s_lshl_b32 s85, s85, 2'); a(f's_add_u32 s85, s85, s{sWAVE}')
    prep_w1_load(a, 85, 26, 32, 34, 35)
    a('s_add_u32 s3, s85, 24'); a('s_min_u32 s3, s3, 35')
    prep_w1_load(a, 3, 26, 40, 34, 35)
    a('s_add_u32 s3, s85, 28'); a('s_max_u32 s3, s3, 36')
    prep_w2_load(a, 3, 27, 48, 34, 35)
    a('s_branch L_setup')
    a.label('L_prep_store')
    a('s_waitcnt vmcnt(0)')
    tagload()
    prep_w1_pack(a, 32); prep_w1_pack(a, 40); prep_w2_pack(a, 48)
    for add, lim, vd in ((0, None, 32), (24, 's_min_u32 s3, s3, 35', 40), (28, 's_max_u32 s3, s3, 36', 48)):
        a(f's_add_u32 s3, s85, {add}')
        if lim: a(lim)
        a('s_lshl_b32 s3, s3, 10'); a(f's_add_u32 s3, s3, {WS_W}')
        a(f'buffer_store_dwordx4 {R("v", vd, 4)}, v9, {srdn(SW)}, s3 offen sc1')
    a('v_lshlrev_b32 v10, 16, v10')
    a('v_mul_f32 v10, s34, v10')
    a(f'ds_write_b32 v15, v10 offset:{B1T}')
    a(f'ds_write_b32 v15, v11 offset:{TT}')
    for i in range(4): a(f'v_mov_b32 v{26+i}, 0')
    a('s_waitcnt lgkmcnt(0)')
    a('s_branch L_publish')

    a.label('L_slow')
    a('s_mov_b64 exec, -1')
    a('s_waitcnt vmcnt(0) lgkmcnt(0)')
    a('s_load_dwordx2 s[52:53], s[0:1], 32')
    a('s_load_dwordx2 s[56:57], s[0:1], 48')
    a('s_load_dwordx4 s[8:11], s[0:1], 16')
    a('s_barrier')
    vL, vS, vH, vT0, vT1, vOA, vD4 = 240, 241, 242, 244, 245, 246, 252
    a(f'v_mbcnt_lo_u32_b32 v{vL}, -1, 0'); a(f'v_mbcnt_hi_u32_b32 v{vL}, -1, v{vL}')
    a(f'v_and_b32 v{vS}, 31, v{vL}')
    a(f'v_lshrrev_b32 v{vH}, 5, v{vL}')
    a(f's_lshl_b32 s3, s{sWAVE}, 10')
    a(f'v_lshl_add_u32 v4, v{vL}, 4, s3')
    for i in range(4): a(f'v_mov_b32 v{i}, 0')
    for i in range(13): a(f'ds_write_b128 v4, v[0:3] offset:{OACC + 4096*i}')
    a('s_waitcnt lgkmcnt(0)')
    srd(a, SD, 52, 144 * 128 * 2); srd(a, SS, 56, 128 * 64 * 2)
    prep_offsets(a, vL, 26, 27, 28, 29)
    a(f'v_add_u32 v4, {WST}, v4')
    a(f's_mov_b32 s85, s{sWAVE}')
    a.label('L_s_w1')
    prep_w1_load(a, 85, 26, 32, 34, 35)
    a('s_waitcnt vmcnt(0)')
    prep_w1_pack(a, 32)
    a('ds_write_b128 v4, v[32:35]')
    a('v_add_u32 v4, 4096, v4')
    a('s_add_u32 s85, s85, 4'); a('s_waitcnt lgkmcnt(0)'); a('s_cmp_lt_u32 s85, 36'); a('s_cbranch_scc1 L_s_w1')
    a.label('L_s_w2')
    prep_w2_load(a, 85, 27, 32, 34, 35)
    a('s_waitcnt vmcnt(0)')
    prep_w2_pack(a, 32)
    a('ds_write_b128 v4, v[32:35]')
    a('v_add_u32 v4, 4096, v4')
    a('s_add_u32 s85, s85, 4'); a('s_waitcnt lgkmcnt(0)'); a('s_cmp_lt_u32 s85, 52'); a('s_cbranch_scc1 L_s_w2')
    a('s_barrier')
    a(f'v_lshlrev_b32 v4, 4, v{vL}'); a(f'v_add_u32 v4, {WST}, v4')
    for i in range(52): a(f'ds_read_b128 {R("a", 4*i, 4)}, v4 offset:{1024*i}')
    srd(a, SD, 10, E * 4); srd(a, SS, 8, E * 4)
    sE0, sJj = 56, 57
    a(f's_lshl_b32 s{sE0}, s{sWAVE}, 9')
    a(f'v_lshlrev_b32 v243, 4, v{vS}')
    a.label('L_s_blk')
    a(f'buffer_load_dwordx4 {R("v", vD4, 4)}, v243, {srdn(SD)}, s{sE0} offen')
    a(f's_mov_b32 s{sJj}, 0')
    a('s_waitcnt vmcnt(0)')
    a.label('L_s_sub')
    a(f'v_subrev_u32 v248, s{sNB0}, v{vD4}')
    a(f'v_cmp_gt_u32 s[60:61], s{sNNODE}, v248')
    a('s_cmp_eq_u64 s[60:61], 0'); a('s_cbranch_scc1 L_s_next')
    a(f's_add_u32 s3, s{sE0}, s{sJj}')
    a(f'buffer_load_dword v{vT0}, v243, {srdn(SS)}, s3 offen')
    a(f'v_lshlrev_b32 v247, 8, v{vH}')
    for i in range(16): a(f'ds_read_b128 {R("v", vQ+4*i, 4)}, v247 offset:{B1T + 16*i}')
    a(f'v_lshlrev_b32 v247, 4, v{vH}')
    a(f'v_add_lshl_u32 v{vT1}, v243, s3, 3')
    a(f'v_add_u32 v{vT1}, v{vT1}, v247')
    a(f'v_lshl_add_u32 v249, v{vD4}, 7, v247')
    a(f'v_mul_u32_u24 v{vOA}, 260, v248')
    a(f'v_lshl_add_u32 v{vOA}, v{vH}, 7, v{vOA}')
    a('s_waitcnt vmcnt(0)')
    a(f'v_lshl_add_u32 v{vT0}, v{vT0}, 7, v247')
    a('s_mov_b64 exec, s[60:61]')
    for k in range(4): a(f'buffer_load_dwordx4 {R("a", aBX+4*k, 4)}, v{vT0}, {srdn(SX)}, s{sXO} offen offset:{32*k}')
    a(f'buffer_load_dwordx4 {R("a", aBE, 4)}, v{vT1}, {srdn(SE)}, 0 offen')
    for k in range(4): a(f'buffer_load_dwordx4 {R("v", vE+4*k, 4)}, v249, {srdn(SX)}, s{sXO} offen offset:{32*k}')
    a('s_waitcnt vmcnt(0) lgkmcnt(0)')
    for c in range(4):
        q = R('v', vQ+16*c, 16)
        for k in range(4): a(mfma(q, R('a', aW1B + (c*4+k)*4, 4), R('v', vE+4*k, 4), q))
        for k in range(5): a(m1(c, k, vQ+16*c, vQ+16*c))
    for i in range(64): a(f'v_exp_f32 v{vD+i}, v{vQ+i}')
    for i in range(64): a(f'v_add_f32 v{vD+i}, 1.0, v{vD+i}')
    for i in range(64): a(f'v_rcp_f32 v{vD+i}, v{vD+i}')
    for i in range(64): a(f'v_mul_f32 v{vD+i}, v{vD+i}, v{vQ+i}')
    for i in range(32): a(f'v_cvt_pk_bf16_f32 v{vN+i}, v{vD+2*i}, v{vD+2*i+1}')
    a(f'v_lshlrev_b32 v247, 7, v{vH}')
    for i in range(8): a(f'ds_read_b128 {R("v", vQ+4*i, 4)}, v247 offset:{B2T + 16*i}')
    for dt in range(2):
        acc = R('v', vY + 16*dt, 16)
        for u in range(8): a(mfma(acc, R('a', aW2 + (dt*8+u)*4, 4), R('v', vN + 4*u, 4), acc if u else '0'))
    a('s_waitcnt lgkmcnt(0)')
    for i in range(32): a(f'v_fma_f32 v{vY+i}, v{vY+i}, s{sLN2}, v{vQ+i}')
    for i in range(32): a(f'ds_add_f32 v{vOA}, v{vY+i} offset:{OACC + 4*i}')
    a('s_mov_b64 exec, -1')
    a('s_waitcnt lgkmcnt(0)')
    a.label('L_s_next')
    for i in range(3): a(f'v_mov_b32 v{vD4+i}, v{vD4+i+1}')
    a(f's_add_u32 s{sJj}, s{sJj}, 4')
    a(f's_cmp_lt_u32 s{sJj}, 16'); a('s_cbranch_scc1 L_s_sub')
    a(f's_add_u32 s{sE0}, s{sE0}, 2048')
    a(f's_cmp_lt_u32 s{sE0}, {E*4}'); a('s_cbranch_scc1 L_s_blk')
    a('s_barrier')
    a(f's_lshl_b32 s3, s{sWAVE}, 1')
    a(f'v_add_u32 v1, s3, v{vH}')
    a.label('L_s_out')
    a(f'v_cmp_gt_u32 vcc, s{sNNODE}, v1')
    a('v_mul_u32_u24 v4, 260, v1')
    a(f'v_lshl_add_u32 v4, v{vS}, 3, v4')
    a(f'v_add_u32 v4, {OACC}, v4')
    a(f'v_add_u32 v5, s{sNB0}, v1')
    a('v_lshlrev_b32 v5, 7, v5')
    a(f'v_lshl_add_u32 v5, v{vS}, 2, v5')
    a('s_and_b64 exec, exec, vcc')
    a('s_cbranch_execz L_s_end')
    a('ds_read2_b32 v[2:3], v4 offset0:0 offset1:1')
    a('s_waitcnt lgkmcnt(0)')
    a('v_cvt_pk_bf16_f32 v2, v2, v3')
    a(f'buffer_store_dword v2, v5, {srdn(SO)}, 0 offen')
    a('v_add_u32 v1, 8, v1')
    a('s_branch L_s_out')
    a.label('L_s_end')
    a('s_endpgm')
    a('.p2align 7')
    a.raw('.type L_table,@object')
    a.label('L_table')
    T = pattern_table()
    for i in range(0, 256, 8): a.raw('.long ' + ', '.join(hex(x) for x in T[i:i+8]))
    a.raw('.size L_table, 1024')
    return a

if __name__ == '__main__':
    for kv in sys.argv[2:]:
        k, v = kv.split('=')
        cur = getattr(P, k)
        setattr(P, k, int(v) if isinstance(cur, int) else (' ' + v.replace('+', ' ') if v else ''))
    k = gen()
    for p in check_all_edges(k): print('HAZARD on branch edge', p, file=sys.stderr)
    print('instrs', sum(1 for x in k.items if not isinstance(x, str)), 'auto nops', k.nops, file=sys.stderr)
    out = open('cdna_kernels/' + NAME + '.s.ref').read().split('; Override launch')[0]
    out += f'; @launch grid=({NB},1,1) block=(256,1,1) lds={lds_bytes()}\n'
    out += '.amdgcn_target "amdgcn-amd-amdhsa--gfx950"\n.text\n'
    out += f'.globl {NAME}_kernel\n.type {NAME}_kernel,@function\n' + k.text()
    out += f'''.section .rodata,"a"
.p2align 6
.amdhsa_kernel {NAME}_kernel
  .amdhsa_next_free_vgpr 512
  .amdhsa_next_free_sgpr 102
  .amdhsa_accum_offset 256
  .amdhsa_group_segment_fixed_size 0
  .amdhsa_kernarg_size 88
  .amdhsa_user_sgpr_count 2
  .amdhsa_user_sgpr_kernarg_segment_ptr 1
  .amdhsa_system_sgpr_workgroup_id_x 1
.end_amdhsa_kernel
'''
    open(sys.argv[1], 'w').write(out)
```

```python
import sys, struct
from asmlib import Asm, Ins, check_all_edges

NAME = 'standalone__edge_featured_mpnn_mpnn__graph'
N, E = 50000, 800000
NB, BN = 256, 196
NCH, CH = 250, 3200
MAGIC = 85599
WS_REC, WS_TAB, WS_W = 0, 8 << 20, 9 << 20
WS_RDY = (9 << 20) + (256 << 10)
WS_SIZE = 10 << 20
WS_STAMP = (9 << 20) + (512 << 10)
DUMMY = 0x4000FFFF
def f32(x): return struct.unpack('<I', struct.pack('<f', x))[0]
NLOG2E = f32(-1.4426950408889634)
NLN2 = f32(-0.6931471805599453)

class P:
    depth = 3
    stamp = 0
    efrac = 100
    xfrac = 100
    limit = 3000
    xpos = 3
    classes = 22
    codepre = 1
    estr = 128
    srcpos = 8
    epre = ' 4'
    diag = 0
    force = 0
    pol_in = ' nt'
    pol_e = ''
    pol_x = ''
    pol_out = ''

CNT, HIST, FLAG = 0, 3328, 3584
HB, START, B1T, B2T, TT = 4096, 5120, 6144, 6656, 7168
EX, EE = 8192, 40960
RING = 73728
NSLOT = 15
MAP = RING
WST = MAP + 16384
STAGE = WST
XP = 1056
SLOT = 4 * XP + 1024
OACC = 8192
def lds_bytes(): return max(RING + 4 * P.depth * SLOT, WST + 52 * 1024)

PATTERN = [(0, 0, 'H', 1), (2, 0, 'H', 2), (3, 0, 'H', 2), (3, 1, 'H', 16), (2, 1, 'H', 9), (0, 0, 'S', 30),
           (1, 1, 'H', 14), (1, 0, 'S', 32), (2, 0, 'S', 28), (3, 0, 'S', 28), (0, 1, 'H', 16), (2, 1, 'S', 14), (1, 1, 'S', 4)]
def pattern_table():
    free = {(w, ph): list(range(32)) for w in range(4) for ph in range(2)}
    T = [None] * BN; p = 0; segs = []
    for w, ph, t, n in PATTERN: segs.append((w, ph, t, p, n)); p += n
    assert p == BN
    for t0 in 'HS':
        for w, ph, t, p0, n in segs:
            if t != t0: continue
            for i in range(n):
                pos = free[(w, ph)].pop(0)
                if t == 'H': assert pos < 16; free[(w, ph)].remove(pos + 16)
                T[p0 + i] = (((w * 2 + ph) * 4096 + pos * 4 + 128) << 16) | (64 if t == 'H' else 128)
    assert all(not v for v in free.values())
    return T + [128] * (256 - BN)

vN, vD, vQ, vY, vE = 0, 64, 128, 192, 224
vEX, vEE, vAX, vAE, vCX, vCE, vBX0, vBE0, vBX, vBE, vINFO, vDEG, vMAX = 240, 244, 245, 246, 247, 248, 249, 250, 251, 252, 253, 254, 255
aW1A, aW1C, aW1B, aW2, aBX, aBE, aJUNK = 0, 64, 80, 144, 208, 224, 228
SX, SE, SW, SO, SD, SS = 12, 16, 20, 24, 68, 72
sB, sNB0, sNNODE, sWAVE, sMAP, sCOL = 28, 29, 30, 31, 32, 33
sXO = 36
s128, sSLOT, sRING0, sRING1, sT, sL, sLNEXT, sQROW = 40, 41, 42, 43, 44, 45, 46, 47
sLN2, sBAD = 48, 50
sJ, sJUMP, sINC = 52, 53, 54
sSLOW, sCNT = 66, 67
mLO, mBN, mNN = 's[76:77]', 's[78:79]', 's[80:81]'
sTAG, sTAG8, sTAGH = 82, 83, 84
def R(p, b, n): return f'{p}[{b}:{b+n-1}]'
def srdn(s): return f's[{s}:{s+3}]'
SDWA = 'dst_sel:DWORD dst_unused:UNUSED_PAD src0_sel:DWORD src1_sel:'

def srd(a, d, lo, size):
    a(f's_mov_b32 s{d}, s{lo}'); a(f's_and_b32 s{d+1}, s{lo+1}, 0xffff')
    a(f's_mov_b32 s{d+2}, {size}'); a(f's_mov_b32 s{d+3}, 0x20000')
def wave_scan(a, v, fill=()):
    fill = list(fill)
    steps = [f'row_shr:{sh} row_mask:0xf bank_mask:0xf bound_ctrl:0' for sh in (1, 2, 4, 8)]
    steps += ['row_bcast:15 row_mask:0xa bank_mask:0xf', 'row_bcast:31 row_mask:0xc bank_mask:0xf']
    for s in steps:
        for x in fill[:2]: a(x)
        fill = fill[2:]
        a(f'v_add_u32_dpp v{v}, v{v}, v{v} {s}')
    for x in fill: a(x)
def mfma(d, A, B, C): return f'v_mfma_f32_32x32x16_bf16 {d}, {A}, {B}, {C}'
def m1(c, k, dst, first_c):
    A = R('a', aW1A + (c * 4 + k) * 4, 4) if k < 4 else R('a', aW1C + c * 4, 4)
    B = R('a', aBX + k * 4, 4) if k < 4 else R('a', aBE, 4)
    return mfma(R('v', dst, 16), A, B, R('v', first_c if k == 0 else dst, 16))
def isize(x):
    op = x.split()[0]
    if op.startswith(('v_mfma', 'v_pk_', 'buffer_', 'ds_', 'global_', 'v_mad_', 'v_max3', 'v_cvt_pk', 'v_lshl_add', 'v_bfe', 'v_writelane', 's_memreal')) or op.endswith(('_e64', '_dpp', '_sdwa')): return 8
    for t in x.replace(',', ' ').split()[1:]:
        try: v = int(t, 0)
        except ValueError: continue
        if not -16 <= v <= 64 and not op.startswith(('s_movk', 's_waitcnt', 's_nop')): return 8
    return 4

def prep_offsets(a, vl, v1, v2, t0, t1):
    a(f'v_and_b32 v{t0}, 31, v{vl}'); a(f'v_lshrrev_b32 v{t1}, 5, v{vl}')
    a(f'v_lshlrev_b32 v{v1}, 11, v{t1}'); a(f'v_lshl_add_u32 v{v1}, v{t0}, 1, v{v1}')
    a(f'v_lshlrev_b32 v{v2}, 9, v{t1}')
    a(f'v_bfe_u32 v{t1}, v{t0}, 2, 1'); a(f'v_lshl_add_u32 v{v2}, v{t1}, 6, v{v2}')
    a(f'v_and_b32 v{t1}, 3, v{t0}'); a(f'v_lshl_add_u32 v{v2}, v{t1}, 1, v{v2}')
    a(f'v_lshrrev_b32 v{t1}, 3, v{t0}'); a(f'v_lshl_add_u32 v{v2}, v{t1}, 3, v{v2}')
def prep_w1_load(a, sidx, voff, vd, s0, s1):
    a(f's_and_b32 s{s0}, s{sidx}, 3'); a(f's_lshr_b32 s{s1}, s{sidx}, 2')
    a(f's_cmp_eq_u32 s{s1}, 4')
    a(f's_cselect_b32 s{s1}, s{s0}, s{s1}'); a(f's_cselect_b32 s{s0}, 8, s{s0}')
    a(f's_lshl_b32 s{s0}, s{s0}, 12'); a(f's_lshl_b32 s{s1}, s{s1}, 6'); a(f's_add_u32 s{s0}, s{s0}, s{s1}')
    a(f's_cmp_ge_u32 s{sidx}, 20'); a(f's_cselect_b32 s{s1}, {64*256 - 5*64}, 0'); a(f's_add_u32 s{s0}, s{s0}, s{s1}')
    for j in range(8): a(f'buffer_load_ushort v{vd+j}, v{voff}, {srdn(SD)}, s{s0} offen offset:{256*j}')
def prep_w2_load(a, sidx, voff, vd, s0, s1):
    a(f's_sub_u32 s{s0}, s{sidx}, 36'); a(f's_lshr_b32 s{s1}, s{s0}, 3'); a(f's_and_b32 s{s0}, s{s0}, 7')
    a(f's_lshl_b32 s{s0}, s{s0}, 11'); a(f's_lshl_b32 s{s1}, s{s1}, 5'); a(f's_add_u32 s{s0}, s{s0}, s{s1}')
    for j in range(8): a(f'buffer_load_ushort v{vd+j}, v{voff}, {srdn(SS)}, s{s0} offen offset:{128*((j&3)+8*(j>>2))}')
def prep_w1_pack(a, vd):
    for j in range(8): a(f'v_lshlrev_b32 v{vd+j}, 16, v{vd+j}')
    for j in range(8): a(f'v_mul_f32 v{vd+j}, {NLOG2E}, v{vd+j}')
    for j in range(4): a(f'v_cvt_pk_bf16_f32 v{vd+j}, v{vd+2*j}, v{vd+2*j+1}')
def prep_w2_pack(a, vd):
    for j in range(4): a(f'v_lshl_or_b32 v{vd+j}, v{vd+2*j+1}, 16, v{vd+2*j}')

def gen():
    D = P.depth
    VW = 5 * (D - 1)
    a = Asm()
    def stamp(i, real=False):
        if not P.stamp: return
        if P.stamp == 3: real = True
        a(f's_mem{"real" if real else ""}time s[86:87]'); a('s_waitcnt lgkmcnt(0)'); a(f's_mov_b32 s{88+i}, s86')
    def poll(name, load, check, first_issued=False, first_wait=None):
        a(f's_movk_i32 s{sCNT}, {P.limit}')
        if first_wait is not None:
            if first_wait: a(first_wait)
            check()
            a(f's_cbranch_scc0 {name}_ok')
        elif first_issued: a(f's_branch {name}_chk')
        a.label(name)
        load()
        a.label(name + '_chk')
        a('s_waitcnt vmcnt(0)')
        check()
        a(f's_cbranch_scc0 {name}_ok')
        a(f's_sub_u32 s{sCNT}, s{sCNT}, 1')
        a(f's_cbranch_scc0 {name}')
        a(f's_mov_b32 s{sSLOW}, 1')
        a.label(name + '_ok')

    epre = [int(ch) for ch in P.epre.strip()]
    def warm(pos):
        n = 0
        for i, p in enumerate(epre):
            if p != pos: continue
            if i < 4:
                a(f'v_add_u32 v124, {i*256*P.estr}, v126')
                if (i + 1) * 256 * P.estr > CH * 32: a(f'v_min_u32 v124, v124, v125')
                a(f'buffer_load_dword a{aJUNK}, v124, {srdn(SE)}, 0 offen')
            else:
                a(f'v_lshlrev_b32 v124, 7, v24')
                a(f'buffer_load_dword a{aJUNK}, v124, {srdn(SX)}, s{sXO} offen')
            n += 1
        return n
    a('.p2align 8'); a.label(NAME + '_kernel')
    a(f's_cmp_ge_u32 s2, {NB}'); a('s_cbranch_scc1 L_end')
    stamp(0, True); stamp(1)
    a('s_load_dwordx8 s[4:11], s[0:1], 0')
    a('s_load_dwordx4 s[60:63], s[0:1], 64')
    a('s_load_dwordx2 s[64:65], s[0:1], 80')
    a('s_load_dwordx8 s[52:59], s[0:1], 32')
    a(f's_memrealtime s[{sTAG}:{sTAG+1}]')
    a('s_getpc_b64 s[14:15]')
    a.label('L_pc')
    a('v_lshlrev_b32 v15, 2, v0')
    if P.codepre:
        a('v_lshlrev_b32 v3, 6, v0')
        a('v_min_u32 v3, L_slow-L_pc, v3')
        a(f'global_load_dword a{aJUNK}, v3, s[14:15]')
    a('s_add_u32 s14, s14, L_table-L_pc')
    a('s_addc_u32 s15, s15, 0')
    a('global_load_dword v11, v15, s[14:15]')
    a('v_lshrrev_b32 v1, 6, v0')
    a('v_and_b32 v2, 63, v0')
    a(f'v_readfirstlane_b32 s{sWAVE}, v1')
    a('v_lshlrev_b32 v21, 4, v0')
    for i in range(4): a(f'v_mov_b32 v{4+i}, 0')
    a('ds_write_b128 v21, v[4:7]')
    a(f'ds_write_b32 v15, v4 offset:{HB}')
    a('v_mov_b32 v12, 0')
    a('v_mov_b32 v13, 1')
    a('v_lshlrev_b32 v9, 4, v2')
    a('v_cmp_gt_u32 vcc, 128, v0')
    a(f's_mul_i32 s3, s2, {CH*4}')
    for s in (SD, SS): a(f's_mov_b32 s{s+2}, {E*4}'); a(f's_mov_b32 s{s+3}, 0x20000')
    a(f's_mov_b64 {mLO}, vcc')
    a(f's_mov_b32 s{sSLOW}, 0')
    a('s_waitcnt lgkmcnt(0)')
    vDs, vSr, vB, vRk, vRec = 32, 48, 64, 80, 96
    a(f's_mov_b32 s{SD}, s10'); a(f's_and_b32 s{SD+1}, s11, 0xffff')
    a(f's_mov_b32 s{SS}, s8'); a(f's_and_b32 s{SS+1}, s9, 0xffff')
    for i in range(4): a(f's_add_u32 s{8+i}, s3, {4096*i}')
    a(f's_or_b32 s37, s2, s{sWAVE}')
    a('s_cbranch_scc1 L_notag')
    if P.force != 1:
        a(f's_or_b32 s{sTAG}, s{sTAG}, 1')
        a(f'v_mov_b32 v4, s{sTAG}'); a(f'v_mov_b32 v5, s{sTAG+1}')
        a('s_mov_b64 exec, 1')
        a('global_store_dwordx2 v12, v[4:5], s[62:63] sc1')
        a('s_mov_b64 exec, -1')
    a.label('L_notag')
    a(f's_cmp_ge_u32 s2, {NCH}'); a('s_cbranch_scc1 L_prep_load')
    def edge_loads(srdn_, vb, so):
        for i in range(3): a(f'buffer_load_dwordx4 {R("v", vb+4*i, 4)}, v21, {srdn(srdn_)}, s{so+i} offen{P.pol_in}')
        a(f'buffer_load_dword v{vb+12}, v15, {srdn(srdn_)}, s{so+3} offen{P.pol_in}')
    edge_loads(SD, vDs, 8)
    a.label('L_setup')
    a('v_and_b32 v10, 3, v0')
    a('v_bfe_u32 v16, v0, 2, 4')
    a('v_lshl_add_u32 v10, v16, 3, v10')
    a('v_lshl_add_u32 v10, v1, 2, v10')
    a(f'v_cndmask_b32 v10, v2, v10, {mLO}')
    a('v_lshlrev_b32 v10, 1, v10')
    a(f's_cmp_lt_u32 s{sWAVE}, 2')
    a('s_cselect_b64 s[54:55], s[54:55], s[58:59]')
    a(f's_cselect_b32 s34, {NLOG2E}, 1.0')
    a('global_load_ushort v10, v10, s[54:55]')
    for i in range(4): a(f'v_mov_b32 v{4+i}, {DUMMY}')
    a(f'v_add_u32 v3, {EX + 16384}, v21')
    init = [f'ds_write_b128 v21, v[4:7] offset:{EX + 4096*i}' for i in range(4)]
    init += [f'ds_write_b128 v3, v[4:7] offset:{4096*i}' for i in range(16)]
    C = []
    C += [f's_and_b32 s{sB}, s2, 7', f's_lshl_b32 s{sB}, s{sB}, 5', 's_lshr_b32 s3, s2, 3', f's_add_u32 s{sB}, s{sB}, s3',
          f's_mul_i32 s{sNB0}, s{sB}, {BN}', f's_sub_u32 s{sNNODE}, {N}, s{sNB0}', f's_min_u32 s{sNNODE}, s{sNNODE}, {BN}',
          f's_lshl_b32 s{sCOL}, s{sB}, 3', f's_add_u32 s{sCOL}, s{sCOL}, {WS_TAB}']
    C += [f's_sub_u32 s{SX}, s4, {3*XP}', f's_subb_u32 s{SX+1}, s5, 0', f's_and_b32 s{SX+1}, s{SX+1}, 0xffff',
          f's_mov_b32 s{SX+2}, {(N*128 + 3*XP) * P.xfrac // 100}', f's_mov_b32 s{SX+3}, 0x20000']
    for d, lo, size in ((SE, 6, E * 32 * P.efrac // 100), (SO, 60, N * 128), (SW, 64, WS_SIZE)):
        C += [f's_mov_b32 s{d}, s{lo}', f's_and_b32 s{d+1}, s{lo+1}, 0xffff', f's_mov_b32 s{d+2}, {size}', f's_mov_b32 s{d+3}, 0x20000']
    C += [f's_movk_i32 s{sXO+j}, {(3-j)*XP}' for j in range(4)]
    C += [f's_movk_i32 s{s128}, 128', f's_mov_b32 s{sLN2}, {NLN2}', f's_mov_b32 s{sLN2+1}, {NLN2}', f's_mov_b64 s[{sBAD}:{sBAD+1}], 0']
    C += [f's_lshl_b32 s{sMAP}, s{sWAVE}, 12', f's_add_u32 s{sMAP}, s{sMAP}, {MAP}']
    C += [f's_lshl_b32 s{sQROW}, s{sWAVE}, 13', f's_add_u32 s{sQROW}, s{sQROW}, {EX}']
    C += [f's_mul_i32 s{sRING0}, s{sWAVE}, {D*SLOT}', f's_add_u32 s{sRING0}, s{sRING0}, {RING}',
          f's_add_u32 s{sRING1}, s{sRING0}, {D*SLOT}', f's_mov_b32 s{sSLOT}, s{sRING0}']
    C += ['v_and_b32 v16, 7, v2', 'v_lshrrev_b32 v18, 5, v2', 'v_xor_b32 v16, v16, v18', f'v_lshlrev_b32 v{vCX}, 4, v16']
    C += ['v_and_b32 v17, 1, v2', f'v_lshlrev_b32 v{vCE}, 4, v17']
    C += ['v_bfe_u32 v16, v2, 1, 2', f'v_mul_u32_u24 v16, {XP}, v16', 'v_bfe_u32 v20, v2, 3, 2', 'v_lshl_add_u32 v16, v20, 7, v16',
          'v_lshl_add_u32 v16, v17, 9, v16', 'v_xor_b32 v20, v17, v18', f'v_lshl_add_u32 v{vBX0}, v20, 4, v16']
    C += ['v_bfe_u32 v16, v2, 1, 4', 'v_lshl_add_u32 v16, v17, 4, v16', 'v_lshlrev_b32 v16, 5, v16', 'v_lshl_add_u32 v16, v18, 4, v16',
          f'v_add_u32 v{vBE0}, {4*XP}, v16']
    C += ['v_lshrrev_b32 v16, 3, v2', f'v_lshl_add_u32 v{vAX}, v16, 4, s{sQROW}']
    C += ['v_lshrrev_b32 v16, 1, v2', f'v_lshl_add_u32 v{vAE}, v16, 2, s{sQROW}']
    C += ['v_and_b32 v16, 31, v2', 'v_lshlrev_b32 v16, 2, v16', 'v_lshl_add_u32 v16, v18, 12, v16', f'v_add_u32 v25, s{sQROW}, v16']
    C += [f'v_add_u32 v24, s{sNB0}, v0', f'v_cmp_gt_u32 vcc, {BN}, v0', f'v_cmp_gt_u32 {mNN}, s{sNNODE}, v0', f's_mov_b64 {mBN}, vcc']
    C += ['v_lshlrev_b32 v19, 2, v2', 'v_lshlrev_b32 v14, 3, v2', 'v_lshlrev_b32 v30, 11, v0', f'v_mul_u32_u24 v31, {CH}, v0']
    C += [f's_mul_i32 s3, s2, {CH*32}', 'v_lshl_add_u32 v22, v0, 7, s3', f's_add_u32 s3, s3, {3072*32}', f'v_lshl_add_u32 v{vRec+25}, v0, 5, s3',
          'v_mov_b32 v23, 0x1000000', f's_mov_b32 s55, {MAGIC}', 's_movk_i32 s56, -49', f's_movk_i32 s57, {167 if P.classes == 22 else 335}', f's_mov_b32 s59, {-167 if P.classes == 22 else 0x180000}', 'v_mov_b32 v127, 0x1ffffff', f's_mov_b32 s58, {0x100000 | {1: 0, 2: 0x80000}.get(P.classes, 0xc0000)}']
    C += [f'v_add_u32 v{vRec+2*i+1}, {((i>>2)*1024 + (i&3))*32}, v22' for i in range(12)]
    k = 0
    while init or C:
        if init: a(init.pop(0))
        for x in C[:6]: a(x)
        C = C[6:]
        k += 1
        if k == P.srcpos:
            a(f's_cmp_ge_u32 s2, {NCH}'); a('s_cbranch_scc1 L_nosrc')
            edge_loads(SS, vSr, 8)
            a.label('L_nosrc')
    if epre:
        a(f's_mul_i32 s3, s2, {CH*32}'); a(f'v_mul_u32_u24 v126, {P.estr}, v0'); a('v_add_u32 v126, s3, v126')
        a(f's_add_u32 s3, s3, {CH*32-128}'); a('v_mov_b32 v125, s3')
    n0 = warm(0)
    a('s_waitcnt lgkmcnt(0)')
    a('s_barrier')
    tagload = lambda: a('global_load_dwordx2 v[16:17], v12, s[62:63] sc1')
    def tagcheck():
        a(f'v_readfirstlane_b32 s{sTAG}, v16'); a(f'v_readfirstlane_b32 s{sTAG8}, v17')
        a(f's_cmp_eq_u32 s{sTAG}, 0')
    a(f's_cmp_ge_u32 s2, {NCH}'); a('s_cbranch_scc1 L_prep_store')
    a(f's_waitcnt vmcnt({5+n0})')
    stamp(2)
    tagload()
    n1 = warm(1)
    for i in range(13): a(f'v_mul_u32_u24 v{vB+i}, s55, v{vDs+i}')
    for i in range(13): a(f'v_lshlrev_b32_sdwa v{vB+i}, 2, v{vB+i} {SDWA}BYTE_3')
    for i in range(13):
        if i == 12: a(f's_mov_b64 exec, {mLO}')
        a(f'ds_add_rtn_u32 v{vRk+i}, v{vB+i}, v13 offset:{HB}')
    a('s_mov_b64 exec, -1')
    for i in range(13): a(f'v_mad_i32_i24 v{vDs+i}, v{vB+i}, s56, v{vDs+i}')
    a(f's_waitcnt vmcnt({1+n0+n1})')
    npf = 4 * len([p for p in epre[:3]])
    for i in range(13):
        if P.classes == 22 and i >= npf: a(f'v_mad_i32_i24 v{vRec+2*i}, v{vSr+i}, s59, v127')
        else: a(f'v_mad_u32_u24 v{vRec+2*i}, v{vSr+i}, s57, v23')
        if P.classes == 32 and i >= npf: a(f'v_max_u32 v{vRec+2*i}, 0x1400000, v{vRec+2*i}')
    a('s_waitcnt lgkmcnt(0)')
    a('s_barrier')
    a(f'ds_read_b128 v[26:29], v9 offset:{HB}')
    a(f'ds_write_b32 v15, v11 offset:{TT}')
    F = []
    for i in range(13): F.append(f'v_lshrrev_b32 v{vRec+2*i}, 4, v{vRec+2*i}')
    for i in range(13): F.append(f'v_and_or_b32 v{vRec+2*i}, v{vRec+2*i}, s{59 if P.classes == 32 and i < npf else 58}, v{vSr+i}')
    for i in range(13): F.append(f'v_lshl_add_u32 v{vRec+2*i}, v{vDs+i}, 20, v{vRec+2*i}')
    for x in F[:20]: a(x)
    a('s_waitcnt lgkmcnt(1)')
    a('v_add_u32 v5, v26, v27'); a('v_add_u32 v6, v5, v28'); a('v_add_u32 v7, v6, v29')
    a('v_mov_b32 v3, v7')
    wave_scan(a, 3, F[20:32])
    a('v_sub_u32 v4, v3, v7'); a('v_add_u32 v7, v4, v6'); a('v_add_u32 v6, v4, v5'); a('v_add_u32 v5, v4, v26')
    a(f'ds_write_b128 v9, v[4:7] offset:{START}')
    for i in range(13): a(f'ds_read_b32 v{vB+i}, v{vB+i} offset:{START}')
    for x in F[32:]: a(x)
    a('v_lshlrev_b32 v10, 16, v10')
    a('v_mul_f32 v10, s34, v10')
    a(f's_mov_b32 s3, {STAGE // 8}')
    for i in range(13): a(f'v_add_u32 v{vRk+i}, s3, v{vRk+i}')
    a('s_waitcnt lgkmcnt(0)')
    for i in range(13): a(f'v_add_lshl_u32 v{vB+i}, v{vB+i}, v{vRk+i}, 3')
    for i in range(13):
        if i == 12: a(f's_mov_b64 exec, {mLO}')
        a(f'ds_write_b64 v{vB+i}, {R("v", vRec+2*i, 2)}')
    a('s_mov_b64 exec, -1')
    a(f'ds_write_b32 v15, v10 offset:{B1T}')
    for i in range(4): a(f'v_lshl_or_b32 v{26+i}, v{26+i}, 12, v{4+i}')
    def gettag(name, **kw):
        poll(name, tagload, tagcheck, **kw)
        a(f's_mov_b32 s{sTAGH}, s{sTAG8}')
        a(f's_and_b32 s{sTAG8}, s{sTAG8}, 0xff')
    def pubrow(name):
        a(f's_sub_u32 s3, 3, s{sWAVE}'); a(f's_or_b32 s3, s3, s{sSLOW}'); a(f's_cbranch_scc1 {name}')
        if P.force == 2: a('s_cmp_eq_u32 s2, 7'); a(f's_cbranch_scc1 {name}')
        for i in range(4):
            a(f'v_lshl_or_b32 v{80+2*i}, s{sTAG8}, 24, v{26+i}')
            a(f'v_mov_b32 v{81+2*i}, s{sTAG}')
        a('s_lshl_b32 s3, s2, 11'); a(f's_add_u32 s3, s3, {WS_TAB}')
        a('v_lshlrev_b32 v3, 5, v2')
        a(f'buffer_store_dwordx4 v[80:83], v3, {srdn(SW)}, s3 offen sc1')
        a(f'buffer_store_dwordx4 v[84:87], v3, {srdn(SW)}, s3 offen offset:16 sc1')
        a.label(name)
    gettag('L_ptag', first_wait=f's_waitcnt vmcnt({n1})')
    pubrow('L_norow')
    a(f'v_add_u32 v3, {STAGE}, v21')
    a(f's_mul_i32 s3, s2, {CH*8}')
    a(f's_cmp_eq_u32 s{sWAVE}, 0')
    a('s_cselect_b64 s[56:57], -1, 0')
    a('s_waitcnt lgkmcnt(0)')
    a('s_barrier')
    for i in range(7): a(f'ds_read_b128 {R("v", 32+4*i, 4)}, v3 offset:{4096*i}')
    for i in range(7):
        a(f's_waitcnt lgkmcnt({6-i})')
        if i == 6: a('s_mov_b64 exec, s[56:57]')
        a(f'buffer_store_dwordx4 {R("v", 32+4*i, 4)}, v21, {srdn(SW)}, s3 offen sc1')
        if i < 6: a('s_add_u32 s3, s3, 4096')
    a('s_mov_b64 exec, -1')
    a.label('L_publish')
    stamp(3)
    a('v_min_u32 v3, 5, v2')
    a(f'v_add_u32 v3, {NCH}, v3')
    a('v_lshlrev_b32 v20, 11, v3')
    wload = lambda: a(f'buffer_load_dwordx2 v[122:123], v20, {srdn(SW)}, s{sCOL} offen sc1')
    tload = lambda: a(f'buffer_load_dwordx2 v[16:17], v30, {srdn(SW)}, s{sCOL} offen sc1')
    wload(); tload()
    def ownx():
        a('v_lshlrev_b32 v29, 7, v24')
        a(f'buffer_load_dword a{aJUNK}, v29, {srdn(SX)}, s{sXO} offen')
    n5 = 0
    if P.xpos == 5: ownx(); n5 += 1
    n5 += warm(5)
    a(f'v_mov_b32 v4, s{sTAG}'); a(f'v_mov_b32 v5, s{sTAGH}')
    a('s_lshl_b32 s3, s2, 3'); a(f's_add_u32 s3, s3, {WS_RDY}')
    a(f's_or_b32 s35, s{sWAVE}, s{sSLOW}')
    a(f's_waitcnt vmcnt({2+n5})')
    a('s_barrier')
    a('s_cbranch_scc1 L_nordy')
    if P.force == 3: a('s_cmp_eq_u32 s2, 9'); a('s_cbranch_scc1 L_nordy')
    a('s_mov_b64 exec, 1')
    a(f'buffer_store_dwordx2 v[4:5], v12, {srdn(SW)}, s3 offen sc1')
    a('s_mov_b64 exec, -1')
    a(f's_waitcnt vmcnt({1+n5})')
    a('s_branch L_rdydone')
    a.label('L_nordy')
    a(f's_waitcnt vmcnt({n5})')
    a.label('L_rdydone')
    stamp(4)
    a(f's_cmp_lg_u32 s{sSLOW}, 0'); a('s_cbranch_scc1 L_nomap')
    def tcheck(v):
        def f():
            a(f'v_cmp_ne_u32 s[56:57], s{sTAG}, v{v+1}')
            a(f'v_cmp_ne_u32_sdwa vcc, v{v}, s{sTAG8} src0_sel:BYTE_3 src1_sel:DWORD')
            a('s_or_b64 vcc, vcc, s[56:57]')
        return f
    poll('L_pw', wload, tcheck(122), first_wait='')
    a(f's_mul_i32 s3, s{sWAVE}, {13*1024}')
    a(f's_add_u32 s35, s3, {WS_W}')
    a(f's_add_u32 m0, s3, {WST}')
    for i in range(13):
        if i and i % 4 == 0: a('s_add_u32 m0, m0, 4096'); a('s_add_u32 s35, s35, 4096')
        a(f'buffer_load_dwordx4 v9, {srdn(SW)}, s35 offen offset:{(i%4)*1024} sc1 lds')
    poll('L_pt', tload, tcheck(16), first_wait='')
    warm(2)
    a('v_bfe_u32 v17, v16, 12, 12')
    a('v_and_b32 v16, 0xfff, v16')
    a('v_mov_b32 v18, v17')
    wave_scan(a, 18, ['v_add_u32 v16, v16, v31', 'v_cmp_lt_u32 s[56:57], 16, v17', 'v_cmp_lt_u32 s[58:59], 8, v17',
                      'v_cmp_lt_u32 s[60:61], 0, v17', 'v_cmp_lt_u32 vcc, 24, v17', f'v_mov_b32 v4, {DUMMY}', f'v_add_u32 v20, s{sMAP}, v19'])
    a('v_sub_u32 v3, v18, v17')
    a('v_readlane_b32 s3, v18, 63')
    a('v_sub_u32 v16, v16, v3')
    a(f'v_lshl_add_u32 v18, v3, 2, s{sMAP}')
    a('v_lshlrev_b32 v16, 3, v16')
    a(f's_cmp_gt_u32 s3, {NSLOT*64}')
    a(f's_cselect_b32 s{sSLOW}, 1, s{sSLOW}')
    a(f's_cmp_lg_u32 s{sSLOW}, 0'); a('s_cbranch_scc1 L_nomap')
    a('v_lshl_add_u32 v3, s3, 2, v20')
    for m, j0 in (('s[56:57]', 16), ('s[58:59]', 8), ('s[60:61]', 0)):
        a(f's_mov_b64 exec, {m}')
        for j in range(j0 + 7, j0 - 1, -1): a(f'ds_write_b32 v18, v16 offset:{4*j}')
    a('s_mov_b64 exec, -1')
    a('ds_write_b32 v3, v4')
    a('s_cbranch_vccz L_nomap')
    a.label('L_map')
    for j in range(24, 28):
        a(f'v_cmpx_lt_u32 vcc, {j}, v17')
        a(f'ds_write_b32 v18, v16 offset:{4*j}')
    a('v_add_u32 v18, 16, v18')
    a('v_subrev_u32 v17, 4, v17')
    a('s_cbranch_execnz L_map')
    a('s_mov_b64 exec, -1')
    a.label('L_nomap')
    vR, vI, vK, vP = 32, 64, 80, 96
    a(f'v_add_u32 v20, s{sMAP}, v19')
    for i in range(NSLOT): a(f'ds_read_b32 v{vI+i}, v20 offset:{256*i}')
    a(f'v_add_u32 v3, {WST}, v9')
    a('v_lshlrev_b32 v20, 3, v0')
    a(f's_mov_b32 s35, {WS_RDY}')
    rload = lambda: a(f'buffer_load_dwordx2 v[16:17], v20, {srdn(SW)}, s35 offen sc1')
    def rcheck():
        a(f'v_cmp_ne_u32 s[56:57], s{sTAG}, v16')
        a(f'v_cmp_ne_u32 vcc, s{sTAGH}, v17')
        a('s_or_b64 vcc, vcc, s[56:57]')
    a('s_waitcnt vmcnt(0) lgkmcnt(0)')
    rload()
    for i in range(NSLOT): a(f'v_add_u32 v{vI+i}, v{vI+i}, v14')
    a('s_barrier')
    for i in range(52): a(f'ds_read_b128 {R("a", 4*i, 4)}, v3 offset:{1024*i}')
    a(f's_cmp_lg_u32 s{sSLOW}, 0'); a('s_cbranch_scc1 L_pr_ok')
    poll('L_pr', rload, rcheck, first_issued=True)
    stamp(5)
    a(f's_cmp_eq_u32 s{sSLOW}, 0')
    a(f's_cselect_b32 s{SW+2}, s{SW+2}, 0')
    a('s_movk_i32 s3, 4096')
    for i in range(NSLOT):
        a(f'buffer_load_dwordx2 {R("v", vR+2*i, 2)}, v{vI+i}, {srdn(SW)}, {"s3" if i >= 8 else "0"} offen offset:{512*(i%8)} sc1')
    n3 = -1
    if P.xpos == 3: ownx(); n3 = 0
    n3 += warm(3)
    stamp(6)
    for lo, hi in ((0, 6), (6, 11), (11, 15)):
        a(f's_waitcnt vmcnt({NSLOT-hi+1+n3})')
        for i in range(lo, hi): a(f'v_lshrrev_b32 v{vI+i}, 16, v{vR+2*i}')
        if lo == 11:
            for i in range(lo, hi): a(f'v_cmp_ne_u32 s[{58+2*(i-lo)}:{59+2*(i-lo)}], 0, v{vI+i}')
        for i in range(lo, hi):
            if lo == 11: a(f's_mov_b64 exec, s[{58+2*(i-lo)}:{59+2*(i-lo)}]')
            a(f'ds_add_rtn_u32 v{vK+i}, v{vI+i}, v13 offset:{CNT}')
    if 4 in epre: a('s_mov_b64 exec, -1'); warm(4)
    a(f's_mov_b64 exec, {mBN}')
    a('s_waitcnt lgkmcnt(0)')
    a('s_barrier')
    stamp(7)
    a(f'ds_read_b128 v[4:7], v21 offset:{CNT + 16}')
    a('s_waitcnt lgkmcnt(0)')
    a('v_add_u32 v5, v4, v5'); a('v_add_u32 v6, v5, v6'); a('v_add_u32 v16, v6, v7')
    a('v_min_u32 v17, 63, v16')
    a('v_sub_u32 v17, 63, v17')
    a('v_lshlrev_b32 v17, 2, v17')
    a(f'ds_add_rtn_u32 v18, v17, v13 offset:{HIST}')
    a('v_sub_u32 v26, v16, v4'); a('v_sub_u32 v27, v16, v5'); a('v_sub_u32 v28, v16, v6')
    a('v_lshrrev_b32 v23, 1, v16')
    a('v_lshl_or_b32 v23, v23, 16, v24')
    a('v_or_b32 v23, 0xc00000, v23')
    a('s_mov_b64 exec, -1')
    a('s_waitcnt lgkmcnt(0)')
    a('s_barrier')
    a(f'ds_read_b32 v20, v19 offset:{HIST}')
    a(f'v_mov_b32 v3, {(32768 - 4) << 16}')
    a(f'ds_write_b32 v12, v3 offset:{CNT}')
    a('s_waitcnt lgkmcnt(1)')
    a('v_mov_b32 v3, v20')
    wave_scan(a, 3)
    a('v_sub_u32 v20, v3, v20')
    a('ds_bpermute_b32 v20, v17, v20')
    a(f's_mov_b64 exec, {mNN}')
    a('s_waitcnt lgkmcnt(0)')
    a('v_add_lshl_u32 v20, v20, v18, 2')
    a(f'ds_read_b32 v22, v20 offset:{TT}')
    a('s_waitcnt lgkmcnt(0)')
    a('v_and_b32 v3, 0x10000000, v22')
    a('v_lshlrev_b32 v29, 16, v22')
    a('v_cmp_ne_u32 vcc, 0, v3')
    a('v_bfe_u32 v3, v22, 6, 1')
    a('v_add_u32 v16, v16, v3')
    a('v_cndmask_b32 v7, v6, v12, vcc'); a('v_cndmask_b32 v6, v5, v28, vcc')
    a('v_cndmask_b32 v5, v4, v27, vcc'); a('v_cndmask_b32 v4, v12, v26, vcc')
    for i in range(4): a(f'v_mad_u32_u24 v{4+i}, v{4+i}, v29, v22')
    a('v_lshrrev_b32 v16, v3, v16')
    a('v_lshrrev_b32 v22, 16, v22')
    a('v_lshl_or_b32 v24, v3, 22, v24')
    a('v_cmp_lt_u32 s[56:57], 30, v16')
    a('v_lshl_or_b32 v24, v16, 16, v24')
    a('v_cmp_ne_u32 vcc, 0, v3')
    a(f'ds_write_b128 v21, v[4:7] offset:{CNT + 16}')
    a(f'ds_write_b32 v22, v24 offset:{EX - 128}')
    a('s_mov_b64 exec, vcc')
    a(f'ds_write_b32 v22, v23 offset:{EX - 64}')
    a(f's_or_b32 s56, s56, s{sSLOW}')
    a('s_mov_b64 exec, s[56:57]')
    a(f'ds_write_b32 v12, v13 offset:{FLAG}')
    a('s_mov_b64 exec, -1')
    a('s_waitcnt lgkmcnt(0)')
    a('s_barrier')

    ell_read = [f'ds_read_b128 {R("v", vEX, 4)}, v{vAX}', f'ds_read_b32 v{vEE}, v{vAE} offset:{EE-EX}']
    jump = [f's_sub_u32 s{sJ}, s{sJ}, 1', f's_cselect_b32 s{sINC}, s{sJUMP}, s{s128}']
    ell_adv = [f'v_add_u32 v{vAX}, s{sINC}, v{vAX}', f'v_add_u32 v{vAE}, s{sINC}, v{vAE}']
    xaddr = [f'v_mad_u32_u16 v{vEX+j}, v{vEX+j}, s{s128}, v{vCX}' for j in range(4)]
    eaddr = f'v_add_u32 v{vEE}, v{vEE}, v{vCE}'
    m0x = f's_mov_b32 m0, s{sSLOT}'; m0e = f's_add_u32 m0, s{sSLOT}, {4*XP}'
    dmax = [f'buffer_load_dwordx4 v{vEX+j}, {srdn(SX)}, s{sXO+j} offen offset:{j*XP}{P.pol_x} lds' for j in range(4)]
    dmae = f'buffer_load_dwordx4 v{vEE}, {srdn(SE)}, 0 offen{P.pol_e} lds'
    adv = [f's_add_u32 s{sSLOT}, s{sSLOT}, {SLOT}', f's_cmp_eq_u32 s{sSLOT}, s{sRING1}', f's_cselect_b32 s{sSLOT}, s{sRING0}, s{sSLOT}']
    baddr = [f'v_add_u32 v{vBX}, s{sSLOT}, v{vBX0}', f'v_add_u32 v{vBE}, s{sSLOT}, v{vBE0}']
    bread = [f'ds_read_b128 {R("a", aBX+4*k, 4)}, v{vBX} offset:{32*k}' for k in range(4)] + [f'ds_read_b128 {R("a", aBE, 4)}, v{vBE}']
    PFa = [m0x] + xaddr + [eaddr] + dmax + [m0e] + [adv[0]] + [dmae] + adv[1:]
    PFb = ell_read + jump + ell_adv
    PF = PFa + PFb + baddr

    a(f'ds_read_b32 v16, v12 offset:{FLAG}')
    for i in range(NSLOT - 1): a(f'ds_read_b32 v{vP+i}, v{vI+i} offset:{CNT}')
    a(f's_waitcnt lgkmcnt({NSLOT - 6})')
    a(f'ds_read_b32 v{vP+NSLOT-1}, v{vI+NSLOT-1} offset:{CNT}')
    a('ds_read_b32 v17, v25')
    for x in ell_read: a(x)
    a('v_readfirstlane_b32 s3, v16')
    a('s_cmp_lg_u32 s3, 0'); a('s_cbranch_scc1 L_slow')
    for lo, hi in ((0, 5), (5, 10), (10, 15)):
        if lo: a(f's_waitcnt lgkmcnt({NSLOT - hi + 3 if hi < NSLOT else 0})')
        for i in range(lo, hi): a(f'v_mul_u32_u24_sdwa v{vK+i}, v{vK+i}, v{vP+i} {SDWA}WORD_0')
        for i in range(lo, hi): a(f'v_add_u32_sdwa v{vP+i}, v{vK+i}, v{vP+i} {SDWA}WORD_1')
    for i in range(NSLOT):
        if i >= 11: a(f's_mov_b64 exec, s[{58+2*(i-11)}:{59+2*(i-11)}]')
        a(f'ds_write2st64_b32 v{vP+i}, v{vR+2*i}, v{vR+2*i+1} offset0:{EX//256} offset1:{EE//256}')
    a('s_mov_b64 exec, -1')
    a('v_bfe_u32 v17, v17, 16, 6')
    for x in PFa: a(x)
    for sh in (1, 2, 4, 8): a(f'v_max_u32_dpp v17, v17, v17 row_shr:{sh} row_mask:0xf bank_mask:0xf bound_ctrl:0')
    a('v_max_u32_dpp v17, v17, v17 row_bcast:15 row_mask:0xa bank_mask:0xf')
    a(f'v_add_u32 v{vAX}, 128, v{vAX}'); a(f'v_add_u32 v{vAE}, 128, v{vAE}')
    a(f'v_readlane_b32 s{sL}, v17, 31')
    a(f'v_readlane_b32 s{sLNEXT}, v17, 63')
    a('s_waitcnt lgkmcnt(0)')
    a('s_barrier')
    stamp(8)
    for x in ell_read: a(x)
    a(f's_max_u32 s{sL}, s{sL}, 1')
    a(f's_max_u32 s{sLNEXT}, s{sLNEXT}, 1')
    a(f's_lshl_b32 s3, s{sL}, 7')
    a(f's_sub_u32 s{sJUMP}, 4096, s3')
    a(f's_sub_u32 s{sJ}, s{sL}, 1')
    for x in jump + ell_adv: a(x)
    if P.stamp: a(f's_mov_b32 s{88+9}, 0'); a(f's_mov_b32 s{88+10}, 0')
    for r in range(1, D):
        a('s_waitcnt lgkmcnt(0)')
        for x in PF: a(x)

    a.label('L_group')
    a(f'v_lshrrev_b32 v{vE+1}, 3, v{vBE0}')
    a(f'v_and_b32 v{vE}, 16, v{vBE0}')
    a(f'v_and_b32 v{vE+1}, -4, v{vE+1}')
    a(f'v_lshlrev_b32 v{vE}, 4, v{vE}')
    a(f's_sub_u32 s3, s{sQROW}, {4*XP//8}')
    a(f'v_add_u32 v{vE+1}, s3, v{vE+1}')
    a(f'ds_read_b32 v{vINFO}, v{vE+1}')
    for i in range(16): a(f'ds_read_b128 {R("v", vQ+4*i, 4)}, v{vE} offset:{B1T + 16*i}')
    a(f's_waitcnt vmcnt({VW})')
    for x in bread[:4]: a(x)
    a('s_waitcnt lgkmcnt(0)')
    pf = list(PF)
    for k in range(4):
        for c in range(4):
            a(mfma(R('v', vQ+16*c, 16), R('a', aW1B + (c*4+k)*4, 4), R('a', aBX+4*k, 4), R('v', vQ+16*c, 16)))
            for x in pf[:2]: a(x)
            pf = pf[2:]
    assert not pf
    a(f's_waitcnt vmcnt({VW})')
    for x in bread: a(x)
    a(f'v_bfe_u32 v{vDEG}, v{vINFO}, 16, 6')
    a(f's_add_u32 s{sQROW}, s{sQROW}, 4096')
    a(f's_mov_b32 s{sT}, 1')
    if P.stamp:
        a(f's_cmp_lg_u32 s{88+9}, 0'); a('s_cbranch_scc1 L_st9'); stamp(9); a.label('L_st9')
    a('s_waitcnt lgkmcnt(0)')
    pf = list(PF)
    for k in range(5):
        a(m1(0, k, vN, vQ))
        n = 3 if k < 4 else 99
        for x in pf[:n]: a(x)
        pf = pf[n:]
    for c in range(4):
        cn = (c + 1) & 3
        if c == 3: a('s_waitcnt lgkmcnt(0)')
        for k in range(5):
            a(m1(cn, k, vN + 16*cn if c < 3 else vY, vQ + 16*cn))
            if c == 2:
                if k == 0: a(f's_waitcnt vmcnt({VW})')
                a(bread[k])
            for i in range(3*k, 3*k + (3 if k < 4 else 4)): a(f'v_exp_f32 v{vD+16*c+i}, v{vN+16*c+i}')
        for p in range(8):
            d = R('v', vD + 16*c + 2*p, 2)
            a(f'v_pk_add_f32 {d}, {d}, 1.0 op_sel_hi:[1,0]')
    a(f's_cmp_ge_u32 s{sT}, s{sL}'); a('s_cbranch_scc1 L_flush')
    a(m0x)
    a(m1(1, 0, vY + 16, vQ + 16))
    a('.p2align 3')
    a.label('L_row')
    for c in range(4):
        cn = (c + 1) & 3
        y = vY + 16 * (c & 1); yn = vY + 16 * (cn & 1)
        S = [[] for _ in range(5)]
        V = [[] for _ in range(5)]
        if c == 0:
            S[1] = ['s_mov_b64 exec, -1']; V[1] = xaddr[:2]
            S[2] = [jump[0]]; V[2] = xaddr[2:]
            S[3] = [jump[1]]; V[3] = [eaddr]
            V[4] = dmax + [m0e, ell_read[0], dmae, ell_read[1]] + ell_adv + [f'v_cmpx_lt_u32 vcc, s{sT}, v{vDEG}']
        if c == 1:
            S[0] = [adv[0]]; S[1] = [adv[1]]; S[2] = [adv[2]]
            S[3] = [f's_add_u32 s{sT}, s{sT}, 1']
            V[4] = baddr
        if c == 2:
            for k in range(5): S[k] = [bread[k]]
            S[0].insert(0, f's_waitcnt vmcnt({VW})')
            S[4].insert(0, 's_waitcnt lgkmcnt(3)')
        if c == 3:
            S[0] = ['s_waitcnt lgkmcnt(0)']
            if P.stamp == 2: S[0] = ['s_memrealtime s[86:87]', 's_waitcnt lgkmcnt(0)', f's_mov_b32 m0, s{sT}', 's_nop 0', f'v_writelane_b32 v{vMAX}, s86, m0']
            S[1] = [f's_cmp_lt_u32 s{sT}, s{sL}']
            S[2] = [m0x]
        L = []
        for k in range(5):
            if (c, k) != (0, 0): L.append(m1(cn, k, yn, vQ + 16*cn))
            L += S[k]
            for i in range(3*k, 3*k + (3 if k < 4 else 4)): L.append(f'v_exp_f32 v{vE+i}, v{y+i}')
            L += V[k]
        if sum(isize(x) for x in L) % 8:
            i = max(i for i, x in enumerate(L) if x.startswith('v_exp_f32 '))
            L[i] = L[i].replace('v_exp_f32 ', 'v_exp_f32_e64 ')
        for x in L: a(x)
        for p in range(8):
            yy, nn, dd, ee = R('v', y+2*p, 2), R('v', vN+16*c+2*p, 2), R('v', vD+16*c+2*p, 2), R('v', vE+2*p, 2)
            a(f'v_pk_fma_f32 {yy}, {yy}, {dd}, {nn}')
            a(f'v_pk_fma_f32 {dd}, {dd}, {ee}, {dd}')
            a(f'v_pk_fma_f32 {nn}, {nn}, {ee}, {yy}')
    a(m1(1, 0, vY + 16, vQ + 16))
    a('s_cbranch_scc1 L_row')
    a.label('L_flush')
    if P.stamp:
        a(f's_cmp_lg_u32 s{88+10}, 0'); a('s_cbranch_scc1 L_st10'); stamp(10); a.label('L_st10')
        stamp(11)
    a('s_mov_b64 exec, -1')
    if P.stamp == 2:
        a(f'v_writelane_b32 v{vMAX}, s{sL}, 0')
        a(f'v_mbcnt_lo_u32_b32 v{vE}, -1, 0'); a(f'v_mbcnt_hi_u32_b32 v{vE}, -1, v{vE}'); a(f'v_lshlrev_b32 v{vE}, 2, v{vE}')
        a('s_lshl_b32 s3, s2, 2'); a(f's_add_u32 s3, s3, s{sWAVE}'); a('s_lshl_b32 s3, s3, 8'); a(f's_add_u32 s3, s3, {WS_STAMP + 65536}')
        a(f's_cmp_eq_u32 s{sLNEXT}, 0'); a('s_cselect_b32 s56, 128, 0'); a('s_add_u32 s3, s3, s56')
        a('s_mov_b32 exec_hi, 0')
        a(f'buffer_store_dword v{vMAX}, v{vE}, {srdn(SW)}, s3 offen')
        a('s_mov_b64 exec, -1')
    for x in baddr: a(x)
    a(f'v_and_b32 v{vQ+32}, 16, v{vBE0}')
    a(f'v_lshlrev_b32 v{vQ+33}, 3, v{vQ+32}')
    for i in range(8): a(f'ds_read_b128 {R("v", vQ+4*i, 4)}, v{vQ+33} offset:{B2T + 16*i}')
    a(f'v_lshlrev_b32 v{vQ+32}, 2, v{vQ+32}')
    a(f'v_mad_u32_u16 v{vQ+32}, v{vINFO}, s{s128}, v{vQ+32}')
    a(f'v_cvt_f32_u32 v{vQ+34}, v{vDEG}')
    a(f'v_mov_b32 v{vMAX}, 0')
    def g3(c, i):
        u = 2*c + (i >> 1); dt = i & 1
        acc = R('v', vY + 16*dt, 16)
        return mfma(acc, R('a', aW2 + (dt*8+u)*4, 4), R('v', vE + 8*(c & 1) + 4*(i >> 1), 4), acc if u else '0')
    for c in range(4):
        for q in range(4):
            if c: a(g3(c-1, q))
            for p in range(2):
                d = vD + 16*c + 4*q + 2*p
                a(f'v_max3_f32 v{vMAX}, v{d}, v{d+1}, v{vMAX}')
                a(f'v_rcp_f32 v{d}, v{d}'); a(f'v_rcp_f32 v{d+1}, v{d+1}')
        for p in range(8):
            nn, dd = R('v', vN+16*c+2*p, 2), R('v', vD+16*c+2*p, 2)
            a(f'v_pk_mul_f32 {nn}, {nn}, {dd}')
        if c == 3:
            a('s_waitcnt lgkmcnt(0)')
            for p in range(16):
                qq = R('v', vQ+2*p, 2)
                a(f'v_pk_mul_f32 {qq}, {qq}, {R("v", vQ+34, 2)} op_sel_hi:[1,0]')
        for p in range(8):
            a(f'v_cvt_pk_bf16_f32 v{vE+8*(c&1)+p}, v{vN+16*c+2*p}, v{vN+16*c+2*p+1}')
    for q in range(4): a(g3(3, q))
    a(f's_mov_b32 s3, {f32(2.0**100)}')
    a(f'v_bfe_u32 v{vQ+33}, v{vINFO}, 22, 2')
    a(f'v_cmp_ne_u32 s[58:59], 0, v{vQ+33}')
    a(f'v_cmp_ne_u32 s[60:61], 3, v{vQ+33}')
    a(f'v_cmpx_ne_u32 vcc, 0, v{vDEG}')
    a(f'v_cmp_lt_f32 s[56:57], s3, v{vMAX}')
    a(f'v_mov_b32 v{vMAX}, 0x207')
    for p in range(16):
        yy, qq = R('v', vY+2*p, 2), R('v', vQ+2*p, 2)
        a(f'v_pk_fma_f32 {qq}, {yy}, s[{sLN2}:{sLN2+1}], {qq}')
    a(f'v_cmp_class_f32 vcc, v{vQ}, v{vMAX}')
    a(f's_or_b64 s[{sBAD}:{sBAD+1}], s[{sBAD}:{sBAD+1}], s[56:57]')
    a('s_mov_b64 exec, s[58:59]')
    a(f's_or_b64 s[{sBAD}:{sBAD+1}], s[{sBAD}:{sBAD+1}], vcc')
    a('s_cbranch_execz L_nopair')
    for i in range(32):
        a(f'v_add_f32_dpp v{vQ+i}, v{vQ+i}, v{vQ+i} quad_perm:[1,0,3,2] row_mask:0xf bank_mask:0xf')
    a.label('L_nopair')
    a('s_mov_b64 exec, s[60:61]')
    for i in range(4):
        for p in range(4*i, 4*i+4): a(f'v_cvt_pk_bf16_f32 v{vE+p}, v{vQ+2*p}, v{vQ+2*p+1}')
        a(f'buffer_store_dwordx4 {R("v", vE+4*i, 4)}, v{vQ+32}, {srdn(SO)}, 0 offen offset:{16*i}{P.pol_out}')
    a('s_mov_b64 exec, -1')
    a(f's_mov_b32 s{sL}, s{sLNEXT}')
    a(f's_mov_b32 s{sLNEXT}, 0')
    a(f's_cmp_lg_u32 s{sL}, 0'); a('s_cbranch_scc1 L_group')
    if P.stamp:
        a('s_waitcnt vmcnt(0)'); stamp(12); stamp(13, True)
        for i in range(14): a(f'v_writelane_b32 v1, s{88+i}, {i}')
        a(f'v_writelane_b32 v1, s{sCNT}, 14')
        a('v_mbcnt_lo_u32_b32 v2, -1, 0'); a('v_mbcnt_hi_u32_b32 v2, -1, v2'); a('v_lshlrev_b32 v2, 2, v2')
        a('s_lshl_b32 s3, s2, 2'); a(f's_add_u32 s3, s3, s{sWAVE}'); a('s_lshl_b32 s3, s3, 6'); a(f's_add_u32 s3, s3, {WS_STAMP}')
        a('s_mov_b64 exec, 0xffff')
        a(f'buffer_store_dword v1, v2, {srdn(SW)}, s3 offen')
        a('s_mov_b64 exec, -1')
    a(f's_cmp_eq_u64 s[{sBAD}:{sBAD+1}], 0')
    a('v_mov_b32 v1, 0'); a('v_mov_b32 v2, 1')
    a('s_cbranch_scc1 L_nobad')
    a(f'ds_write_b32 v1, v2 offset:{FLAG}')
    a.label('L_nobad')
    a('s_waitcnt lgkmcnt(0)')
    a('s_barrier')
    a(f'ds_read_b32 v2, v1 offset:{FLAG}')
    a('s_waitcnt lgkmcnt(0)')
    a('v_readfirstlane_b32 s3, v2')
    a('s_cmp_lg_u32 s3, 0'); a('s_cbranch_scc1 L_slow')
    if P.diag:
        a.label('L_diag')
        a('s_memrealtime s[86:87]'); a('s_waitcnt lgkmcnt(0)')
        a(f's_sub_u32 s86, s86, s{sTAG}'); a(f's_cmp_lt_u32 s86, {P.diag}'); a('s_cbranch_scc1 L_diag')
    a.label('L_end')
    a('s_endpgm')

    a.label('L_prep_load')
    srd(a, SD, 52, 144 * 128 * 2); srd(a, SS, 56, 128 * 64 * 2)
    prep_offsets(a, 2, 26, 27, 28, 29)
    a(f's_sub_u32 s85, s2, {NCH}'); a('s_lshl_b32 s85, s85, 2'); a(f's_add_u32 s85, s85, s{sWAVE}')
    prep_w1_load(a, 85, 26, 32, 34, 35)
    a('s_add_u32 s3, s85, 24'); a('s_min_u32 s3, s3, 35')
    prep_w1_load(a, 3, 26, 40, 34, 35)
    a('s_add_u32 s3, s85, 28'); a('s_max_u32 s3, s3, 36')
    prep_w2_load(a, 3, 27, 48, 34, 35)
    a('s_branch L_setup')
    a.label('L_prep_store')
    a('s_waitcnt vmcnt(0)')
    tagload()
    prep_w1_pack(a, 32); prep_w1_pack(a, 40); prep_w2_pack(a, 48)
    for add, lim, vd in ((0, None, 32), (24, 's_min_u32 s3, s3, 35', 40), (28, 's_max_u32 s3, s3, 36', 48)):
        a(f's_add_u32 s3, s85, {add}')
        if lim: a(lim)
        a('s_lshl_b32 s3, s3, 10'); a(f's_add_u32 s3, s3, {WS_W}')
        a(f'buffer_store_dwordx4 {R("v", vd, 4)}, v9, {srdn(SW)}, s3 offen sc1')
    a('v_lshlrev_b32 v10, 16, v10')
    a('v_mul_f32 v10, s34, v10')
    a(f'ds_write_b32 v15, v10 offset:{B1T}')
    a(f'ds_write_b32 v15, v11 offset:{TT}')
    for i in range(4): a(f'v_mov_b32 v{26+i}, 0')
    gettag('L_ptag2', first_issued=True)
    a('s_waitcnt lgkmcnt(0)')
    a('s_barrier')
    pubrow('L_norow2')
    a('s_branch L_publish')

    a.label('L_slow')
    a('s_mov_b64 exec, -1')
    a('s_waitcnt vmcnt(0) lgkmcnt(0)')
    a('s_load_dwordx2 s[52:53], s[0:1], 32')
    a('s_load_dwordx2 s[56:57], s[0:1], 48')
    a('s_load_dwordx4 s[8:11], s[0:1], 16')
    a('s_barrier')
    vL, vS, vH, vT0, vT1, vOA, vD4 = 240, 241, 242, 244, 245, 246, 252
    a(f'v_mbcnt_lo_u32_b32 v{vL}, -1, 0'); a(f'v_mbcnt_hi_u32_b32 v{vL}, -1, v{vL}')
    a(f'v_and_b32 v{vS}, 31, v{vL}')
    a(f'v_lshrrev_b32 v{vH}, 5, v{vL}')
    a(f's_lshl_b32 s3, s{sWAVE}, 10')
    a(f'v_lshl_add_u32 v4, v{vL}, 4, s3')
    for i in range(4): a(f'v_mov_b32 v{i}, 0')
    for i in range(13): a(f'ds_write_b128 v4, v[0:3] offset:{OACC + 4096*i}')
    a('s_waitcnt lgkmcnt(0)')
    srd(a, SD, 52, 144 * 128 * 2); srd(a, SS, 56, 128 * 64 * 2)
    prep_offsets(a, vL, 26, 27, 28, 29)
    a(f'v_add_u32 v4, {WST}, v4')
    a(f's_mov_b32 s85, s{sWAVE}')
    a.label('L_s_w1')
    prep_w1_load(a, 85, 26, 32, 34, 35)
    a('s_waitcnt vmcnt(0)')
    prep_w1_pack(a, 32)
    a('ds_write_b128 v4, v[32:35]')
    a('v_add_u32 v4, 4096, v4')
    a('s_add_u32 s85, s85, 4'); a('s_waitcnt lgkmcnt(0)'); a('s_cmp_lt_u32 s85, 36'); a('s_cbranch_scc1 L_s_w1')
    a.label('L_s_w2')
    prep_w2_load(a, 85, 27, 32, 34, 35)
    a('s_waitcnt vmcnt(0)')
    prep_w2_pack(a, 32)
    a('ds_write_b128 v4, v[32:35]')
    a('v_add_u32 v4, 4096, v4')
    a('s_add_u32 s85, s85, 4'); a('s_waitcnt lgkmcnt(0)'); a('s_cmp_lt_u32 s85, 52'); a('s_cbranch_scc1 L_s_w2')
    a('s_barrier')
    a(f'v_lshlrev_b32 v4, 4, v{vL}'); a(f'v_add_u32 v4, {WST}, v4')
    for i in range(52): a(f'ds_read_b128 {R("a", 4*i, 4)}, v4 offset:{1024*i}')
    srd(a, SD, 10, E * 4); srd(a, SS, 8, E * 4)
    sE0, sJj = 56, 57
    a(f's_lshl_b32 s{sE0}, s{sWAVE}, 9')
    a(f'v_lshlrev_b32 v243, 4, v{vS}')
    a.label('L_s_blk')
    a(f'buffer_load_dwordx4 {R("v", vD4, 4)}, v243, {srdn(SD)}, s{sE0} offen')
    a(f's_mov_b32 s{sJj}, 0')
    a('s_waitcnt vmcnt(0)')
    a.label('L_s_sub')
    a(f'v_subrev_u32 v248, s{sNB0}, v{vD4}')
    a(f'v_cmp_gt_u32 s[60:61], s{sNNODE}, v248')
    a('s_cmp_eq_u64 s[60:61], 0'); a('s_cbranch_scc1 L_s_next')
    a(f's_add_u32 s3, s{sE0}, s{sJj}')
    a(f'buffer_load_dword v{vT0}, v243, {srdn(SS)}, s3 offen')
    a(f'v_lshlrev_b32 v247, 8, v{vH}')
    for i in range(16): a(f'ds_read_b128 {R("v", vQ+4*i, 4)}, v247 offset:{B1T + 16*i}')
    a(f'v_lshlrev_b32 v247, 4, v{vH}')
    a(f'v_add_lshl_u32 v{vT1}, v243, s3, 3')
    a(f'v_add_u32 v{vT1}, v{vT1}, v247')
    a(f'v_lshl_add_u32 v249, v{vD4}, 7, v247')
    a(f'v_mul_u32_u24 v{vOA}, 260, v248')
    a(f'v_lshl_add_u32 v{vOA}, v{vH}, 7, v{vOA}')
    a('s_waitcnt vmcnt(0)')
    a(f'v_lshl_add_u32 v{vT0}, v{vT0}, 7, v247')
    a('s_mov_b64 exec, s[60:61]')
    for k in range(4): a(f'buffer_load_dwordx4 {R("a", aBX+4*k, 4)}, v{vT0}, {srdn(SX)}, s{sXO} offen offset:{32*k}')
    a(f'buffer_load_dwordx4 {R("a", aBE, 4)}, v{vT1}, {srdn(SE)}, 0 offen')
    for k in range(4): a(f'buffer_load_dwordx4 {R("v", vE+4*k, 4)}, v249, {srdn(SX)}, s{sXO} offen offset:{32*k}')
    a('s_waitcnt vmcnt(0) lgkmcnt(0)')
    for c in range(4):
        q = R('v', vQ+16*c, 16)
        for k in range(4): a(mfma(q, R('a', aW1B + (c*4+k)*4, 4), R('v', vE+4*k, 4), q))
        for k in range(5): a(m1(c, k, vQ+16*c, vQ+16*c))
    for i in range(64): a(f'v_exp_f32 v{vD+i}, v{vQ+i}')
    for i in range(64): a(f'v_add_f32 v{vD+i}, 1.0, v{vD+i}')
    for i in range(64): a(f'v_rcp_f32 v{vD+i}, v{vD+i}')
    for i in range(64): a(f'v_mul_f32 v{vD+i}, v{vD+i}, v{vQ+i}')
    for i in range(32): a(f'v_cvt_pk_bf16_f32 v{vN+i}, v{vD+2*i}, v{vD+2*i+1}')
    a(f'v_lshlrev_b32 v247, 7, v{vH}')
    for i in range(8): a(f'ds_read_b128 {R("v", vQ+4*i, 4)}, v247 offset:{B2T + 16*i}')
    for dt in range(2):
        acc = R('v', vY + 16*dt, 16)
        for u in range(8): a(mfma(acc, R('a', aW2 + (dt*8+u)*4, 4), R('v', vN + 4*u, 4), acc if u else '0'))
    a('s_waitcnt lgkmcnt(0)')
    for i in range(32): a(f'v_fma_f32 v{vY+i}, v{vY+i}, s{sLN2}, v{vQ+i}')
    for i in range(32): a(f'ds_add_f32 v{vOA}, v{vY+i} offset:{OACC + 4*i}')
    a('s_mov_b64 exec, -1')
    a('s_waitcnt lgkmcnt(0)')
    a.label('L_s_next')
    for i in range(3): a(f'v_mov_b32 v{vD4+i}, v{vD4+i+1}')
    a(f's_add_u32 s{sJj}, s{sJj}, 4')
    a(f's_cmp_lt_u32 s{sJj}, 16'); a('s_cbranch_scc1 L_s_sub')
    a(f's_add_u32 s{sE0}, s{sE0}, 2048')
    a(f's_cmp_lt_u32 s{sE0}, {E*4}'); a('s_cbranch_scc1 L_s_blk')
    a('s_barrier')
    a(f's_lshl_b32 s3, s{sWAVE}, 1')
    a(f'v_add_u32 v1, s3, v{vH}')
    a.label('L_s_out')
    a(f'v_cmp_gt_u32 vcc, s{sNNODE}, v1')
    a('v_mul_u32_u24 v4, 260, v1')
    a(f'v_lshl_add_u32 v4, v{vS}, 3, v4')
    a(f'v_add_u32 v4, {OACC}, v4')
    a(f'v_add_u32 v5, s{sNB0}, v1')
    a('v_lshlrev_b32 v5, 7, v5')
    a(f'v_lshl_add_u32 v5, v{vS}, 2, v5')
    a('s_and_b64 exec, exec, vcc')
    a('s_cbranch_execz L_s_end')
    a('ds_read2_b32 v[2:3], v4 offset0:0 offset1:1')
    a('s_waitcnt lgkmcnt(0)')
    a('v_cvt_pk_bf16_f32 v2, v2, v3')
    a(f'buffer_store_dword v2, v5, {srdn(SO)}, 0 offen')
    a('v_add_u32 v1, 8, v1')
    a('s_branch L_s_out')
    a.label('L_s_end')
    a('s_endpgm')
    a('.p2align 7')
    a.raw('.type L_table,@object')
    a.label('L_table')
    T = pattern_table()
    for i in range(0, 256, 8): a.raw('.long ' + ', '.join(hex(x) for x in T[i:i+8]))
    a.raw('.size L_table, 1024')
    return a

if __name__ == '__main__':
    for kv in sys.argv[2:]:
        k, v = kv.split('=')
        cur = getattr(P, k)
        setattr(P, k, int(v) if isinstance(cur, int) else (' ' + v.replace('+', ' ') if v else ''))
    k = gen()
    for p in check_all_edges(k): print('HAZARD on branch edge', p, file=sys.stderr)
    print('instrs', sum(1 for x in k.items if not isinstance(x, str)), 'auto nops', k.nops, file=sys.stderr)
    out = open('cdna_kernels/' + NAME + '.s.ref').read().split('; Override launch')[0]
    out += f'; @launch grid=({NB},1,1) block=(256,1,1) lds={lds_bytes()}\n'
    out += '.amdgcn_target "amdgcn-amd-amdhsa--gfx950"\n.text\n'
    out += f'.globl {NAME}_kernel\n.type {NAME}_kernel,@function\n' + k.text()
    out += f'''.section .rodata,"a"
.p2align 6
.amdhsa_kernel {NAME}_kernel
  .amdhsa_next_free_vgpr 512
  .amdhsa_next_free_sgpr 102
  .amdhsa_accum_offset 256
  .amdhsa_group_segment_fixed_size 0
  .amdhsa_kernarg_size 88
  .amdhsa_user_sgpr_count 2
  .amdhsa_user_sgpr_kernarg_segment_ptr 1
  .amdhsa_system_sgpr_workgroup_id_x 1
.end_amdhsa_kernel
'''
    open(sys.argv[1], 'w').write(out)
```

```python
import sys, struct
from asmlib import Asm, Ins, check_all_edges

NAME = 'standalone__edge_featured_mpnn_mpnn__graph'
N, E = 50000, 800000
NB, BN = 256, 196
NCH, CH = 250, 3200
MAGIC = 85599
WS_REC, WS_TAB, WS_W = 0, 8 << 20, 9 << 20
WS_RDY = (9 << 20) + (256 << 10)
WS_SIZE = 10 << 20
WS_STAMP = (9 << 20) + (512 << 10)
DUMMY = 0x4000FFFF
def f32(x): return struct.unpack('<I', struct.pack('<f', x))[0]
NLOG2E = f32(-1.4426950408889634)
NLN2 = f32(-0.6931471805599453)

class P:
    depth = 2
    stamp = 0
    efrac = 100
    xfrac = 100
    limit = 3000
    svm = 0
    thr = 0
    xpos = 3
    classes = 22
    codepre = 1
    estr = 128
    srcpos = 8
    epre = ' 4'
    diag = 0
    force = 0
    pol_in = ' nt'
    pol_e = ''
    pol_x = ''
    pol_out = ''

CNT, HIST, FLAG = 0, 3328, 3584
HB, START, B1T, B2T, TT = 4096, 5120, 6144, 6656, 7168
EX, EE = 8192, 40960
RING = 73728
NSLOT = 15
MAP = RING
WST = MAP + 16384
STAGE = WST
XP = 1056
SLOT = 4 * XP + 1024
OACC = 8192
def lds_bytes(): return max(RING + 4 * P.depth * SLOT, WST + 52 * 1024)

PATTERN = [(0, 0, 'H', 1), (2, 0, 'H', 2), (3, 0, 'H', 2), (3, 1, 'H', 16), (2, 1, 'H', 9), (0, 0, 'S', 30),
           (1, 1, 'H', 14), (1, 0, 'S', 32), (2, 0, 'S', 28), (3, 0, 'S', 28), (0, 1, 'H', 16), (2, 1, 'S', 14), (1, 1, 'S', 4)]
def pattern_table():
    free = {(w, ph): list(range(32)) for w in range(4) for ph in range(2)}
    T = [None] * BN; p = 0; segs = []
    for w, ph, t, n in PATTERN: segs.append((w, ph, t, p, n)); p += n
    assert p == BN
    for t0 in 'HS':
        for w, ph, t, p0, n in segs:
            if t != t0: continue
            for i in range(n):
                pos = free[(w, ph)].pop(0)
                if t == 'H': assert pos < 16; free[(w, ph)].remove(pos + 16)
                T[p0 + i] = (((w * 2 + ph) * 4096 + pos * 4 + 128) << 16) | (64 if t == 'H' else 128)
    assert all(not v for v in free.values())
    return T + [128] * (256 - BN)

vN, vD, vQ, vY, vE = 0, 64, 128, 192, 224
vEX, vEE, vAX, vAE, vCX, vCE, vBX0, vBE0, vBX, vBE, vINFO, vDEG, vMAX = 240, 244, 245, 246, 247, 248, 249, 250, 251, 252, 253, 254, 255
aW1A, aW1C, aW1B, aW2, aBX, aBE, aJUNK = 0, 64, 80, 144, 208, 224, 228
SX, SE, SW, SO, SD, SS = 12, 16, 20, 24, 68, 72
sB, sNB0, sNNODE, sWAVE, sMAP, sCOL = 28, 29, 30, 31, 32, 33
sXO = 36
s128, sSLOT, sRING0, sRING1, sT, sL, sLNEXT, sQROW = 40, 41, 42, 43, 44, 45, 46, 47
sLN2, sBAD = 48, 50
sJ, sJUMP, sINC = 52, 53, 54
sSLOW, sCNT = 66, 67
mLO, mBN, mNN = 's[76:77]', 's[78:79]', 's[80:81]'
sTAG, sTAG8, sTAGH = 82, 83, 84
def R(p, b, n): return f'{p}[{b}:{b+n-1}]'
def srdn(s): return f's[{s}:{s+3}]'
SDWA = 'dst_sel:DWORD dst_unused:UNUSED_PAD src0_sel:DWORD src1_sel:'

def srd(a, d, lo, size):
    a(f's_mov_b32 s{d}, s{lo}'); a(f's_and_b32 s{d+1}, s{lo+1}, 0xffff')
    a(f's_mov_b32 s{d+2}, {size}'); a(f's_mov_b32 s{d+3}, 0x20000')
def wave_scan(a, v, fill=()):
    fill = list(fill)
    steps = [f'row_shr:{sh} row_mask:0xf bank_mask:0xf bound_ctrl:0' for sh in (1, 2, 4, 8)]
    steps += ['row_bcast:15 row_mask:0xa bank_mask:0xf', 'row_bcast:31 row_mask:0xc bank_mask:0xf']
    for s in steps:
        for x in fill[:2]: a(x)
        fill = fill[2:]
        a(f'v_add_u32_dpp v{v}, v{v}, v{v} {s}')
    for x in fill: a(x)
def mfma(d, A, B, C): return f'v_mfma_f32_32x32x16_bf16 {d}, {A}, {B}, {C}'
def m1(c, k, dst, first_c):
    A = R('a', aW1A + (c * 4 + k) * 4, 4) if k < 4 else R('a', aW1C + c * 4, 4)
    B = R('a', aBX + k * 4, 4) if k < 4 else R('a', aBE, 4)
    return mfma(R('v', dst, 16), A, B, R('v', first_c if k == 0 else dst, 16))
def isize(x):
    if x.endswith(':'): return 0
    op = x.split()[0]
    if op.startswith(('v_mfma', 'v_pk_', 'buffer_', 'ds_', 'global_', 'v_mad_', 'v_max3', 'v_cvt_pk', 'v_lshl_add', 'v_bfe', 'v_writelane', 's_memreal')) or op.endswith(('_e64', '_dpp', '_sdwa')): return 8
    for t in x.replace(',', ' ').split()[1:]:
        try: v = int(t, 0)
        except ValueError: continue
        if not -16 <= v <= 64 and not op.startswith(('s_movk', 's_waitcnt', 's_nop')): return 8
    return 4

def prep_offsets(a, vl, v1, v2, t0, t1):
    a(f'v_and_b32 v{t0}, 31, v{vl}'); a(f'v_lshrrev_b32 v{t1}, 5, v{vl}')
    a(f'v_lshlrev_b32 v{v1}, 11, v{t1}'); a(f'v_lshl_add_u32 v{v1}, v{t0}, 1, v{v1}')
    a(f'v_lshlrev_b32 v{v2}, 9, v{t1}')
    a(f'v_bfe_u32 v{t1}, v{t0}, 2, 1'); a(f'v_lshl_add_u32 v{v2}, v{t1}, 6, v{v2}')
    a(f'v_and_b32 v{t1}, 3, v{t0}'); a(f'v_lshl_add_u32 v{v2}, v{t1}, 1, v{v2}')
    a(f'v_lshrrev_b32 v{t1}, 3, v{t0}'); a(f'v_lshl_add_u32 v{v2}, v{t1}, 3, v{v2}')
def prep_w1_load(a, sidx, voff, vd, s0, s1):
    a(f's_and_b32 s{s0}, s{sidx}, 3'); a(f's_lshr_b32 s{s1}, s{sidx}, 2')
    a(f's_cmp_eq_u32 s{s1}, 4')
    a(f's_cselect_b32 s{s1}, s{s0}, s{s1}'); a(f's_cselect_b32 s{s0}, 8, s{s0}')
    a(f's_lshl_b32 s{s0}, s{s0}, 12'); a(f's_lshl_b32 s{s1}, s{s1}, 6'); a(f's_add_u32 s{s0}, s{s0}, s{s1}')
    a(f's_cmp_ge_u32 s{sidx}, 20'); a(f's_cselect_b32 s{s1}, {64*256 - 5*64}, 0'); a(f's_add_u32 s{s0}, s{s0}, s{s1}')
    for j in range(8): a(f'buffer_load_ushort v{vd+j}, v{voff}, {srdn(SD)}, s{s0} offen offset:{256*j}')
def prep_w2_load(a, sidx, voff, vd, s0, s1):
    a(f's_sub_u32 s{s0}, s{sidx}, 36'); a(f's_lshr_b32 s{s1}, s{s0}, 3'); a(f's_and_b32 s{s0}, s{s0}, 7')
    a(f's_lshl_b32 s{s0}, s{s0}, 11'); a(f's_lshl_b32 s{s1}, s{s1}, 5'); a(f's_add_u32 s{s0}, s{s0}, s{s1}')
    for j in range(8): a(f'buffer_load_ushort v{vd+j}, v{voff}, {srdn(SS)}, s{s0} offen offset:{128*((j&3)+8*(j>>2))}')
def prep_w1_pack(a, vd):
    for j in range(8): a(f'v_lshlrev_b32 v{vd+j}, 16, v{vd+j}')
    for j in range(8): a(f'v_mul_f32 v{vd+j}, {NLOG2E}, v{vd+j}')
    for j in range(4): a(f'v_cvt_pk_bf16_f32 v{vd+j}, v{vd+2*j}, v{vd+2*j+1}')
def prep_w2_pack(a, vd):
    for j in range(4): a(f'v_lshl_or_b32 v{vd+j}, v{vd+2*j+1}, 16, v{vd+2*j}')

def gen():
    D = P.depth
    VW = 5 * (D - 1)
    a = Asm()
    def stamp(i, real=False):
        if not P.stamp: return
        if P.stamp == 3: real = True
        a(f's_mem{"real" if real else ""}time s[86:87]'); a('s_waitcnt lgkmcnt(0)'); a(f's_mov_b32 s{88+i}, s86')
    def poll(name, load, check, first_issued=False, first_wait=None):
        a(f's_movk_i32 s{sCNT}, {P.limit}')
        if first_wait is not None:
            if first_wait: a(first_wait)
            check()
            a(f's_cbranch_scc0 {name}_ok')
        elif first_issued: a(f's_branch {name}_chk')
        a.label(name)
        load()
        a.label(name + '_chk')
        a('s_waitcnt vmcnt(0)')
        check()
        a(f's_cbranch_scc0 {name}_ok')
        a(f's_sub_u32 s{sCNT}, s{sCNT}, 1')
        a(f's_cbranch_scc0 {name}')
        a(f's_mov_b32 s{sSLOW}, 1')
        a.label(name + '_ok')

    epre = [int(ch) for ch in P.epre.strip()]
    def warm(pos):
        n = 0
        for i, p in enumerate(epre):
            if p != pos: continue
            if i < 4:
                a(f'v_add_u32 v124, {i*256*P.estr}, v126')
                if (i + 1) * 256 * P.estr > CH * 32: a(f'v_min_u32 v124, v124, v125')
                a(f'buffer_load_dword a{aJUNK}, v124, {srdn(SE)}, 0 offen')
            else:
                a(f'v_lshlrev_b32 v124, 7, v24')
                a(f'buffer_load_dword a{aJUNK}, v124, {srdn(SX)}, s{sXO} offen')
            n += 1
        return n
    a('.p2align 8'); a.label(NAME + '_kernel')
    a(f's_cmp_ge_u32 s2, {NB}'); a('s_cbranch_scc1 L_end')
    stamp(0, True); stamp(1)
    a('s_load_dwordx8 s[4:11], s[0:1], 0')
    a('s_load_dwordx4 s[60:63], s[0:1], 64')
    a('s_load_dwordx2 s[64:65], s[0:1], 80')
    a('s_load_dwordx8 s[52:59], s[0:1], 32')
    a(f's_memrealtime s[{sTAG}:{sTAG+1}]')
    a('s_getpc_b64 s[14:15]')
    a.label('L_pc')
    a('v_lshlrev_b32 v15, 2, v0')
    if P.codepre:
        a('v_lshlrev_b32 v3, 6, v0')
        a('v_min_u32 v3, L_slow-L_pc, v3')
        a(f'global_load_dword a{aJUNK}, v3, s[14:15]')
    a('s_add_u32 s14, s14, L_table-L_pc')
    a('s_addc_u32 s15, s15, 0')
    a('global_load_dword v11, v15, s[14:15]')
    a('v_lshrrev_b32 v1, 6, v0')
    a('v_and_b32 v2, 63, v0')
    a(f'v_readfirstlane_b32 s{sWAVE}, v1')
    a('v_lshlrev_b32 v21, 4, v0')
    for i in range(4): a(f'v_mov_b32 v{4+i}, 0')
    a('ds_write_b128 v21, v[4:7]')
    a(f'ds_write_b32 v15, v4 offset:{HB}')
    a('v_mov_b32 v12, 0')
    a('v_mov_b32 v13, 1')
    a('v_lshlrev_b32 v9, 4, v2')
    a('v_cmp_gt_u32 vcc, 128, v0')
    a(f's_mul_i32 s3, s2, {CH*4}')
    for s in (SD, SS): a(f's_mov_b32 s{s+2}, {E*4}'); a(f's_mov_b32 s{s+3}, 0x20000')
    a(f's_mov_b64 {mLO}, vcc')
    a(f's_mov_b32 s{sSLOW}, 0')
    a('s_waitcnt lgkmcnt(0)')
    vDs, vSr, vB, vRk, vRec = 32, 48, 64, 80, 96
    a(f's_mov_b32 s{SD}, s10'); a(f's_and_b32 s{SD+1}, s11, 0xffff')
    a(f's_mov_b32 s{SS}, s8'); a(f's_and_b32 s{SS+1}, s9, 0xffff')
    for i in range(4): a(f's_add_u32 s{8+i}, s3, {4096*i}')
    a(f's_or_b32 s37, s2, s{sWAVE}')
    a('s_cbranch_scc1 L_notag')
    if P.force != 1:
        a(f's_or_b32 s{sTAG}, s{sTAG}, 1')
        a(f'v_mov_b32 v4, s{sTAG}'); a(f'v_mov_b32 v5, s{sTAG+1}')
        a('s_mov_b64 exec, 1')
        a('global_store_dwordx2 v12, v[4:5], s[62:63] sc1')
        a('s_mov_b64 exec, -1')
    a.label('L_notag')
    a(f's_cmp_ge_u32 s2, {NCH}'); a('s_cbranch_scc1 L_prep_load')
    def edge_loads(srdn_, vb, so):
        for i in range(3): a(f'buffer_load_dwordx4 {R("v", vb+4*i, 4)}, v21, {srdn(srdn_)}, s{so+i} offen{P.pol_in}')
        a(f'buffer_load_dword v{vb+12}, v15, {srdn(srdn_)}, s{so+3} offen{P.pol_in}')
    edge_loads(SD, vDs, 8)
    a.label('L_setup')
    a('v_and_b32 v10, 3, v0')
    a('v_bfe_u32 v16, v0, 2, 4')
    a('v_lshl_add_u32 v10, v16, 3, v10')
    a('v_lshl_add_u32 v10, v1, 2, v10')
    a(f'v_cndmask_b32 v10, v2, v10, {mLO}')
    a('v_lshlrev_b32 v10, 1, v10')
    a(f's_cmp_lt_u32 s{sWAVE}, 2')
    a('s_cselect_b64 s[54:55], s[54:55], s[58:59]')
    a(f's_cselect_b32 s34, {NLOG2E}, 1.0')
    a('global_load_ushort v10, v10, s[54:55]')
    for i in range(4): a(f'v_mov_b32 v{4+i}, {DUMMY}')
    a(f'v_add_u32 v3, {EX + 16384}, v21')
    init = [f'ds_write_b128 v21, v[4:7] offset:{EX + 4096*i}' for i in range(4)]
    init += [f'ds_write_b128 v3, v[4:7] offset:{4096*i}' for i in range(16)]
    C = []
    C += [f's_and_b32 s{sB}, s2, 7', f's_lshl_b32 s{sB}, s{sB}, 5', 's_lshr_b32 s3, s2, 3', f's_add_u32 s{sB}, s{sB}, s3',
          f's_mul_i32 s{sNB0}, s{sB}, {BN}', f's_sub_u32 s{sNNODE}, {N}, s{sNB0}', f's_min_u32 s{sNNODE}, s{sNNODE}, {BN}',
          f's_lshl_b32 s{sCOL}, s{sB}, 3', f's_add_u32 s{sCOL}, s{sCOL}, {WS_TAB}']
    C += [f's_sub_u32 s{SX}, s4, {3*XP}', f's_subb_u32 s{SX+1}, s5, 0', f's_and_b32 s{SX+1}, s{SX+1}, 0xffff',
          f's_mov_b32 s{SX+2}, {(N*128 + 3*XP) * P.xfrac // 100}', f's_mov_b32 s{SX+3}, 0x20000']
    for d, lo, size in ((SE, 6, E * 32 * P.efrac // 100), (SO, 60, N * 128), (SW, 64, WS_SIZE)):
        C += [f's_mov_b32 s{d}, s{lo}', f's_and_b32 s{d+1}, s{lo+1}, 0xffff', f's_mov_b32 s{d+2}, {size}', f's_mov_b32 s{d+3}, 0x20000']
    C += [f's_movk_i32 s{sXO+j}, {(3-j)*XP}' for j in range(4)]
    C += [f's_movk_i32 s{s128}, 128', f's_mov_b32 s{sLN2}, {NLN2}', f's_mov_b32 s{sLN2+1}, {NLN2}', f's_mov_b64 s[{sBAD}:{sBAD+1}], 0']
    C += [f's_lshl_b32 s{sMAP}, s{sWAVE}, 12', f's_add_u32 s{sMAP}, s{sMAP}, {MAP}']
    C += [f's_lshl_b32 s{sQROW}, s{sWAVE}, 13', f's_add_u32 s{sQROW}, s{sQROW}, {EX}']
    C += [f's_mul_i32 s{sRING0}, s{sWAVE}, {D*SLOT}', f's_add_u32 s{sRING0}, s{sRING0}, {RING}',
          f's_add_u32 s{sRING1}, s{sRING0}, {D*SLOT}', f's_mov_b32 s{sSLOT}, s{sRING0}']
    C += ['v_and_b32 v16, 7, v2', 'v_lshrrev_b32 v18, 5, v2', 'v_xor_b32 v16, v16, v18', f'v_lshlrev_b32 v{vCX}, 4, v16']
    C += ['v_and_b32 v17, 1, v2', f'v_lshlrev_b32 v{vCE}, 4, v17']
    C += ['v_bfe_u32 v16, v2, 1, 2', f'v_mul_u32_u24 v16, {XP}, v16', 'v_bfe_u32 v20, v2, 3, 2', 'v_lshl_add_u32 v16, v20, 7, v16',
          'v_lshl_add_u32 v16, v17, 9, v16', 'v_xor_b32 v20, v17, v18', f'v_lshl_add_u32 v{vBX0}, v20, 4, v16']
    C += ['v_bfe_u32 v16, v2, 1, 4', 'v_lshl_add_u32 v16, v17, 4, v16', 'v_lshlrev_b32 v16, 5, v16', 'v_lshl_add_u32 v16, v18, 4, v16',
          f'v_add_u32 v{vBE0}, {4*XP}, v16']
    C += ['v_lshrrev_b32 v16, 3, v2', f'v_lshl_add_u32 v{vAX}, v16, 4, s{sQROW}']
    C += ['v_lshrrev_b32 v16, 1, v2', f'v_lshl_add_u32 v{vAE}, v16, 2, s{sQROW}']
    C += ['v_and_b32 v16, 31, v2', 'v_lshlrev_b32 v16, 2, v16', 'v_lshl_add_u32 v16, v18, 12, v16', f'v_add_u32 v25, s{sQROW}, v16']
    C += [f'v_add_u32 v24, s{sNB0}, v0', f'v_cmp_gt_u32 vcc, {BN}, v0', f'v_cmp_gt_u32 {mNN}, s{sNNODE}, v0', f's_mov_b64 {mBN}, vcc']
    C += ['v_lshlrev_b32 v19, 2, v2', 'v_lshlrev_b32 v14, 3, v2', 'v_lshlrev_b32 v30, 11, v0', f'v_mul_u32_u24 v31, {CH}, v0']
    C += [f's_mul_i32 s3, s2, {CH*32}', 'v_lshl_add_u32 v22, v0, 7, s3', f's_add_u32 s3, s3, {3072*32}', f'v_lshl_add_u32 v{vRec+25}, v0, 5, s3',
          'v_mov_b32 v23, 0x1000000', f's_mov_b32 s55, {MAGIC}', 's_movk_i32 s56, -49', f's_movk_i32 s57, {167 if P.classes == 22 else 335}', f's_mov_b32 s59, {-167 if P.classes == 22 else 0x180000}', 'v_mov_b32 v127, 0x1ffffff', f's_mov_b32 s58, {0x100000 | {1: 0, 2: 0x80000}.get(P.classes, 0xc0000)}']
    C += [f'v_add_u32 v{vRec+2*i+1}, {((i>>2)*1024 + (i&3))*32}, v22' for i in range(12)]
    k = 0
    while init or C:
        if init: a(init.pop(0))
        for x in C[:6]: a(x)
        C = C[6:]
        k += 1
        if k == P.srcpos:
            a(f's_cmp_ge_u32 s2, {NCH}'); a('s_cbranch_scc1 L_nosrc')
            edge_loads(SS, vSr, 8)
            a.label('L_nosrc')
    if epre:
        a(f's_mul_i32 s3, s2, {CH*32}'); a(f'v_mul_u32_u24 v126, {P.estr}, v0'); a('v_add_u32 v126, s3, v126')
        a(f's_add_u32 s3, s3, {CH*32-128}'); a('v_mov_b32 v125, s3')
    n0 = warm(0)
    a('s_waitcnt lgkmcnt(0)')
    a('s_barrier')
    tagload = lambda: a('global_load_dwordx2 v[16:17], v12, s[62:63] sc1')
    def tagcheck():
        a(f'v_readfirstlane_b32 s{sTAG}, v16'); a(f'v_readfirstlane_b32 s{sTAG8}, v17')
        a(f's_cmp_eq_u32 s{sTAG}, 0')
    a(f's_cmp_ge_u32 s2, {NCH}'); a('s_cbranch_scc1 L_prep_store')
    a(f's_waitcnt vmcnt({5+n0})')
    stamp(2)
    tagload()
    n1 = warm(1)
    for i in range(13): a(f'v_mul_u32_u24 v{vB+i}, s55, v{vDs+i}')
    for i in range(13): a(f'v_lshlrev_b32_sdwa v{vB+i}, 2, v{vB+i} {SDWA}BYTE_3')
    for i in range(13):
        if i == 12: a(f's_mov_b64 exec, {mLO}')
        a(f'ds_add_rtn_u32 v{vRk+i}, v{vB+i}, v13 offset:{HB}')
    a('s_mov_b64 exec, -1')
    for i in range(13): a(f'v_mad_i32_i24 v{vDs+i}, v{vB+i}, s56, v{vDs+i}')
    a(f's_waitcnt vmcnt({1+n0+n1})')
    npf = 4 * len([p for p in epre[:3]])
    for i in range(13):
        if P.classes == 22 and i >= npf: a(f'v_mad_i32_i24 v{vRec+2*i}, v{vSr+i}, s59, v127')
        else: a(f'v_mad_u32_u24 v{vRec+2*i}, v{vSr+i}, s57, v23')
        if P.classes == 32 and i >= npf: a(f'v_max_u32 v{vRec+2*i}, 0x1400000, v{vRec+2*i}')
    a('s_waitcnt lgkmcnt(0)')
    a('s_barrier')
    a(f'ds_read_b128 v[26:29], v9 offset:{HB}')
    a(f'ds_write_b32 v15, v11 offset:{TT}')
    F = []
    for i in range(13): F.append(f'v_lshrrev_b32 v{vRec+2*i}, 4, v{vRec+2*i}')
    for i in range(13): F.append(f'v_and_or_b32 v{vRec+2*i}, v{vRec+2*i}, s{59 if P.classes == 32 and i < npf else 58}, v{vSr+i}')
    for i in range(13): F.append(f'v_lshl_add_u32 v{vRec+2*i}, v{vDs+i}, 20, v{vRec+2*i}')
    for x in F[:20]: a(x)
    a('s_waitcnt lgkmcnt(1)')
    a('v_add_u32 v5, v26, v27'); a('v_add_u32 v6, v5, v28'); a('v_add_u32 v7, v6, v29')
    a('v_mov_b32 v3, v7')
    wave_scan(a, 3, F[20:32])
    a('v_sub_u32 v4, v3, v7'); a('v_add_u32 v7, v4, v6'); a('v_add_u32 v6, v4, v5'); a('v_add_u32 v5, v4, v26')
    a(f'ds_write_b128 v9, v[4:7] offset:{START}')
    for i in range(13): a(f'ds_read_b32 v{vB+i}, v{vB+i} offset:{START}')
    for x in F[32:]: a(x)
    a('v_lshlrev_b32 v10, 16, v10')
    a('v_mul_f32 v10, s34, v10')
    a(f's_mov_b32 s3, {STAGE // 8}')
    for i in range(13): a(f'v_add_u32 v{vRk+i}, s3, v{vRk+i}')
    a('s_waitcnt lgkmcnt(0)')
    for i in range(13): a(f'v_add_lshl_u32 v{vB+i}, v{vB+i}, v{vRk+i}, 3')
    for i in range(13):
        if i == 12: a(f's_mov_b64 exec, {mLO}')
        a(f'ds_write_b64 v{vB+i}, {R("v", vRec+2*i, 2)}')
    a('s_mov_b64 exec, -1')
    a(f'ds_write_b32 v15, v10 offset:{B1T}')
    for i in range(4): a(f'v_lshl_or_b32 v{26+i}, v{26+i}, 12, v{4+i}')
    def gettag(name, **kw):
        poll(name, tagload, tagcheck, **kw)
        a(f's_mov_b32 s{sTAGH}, s{sTAG8}')
        a(f's_and_b32 s{sTAG8}, s{sTAG8}, 0xff')
    def pubrow(name):
        a(f's_sub_u32 s3, 3, s{sWAVE}'); a(f's_or_b32 s3, s3, s{sSLOW}'); a(f's_cbranch_scc1 {name}')
        if P.force == 2: a('s_cmp_eq_u32 s2, 7'); a(f's_cbranch_scc1 {name}')
        for i in range(4):
            a(f'v_lshl_or_b32 v{80+2*i}, s{sTAG8}, 24, v{26+i}')
            a(f'v_mov_b32 v{81+2*i}, s{sTAG}')
        a('s_lshl_b32 s3, s2, 11'); a(f's_add_u32 s3, s3, {WS_TAB}')
        a('v_lshlrev_b32 v3, 5, v2')
        a(f'buffer_store_dwordx4 v[80:83], v3, {srdn(SW)}, s3 offen sc1')
        a(f'buffer_store_dwordx4 v[84:87], v3, {srdn(SW)}, s3 offen offset:16 sc1')
        a.label(name)
    gettag('L_ptag', first_wait=f's_waitcnt vmcnt({n1})')
    pubrow('L_norow')
    a(f'v_add_u32 v3, {STAGE}, v21')
    a(f's_mul_i32 s3, s2, {CH*8}')
    a(f's_cmp_eq_u32 s{sWAVE}, 0')
    a('s_cselect_b64 s[56:57], -1, 0')
    a('s_waitcnt lgkmcnt(0)')
    a('s_barrier')
    for i in range(7): a(f'ds_read_b128 {R("v", 32+4*i, 4)}, v3 offset:{4096*i}')
    for i in range(7):
        a(f's_waitcnt lgkmcnt({6-i})')
        if i == 6: a('s_mov_b64 exec, s[56:57]')
        a(f'buffer_store_dwordx4 {R("v", 32+4*i, 4)}, v21, {srdn(SW)}, s3 offen sc1')
        if i < 6: a('s_add_u32 s3, s3, 4096')
    a('s_mov_b64 exec, -1')
    a.label('L_publish')
    stamp(3)
    a('v_min_u32 v3, 5, v2')
    a(f'v_add_u32 v3, {NCH}, v3')
    a('v_lshlrev_b32 v20, 11, v3')
    wload = lambda: a(f'buffer_load_dwordx2 v[122:123], v20, {srdn(SW)}, s{sCOL} offen sc1')
    tload = lambda: a(f'buffer_load_dwordx2 v[16:17], v30, {srdn(SW)}, s{sCOL} offen sc1')
    wload(); tload()
    def ownx():
        a('v_lshlrev_b32 v29, 7, v24')
        a(f'buffer_load_dword a{aJUNK}, v29, {srdn(SX)}, s{sXO} offen')
    n5 = 0
    if P.xpos == 5: ownx(); n5 += 1
    n5 += warm(5)
    a(f'v_mov_b32 v4, s{sTAG}'); a(f'v_mov_b32 v5, s{sTAGH}')
    a('s_lshl_b32 s3, s2, 3'); a(f's_add_u32 s3, s3, {WS_RDY}')
    a(f's_or_b32 s35, s{sWAVE}, s{sSLOW}')
    a(f's_waitcnt vmcnt({2+n5})')
    a('s_barrier')
    a('s_cbranch_scc1 L_nordy')
    if P.force == 3: a('s_cmp_eq_u32 s2, 9'); a('s_cbranch_scc1 L_nordy')
    a('s_mov_b64 exec, 1')
    a(f'buffer_store_dwordx2 v[4:5], v12, {srdn(SW)}, s3 offen sc1')
    a('s_mov_b64 exec, -1')
    a(f's_waitcnt vmcnt({1+n5})')
    a('s_branch L_rdydone')
    a.label('L_nordy')
    a(f's_waitcnt vmcnt({n5})')
    a.label('L_rdydone')
    stamp(4)
    a(f's_cmp_lg_u32 s{sSLOW}, 0'); a('s_cbranch_scc1 L_nomap')
    def tcheck(v):
        def f():
            a(f'v_cmp_ne_u32 s[56:57], s{sTAG}, v{v+1}')
            a(f'v_cmp_ne_u32_sdwa vcc, v{v}, s{sTAG8} src0_sel:BYTE_3 src1_sel:DWORD')
            a('s_or_b64 vcc, vcc, s[56:57]')
        return f
    poll('L_pw', wload, tcheck(122), first_wait='')
    a(f's_mul_i32 s3, s{sWAVE}, {13*1024}')
    a(f's_add_u32 s35, s3, {WS_W}')
    a(f's_add_u32 m0, s3, {WST}')
    for i in range(13):
        if i and i % 4 == 0: a('s_add_u32 m0, m0, 4096'); a('s_add_u32 s35, s35, 4096')
        a(f'buffer_load_dwordx4 v9, {srdn(SW)}, s35 offen offset:{(i%4)*1024} sc1 lds')
    poll('L_pt', tload, tcheck(16), first_wait='')
    warm(2)
    a('v_bfe_u32 v17, v16, 12, 12')
    a('v_and_b32 v16, 0xfff, v16')
    a('v_mov_b32 v18, v17')
    wave_scan(a, 18, ['v_add_u32 v16, v16, v31', 'v_cmp_lt_u32 s[56:57], 16, v17', 'v_cmp_lt_u32 s[58:59], 8, v17',
                      'v_cmp_lt_u32 s[60:61], 0, v17', 'v_cmp_lt_u32 vcc, 24, v17', f'v_mov_b32 v4, {DUMMY}', f'v_add_u32 v20, s{sMAP}, v19'])
    a('v_sub_u32 v3, v18, v17')
    a('v_readlane_b32 s3, v18, 63')
    a('v_sub_u32 v16, v16, v3')
    a(f'v_lshl_add_u32 v18, v3, 2, s{sMAP}')
    a('v_lshlrev_b32 v16, 3, v16')
    a(f's_cmp_gt_u32 s3, {NSLOT*64}')
    a(f's_cselect_b32 s{sSLOW}, 1, s{sSLOW}')
    a(f's_cmp_lg_u32 s{sSLOW}, 0'); a('s_cbranch_scc1 L_nomap')
    a('v_lshl_add_u32 v3, s3, 2, v20')
    for m, j0 in (('s[56:57]', 16), ('s[58:59]', 8), ('s[60:61]', 0)):
        a(f's_mov_b64 exec, {m}')
        for j in range(j0 + 7, j0 - 1, -1): a(f'ds_write_b32 v18, v16 offset:{4*j}')
    a('s_mov_b64 exec, -1')
    a('ds_write_b32 v3, v4')
    a('s_cbranch_vccz L_nomap')
    a.label('L_map')
    for j in range(24, 28):
        a(f'v_cmpx_lt_u32 vcc, {j}, v17')
        a(f'ds_write_b32 v18, v16 offset:{4*j}')
    a('v_add_u32 v18, 16, v18')
    a('v_subrev_u32 v17, 4, v17')
    a('s_cbranch_execnz L_map')
    a('s_mov_b64 exec, -1')
    a.label('L_nomap')
    vR, vI, vK, vP = 32, 64, 80, 96
    a(f'v_add_u32 v20, s{sMAP}, v19')
    for i in range(NSLOT): a(f'ds_read_b32 v{vI+i}, v20 offset:{256*i}')
    a(f'v_add_u32 v3, {WST}, v9')
    a('v_lshlrev_b32 v20, 3, v0')
    a(f's_mov_b32 s35, {WS_RDY}')
    rload = lambda: a(f'buffer_load_dwordx2 v[16:17], v20, {srdn(SW)}, s35 offen sc1')
    def rcheck():
        a(f'v_cmp_ne_u32 s[56:57], s{sTAG}, v16')
        a(f'v_cmp_ne_u32 vcc, s{sTAGH}, v17')
        a('s_or_b64 vcc, vcc, s[56:57]')
    a('s_waitcnt vmcnt(0) lgkmcnt(0)')
    rload()
    for i in range(NSLOT): a(f'v_add_u32 v{vI+i}, v{vI+i}, v14')
    a('s_barrier')
    for i in range(52): a(f'ds_read_b128 {R("a", 4*i, 4)}, v3 offset:{1024*i}')
    a(f's_cmp_lg_u32 s{sSLOW}, 0'); a('s_cbranch_scc1 L_pr_ok')
    poll('L_pr', rload, rcheck, first_issued=True)
    stamp(5)
    a(f's_cmp_eq_u32 s{sSLOW}, 0')
    a(f's_cselect_b32 s{SW+2}, s{SW+2}, 0')
    a('s_movk_i32 s3, 4096')
    for i in range(NSLOT):
        a(f'buffer_load_dwordx2 {R("v", vR+2*i, 2)}, v{vI+i}, {srdn(SW)}, {"s3" if i >= 8 else "0"} offen offset:{512*(i%8)} sc1')
    n3 = -1
    if P.xpos == 3: ownx(); n3 = 0
    n3 += warm(3)
    stamp(6)
    for lo, hi in ((0, 6), (6, 11), (11, 15)):
        a(f's_waitcnt vmcnt({NSLOT-hi+1+n3})')
        for i in range(lo, hi): a(f'v_lshrrev_b32 v{vI+i}, 16, v{vR+2*i}')
        if lo == 11:
            for i in range(lo, hi): a(f'v_cmp_ne_u32 s[{58+2*(i-lo)}:{59+2*(i-lo)}], 0, v{vI+i}')
        for i in range(lo, hi):
            if lo == 11: a(f's_mov_b64 exec, s[{58+2*(i-lo)}:{59+2*(i-lo)}]')
            a(f'ds_add_rtn_u32 v{vK+i}, v{vI+i}, v13 offset:{CNT}')
    if 4 in epre: a('s_mov_b64 exec, -1'); warm(4)
    a(f's_mov_b64 exec, {mBN}')
    a('s_waitcnt lgkmcnt(0)')
    a('s_barrier')
    stamp(7)
    a(f'ds_read_b128 v[4:7], v21 offset:{CNT + 16}')
    a('s_waitcnt lgkmcnt(0)')
    a('v_add_u32 v5, v4, v5'); a('v_add_u32 v6, v5, v6'); a('v_add_u32 v16, v6, v7')
    a('v_min_u32 v17, 63, v16')
    a('v_sub_u32 v17, 63, v17')
    a('v_lshlrev_b32 v17, 2, v17')
    a(f'ds_add_rtn_u32 v18, v17, v13 offset:{HIST}')
    a('v_sub_u32 v26, v16, v4'); a('v_sub_u32 v27, v16, v5'); a('v_sub_u32 v28, v16, v6')
    a('v_lshrrev_b32 v23, 1, v16')
    a('v_lshl_or_b32 v23, v23, 16, v24')
    a('v_or_b32 v23, 0xc00000, v23')
    a('s_mov_b64 exec, -1')
    a('s_waitcnt lgkmcnt(0)')
    a('s_barrier')
    a(f'ds_read_b32 v20, v19 offset:{HIST}')
    a(f'v_mov_b32 v3, {(32768 - 4) << 16}')
    a(f'ds_write_b32 v12, v3 offset:{CNT}')
    a('s_waitcnt lgkmcnt(1)')
    a('v_mov_b32 v3, v20')
    wave_scan(a, 3)
    a('v_sub_u32 v20, v3, v20')
    a('ds_bpermute_b32 v20, v17, v20')
    a(f's_mov_b64 exec, {mNN}')
    a('s_waitcnt lgkmcnt(0)')
    a('v_add_lshl_u32 v20, v20, v18, 2')
    a(f'ds_read_b32 v22, v20 offset:{TT}')
    a('s_waitcnt lgkmcnt(0)')
    a('v_and_b32 v3, 0x10000000, v22')
    a('v_lshlrev_b32 v29, 16, v22')
    a('v_cmp_ne_u32 vcc, 0, v3')
    a('v_bfe_u32 v3, v22, 6, 1')
    a('v_add_u32 v16, v16, v3')
    a('v_cndmask_b32 v7, v6, v12, vcc'); a('v_cndmask_b32 v6, v5, v28, vcc')
    a('v_cndmask_b32 v5, v4, v27, vcc'); a('v_cndmask_b32 v4, v12, v26, vcc')
    for i in range(4): a(f'v_mad_u32_u24 v{4+i}, v{4+i}, v29, v22')
    a('v_lshrrev_b32 v16, v3, v16')
    a('v_lshrrev_b32 v22, 16, v22')
    a('v_lshl_or_b32 v24, v3, 22, v24')
    a('v_cmp_lt_u32 s[56:57], 30, v16')
    a('v_lshl_or_b32 v24, v16, 16, v24')
    a('v_cmp_ne_u32 vcc, 0, v3')
    a(f'ds_write_b128 v21, v[4:7] offset:{CNT + 16}')
    a(f'ds_write_b32 v22, v24 offset:{EX - 128}')
    a('s_mov_b64 exec, vcc')
    a(f'ds_write_b32 v22, v23 offset:{EX - 64}')
    a(f's_or_b32 s56, s56, s{sSLOW}')
    a('s_mov_b64 exec, s[56:57]')
    a(f'ds_write_b32 v12, v13 offset:{FLAG}')
    a('s_mov_b64 exec, -1')
    a('s_waitcnt lgkmcnt(0)')
    a('s_barrier')

    ell_read = [f'ds_read_b128 {R("v", vEX, 4)}, v{vAX}', f'ds_read_b32 v{vEE}, v{vAE} offset:{EE-EX}']
    jump = [f's_sub_u32 s{sJ}, s{sJ}, 1', f's_cselect_b32 s{sINC}, s{sJUMP}, s{s128}']
    ell_adv = [f'v_add_u32 v{vAX}, s{sINC}, v{vAX}', f'v_add_u32 v{vAE}, s{sINC}, v{vAE}']
    xaddr = [f'v_mad_u32_u16 v{vEX+j}, v{vEX+j}, s{s128}, v{vCX}' for j in range(4)]
    eaddr = f'v_add_u32 v{vEE}, v{vEE}, v{vCE}'
    m0x = f's_mov_b32 m0, s{sSLOT}'; m0e = f's_add_u32 m0, s{sSLOT}, {4*XP}'
    dmax = [f'buffer_load_dwordx4 v{vEX+j}, {srdn(SX)}, s{sXO+j} offen offset:{j*XP}{P.pol_x} lds' for j in range(4)]
    dmae = f'buffer_load_dwordx4 v{vEE}, {srdn(SE)}, 0 offen{P.pol_e} lds'
    adv = [f's_add_u32 s{sSLOT}, s{sSLOT}, {SLOT}', f's_cmp_eq_u32 s{sSLOT}, s{sRING1}', f's_cselect_b32 s{sSLOT}, s{sRING0}, s{sSLOT}']
    baddr = [f'v_add_u32 v{vBX}, s{sSLOT}, v{vBX0}', f'v_add_u32 v{vBE}, s{sSLOT}, v{vBE0}']
    bread = [f'ds_read_b128 {R("a", aBX+4*k, 4)}, v{vBX} offset:{32*k}' for k in range(4)] + [f'ds_read_b128 {R("a", aBE, 4)}, v{vBE}']
    PFa = [m0x] + xaddr + [eaddr] + dmax + [m0e] + [adv[0]] + [dmae] + adv[1:]
    PFb = ell_read + jump + ell_adv
    PF = PFa + PFb + baddr

    a(f'ds_read_b32 v16, v12 offset:{FLAG}')
    for i in range(NSLOT - 1): a(f'ds_read_b32 v{vP+i}, v{vI+i} offset:{CNT}')
    a(f's_waitcnt lgkmcnt({NSLOT - 6})')
    a(f'ds_read_b32 v{vP+NSLOT-1}, v{vI+NSLOT-1} offset:{CNT}')
    a('ds_read_b32 v17, v25')
    for x in ell_read: a(x)
    a('v_readfirstlane_b32 s3, v16')
    a('s_cmp_lg_u32 s3, 0'); a('s_cbranch_scc1 L_slow')
    for lo, hi in ((0, 5), (5, 10), (10, 15)):
        if lo: a(f's_waitcnt lgkmcnt({NSLOT - hi + 3 if hi < NSLOT else 0})')
        for i in range(lo, hi): a(f'v_mul_u32_u24_sdwa v{vK+i}, v{vK+i}, v{vP+i} {SDWA}WORD_0')
        for i in range(lo, hi): a(f'v_add_u32_sdwa v{vP+i}, v{vK+i}, v{vP+i} {SDWA}WORD_1')
    for i in range(NSLOT):
        if i >= 11: a(f's_mov_b64 exec, s[{58+2*(i-11)}:{59+2*(i-11)}]')
        a(f'ds_write2st64_b32 v{vP+i}, v{vR+2*i}, v{vR+2*i+1} offset0:{EX//256} offset1:{EE//256}')
    a('s_mov_b64 exec, -1')
    a('v_bfe_u32 v17, v17, 16, 6')
    for x in PFa: a(x)
    for sh in (1, 2, 4, 8): a(f'v_max_u32_dpp v17, v17, v17 row_shr:{sh} row_mask:0xf bank_mask:0xf bound_ctrl:0')
    a('v_max_u32_dpp v17, v17, v17 row_bcast:15 row_mask:0xa bank_mask:0xf')
    a(f'v_add_u32 v{vAX}, 128, v{vAX}'); a(f'v_add_u32 v{vAE}, 128, v{vAE}')
    a(f'v_readlane_b32 s{sL}, v17, 31')
    a(f'v_readlane_b32 s{sLNEXT}, v17, 63')
    a('s_waitcnt lgkmcnt(0)')
    a('s_barrier')
    stamp(8)
    for x in ell_read: a(x)
    a(f's_max_u32 s{sL}, s{sL}, 1')
    a(f's_max_u32 s{sLNEXT}, s{sLNEXT}, 1')
    if P.thr: a(f's_movk_i32 s55, {P.thr}')
    a(f's_lshl_b32 s3, s{sL}, 7')
    a(f's_sub_u32 s{sJUMP}, 4096, s3')
    a(f's_sub_u32 s{sJ}, s{sL}, 1')
    for x in jump + ell_adv: a(x)
    if P.stamp: a(f's_mov_b32 s{88+9}, 0'); a(f's_mov_b32 s{88+10}, 0')
    for r in range(1, D):
        a('s_waitcnt lgkmcnt(0)')
        for x in PF: a(x)

    a.label('L_group')
    a(f'v_lshrrev_b32 v{vE+1}, 3, v{vBE0}')
    a(f'v_and_b32 v{vE}, 16, v{vBE0}')
    a(f'v_and_b32 v{vE+1}, -4, v{vE+1}')
    a(f'v_lshlrev_b32 v{vE}, 4, v{vE}')
    a(f's_sub_u32 s3, s{sQROW}, {4*XP//8}')
    a(f'v_add_u32 v{vE+1}, s3, v{vE+1}')
    a(f'ds_read_b32 v{vINFO}, v{vE+1}')
    for i in range(16): a(f'ds_read_b128 {R("v", vQ+4*i, 4)}, v{vE} offset:{B1T + 16*i}')
    a(f's_waitcnt vmcnt({VW})')
    for x in bread[:4]: a(x)
    a('s_waitcnt lgkmcnt(0)')
    pf = list(PF)
    for k in range(4):
        for c in range(4):
            a(mfma(R('v', vQ+16*c, 16), R('a', aW1B + (c*4+k)*4, 4), R('a', aBX+4*k, 4), R('v', vQ+16*c, 16)))
            for x in pf[:2]: a(x)
            pf = pf[2:]
    assert not pf
    a(f's_waitcnt vmcnt({VW})')
    for x in bread: a(x)
    a(f'v_bfe_u32 v{vDEG}, v{vINFO}, 16, 6')
    a(f's_add_u32 s{sQROW}, s{sQROW}, 4096')
    a(f's_mov_b32 s{sT}, 1')
    if P.stamp:
        a(f's_cmp_lg_u32 s{88+9}, 0'); a('s_cbranch_scc1 L_st9'); stamp(9); a.label('L_st9')
    a('s_waitcnt lgkmcnt(0)')
    pf = list(PF)
    for k in range(5):
        a(m1(0, k, vN, vQ))
        n = 3 if k < 4 else 99
        for x in pf[:n]: a(x)
        pf = pf[n:]
    for c in range(4):
        cn = (c + 1) & 3
        if c == 3: a('s_waitcnt lgkmcnt(0)')
        for k in range(5):
            a(m1(cn, k, vN + 16*cn if c < 3 else vY, vQ + 16*cn))
            if c == 2:
                if k == 0: a(f's_waitcnt vmcnt({VW})')
                a(bread[k])
            for i in range(3*k, 3*k + (3 if k < 4 else 4)): a(f'v_exp_f32 v{vD+16*c+i}, v{vN+16*c+i}')
        for p in range(8):
            d = R('v', vD + 16*c + 2*p, 2)
            a(f'v_pk_add_f32 {d}, {d}, 1.0 op_sel_hi:[1,0]')
    a(f's_cmp_ge_u32 s{sT}, s{sL}'); a('s_cbranch_scc1 L_flush')
    a(m0x)
    a(m1(1, 0, vY + 16, vQ + 16))
    a('.p2align 3')
    a.label('L_row')
    for c in range(4):
        cn = (c + 1) & 3
        y = vY + 16 * (c & 1); yn = vY + 16 * (cn & 1)
        S = [[] for _ in range(5)]
        V = [[] for _ in range(5)]
        if c == 0:
            S[1] = ['s_mov_b64 exec, -1']; V[1] = xaddr[:2]
            S[2] = [jump[0]]; V[2] = xaddr[2:]
            S[3] = [jump[1]]; V[3] = [eaddr]
            V[4] = dmax + [m0e, ell_read[0], dmae, ell_read[1]] + ell_adv + [f'v_cmpx_lt_u32 vcc, s{sT}, v{vDEG}']
        if c == 1:
            S[0] = [adv[0]]; S[1] = [adv[1]]; S[2] = [adv[2]]
            S[3] = [f's_add_u32 s{sT}, s{sT}, 1']
            if P.thr: S[4] = [f's_cmp_lt_u32 s{sT}, s55']
            V[4] = baddr
        if c == 2:
            for k in range(5): S[k] = [bread[k]]
            S[0].insert(0, f's_waitcnt vmcnt({VW})')
            if P.thr: S[0][0:0] = ['s_cbranch_scc1 L_strict', 'L_back:']
            S[4].insert(0, 's_waitcnt lgkmcnt(3)')
        if c == 3:
            S[0] = ['s_waitcnt lgkmcnt(0)']
            if P.stamp == 2: S[0] = ['s_memrealtime s[86:87]', 's_waitcnt lgkmcnt(0)', f's_mov_b32 m0, s{sT}', 's_nop 0', f'v_writelane_b32 v{vMAX}, s86, m0']
            S[1] = [f's_cmp_lt_u32 s{sT}, s{sL}']
            S[2] = [m0x]
        L = []
        for k in range(5):
            if (c, k) != (0, 0): L.append(m1(cn, k, yn, vQ + 16*cn))
            L += S[k]
            for i in range(3*k, 3*k + (3 if k < 4 else 4)): L.append(f'v_exp_f32 v{vE+i}, v{y+i}')
            L += V[k]
        if sum(isize(x) for x in L) % 8:
            i = max(i for i, x in enumerate(L) if x.startswith('v_exp_f32 '))
            L[i] = L[i].replace('v_exp_f32 ', 'v_exp_f32_e64 ')
        for x in L: a(x)
        for p in range(8):
            yy, nn, dd, ee = R('v', y+2*p, 2), R('v', vN+16*c+2*p, 2), R('v', vD+16*c+2*p, 2), R('v', vE+2*p, 2)
            a(f'v_pk_fma_f32 {yy}, {yy}, {dd}, {nn}')
            a(f'v_pk_fma_f32 {dd}, {dd}, {ee}, {dd}')
            a(f'v_pk_fma_f32 {nn}, {nn}, {ee}, {yy}')
    a(m1(1, 0, vY + 16, vQ + 16))
    a('s_cbranch_scc1 L_row')
    a.label('L_flush')
    if P.stamp:
        a(f's_cmp_lg_u32 s{88+10}, 0'); a('s_cbranch_scc1 L_st10'); stamp(10); a.label('L_st10')
        stamp(11)
    a('s_mov_b64 exec, -1')
    if P.stamp == 2:
        a(f'v_writelane_b32 v{vMAX}, s{sL}, 0')
        a(f'v_mbcnt_lo_u32_b32 v{vE}, -1, 0'); a(f'v_mbcnt_hi_u32_b32 v{vE}, -1, v{vE}'); a(f'v_lshlrev_b32 v{vE}, 2, v{vE}')
        a('s_lshl_b32 s3, s2, 2'); a(f's_add_u32 s3, s3, s{sWAVE}'); a('s_lshl_b32 s3, s3, 8'); a(f's_add_u32 s3, s3, {WS_STAMP + 65536}')
        a(f's_cmp_eq_u32 s{sLNEXT}, 0'); a('s_cselect_b32 s56, 128, 0'); a('s_add_u32 s3, s3, s56')
        a('s_mov_b32 exec_hi, 0')
        a(f'buffer_store_dword v{vMAX}, v{vE}, {srdn(SW)}, s3 offen')
        a('s_mov_b64 exec, -1')
    for x in baddr: a(x)
    a(f'v_and_b32 v{vQ+32}, 16, v{vBE0}')
    a(f'v_lshlrev_b32 v{vQ+33}, 3, v{vQ+32}')
    for i in range(8): a(f'ds_read_b128 {R("v", vQ+4*i, 4)}, v{vQ+33} offset:{B2T + 16*i}')
    a(f'v_lshlrev_b32 v{vQ+32}, 2, v{vQ+32}')
    a(f'v_mad_u32_u16 v{vQ+32}, v{vINFO}, s{s128}, v{vQ+32}')
    a(f'v_cvt_f32_u32 v{vQ+34}, v{vDEG}')
    a(f'v_mov_b32 v{vMAX}, 0')
    def g3(c, i):
        u = 2*c + (i >> 1); dt = i & 1
        acc = R('v', vY + 16*dt, 16)
        return mfma(acc, R('a', aW2 + (dt*8+u)*4, 4), R('v', vE + 8*(c & 1) + 4*(i >> 1), 4), acc if u else '0')
    for c in range(4):
        for q in range(4):
            if c: a(g3(c-1, q))
            for p in range(2):
                d = vD + 16*c + 4*q + 2*p
                a(f'v_max3_f32 v{vMAX}, v{d}, v{d+1}, v{vMAX}')
                a(f'v_rcp_f32 v{d}, v{d}'); a(f'v_rcp_f32 v{d+1}, v{d+1}')
        for p in range(8):
            nn, dd = R('v', vN+16*c+2*p, 2), R('v', vD+16*c+2*p, 2)
            a(f'v_pk_mul_f32 {nn}, {nn}, {dd}')
        if c == 3:
            a('s_waitcnt lgkmcnt(0)')
            for p in range(16):
                qq = R('v', vQ+2*p, 2)
                a(f'v_pk_mul_f32 {qq}, {qq}, {R("v", vQ+34, 2)} op_sel_hi:[1,0]')
        for p in range(8):
            a(f'v_cvt_pk_bf16_f32 v{vE+8*(c&1)+p}, v{vN+16*c+2*p}, v{vN+16*c+2*p+1}')
    for q in range(4): a(g3(3, q))
    a(f's_mov_b32 s3, {f32(2.0**100)}')
    a(f'v_bfe_u32 v{vQ+33}, v{vINFO}, 22, 2')
    a(f'v_cmp_ne_u32 s[58:59], 0, v{vQ+33}')
    a(f'v_cmp_ne_u32 s[60:61], 3, v{vQ+33}')
    a(f'v_cmpx_ne_u32 vcc, 0, v{vDEG}')
    a(f'v_cmp_lt_f32 s[56:57], s3, v{vMAX}')
    a(f'v_mov_b32 v{vMAX}, 0x207')
    for p in range(16):
        yy, qq = R('v', vY+2*p, 2), R('v', vQ+2*p, 2)
        a(f'v_pk_fma_f32 {qq}, {yy}, s[{sLN2}:{sLN2+1}], {qq}')
    a(f'v_cmp_class_f32 vcc, v{vQ}, v{vMAX}')
    a(f's_or_b64 s[{sBAD}:{sBAD+1}], s[{sBAD}:{sBAD+1}], s[56:57]')
    a('s_mov_b64 exec, s[58:59]')
    a(f's_or_b64 s[{sBAD}:{sBAD+1}], s[{sBAD}:{sBAD+1}], vcc')
    a('s_cbranch_execz L_nopair')
    for i in range(32):
        a(f'v_add_f32_dpp v{vQ+i}, v{vQ+i}, v{vQ+i} quad_perm:[1,0,3,2] row_mask:0xf bank_mask:0xf')
    a.label('L_nopair')
    a('s_mov_b64 exec, s[60:61]')
    for i in range(4):
        for p in range(4*i, 4*i+4): a(f'v_cvt_pk_bf16_f32 v{vE+p}, v{vQ+2*p}, v{vQ+2*p+1}')
        a(f'buffer_store_dwordx4 {R("v", vE+4*i, 4)}, v{vQ+32}, {srdn(SO)}, 0 offen offset:{16*i}{P.pol_out}')
    a('s_mov_b64 exec, -1')
    if P.thr: a('s_mov_b32 s55, 0')
    a(f's_mov_b32 s{sL}, s{sLNEXT}')
    a(f's_mov_b32 s{sLNEXT}, 0')
    a(f's_cmp_lg_u32 s{sL}, 0'); a('s_cbranch_scc1 L_group')
    if P.stamp:
        a('s_waitcnt vmcnt(0)'); stamp(12); stamp(13, True)
        for i in range(14): a(f'v_writelane_b32 v1, s{88+i}, {i}')
        a(f'v_writelane_b32 v1, s{sCNT}, 14')
        a('v_mbcnt_lo_u32_b32 v2, -1, 0'); a('v_mbcnt_hi_u32_b32 v2, -1, v2'); a('v_lshlrev_b32 v2, 2, v2')
        a('s_lshl_b32 s3, s2, 2'); a(f's_add_u32 s3, s3, s{sWAVE}'); a('s_lshl_b32 s3, s3, 6'); a(f's_add_u32 s3, s3, {WS_STAMP}')
        a('s_mov_b64 exec, 0xffff')
        a(f'buffer_store_dword v1, v2, {srdn(SW)}, s3 offen')
        a('s_mov_b64 exec, -1')
    a(f's_cmp_eq_u64 s[{sBAD}:{sBAD+1}], 0')
    a('v_mov_b32 v1, 0'); a('v_mov_b32 v2, 1')
    a('s_cbranch_scc1 L_nobad')
    a(f'ds_write_b32 v1, v2 offset:{FLAG}')
    a.label('L_nobad')
    a('s_waitcnt lgkmcnt(0)')
    a('s_barrier')
    a(f'ds_read_b32 v2, v1 offset:{FLAG}')
    a('s_waitcnt lgkmcnt(0)')
    a('v_readfirstlane_b32 s3, v2')
    a('s_cmp_lg_u32 s3, 0'); a('s_cbranch_scc1 L_slow')
    if P.diag:
        a.label('L_diag')
        a('s_memrealtime s[86:87]'); a('s_waitcnt lgkmcnt(0)')
        a(f's_sub_u32 s86, s86, s{sTAG}'); a(f's_cmp_lt_u32 s86, {P.diag}'); a('s_cbranch_scc1 L_diag')
    a.label('L_end')
    a('s_endpgm')

    if P.thr:
        a.label('L_strict'); a(f's_waitcnt vmcnt({P.svm})'); a('s_branch L_back')
    a.label('L_prep_load')
    srd(a, SD, 52, 144 * 128 * 2); srd(a, SS, 56, 128 * 64 * 2)
    prep_offsets(a, 2, 26, 27, 28, 29)
    a(f's_sub_u32 s85, s2, {NCH}'); a('s_lshl_b32 s85, s85, 2'); a(f's_add_u32 s85, s85, s{sWAVE}')
    prep_w1_load(a, 85, 26, 32, 34, 35)
    a('s_add_u32 s3, s85, 24'); a('s_min_u32 s3, s3, 35')
    prep_w1_load(a, 3, 26, 40, 34, 35)
    a('s_add_u32 s3, s85, 28'); a('s_max_u32 s3, s3, 36')
    prep_w2_load(a, 3, 27, 48, 34, 35)
    a('s_branch L_setup')
    a.label('L_prep_store')
    a('s_waitcnt vmcnt(0)')
    tagload()
    prep_w1_pack(a, 32); prep_w1_pack(a, 40); prep_w2_pack(a, 48)
    for add, lim, vd in ((0, None, 32), (24, 's_min_u32 s3, s3, 35', 40), (28, 's_max_u32 s3, s3, 36', 48)):
        a(f's_add_u32 s3, s85, {add}')
        if lim: a(lim)
        a('s_lshl_b32 s3, s3, 10'); a(f's_add_u32 s3, s3, {WS_W}')
        a(f'buffer_store_dwordx4 {R("v", vd, 4)}, v9, {srdn(SW)}, s3 offen sc1')
    a('v_lshlrev_b32 v10, 16, v10')
    a('v_mul_f32 v10, s34, v10')
    a(f'ds_write_b32 v15, v10 offset:{B1T}')
    a(f'ds_write_b32 v15, v11 offset:{TT}')
    for i in range(4): a(f'v_mov_b32 v{26+i}, 0')
    gettag('L_ptag2', first_issued=True)
    a('s_waitcnt lgkmcnt(0)')
    a('s_barrier')
    pubrow('L_norow2')
    a('s_branch L_publish')

    a.label('L_slow')
    a('s_mov_b64 exec, -1')
    a('s_waitcnt vmcnt(0) lgkmcnt(0)')
    a('s_load_dwordx2 s[52:53], s[0:1], 32')
    a('s_load_dwordx2 s[56:57], s[0:1], 48')
    a('s_load_dwordx4 s[8:11], s[0:1], 16')
    a('s_barrier')
    vL, vS, vH, vT0, vT1, vOA, vD4 = 240, 241, 242, 244, 245, 246, 252
    a(f'v_mbcnt_lo_u32_b32 v{vL}, -1, 0'); a(f'v_mbcnt_hi_u32_b32 v{vL}, -1, v{vL}')
    a(f'v_and_b32 v{vS}, 31, v{vL}')
    a(f'v_lshrrev_b32 v{vH}, 5, v{vL}')
    a(f's_lshl_b32 s3, s{sWAVE}, 10')
    a(f'v_lshl_add_u32 v4, v{vL}, 4, s3')
    for i in range(4): a(f'v_mov_b32 v{i}, 0')
    for i in range(13): a(f'ds_write_b128 v4, v[0:3] offset:{OACC + 4096*i}')
    a('s_waitcnt lgkmcnt(0)')
    srd(a, SD, 52, 144 * 128 * 2); srd(a, SS, 56, 128 * 64 * 2)
    prep_offsets(a, vL, 26, 27, 28, 29)
    a(f'v_add_u32 v4, {WST}, v4')
    a(f's_mov_b32 s85, s{sWAVE}')
    a.label('L_s_w1')
    prep_w1_load(a, 85, 26, 32, 34, 35)
    a('s_waitcnt vmcnt(0)')
    prep_w1_pack(a, 32)
    a('ds_write_b128 v4, v[32:35]')
    a('v_add_u32 v4, 4096, v4')
    a('s_add_u32 s85, s85, 4'); a('s_waitcnt lgkmcnt(0)'); a('s_cmp_lt_u32 s85, 36'); a('s_cbranch_scc1 L_s_w1')
    a.label('L_s_w2')
    prep_w2_load(a, 85, 27, 32, 34, 35)
    a('s_waitcnt vmcnt(0)')
    prep_w2_pack(a, 32)
    a('ds_write_b128 v4, v[32:35]')
    a('v_add_u32 v4, 4096, v4')
    a('s_add_u32 s85, s85, 4'); a('s_waitcnt lgkmcnt(0)'); a('s_cmp_lt_u32 s85, 52'); a('s_cbranch_scc1 L_s_w2')
    a('s_barrier')
    a(f'v_lshlrev_b32 v4, 4, v{vL}'); a(f'v_add_u32 v4, {WST}, v4')
    for i in range(52): a(f'ds_read_b128 {R("a", 4*i, 4)}, v4 offset:{1024*i}')
    srd(a, SD, 10, E * 4); srd(a, SS, 8, E * 4)
    sE0, sJj = 56, 57
    a(f's_lshl_b32 s{sE0}, s{sWAVE}, 9')
    a(f'v_lshlrev_b32 v243, 4, v{vS}')
    a.label('L_s_blk')
    a(f'buffer_load_dwordx4 {R("v", vD4, 4)}, v243, {srdn(SD)}, s{sE0} offen')
    a(f's_mov_b32 s{sJj}, 0')
    a('s_waitcnt vmcnt(0)')
    a.label('L_s_sub')
    a(f'v_subrev_u32 v248, s{sNB0}, v{vD4}')
    a(f'v_cmp_gt_u32 s[60:61], s{sNNODE}, v248')
    a('s_cmp_eq_u64 s[60:61], 0'); a('s_cbranch_scc1 L_s_next')
    a(f's_add_u32 s3, s{sE0}, s{sJj}')
    a(f'buffer_load_dword v{vT0}, v243, {srdn(SS)}, s3 offen')
    a(f'v_lshlrev_b32 v247, 8, v{vH}')
    for i in range(16): a(f'ds_read_b128 {R("v", vQ+4*i, 4)}, v247 offset:{B1T + 16*i}')
    a(f'v_lshlrev_b32 v247, 4, v{vH}')
    a(f'v_add_lshl_u32 v{vT1}, v243, s3, 3')
    a(f'v_add_u32 v{vT1}, v{vT1}, v247')
    a(f'v_lshl_add_u32 v249, v{vD4}, 7, v247')
    a(f'v_mul_u32_u24 v{vOA}, 260, v248')
    a(f'v_lshl_add_u32 v{vOA}, v{vH}, 7, v{vOA}')
    a('s_waitcnt vmcnt(0)')
    a(f'v_lshl_add_u32 v{vT0}, v{vT0}, 7, v247')
    a('s_mov_b64 exec, s[60:61]')
    for k in range(4): a(f'buffer_load_dwordx4 {R("a", aBX+4*k, 4)}, v{vT0}, {srdn(SX)}, s{sXO} offen offset:{32*k}')
    a(f'buffer_load_dwordx4 {R("a", aBE, 4)}, v{vT1}, {srdn(SE)}, 0 offen')
    for k in range(4): a(f'buffer_load_dwordx4 {R("v", vE+4*k, 4)}, v249, {srdn(SX)}, s{sXO} offen offset:{32*k}')
    a('s_waitcnt vmcnt(0) lgkmcnt(0)')
    for c in range(4):
        q = R('v', vQ+16*c, 16)
        for k in range(4): a(mfma(q, R('a', aW1B + (c*4+k)*4, 4), R('v', vE+4*k, 4), q))
        for k in range(5): a(m1(c, k, vQ+16*c, vQ+16*c))
    for i in range(64): a(f'v_exp_f32 v{vD+i}, v{vQ+i}')
    for i in range(64): a(f'v_add_f32 v{vD+i}, 1.0, v{vD+i}')
    for i in range(64): a(f'v_rcp_f32 v{vD+i}, v{vD+i}')
    for i in range(64): a(f'v_mul_f32 v{vD+i}, v{vD+i}, v{vQ+i}')
    for i in range(32): a(f'v_cvt_pk_bf16_f32 v{vN+i}, v{vD+2*i}, v{vD+2*i+1}')
    a(f'v_lshlrev_b32 v247, 7, v{vH}')
    for i in range(8): a(f'ds_read_b128 {R("v", vQ+4*i, 4)}, v247 offset:{B2T + 16*i}')
    for dt in range(2):
        acc = R('v', vY + 16*dt, 16)
        for u in range(8): a(mfma(acc, R('a', aW2 + (dt*8+u)*4, 4), R('v', vN + 4*u, 4), acc if u else '0'))
    a('s_waitcnt lgkmcnt(0)')
    for i in range(32): a(f'v_fma_f32 v{vY+i}, v{vY+i}, s{sLN2}, v{vQ+i}')
    for i in range(32): a(f'ds_add_f32 v{vOA}, v{vY+i} offset:{OACC + 4*i}')
    a('s_mov_b64 exec, -1')
    a('s_waitcnt lgkmcnt(0)')
    a.label('L_s_next')
    for i in range(3): a(f'v_mov_b32 v{vD4+i}, v{vD4+i+1}')
    a(f's_add_u32 s{sJj}, s{sJj}, 4')
    a(f's_cmp_lt_u32 s{sJj}, 16'); a('s_cbranch_scc1 L_s_sub')
    a(f's_add_u32 s{sE0}, s{sE0}, 2048')
    a(f's_cmp_lt_u32 s{sE0}, {E*4}'); a('s_cbranch_scc1 L_s_blk')
    a('s_barrier')
    a(f's_lshl_b32 s3, s{sWAVE}, 1')
    a(f'v_add_u32 v1, s3, v{vH}')
    a.label('L_s_out')
    a(f'v_cmp_gt_u32 vcc, s{sNNODE}, v1')
    a('v_mul_u32_u24 v4, 260, v1')
    a(f'v_lshl_add_u32 v4, v{vS}, 3, v4')
    a(f'v_add_u32 v4, {OACC}, v4')
    a(f'v_add_u32 v5, s{sNB0}, v1')
    a('v_lshlrev_b32 v5, 7, v5')
    a(f'v_lshl_add_u32 v5, v{vS}, 2, v5')
    a('s_and_b64 exec, exec, vcc')
    a('s_cbranch_execz L_s_end')
    a('ds_read2_b32 v[2:3], v4 offset0:0 offset1:1')
    a('s_waitcnt lgkmcnt(0)')
    a('v_cvt_pk_bf16_f32 v2, v2, v3')
    a(f'buffer_store_dword v2, v5, {srdn(SO)}, 0 offen')
    a('v_add_u32 v1, 8, v1')
    a('s_branch L_s_out')
    a.label('L_s_end')
    a('s_endpgm')
    a('.p2align 7')
    a.raw('.type L_table,@object')
    a.label('L_table')
    T = pattern_table()
    for i in range(0, 256, 8): a.raw('.long ' + ', '.join(hex(x) for x in T[i:i+8]))
    a.raw('.size L_table, 1024')
    return a

if __name__ == '__main__':
    for kv in sys.argv[2:]:
        k, v = kv.split('=')
        cur = getattr(P, k)
        setattr(P, k, int(v) if isinstance(cur, int) else (' ' + v.replace('+', ' ') if v else ''))
    k = gen()
    for p in check_all_edges(k): print('HAZARD on branch edge', p, file=sys.stderr)
    print('instrs', sum(1 for x in k.items if not isinstance(x, str)), 'auto nops', k.nops, file=sys.stderr)
    out = open('cdna_kernels/' + NAME + '.s.ref').read().split('; Override launch')[0]
    out += f'; @launch grid=({NB},1,1) block=(256,1,1) lds={lds_bytes()}\n'
    out += '.amdgcn_target "amdgcn-amd-amdhsa--gfx950"\n.text\n'
    out += f'.globl {NAME}_kernel\n.type {NAME}_kernel,@function\n' + k.text()
    out += f'''.section .rodata,"a"
.p2align 6
.amdhsa_kernel {NAME}_kernel
  .amdhsa_next_free_vgpr 512
  .amdhsa_next_free_sgpr 102
  .amdhsa_accum_offset 256
  .amdhsa_group_segment_fixed_size 0
  .amdhsa_kernarg_size 88
  .amdhsa_user_sgpr_count 2
  .amdhsa_user_sgpr_kernarg_segment_ptr 1
  .amdhsa_system_sgpr_workgroup_id_x 1
.end_amdhsa_kernel
'''
    open(sys.argv[1], 'w').write(out)
```

```python
import sys, struct
from asmlib import Asm, Ins, check_all_edges

NAME = 'standalone__edge_featured_mpnn_mpnn__graph'
N, E = 50000, 800000
NB, BN = 256, 196
NCH, CH = 250, 3200
MAGIC = 85599
WS_REC, WS_TAB, WS_W = 0, 8 << 20, 9 << 20
WS_SIZE = 10 << 20
WS_STAMP = (9 << 20) + (512 << 10)
DUMMY = 0x4000FFFF
def f32(x): return struct.unpack('<I', struct.pack('<f', x))[0]
NLOG2E = f32(-1.4426950408889634)
NLN2 = f32(-0.6931471805599453)

class P:
    depth = 2
    stamp = 0
    efrac = 100
    xfrac = 100
    limit = 3000
    st1 = 0
    tpos = 1
    probe = 1
    tagst = 0
    wpos = 1
    ninit = 6
    pol_st = ' sc1'
    xpre = ' 3'
    svm = 2
    thr = 8
    xpos = 3
    classes = 4
    codepre = 1
    estr = 128
    srcpos = 8
    epre = ''
    diag = 0
    force = 0
    pol_in = ' nt'
    pol_e = ''
    pol_x = ''
    pol_out = ''

CNT, HIST, FLAG = 0, 3328, 3584
HB, START, B1T, B2T, TT = 4096, 5120, 6144, 6656, 7168
EX, EE = 8192, 40960
RING = 73728
NSLOT = 15
MAP = RING
STAGE = MAP + 16384
LDS_TOTAL = 163840
WST = LDS_TOTAL - 52 * 1024
XP = 1056
SLOT = 4 * XP + 1024
OACC = 8192
def lds_bytes(): return LDS_TOTAL

PATTERN = [(0, 0, 'H', 1), (2, 0, 'H', 2), (3, 0, 'H', 2), (3, 1, 'H', 16), (2, 1, 'H', 9), (0, 0, 'S', 30),
           (1, 1, 'H', 14), (1, 0, 'S', 32), (2, 0, 'S', 28), (3, 0, 'S', 28), (0, 1, 'H', 16), (2, 1, 'S', 14), (1, 1, 'S', 4)]
def pattern_table():
    free = {(w, ph): list(range(32)) for w in range(4) for ph in range(2)}
    T = [None] * BN; p = 0; segs = []
    for w, ph, t, n in PATTERN: segs.append((w, ph, t, p, n)); p += n
    assert p == BN
    for t0 in 'HS':
        for w, ph, t, p0, n in segs:
            if t != t0: continue
            for i in range(n):
                pos = free[(w, ph)].pop(0)
                if t == 'H': assert pos < 16; free[(w, ph)].remove(pos + 16)
                T[p0 + i] = (((w * 2 + ph) * 4096 + pos * 4 + 128) << 16) | (64 if t == 'H' else 128)
    assert all(not v for v in free.values())
    return T + [128] * (256 - BN)

vN, vD, vQ, vY, vE = 0, 64, 128, 192, 224
vEX, vEE, vAX, vAE, vCX, vCE, vBX0, vBE0, vBX, vBE, vINFO, vDEG, vMAX = 240, 244, 245, 246, 247, 248, 249, 250, 251, 252, 253, 254, 255
aW1A, aW1C, aW1B, aW2, aBX, aBE, aJUNK = 0, 64, 80, 144, 208, 224, 228
SX, SE, SW, SO, SD, SS = 12, 16, 20, 24, 68, 72
sB, sNB0, sNNODE, sWAVE, sMAP, sCOL = 28, 29, 30, 31, 32, 33
sXO = 36
s128, sSLOT, sRING0, sRING1, sT, sL, sLNEXT, sQROW = 40, 41, 42, 43, 44, 45, 46, 47
sLN2, sBAD = 48, 50
sJ, sJUMP, sINC = 52, 53, 54
sSLOW, sCNT = 66, 67
mLO, mBN, mNN = 's[76:77]', 's[78:79]', 's[80:81]'
sTAG, sTAG8, sTAGH = 82, 83, 84
def R(p, b, n): return f'{p}[{b}:{b+n-1}]'
def srdn(s): return f's[{s}:{s+3}]'
SDWA = 'dst_sel:DWORD dst_unused:UNUSED_PAD src0_sel:DWORD src1_sel:'

def srd(a, d, lo, size):
    a(f's_mov_b32 s{d}, s{lo}'); a(f's_and_b32 s{d+1}, s{lo+1}, 0xffff')
    a(f's_mov_b32 s{d+2}, {size}'); a(f's_mov_b32 s{d+3}, 0x20000')
def wave_scan(a, v, fill=()):
    fill = list(fill)
    steps = [f'row_shr:{sh} row_mask:0xf bank_mask:0xf bound_ctrl:0' for sh in (1, 2, 4, 8)]
    steps += ['row_bcast:15 row_mask:0xa bank_mask:0xf', 'row_bcast:31 row_mask:0xc bank_mask:0xf']
    for s in steps:
        for x in fill[:2]: a(x)
        fill = fill[2:]
        a(f'v_add_u32_dpp v{v}, v{v}, v{v} {s}')
    for x in fill: a(x)
def mfma(d, A, B, C): return f'v_mfma_f32_32x32x16_bf16 {d}, {A}, {B}, {C}'
def m1(c, k, dst, first_c):
    A = R('a', aW1A + (c * 4 + k) * 4, 4) if k < 4 else R('a', aW1C + c * 4, 4)
    B = R('a', aBX + k * 4, 4) if k < 4 else R('a', aBE, 4)
    return mfma(R('v', dst, 16), A, B, R('v', first_c if k == 0 else dst, 16))
def isize(x):
    if x.endswith(':'): return 0
    op = x.split()[0]
    if op.startswith(('v_mfma', 'v_pk_', 'buffer_', 'ds_', 'global_', 'v_mad_', 'v_max3', 'v_cvt_pk', 'v_lshl_add', 'v_bfe', 'v_writelane', 's_memreal')) or op.endswith(('_e64', '_dpp', '_sdwa')): return 8
    for t in x.replace(',', ' ').split()[1:]:
        try: v = int(t, 0)
        except ValueError: continue
        if not -16 <= v <= 64 and not op.startswith(('s_movk', 's_waitcnt', 's_nop')): return 8
    return 4

def prep_offsets(a, vl, v1, v2, t0, t1):
    a(f'v_and_b32 v{t0}, 31, v{vl}'); a(f'v_lshrrev_b32 v{t1}, 5, v{vl}')
    a(f'v_lshlrev_b32 v{v1}, 11, v{t1}'); a(f'v_lshl_add_u32 v{v1}, v{t0}, 1, v{v1}')
    a(f'v_lshlrev_b32 v{v2}, 9, v{t1}')
    a(f'v_bfe_u32 v{t1}, v{t0}, 2, 1'); a(f'v_lshl_add_u32 v{v2}, v{t1}, 6, v{v2}')
    a(f'v_and_b32 v{t1}, 3, v{t0}'); a(f'v_lshl_add_u32 v{v2}, v{t1}, 1, v{v2}')
    a(f'v_lshrrev_b32 v{t1}, 3, v{t0}'); a(f'v_lshl_add_u32 v{v2}, v{t1}, 3, v{v2}')
def prep_w1_load(a, sidx, voff, vd, s0, s1):
    a(f's_and_b32 s{s0}, s{sidx}, 3'); a(f's_lshr_b32 s{s1}, s{sidx}, 2')
    a(f's_cmp_eq_u32 s{s1}, 4')
    a(f's_cselect_b32 s{s1}, s{s0}, s{s1}'); a(f's_cselect_b32 s{s0}, 8, s{s0}')
    a(f's_lshl_b32 s{s0}, s{s0}, 12'); a(f's_lshl_b32 s{s1}, s{s1}, 6'); a(f's_add_u32 s{s0}, s{s0}, s{s1}')
    a(f's_cmp_ge_u32 s{sidx}, 20'); a(f's_cselect_b32 s{s1}, {64*256 - 5*64}, 0'); a(f's_add_u32 s{s0}, s{s0}, s{s1}')
    for j in range(8): a(f'buffer_load_ushort v{vd+j}, v{voff}, {srdn(SD)}, s{s0} offen offset:{256*j}')
def prep_w2_load(a, sidx, voff, vd, s0, s1):
    a(f's_sub_u32 s{s0}, s{sidx}, 36'); a(f's_lshr_b32 s{s1}, s{s0}, 3'); a(f's_and_b32 s{s0}, s{s0}, 7')
    a(f's_lshl_b32 s{s0}, s{s0}, 11'); a(f's_lshl_b32 s{s1}, s{s1}, 5'); a(f's_add_u32 s{s0}, s{s0}, s{s1}')
    for j in range(8): a(f'buffer_load_ushort v{vd+j}, v{voff}, {srdn(SS)}, s{s0} offen offset:{128*((j&3)+8*(j>>2))}')
def prep_w1_pack(a, vd):
    for j in range(8): a(f'v_lshlrev_b32 v{vd+j}, 16, v{vd+j}')
    for j in range(8): a(f'v_mul_f32 v{vd+j}, {NLOG2E}, v{vd+j}')
    for j in range(4): a(f'v_cvt_pk_bf16_f32 v{vd+j}, v{vd+2*j}, v{vd+2*j+1}')
def prep_w2_pack(a, vd):
    for j in range(4): a(f'v_lshl_or_b32 v{vd+j}, v{vd+2*j+1}, 16, v{vd+2*j}')

def gen():
    D = P.depth
    assert D == 2 and RING + 7 * SLOT <= WST and RING + 8 * SLOT <= WST + 5 * 1024
    VW = 5 * (D - 1)
    a = Asm()
    def stamp(i, real=False):
        if not P.stamp: return
        if P.stamp == 3: real = True
        if P.stamp == 4 and i not in (0, 13): return
        a(f's_mem{"real" if real else ""}time s[86:87]'); a('s_waitcnt lgkmcnt(0)'); a(f's_mov_b32 s{88+i}, s86')
    def poll(name, load, check, first_issued=False, first_wait=None):
        a(f's_movk_i32 s{sCNT}, {P.limit}')
        if first_wait is not None:
            if first_wait: a(first_wait)
            check()
            a(f's_cbranch_scc0 {name}_ok')
        elif first_issued: a(f's_branch {name}_chk')
        a.label(name)
        load()
        a.label(name + '_chk')
        a('s_waitcnt vmcnt(0)')
        check()
        a(f's_cbranch_scc0 {name}_ok')
        a(f's_sub_u32 s{sCNT}, s{sCNT}, 1')
        a(f's_cbranch_scc0 {name}')
        a(f's_mov_b32 s{sSLOW}, 1')
        a.label(name + '_ok')

    epre = [int(ch) for ch in P.epre.strip()]
    xpre = [int(ch) for ch in P.xpre.strip()]
    def warm(pos):
        n = 0
        for i, p in enumerate(epre):
            if p != pos: continue
            a(f'v_add_u32 v124, {i*256*P.estr}, v126')
            if (i + 1) * 256 * P.estr > CH * 32: a(f'v_min_u32 v124, v124, v125')
            a(f'buffer_load_dword a{aJUNK}, v124, {srdn(SE)}, 0 offen')
            n += 1
        for i, p in enumerate(xpre):
            if p != pos: continue
            a('s_lshr_b32 s3, s2, 3'); a('s_lshl_b32 s35, s2, 2'); a('s_add_u32 s3, s3, s35'); a('s_and_b32 s3, s3, 31')
            a(f's_add_u32 s3, s3, {32*i}'); a('s_lshl_b32 s3, s3, 8')
            a('v_add_lshl_u32 v124, v0, s3, 7')
            a(f'buffer_load_dword a{aJUNK}, v124, {srdn(SX)}, s{sXO} offen')
            n += 1
        return n
    a('.p2align 8'); a.label(NAME + '_kernel')
    a(f's_cmp_ge_u32 s2, {NB}'); a('s_cbranch_scc1 L_end')
    stamp(0, True); stamp(1)
    a('s_load_dwordx8 s[4:11], s[0:1], 0')
    a('s_load_dwordx4 s[60:63], s[0:1], 64')
    a('s_load_dwordx2 s[64:65], s[0:1], 80')
    a('s_load_dwordx8 s[52:59], s[0:1], 32')
    a(f's_memrealtime s[{sTAG}:{sTAG+1}]')
    a('s_getpc_b64 s[14:15]')
    a.label('L_pc')
    a('v_lshlrev_b32 v15, 2, v0')
    if P.codepre:
        a('v_lshlrev_b32 v3, 6, v0')
        a('v_min_u32 v3, L_slow-L_pc, v3')
        a(f'global_load_dword a{aJUNK}, v3, s[14:15]')
    a('s_add_u32 s14, s14, L_table-L_pc')
    a('s_addc_u32 s15, s15, 0')
    a('global_load_dword v11, v15, s[14:15]')
    a('v_lshrrev_b32 v1, 6, v0')
    a('v_and_b32 v2, 63, v0')
    a(f'v_readfirstlane_b32 s{sWAVE}, v1')
    a('v_lshlrev_b32 v21, 4, v0')
    for i in range(4): a(f'v_mov_b32 v{4+i}, 0')
    a('ds_write_b128 v21, v[4:7]')
    a(f'ds_write_b32 v15, v4 offset:{HB}')
    a('v_mov_b32 v12, 0')
    a('v_mov_b32 v13, 1')
    a('v_lshlrev_b32 v9, 4, v2')
    a('v_cmp_gt_u32 vcc, 128, v0')
    a(f's_mul_i32 s3, s2, {CH*4}')
    for s in (SD, SS): a(f's_mov_b32 s{s+2}, {E*4}'); a(f's_mov_b32 s{s+3}, 0x20000')
    a(f's_mov_b64 {mLO}, vcc')
    a(f's_mov_b32 s{sSLOW}, 0')
    a('s_waitcnt lgkmcnt(0)')
    vDs, vSr, vB, vRk, vRec = 32, 48, 64, 80, 96
    a(f's_mov_b32 s{SD}, s10'); a(f's_and_b32 s{SD+1}, s11, 0xffff')
    a(f's_mov_b32 s{SS}, s8'); a(f's_and_b32 s{SS+1}, s9, 0xffff')
    for i in range(4): a(f's_add_u32 s{8+i}, s3, {4096*i}')
    a(f's_lshr_b32 s37, s2, {0 if P.tagst else 3}')
    a(f's_or_b32 s37, s37, s{sWAVE}')
    a('s_cbranch_scc1 L_notag')
    if P.force != 1:
        a(f's_or_b32 s{sTAG}, s{sTAG}, 1')
        a(f'v_mov_b32 v4, s{sTAG}'); a(f'v_mov_b32 v5, s{sTAG+1}')
        a('s_mov_b64 exec, 1')
        if P.tagst: a('global_store_dwordx2 v12, v[4:5], s[62:63] sc1')
        else: a('global_atomic_cmpswap_x2 v12, v[4:7], s[62:63] sc1')
        a('s_mov_b64 exec, -1')
    a.label('L_notag')
    a(f's_cmp_ge_u32 s2, {NCH}'); a('s_cbranch_scc1 L_prep_load')
    def edge_loads(srdn_, vb, so):
        for i in range(3): a(f'buffer_load_dwordx4 {R("v", vb+4*i, 4)}, v21, {srdn(srdn_)}, s{so+i} offen{P.pol_in}')
        a(f'buffer_load_dword v{vb+12}, v15, {srdn(srdn_)}, s{so+3} offen{P.pol_in}')
    edge_loads(SD, vDs, 8)
    a.label('L_setup')
    a('v_and_b32 v10, 3, v0')
    a('v_bfe_u32 v16, v0, 2, 4')
    a('v_lshl_add_u32 v10, v16, 3, v10')
    a('v_lshl_add_u32 v10, v1, 2, v10')
    a(f'v_cndmask_b32 v10, v2, v10, {mLO}')
    a('v_lshlrev_b32 v10, 1, v10')
    a(f's_cmp_lt_u32 s{sWAVE}, 2')
    a('s_cselect_b64 s[54:55], s[54:55], s[58:59]')
    a(f's_cselect_b32 s34, {NLOG2E}, 1.0')
    a('global_load_ushort v10, v10, s[54:55]')
    for i in range(4): a(f'v_mov_b32 v{128+i}, {DUMMY}')
    a(f'v_add_u32 v132, {EX + 16384}, v21')
    init = [f'ds_write_b128 v132, v[128:131] offset:{4096*i}' for i in range(15, -1, -1)]
    init += [f'ds_write_b128 v21, v[128:131] offset:{EX + 4096*i}' for i in range(4)]
    assert P.ninit >= 4
    init, init2 = init[:P.ninit], init[P.ninit:]
    C = []
    C += [f's_and_b32 s{sB}, s2, 7', f's_lshl_b32 s{sB}, s{sB}, 5', 's_lshr_b32 s3, s2, 3', f's_add_u32 s{sB}, s{sB}, s3',
          f's_mul_i32 s{sNB0}, s{sB}, {BN}', f's_sub_u32 s{sNNODE}, {N}, s{sNB0}', f's_min_u32 s{sNNODE}, s{sNNODE}, {BN}',
          f's_lshl_b32 s{sCOL}, s{sB}, 3', f's_add_u32 s{sCOL}, s{sCOL}, {WS_TAB}']
    C += [f's_sub_u32 s{SX}, s4, {3*XP}', f's_subb_u32 s{SX+1}, s5, 0', f's_and_b32 s{SX+1}, s{SX+1}, 0xffff',
          f's_mov_b32 s{SX+2}, {(N*128 + 3*XP) * P.xfrac // 100}', f's_mov_b32 s{SX+3}, 0x20000']
    for d, lo, size in ((SE, 6, E * 32 * P.efrac // 100), (SO, 60, N * 128), (SW, 64, WS_SIZE)):
        C += [f's_mov_b32 s{d}, s{lo}', f's_and_b32 s{d+1}, s{lo+1}, 0xffff', f's_mov_b32 s{d+2}, {size}', f's_mov_b32 s{d+3}, 0x20000']
    C += [f's_movk_i32 s{sXO+j}, {(3-j)*XP}' for j in range(4)]
    C += [f's_movk_i32 s{s128}, 128', f's_mov_b32 s{sLN2}, {NLN2}', f's_mov_b32 s{sLN2+1}, {NLN2}', f's_mov_b64 s[{sBAD}:{sBAD+1}], 0']
    C += [f's_lshl_b32 s{sMAP}, s{sWAVE}, 12', f's_add_u32 s{sMAP}, s{sMAP}, {MAP}']
    C += [f's_lshl_b32 s{sQROW}, s{sWAVE}, 13', f's_add_u32 s{sQROW}, s{sQROW}, {EX}']
    C += [f's_mul_i32 s{sRING0}, s{sWAVE}, {D*SLOT}', f's_add_u32 s{sRING0}, s{sRING0}, {RING}',
          f's_add_u32 s{sRING1}, s{sRING0}, {D*SLOT}', f's_mov_b32 s{sSLOT}, s{sRING0}']
    C += ['v_and_b32 v16, 7, v2', 'v_lshrrev_b32 v18, 5, v2', 'v_xor_b32 v16, v16, v18', f'v_lshlrev_b32 v{vCX}, 4, v16']
    C += ['v_and_b32 v17, 1, v2', f'v_lshlrev_b32 v{vCE}, 4, v17']
    C += ['v_bfe_u32 v16, v2, 1, 2', f'v_mul_u32_u24 v16, {XP}, v16', 'v_bfe_u32 v20, v2, 3, 2', 'v_lshl_add_u32 v16, v20, 7, v16',
          'v_lshl_add_u32 v16, v17, 9, v16', 'v_xor_b32 v20, v17, v18', f'v_lshl_add_u32 v{vBX0}, v20, 4, v16']
    C += ['v_bfe_u32 v16, v2, 1, 4', 'v_lshl_add_u32 v16, v17, 4, v16', 'v_lshlrev_b32 v16, 5, v16', 'v_lshl_add_u32 v16, v18, 4, v16',
          f'v_add_u32 v{vBE0}, {4*XP}, v16']
    C += ['v_lshrrev_b32 v16, 3, v2', f'v_lshl_add_u32 v{vAX}, v16, 4, s{sQROW}']
    C += ['v_lshrrev_b32 v16, 1, v2', f'v_lshl_add_u32 v{vAE}, v16, 2, s{sQROW}']
    C += ['v_and_b32 v16, 31, v2', 'v_lshlrev_b32 v16, 2, v16', 'v_lshl_add_u32 v16, v18, 12, v16', f'v_add_u32 v25, s{sQROW}, v16']
    C += [f'v_add_u32 v24, s{sNB0}, v0', f'v_cmp_gt_u32 vcc, {BN}, v0', f'v_cmp_gt_u32 {mNN}, s{sNNODE}, v0', f's_mov_b64 {mBN}, vcc']
    C += ['v_lshlrev_b32 v19, 2, v2', 'v_lshlrev_b32 v14, 3, v2', 'v_lshlrev_b32 v30, 11, v0', 'v_and_b32 v31, 31, v0', 'v_lshlrev_b32 v31, 4, v31', 'v_lshl_add_u32 v31, v0, 12, v31']
    C += ['v_min_u32 v3, 5, v2', f'v_add_u32 v3, {NCH}, v3', 'v_lshlrev_b32 v133, 11, v3']
    C += ['v_mov_b32 v23, 0x1000000', f's_mov_b32 s55, {MAGIC}', 's_movk_i32 s56, -49', 's_movk_i32 s57, 335',
          f's_mov_b32 s58, {0x100000 | {1: 0, 2: 0x80000}.get(P.classes, 0xc0000)}']
    k = 0
    while init or C:
        if init: a(init.pop(0))
        for x in C[:6]: a(x)
        C = C[6:]
        k += 1
        if k == P.srcpos:
            a(f's_cmp_ge_u32 s2, {NCH}'); a('s_cbranch_scc1 L_nosrc')
            edge_loads(SS, vSr, 8)
            a.label('L_nosrc')
    if epre:
        a(f's_mul_i32 s3, s2, {CH*32}'); a(f'v_mul_u32_u24 v126, {P.estr}, v0'); a('v_add_u32 v126, s3, v126')
        a(f's_add_u32 s3, s3, {CH*32-128}'); a('v_mov_b32 v125, s3')
    n0 = warm(0)
    a('s_waitcnt lgkmcnt(0)')
    a('s_barrier')
    tagload = lambda: a('global_load_dwordx2 v[16:17], v12, s[62:63] sc1')
    def tagcheck():
        a(f'v_readfirstlane_b32 s{sTAG}, v16'); a(f'v_readfirstlane_b32 s{sTAG8}, v17')
        a(f's_cmp_eq_u32 s{sTAG}, 0')
    a(f's_cmp_ge_u32 s2, {NCH}'); a('s_cbranch_scc1 L_prep_store')
    a(f's_waitcnt vmcnt({5+n0})')
    stamp(2)
    tagload()
    for i in range(13): a(f'v_mul_u32_u24 v{vB+i}, s55, v{vDs+i}')
    for i in range(13): a(f'v_lshlrev_b32_sdwa v{vB+i}, 2, v{vB+i} {SDWA}BYTE_3')
    for i in range(13):
        if i == 12: a(f's_mov_b64 exec, {mLO}')
        a(f'ds_add_rtn_u32 v{vRk+i}, v{vB+i}, v13 offset:{HB}')
    a('s_mov_b64 exec, -1')
    for i in range(13): a(f'v_mad_i32_i24 v{vDs+i}, v{vB+i}, s56, v{vDs+i}')
    a(f's_mov_b32 s3, {STAGE // 8}')
    a('s_waitcnt lgkmcnt(0)')
    a('s_barrier')
    a(f'ds_read_b128 v[26:29], v9 offset:{HB}')
    a(f'ds_write_b32 v15, v11 offset:{TT}')
    for i in range(13): a(f'v_add_u32 v{vRk+i}, s3, v{vRk+i}')
    F = [f'v_mad_u32_u24 v{vRec+2*i}, v{vSr+i}, s57, v23' for i in range(13)]
    F += [f'v_lshrrev_b32 v{vRec+2*i}, 4, v{vRec+2*i}' for i in range(13)]
    F += [f'v_and_or_b32 v{vRec+2*i}, v{vRec+2*i}, s58, v{vSr+i}' for i in range(13)]
    a(f's_waitcnt vmcnt({1+n0}) lgkmcnt(1)')
    a('v_add_u32 v5, v26, v27'); a('v_add_u32 v6, v5, v28'); a('v_add_u32 v7, v6, v29')
    a('v_mov_b32 v3, v7')
    wave_scan(a, 3, F[:12])
    a('v_sub_u32 v4, v3, v7'); a('v_add_u32 v7, v4, v6'); a('v_add_u32 v6, v4, v5'); a('v_add_u32 v5, v4, v26')
    a(f'ds_write_b128 v9, v[4:7] offset:{START}')
    for i in range(13): a(f'ds_read_b32 v{vB+i}, v{vB+i} offset:{START}')
    for x in F[12:]: a(x)
    def gettag(name, **kw):
        poll(name, tagload, tagcheck, **kw)
        a(f's_and_b32 s{sTAG8}, s{sTAG8}, 0xff')
        a(f's_lshl_b32 s{sTAGH}, s{sTAG}, 4')
        a(f's_and_b32 s{sTAGH}, s{sTAGH}, 0xfffff000')
    def pubrow(name):
        a(f's_sub_u32 s3, 3, s{sWAVE}'); a(f's_or_b32 s3, s3, s{sSLOW}'); a(f's_cbranch_scc1 {name}')
        if P.force == 2: a('s_cmp_eq_u32 s2, 7'); a(f's_cbranch_scc1 {name}')
        for i in range(4):
            a(f'v_lshl_or_b32 v{136+2*i}, v{26+i}, 12, v{4+i}')
            a(f'v_mov_b32 v{137+2*i}, s{sTAG}')
        for i in range(4): a(f'v_lshl_or_b32 v{136+2*i}, s{sTAG8}, 24, v{136+2*i}')
        a('s_lshl_b32 s3, s2, 11'); a(f's_add_u32 s3, s3, {WS_TAB}')
        a('v_lshlrev_b32 v3, 5, v2')
        a(f'buffer_store_dwordx4 v[136:139], v3, {srdn(SW)}, s3 offen sc1')
        a(f'buffer_store_dwordx4 v[140:143], v3, {srdn(SW)}, s3 offen offset:16 sc1')
        a.label(name)
    gettag('L_ptag', first_wait='s_waitcnt vmcnt(0)')
    if P.stamp == 3 and P.st1 == 0: stamp(1)
    pubrow('L_norow')
    a(f's_lshl_b32 s3, s{sTAGH}, 16')
    if P.force == 3: a('s_cmp_eq_u32 s2, 9'); a('s_cselect_b32 s35, 0x10000000, 0'); a('s_xor_b32 s3, s3, s35')
    a(f'v_add_u32 v22, s{sTAGH}, v15')
    a(f'v_add_u32 v20, s{sTAGH}, v0')
    for i in range(13): a(f'v_lshl_add_u32 v{vDs+i}, v{vDs+i}, 20, s3')
    for i in range(12): a(f'v_add_u32 v{vRec+2*i+1}, {(i>>2)*1024 + (i&3)}, v22')
    a(f'v_add_u32 v{vRec+25}, 3072, v20')
    a('s_waitcnt lgkmcnt(0)')
    for i in range(13):
        a(f'v_add_lshl_u32 v{vB+i}, v{vB+i}, v{vRk+i}, 3')
        a(f'v_add_u32 v{vRec+2*i}, v{vRec+2*i}, v{vDs+i}')
    for i in range(13):
        if i == 12: a(f's_mov_b64 exec, {mLO}')
        a(f'ds_write_b64 v{vB+i}, {R("v", vRec+2*i, 2)}')
    a('s_mov_b64 exec, -1')
    a('v_lshlrev_b32 v10, 16, v10')
    a('v_mul_f32 v10, s34, v10')
    a(f'ds_write_b32 v15, v10 offset:{B1T}')
    a(f'v_add_u32 v3, {STAGE}, v21')
    a('v_lshl_add_u32 v20, v1, 8, v9')
    a(f'v_add_u32 v22, {STAGE + 24576}, v20')
    a('s_and_b32 s3, s2, 31'); a('s_lshl_b32 s35, s2, 8'); a('s_add_u32 s3, s3, s35'); a('s_lshl_b32 s3, s3, 7')
    wload = lambda: a(f'buffer_load_dwordx2 v[122:123], v133, {srdn(SW)}, s{sCOL} offen sc1')
    tload = lambda: a(f'buffer_load_dwordx2 v[16:17], v30, {srdn(SW)}, s{sCOL} offen sc1')
    a('s_waitcnt lgkmcnt(0)')
    a('s_barrier')
    if P.stamp == 3 and P.st1 == 1: stamp(1)
    for i in range(6): a(f'ds_read_b128 {R("v", 32+4*i, 4)}, v3 offset:{4096*i}')
    a('ds_read_b128 v[56:59], v22')
    if P.tpos == 0: tload()
    for i in range(7):
        a(f's_waitcnt lgkmcnt({6-i})')
        if i == 6: a('s_mov_b64 exec, 0xffff')
        a(f'buffer_store_dwordx4 {R("v", 32+4*i, 4)}, v{21 if i < 6 else 20}, {srdn(SW)}, s3 offen{P.pol_st}')
        if i < 6: a('s_add_u32 s3, s3, 4096')
    a('s_mov_b64 exec, -1')
    if P.tpos == 1: tload()
    if not P.probe: wload()
    a('s_barrier')
    stamp(3)
    for x in init2: a(x)
    a(f's_waitcnt vmcnt({7 if P.tpos == 0 else 0})')
    a.label('L_consume')
    a(f's_cmp_lg_u32 s{sSLOW}, 0'); a('s_cbranch_scc1 L_skipB')
    def tcheck(v):
        def f():
            a(f'v_cmp_ne_u32 s[56:57], s{sTAG}, v{v+1}')
            a(f'v_cmp_ne_u32_sdwa vcc, v{v}, s{sTAG8} src0_sel:BYTE_3 src1_sel:DWORD')
            a('s_or_b64 vcc, vcc, s[56:57]')
        return f
    poll('L_pt', tload, tcheck(16), first_wait='')
    stamp(4)
    def weights():
        poll('L_pw', wload, tcheck(122), first_wait='')
        a(f's_mul_i32 s3, s{sWAVE}, {13*1024}')
        a(f's_add_u32 s35, s3, {WS_W}')
        a(f's_add_u32 m0, s3, {WST}')
        for i in range(13):
            if i and i % 4 == 0: a('s_add_u32 m0, m0, 4096'); a('s_add_u32 s35, s35, 4096')
            a(f'buffer_load_dwordx4 v9, {srdn(SW)}, s35 offen offset:{(i%4)*1024} sc1 lds')
        return 13
    if P.wpos == 3: assert not P.probe; weights()
    a('v_bfe_u32 v17, v16, 12, 12')
    a('v_and_b32 v16, 0xfff, v16')
    a('v_mov_b32 v18, v17')
    a('v_add_u32 v16, v16, v31')
    a('v_add_lshl_u32 v22, v16, v17, 3')
    a('v_sub_u32_e64 v22, v22, 4 clamp')
    pload = lambda: a(f'buffer_load_dword v23, v22, {srdn(SW)}, 0 offen sc1')
    if P.probe: pload(); wload()
    wave_scan(a, 18, ['v_cmp_lt_u32 s[56:57], 16, v17', 'v_cmp_lt_u32 s[58:59], 8, v17',
                      'v_cmp_lt_u32 s[60:61], 0, v17', 'v_cmp_lt_u32 vcc, 24, v17', f'v_add_u32 v20, s{sMAP}, v19'])
    a('v_sub_u32 v3, v18, v17')
    a('v_readlane_b32 s3, v18, 63')
    a('v_sub_u32 v16, v16, v3')
    a(f'v_lshl_add_u32 v18, v3, 2, s{sMAP}')
    a('v_lshlrev_b32 v16, 3, v16')
    a(f's_cmp_gt_u32 s3, {NSLOT*64}')
    a(f's_cselect_b32 s{sSLOW}, 1, s{sSLOW}')
    a(f's_cmp_lg_u32 s{sSLOW}, 0'); a('s_cbranch_scc1 L_skipB')
    a('v_lshl_add_u32 v3, s3, 2, v20')
    for m, j0 in (('s[56:57]', 16), ('s[58:59]', 8), ('s[60:61]', 0)):
        a(f's_mov_b64 exec, {m}')
        for j in range(j0 + 7, j0 - 1, -1): a(f'ds_write_b32 v18, v16 offset:{4*j}')
    a('s_mov_b64 exec, -1')
    a('ds_write_b32 v3, v128')
    a('s_cbranch_vccz L_nomap')
    a.label('L_map')
    for j in range(24, 28):
        a(f'v_cmpx_lt_u32 vcc, {j}, v17')
        a(f'ds_write_b32 v18, v16 offset:{4*j}')
    a('v_add_u32 v18, 16, v18')
    a('v_subrev_u32 v17, 4, v17')
    a('s_cbranch_execnz L_map')
    a('s_mov_b64 exec, -1')
    a.label('L_nomap')
    vR, vI, vK, vP, vA, vT, vCB = 32, 64, 80, 96, 144, 160, 176
    for i in range(NSLOT): a(f'ds_read_b32 v{vA+i}, v20 offset:{256*i}')
    def pcheck():
        a(f'v_xor_b32 v23, s{sTAGH}, v23')
        a('v_cmp_lt_u32 vcc, 0xfff, v23')
        a('s_and_b64 vcc, vcc, s[60:61]')
    a('s_movk_i32 s34, 4096')
    a('s_waitcnt lgkmcnt(0)')
    for i in range(NSLOT): a(f'v_add_u32 v{vA+i}, v{vA+i}, v14')
    if P.probe: a('s_waitcnt vmcnt(0)')
    if P.wpos == 0: weights()
    if P.probe: poll('L_pp', pload, pcheck, first_wait='')
    stamp(5)
    a(f's_cmp_lg_u32 s{sSLOW}, 0'); a('s_cbranch_scc1 L_skipB')
    rec = lambda i: a(f'buffer_load_dwordx2 {R("v", vR+2*i, 2)}, v{vA+i}, {srdn(SW)}, {"s34" if i >= 8 else "0"} offen offset:{512*(i%8)} sc1')
    for i in range(NSLOT): rec(i)
    def ownx():
        a('v_lshlrev_b32 v29, 7, v24')
        a(f'buffer_load_dword a{aJUNK}, v29, {srdn(SX)}, s{sXO} offen')
        return 1
    n3 = 0
    if P.wpos == 1: n3 += weights()
    nx = 0
    if P.xpos == 3: nx += ownx()
    nx += warm(3)
    n3 += nx
    for i in range(NSLOT): a(f'v_bfe_i32 v{vT+i}, v{vA+i}, 30, 1')
    for i in range(NSLOT): a(f'v_bfi_b32 v{vT+i}, v{vT+i}, 0, s{sTAGH}')
    stamp(6)
    retry = []
    for b, (lo, hi) in enumerate(((0, 6), (6, 11), (11, 15))):
        a(f's_movk_i32 s{sCNT}, {P.limit}')
        a(f's_waitcnt vmcnt({NSLOT-hi+n3})')
        a.label(f'L_chk{b}')
        for i in range(lo, hi): a(f'v_xor_b32 v{vR+2*i+1}, v{vT+i}, v{vR+2*i+1}')
        for i in range(lo, hi): a(f'v_xor_b32_sdwa v{vI+i}, v{vT+i}, v{vR+2*i} dst_sel:DWORD dst_unused:UNUSED_PAD src0_sel:WORD_0 src1_sel:WORD_1')
        for i in range(lo, hi): a(f'v_or3_b32 v3, v{vI+i}, v{vR+2*i+1}, {"v3" if i > lo else "0"}')
        a('v_cmp_lt_u32 vcc, 0xfff, v3')
        if lo == 11:
            for i in range(lo, hi): a(f'v_cmp_ne_u32 s[{58+2*(i-lo)}:{59+2*(i-lo)}], 0, v{vI+i}')
        a(f's_cbranch_vccnz L_retry{b}')
        retry.append((b, lo, hi))
        for i in range(lo, hi):
            if lo == 11: a(f's_mov_b64 exec, s[{58+2*(i-lo)}:{59+2*(i-lo)}]')
            a(f'ds_add_rtn_u32 v{vK+i}, v{vI+i}, v13 offset:{CNT}')
    a('s_mov_b64 exec, -1')
    if P.wpos == 2: weights(); nx = 0
    nx += warm(4)
    a.label('L_skipB')
    EO = []
    for i in range(NSLOT):
        if i: EO.append(f'v_add_u32 v{vA+i}, {512*i}, v{vA+i}')
    EO += [f'v_lshrrev_b32 v{vA+i}, 15, v{vA+i}' for i in range(NSLOT)]
    EO += [f'v_mad_u32_u24 v{vR+2*i+1}, v{vA+i}, s3, v{vR+2*i+1}' for i in range(NSLOT)]
    EO += [f'v_lshlrev_b32 v{vR+2*i+1}, 5, v{vR+2*i+1}' for i in range(NSLOT)]
    a(f's_movk_i32 s3, {CH}')
    for x in EO[:24]: a(x)
    a(f's_mov_b64 exec, {mBN}')
    a('s_waitcnt lgkmcnt(0)')
    a('s_barrier')
    stamp(7)
    a(f'ds_read_b128 v[4:7], v21 offset:{CNT + 16}')
    a('s_waitcnt lgkmcnt(0)')
    a('v_add_u32 v5, v4, v5'); a('v_add_u32 v6, v5, v6'); a('v_add_u32 v16, v6, v7')
    a('v_min_u32 v17, 63, v16')
    a('v_sub_u32 v17, 63, v17')
    a('v_lshlrev_b32 v17, 2, v17')
    a(f'ds_add_rtn_u32 v18, v17, v13 offset:{HIST}')
    a('v_sub_u32 v26, v16, v4'); a('v_sub_u32 v27, v16, v5'); a('v_sub_u32 v28, v16, v6')
    a('v_lshrrev_b32 v23, 1, v16')
    a('v_lshl_or_b32 v23, v23, 16, v24')
    a('v_or_b32 v23, 0xc00000, v23')
    a('s_mov_b64 exec, -1')
    for x in EO[24:40]: a(x)
    a('s_waitcnt lgkmcnt(0)')
    a('s_barrier')
    a(f'ds_read_b32 v20, v19 offset:{HIST}')
    a(f'v_mov_b32 v3, {(32768 - 4) << 16}')
    a(f'ds_write_b32 v12, v3 offset:{CNT}')
    for x in EO[40:]: a(x)
    a('s_waitcnt lgkmcnt(1)')
    a('v_mov_b32 v3, v20')
    wave_scan(a, 3)
    a('v_sub_u32 v20, v3, v20')
    a('ds_bpermute_b32 v20, v17, v20')
    a(f's_mov_b64 exec, {mNN}')
    a('s_waitcnt lgkmcnt(0)')
    a('v_add_lshl_u32 v20, v20, v18, 2')
    a(f'ds_read_b32 v22, v20 offset:{TT}')
    a('s_waitcnt lgkmcnt(0)')
    a('v_and_b32 v3, 0x10000000, v22')
    a('v_lshlrev_b32 v29, 16, v22')
    a('v_cmp_ne_u32 vcc, 0, v3')
    a('v_bfe_u32 v3, v22, 6, 1')
    a('v_add_u32 v16, v16, v3')
    a('v_cndmask_b32 v7, v6, v12, vcc'); a('v_cndmask_b32 v6, v5, v28, vcc')
    a('v_cndmask_b32 v5, v4, v27, vcc'); a('v_cndmask_b32 v4, v12, v26, vcc')
    for i in range(4): a(f'v_mad_u32_u24 v{4+i}, v{4+i}, v29, v22')
    a('v_lshrrev_b32 v16, v3, v16')
    a('v_lshrrev_b32 v22, 16, v22')
    a('v_lshl_or_b32 v24, v3, 22, v24')
    a('v_cmp_lt_u32 s[56:57], 30, v16')
    a('v_lshl_or_b32 v24, v16, 16, v24')
    a('v_cmp_ne_u32 vcc, 0, v3')
    a(f'ds_write_b128 v21, v[4:7] offset:{CNT + 16}')
    a(f'ds_write_b32 v22, v24 offset:{EX - 128}')
    a('s_mov_b64 exec, vcc')
    a(f'ds_write_b32 v22, v23 offset:{EX - 64}')
    a(f's_or_b32 s56, s56, s{sSLOW}')
    a('s_mov_b64 exec, s[56:57]')
    a(f'ds_write_b32 v12, v13 offset:{FLAG}')
    a('s_mov_b64 exec, -1')
    a(f'v_add_u32 v3, {WST}, v9')
    a(f's_waitcnt vmcnt({nx}) lgkmcnt(0)')
    a('s_barrier')

    ell_read = [f'ds_read_b128 {R("v", vEX, 4)}, v{vAX}', f'ds_read_b32 v{vEE}, v{vAE} offset:{EE-EX}']
    jump = [f's_sub_u32 s{sJ}, s{sJ}, 1', f's_cselect_b32 s{sINC}, s{sJUMP}, s{s128}']
    ell_adv = [f'v_add_u32 v{vAX}, s{sINC}, v{vAX}', f'v_add_u32 v{vAE}, s{sINC}, v{vAE}']
    xaddr = [f'v_mad_u32_u16 v{vEX+j}, v{vEX+j}, s{s128}, v{vCX}' for j in range(4)]
    eaddr = f'v_add_u32 v{vEE}, v{vEE}, v{vCE}'
    m0x = f's_mov_b32 m0, s{sSLOT}'; m0e = f's_add_u32 m0, s{sSLOT}, {4*XP}'
    dmax = [f'buffer_load_dwordx4 v{vEX+j}, {srdn(SX)}, s{sXO+j} offen offset:{j*XP}{P.pol_x} lds' for j in range(4)]
    dmae = f'buffer_load_dwordx4 v{vEE}, {srdn(SE)}, 0 offen{P.pol_e} lds'
    adv = [f's_add_u32 s{sSLOT}, s{sSLOT}, {SLOT}', f's_cmp_eq_u32 s{sSLOT}, s{sRING1}', f's_cselect_b32 s{sSLOT}, s{sRING0}, s{sSLOT}']
    baddr = [f'v_add_u32 v{vBX}, s{sSLOT}, v{vBX0}', f'v_add_u32 v{vBE}, s{sSLOT}, v{vBE0}']
    bread = [f'ds_read_b128 {R("a", aBX+4*k, 4)}, v{vBX} offset:{32*k}' for k in range(4)] + [f'ds_read_b128 {R("a", aBE, 4)}, v{vBE}']
    PFa = [m0x] + xaddr + [eaddr] + dmax + [m0e] + [adv[0]] + [dmae] + adv[1:]
    PFb = ell_read + jump + ell_adv
    PF = PFa + PFb + baddr

    a(f'ds_read_b32 v16, v12 offset:{FLAG}')
    for i in range(NSLOT - 1): a(f'ds_read_b32 v{vP+i}, v{vI+i} offset:{CNT}')
    a(f's_waitcnt lgkmcnt({NSLOT - 6})')
    a(f'ds_read_b32 v{vP+NSLOT-1}, v{vI+NSLOT-1} offset:{CNT}')
    a('ds_read_b32 v17, v25')
    for x in ell_read: a(x)
    a('v_readfirstlane_b32 s3, v16')
    a('s_cmp_lg_u32 s3, 0'); a('s_cbranch_scc1 L_slow')
    for lo, hi in ((0, 5), (5, 10), (10, 15)):
        if lo: a(f's_waitcnt lgkmcnt({NSLOT - hi + 3 if hi < NSLOT else 0})')
        for i in range(lo, hi): a(f'v_mul_u32_u24_sdwa v{vK+i}, v{vK+i}, v{vP+i} {SDWA}WORD_0')
        for i in range(lo, hi): a(f'v_add_u32_sdwa v{vP+i}, v{vK+i}, v{vP+i} {SDWA}WORD_1')
    for i in range(NSLOT):
        if i >= 11: a(f's_mov_b64 exec, s[{58+2*(i-11)}:{59+2*(i-11)}]')
        a(f'ds_write2st64_b32 v{vP+i}, v{vR+2*i}, v{vR+2*i+1} offset0:{EX//256} offset1:{EE//256}')
    a('s_mov_b64 exec, -1')
    wread = [f'ds_read_b128 {R("a", 4*i, 4)}, v3 offset:{1024*i}' for i in range(52)]
    for x in wread[:5]: a(x)
    a('v_bfe_u32 v17, v17, 16, 6')
    for x in PFa: a(x)
    for sh in (1, 2, 4, 8): a(f'v_max_u32_dpp v17, v17, v17 row_shr:{sh} row_mask:0xf bank_mask:0xf bound_ctrl:0')
    a('v_max_u32_dpp v17, v17, v17 row_bcast:15 row_mask:0xa bank_mask:0xf')
    a(f'v_add_u32 v{vAX}, 128, v{vAX}'); a(f'v_add_u32 v{vAE}, 128, v{vAE}')
    a(f'v_readlane_b32 s{sL}, v17, 31')
    a(f'v_readlane_b32 s{sLNEXT}, v17, 63')
    a('s_waitcnt lgkmcnt(0)')
    a('s_barrier')
    stamp(8)
    for x in ell_read: a(x)
    a(f's_max_u32 s{sL}, s{sL}, 1')
    a(f's_max_u32 s{sLNEXT}, s{sLNEXT}, 1')
    if P.thr: a(f's_movk_i32 s55, {P.thr}')
    a(f's_lshl_b32 s3, s{sL}, 7')
    a(f's_sub_u32 s{sJUMP}, 4096, s3')
    a(f's_sub_u32 s{sJ}, s{sL}, 1')
    for x in jump + ell_adv: a(x)
    if P.stamp: a(f's_mov_b32 s{88+10}, 0')
    for r in range(1, D):
        a('s_waitcnt lgkmcnt(0)')
        for x in PF: a(x)

    a(f'v_lshrrev_b32 v{vE+1}, 3, v{vBE0}')
    a(f'v_and_b32 v{vE}, 16, v{vBE0}')
    a(f'v_and_b32 v{vE+1}, -4, v{vE+1}')
    a(f'v_lshlrev_b32 v{vE}, 4, v{vE}')
    a(f's_sub_u32 s3, s{sQROW}, {4*XP//8}')
    a(f'v_add_u32 v{vE+1}, s3, v{vE+1}')
    a(f'ds_read_b32 v{vINFO}, v{vE+1}')
    for x in wread[20:36]: a(x)
    for i in range(16): a(f'ds_read_b128 {R("v", vQ+4*i, 4)}, v{vE} offset:{B1T + 16*i}')
    a(f's_waitcnt vmcnt({VW})')
    for x in bread[:4]: a(x)
    a('s_waitcnt lgkmcnt(0)')
    pf = list(PF) + wread[5:20] + wread[36:]
    for k in range(4):
        for c in range(4):
            a(mfma(R('v', vQ+16*c, 16), R('a', aW1B + (c*4+k)*4, 4), R('a', aBX+4*k, 4), R('v', vQ+16*c, 16)))
            for x in pf[:4]: a(x)
            pf = pf[4:]
    assert not pf
    a(f's_waitcnt vmcnt({VW})')
    for x in bread: a(x)
    stamp(9)
    a.label('L_first')
    a(f'v_bfe_u32 v{vDEG}, v{vINFO}, 16, 6')
    a(f's_mov_b32 s{sT}, 1')
    a('s_waitcnt lgkmcnt(0)')
    pf = list(PF)
    for k in range(5):
        a(m1(0, k, vN, vQ))
        n = 3 if k < 4 else 99
        for x in pf[:n]: a(x)
        pf = pf[n:]
    for c in range(4):
        cn = (c + 1) & 3
        if c == 3: a('s_waitcnt lgkmcnt(0)')
        for k in range(5):
            a(m1(cn, k, vN + 16*cn if c < 3 else vY, vQ + 16*cn))
            if c == 2:
                if k == 0:
                    a(f's_waitcnt vmcnt({VW+4})'); a(f's_cmp_eq_u32 s{sLNEXT}, 0'); a('s_cbranch_scc1 L_w2')
                    a(f's_waitcnt vmcnt({VW})'); a.label('L_w2')
                a(bread[k])
            for i in range(3*k, 3*k + (3 if k < 4 else 4)): a(f'v_exp_f32 v{vD+16*c+i}, v{vN+16*c+i}')
        for p in range(8):
            d = R('v', vD + 16*c + 2*p, 2)
            a(f'v_pk_add_f32 {d}, {d}, 1.0 op_sel_hi:[1,0]')
    a(f's_cmp_ge_u32 s{sT}, s{sL}'); a('s_cbranch_scc1 L_flush')
    a(m0x)
    a(m1(1, 0, vY + 16, vQ + 16))
    a('.p2align 3')
    a.label('L_row')
    for c in range(4):
        cn = (c + 1) & 3
        y = vY + 16 * (c & 1); yn = vY + 16 * (cn & 1)
        S = [[] for _ in range(5)]
        V = [[] for _ in range(5)]
        if c == 0:
            S[1] = ['s_mov_b64 exec, -1']; V[1] = xaddr[:2]
            S[2] = [jump[0]]; V[2] = xaddr[2:]
            S[3] = [jump[1]]; V[3] = [eaddr]
            V[4] = dmax + [m0e, ell_read[0], dmae, ell_read[1]] + ell_adv + [f'v_cmpx_lt_u32 vcc, s{sT}, v{vDEG}']
        if c == 1:
            S[0] = [adv[0]]; S[1] = [adv[1]]; S[2] = [adv[2]]
            S[3] = [f's_add_u32 s{sT}, s{sT}, 1']
            if P.thr: S[4] = [f's_cmp_lt_u32 s{sT}, s55']
            V[4] = baddr
        if c == 2:
            for k in range(5): S[k] = [bread[k]]
            S[0].insert(0, f's_waitcnt vmcnt({VW})')
            if P.thr: S[0][0:0] = ['s_cbranch_scc1 L_strict', 'L_back:']
            S[4].insert(0, 's_waitcnt lgkmcnt(3)')
        if c == 3:
            S[0] = ['s_waitcnt lgkmcnt(0)']
            if P.stamp == 2: S[0] = ['s_memrealtime s[86:87]', 's_waitcnt lgkmcnt(0)', f's_mov_b32 m0, s{sT}', 's_nop 0', f'v_writelane_b32 v{vMAX}, s86, m0']
            S[1] = [f's_cmp_lt_u32 s{sT}, s{sL}']
            S[2] = [m0x]
        L = []
        for k in range(5):
            if (c, k) != (0, 0): L.append(m1(cn, k, yn, vQ + 16*cn))
            L += S[k]
            for i in range(3*k, 3*k + (3 if k < 4 else 4)): L.append(f'v_exp_f32 v{vE+i}, v{y+i}')
            L += V[k]
        if sum(isize(x) for x in L) % 8:
            i = max(i for i, x in enumerate(L) if x.startswith('v_exp_f32 '))
            L[i] = L[i].replace('v_exp_f32 ', 'v_exp_f32_e64 ')
        for x in L: a(x)
        for p in range(8):
            yy, nn, dd, ee = R('v', y+2*p, 2), R('v', vN+16*c+2*p, 2), R('v', vD+16*c+2*p, 2), R('v', vE+2*p, 2)
            a(f'v_pk_fma_f32 {yy}, {yy}, {dd}, {nn}')
            a(f'v_pk_fma_f32 {dd}, {dd}, {ee}, {dd}')
            a(f'v_pk_fma_f32 {nn}, {nn}, {ee}, {yy}')
    a(m1(1, 0, vY + 16, vQ + 16))
    a('s_cbranch_scc1 L_row')
    a.label('L_flush')
    if P.stamp:
        a(f's_cmp_lg_u32 s{88+10}, 0'); a('s_cbranch_scc1 L_st10'); stamp(10); a.label('L_st10')
        stamp(11)
    a('s_mov_b64 exec, -1')
    if P.stamp == 2:
        a(f'v_writelane_b32 v{vMAX}, s{sL}, 0')
        a(f'v_mbcnt_lo_u32_b32 v{vE}, -1, 0'); a(f'v_mbcnt_hi_u32_b32 v{vE}, -1, v{vE}'); a(f'v_lshlrev_b32 v{vE}, 2, v{vE}')
        a('s_lshl_b32 s3, s2, 2'); a(f's_add_u32 s3, s3, s{sWAVE}'); a('s_lshl_b32 s3, s3, 8'); a(f's_add_u32 s3, s3, {WS_STAMP + 65536}')
        a(f's_cmp_eq_u32 s{sLNEXT}, 0'); a('s_cselect_b32 s56, 128, 0'); a('s_add_u32 s3, s3, s56')
        a('s_mov_b32 exec_hi, 0')
        a(f'buffer_store_dword v{vMAX}, v{vE}, {srdn(SW)}, s3 offen')
        a('s_mov_b64 exec, -1')
    for x in baddr: a(x)
    a(f'v_and_b32 v{vE+8}, 16, v{vBE0}')
    a(f'v_bfe_u32 v{vE+9}, v{vINFO}, 22, 2')
    a(f'v_lshlrev_b32 v{vMAX}, 2, v{vE+8}')
    a(f'v_cmp_ne_u32 s[58:59], 0, v{vE+9}')
    a(f'v_cmp_ne_u32 s[60:61], 3, v{vE+9}')
    a(f'v_cmp_ne_u32 s[62:63], 0, v{vDEG}')
    a(f'v_mad_u32_u16 v{vINFO}, v{vINFO}, s{s128}, v{vMAX}')
    a(f'v_cvt_f32_u32 v{vDEG}, v{vDEG}')
    a(f'v_lshlrev_b32 v{vMAX}, 3, v{vE+8}')
    a(f'v_lshlrev_b32 v{vE+8}, 4, v{vE+8}')
    a(f's_mov_b32 s3, {f32(2.0**120)}')
    for i in range(16):
        acc = R('v', vE + 2*(i & 1), 2)
        if i < 2: a(f'v_pk_mul_f32 {acc}, {R("v", vD+4*i, 2)}, {R("v", vD+4*i+2, 2)}')
        else: a(f'v_pk_fma_f32 {acc}, {R("v", vD+4*i, 2)}, {R("v", vD+4*i+2, 2)}, {acc}')
    a(f's_cmp_eq_u32 s{sLNEXT}, 0'); a('s_cbranch_scc1 L_noq')
    a(f's_waitcnt vmcnt({VW})')
    for x in bread[:4]: a(x)
    for i in range(16): a(f'ds_read_b128 {R("v", vQ+4*i, 4)}, v{vE+8} offset:{B1T + 16*i}')
    a.label('L_noq')
    a(f'v_pk_add_f32 {R("v", vE, 2)}, {R("v", vE, 2)}, {R("v", vE+2, 2)}')
    def g3(c, i):
        u = 2*c + (i >> 1); dt = i & 1
        acc = R('v', vY + 16*dt, 16)
        return mfma(acc, R('a', aW2 + (dt*8+u)*4, 4), R('v', vE + 8*(c & 1) + 4*(i >> 1), 4), acc if u else '0')
    for c in range(4):
        for q in range(4):
            if c: a(g3(c-1, q))
            if c == 2:
                for i in (2*q, 2*q+1): a(f'ds_read_b128 {R("v", vD+4*i, 4)}, v{vMAX} offset:{B2T + 16*i}')
            for i in range(4): a(f'v_rcp_f32 v{vD+16*c+4*q+i}, v{vD+16*c+4*q+i}')
            if (c, q) == (0, 0): a(f'v_add_f32 v{vE}, v{vE}, v{vE+1}')
            if (c, q) == (0, 1): a(f'v_cmp_nge_f32 s[56:57], s3, v{vE}')
        if c == 0:
            a(f's_cmp_eq_u32 s{sLNEXT}, 0'); a('s_cbranch_scc1 L_nopf')
            for x in [m0x] + xaddr + [eaddr, 's_waitcnt lgkmcnt(0)'] + dmax + [m0e, ell_read[0], dmae, ell_read[1]] + jump + ell_adv + adv + baddr: a(x)
            a.label('L_nopf')
        if c == 1:
            a(f'v_lshrrev_b32 v{vN}, 3, v{vBE0}')
        if c == 2:
            a(f'v_and_b32 v{vN}, -4, v{vN}')
        if c == 3:
            a(f'v_add_u32 v{vN}, s{sQROW}, v{vN}')
        a('.p2align 3')
        for p in range(8):
            nn, dd = R('v', vN+16*c+2*p, 2), R('v', vD+16*c+2*p, 2)
            a(f'v_pk_mul_f32 {nn}, {nn}, {dd}')
        for p in range(8):
            a(f'v_cvt_pk_bf16_f32 v{vE+8*(c&1)+p}, v{vN+16*c+2*p}, v{vN+16*c+2*p+1}')
    for q in range(4):
        a(g3(3, q))
        if q == 0:
            a('s_waitcnt lgkmcnt(0)')
            a(f'ds_read_b32 v{vN}, v{vN} offset:{4096 - 4*XP//8}')
        if q == 1: a('s_and_b64 s[56:57], s[56:57], s[62:63]')
        if q == 2: a(f's_or_b64 s[{sBAD}:{sBAD+1}], s[{sBAD}:{sBAD+1}], s[56:57]')
        for i in range(7*q, 7*q + (7 if q < 3 else 11)): a(f'v_mul_f32 v{vD+i}, v{vD+i}, v{vDEG}')
    a(f'v_mov_b32 v{vMAX}, 0x207')
    a('s_mov_b64 exec, s[62:63]')
    a('.p2align 3')
    for p in range(16):
        yy, dd = R('v', vY+2*p, 2), R('v', vD+2*p, 2)
        a(f'v_pk_fma_f32 {dd}, {yy}, s[{sLN2}:{sLN2+1}], {dd}')
    a(f'v_cmp_class_f32 vcc, v{vD}, v{vMAX}')
    dpp = [f'v_add_f32_dpp v{vD+i}, v{vD+i}, v{vD+i} quad_perm:[1,0,3,2] row_mask:0xf bank_mask:0xf' for i in range(32)]
    cvt = [f'v_cvt_pk_bf16_f32 v{vE+p}, v{vD+2*p}, v{vD+2*p+1}' for p in range(16)]
    sto = [f'buffer_store_dwordx4 {R("v", vE+4*i, 4)}, v{vINFO}, {srdn(SO)}, 0 offen offset:{16*i}{P.pol_out}' for i in range(4)]
    a(f's_or_b64 s[{sBAD}:{sBAD+1}], s[{sBAD}:{sBAD+1}], vcc')
    a(f's_cmp_eq_u32 s{sLNEXT}, 0'); a('s_cbranch_scc1 L_last')
    G = [['s_mov_b64 exec, s[58:59]'] + dpp[:4]] + [dpp[4*i:4*i+4] for i in range(1, 8)]
    G += [['s_mov_b64 exec, -1'] + cvt[:4], [f's_waitcnt vmcnt({VW})', bread[0], bread[4]] + cvt[4:8], [bread[1]] + cvt[8:12], cvt[12:]]
    G += [[bread[2], 's_mov_b64 exec, s[60:61]'] + sto[:2], sto[2:], ['s_mov_b64 exec, -1'], [bread[3]]]
    assert len(G) == 16
    for k in range(4):
        for c in range(4):
            a(mfma(R('v', vQ+16*c, 16), R('a', aW1B + (c*4+k)*4, 4), R('a', aBX+4*k, 4), R('v', vQ+16*c, 16)))
            for x in G.pop(0): a(x)
    if P.thr: a('s_mov_b32 s55, 0')
    a(f's_mov_b32 s{sL}, s{sLNEXT}')
    a(f's_mov_b32 s{sLNEXT}, 0')
    a('s_waitcnt lgkmcnt(5)')
    a(f'v_mov_b32 v{vINFO}, v{vN}')
    a('s_branch L_first')
    a.label('L_last')
    a('s_mov_b64 exec, s[58:59]')
    for x in dpp: a(x)
    a('s_mov_b64 exec, s[60:61]')
    for x in cvt[:8] + sto[:2] + cvt[8:] + sto[2:]: a(x)
    a('s_mov_b64 exec, -1')
    if P.stamp:
        a('s_waitcnt vmcnt(0)'); stamp(12); stamp(13, True)
        for i in range(14): a(f'v_writelane_b32 v1, s{88+i}, {i}')
        a(f'v_writelane_b32 v1, s{sCNT}, 14')
        a('v_mbcnt_lo_u32_b32 v2, -1, 0'); a('v_mbcnt_hi_u32_b32 v2, -1, v2'); a('v_lshlrev_b32 v2, 2, v2')
        a('s_lshl_b32 s3, s2, 2'); a(f's_add_u32 s3, s3, s{sWAVE}'); a('s_lshl_b32 s3, s3, 6'); a(f's_add_u32 s3, s3, {WS_STAMP}')
        a('s_mov_b64 exec, 0xffff')
        a(f'buffer_store_dword v1, v2, {srdn(SW)}, s3 offen')
        a('s_mov_b64 exec, -1')
    a(f's_cmp_eq_u64 s[{sBAD}:{sBAD+1}], 0')
    a('v_mov_b32 v1, 0'); a('v_mov_b32 v2, 1')
    a('s_cbranch_scc1 L_nobad')
    a(f'ds_write_b32 v1, v2 offset:{FLAG}')
    a.label('L_nobad')
    a('s_waitcnt lgkmcnt(0)')
    a('s_barrier')
    a(f'ds_read_b32 v2, v1 offset:{FLAG}')
    a('s_waitcnt lgkmcnt(0)')
    a('v_readfirstlane_b32 s3, v2')
    a('s_cmp_lg_u32 s3, 0'); a('s_cbranch_scc1 L_slow')
    if P.diag:
        a.label('L_diag')
        a('s_memrealtime s[86:87]'); a('s_waitcnt lgkmcnt(0)')
        a(f's_sub_u32 s86, s86, s{sTAG}'); a(f's_cmp_lt_u32 s86, {P.diag}'); a('s_cbranch_scc1 L_diag')
    a.label('L_end')
    a('s_endpgm')

    if P.thr:
        a.label('L_strict'); a(f's_waitcnt vmcnt({P.svm})'); a('s_branch L_back')
    for b, lo, hi in retry:
        a.label(f'L_retry{b}')
        for i in range(lo, hi): rec(i)
        a('s_waitcnt vmcnt(0)')
        a(f's_sub_u32 s{sCNT}, s{sCNT}, 1')
        a(f's_cbranch_scc0 L_chk{b}')
        a(f's_mov_b32 s{sSLOW}, 1')
        a('s_branch L_skipB')
    a.label('L_prep_load')
    srd(a, SD, 52, 144 * 128 * 2); srd(a, SS, 56, 128 * 64 * 2)
    prep_offsets(a, 2, 26, 27, 28, 29)
    a(f's_sub_u32 s85, s2, {NCH}'); a('s_lshl_b32 s85, s85, 2'); a(f's_add_u32 s85, s85, s{sWAVE}')
    prep_w1_load(a, 85, 26, 32, 34, 35)
    a('s_add_u32 s3, s85, 24'); a('s_min_u32 s3, s3, 35')
    prep_w1_load(a, 3, 26, 40, 34, 35)
    a('s_add_u32 s3, s85, 28'); a('s_max_u32 s3, s3, 36')
    prep_w2_load(a, 3, 27, 48, 34, 35)
    a('s_branch L_setup')
    a.label('L_prep_store')
    a('s_waitcnt vmcnt(0)')
    tagload()
    prep_w1_pack(a, 32); prep_w1_pack(a, 40); prep_w2_pack(a, 48)
    for add, lim, vd in ((0, None, 32), (24, 's_min_u32 s3, s3, 35', 40), (28, 's_max_u32 s3, s3, 36', 48)):
        a(f's_add_u32 s3, s85, {add}')
        if lim: a(lim)
        a('s_lshl_b32 s3, s3, 10'); a(f's_add_u32 s3, s3, {WS_W}')
        a(f'buffer_store_dwordx4 {R("v", vd, 4)}, v9, {srdn(SW)}, s3 offen sc1')
    a('v_lshlrev_b32 v10, 16, v10')
    a('v_mul_f32 v10, s34, v10')
    a(f'ds_write_b32 v15, v10 offset:{B1T}')
    a(f'ds_write_b32 v15, v11 offset:{TT}')
    for i in range(4): a(f'v_mov_b32 v{26+i}, 0'); a(f'v_mov_b32 v{4+i}, 0')
    gettag('L_ptag2', first_issued=True)
    a('s_barrier')
    pubrow('L_norow2')
    tload()
    if not P.probe: wload()
    for x in init2: a(x)
    a('s_waitcnt vmcnt(0)')
    a('s_branch L_consume')

    a.label('L_slow')
    a('s_mov_b64 exec, -1')
    a('s_waitcnt vmcnt(0) lgkmcnt(0)')
    a('s_load_dwordx2 s[52:53], s[0:1], 32')
    a('s_load_dwordx2 s[56:57], s[0:1], 48')
    a('s_load_dwordx4 s[8:11], s[0:1], 16')
    a('s_barrier')
    vL, vS, vH, vT0, vT1, vOA, vD4 = 240, 241, 242, 244, 245, 246, 252
    a(f'v_mbcnt_lo_u32_b32 v{vL}, -1, 0'); a(f'v_mbcnt_hi_u32_b32 v{vL}, -1, v{vL}')
    a(f'v_and_b32 v{vS}, 31, v{vL}')
    a(f'v_lshrrev_b32 v{vH}, 5, v{vL}')
    a(f's_lshl_b32 s3, s{sWAVE}, 10')
    a(f'v_lshl_add_u32 v4, v{vL}, 4, s3')
    for i in range(4): a(f'v_mov_b32 v{i}, 0')
    for i in range(13): a(f'ds_write_b128 v4, v[0:3] offset:{OACC + 4096*i}')
    a('s_waitcnt lgkmcnt(0)')
    srd(a, SD, 52, 144 * 128 * 2); srd(a, SS, 56, 128 * 64 * 2)
    prep_offsets(a, vL, 26, 27, 28, 29)
    a(f'v_add_u32 v4, {WST}, v4')
    a(f's_mov_b32 s85, s{sWAVE}')
    a.label('L_s_w1')
    prep_w1_load(a, 85, 26, 32, 34, 35)
    a('s_waitcnt vmcnt(0)')
    prep_w1_pack(a, 32)
    a('ds_write_b128 v4, v[32:35]')
    a('v_add_u32 v4, 4096, v4')
    a('s_add_u32 s85, s85, 4'); a('s_waitcnt lgkmcnt(0)'); a('s_cmp_lt_u32 s85, 36'); a('s_cbranch_scc1 L_s_w1')
    a.label('L_s_w2')
    prep_w2_load(a, 85, 27, 32, 34, 35)
    a('s_waitcnt vmcnt(0)')
    prep_w2_pack(a, 32)
    a('ds_write_b128 v4, v[32:35]')
    a('v_add_u32 v4, 4096, v4')
    a('s_add_u32 s85, s85, 4'); a('s_waitcnt lgkmcnt(0)'); a('s_cmp_lt_u32 s85, 52'); a('s_cbranch_scc1 L_s_w2')
    a('s_barrier')
    a(f'v_lshlrev_b32 v4, 4, v{vL}'); a(f'v_add_u32 v4, {WST}, v4')
    for i in range(52): a(f'ds_read_b128 {R("a", 4*i, 4)}, v4 offset:{1024*i}')
    srd(a, SD, 10, E * 4); srd(a, SS, 8, E * 4)
    sE0, sJj = 56, 57
    a(f's_lshl_b32 s{sE0}, s{sWAVE}, 9')
    a(f'v_lshlrev_b32 v243, 4, v{vS}')
    a.label('L_s_blk')
    a(f'buffer_load_dwordx4 {R("v", vD4, 4)}, v243, {srdn(SD)}, s{sE0} offen')
    a(f's_mov_b32 s{sJj}, 0')
    a('s_waitcnt vmcnt(0)')
    a.label('L_s_sub')
    a(f'v_subrev_u32 v248, s{sNB0}, v{vD4}')
    a(f'v_cmp_gt_u32 s[60:61], s{sNNODE}, v248')
    a('s_cmp_eq_u64 s[60:61], 0'); a('s_cbranch_scc1 L_s_next')
    a(f's_add_u32 s3, s{sE0}, s{sJj}')
    a(f'buffer_load_dword v{vT0}, v243, {srdn(SS)}, s3 offen')
    a(f'v_lshlrev_b32 v247, 8, v{vH}')
    for i in range(16): a(f'ds_read_b128 {R("v", vQ+4*i, 4)}, v247 offset:{B1T + 16*i}')
    a(f'v_lshlrev_b32 v247, 4, v{vH}')
    a(f'v_add_lshl_u32 v{vT1}, v243, s3, 3')
    a(f'v_add_u32 v{vT1}, v{vT1}, v247')
    a(f'v_lshl_add_u32 v249, v{vD4}, 7, v247')
    a(f'v_mul_u32_u24 v{vOA}, 260, v248')
    a(f'v_lshl_add_u32 v{vOA}, v{vH}, 7, v{vOA}')
    a('s_waitcnt vmcnt(0)')
    a(f'v_lshl_add_u32 v{vT0}, v{vT0}, 7, v247')
    a('s_mov_b64 exec, s[60:61]')
    for k in range(4): a(f'buffer_load_dwordx4 {R("a", aBX+4*k, 4)}, v{vT0}, {srdn(SX)}, s{sXO} offen offset:{32*k}')
    a(f'buffer_load_dwordx4 {R("a", aBE, 4)}, v{vT1}, {srdn(SE)}, 0 offen')
    for k in range(4): a(f'buffer_load_dwordx4 {R("v", vE+4*k, 4)}, v249, {srdn(SX)}, s{sXO} offen offset:{32*k}')
    a('s_waitcnt vmcnt(0) lgkmcnt(0)')
    for c in range(4):
        q = R('v', vQ+16*c, 16)
        for k in range(4): a(mfma(q, R('a', aW1B + (c*4+k)*4, 4), R('v', vE+4*k, 4), q))
        for k in range(5): a(m1(c, k, vQ+16*c, vQ+16*c))
    for i in range(64): a(f'v_exp_f32 v{vD+i}, v{vQ+i}')
    for i in range(64): a(f'v_add_f32 v{vD+i}, 1.0, v{vD+i}')
    for i in range(64): a(f'v_rcp_f32 v{vD+i}, v{vD+i}')
    for i in range(64): a(f'v_mul_f32 v{vD+i}, v{vD+i}, v{vQ+i}')
    for i in range(32): a(f'v_cvt_pk_bf16_f32 v{vN+i}, v{vD+2*i}, v{vD+2*i+1}')
    a(f'v_lshlrev_b32 v247, 7, v{vH}')
    for i in range(8): a(f'ds_read_b128 {R("v", vQ+4*i, 4)}, v247 offset:{B2T + 16*i}')
    for dt in range(2):
        acc = R('v', vY + 16*dt, 16)
        for u in range(8): a(mfma(acc, R('a', aW2 + (dt*8+u)*4, 4), R('v', vN + 4*u, 4), acc if u else '0'))
    a('s_waitcnt lgkmcnt(0)')
    for i in range(32): a(f'v_fma_f32 v{vY+i}, v{vY+i}, s{sLN2}, v{vQ+i}')
    for i in range(32): a(f'ds_add_f32 v{vOA}, v{vY+i} offset:{OACC + 4*i}')
    a('s_mov_b64 exec, -1')
    a('s_waitcnt lgkmcnt(0)')
    a.label('L_s_next')
    for i in range(3): a(f'v_mov_b32 v{vD4+i}, v{vD4+i+1}')
    a(f's_add_u32 s{sJj}, s{sJj}, 4')
    a(f's_cmp_lt_u32 s{sJj}, 16'); a('s_cbranch_scc1 L_s_sub')
    a(f's_add_u32 s{sE0}, s{sE0}, 2048')
    a(f's_cmp_lt_u32 s{sE0}, {E*4}'); a('s_cbranch_scc1 L_s_blk')
    a('s_barrier')
    a(f's_lshl_b32 s3, s{sWAVE}, 1')
    a(f'v_add_u32 v1, s3, v{vH}')
    a.label('L_s_out')
    a(f'v_cmp_gt_u32 vcc, s{sNNODE}, v1')
    a('v_mul_u32_u24 v4, 260, v1')
    a(f'v_lshl_add_u32 v4, v{vS}, 3, v4')
    a(f'v_add_u32 v4, {OACC}, v4')
    a(f'v_add_u32 v5, s{sNB0}, v1')
    a('v_lshlrev_b32 v5, 7, v5')
    a(f'v_lshl_add_u32 v5, v{vS}, 2, v5')
    a('s_and_b64 exec, exec, vcc')
    a('s_cbranch_execz L_s_end')
    a('ds_read2_b32 v[2:3], v4 offset0:0 offset1:1')
    a('s_waitcnt lgkmcnt(0)')
    a('v_cvt_pk_bf16_f32 v2, v2, v3')
    a(f'buffer_store_dword v2, v5, {srdn(SO)}, 0 offen')
    a('v_add_u32 v1, 8, v1')
    a('s_branch L_s_out')
    a.label('L_s_end')
    a('s_endpgm')
    a('.p2align 7')
    a.raw('.type L_table,@object')
    a.label('L_table')
    T = pattern_table()
    for i in range(0, 256, 8): a.raw('.long ' + ', '.join(hex(x) for x in T[i:i+8]))
    a.raw('.size L_table, 1024')
    return a

if __name__ == '__main__':
    for kv in sys.argv[2:]:
        k, v = kv.split('=')
        cur = getattr(P, k)
        setattr(P, k, int(v) if isinstance(cur, int) else (' ' + v.replace('+', ' ') if v else ''))
    k = gen()
    for p in check_all_edges(k): print('HAZARD on branch edge', p, file=sys.stderr)
    print('instrs', sum(1 for x in k.items if not isinstance(x, str)), 'auto nops', k.nops, file=sys.stderr)
    out = open('cdna_kernels/' + NAME + '.s.ref').read().split('; Override launch')[0]
    out += f'; @launch grid=({NB},1,1) block=(256,1,1) lds={lds_bytes()}\n'
    out += '.amdgcn_target "amdgcn-amd-amdhsa--gfx950"\n.text\n'
    out += f'.globl {NAME}_kernel\n.type {NAME}_kernel,@function\n' + k.text()
    out += f'''.section .rodata,"a"
.p2align 6
.amdhsa_kernel {NAME}_kernel
  .amdhsa_next_free_vgpr 512
  .amdhsa_next_free_sgpr 102
  .amdhsa_accum_offset 256
  .amdhsa_group_segment_fixed_size 0
  .amdhsa_kernarg_size 88
  .amdhsa_user_sgpr_count 2
  .amdhsa_user_sgpr_kernarg_segment_ptr 1
  .amdhsa_system_sgpr_workgroup_id_x 1
.end_amdhsa_kernel
'''
    open(sys.argv[1], 'w').write(out)
```

```python
import sys, struct
from asmlib import Asm, Ins, check_all_edges

NAME = 'standalone__edge_featured_mpnn_mpnn__graph'
N, E = 50000, 800000
NB = 256
NCH, CH = 250, 3200
WS_REC, WS_TAB, WS_W = 0, 8 << 20, 9 << 20
WS_SIZE = 10 << 20
WS_STAMP = (9 << 20) + (512 << 10)
DUMMY = 0x4000FFFF
def f32(x): return struct.unpack('<I', struct.pack('<f', x))[0]
NLOG2E = f32(-1.4426950408889634)
NLN2 = f32(-0.6931471805599453)

class P:
    depth = 2
    stamp = 0
    efrac = 100
    xfrac = 100
    limit = 3000
    diagx = 0
    bn0 = 199
    par = 0
    stag = 1
    st1 = 0
    tpos = 1
    probe = 1
    tagst = 0
    wpos = 1
    ninit = 6
    pol_st = ' sc1'
    xpre = ''
    svm = 2
    thr = 8
    xpos = 4
    two = 0
    classes = 4
    codepre = 1
    estr = 128
    srcpos = 8
    epre = ''
    diag = 0
    force = 0
    pol_in = ' nt'
    pol_e = ''
    pol_x = ''
    pol_out = ''

CNT, HB, HIST, FLAG = 0, 4096, 5120, 5376
B1T, B2T, TT = 6144, 6656, 7168
START = TT
EX, EE = 8192, 40960
RING = 73728
NSLOT = 15
MAP = RING
STAGE = MAP + 16384
LDS_TOTAL = 163840
WST = LDS_TOTAL - 52 * 1024
XP = 1056
SLOT = 4 * XP + 1024
OACC = 8192
def lds_bytes(): return LDS_TOTAL

PATTERNS = {
 191: [(0,0,'H',1),(2,0,'H',2),(3,0,'H',3),(3,1,'H',16),(2,1,'H',13),(0,0,'S',30),(1,1,'H',14),(1,0,'S',32),(2,0,'S',28),(3,0,'S',26),(0,1,'H',16),(2,1,'S',6),(1,1,'S',4)],
 192: [(0,0,'H',1),(2,0,'H',1),(3,0,'H',5),(3,1,'H',15),(2,1,'H',12),(0,0,'S',30),(1,1,'H',14),(1,0,'S',32),(2,0,'S',30),(3,0,'S',22),(0,1,'H',16),(3,1,'S',2),(2,1,'S',8),(1,1,'S',4)],
 193: [(0,0,'H',1),(2,0,'H',2),(3,0,'H',3),(3,1,'H',16),(2,1,'H',11),(0,0,'S',30),(1,1,'H',14),(1,0,'S',32),(2,0,'S',28),(3,0,'S',26),(0,1,'H',16),(2,1,'S',10),(1,1,'S',4)],
 194: [(0,0,'H',1),(2,0,'H',2),(3,0,'H',3),(3,1,'H',16),(2,1,'H',10),(0,0,'S',30),(1,1,'H',14),(1,0,'S',32),(2,0,'S',28),(3,0,'S',26),(0,1,'H',16),(2,1,'S',12),(1,1,'S',4)],
 195: [(0,0,'H',1),(2,0,'H',2),(3,0,'H',2),(3,1,'H',16),(2,1,'H',10),(0,0,'S',30),(1,1,'H',14),(1,0,'S',32),(2,0,'S',28),(3,0,'S',28),(0,1,'H',16),(2,1,'S',12),(1,1,'S',4)],
 196: [(0,0,'H',1),(2,0,'H',2),(3,0,'H',2),(3,1,'H',16),(2,1,'H',9),(0,0,'S',30),(1,1,'H',14),(1,0,'S',32),(2,0,'S',28),(3,0,'S',28),(0,1,'H',16),(2,1,'S',14),(1,1,'S',4)],
 197: [(0,0,'H',1),(2,0,'H',2),(3,0,'H',2),(3,1,'H',16),(2,1,'H',9),(0,0,'S',30),(1,1,'H',13),(1,0,'S',32),(2,0,'S',28),(3,0,'S',28),(0,1,'H',16),(2,1,'S',14),(1,1,'S',6)],
 198: [(0,0,'H',1),(2,0,'H',4),(3,1,'H',12),(2,1,'H',12),(0,0,'S',30),(1,1,'H',13),(1,0,'S',32),(2,0,'S',24),(3,0,'S',32),(0,1,'H',16),(3,1,'S',8),(2,1,'S',8),(1,1,'S',6)],
 199: [(1,0,'H',1),(2,0,'H',1),(3,0,'H',3),(3,1,'H',12),(2,1,'H',11),(0,0,'S',32),(1,1,'H',13),(1,0,'S',30),(2,0,'S',30),(3,0,'S',26),(0,1,'H',16),(3,1,'S',8),(2,1,'S',10),(1,1,'S',6)],
 200: [(0,0,'H',1),(2,0,'H',1),(3,0,'H',2),(3,1,'H',12),(2,1,'H',11),(0,0,'S',30),(1,1,'H',13),(1,0,'S',32),(2,0,'S',30),(3,0,'S',28),(3,1,'S',8),(0,1,'H',16),(2,1,'S',10),(1,1,'S',6)],
}
def pattern_table(BN):
    free = {(w, ph): list(range(32)) for w in range(4) for ph in range(2)}
    T = [None] * BN; p = 0; segs = []
    for w, ph, t, n in PATTERNS[BN]: segs.append((w, ph, t, p, n)); p += n
    assert p == BN
    for t0 in 'HS':
        for w, ph, t, p0, n in segs:
            if t != t0: continue
            for i in range(n):
                pos = free[(w, ph)].pop(0)
                if t == 'H': assert pos < 16; free[(w, ph)].remove(pos + 16)
                T[p0 + i] = (((w * 2 + ph) * 4096 + pos * 4 + 128) << 16) | (64 if t == 'H' else 128)
    assert all(not v for v in free.values())
    return T + [128] * (256 - BN)
def bucket_map():
    b0, b1 = P.bn0, 391 - P.bn0
    A = 128 * b0; M0 = -(-(1 << 24) // b0); M1 = -(-(1 << 24) // b1)
    for dn in range(N):
        f = dn * M0 + max(dn - A, 0) * (M1 - M0)
        assert f < 1 << 32 and f >> 24 == (dn // b0 if dn < A else 128 + (dn - A) // b1), dn
    return b0, b1, A, M0, M1

vN, vD, vQ, vY, vE = 0, 64, 128, 192, 224
vEX, vEE, vAX, vAE, vCX, vCE, vBX0, vBE0, vBX, vBE, vINFO, vDEG, vMAX = 240, 244, 245, 246, 247, 248, 249, 250, 251, 252, 253, 254, 255
aW1A, aW1C, aW1B, aW2, aBX, aBE, aJUNK = 0, 64, 80, 144, 208, 224, 228
aQB = 232
SX, SE, SW, SO, SD, SS = 12, 16, 20, 24, 68, 72
sB, sNB0, sNNODE, sWAVE, sMAP, sCOL = 28, 29, 30, 31, 32, 33
sXO = 36
s128, sSLOT, sRING0, sRING1, sT, sL, sLNEXT, sQROW = 40, 41, 42, 43, 44, 45, 46, 47
sLN2, sBAD = 48, 50
sJ, sJUMP, sINC = 52, 53, 54
sSLOW, sCNT = 66, 67
mLO, mBN, mNN = 's[76:77]', 's[78:79]', 's[80:81]'
sTAG, sTAG8, sTAGH = 82, 83, 84
def R(p, b, n): return f'{p}[{b}:{b+n-1}]'
def srdn(s): return f's[{s}:{s+3}]'
SDWA = 'dst_sel:DWORD dst_unused:UNUSED_PAD src0_sel:DWORD src1_sel:'

def srd(a, d, lo, size):
    a(f's_mov_b32 s{d}, s{lo}'); a(f's_and_b32 s{d+1}, s{lo+1}, 0xffff')
    a(f's_mov_b32 s{d+2}, {size}'); a(f's_mov_b32 s{d+3}, 0x20000')
def wave_scan(a, v, fill=()):
    fill = list(fill)
    steps = [f'row_shr:{sh} row_mask:0xf bank_mask:0xf bound_ctrl:0' for sh in (1, 2, 4, 8)]
    steps += ['row_bcast:15 row_mask:0xa bank_mask:0xf', 'row_bcast:31 row_mask:0xc bank_mask:0xf']
    for s in steps:
        for x in fill[:2]: a(x)
        fill = fill[2:]
        a(f'v_add_u32_dpp v{v}, v{v}, v{v} {s}')
    for x in fill: a(x)
def mfma(d, A, B, C): return f'v_mfma_f32_32x32x16_bf16 {d}, {A}, {B}, {C}'
def m1(c, k, dst, first_c):
    A = R('a', aW1A + (c * 4 + k) * 4, 4) if k < 4 else R('a', aW1C + c * 4, 4)
    B = R('a', aBX + k * 4, 4) if k < 4 else R('a', aBE, 4)
    return mfma(R('v', dst, 16), A, B, R('v', first_c if k == 0 else dst, 16))
def isize(x):
    if x.endswith(':'): return 0
    op = x.split()[0]
    if op.startswith(('v_mfma', 'v_pk_', 'buffer_', 'ds_', 'global_', 'v_mad_', 'v_max3', 'v_cvt_pk', 'v_lshl_add', 'v_bfe', 'v_writelane', 's_memreal')) or op.endswith(('_e64', '_dpp', '_sdwa')): return 8
    for t in x.replace(',', ' ').split()[1:]:
        try: v = int(t, 0)
        except ValueError: continue
        if not -16 <= v <= 64 and not op.startswith(('s_movk', 's_waitcnt', 's_nop')): return 8
    return 4

def prep_offsets(a, vl, v1, v2, t0, t1):
    a(f'v_and_b32 v{t0}, 31, v{vl}'); a(f'v_lshrrev_b32 v{t1}, 5, v{vl}')
    a(f'v_lshlrev_b32 v{v1}, 11, v{t1}'); a(f'v_lshl_add_u32 v{v1}, v{t0}, 1, v{v1}')
    a(f'v_lshlrev_b32 v{v2}, 9, v{t1}')
    a(f'v_bfe_u32 v{t1}, v{t0}, 2, 1'); a(f'v_lshl_add_u32 v{v2}, v{t1}, 6, v{v2}')
    a(f'v_and_b32 v{t1}, 3, v{t0}'); a(f'v_lshl_add_u32 v{v2}, v{t1}, 1, v{v2}')
    a(f'v_lshrrev_b32 v{t1}, 3, v{t0}'); a(f'v_lshl_add_u32 v{v2}, v{t1}, 3, v{v2}')
def prep_w1_load(a, sidx, voff, vd, s0, s1):
    a(f's_and_b32 s{s0}, s{sidx}, 3'); a(f's_lshr_b32 s{s1}, s{sidx}, 2')
    a(f's_cmp_eq_u32 s{s1}, 4')
    a(f's_cselect_b32 s{s1}, s{s0}, s{s1}'); a(f's_cselect_b32 s{s0}, 8, s{s0}')
    a(f's_lshl_b32 s{s0}, s{s0}, 12'); a(f's_lshl_b32 s{s1}, s{s1}, 6'); a(f's_add_u32 s{s0}, s{s0}, s{s1}')
    a(f's_cmp_ge_u32 s{sidx}, 20'); a(f's_cselect_b32 s{s1}, {64*256 - 5*64}, 0'); a(f's_add_u32 s{s0}, s{s0}, s{s1}')
    for j in range(8): a(f'buffer_load_ushort v{vd+j}, v{voff}, {srdn(SD)}, s{s0} offen offset:{256*j}')
def prep_w2_load(a, sidx, voff, vd, s0, s1):
    a(f's_sub_u32 s{s0}, s{sidx}, 36'); a(f's_lshr_b32 s{s1}, s{s0}, 3'); a(f's_and_b32 s{s0}, s{s0}, 7')
    a(f's_lshl_b32 s{s0}, s{s0}, 11'); a(f's_lshl_b32 s{s1}, s{s1}, 5'); a(f's_add_u32 s{s0}, s{s0}, s{s1}')
    for j in range(8): a(f'buffer_load_ushort v{vd+j}, v{voff}, {srdn(SS)}, s{s0} offen offset:{128*((j&3)+8*(j>>2))}')
def prep_w1_pack(a, vd):
    for j in range(8): a(f'v_lshlrev_b32 v{vd+j}, 16, v{vd+j}')
    for j in range(8): a(f'v_mul_f32 v{vd+j}, {NLOG2E}, v{vd+j}')
    for j in range(4): a(f'v_cvt_pk_bf16_f32 v{vd+j}, v{vd+2*j}, v{vd+2*j+1}')
def prep_w2_pack(a, vd):
    for j in range(4): a(f'v_lshl_or_b32 v{vd+j}, v{vd+2*j+1}, 16, v{vd+2*j}')

def gen():
    D = P.depth
    BN0, BN1, NA, M0, M1 = bucket_map()
    assert D == 2 and RING + 7 * SLOT <= WST and RING + 8 * SLOT <= WST + 5 * 1024
    VW = 5 * (D - 1)
    a = Asm()
    def stamp(i, real=False):
        if not P.stamp: return
        if P.stamp == 6:
            if i in (2, 3, 4): return
            if i >= 20: i -= 18
        elif i >= 20: return
        if P.stamp == 3: real = True
        if P.stamp == 4 and i not in (0, 13): return
        if P.stamp == 5:
            if i not in (0, 8, 13): return
            real = True
        a(f's_mem{"real" if real else ""}time s[86:87]'); a('s_waitcnt lgkmcnt(0)'); a(f's_mov_b32 s{88+i}, s86')
    def poll(name, load, check, first_issued=False, first_wait=None):
        a(f's_movk_i32 s{sCNT}, {P.limit}')
        if first_wait is not None:
            if first_wait: a(first_wait)
            check()
            a(f's_cbranch_scc0 {name}_ok')
        elif first_issued: a(f's_branch {name}_chk')
        a.label(name)
        load()
        a.label(name + '_chk')
        a('s_waitcnt vmcnt(0)')
        check()
        a(f's_cbranch_scc0 {name}_ok')
        a(f's_sub_u32 s{sCNT}, s{sCNT}, 1')
        a(f's_cbranch_scc0 {name}')
        a(f's_mov_b32 s{sSLOW}, 1')
        a.label(name + '_ok')

    epre = [int(ch) for ch in P.epre.strip()]
    xpre = [int(ch) for ch in P.xpre.strip()]
    def warm(pos):
        n = 0
        for i, p in enumerate(epre):
            if p != pos: continue
            a(f'v_add_u32 v124, {i*256*P.estr}, v126')
            if (i + 1) * 256 * P.estr > CH * 32: a(f'v_min_u32 v124, v124, v125')
            a(f'buffer_load_dword a{aJUNK}, v124, {srdn(SE)}, 0 offen')
            n += 1
        for i, p in enumerate(xpre):
            if p != pos: continue
            a('s_lshr_b32 s3, s2, 3'); a('s_lshl_b32 s35, s2, 2'); a('s_add_u32 s3, s3, s35'); a('s_and_b32 s3, s3, 31')
            a(f's_add_u32 s3, s3, {32*i}'); a('s_lshl_b32 s3, s3, 8')
            a('v_add_lshl_u32 v124, v0, s3, 7')
            a(f'buffer_load_dword a{aJUNK}, v124, {srdn(SX)}, s{sXO} offen')
            n += 1
        return n
    a('.p2align 8'); a.label(NAME + '_kernel')
    a(f's_cmp_ge_u32 s2, {NB}'); a('s_cbranch_scc1 L_end')
    stamp(0, True); stamp(1)
    a('s_load_dwordx8 s[4:11], s[0:1], 0')
    a('s_load_dwordx4 s[60:63], s[0:1], 64')
    a('s_load_dwordx2 s[64:65], s[0:1], 80')
    a('s_load_dwordx8 s[52:59], s[0:1], 32')
    a(f's_memrealtime s[{sTAG}:{sTAG+1}]')
    a('s_getpc_b64 s[14:15]')
    a.label('L_pc')
    a('v_lshlrev_b32 v15, 2, v0')
    if P.codepre:
        a('v_lshlrev_b32 v3, 6, v0')
        a('v_min_u32 v3, L_slow-L_pc, v3')
        a(f'global_load_dword a{aJUNK}, v3, s[14:15]')
    a('s_add_u32 s14, s14, L_table-L_pc')
    a('s_addc_u32 s15, s15, 0')
    a(f's_xor_b32 s85, s2, {P.par}'); a('s_and_b32 s85, s85, 1')
    a('v_lshl_add_u32 v3, s85, 10, v15')
    a('global_load_dword v11, v3, s[14:15]')
    a('v_lshrrev_b32 v1, 6, v0')
    a('v_and_b32 v2, 63, v0')
    a(f'v_readfirstlane_b32 s{sWAVE}, v1')
    a('v_lshlrev_b32 v21, 4, v0')
    for i in range(4): a(f'v_mov_b32 v{4+i}, 0')
    a('ds_write_b128 v21, v[4:7]')
    a('v_lshlrev_b32 v3, 3, v0')
    a(f'ds_write_b64 v3, v[4:5] offset:{HB}')
    a('v_mov_b32 v12, 0')
    a('v_mov_b32 v13, 1')
    a('v_lshlrev_b32 v9, 4, v2')
    a('v_cmp_gt_u32 vcc, 128, v0')
    a(f's_mul_i32 s3, s2, {CH*4}')
    for s in (SD, SS): a(f's_mov_b32 s{s+2}, {E*4}'); a(f's_mov_b32 s{s+3}, 0x20000')
    a(f's_mov_b64 {mLO}, vcc')
    a(f's_mov_b32 s{sSLOW}, 0')
    a('s_waitcnt lgkmcnt(0)')
    vDs, vSr, vB, vRk, vRec = 32, 48, 64, 80, 96
    a(f's_mov_b32 s{SD}, s10'); a(f's_and_b32 s{SD+1}, s11, 0xffff')
    a(f's_mov_b32 s{SS}, s8'); a(f's_and_b32 s{SS+1}, s9, 0xffff')
    for i in range(4): a(f's_add_u32 s{8+i}, s3, {4096*i}')
    a(f's_lshr_b32 s37, s2, {0 if P.tagst else 3}')
    a(f's_or_b32 s37, s37, s{sWAVE}')
    a('s_cbranch_scc1 L_notag')
    if P.force != 1:
        a(f's_or_b32 s{sTAG}, s{sTAG}, 1')
        a(f'v_mov_b32 v4, s{sTAG}'); a(f'v_mov_b32 v5, s{sTAG+1}')
        a('s_mov_b64 exec, 1')
        if P.tagst: a('global_store_dwordx2 v12, v[4:5], s[62:63] sc1')
        else: a('global_atomic_cmpswap_x2 v12, v[4:7], s[62:63] sc1')
        a('s_mov_b64 exec, -1')
    a.label('L_notag')
    a(f's_cmp_ge_u32 s2, {NCH}'); a('s_cbranch_scc1 L_prep_load')
    def edge_loads(srdn_, vb, so):
        for i in range(3): a(f'buffer_load_dwordx4 {R("v", vb+4*i, 4)}, v21, {srdn(srdn_)}, s{so+i} offen{P.pol_in}')
        a(f'buffer_load_dword v{vb+12}, v15, {srdn(srdn_)}, s{so+3} offen{P.pol_in}')
    edge_loads(SD, vDs, 8)
    a.label('L_setup')
    a('v_and_b32 v10, 3, v0')
    a('v_bfe_u32 v16, v0, 2, 4')
    a('v_lshl_add_u32 v10, v16, 3, v10')
    a('v_lshl_add_u32 v10, v1, 2, v10')
    a(f'v_cndmask_b32 v10, v2, v10, {mLO}')
    a('v_lshlrev_b32 v10, 1, v10')
    a(f's_cmp_lt_u32 s{sWAVE}, 2')
    a('s_cselect_b64 s[54:55], s[54:55], s[58:59]')
    a(f's_cselect_b32 s34, {NLOG2E}, 1.0')
    a('global_load_ushort v10, v10, s[54:55]')
    for i in range(4): a(f'v_mov_b32 v{128+i}, {DUMMY}')
    a(f'v_add_u32 v132, {EX + 16384}, v21')
    init = [f'ds_write_b128 v132, v[128:131] offset:{4096*i}' for i in range(15, -1, -1)]
    init += [f'ds_write_b128 v21, v[128:131] offset:{EX + 4096*i}' for i in range(4)]
    assert P.ninit >= 4
    init, init2 = init[:P.ninit], init[P.ninit:]
    C = []
    C += [f's_bfe_u32 s{sB}, s2, 0x20001', f's_lshl_b32 s{sB}, s{sB}, 5', 's_lshr_b32 s3, s2, 3', f's_add_u32 s{sB}, s{sB}, s3',
          f's_bitcmp{1 - P.par}_b32 s2, 0', f's_cselect_b32 s59, {BN1}, s38', f's_cselect_b32 s3, {NA}, 0', 's_cselect_b32 s35, 128, 0',
          f's_mul_i32 s{sNB0}, s{sB}, s59', f's_add_u32 s{sNB0}, s{sNB0}, s3', f's_add_u32 s{sB}, s{sB}, s35',
          f's_sub_u32 s{sNNODE}, {N}, s{sNB0}', f's_min_u32 s{sNNODE}, s{sNNODE}, s59',
          f's_lshl_b32 s{sCOL}, s{sB}, 3', f's_add_u32 s{sCOL}, s{sCOL}, {WS_TAB}']
    a(f's_movk_i32 s38, {BN0}')
    for x in C: a(x)
    C = []
    C += [f's_sub_u32 s{SX}, s4, {3*XP}', f's_subb_u32 s{SX+1}, s5, 0', f's_and_b32 s{SX+1}, s{SX+1}, 0xffff',
          f's_mov_b32 s{SX+2}, {(N*128 + 3*XP) * P.xfrac // 100}', f's_mov_b32 s{SX+3}, 0x20000']
    for d, lo, size in ((SE, 6, E * 32 * P.efrac // 100), (SO, 60, N * 128), (SW, 64, WS_SIZE)):
        C += [f's_mov_b32 s{d}, s{lo}', f's_and_b32 s{d+1}, s{lo+1}, 0xffff', f's_mov_b32 s{d+2}, {size}', f's_mov_b32 s{d+3}, 0x20000']
    C += [f's_movk_i32 s{sXO+j}, {(3-j)*XP}' for j in range(4)]
    C += [f's_movk_i32 s{s128}, 128', f's_mov_b32 s{sLN2}, {NLN2}', f's_mov_b32 s{sLN2+1}, {NLN2}', f's_mov_b64 s[{sBAD}:{sBAD+1}], 0']
    C += [f's_lshl_b32 s{sMAP}, s{sWAVE}, 12', f's_add_u32 s{sMAP}, s{sMAP}, {MAP}']
    C += [f's_lshl_b32 s{sQROW}, s{sWAVE}, 13', f's_add_u32 s{sQROW}, s{sQROW}, {EX}']
    C += [f's_mul_i32 s{sRING0}, s{sWAVE}, {D*SLOT}', f's_add_u32 s{sRING0}, s{sRING0}, {RING}',
          f's_add_u32 s{sRING1}, s{sRING0}, {D*SLOT}', f's_mov_b32 s{sSLOT}, s{sRING0}']
    C += ['v_and_b32 v16, 7, v2', 'v_lshrrev_b32 v18, 5, v2', 'v_xor_b32 v16, v16, v18', f'v_lshlrev_b32 v{vCX}, 4, v16']
    C += ['v_and_b32 v17, 1, v2', f'v_lshlrev_b32 v{vCE}, 4, v17']
    C += ['v_bfe_u32 v16, v2, 1, 2', f'v_mul_u32_u24 v16, {XP}, v16', 'v_bfe_u32 v20, v2, 3, 2', 'v_lshl_add_u32 v16, v20, 7, v16',
          'v_lshl_add_u32 v16, v17, 9, v16', 'v_xor_b32 v20, v17, v18', f'v_lshl_add_u32 v{vBX0}, v20, 4, v16']
    C += ['v_bfe_u32 v16, v2, 1, 4', 'v_lshl_add_u32 v16, v17, 4, v16', 'v_lshlrev_b32 v16, 5, v16', 'v_lshl_add_u32 v16, v18, 4, v16',
          f'v_add_u32 v{vBE0}, {4*XP}, v16']
    C += ['v_lshrrev_b32 v16, 3, v2', f'v_lshl_add_u32 v{vAX}, v16, 4, s{sQROW}']
    C += ['v_lshrrev_b32 v16, 1, v2', f'v_lshl_add_u32 v{vAE}, v16, 2, s{sQROW}']
    C += ['v_and_b32 v16, 31, v2', 'v_lshlrev_b32 v16, 2, v16', 'v_lshl_add_u32 v16, v18, 12, v16', f'v_add_u32 v25, s{sQROW}, v16']
    C += [f'v_add_u32 v24, s{sNB0}, v0', f'v_cmp_gt_u32 {mBN}, s59, v0', f'v_cmp_gt_u32 {mNN}, s{sNNODE}, v0',
          'v_and_b32 v134, 255, v24', 'v_lshlrev_b32 v134, 4, v134',
          f's_add_u32 s3, s{sNB0}, 240', 's_and_b32 s3, s3, 255', 's_lshl_b32 s3, s3, 4', 'v_mov_b32 v135, s3']
    C += ['v_lshlrev_b32 v19, 2, v2', 'v_lshlrev_b32 v14, 3, v2', 'v_lshlrev_b32 v30, 11, v0', 'v_and_b32 v31, 31, v0', 'v_lshlrev_b32 v31, 4, v31', 'v_lshl_add_u32 v31, v0, 12, v31']
    C += ['v_min_u32 v3, 5, v2', f'v_add_u32 v3, {NCH}, v3', 'v_lshlrev_b32 v133, 11, v3']
    C += [f's_mov_b32 s55, {M0}', f's_movk_i32 s56, {M1 - M0}', 's_movk_i32 s57, 335', f'v_mov_b32 v23, {NA}',
          f's_mov_b32 s58, { {1: 0, 2: 0x80000}.get(P.classes, 0xc0000)}']
    k = 0
    while init or C:
        if init: a(init.pop(0))
        for x in C[:6]: a(x)
        C = C[6:]
        k += 1
        if k == P.srcpos:
            a(f's_cmp_ge_u32 s2, {NCH}'); a('s_cbranch_scc1 L_nosrc')
            edge_loads(SS, vSr, 8)
            a.label('L_nosrc')
    if epre:
        a(f's_mul_i32 s3, s2, {CH*32}'); a(f'v_mul_u32_u24 v126, {P.estr}, v0'); a('v_add_u32 v126, s3, v126')
        a(f's_add_u32 s3, s3, {CH*32-128}'); a('v_mov_b32 v125, s3')
    n0 = warm(0)
    a('s_waitcnt lgkmcnt(0)')
    a('s_barrier')
    tagload = lambda: a('global_load_dwordx2 v[16:17], v12, s[62:63] sc1')
    def tagcheck():
        a(f'v_readfirstlane_b32 s{sTAG}, v16'); a(f'v_readfirstlane_b32 s{sTAG8}, v17')
        a(f's_cmp_eq_u32 s{sTAG}, 0')
    a(f's_cmp_ge_u32 s2, {NCH}'); a('s_cbranch_scc1 L_prep_store')
    for b, (lo, hi) in enumerate(((0, 4), (4, 8), (8, 13)) if P.stag else ((0, 13),)):
        a(f's_waitcnt vmcnt({5 + n0 + ((3, 2, 0)[b] if P.stag else 0)})')
        if hi == 13: stamp(2); tagload()
        for i in range(lo, hi): a(f'v_mul_u32_u24 v{vB+i}, s55, v{vDs+i}')
        for i in range(lo, hi): a(f'v_sub_u32_e64 v{vRk+i}, v{vDs+i}, v23 clamp')
        for i in range(lo, hi): a(f'v_mad_u32_u24 v{vB+i}, v{vRk+i}, s56, v{vB+i}')
        for i in range(lo, hi): a(f'v_lshlrev_b32_sdwa v{vB+i}, 2, v{vB+i} {SDWA}BYTE_3')
        for i in range(lo, hi):
            if i == 12: a(f's_mov_b64 exec, {mLO}')
            a(f'ds_add_rtn_u32 v{vRk+i}, v{vB+i}, v13 offset:{HB}')
    a('s_mov_b64 exec, -1')
    for i in range(13): a(f'v_lshlrev_b32_sdwa v{vDs+i}, 20, v{vDs+i} {SDWA}BYTE_0')
    a(f's_mov_b32 s3, {STAGE // 8}')
    a('s_waitcnt lgkmcnt(0)')
    a('s_barrier')
    a(f'ds_read_b128 v[26:29], v9 offset:{HB}')
    for i in range(13): a(f'v_add_u32 v{vRk+i}, s3, v{vRk+i}')
    F = [f'v_mul_u32_u24 v{vRec+2*i}, s57, v{vSr+i}' for i in range(13)]
    F += [f'v_lshrrev_b32 v{vRec+2*i}, 4, v{vRec+2*i}' for i in range(13)]
    F += [f'v_and_or_b32 v{vRec+2*i}, v{vRec+2*i}, s58, v{vSr+i}' for i in range(13)]
    a(f's_waitcnt vmcnt({1+n0}) lgkmcnt(0)')
    a('v_add_u32 v5, v26, v27'); a('v_add_u32 v6, v5, v28'); a('v_add_u32 v7, v6, v29')
    a('v_mov_b32 v3, v7')
    wave_scan(a, 3, F[:12])
    a('v_sub_u32 v4, v3, v7'); a('v_add_u32 v7, v4, v6'); a('v_add_u32 v6, v4, v5'); a('v_add_u32 v5, v4, v26')
    a(f'ds_write_b128 v9, v[4:7] offset:{START}')
    for i in range(13): a(f'ds_read_b32 v{vB+i}, v{vB+i} offset:{START}')
    for x in F[12:]: a(x)
    def gettag(name, **kw):
        poll(name, tagload, tagcheck, **kw)
        a(f's_and_b32 s{sTAG8}, s{sTAG8}, 0xff')
        a(f's_lshl_b32 s{sTAGH}, s{sTAG}, 4')
        a(f's_and_b32 s{sTAGH}, s{sTAGH}, 0xfffff000')
    def pubrow(name):
        a(f's_sub_u32 s3, 3, s{sWAVE}'); a(f's_or_b32 s3, s3, s{sSLOW}'); a(f's_cbranch_scc1 {name}')
        if P.force == 2: a('s_cmp_eq_u32 s2, 7'); a(f's_cbranch_scc1 {name}')
        for i in range(4):
            a(f'v_lshl_or_b32 v{136+2*i}, v{26+i}, 12, v{4+i}')
            a(f'v_mov_b32 v{137+2*i}, s{sTAG}')
        for i in range(4): a(f'v_lshl_or_b32 v{136+2*i}, s{sTAG8}, 24, v{136+2*i}')
        a('s_lshl_b32 s3, s2, 11'); a(f's_add_u32 s3, s3, {WS_TAB}')
        a('v_lshlrev_b32 v3, 5, v2')
        a(f'buffer_store_dwordx4 v[136:139], v3, {srdn(SW)}, s3 offen sc1')
        a(f'buffer_store_dwordx4 v[140:143], v3, {srdn(SW)}, s3 offen offset:16 sc1')
        a.label(name)
    gettag('L_ptag', first_wait='s_waitcnt vmcnt(0)')
    if P.stamp == 3 and P.st1 == 0: stamp(1)
    pubrow('L_norow')
    a(f's_lshl_b32 s3, s{sTAGH}, 16')
    if P.force == 3: a('s_cmp_eq_u32 s2, 9'); a('s_cselect_b32 s35, 0x10000000, 0'); a('s_xor_b32 s3, s3, s35')
    a(f'v_add_u32 v22, s{sTAGH}, v15')
    a(f'v_add_u32 v20, s{sTAGH}, v0')
    a('s_waitcnt lgkmcnt(0)')
    for lo, hi in (((0, 4), (4, 8), (8, 13)) if P.stag else ((0, 13),)):
        for i in range(lo, hi):
            a(f'v_or3_b32 v{vRec+2*i}, v{vRec+2*i}, v{vDs+i}, s3')
            a(f'v_add_u32 v{vRec+2*i+1}, {(i>>2)*1024 + (i&3)}, v{22 if i < 12 else 20}')
        for i in range(lo, hi):
            a(f'v_add_lshl_u32 v{vB+i}, v{vB+i}, v{vRk+i}, 3')
        for i in range(lo, hi):
            if i == 12: a(f's_mov_b64 exec, {mLO}')
            a(f'ds_write_b64 v{vB+i}, {R("v", vRec+2*i, 2)}')
    a('s_mov_b64 exec, -1')
    a('v_lshlrev_b32 v10, 16, v10')
    a('v_mul_f32 v10, s34, v10')
    a(f'ds_write_b32 v15, v10 offset:{B1T}')
    a(f'v_add_u32 v3, {STAGE}, v21')
    a('v_lshl_add_u32 v20, v1, 8, v9')
    a(f'v_add_u32 v22, {STAGE + 24576}, v20')
    a('s_and_b32 s3, s2, 31'); a('s_lshl_b32 s35, s2, 8'); a('s_add_u32 s3, s3, s35'); a('s_lshl_b32 s3, s3, 7')
    wload = lambda: a(f'buffer_load_dwordx2 v[122:123], v133, {srdn(SW)}, s{sCOL} offen sc1')
    tload = lambda: a(f'buffer_load_dwordx2 v[16:17], v30, {srdn(SW)}, s{sCOL} offen sc1')
    a('s_waitcnt lgkmcnt(0)')
    a('s_barrier')
    if P.stamp == 3 and P.st1 == 1: stamp(1)
    for i in range(6): a(f'ds_read_b128 {R("v", 32+4*i, 4)}, v3 offset:{4096*i}')
    a('ds_read_b128 v[56:59], v22')
    if P.tpos == 0: tload()
    for i in range(7):
        a(f's_waitcnt lgkmcnt({6-i})')
        if i == 6: a('s_mov_b64 exec, 0xffff')
        a(f'buffer_store_dwordx4 {R("v", 32+4*i, 4)}, v{21 if i < 6 else 20}, {srdn(SW)}, s3 offen{P.pol_st}')
        if i < 6: a('s_add_u32 s3, s3, 4096')
    a('s_mov_b64 exec, -1')
    if P.tpos == 1: tload()
    if not P.probe: wload()
    a('s_barrier')
    stamp(3)
    a(f'ds_write_b32 v15, v11 offset:{TT}')
    for x in init2: a(x)
    a(f's_waitcnt vmcnt({7 if P.tpos == 0 else 0})')
    a.label('L_consume')
    a(f's_cmp_lg_u32 s{sSLOW}, 0'); a('s_cbranch_scc1 L_skipB')
    def tcheck(v):
        def f():
            a(f'v_cmp_ne_u32 s[56:57], s{sTAG}, v{v+1}')
            a(f'v_cmp_ne_u32_sdwa vcc, v{v}, s{sTAG8} src0_sel:BYTE_3 src1_sel:DWORD')
            a('s_or_b64 vcc, vcc, s[56:57]')
        return f
    poll('L_pt', tload, tcheck(16), first_wait='')
    stamp(4)
    def weights():
        poll('L_pw', wload, tcheck(122), first_wait='')
        a(f's_mul_i32 s3, s{sWAVE}, {13*1024}')
        a(f's_add_u32 s35, s3, {WS_W}')
        a(f's_add_u32 m0, s3, {WST}')
        for i in range(13):
            if i and i % 4 == 0: a('s_add_u32 m0, m0, 4096'); a('s_add_u32 s35, s35, 4096')
            a(f'buffer_load_dwordx4 v9, {srdn(SW)}, s35 offen offset:{(i%4)*1024} sc1 lds')
        return 13
    if P.wpos == 3: assert not P.probe; weights()
    a('v_bfe_u32 v17, v16, 12, 12')
    a('v_and_b32 v16, 0xfff, v16')
    a('v_mov_b32 v18, v17')
    a('v_add_u32 v16, v16, v31')
    a('v_add_lshl_u32 v22, v16, v17, 3')
    a('v_sub_u32_e64 v22, v22, 4 clamp')
    pload = lambda: a(f'buffer_load_dword v23, v22, {srdn(SW)}, 0 offen sc1')
    if P.probe: pload(); wload()
    wave_scan(a, 18, ['v_cmp_lt_u32 s[56:57], 16, v17', 'v_cmp_lt_u32 s[58:59], 8, v17',
                      'v_cmp_lt_u32 s[60:61], 0, v17', 'v_cmp_lt_u32 vcc, 24, v17', f'v_add_u32 v20, s{sMAP}, v19'])
    a('v_sub_u32 v3, v18, v17')
    a('v_readlane_b32 s3, v18, 63')
    a('v_sub_u32 v16, v16, v3')
    a(f'v_lshl_add_u32 v18, v3, 2, s{sMAP}')
    a('v_lshlrev_b32 v16, 3, v16')
    a(f's_cmp_gt_u32 s3, {NSLOT*64}')
    a(f's_cselect_b32 s{sSLOW}, 1, s{sSLOW}')
    a(f's_cmp_lg_u32 s{sSLOW}, 0'); a('s_cbranch_scc1 L_skipB')
    a('v_lshl_add_u32 v3, s3, 2, v20')
    for m, j0 in (('s[56:57]', 16), ('s[58:59]', 8), ('s[60:61]', 0)):
        a(f's_mov_b64 exec, {m}')
        for j in range(j0 + 7, j0 - 1, -1): a(f'ds_write_b32 v18, v16 offset:{4*j}')
    a('s_mov_b64 exec, -1')
    a('ds_write_b32 v3, v128')
    a('s_cbranch_vccz L_nomap')
    a.label('L_map')
    for j in range(24, 28):
        a(f'v_cmpx_lt_u32 vcc, {j}, v17')
        a(f'ds_write_b32 v18, v16 offset:{4*j}')
    a('v_add_u32 v18, 16, v18')
    a('v_subrev_u32 v17, 4, v17')
    a('s_cbranch_execnz L_map')
    a('s_mov_b64 exec, -1')
    a.label('L_nomap')
    vR, vI, vK, vP, vA, vT, vCB = 32, 64, 80, 96, 144, 160, 176
    for i in range(NSLOT): a(f'ds_read_b32 v{vA+i}, v20 offset:{256*i}')
    def pcheck():
        a(f'v_xor_b32 v23, s{sTAGH}, v23')
        a('v_cmp_lt_u32 vcc, 0xfff, v23')
        a('s_and_b64 vcc, vcc, s[60:61]')
    a('s_movk_i32 s34, 4096')
    a('s_waitcnt lgkmcnt(0)')
    for i in range(NSLOT): a(f'v_add_u32 v{vA+i}, v{vA+i}, v14')
    if P.probe: a('s_waitcnt vmcnt(0)')
    if P.wpos == 0: weights()
    if P.probe: poll('L_pp', pload, pcheck, first_wait='')
    stamp(5)
    a(f's_cmp_lg_u32 s{sSLOW}, 0'); a('s_cbranch_scc1 L_skipB')
    rec = lambda i: a(f'buffer_load_dwordx2 {R("v", vR+2*i, 2)}, v{vA+i}, {srdn(SW)}, {"s34" if i >= 8 else "0"} offen offset:{512*(i%8)} sc1')
    for i in range(NSLOT): rec(i)
    def ownx():
        a('v_lshlrev_b32 v29, 7, v24')
        a(f'buffer_load_dword a{aJUNK}, v29, {srdn(SX)}, s{sXO} offen')
        return 1
    n3 = 0
    if P.wpos == 1: n3 += weights()
    nx = 0
    if P.xpos == 3: nx += ownx()
    nx += warm(3)
    n3 += nx
    for i in range(NSLOT): a(f'v_bfe_i32 v{vT+i}, v{vA+i}, 30, 1')
    for i in range(NSLOT): a(f'v_bfi_b32 v{vT+i}, v{vT+i}, v135, s{sTAGH}')
    stamp(6)
    retry = []
    for b, (lo, hi) in enumerate(((0, 6), (6, 11), (11, 15))):
        a(f's_movk_i32 s{sCNT}, {P.limit}')
        a(f's_waitcnt vmcnt({NSLOT-hi+n3})')
        a.label(f'L_chk{b}')
        for i in range(lo, hi): a(f'v_xor_b32 v{vR+2*i+1}, v{vT+i}, v{vR+2*i+1}')
        for i in range(lo, hi): a(f'v_xor_b32_sdwa v{vI+i}, v{vT+i}, v{vR+2*i} dst_sel:DWORD dst_unused:UNUSED_PAD src0_sel:WORD_0 src1_sel:WORD_1')
        for i in range(lo, hi): a(f'v_or3_b32 v3, v{vI+i}, v{vR+2*i+1}, {"v3" if i > lo else "0"}')
        a('v_cmp_lt_u32 vcc, 0xfff, v3')
        if lo == 11:
            for i in range(lo, hi): a(f'v_cmp_ne_u32 s[{58+2*(i-lo)}:{59+2*(i-lo)}], v135, v{vI+i}')
        a(f's_cbranch_vccnz L_retry{b}')
        retry.append((b, lo, hi))
        for i in range(lo, hi):
            if lo == 11: a(f's_mov_b64 exec, s[{58+2*(i-lo)}:{59+2*(i-lo)}]')
            a(f'ds_add_rtn_u32 v{vK+i}, v{vI+i}, v13 offset:{CNT}')
    a('s_mov_b64 exec, -1')
    if P.wpos == 2: weights(); nx = 0
    if P.xpos == 4: nx += ownx()
    nx += warm(4)
    a.label('L_skipB')
    EO = []
    for i in range(NSLOT):
        if i: EO.append(f'v_add_u32 v{vA+i}, {512*i}, v{vA+i}')
    EO += [f'v_lshrrev_b32 v{vA+i}, 15, v{vA+i}' for i in range(NSLOT)]
    EO += [f'v_mad_u32_u24 v{vR+2*i+1}, v{vA+i}, s3, v{vR+2*i+1}' for i in range(NSLOT)]
    EO += [f'v_lshlrev_b32 v{vR+2*i+1}, 5, v{vR+2*i+1}' for i in range(NSLOT)]
    a(f's_movk_i32 s3, {CH}')
    for x in EO[:24]: a(x)
    a(f's_mov_b64 exec, {mBN}')
    a('s_waitcnt lgkmcnt(0)')
    a('s_barrier')
    stamp(7)
    a(f'ds_read_b128 v[4:7], v134 offset:{CNT}')
    a('s_waitcnt lgkmcnt(0)')
    a('v_add_u32 v5, v4, v5'); a('v_add_u32 v6, v5, v6'); a('v_add_u32 v16, v6, v7')
    a('v_min_u32 v17, 63, v16')
    a('v_sub_u32 v17, 63, v17')
    a('v_lshlrev_b32 v17, 2, v17')
    a(f'ds_add_rtn_u32 v18, v17, v13 offset:{HIST}')
    a('v_sub_u32 v26, v16, v4'); a('v_sub_u32 v27, v16, v5'); a('v_sub_u32 v28, v16, v6')
    a('v_lshrrev_b32 v23, 1, v16')
    a('v_lshl_or_b32 v23, v23, 16, v24')
    a('v_or_b32 v23, 0xc00000, v23')
    a('s_mov_b64 exec, -1')
    for x in EO[24:40]: a(x)
    a('s_waitcnt lgkmcnt(0)')
    a('s_barrier')
    stamp(20)
    a(f'ds_read_b32 v20, v19 offset:{HIST}')
    a(f'v_mov_b32 v3, {(32768 - 4) << 16}')
    a(f'ds_write_b32 v135, v3 offset:{CNT}')
    for x in EO[40:]: a(x)
    a('s_waitcnt lgkmcnt(1)')
    a('v_mov_b32 v3, v20')
    wave_scan(a, 3)
    a('v_sub_u32 v20, v3, v20')
    a('ds_bpermute_b32 v20, v17, v20')
    a(f's_mov_b64 exec, {mNN}')
    a('s_waitcnt lgkmcnt(0)')
    a('v_add_lshl_u32 v20, v20, v18, 2')
    a(f'ds_read_b32 v22, v20 offset:{TT}')
    a('s_waitcnt lgkmcnt(0)')
    a('v_and_b32 v3, 0x10000000, v22')
    a('v_lshlrev_b32 v29, 16, v22')
    a('v_cmp_ne_u32 vcc, 0, v3')
    a('v_bfe_u32 v3, v22, 6, 1')
    a('v_add_u32 v16, v16, v3')
    a('v_cndmask_b32 v7, v6, v12, vcc'); a('v_cndmask_b32 v6, v5, v28, vcc')
    a('v_cndmask_b32 v5, v4, v27, vcc'); a('v_cndmask_b32 v4, v12, v26, vcc')
    for i in range(4): a(f'v_mad_u32_u24 v{4+i}, v{4+i}, v29, v22')
    a('v_lshrrev_b32 v16, v3, v16')
    a('v_lshrrev_b32 v22, 16, v22')
    a('v_lshl_or_b32 v24, v3, 22, v24')
    a('v_cmp_lt_u32 s[56:57], 30, v16')
    a('v_lshl_or_b32 v24, v16, 16, v24')
    a('v_cmp_ne_u32 vcc, 0, v3')
    a(f'ds_write_b128 v134, v[4:7] offset:{CNT}')
    a(f'ds_write_b32 v22, v24 offset:{EX - 128}')
    a('s_mov_b64 exec, vcc')
    a(f'ds_write_b32 v22, v23 offset:{EX - 64}')
    a(f's_or_b32 s56, s56, s{sSLOW}')
    a('s_mov_b64 exec, s[56:57]')
    a(f'ds_write_b32 v12, v13 offset:{FLAG}')
    a('s_mov_b64 exec, -1')
    a(f'v_add_u32 v3, {WST}, v9')
    a(f's_waitcnt vmcnt({nx}) lgkmcnt(0)')
    a('s_barrier')

    ell_read = [f'ds_read_b128 {R("v", vEX, 4)}, v{vAX}', f'ds_read_b32 v{vEE}, v{vAE} offset:{EE-EX}']
    jump = [f's_sub_u32 s{sJ}, s{sJ}, 1', f's_cselect_b32 s{sINC}, s{sJUMP}, s{s128}']
    ell_adv = [f'v_add_u32 v{vAX}, s{sINC}, v{vAX}', f'v_add_u32 v{vAE}, s{sINC}, v{vAE}']
    xaddr = [f'v_mad_u32_u16 v{vEX+j}, v{vEX+j}, s{s128}, v{vCX}' for j in range(4)]
    eaddr = f'v_add_u32 v{vEE}, v{vEE}, v{vCE}'
    m0x = f's_mov_b32 m0, s{sSLOT}'; m0e = f's_add_u32 m0, s{sSLOT}, {4*XP}'
    dmax = [f'buffer_load_dwordx4 v{vEX+j}, {srdn(SX)}, s{sXO+j} offen offset:{j*XP}{P.pol_x} lds' for j in range(4)]
    dmae = f'buffer_load_dwordx4 v{vEE}, {srdn(SE)}, 0 offen{P.pol_e} lds'
    adv = [f's_add_u32 s{sSLOT}, s{sSLOT}, {SLOT}', f's_cmp_eq_u32 s{sSLOT}, s{sRING1}', f's_cselect_b32 s{sSLOT}, s{sRING0}, s{sSLOT}']
    baddr = [f'v_add_u32 v{vBX}, s{sSLOT}, v{vBX0}', f'v_add_u32 v{vBE}, s{sSLOT}, v{vBE0}']
    bread = [f'ds_read_b128 {R("a", aBX+4*k, 4)}, v{vBX} offset:{32*k}' for k in range(4)] + [f'ds_read_b128 {R("a", aBE, 4)}, v{vBE}']
    PFa = [m0x] + xaddr + [eaddr] + dmax + [m0e] + [adv[0]] + [dmae] + adv[1:]
    PFb = ell_read + jump + ell_adv
    PF = PFa + PFb + baddr

    stamp(21)
    vG = 112
    a(f'ds_read_b32 v16, v12 offset:{FLAG}')
    a(ell_read[0])
    a(f'ds_read_b128 {R("v", vG, 4)}, v{vAX} offset:4096')
    for i in range(NSLOT - 3): a(f'ds_read_b32 v{vP+i}, v{vI+i} offset:{CNT}')
    a(f's_mul_i32 s35, s{sWAVE}, {8*XP}'); a(f's_add_u32 s35, s35, {RING}'); a('s_mov_b32 m0, s35')
    a(f's_waitcnt lgkmcnt({NSLOT - 4})')
    for i in range(NSLOT - 3, NSLOT): a(f'ds_read_b32 v{vP+i}, v{vI+i} offset:{CNT}')
    a('ds_read_b32 v17, v25')
    a('v_readfirstlane_b32 s3, v16')
    alt = lambda L: [x.replace(R('v', vEX, 4), R('v', vG, 4)).replace(f'v{vEX}', f'v{vG}').replace(f'v{vEX+1}', f'v{vG+1}').replace(f'v{vEX+2}', f'v{vG+2}')
                      .replace(f'v{vEX+3}', f'v{vG+3}').replace(f'v{vEE}', f'v{vG+4}') for x in L]
    for x in xaddr + alt(xaddr): a(x)
    a('s_cmp_lg_u32 s3, 0'); a('s_cbranch_scc1 L_slow')
    for x in dmax: a(x)
    a(f's_add_u32 m0, s35, {4*XP}')
    for x in alt(dmax): a(x)
    for lo, hi in ((0, 8), (8, 15)):
        a(f's_waitcnt lgkmcnt({NSLOT - hi + 1 if hi < NSLOT else 0})')
        for i in range(lo, hi): a(f'v_mul_u32_u24_sdwa v{vK+i}, v{vK+i}, v{vP+i} {SDWA}WORD_0')
        for i in range(lo, hi): a(f'v_add_u32_sdwa v{vP+i}, v{vK+i}, v{vP+i} {SDWA}WORD_1')
    ellw = lambda i: a(f'ds_write2st64_b32 v{vP+i}, v{vR+2*i}, v{vR+2*i+1} offset0:{EX//256} offset1:{EE//256}')
    def fill_all():
        for i in range(NSLOT):
            if i >= 11: a(f's_mov_b64 exec, s[{58+2*(i-11)}:{59+2*(i-11)}]')
            ellw(i)
        a('s_mov_b64 exec, -1')
    if P.two:
        MS = [4, 6, 8, 10, 68, 70, 72, 74]
        a('s_movk_i32 s3, 0x180')
        for lo, hi in ((0, 8), (8, 15)):
            for i in range(lo, hi): a(f'v_and_b32 v{vK+i}, 0x1fff, v{vP+i}')
            for i in range(lo, hi): a(f'v_cmp_gt_u32 s[{MS[i-lo]}:{MS[i-lo]+1}], s3, v{vK+i}')
            for i in range(lo, hi): a(f's_mov_b64 exec, s[{MS[i-lo]}:{MS[i-lo]+1}]'); ellw(i)
            a('s_mov_b64 exec, -1')
    else: fill_all()
    wread = [f'ds_read_b128 {R("a", 4*i, 4)}, v3 offset:{1024*i}' for i in range(52)]
    for x in wread[:5]: a(x)
    a('v_bfe_u32 v17, v17, 16, 6')
    a(f'v_add_u32 v{vBX}, s35, v{vBX0}')
    a(f'v_add_u32 v{vAX}, 128, v{vAX}')
    for sh in (1, 2, 4, 8): a(f'v_max_u32_dpp v17, v17, v17 row_shr:{sh} row_mask:0xf bank_mask:0xf bound_ctrl:0')
    a('v_max_u32_dpp v17, v17, v17 row_bcast:15 row_mask:0xa bank_mask:0xf')
    a(f'v_add_u32 v{vAE}, 128, v{vAE}')
    a(f'v_readlane_b32 s{sL}, v17, 31')
    a(f'v_readlane_b32 s{sLNEXT}, v17, 63')
    stamp(22)
    a('s_waitcnt vmcnt(0)')
    for x in bread[:4]: a(x)
    for k in range(4): a(f'ds_read_b128 {R("a", aQB+4*k, 4)}, v{vBX} offset:{4*XP + 32*k}')
    a(f's_max_u32 s{sL}, s{sL}, 1')
    a(f's_max_u32 s{sLNEXT}, s{sLNEXT}, 1')
    if P.thr: a(f's_movk_i32 s55, {P.thr}')
    if P.stamp: a(f's_add_u32 s{sCNT}, s{sL}, s{sLNEXT}')
    a(f's_lshl_b32 s3, s{sL}, 7')
    a(f's_sub_u32 s{sJUMP}, {4096 + 128}, s3')
    a(f's_sub_u32 s{sJ}, s{sL}, 1')
    if P.stamp: a(f's_mov_b32 s{88+10}, 0')
    for x in jump: a(x)
    a('s_waitcnt lgkmcnt(0)')
    a('s_barrier')
    stamp(8)
    for x in alt(ell_read) + ell_adv + PFb: a(x)
    a('s_waitcnt lgkmcnt(2)')
    for x in alt(PFa): a(x)
    a('s_waitcnt lgkmcnt(0)')
    if P.two:
        a(f's_cmp_eq_u32 s{sL}, 1'); a('s_cbranch_scc1 L_one')
        for x in PFa: a(x)
        a.label('L_one')
        fill_all()
    else:
        for x in PF: a(x)

    a(f'v_lshrrev_b32 v{vE+1}, 3, v{vBE0}')
    a(f'v_and_b32 v{vE}, 16, v{vBE0}')
    a(f'v_and_b32 v{vE+1}, -4, v{vE+1}')
    a(f'v_lshlrev_b32 v{vE}, 4, v{vE}')
    a(f's_sub_u32 s3, s{sQROW}, {4*XP//8}')
    a(f'v_add_u32 v{vE+1}, s3, v{vE+1}')
    a(f'ds_read_b32 v{vINFO}, v{vE+1}')
    for x in wread[20:36]: a(x)
    for i in range(16): a(f'ds_read_b128 {R("v", vQ+4*i, 4)}, v{vE} offset:{B1T + 16*i}')
    a('s_waitcnt lgkmcnt(0)')
    pf = wread[5:20] + wread[36:]
    if P.two:
        a('s_barrier')
        a(f's_cmp_lg_u32 s{sL}, 1'); a('s_cbranch_scc1 L_notone')
        a(f'v_subrev_u32 v{vE+2}, 128, v{vAX}'); a(f'v_subrev_u32 v{vE+3}, 128, v{vAE}')
        a(ell_read[0].replace(f'v{vAX}', f'v{vE+2}')); a(ell_read[1].replace(f'v{vAE}', f'v{vE+3}'))
        a('s_waitcnt lgkmcnt(0)')
        for x in PFa: a(x)
        a.label('L_notone')
        pf = PFb + baddr + pf
    qm = lambda c, k, b: mfma(R('v', vQ+16*c, 16), R('a', aW1B + (c*4+k)*4, 4), R('a', b+4*k, 4), R('v', vQ+16*c, 16))
    for c in range(4):
        for k in range(4):
            a(qm(c, k, aBX))
            for x in pf[:4]: a(x)
            pf = pf[4:]
    assert not pf
    a(f's_waitcnt vmcnt({VW})')
    for x in bread: a(x)
    stamp(9)
    a('s_waitcnt lgkmcnt(0)')
    pf = list(PF)
    for k in range(5):
        a(m1(0, k, vN, vQ))
        n = 3 if k < 4 else 99
        for x in pf[:n]: a(x)
        pf = pf[n:]
    a.label('L_first')
    a(f'v_bfe_u32 v{vDEG}, v{vINFO}, 16, 6')
    a(f's_mov_b32 s{sT}, 1')
    for c in range(4):
        cn = (c + 1) & 3
        if c == 3: a('s_waitcnt lgkmcnt(0)')
        for k in range(5):
            a(m1(cn, k, vN + 16*cn if c < 3 else vY, vQ + 16*cn))
            if c == 2:
                if k == 0:
                    a(f's_waitcnt vmcnt({VW+4})'); a(f's_cmp_eq_u32 s{sLNEXT}, 0'); a('s_cbranch_scc1 L_w2')
                    a(f's_waitcnt vmcnt({VW})'); a.label('L_w2')
                a(bread[k])
            for i in range(3*k, 3*k + (3 if k < 4 else 4)): a(f'v_exp_f32 v{vD+16*c+i}, v{vN+16*c+i}')
        for p in range(8):
            d = R('v', vD + 16*c + 2*p, 2)
            a(f'v_pk_add_f32 {d}, {d}, 1.0 op_sel_hi:[1,0]')
    a(f's_cmp_ge_u32 s{sT}, s{sL}'); a('s_cbranch_scc1 L_flush')
    a(m0x)
    a(m1(1, 0, vY + 16, vQ + 16))
    a('.p2align 3')
    a.label('L_row')
    for c in range(4):
        cn = (c + 1) & 3
        y = vY + 16 * (c & 1); yn = vY + 16 * (cn & 1)
        S = [[] for _ in range(5)]
        V = [[] for _ in range(5)]
        if c == 0:
            S[1] = ['s_mov_b64 exec, -1']; V[1] = xaddr[:2]
            S[2] = [jump[0]]; V[2] = xaddr[2:]
            S[3] = [jump[1]]; V[3] = [eaddr]
            V[4] = dmax + [m0e, ell_read[0], dmae, ell_read[1]] + ell_adv + [f'v_cmpx_lt_u32 vcc, s{sT}, v{vDEG}']
        if c == 1:
            S[0] = [adv[0]]; S[1] = [adv[1]]; S[2] = [adv[2]]
            S[3] = [f's_add_u32 s{sT}, s{sT}, 1']
            if P.thr: S[4] = [f's_cmp_lt_u32 s{sT}, s55']
            V[4] = baddr
        if c == 2:
            for k in range(5): S[k] = [bread[k]]
            S[0].insert(0, f's_waitcnt vmcnt({VW})')
            if P.thr: S[0][0:0] = ['s_cbranch_scc1 L_strict', 'L_back:']
            S[4].insert(0, 's_waitcnt lgkmcnt(3)')
        if c == 3:
            S[0] = ['s_waitcnt lgkmcnt(0)']
            if P.stamp == 2: S[0] = ['s_memrealtime s[86:87]', 's_waitcnt lgkmcnt(0)', f's_mov_b32 m0, s{sT}', 's_nop 0', f'v_writelane_b32 v{vMAX}, s86, m0']
            S[1] = [f's_cmp_lt_u32 s{sT}, s{sL}']
            S[2] = [m0x]
        L = []
        for k in range(5):
            if (c, k) != (0, 0): L.append(m1(cn, k, yn, vQ + 16*cn))
            L += S[k]
            for i in range(3*k, 3*k + (3 if k < 4 else 4)): L.append(f'v_exp_f32 v{vE+i}, v{y+i}')
            L += V[k]
        if sum(isize(x) for x in L) % 8:
            i = max(i for i, x in enumerate(L) if x.startswith('v_exp_f32 '))
            L[i] = L[i].replace('v_exp_f32 ', 'v_exp_f32_e64 ')
        for x in L: a(x)
        for p in range(8):
            yy, nn, dd, ee = R('v', y+2*p, 2), R('v', vN+16*c+2*p, 2), R('v', vD+16*c+2*p, 2), R('v', vE+2*p, 2)
            a(f'v_pk_fma_f32 {yy}, {yy}, {dd}, {nn}')
            a(f'v_pk_fma_f32 {dd}, {dd}, {ee}, {dd}')
            a(f'v_pk_fma_f32 {nn}, {nn}, {ee}, {yy}')
    a(m1(1, 0, vY + 16, vQ + 16))
    a('s_cbranch_scc1 L_row')
    a.label('L_flush')
    if P.stamp:
        a(f's_cmp_lg_u32 s{88+10}, 0'); a('s_cbranch_scc1 L_st10'); stamp(10); a.label('L_st10')
        stamp(11)
    a('s_mov_b64 exec, -1')
    if P.stamp == 2:
        a(f'v_writelane_b32 v{vMAX}, s{sL}, 0')
        a(f'v_mbcnt_lo_u32_b32 v{vE}, -1, 0'); a(f'v_mbcnt_hi_u32_b32 v{vE}, -1, v{vE}'); a(f'v_lshlrev_b32 v{vE}, 2, v{vE}')
        a('s_lshl_b32 s3, s2, 2'); a(f's_add_u32 s3, s3, s{sWAVE}'); a('s_lshl_b32 s3, s3, 8'); a(f's_add_u32 s3, s3, {WS_STAMP + 65536}')
        a(f's_cmp_eq_u32 s{sLNEXT}, 0'); a('s_cselect_b32 s56, 128, 0'); a('s_add_u32 s3, s3, s56')
        a('s_mov_b32 exec_hi, 0')
        a(f'buffer_store_dword v{vMAX}, v{vE}, {srdn(SW)}, s3 offen')
        a('s_mov_b64 exec, -1')
    for x in baddr: a(x)
    a(f'v_and_b32 v{vE+8}, 16, v{vBE0}')
    a(f'v_bfe_u32 v{vE+9}, v{vINFO}, 22, 2')
    a(f'v_lshlrev_b32 v{vMAX}, 2, v{vE+8}')
    a(f'v_cmp_ne_u32 s[58:59], 0, v{vE+9}')
    a(f'v_cmp_ne_u32 s[60:61], 3, v{vE+9}')
    a(f'v_cmp_ne_u32 s[62:63], 0, v{vDEG}')
    a(f'v_mad_u32_u16 v{vINFO}, v{vINFO}, s{s128}, v{vMAX}')
    a(f'v_cvt_f32_u32 v{vDEG}, v{vDEG}')
    a(f'v_lshlrev_b32 v{vMAX}, 3, v{vE+8}')
    a(f'v_lshlrev_b32 v{vE+8}, 4, v{vE+8}')
    a(f's_mov_b32 s3, {f32(2.0**120)}')
    for i in range(16):
        acc = R('v', vE + 2*(i & 1), 2)
        if i < 2: a(f'v_pk_mul_f32 {acc}, {R("v", vD+4*i, 2)}, {R("v", vD+4*i+2, 2)}')
        else: a(f'v_pk_fma_f32 {acc}, {R("v", vD+4*i, 2)}, {R("v", vD+4*i+2, 2)}, {acc}')
    a(f's_cmp_eq_u32 s{sLNEXT}, 0'); a('s_cbranch_scc1 L_noq')
    for x in bread: a(x)
    for i in range(16): a(f'ds_read_b128 {R("v", vQ+4*i, 4)}, v{vE+8} offset:{B1T + 16*i}')
    a.label('L_noq')
    a(f'v_pk_add_f32 {R("v", vE, 2)}, {R("v", vE, 2)}, {R("v", vE+2, 2)}')
    def g3(c, i):
        u = 2*c + (i >> 1); dt = i & 1
        acc = R('v', vY + 16*dt, 16)
        return mfma(acc, R('a', aW2 + (dt*8+u)*4, 4), R('v', vE + 8*(c & 1) + 4*(i >> 1), 4), acc if u else '0')
    for c in range(4):
        for q in range(4):
            if c: a(g3(c-1, q))
            if c == 2:
                for i in (2*q, 2*q+1): a(f'ds_read_b128 {R("v", vD+4*i, 4)}, v{vMAX} offset:{B2T + 16*i}')
            for i in range(4): a(f'v_rcp_f32 v{vD+16*c+4*q+i}, v{vD+16*c+4*q+i}')
            if (c, q) == (0, 0): a(f'v_add_f32 v{vE}, v{vE}, v{vE+1}')
            if (c, q) == (0, 1): a(f'v_cmp_nge_f32 s[56:57], s3, v{vE}')
        if c == 0:
            a(f's_cmp_eq_u32 s{sLNEXT}, 0'); a('s_cbranch_scc1 L_nopf')
            for x in [m0x] + xaddr + [eaddr, 's_waitcnt lgkmcnt(0)'] + dmax + [m0e, ell_read[0], dmae, ell_read[1]] + jump + ell_adv + adv + baddr: a(x)
            a.label('L_nopf')
        if c == 1:
            a(f'v_lshrrev_b32 v{vN}, 3, v{vBE0}')
        if c == 2:
            a(f'v_and_b32 v{vN}, -4, v{vN}')
        if c == 3:
            a(f'v_add_u32 v{vN}, s{sQROW}, v{vN}')
        a('.p2align 3')
        for p in range(8):
            nn, dd = R('v', vN+16*c+2*p, 2), R('v', vD+16*c+2*p, 2)
            a(f'v_pk_mul_f32 {nn}, {nn}, {dd}')
        for p in range(8):
            a(f'v_cvt_pk_bf16_f32 v{vE+8*(c&1)+p}, v{vN+16*c+2*p}, v{vN+16*c+2*p+1}')
    for q in range(4):
        a(g3(3, q))
        if q == 0:
            a('s_waitcnt lgkmcnt(0)')
            a(f'ds_read_b32 v{vN+48}, v{vN} offset:{4096 - 4*XP//8}')
        if q == 1: a('s_and_b64 s[56:57], s[56:57], s[62:63]')
        if q == 2: a(f's_or_b64 s[{sBAD}:{sBAD+1}], s[{sBAD}:{sBAD+1}], s[56:57]')
        for i in range(7*q, 7*q + (7 if q < 3 else 11)): a(f'v_mul_f32 v{vD+i}, v{vD+i}, v{vDEG}')
    a(f'v_mov_b32 v{vMAX}, 0x207')
    a('s_mov_b64 exec, s[62:63]')
    a('.p2align 3')
    for p in range(16):
        yy, dd = R('v', vY+2*p, 2), R('v', vD+2*p, 2)
        a(f'v_pk_fma_f32 {dd}, {yy}, s[{sLN2}:{sLN2+1}], {dd}')
    a(f'v_cmp_class_f32 vcc, v{vD}, v{vMAX}')
    dpp = [f'v_add_f32_dpp v{vD+i}, v{vD+i}, v{vD+i} quad_perm:[1,0,3,2] row_mask:0xf bank_mask:0xf' for i in range(32)]
    cvt = [f'v_cvt_pk_bf16_f32 v{vE+p}, v{vD+2*p}, v{vD+2*p+1}' for p in range(16)]
    sto = [f'buffer_store_dwordx4 {R("v", vE+4*i, 4)}, v{vINFO}, {srdn(SO)}, 0 offen offset:{16*i}{P.pol_out}' for i in range(4)]
    a(f's_or_b64 s[{sBAD}:{sBAD+1}], s[{sBAD}:{sBAD+1}], vcc')
    a(f's_cmp_eq_u32 s{sLNEXT}, 0'); a('s_cbranch_scc1 L_last')
    G = [['s_mov_b64 exec, s[58:59]'] + dpp[:4]] + [dpp[4*i:4*i+4] for i in range(1, 8)]
    G += [['s_mov_b64 exec, s[60:61]'] + cvt[:4], cvt[4:8], cvt[8:12], cvt[12:], sto[:2], sto[2:], ['s_mov_b64 exec, -1']]
    G += [['s_waitcnt lgkmcnt(0)', f'v_mov_b32 v{vINFO}, v{vN+48}'], [f's_mov_b32 s{sL}, s{sLNEXT}'], [f's_mov_b32 s{sLNEXT}, 0'], ['s_mov_b32 s55, 0'], ['s_nop 0'], []]
    M = [qm(c, k, aQB) for c in range(3) for k in range(4)] + [m1(0, k, vN, vQ) for k in range(5)] + [qm(3, k, aQB) for k in range(4)]
    assert len(G) == len(M)
    for m, g in zip(M, G):
        a(m)
        for x in g: a(x)
    a('s_branch L_first')
    a.label('L_last')
    a('s_mov_b64 exec, s[58:59]')
    for x in dpp: a(x)
    a('s_mov_b64 exec, s[60:61]')
    for x in cvt[:8] + sto[:2] + cvt[8:] + sto[2:]: a(x)
    a('s_mov_b64 exec, -1')
    if P.stamp:
        a('s_waitcnt vmcnt(0)'); stamp(12); stamp(13, True)
        for i in range(14): a(f'v_writelane_b32 v1, s{88+i}, {i}')
        a(f'v_writelane_b32 v1, s{sCNT}, 14')
        a('s_getreg_b32 s3, hwreg(HW_REG_XCC_ID, 0, 4)'); a('v_writelane_b32 v1, s3, 15')
        a('v_mbcnt_lo_u32_b32 v2, -1, 0'); a('v_mbcnt_hi_u32_b32 v2, -1, v2'); a('v_lshlrev_b32 v2, 2, v2')
        a('s_lshl_b32 s3, s2, 2'); a(f's_add_u32 s3, s3, s{sWAVE}'); a('s_lshl_b32 s3, s3, 6'); a(f's_add_u32 s3, s3, {WS_STAMP}')
        a('s_mov_b64 exec, 0xffff')
        a(f'buffer_store_dword v1, v2, {srdn(SW)}, s3 offen')
        a('s_mov_b64 exec, -1')
    a(f's_cmp_eq_u64 s[{sBAD}:{sBAD+1}], 0')
    a('v_mov_b32 v1, 0'); a('v_mov_b32 v2, 1')
    a('s_cbranch_scc1 L_nobad')
    a(f'ds_write_b32 v1, v2 offset:{FLAG}')
    a.label('L_nobad')
    a('s_waitcnt lgkmcnt(0)')
    a('s_barrier')
    a(f'ds_read_b32 v2, v1 offset:{FLAG}')
    a('s_waitcnt lgkmcnt(0)')
    a('v_readfirstlane_b32 s3, v2')
    a('s_cmp_lg_u32 s3, 0'); a('s_cbranch_scc1 L_slow')
    if P.diag:
        if P.diagx:
            a('s_getreg_b32 s3, hwreg(HW_REG_XCC_ID, 0, 4)'); a('s_xor_b32 s3, s3, s2'); a(f's_and_b32 s3, s3, {P.diagx}'); a('s_cbranch_scc0 L_end')
        a.label('L_diag')
        a('s_memrealtime s[86:87]'); a('s_waitcnt lgkmcnt(0)')
        a(f's_sub_u32 s86, s86, s{sTAG}'); a(f's_cmp_lt_u32 s86, {P.diag}'); a('s_cbranch_scc1 L_diag')
    a.label('L_end')
    a('s_endpgm')

    if P.thr:
        a.label('L_strict'); a(f's_waitcnt vmcnt({P.svm})'); a('s_branch L_back')
    for b, lo, hi in retry:
        a.label(f'L_retry{b}')
        for i in range(lo, hi): rec(i)
        a('s_waitcnt vmcnt(0)')
        a(f's_sub_u32 s{sCNT}, s{sCNT}, 1')
        a(f's_cbranch_scc0 L_chk{b}')
        a(f's_mov_b32 s{sSLOW}, 1')
        a('s_branch L_skipB')
    a.label('L_prep_load')
    srd(a, SD, 52, 144 * 128 * 2); srd(a, SS, 56, 128 * 64 * 2)
    prep_offsets(a, 2, 26, 27, 28, 29)
    a(f's_sub_u32 s85, s2, {NCH}'); a('s_lshl_b32 s85, s85, 2'); a(f's_add_u32 s85, s85, s{sWAVE}')
    prep_w1_load(a, 85, 26, 32, 34, 35)
    a('s_add_u32 s3, s85, 24'); a('s_min_u32 s3, s3, 35')
    prep_w1_load(a, 3, 26, 40, 34, 35)
    a('s_add_u32 s3, s85, 28'); a('s_max_u32 s3, s3, 36')
    prep_w2_load(a, 3, 27, 48, 34, 35)
    a('s_branch L_setup')
    a.label('L_prep_store')
    a('s_waitcnt vmcnt(0)')
    tagload()
    prep_w1_pack(a, 32); prep_w1_pack(a, 40); prep_w2_pack(a, 48)
    for add, lim, vd in ((0, None, 32), (24, 's_min_u32 s3, s3, 35', 40), (28, 's_max_u32 s3, s3, 36', 48)):
        a(f's_add_u32 s3, s85, {add}')
        if lim: a(lim)
        a('s_lshl_b32 s3, s3, 10'); a(f's_add_u32 s3, s3, {WS_W}')
        a(f'buffer_store_dwordx4 {R("v", vd, 4)}, v9, {srdn(SW)}, s3 offen sc1')
    a('v_lshlrev_b32 v10, 16, v10')
    a('v_mul_f32 v10, s34, v10')
    a(f'ds_write_b32 v15, v10 offset:{B1T}')
    a(f'ds_write_b32 v15, v11 offset:{TT}')
    for i in range(4): a(f'v_mov_b32 v{26+i}, 0'); a(f'v_mov_b32 v{4+i}, 0')
    gettag('L_ptag2', first_issued=True)
    a('s_barrier')
    pubrow('L_norow2')
    tload()
    if not P.probe: wload()
    for x in init2: a(x)
    a('s_waitcnt vmcnt(0)')
    a('s_branch L_consume')

    a.label('L_slow')
    a('s_mov_b64 exec, -1')
    a('s_waitcnt vmcnt(0) lgkmcnt(0)')
    a('s_load_dwordx2 s[52:53], s[0:1], 32')
    a('s_load_dwordx2 s[56:57], s[0:1], 48')
    a('s_load_dwordx4 s[8:11], s[0:1], 16')
    a('s_barrier')
    vL, vS, vH, vT0, vT1, vOA, vD4 = 240, 241, 242, 244, 245, 246, 252
    a(f'v_mbcnt_lo_u32_b32 v{vL}, -1, 0'); a(f'v_mbcnt_hi_u32_b32 v{vL}, -1, v{vL}')
    a(f'v_and_b32 v{vS}, 31, v{vL}')
    a(f'v_lshrrev_b32 v{vH}, 5, v{vL}')
    a(f's_lshl_b32 s3, s{sWAVE}, 10')
    a(f'v_lshl_add_u32 v4, v{vL}, 4, s3')
    for i in range(4): a(f'v_mov_b32 v{i}, 0')
    for i in range(13): a(f'ds_write_b128 v4, v[0:3] offset:{OACC + 4096*i}')
    a('s_waitcnt lgkmcnt(0)')
    srd(a, SD, 52, 144 * 128 * 2); srd(a, SS, 56, 128 * 64 * 2)
    prep_offsets(a, vL, 26, 27, 28, 29)
    a(f'v_add_u32 v4, {WST}, v4')
    a(f's_mov_b32 s85, s{sWAVE}')
    a.label('L_s_w1')
    prep_w1_load(a, 85, 26, 32, 34, 35)
    a('s_waitcnt vmcnt(0)')
    prep_w1_pack(a, 32)
    a('ds_write_b128 v4, v[32:35]')
    a('v_add_u32 v4, 4096, v4')
    a('s_add_u32 s85, s85, 4'); a('s_waitcnt lgkmcnt(0)'); a('s_cmp_lt_u32 s85, 36'); a('s_cbranch_scc1 L_s_w1')
    a.label('L_s_w2')
    prep_w2_load(a, 85, 27, 32, 34, 35)
    a('s_waitcnt vmcnt(0)')
    prep_w2_pack(a, 32)
    a('ds_write_b128 v4, v[32:35]')
    a('v_add_u32 v4, 4096, v4')
    a('s_add_u32 s85, s85, 4'); a('s_waitcnt lgkmcnt(0)'); a('s_cmp_lt_u32 s85, 52'); a('s_cbranch_scc1 L_s_w2')
    a('s_barrier')
    a(f'v_lshlrev_b32 v4, 4, v{vL}'); a(f'v_add_u32 v4, {WST}, v4')
    for i in range(52): a(f'ds_read_b128 {R("a", 4*i, 4)}, v4 offset:{1024*i}')
    srd(a, SD, 10, E * 4); srd(a, SS, 8, E * 4)
    sE0, sJj = 56, 57
    a(f's_lshl_b32 s{sE0}, s{sWAVE}, 9')
    a(f'v_lshlrev_b32 v243, 4, v{vS}')
    a.label('L_s_blk')
    a(f'buffer_load_dwordx4 {R("v", vD4, 4)}, v243, {srdn(SD)}, s{sE0} offen')
    a(f's_mov_b32 s{sJj}, 0')
    a('s_waitcnt vmcnt(0)')
    a.label('L_s_sub')
    a(f'v_subrev_u32 v248, s{sNB0}, v{vD4}')
    a(f'v_cmp_gt_u32 s[60:61], s{sNNODE}, v248')
    a('s_cmp_eq_u64 s[60:61], 0'); a('s_cbranch_scc1 L_s_next')
    a(f's_add_u32 s3, s{sE0}, s{sJj}')
    a(f'buffer_load_dword v{vT0}, v243, {srdn(SS)}, s3 offen')
    a(f'v_lshlrev_b32 v247, 8, v{vH}')
    for i in range(16): a(f'ds_read_b128 {R("v", vQ+4*i, 4)}, v247 offset:{B1T + 16*i}')
    a(f'v_lshlrev_b32 v247, 4, v{vH}')
    a(f'v_add_lshl_u32 v{vT1}, v243, s3, 3')
    a(f'v_add_u32 v{vT1}, v{vT1}, v247')
    a(f'v_lshl_add_u32 v249, v{vD4}, 7, v247')
    a(f'v_mul_u32_u24 v{vOA}, 260, v248')
    a(f'v_lshl_add_u32 v{vOA}, v{vH}, 7, v{vOA}')
    a('s_waitcnt vmcnt(0)')
    a(f'v_lshl_add_u32 v{vT0}, v{vT0}, 7, v247')
    a('s_mov_b64 exec, s[60:61]')
    for k in range(4): a(f'buffer_load_dwordx4 {R("a", aBX+4*k, 4)}, v{vT0}, {srdn(SX)}, s{sXO} offen offset:{32*k}')
    a(f'buffer_load_dwordx4 {R("a", aBE, 4)}, v{vT1}, {srdn(SE)}, 0 offen')
    for k in range(4): a(f'buffer_load_dwordx4 {R("v", vE+4*k, 4)}, v249, {srdn(SX)}, s{sXO} offen offset:{32*k}')
    a('s_waitcnt vmcnt(0) lgkmcnt(0)')
    for c in range(4):
        q = R('v', vQ+16*c, 16)
        for k in range(4): a(mfma(q, R('a', aW1B + (c*4+k)*4, 4), R('v', vE+4*k, 4), q))
        for k in range(5): a(m1(c, k, vQ+16*c, vQ+16*c))
    for i in range(64): a(f'v_exp_f32 v{vD+i}, v{vQ+i}')
    for i in range(64): a(f'v_add_f32 v{vD+i}, 1.0, v{vD+i}')
    for i in range(64): a(f'v_rcp_f32 v{vD+i}, v{vD+i}')
    for i in range(64): a(f'v_mul_f32 v{vD+i}, v{vD+i}, v{vQ+i}')
    for i in range(32): a(f'v_cvt_pk_bf16_f32 v{vN+i}, v{vD+2*i}, v{vD+2*i+1}')
    a(f'v_lshlrev_b32 v247, 7, v{vH}')
    for i in range(8): a(f'ds_read_b128 {R("v", vQ+4*i, 4)}, v247 offset:{B2T + 16*i}')
    for dt in range(2):
        acc = R('v', vY + 16*dt, 16)
        for u in range(8): a(mfma(acc, R('a', aW2 + (dt*8+u)*4, 4), R('v', vN + 4*u, 4), acc if u else '0'))
    a('s_waitcnt lgkmcnt(0)')
    for i in range(32): a(f'v_fma_f32 v{vY+i}, v{vY+i}, s{sLN2}, v{vQ+i}')
    for i in range(32): a(f'ds_add_f32 v{vOA}, v{vY+i} offset:{OACC + 4*i}')
    a('s_mov_b64 exec, -1')
    a('s_waitcnt lgkmcnt(0)')
    a.label('L_s_next')
    for i in range(3): a(f'v_mov_b32 v{vD4+i}, v{vD4+i+1}')
    a(f's_add_u32 s{sJj}, s{sJj}, 4')
    a(f's_cmp_lt_u32 s{sJj}, 16'); a('s_cbranch_scc1 L_s_sub')
    a(f's_add_u32 s{sE0}, s{sE0}, 2048')
    a(f's_cmp_lt_u32 s{sE0}, {E*4}'); a('s_cbranch_scc1 L_s_blk')
    a('s_barrier')
    a(f's_lshl_b32 s3, s{sWAVE}, 1')
    a(f'v_add_u32 v1, s3, v{vH}')
    a.label('L_s_out')
    a(f'v_cmp_gt_u32 vcc, s{sNNODE}, v1')
    a('v_mul_u32_u24 v4, 260, v1')
    a(f'v_lshl_add_u32 v4, v{vS}, 3, v4')
    a(f'v_add_u32 v4, {OACC}, v4')
    a(f'v_add_u32 v5, s{sNB0}, v1')
    a('v_lshlrev_b32 v5, 7, v5')
    a(f'v_lshl_add_u32 v5, v{vS}, 2, v5')
    a('s_and_b64 exec, exec, vcc')
    a('s_cbranch_execz L_s_end')
    a('ds_read2_b32 v[2:3], v4 offset0:0 offset1:1')
    a('s_waitcnt lgkmcnt(0)')
    a('v_cvt_pk_bf16_f32 v2, v2, v3')
    a(f'buffer_store_dword v2, v5, {srdn(SO)}, 0 offen')
    a('v_add_u32 v1, 8, v1')
    a('s_branch L_s_out')
    a.label('L_s_end')
    a('s_endpgm')
    a('.p2align 7')
    a.raw('.type L_table,@object')
    a.label('L_table')
    T = pattern_table(BN0) + pattern_table(BN1)
    for i in range(0, 512, 8): a.raw('.long ' + ', '.join(hex(x) for x in T[i:i+8]))
    a.raw('.size L_table, 2048')
    return a

if __name__ == '__main__':
    for kv in sys.argv[2:]:
        k, v = kv.split('=')
        cur = getattr(P, k)
        setattr(P, k, int(v) if isinstance(cur, int) else (' ' + v.replace('+', ' ') if v else ''))
    k = gen()
    for p in check_all_edges(k): print('HAZARD on branch edge', p, file=sys.stderr)
    print('instrs', sum(1 for x in k.items if not isinstance(x, str)), 'auto nops', k.nops, file=sys.stderr)
    out = open('cdna_kernels/' + NAME + '.s.ref').read().split('; Override launch')[0]
    out += f'; @launch grid=({NB},1,1) block=(256,1,1) lds={lds_bytes()}\n'
    out += '.amdgcn_target "amdgcn-amd-amdhsa--gfx950"\n.text\n'
    out += f'.globl {NAME}_kernel\n.type {NAME}_kernel,@function\n' + k.text()
    out += f'''.section .rodata,"a"
.p2align 6
.amdhsa_kernel {NAME}_kernel
  .amdhsa_next_free_vgpr 512
  .amdhsa_next_free_sgpr 102
  .amdhsa_accum_offset 256
  .amdhsa_group_segment_fixed_size 0
  .amdhsa_kernarg_size 88
  .amdhsa_user_sgpr_count 2
  .amdhsa_user_sgpr_kernarg_segment_ptr 1
  .amdhsa_system_sgpr_workgroup_id_x 1
.end_amdhsa_kernel
'''
    open(sys.argv[1], 'w').write(out)
```

```python
import sys, struct
from asmlib import Asm, Ins, check_all_edges

NAME = 'standalone__edge_featured_mpnn_mpnn__graph'
N, E = 50000, 800000
NB = 256
NCH, CH = 250, 3200
WS_REC, WS_TAB, WS_W = 0, 8 << 20, 9 << 20
WS_SIZE = 10 << 20
WS_STAMP = (9 << 20) + (512 << 10)
DUMMY = 0x4000FFFF
def f32(x): return struct.unpack('<I', struct.pack('<f', x))[0]
NLOG2E = f32(-1.4426950408889634)
NLN2 = f32(-0.6931471805599453)

class P:
    depth = 2
    stamp = 0
    efrac = 100
    xfrac = 100
    limit = 3000
    lvs = 1
    lv = 1
    tk = 2
    tp = 3
    pc = 2
    diagx = 0
    bn0 = 199
    par = 0
    stag = 1
    st1 = 0
    tpos = 1
    probe = 1
    tagst = 0
    wpos = 1
    ninit = 6
    pol_st = ' sc1'
    xpre = ''
    svm = 4
    thr = 9
    xpos = 4
    two = 0
    classes = 4
    codepre = 1
    estr = 128
    srcpos = 8
    epre = ''
    diag = 0
    force = 0
    pol_in = ' nt'
    pol_e = ''
    pol_x = ''
    pol_out = ''

CNT, HB, HIST, FLAG = 0, 4096, 5120, 5376
B1T, B2T, TT = 6144, 6656, 7168
START = TT
EX, EE = 8192, 40960
RING = 73728
NSLOT = 15
MAP = RING
STAGE = MAP + 16384
LDS_TOTAL = 163840
WST = LDS_TOTAL - 52 * 1024
XP = 1056
SLOT = 4 * XP + 1024
OACC = 8192
def lds_bytes(): return LDS_TOTAL

PATTERNS = {
 191: [(0,0,'H',1),(2,0,'H',2),(3,0,'H',3),(3,1,'H',16),(2,1,'H',13),(0,0,'S',30),(1,1,'H',14),(1,0,'S',32),(2,0,'S',28),(3,0,'S',26),(0,1,'H',16),(2,1,'S',6),(1,1,'S',4)],
 192: [(0,0,'H',1),(2,0,'H',1),(3,0,'H',5),(3,1,'H',15),(2,1,'H',12),(0,0,'S',30),(1,1,'H',14),(1,0,'S',32),(2,0,'S',30),(3,0,'S',22),(0,1,'H',16),(3,1,'S',2),(2,1,'S',8),(1,1,'S',4)],
 193: [(0,0,'H',1),(2,0,'H',2),(3,0,'H',3),(3,1,'H',16),(2,1,'H',11),(0,0,'S',30),(1,1,'H',14),(1,0,'S',32),(2,0,'S',28),(3,0,'S',26),(0,1,'H',16),(2,1,'S',10),(1,1,'S',4)],
 194: [(0,0,'H',1),(2,0,'H',2),(3,0,'H',3),(3,1,'H',16),(2,1,'H',10),(0,0,'S',30),(1,1,'H',14),(1,0,'S',32),(2,0,'S',28),(3,0,'S',26),(0,1,'H',16),(2,1,'S',12),(1,1,'S',4)],
 195: [(0,0,'H',1),(2,0,'H',2),(3,0,'H',2),(3,1,'H',16),(2,1,'H',10),(0,0,'S',30),(1,1,'H',14),(1,0,'S',32),(2,0,'S',28),(3,0,'S',28),(0,1,'H',16),(2,1,'S',12),(1,1,'S',4)],
 196: [(0,0,'H',1),(2,0,'H',2),(3,0,'H',2),(3,1,'H',16),(2,1,'H',9),(0,0,'S',30),(1,1,'H',14),(1,0,'S',32),(2,0,'S',28),(3,0,'S',28),(0,1,'H',16),(2,1,'S',14),(1,1,'S',4)],
 197: [(0,0,'H',1),(2,0,'H',2),(3,0,'H',2),(3,1,'H',16),(2,1,'H',9),(0,0,'S',30),(1,1,'H',13),(1,0,'S',32),(2,0,'S',28),(3,0,'S',28),(0,1,'H',16),(2,1,'S',14),(1,1,'S',6)],
 198: [(0,0,'H',1),(2,0,'H',4),(3,1,'H',12),(2,1,'H',12),(0,0,'S',30),(1,1,'H',13),(1,0,'S',32),(2,0,'S',24),(3,0,'S',32),(0,1,'H',16),(3,1,'S',8),(2,1,'S',8),(1,1,'S',6)],
 199: [(1,0,'H',1),(2,0,'H',1),(3,0,'H',3),(3,1,'H',12),(2,1,'H',11),(0,0,'S',32),(1,1,'H',13),(1,0,'S',30),(2,0,'S',30),(3,0,'S',26),(0,1,'H',16),(3,1,'S',8),(2,1,'S',10),(1,1,'S',6)],
 200: [(0,0,'H',1),(2,0,'H',1),(3,0,'H',2),(3,1,'H',12),(2,1,'H',11),(0,0,'S',30),(1,1,'H',13),(1,0,'S',32),(2,0,'S',30),(3,0,'S',28),(3,1,'S',8),(0,1,'H',16),(2,1,'S',10),(1,1,'S',6)],
}
def pattern_table(BN):
    free = {(w, ph): list(range(32)) for w in range(4) for ph in range(2)}
    T = [None] * BN; p = 0; segs = []
    for w, ph, t, n in PATTERNS[BN]: segs.append((w, ph, t, p, n)); p += n
    assert p == BN
    for t0 in 'HS':
        for w, ph, t, p0, n in segs:
            if t != t0: continue
            for i in range(n):
                pos = free[(w, ph)].pop(0)
                if t == 'H': assert pos < 16; free[(w, ph)].remove(pos + 16)
                T[p0 + i] = (((w * 2 + ph) * 4096 + pos * 4 + 128) << 16) | (64 if t == 'H' else 128)
    assert all(not v for v in free.values())
    return T + [128] * (256 - BN)
def bucket_map():
    b0, b1 = P.bn0, 391 - P.bn0
    A = 128 * b0; M0 = -(-(1 << 24) // b0); M1 = -(-(1 << 24) // b1)
    for dn in range(N):
        f = dn * M0 + max(dn - A, 0) * (M1 - M0)
        assert f < 1 << 32 and f >> 24 == (dn // b0 if dn < A else 128 + (dn - A) // b1), dn
    return b0, b1, A, M0, M1

vN, vD, vQ, vY, vE = 0, 64, 128, 192, 224
vEX, vEE, vCX, vAX, vAE, vCE, vBX0, vBE0, vBX, vBE, vINFO, vDEG, vMAX = 240, 244, 245, 246, 247, 248, 249, 250, 251, 252, 253, 254, 255
aW1A, aW1C, aW1B, aW2, aBX, aBE, aJUNK = 0, 64, 80, 144, 208, 224, 228
aQB, aINFO = 232, 229
SX, SE, SW, SO, SD, SS = 12, 16, 20, 24, 68, 72
sB, sNB0, sNNODE, sWAVE, sMAP, sCOL = 28, 29, 30, 31, 32, 33
sXO = 36
s128, sSLOT, sRING0, sRING1, sT, sL, sLNEXT, sQROW = 40, 41, 42, 43, 44, 45, 46, 47
sLN2, sBAD = 48, 50
sJ, sSUM, sOTH = 52, 53, 54
sINC, sJUMP, sSTEP = 4, 6, 8
sSLOW, sCNT = 66, 67
mLO, mBN, mNN = 's[76:77]', 's[78:79]', 's[80:81]'
sTAG, sTAG8, sTAGH = 82, 83, 84
def R(p, b, n): return f'{p}[{b}:{b+n-1}]'
def srdn(s): return f's[{s}:{s+3}]'
SDWA = 'dst_sel:DWORD dst_unused:UNUSED_PAD src0_sel:DWORD src1_sel:'

def srd(a, d, lo, size):
    a(f's_mov_b32 s{d}, s{lo}'); a(f's_and_b32 s{d+1}, s{lo+1}, 0xffff')
    a(f's_mov_b32 s{d+2}, {size}'); a(f's_mov_b32 s{d+3}, 0x20000')
def wave_scan(a, v, fill=()):
    fill = list(fill)
    steps = [f'row_shr:{sh} row_mask:0xf bank_mask:0xf bound_ctrl:0' for sh in (1, 2, 4, 8)]
    steps += ['row_bcast:15 row_mask:0xa bank_mask:0xf', 'row_bcast:31 row_mask:0xc bank_mask:0xf']
    for s in steps:
        for x in fill[:2]: a(x)
        fill = fill[2:]
        a(f'v_add_u32_dpp v{v}, v{v}, v{v} {s}')
    for x in fill: a(x)
def mfma(d, A, B, C): return f'v_mfma_f32_32x32x16_bf16 {d}, {A}, {B}, {C}'
def m1(c, k, dst, first_c):
    A = R('a', aW1A + (c * 4 + k) * 4, 4) if k < 4 else R('a', aW1C + c * 4, 4)
    B = R('a', aBX + k * 4, 4) if k < 4 else R('a', aBE, 4)
    return mfma(R('v', dst, 16), A, B, R('v', first_c if k == 0 else dst, 16))
def isize(x):
    if x.endswith(':'): return 0
    op = x.split()[0]
    if op.startswith(('v_mfma', 'v_pk_', 'buffer_', 'ds_', 'global_', 'v_mad_', 'v_max3', 'v_cvt_pk', 'v_lshl_add', 'v_lshl_or', 'v_bfe', 'v_writelane',
                      'v_readlane', 's_mem', 'v_accvgpr', 'v_mbcnt', 'v_add_lshl', 'v_or3', 'v_and_or', 'v_bfi')) or op.endswith(('_e64', '_dpp', '_sdwa')): return 8
    if op.startswith('v_cmp') and not x.split()[1].startswith('vcc'): return 8
    for t in x.replace(',', ' ').split()[1:]:
        try: v = int(t, 0)
        except ValueError: continue
        if not -16 <= v <= 64 and not op.startswith(('s_movk', 's_waitcnt', 's_nop')): return 8
    return 4
def align8(a):
    n = 0; cand = None
    for i in range(len(a.items) - 1, -1, -1):
        it = a.items[i]
        if isinstance(it, str):
            if it.startswith(('.p2align', '; aligned')): break
            continue
        n += isize(it.text)
        if cand is None and isize(it.text) == 4 and it.op in ('v_exp_f32', 'v_rcp_f32', 'v_mul_f32', 'v_add_u32', 'v_lshlrev_b32', 'v_cvt_f32_u32'): cand = i
    if n % 8:
        if cand is None: a('s_nop 0')
        else: a.items[cand] = Ins(a.items[cand].text.replace(a.items[cand].op, a.items[cand].op + '_e64', 1))
    a.raw('; aligned')

def prep_offsets(a, vl, v1, v2, t0, t1):
    a(f'v_and_b32 v{t0}, 31, v{vl}'); a(f'v_lshrrev_b32 v{t1}, 5, v{vl}')
    a(f'v_lshlrev_b32 v{v1}, 11, v{t1}'); a(f'v_lshl_add_u32 v{v1}, v{t0}, 1, v{v1}')
    a(f'v_lshlrev_b32 v{v2}, 9, v{t1}')
    a(f'v_bfe_u32 v{t1}, v{t0}, 2, 1'); a(f'v_lshl_add_u32 v{v2}, v{t1}, 6, v{v2}')
    a(f'v_and_b32 v{t1}, 3, v{t0}'); a(f'v_lshl_add_u32 v{v2}, v{t1}, 1, v{v2}')
    a(f'v_lshrrev_b32 v{t1}, 3, v{t0}'); a(f'v_lshl_add_u32 v{v2}, v{t1}, 3, v{v2}')
def prep_w1_load(a, sidx, voff, vd, s0, s1):
    a(f's_and_b32 s{s0}, s{sidx}, 3'); a(f's_lshr_b32 s{s1}, s{sidx}, 2')
    a(f's_cmp_eq_u32 s{s1}, 4')
    a(f's_cselect_b32 s{s1}, s{s0}, s{s1}'); a(f's_cselect_b32 s{s0}, 8, s{s0}')
    a(f's_lshl_b32 s{s0}, s{s0}, 12'); a(f's_lshl_b32 s{s1}, s{s1}, 6'); a(f's_add_u32 s{s0}, s{s0}, s{s1}')
    a(f's_cmp_ge_u32 s{sidx}, 20'); a(f's_cselect_b32 s{s1}, {64*256 - 5*64}, 0'); a(f's_add_u32 s{s0}, s{s0}, s{s1}')
    for j in range(8): a(f'buffer_load_ushort v{vd+j}, v{voff}, {srdn(SD)}, s{s0} offen offset:{256*j}')
def prep_w2_load(a, sidx, voff, vd, s0, s1):
    a(f's_sub_u32 s{s0}, s{sidx}, 36'); a(f's_lshr_b32 s{s1}, s{s0}, 3'); a(f's_and_b32 s{s0}, s{s0}, 7')
    a(f's_lshl_b32 s{s0}, s{s0}, 11'); a(f's_lshl_b32 s{s1}, s{s1}, 5'); a(f's_add_u32 s{s0}, s{s0}, s{s1}')
    for j in range(8): a(f'buffer_load_ushort v{vd+j}, v{voff}, {srdn(SS)}, s{s0} offen offset:{128*((j&3)+8*(j>>2))}')
def prep_w1_pack(a, vd):
    for j in range(8): a(f'v_lshlrev_b32 v{vd+j}, 16, v{vd+j}')
    for j in range(8): a(f'v_mul_f32 v{vd+j}, {NLOG2E}, v{vd+j}')
    for j in range(4): a(f'v_cvt_pk_bf16_f32 v{vd+j}, v{vd+2*j}, v{vd+2*j+1}')
def prep_w2_pack(a, vd):
    for j in range(4): a(f'v_lshl_or_b32 v{vd+j}, v{vd+2*j+1}, 16, v{vd+2*j}')

def gen():
    D = P.depth
    BN0, BN1, NA, M0, M1 = bucket_map()
    assert D == 2 and RING + 7 * SLOT <= WST and RING + 8 * SLOT <= WST + 5 * 1024
    VW = 5 * (D - 1)
    a = Asm()
    def stamp(i, real=False):
        if not P.stamp: return
        if P.stamp == 6:
            if i in (2, 3, 4): return
            if i >= 20: i -= 18
        elif i >= 20: return
        if P.stamp == 3: real = True
        if P.stamp == 4 and i not in (0, 13): return
        if P.stamp == 5:
            if i not in (0, 8, 13): return
            real = True
        a(f's_mem{"real" if real else ""}time s[86:87]'); a('s_waitcnt lgkmcnt(0)'); a(f's_mov_b32 s{88+i}, s86')
    def poll(name, load, check, first_issued=False, first_wait=None):
        a(f's_movk_i32 s{sCNT}, {P.limit}')
        if first_wait is not None:
            if first_wait: a(first_wait)
            check()
            a(f's_cbranch_scc0 {name}_ok')
        elif first_issued: a(f's_branch {name}_chk')
        a.label(name)
        load()
        a.label(name + '_chk')
        a('s_waitcnt vmcnt(0)')
        check()
        a(f's_cbranch_scc0 {name}_ok')
        a(f's_sub_u32 s{sCNT}, s{sCNT}, 1')
        a(f's_cbranch_scc0 {name}')
        a(f's_mov_b32 s{sSLOW}, 1')
        a.label(name + '_ok')

    epre = [int(ch) for ch in P.epre.strip()]
    xpre = [int(ch) for ch in P.xpre.strip()]
    def warm(pos):
        n = 0
        for i, p in enumerate(epre):
            if p != pos: continue
            a(f'v_add_u32 v124, {i*256*P.estr}, v126')
            if (i + 1) * 256 * P.estr > CH * 32: a(f'v_min_u32 v124, v124, v125')
            a(f'buffer_load_dword a{aJUNK}, v124, {srdn(SE)}, 0 offen')
            n += 1
        for i, p in enumerate(xpre):
            if p != pos: continue
            a('s_lshr_b32 s3, s2, 3'); a('s_lshl_b32 s35, s2, 2'); a('s_add_u32 s3, s3, s35'); a('s_and_b32 s3, s3, 31')
            a(f's_add_u32 s3, s3, {32*i}'); a('s_lshl_b32 s3, s3, 8')
            a('v_add_lshl_u32 v124, v0, s3, 7')
            a(f'buffer_load_dword a{aJUNK}, v124, {srdn(SX)}, s{sXO} offen')
            n += 1
        return n
    a('.p2align 8'); a.label(NAME + '_kernel')
    a(f's_cmp_ge_u32 s2, {NB}'); a('s_cbranch_scc1 L_end')
    stamp(0, True); stamp(1)
    a('s_load_dwordx8 s[4:11], s[0:1], 0')
    a('s_load_dwordx4 s[60:63], s[0:1], 64')
    a('s_load_dwordx2 s[64:65], s[0:1], 80')
    a('s_load_dwordx8 s[52:59], s[0:1], 32')
    a(f's_memrealtime s[{sTAG}:{sTAG+1}]')
    a('s_getpc_b64 s[14:15]')
    a.label('L_pc')
    a('v_lshlrev_b32 v15, 2, v0')
    if P.codepre:
        a('v_lshlrev_b32 v3, 7, v0')
        a('v_min_u32 v3, L_slow-L_pc, v3')
        a(f'global_load_dword a{aJUNK}, v3, s[14:15]')
    a('s_add_u32 s14, s14, L_table-L_pc')
    a('s_addc_u32 s15, s15, 0')
    a(f's_xor_b32 s85, s2, {P.par}'); a('s_and_b32 s85, s85, 1')
    a('v_lshl_add_u32 v3, s85, 10, v15')
    a('global_load_dword v11, v3, s[14:15]')
    a('v_lshrrev_b32 v1, 6, v0')
    a('v_and_b32 v2, 63, v0')
    a(f'v_readfirstlane_b32 s{sWAVE}, v1')
    a('v_lshlrev_b32 v21, 4, v0')
    for i in range(4): a(f'v_mov_b32 v{4+i}, 0')
    a('ds_write_b128 v21, v[4:7]')
    a('v_lshlrev_b32 v3, 3, v0')
    a(f'ds_write_b64 v3, v[4:5] offset:{HB}')
    a('v_mov_b32 v12, 0')
    a('v_mov_b32 v13, 1')
    a('v_lshlrev_b32 v9, 4, v2')
    a('v_cmp_gt_u32 vcc, 128, v0')
    a(f's_mul_i32 s3, s2, {CH*4}')
    for s in (SD, SS): a(f's_mov_b32 s{s+2}, {E*4}'); a(f's_mov_b32 s{s+3}, 0x20000')
    a(f's_mov_b64 {mLO}, vcc')
    a(f's_mov_b32 s{sSLOW}, 0')
    a('s_waitcnt lgkmcnt(0)')
    vDs, vSr, vB, vRk, vRec = 32, 48, 64, 80, 96
    a(f's_mov_b32 s{SD}, s10'); a(f's_and_b32 s{SD+1}, s11, 0xffff')
    a(f's_mov_b32 s{SS}, s8'); a(f's_and_b32 s{SS+1}, s9, 0xffff')
    for i in range(4): a(f's_add_u32 s{8+i}, s3, {4096*i}')
    a(f's_lshr_b32 s37, s2, {0 if P.tagst else 3}')
    a(f's_or_b32 s37, s37, s{sWAVE}')
    a('s_cbranch_scc1 L_notag')
    if P.force != 1:
        a(f's_or_b32 s{sTAG}, s{sTAG}, 1')
        a(f'v_mov_b32 v4, s{sTAG}'); a(f'v_mov_b32 v5, s{sTAG+1}')
        a('s_mov_b64 exec, 1')
        if P.tagst: a('global_store_dwordx2 v12, v[4:5], s[62:63] sc1')
        else: a('global_atomic_cmpswap_x2 v12, v[4:7], s[62:63] sc1')
        a('s_mov_b64 exec, -1')
    a.label('L_notag')
    a(f's_cmp_ge_u32 s2, {NCH}'); a('s_cbranch_scc1 L_prep_load')
    def edge_loads(srdn_, vb, so):
        for i in range(3): a(f'buffer_load_dwordx4 {R("v", vb+4*i, 4)}, v21, {srdn(srdn_)}, s{so+i} offen{P.pol_in}')
        a(f'buffer_load_dword v{vb+12}, v15, {srdn(srdn_)}, s{so+3} offen{P.pol_in}')
    edge_loads(SD, vDs, 8)
    a.label('L_setup')
    a('v_and_b32 v10, 3, v0')
    a('v_bfe_u32 v16, v0, 2, 4')
    a('v_lshl_add_u32 v10, v16, 3, v10')
    a('v_lshl_add_u32 v10, v1, 2, v10')
    a('v_lshrrev_b32 v16, 1, v0'); a('v_and_b32 v16, 32, v16'); a('v_xor_b32 v16, v16, v2')
    a(f'v_cndmask_b32 v10, v16, v10, {mLO}')
    a('v_lshlrev_b32 v10, 1, v10')
    a(f's_cmp_lt_u32 s{sWAVE}, 2')
    a('s_cselect_b64 s[54:55], s[54:55], s[58:59]')
    a(f's_cselect_b32 s34, {NLOG2E}, 1.0')
    a('global_load_ushort v10, v10, s[54:55]')
    for i in range(4): a(f'v_mov_b32 v{128+i}, {DUMMY}')
    a(f'v_add_u32 v132, {EX + 16384}, v21')
    init = [f'ds_write_b128 v132, v[128:131] offset:{4096*i}' for i in range(15, -1, -1)]
    init += [f'ds_write_b128 v21, v[128:131] offset:{EX + 4096*i}' for i in range(4)]
    assert P.ninit >= 4
    init, init2 = init[:P.ninit], init[P.ninit:]
    C = []
    C += [f's_bfe_u32 s{sB}, s2, 0x20001', f's_lshl_b32 s{sB}, s{sB}, 5', 's_lshr_b32 s3, s2, 3', f's_add_u32 s{sB}, s{sB}, s3',
          f's_bitcmp{1 - P.par}_b32 s2, 0', f's_cselect_b32 s59, {BN1}, s38', f's_cselect_b32 s3, {NA}, 0', 's_cselect_b32 s35, 128, 0',
          f's_mul_i32 s{sNB0}, s{sB}, s59', f's_add_u32 s{sNB0}, s{sNB0}, s3', f's_add_u32 s{sB}, s{sB}, s35',
          f's_sub_u32 s{sNNODE}, {N}, s{sNB0}', f's_min_u32 s{sNNODE}, s{sNNODE}, s59',
          f's_lshl_b32 s{sCOL}, s{sB}, 3', f's_add_u32 s{sCOL}, s{sCOL}, {WS_TAB}']
    a(f's_movk_i32 s38, {BN0}')
    for x in C: a(x)
    C = []
    C += [f's_sub_u32 s{SX}, s4, {3*XP}', f's_subb_u32 s{SX+1}, s5, 0', f's_and_b32 s{SX+1}, s{SX+1}, 0xffff',
          f's_mov_b32 s{SX+2}, {(N*128 + 3*XP) * P.xfrac // 100}', f's_mov_b32 s{SX+3}, 0x20000']
    for d, lo, size in ((SE, 6, E * 32 * P.efrac // 100), (SO, 60, N * 128), (SW, 64, WS_SIZE)):
        C += [f's_mov_b32 s{d}, s{lo}', f's_and_b32 s{d+1}, s{lo+1}, 0xffff', f's_mov_b32 s{d+2}, {size}', f's_mov_b32 s{d+3}, 0x20000']
    C += [f's_movk_i32 s{sXO+j}, {(3-j)*XP}' for j in range(4)]
    C += [f's_movk_i32 s{s128}, 128', f's_mov_b32 s{sLN2}, {NLN2}', f's_mov_b32 s{sLN2+1}, {NLN2}', f's_mov_b64 s[{sBAD}:{sBAD+1}], 0']
    C += [f's_lshl_b32 s{sMAP}, s{sWAVE}, 12', f's_add_u32 s{sMAP}, s{sMAP}, {MAP}']
    C += [f's_lshl_b32 s{sQROW}, s{sWAVE}, 13', f's_add_u32 s{sQROW}, s{sQROW}, {EX}']
    C += [f's_mul_i32 s{sRING0}, s{sWAVE}, {D*SLOT}', f's_add_u32 s{sRING0}, s{sRING0}, {RING}',
          f's_mov_b32 s{sSLOT}, s{sRING0}']
    C += ['v_and_b32 v16, 7, v2', 'v_lshrrev_b32 v18, 5, v2', 'v_xor_b32 v16, v16, v18', f'v_lshlrev_b32 v{vCX}, 4, v16']
    C += ['v_and_b32 v17, 1, v2', f'v_lshlrev_b32 v{vCE}, 4, v17']
    C += ['v_bfe_u32 v16, v2, 1, 2', f'v_mul_u32_u24 v16, {XP}, v16', 'v_bfe_u32 v20, v2, 3, 2', 'v_lshl_add_u32 v16, v20, 7, v16',
          'v_lshl_add_u32 v16, v17, 9, v16', 'v_xor_b32 v20, v17, v18', f'v_lshl_add_u32 v{vBX0}, v20, 4, v16']
    C += ['v_bfe_u32 v16, v2, 1, 4', 'v_lshl_add_u32 v16, v17, 4, v16', 'v_lshlrev_b32 v16, 5, v16', 'v_lshl_add_u32 v16, v18, 4, v16',
          f'v_add_u32 v{vBE0}, {4*XP}, v16']
    C += ['v_lshrrev_b32 v16, 3, v2', f'v_lshl_add_u32 v{vAX}, v16, 4, s{sQROW}']
    C += ['v_lshrrev_b32 v16, 1, v2', f'v_lshl_add_u32 v{vAE}, v16, 2, s{sQROW}']
    C += ['v_and_b32 v16, 31, v2', 'v_lshlrev_b32 v16, 2, v16', 'v_lshl_add_u32 v16, v18, 12, v16', f'v_add_u32 v25, s{sQROW}, v16']
    C += [f'v_add_u32 v24, s{sNB0}, v0', f'v_cmp_gt_u32 {mBN}, s59, v0', f'v_cmp_gt_u32 {mNN}, s{sNNODE}, v0',
          'v_and_b32 v134, 255, v24', 'v_lshlrev_b32 v134, 4, v134',
          f's_add_u32 s3, s{sNB0}, 240', 's_and_b32 s3, s3, 255', 's_lshl_b32 s3, s3, 4', 'v_mov_b32 v135, s3']
    C += ['v_lshlrev_b32 v19, 2, v2', 'v_lshlrev_b32 v14, 3, v2', 'v_lshlrev_b32 v30, 11, v0', 'v_and_b32 v31, 31, v0', 'v_lshlrev_b32 v31, 4, v31', 'v_lshl_add_u32 v31, v0, 12, v31']
    C += ['v_min_u32 v3, 5, v2', f'v_add_u32 v3, {NCH}, v3', 'v_lshlrev_b32 v133, 11, v3']
    C += [f's_mov_b32 s55, {M0}', f's_movk_i32 s56, {M1 - M0}', 's_movk_i32 s57, 335', f'v_mov_b32 v23, {NA}',
          f's_mov_b32 s58, { {1: 0, 2: 0x80000}.get(P.classes, 0xc0000)}']
    k = 0
    while init or C:
        if init: a(init.pop(0))
        for x in C[:6]: a(x)
        C = C[6:]
        k += 1
        if k == P.srcpos:
            a(f's_cmp_ge_u32 s2, {NCH}'); a('s_cbranch_scc1 L_nosrc')
            edge_loads(SS, vSr, 8)
            a.label('L_nosrc')
    if epre:
        a(f's_mul_i32 s3, s2, {CH*32}'); a(f'v_mul_u32_u24 v126, {P.estr}, v0'); a('v_add_u32 v126, s3, v126')
        a(f's_add_u32 s3, s3, {CH*32-128}'); a('v_mov_b32 v125, s3')
    n0 = warm(0)
    a('s_waitcnt lgkmcnt(0)')
    a('s_barrier')
    tagload = lambda: a('global_load_dwordx2 v[16:17], v12, s[62:63] sc1')
    def tagcheck():
        a(f'v_readfirstlane_b32 s{sTAG}, v16'); a(f'v_readfirstlane_b32 s{sTAG8}, v17')
        a(f's_cmp_eq_u32 s{sTAG}, 0')
    a(f's_cmp_ge_u32 s2, {NCH}'); a('s_cbranch_scc1 L_prep_store')
    for b, (lo, hi) in enumerate(((0, 4), (4, 8), (8, 13)) if P.stag else ((0, 13),)):
        a(f's_waitcnt vmcnt({5 + n0 + ((3, 2, 0)[b] if P.stag else 0)})')
        if hi == 13: stamp(2); tagload()
        for i in range(lo, hi): a(f'v_mul_u32_u24 v{vB+i}, s55, v{vDs+i}')
        for i in range(lo, hi): a(f'v_sub_u32_e64 v{vRk+i}, v{vDs+i}, v23 clamp')
        for i in range(lo, hi): a(f'v_mad_u32_u24 v{vB+i}, v{vRk+i}, s56, v{vB+i}')
        for i in range(lo, hi): a(f'v_lshlrev_b32_sdwa v{vB+i}, 2, v{vB+i} {SDWA}BYTE_3')
        for i in range(lo, hi):
            if i == 12: a(f's_mov_b64 exec, {mLO}')
            a(f'ds_add_rtn_u32 v{vRk+i}, v{vB+i}, v13 offset:{HB}')
    a('s_mov_b64 exec, -1')
    for i in range(13): a(f'v_lshlrev_b32_sdwa v{vDs+i}, 20, v{vDs+i} {SDWA}BYTE_0')
    a(f's_mov_b32 s3, {STAGE // 8}')
    a('s_waitcnt lgkmcnt(0)')
    a('s_barrier')
    a(f'ds_read_b128 v[26:29], v9 offset:{HB}')
    for i in range(13): a(f'v_add_u32 v{vRk+i}, s3, v{vRk+i}')
    F = [f'v_mul_u32_u24 v{vRec+2*i}, s57, v{vSr+i}' for i in range(13)]
    F += [f'v_lshrrev_b32 v{vRec+2*i}, 4, v{vRec+2*i}' for i in range(13)]
    F += [f'v_and_or_b32 v{vRec+2*i}, v{vRec+2*i}, s58, v{vSr+i}' for i in range(13)]
    a(f's_waitcnt vmcnt({1+n0}) lgkmcnt(0)')
    a('v_add_u32 v5, v26, v27'); a('v_add_u32 v6, v5, v28'); a('v_add_u32 v7, v6, v29')
    a('v_mov_b32 v3, v7')
    wave_scan(a, 3, F[:12])
    a('v_sub_u32 v4, v3, v7'); a('v_add_u32 v7, v4, v6'); a('v_add_u32 v6, v4, v5'); a('v_add_u32 v5, v4, v26')
    a(f'ds_write_b128 v9, v[4:7] offset:{START}')
    for i in range(13): a(f'ds_read_b32 v{vB+i}, v{vB+i} offset:{START}')
    for x in F[12:]: a(x)
    def gettag(name, **kw):
        poll(name, tagload, tagcheck, **kw)
        a(f's_and_b32 s{sTAG8}, s{sTAG8}, 0xff')
        a(f's_lshl_b32 s{sTAGH}, s{sTAG}, 4')
        a(f's_and_b32 s{sTAGH}, s{sTAGH}, 0xfffff000')
    def pubrow(name):
        a(f's_sub_u32 s3, 3, s{sWAVE}'); a(f's_or_b32 s3, s3, s{sSLOW}'); a(f's_cbranch_scc1 {name}')
        if P.force == 2: a('s_cmp_eq_u32 s2, 7'); a(f's_cbranch_scc1 {name}')
        for i in range(4):
            a(f'v_lshl_or_b32 v{136+2*i}, v{26+i}, 12, v{4+i}')
            a(f'v_mov_b32 v{137+2*i}, s{sTAG}')
        for i in range(4): a(f'v_lshl_or_b32 v{136+2*i}, s{sTAG8}, 24, v{136+2*i}')
        a('s_lshl_b32 s3, s2, 11'); a(f's_add_u32 s3, s3, {WS_TAB}')
        a('v_lshlrev_b32 v3, 5, v2')
        a(f'buffer_store_dwordx4 v[136:139], v3, {srdn(SW)}, s3 offen sc1')
        a(f'buffer_store_dwordx4 v[140:143], v3, {srdn(SW)}, s3 offen offset:16 sc1')
        a.label(name)
    gettag('L_ptag', first_wait='s_waitcnt vmcnt(0)')
    if P.stamp == 3 and P.st1 == 0: stamp(1)
    pubrow('L_norow')
    a(f's_lshl_b32 s3, s{sTAGH}, 16')
    if P.force == 3: a('s_cmp_eq_u32 s2, 9'); a('s_cselect_b32 s35, 0x10000000, 0'); a('s_xor_b32 s3, s3, s35')
    a(f'v_add_u32 v22, s{sTAGH}, v15')
    a(f'v_add_u32 v20, s{sTAGH}, v0')
    a('s_waitcnt lgkmcnt(0)')
    for lo, hi in (((0, 4), (4, 8), (8, 13)) if P.stag else ((0, 13),)):
        for i in range(lo, hi):
            a(f'v_or3_b32 v{vRec+2*i}, v{vRec+2*i}, v{vDs+i}, s3')
            a(f'v_add_u32 v{vRec+2*i+1}, {(i>>2)*1024 + (i&3)}, v{22 if i < 12 else 20}')
        for i in range(lo, hi):
            a(f'v_add_lshl_u32 v{vB+i}, v{vB+i}, v{vRk+i}, 3')
        for i in range(lo, hi):
            if i == 12: a(f's_mov_b64 exec, {mLO}')
            a(f'ds_write_b64 v{vB+i}, {R("v", vRec+2*i, 2)}')
    a('s_mov_b64 exec, -1')
    a('v_lshlrev_b32 v10, 16, v10')
    a('v_mul_f32 v10, s34, v10')
    a(f'ds_write_b32 v15, v10 offset:{B1T}')
    a(f'v_add_u32 v3, {STAGE}, v21')
    a('v_lshl_add_u32 v20, v1, 8, v9')
    a(f'v_add_u32 v22, {STAGE + 24576}, v20')
    a('s_and_b32 s3, s2, 31'); a('s_lshl_b32 s35, s2, 8'); a('s_add_u32 s3, s3, s35'); a('s_lshl_b32 s3, s3, 7')
    wload = lambda: a(f'buffer_load_dwordx2 v[122:123], v133, {srdn(SW)}, s{sCOL} offen sc1')
    tload = lambda: a(f'buffer_load_dwordx2 v[16:17], v30, {srdn(SW)}, s{sCOL} offen sc1')
    a('s_waitcnt lgkmcnt(0)')
    a('s_barrier')
    if P.stamp == 3 and P.st1 == 1: stamp(1)
    for i in range(6): a(f'ds_read_b128 {R("v", 32+4*i, 4)}, v3 offset:{4096*i}')
    a('ds_read_b128 v[56:59], v22')
    if P.tpos == 0: tload()
    for i in range(7):
        a(f's_waitcnt lgkmcnt({6-i})')
        if i == 6: a('s_mov_b64 exec, 0xffff')
        a(f'buffer_store_dwordx4 {R("v", 32+4*i, 4)}, v{21 if i < 6 else 20}, {srdn(SW)}, s3 offen{P.pol_st}')
        if i < 6: a('s_add_u32 s3, s3, 4096')
    a('s_mov_b64 exec, -1')
    if P.tpos == 1: tload()
    if not P.probe: wload()
    a('s_barrier')
    stamp(3)
    a(f'ds_write_b32 v15, v11 offset:{TT}')
    for x in init2: a(x)
    a(f's_waitcnt vmcnt({7 if P.tpos == 0 else 0})')
    a.label('L_consume')
    a(f's_cmp_lg_u32 s{sSLOW}, 0'); a('s_cbranch_scc1 L_skipB')
    def tcheck(v):
        def f():
            a(f'v_cmp_ne_u32 s[56:57], s{sTAG}, v{v+1}')
            a(f'v_cmp_ne_u32_sdwa vcc, v{v}, s{sTAG8} src0_sel:BYTE_3 src1_sel:DWORD')
            a('s_or_b64 vcc, vcc, s[56:57]')
        return f
    poll('L_pt', tload, tcheck(16), first_wait='')
    stamp(4)
    def weights():
        poll('L_pw', wload, tcheck(122), first_wait='')
        a(f's_mul_i32 s3, s{sWAVE}, {13*1024}')
        a(f's_add_u32 s35, s3, {WS_W}')
        a(f's_add_u32 m0, s3, {WST}')
        for i in range(13):
            if i and i % 4 == 0: a('s_add_u32 m0, m0, 4096'); a('s_add_u32 s35, s35, 4096')
            a(f'buffer_load_dwordx4 v9, {srdn(SW)}, s35 offen offset:{(i%4)*1024} sc1 lds')
        return 13
    if P.wpos == 3: assert not P.probe; weights()
    a('v_bfe_u32 v17, v16, 12, 12')
    a('v_and_b32 v16, 0xfff, v16')
    a('v_mov_b32 v18, v17')
    a('v_add_u32 v16, v16, v31')
    a('v_add_lshl_u32 v22, v16, v17, 3')
    a('v_sub_u32_e64 v22, v22, 4 clamp')
    pload = lambda: a(f'buffer_load_dword v23, v22, {srdn(SW)}, 0 offen sc1')
    if P.probe: pload(); wload()
    wave_scan(a, 18, ['v_cmp_lt_u32 s[56:57], 16, v17', 'v_cmp_lt_u32 s[58:59], 8, v17',
                      'v_cmp_lt_u32 s[60:61], 0, v17', 'v_cmp_lt_u32 vcc, 24, v17', f'v_add_u32 v20, s{sMAP}, v19'])
    a('v_sub_u32 v3, v18, v17')
    a('v_readlane_b32 s3, v18, 63')
    a('v_sub_u32 v16, v16, v3')
    a(f'v_lshl_add_u32 v18, v3, 2, s{sMAP}')
    a('v_lshlrev_b32 v16, 3, v16')
    a(f's_cmp_gt_u32 s3, {NSLOT*64}')
    a(f's_cselect_b32 s{sSLOW}, 1, s{sSLOW}')
    a(f's_cmp_lg_u32 s{sSLOW}, 0'); a('s_cbranch_scc1 L_skipB')
    a('v_lshl_add_u32 v3, s3, 2, v20')
    for m, j0 in (('s[56:57]', 16), ('s[58:59]', 8), ('s[60:61]', 0)):
        a(f's_mov_b64 exec, {m}')
        for j in range(j0 + 7, j0 - 1, -1): a(f'ds_write_b32 v18, v16 offset:{4*j}')
    a('s_mov_b64 exec, -1')
    a('ds_write_b32 v3, v128')
    a('s_cbranch_vccz L_nomap')
    a.label('L_map')
    for j in range(24, 28):
        a(f'v_cmpx_lt_u32 vcc, {j}, v17')
        a(f'ds_write_b32 v18, v16 offset:{4*j}')
    a('v_add_u32 v18, 16, v18')
    a('v_subrev_u32 v17, 4, v17')
    a('s_cbranch_execnz L_map')
    a('s_mov_b64 exec, -1')
    a.label('L_nomap')
    vR, vI, vK, vP, vA, vT, vCB = 32, 64, 80, 96, 144, 160, 176
    for i in range(NSLOT): a(f'ds_read_b32 v{vA+i}, v20 offset:{256*i}')
    def pcheck():
        a(f'v_xor_b32 v23, s{sTAGH}, v23')
        a('v_cmp_lt_u32 vcc, 0xfff, v23')
        a('s_and_b64 vcc, vcc, s[60:61]')
    a('s_movk_i32 s34, 4096')
    a('s_waitcnt lgkmcnt(0)')
    for i in range(NSLOT): a(f'v_add_u32 v{vA+i}, v{vA+i}, v14')
    if P.probe: a('s_waitcnt vmcnt(0)')
    if P.wpos == 0: weights()
    if P.probe: poll('L_pp', pload, pcheck, first_wait='')
    stamp(5)
    a(f's_cmp_lg_u32 s{sSLOW}, 0'); a('s_cbranch_scc1 L_skipB')
    rec = lambda i: a(f'buffer_load_dwordx2 {R("v", vR+2*i, 2)}, v{vA+i}, {srdn(SW)}, {"s34" if i >= 8 else "0"} offen offset:{512*(i%8)} sc1')
    for i in range(NSLOT): rec(i)
    def ownx():
        a('v_lshlrev_b32 v29, 7, v24')
        a(f'buffer_load_dword a{aJUNK}, v29, {srdn(SX)}, s{sXO} offen')
        return 1
    n3 = 0
    if P.wpos == 1: n3 += weights()
    nx = 0
    if P.xpos == 3: nx += ownx()
    nx += warm(3)
    n3 += nx
    for i in range(NSLOT): a(f'v_bfe_i32 v{vT+i}, v{vA+i}, 30, 1')
    for i in range(NSLOT): a(f'v_bfi_b32 v{vT+i}, v{vT+i}, v135, s{sTAGH}')
    stamp(6)
    retry = []
    for b, (lo, hi) in enumerate(((0, 6), (6, 11), (11, 15))):
        a(f's_movk_i32 s{sCNT}, {P.limit}')
        a(f's_waitcnt vmcnt({NSLOT-hi+n3})')
        a.label(f'L_chk{b}')
        for i in range(lo, hi): a(f'v_xor_b32 v{vR+2*i+1}, v{vT+i}, v{vR+2*i+1}')
        for i in range(lo, hi): a(f'v_xor_b32_sdwa v{vI+i}, v{vT+i}, v{vR+2*i} dst_sel:DWORD dst_unused:UNUSED_PAD src0_sel:WORD_0 src1_sel:WORD_1')
        for i in range(lo, hi): a(f'v_or3_b32 v3, v{vI+i}, v{vR+2*i+1}, {"v3" if i > lo else "0"}')
        a('v_cmp_lt_u32 vcc, 0xfff, v3')
        if lo == 11:
            for i in range(lo, hi): a(f'v_cmp_ne_u32 s[{58+2*(i-lo)}:{59+2*(i-lo)}], v135, v{vI+i}')
        a(f's_cbranch_vccnz L_retry{b}')
        retry.append((b, lo, hi))
        for i in range(lo, hi):
            if lo == 11: a(f's_mov_b64 exec, s[{58+2*(i-lo)}:{59+2*(i-lo)}]')
            a(f'ds_add_rtn_u32 v{vK+i}, v{vI+i}, v13 offset:{CNT}')
    a('s_mov_b64 exec, -1')
    if P.wpos == 2: weights(); nx = 0
    if P.xpos == 4: nx += ownx()
    nx += warm(4)
    a.label('L_skipB')
    EO = []
    for i in range(NSLOT):
        if i: EO.append(f'v_add_u32 v{vA+i}, {512*i}, v{vA+i}')
    EO += [f'v_lshrrev_b32 v{vA+i}, 15, v{vA+i}' for i in range(NSLOT)]
    EO += [f'v_mad_u32_u24 v{vR+2*i+1}, v{vA+i}, s3, v{vR+2*i+1}' for i in range(NSLOT)]
    EO += [f'v_lshlrev_b32 v{vR+2*i+1}, 5, v{vR+2*i+1}' for i in range(NSLOT)]
    a(f's_movk_i32 s3, {CH}')
    for x in EO[:24]: a(x)
    a(f's_mov_b64 exec, {mBN}')
    a('s_waitcnt lgkmcnt(0)')
    a('s_barrier')
    stamp(7)
    a(f'ds_read_b128 v[4:7], v134 offset:{CNT}')
    a('s_waitcnt lgkmcnt(0)')
    a('v_add_u32 v5, v4, v5'); a('v_add_u32 v6, v5, v6'); a('v_add_u32 v16, v6, v7')
    a('v_min_u32 v17, 63, v16')
    a('v_sub_u32 v17, 63, v17')
    a('v_lshlrev_b32 v17, 2, v17')
    a(f'ds_add_rtn_u32 v18, v17, v13 offset:{HIST}')
    a('v_sub_u32 v26, v16, v4'); a('v_sub_u32 v27, v16, v5'); a('v_sub_u32 v28, v16, v6')
    a('v_lshrrev_b32 v23, 1, v16')
    a('v_lshl_or_b32 v23, v23, 16, v24')
    a('v_or_b32 v23, 0xc00000, v23')
    a('s_mov_b64 exec, -1')
    for x in EO[24:40]: a(x)
    a('s_waitcnt lgkmcnt(0)')
    a('s_barrier')
    stamp(20)
    a(f'ds_read_b32 v20, v19 offset:{HIST}')
    a(f'v_mov_b32 v3, {(32768 - 4) << 16}')
    a(f'ds_write_b32 v135, v3 offset:{CNT}')
    for x in EO[40:]: a(x)
    a('s_waitcnt lgkmcnt(1)')
    a('v_mov_b32 v3, v20')
    wave_scan(a, 3)
    a('v_sub_u32 v20, v3, v20')
    a('ds_bpermute_b32 v20, v17, v20')
    a(f's_mov_b64 exec, {mNN}')
    a('s_waitcnt lgkmcnt(0)')
    a('v_add_lshl_u32 v20, v20, v18, 2')
    a(f'ds_read_b32 v22, v20 offset:{TT}')
    a('s_waitcnt lgkmcnt(0)')
    a('v_and_b32 v3, 0x10000000, v22')
    a('v_lshlrev_b32 v29, 16, v22')
    a('v_cmp_ne_u32 vcc, 0, v3')
    a('v_bfe_u32 v3, v22, 6, 1')
    a('v_add_u32 v16, v16, v3')
    a('v_cndmask_b32 v7, v6, v12, vcc'); a('v_cndmask_b32 v6, v5, v28, vcc')
    a('v_cndmask_b32 v5, v4, v27, vcc'); a('v_cndmask_b32 v4, v12, v26, vcc')
    for i in range(4): a(f'v_mad_u32_u24 v{4+i}, v{4+i}, v29, v22')
    a('v_lshrrev_b32 v16, v3, v16')
    a('v_lshrrev_b32 v22, 16, v22')
    a('v_lshl_or_b32 v24, v3, 22, v24')
    a('v_cmp_lt_u32 s[56:57], 30, v16')
    a('v_lshl_or_b32 v24, v16, 16, v24')
    a('v_cmp_ne_u32 vcc, 0, v3')
    a(f'ds_write_b128 v134, v[4:7] offset:{CNT}')
    a(f'ds_write_b32 v22, v24 offset:{EX - 128}')
    a('s_mov_b64 exec, vcc')
    a(f'ds_write_b32 v22, v23 offset:{EX - 64}')
    a(f's_or_b32 s56, s56, s{sSLOW}')
    a('s_mov_b64 exec, s[56:57]')
    a(f'ds_write_b32 v12, v13 offset:{FLAG}')
    a('s_mov_b64 exec, -1')
    a(f'v_add_u32 v3, {WST}, v9')
    a(f's_waitcnt vmcnt({nx}) lgkmcnt(0)')
    a('s_barrier')

    ell_read = [f'ds_read_b128 {R("v", vEX, 4)}, v{vAX}', f'ds_read_b32 v{vEE}, v{vAE} offset:{EE-EX}']
    jump = [f's_sub_u32 s{sJ}, s{sJ}, 1', f's_cselect_b64 s[{sINC}:{sINC+1}], s[{sJUMP}:{sJUMP+1}], s[{sSTEP}:{sSTEP+1}]']
    ell_adv = [f'v_lshl_add_u64 v[{vAX}:{vAE}], v[{vAX}:{vAE}], 0, s[{sINC}:{sINC+1}]']
    xaddr = [f'v_mad_u32_u16 v{vEX+j}, v{vEX+j}, s{s128}, v{vCX}' for j in range(4)]
    eaddr = f'v_add_u32 v{vEE}, v{vEE}, v{vCE}'
    m0x = f's_mov_b32 m0, s{sSLOT}'; m0e = f's_add_u32 m0, s{sSLOT}, {4*XP}'
    dmax = [f'buffer_load_dwordx4 v{vEX+j}, {srdn(SX)}, s{sXO+j} offen offset:{j*XP}{P.pol_x} lds' for j in range(4)]
    dmae = f'buffer_load_dwordx4 v{vEE}, {srdn(SE)}, 0 offen{P.pol_e} lds'
    adv = [f's_sub_u32 s{sSLOT}, s{sSUM}, s{sSLOT}']
    baddr = [f'v_add_u32 v{vBX}, s{sSLOT}, v{vBX0}', f'v_add_u32 v{vBE}, s{sSLOT}, v{vBE0}']
    bread = [f'ds_read_b128 {R("a", aBX+4*k, 4)}, v{vBX} offset:{32*k}' for k in range(4)] + [f'ds_read_b128 {R("a", aBE, 4)}, v{vBE}']
    PFa = [m0x] + xaddr + [eaddr] + dmax + [m0e] + [adv[0]] + [dmae] + adv[1:]
    PFb = ell_read + jump + ell_adv
    PF = PFa + PFb + baddr

    stamp(21)
    vG = 112
    a(f'ds_read_b32 v16, v12 offset:{FLAG}')
    a(ell_read[0])
    a(f'ds_read_b128 {R("v", vG, 4)}, v{vAX} offset:4096')
    for i in range(NSLOT - 3): a(f'ds_read_b32 v{vP+i}, v{vI+i} offset:{CNT}')
    a(f's_mul_i32 s35, s{sWAVE}, {8*XP}'); a(f's_add_u32 s35, s35, {RING}'); a('s_mov_b32 m0, s35')
    a(f's_waitcnt lgkmcnt({NSLOT - 4})')
    for i in range(NSLOT - 3, NSLOT): a(f'ds_read_b32 v{vP+i}, v{vI+i} offset:{CNT}')
    a('ds_read_b32 v17, v25')
    a('v_readfirstlane_b32 s3, v16')
    alt = lambda L: [x.replace(R('v', vEX, 4), R('v', vG, 4)).replace(f'v{vEX}', f'v{vG}').replace(f'v{vEX+1}', f'v{vG+1}').replace(f'v{vEX+2}', f'v{vG+2}')
                      .replace(f'v{vEX+3}', f'v{vG+3}').replace(f'v{vEE}', f'v{vG+4}') for x in L]
    for x in xaddr + alt(xaddr): a(x)
    a('s_cmp_lg_u32 s3, 0'); a('s_cbranch_scc1 L_slow')
    def celladdr(lo, hi):
        for i in range(lo, hi): a(f'v_mul_u32_u24_sdwa v{vK+i}, v{vK+i}, v{vP+i} {SDWA}WORD_0')
        for i in range(lo, hi): a(f'v_add_u32_sdwa v{vP+i}, v{vK+i}, v{vP+i} {SDWA}WORD_1')
    if not P.pc:
        for x in dmax: a(x)
        a(f's_add_u32 m0, s35, {4*XP}')
        for x in alt(dmax): a(x)
        for lo, hi in ((0, 8), (8, 15)):
            a(f's_waitcnt lgkmcnt({NSLOT - hi + 1 if hi < NSLOT else 0})')
            celladdr(lo, hi)
    ellw = lambda i: a(f'ds_write2st64_b32 v{vP+i}, v{vR+2*i}, v{vR+2*i+1} offset0:{EX//256} offset1:{EE//256}')
    def fill_all():
        for i in range(NSLOT):
            if i >= 11: a(f's_mov_b64 exec, s[{58+2*(i-11)}:{59+2*(i-11)}]')
            ellw(i)
        a('s_mov_b64 exec, -1')
    if P.two:
        MS = [4, 6, 8, 10, 68, 70, 72, 74]
        a('s_movk_i32 s3, 0x180')
        for lo, hi in ((0, 8), (8, 15)):
            for i in range(lo, hi): a(f'v_and_b32 v{vK+i}, 0x1fff, v{vP+i}')
            for i in range(lo, hi): a(f'v_cmp_gt_u32 s[{MS[i-lo]}:{MS[i-lo]+1}], s3, v{vK+i}')
            for i in range(lo, hi): a(f's_mov_b64 exec, s[{MS[i-lo]}:{MS[i-lo]+1}]'); ellw(i)
            a('s_mov_b64 exec, -1')
    elif P.pc:
        dm = dmax + [f's_add_u32 m0, s35, {4*XP}', 's_nop 0'] + alt(dmax)
        for lo, hi, nd in ((0, 4, 3), (4, 8, 5), (8, 11, 2), (11, 15, 0)) if P.pc == 1 else ((0, 5, 4), (5, 10, 6), (10, 15, 0)):
            for x in dm[:nd]: a(x)
            dm = dm[nd:]
            a(f's_waitcnt lgkmcnt({min(NSLOT - hi + 1 + lo, 15)})')
            celladdr(lo, hi)
            for i in range(lo, hi):
                if i >= 11: a(f's_mov_b64 exec, s[{58+2*(i-11)}:{59+2*(i-11)}]')
                ellw(i)
        assert not dm
        a('s_mov_b64 exec, -1')
        a('s_waitcnt lgkmcnt(10)')
    else: fill_all()
    wread = [f'ds_read_b128 {R("a", 4*i, 4)}, v3 offset:{1024*i}' for i in range(52)]
    for x in wread[:5]: a(x)
    a('v_bfe_u32 v17, v17, 16, 6')
    a(f'v_add_u32 v{vBX}, s35, v{vBX0}')
    a(f'v_add_u32 v{vAX}, 128, v{vAX}')
    for sh in (1, 2, 4, 8): a(f'v_max_u32_dpp v17, v17, v17 row_shr:{sh} row_mask:0xf bank_mask:0xf bound_ctrl:0')
    a('v_max_u32_dpp v17, v17, v17 row_bcast:15 row_mask:0xa bank_mask:0xf')
    a(f'v_add_u32 v{vAE}, 128, v{vAE}')
    a(f'v_readlane_b32 s{sL}, v17, 31')
    a(f'v_readlane_b32 s{sLNEXT}, v17, 63')
    stamp(22)
    a('s_waitcnt vmcnt(0)')
    for x in bread[:4]: a(x)
    for k in range(4): a(f'ds_read_b128 {R("a", aQB+4*k, 4)}, v{vBX} offset:{4*XP + 32*k}')
    a(f's_max_u32 s{sL}, s{sL}, 1')
    a(f's_max_u32 s{sLNEXT}, s{sLNEXT}, 1')
    if P.thr and P.tk:
        a(f's_add_u32 s55, s{sL}, s{sLNEXT}'); a(f's_mul_i32 s55, s55, {-P.tk}'); a(f's_add_i32 s55, s55, {P.thr + 26*P.tk}')
        if P.tp: a(f's_and_b32 s3, s2, 1'); a(f's_mul_i32 s3, s3, {P.tp}'); a('s_sub_i32 s55, s55, s3')
        a('s_max_i32 s55, s55, 0')
    elif P.thr: a(f's_movk_i32 s55, {P.thr}')
    if P.thr: a(f's_min_u32 s55, s55, s{sL}')
    if P.stamp: a(f's_add_u32 s{sCNT}, s{sL}, s{sLNEXT}')
    a(f's_lshl_b32 s3, s{sL}, 7')
    a(f's_sub_u32 s{sJUMP}, {4096 + 128}, s3'); a(f's_mov_b32 s{sJUMP+1}, s{sJUMP}')
    a(f's_movk_i32 s{sSTEP}, 128'); a(f's_movk_i32 s{sSTEP+1}, 128')
    a(f's_lshl_b32 s{sSUM}, s{sSLOT}, 1'); a(f's_add_u32 s{sSUM}, s{sSUM}, {SLOT}')
    a(f's_sub_u32 s{sJ}, s{sL}, 1')
    if P.stamp: a(f's_mov_b32 s{88+10}, 0')
    for x in jump: a(x)
    a('s_waitcnt lgkmcnt(0)')
    a('s_barrier')
    stamp(8)
    for x in alt(ell_read) + ell_adv + PFb: a(x)
    a('s_waitcnt lgkmcnt(2)')
    for x in alt(PFa): a(x)
    a('s_waitcnt lgkmcnt(0)')
    if P.two:
        a(f's_cmp_eq_u32 s{sL}, 1'); a('s_cbranch_scc1 L_one')
        for x in PFa: a(x)
        a.label('L_one')
        fill_all()
    else:
        for x in PF: a(x)

    a(f'v_lshrrev_b32 v{vE+1}, 3, v{vBE0}')
    a(f'v_and_b32 v{vE}, 16, v{vBE0}')
    a(f'v_and_b32 v{vE+1}, -4, v{vE+1}')
    a(f'v_lshlrev_b32 v{vE}, 4, v{vE}')
    a(f's_sub_u32 s3, s{sQROW}, {4*XP//8}')
    a(f'v_add_u32 v{vE+1}, s3, v{vE+1}')
    a(f'ds_read_b32 v{vINFO}, v{vE+1}')
    a(f'ds_read_b32 a{aINFO}, v{vE+1} offset:4096')
    for x in wread[20:36]: a(x)
    for i in range(16): a(f'ds_read_b128 {R("v", vQ+4*i, 4)}, v{vE} offset:{B1T + 16*i}')
    a('s_waitcnt lgkmcnt(0)')
    pf = wread[5:20] + wread[36:]
    if P.two:
        a('s_barrier')
        a(f's_cmp_lg_u32 s{sL}, 1'); a('s_cbranch_scc1 L_notone')
        a(f'v_subrev_u32 v{vE+2}, 128, v{vAX}'); a(f'v_subrev_u32 v{vE+3}, 128, v{vAE}')
        a(ell_read[0].replace(f'v{vAX}', f'v{vE+2}')); a(ell_read[1].replace(f'v{vAE}', f'v{vE+3}'))
        a('s_waitcnt lgkmcnt(0)')
        for x in PFa: a(x)
        a.label('L_notone')
        pf = PFb + baddr + pf
    qm = lambda c, k, b: mfma(R('v', vQ+16*c, 16), R('a', aW1B + (c*4+k)*4, 4), R('a', b+4*k, 4), R('v', vQ+16*c, 16))
    for c in range(4):
        for k in range(4):
            a(qm(c, k, aBX))
            for x in pf[:4]: a(x)
            pf = pf[4:]
    assert not pf
    a(f's_waitcnt vmcnt({VW})')
    for x in bread: a(x)
    stamp(9)
    a('s_waitcnt lgkmcnt(0)')
    pf = list(PF)
    for k in range(5):
        a(m1(0, k, vN, vQ))
        n = 3 if k < 4 else 99
        for x in pf[:n]: a(x)
        pf = pf[n:]
    a('.p2align 3')
    a.label('L_first')
    a(f'v_bfe_u32 v{vDEG}, v{vINFO}, 16, 6')
    a(f's_mov_b32 s{sT}, 1')
    for c in range(4):
        cn = (c + 1) & 3
        if c == 3: a('s_waitcnt lgkmcnt(0)')
        for k in range(5):
            a(m1(cn, k, vN + 16*cn if c < 3 else vY, vQ + 16*cn))
            if c == 2:
                if k == 0:
                    a(f's_waitcnt vmcnt({VW+4})'); a(f's_cmp_eq_u32 s{sLNEXT}, 0'); a('s_cbranch_scc1 L_w2')
                    a(f's_waitcnt vmcnt({VW})'); a.label('L_w2')
                a(bread[k])
            for i in range(3*k, 3*k + (3 if k < 4 else 4)): a(f'v_exp_f32 v{vD+16*c+i}, v{vN+16*c+i}')
        align8(a)
        for p in range(8):
            d = R('v', vD + 16*c + 2*p, 2)
            a(f'v_pk_add_f32 {d}, {d}, 1.0 op_sel_hi:[1,0]')
    a(f's_cmp_ge_u32 s{sT}, s{sL}'); a('s_cbranch_scc1 L_flush')
    oth = f's_sub_u32 s{sOTH}, s{sSUM}, s{sSLOT}'
    bnext = f'v_add_u32 v{vBE}, s{sOTH}, v{vBE0}'
    m0top = lambda lv: m0e if lv == 1 else m0x
    def rows(name, lv, vm, send):
        a('.p2align 3')
        a.label(name)
        for c in range(4):
            cn = (c + 1) & 3
            y = vY + 16 * (c & 1); yn = vY + 16 * (cn & 1)
            S = [[] for _ in range(5)]
            V = [[] for _ in range(5)]
            cmpx = f'v_cmpx_lt_u32 vcc, s{sT}, v{vDEG}'
            if c == 0:
                S[1] = ['s_mov_b64 exec, -1']; S[2] = [jump[0]]; S[3] = [jump[1]]
                if lv == 0:
                    V[1] = xaddr[:2]; V[2] = xaddr[2:]; V[3] = [eaddr]
                    V[4] = dmax + [m0e, ell_read[0], dmae, ell_read[1]] + ell_adv + [cmpx]
                if lv == 1:
                    V[1] = [eaddr] + xaddr[:2]; V[2] = xaddr[2:]; S[3] += [dmae]; S[4] = [m0x, ell_read[1]]
                    V[4] = dmax + ell_read[:1] + ell_adv + [cmpx]
            if c == 1:
                S[0] = [adv[0]]
                S[3] = [f's_add_u32 s{sT}, s{sT}, 1']
                V[4] = [baddr[0]]
            if c == 2:
                for k in range(5): S[k] = [bread[k]]
                S[0].insert(0, f's_waitcnt vmcnt({vm})')
                S[4].insert(0, 's_waitcnt lgkmcnt(3)')
            if c == 3:
                S[0] = ['s_waitcnt lgkmcnt(0)']
                if P.stamp == 2: S[0] = ['s_memrealtime s[86:87]', 's_waitcnt lgkmcnt(0)', f's_mov_b32 m0, s{sT}', 's_nop 0', f'v_writelane_b32 v{vMAX}, s86, m0']
                S[1] = [oth]
                S[2] = [m0top(lv)]
                S[3] = [f's_cmp_lt_u32 s{sT}, s{send}']
                V[4] = [bnext]
            for k in range(5):
                if (c, k) != (0, 0): a(m1(cn, k, yn, vQ + 16*cn))
                for x in S[k]: a(x)
                for i in range(3*k, 3*k + (3 if k < 4 else 4)): a(f'v_exp_f32 v{vE+i}, v{y+i}')
                for x in V[k]: a(x)
            align8(a)
            for p in range(8):
                yy, nn, dd, ee = R('v', y+2*p, 2), R('v', vN+16*c+2*p, 2), R('v', vD+16*c+2*p, 2), R('v', vE+2*p, 2)
                a(f'v_pk_fma_f32 {yy}, {yy}, {dd}, {nn}')
                a(f'v_pk_fma_f32 {dd}, {dd}, {ee}, {dd}')
                a(f'v_pk_fma_f32 {nn}, {nn}, {ee}, {yy}')
        a(m1(1, 0, vY + 16, vQ + 16))
        a(f's_cbranch_scc1 {name}')
    a(oth); a(m0top(P.lv)); a(bnext)
    if P.thr: a(f's_cmp_ge_u32 s{sT}, s55')
    a(m1(1, 0, vY + 16, vQ + 16))
    if P.thr:
        a('s_cbranch_scc1 L_row')
        a(m0top(P.lvs))
        rows('L_srow', P.lvs, P.svm, 55)
        a(m0top(P.lv))
        a(f's_cmp_ge_u32 s{sT}, s{sL}'); a('s_cbranch_scc1 L_flush')
    rows('L_row', P.lv, VW, sL)
    a.label('L_flush')
    if P.stamp:
        a(f's_cmp_lg_u32 s{88+10}, 0'); a('s_cbranch_scc1 L_st10'); stamp(10); a.label('L_st10')
        stamp(11)
    a('s_mov_b64 exec, -1')
    if P.stamp == 2:
        a(f'v_writelane_b32 v{vMAX}, s{sL}, 0')
        a(f'v_mbcnt_lo_u32_b32 v{vE}, -1, 0'); a(f'v_mbcnt_hi_u32_b32 v{vE}, -1, v{vE}'); a(f'v_lshlrev_b32 v{vE}, 2, v{vE}')
        a('s_lshl_b32 s3, s2, 2'); a(f's_add_u32 s3, s3, s{sWAVE}'); a('s_lshl_b32 s3, s3, 8'); a(f's_add_u32 s3, s3, {WS_STAMP + 65536}')
        a(f's_cmp_eq_u32 s{sLNEXT}, 0'); a('s_cselect_b32 s56, 128, 0'); a('s_add_u32 s3, s3, s56')
        a('s_mov_b32 exec_hi, 0')
        a(f'buffer_store_dword v{vMAX}, v{vE}, {srdn(SW)}, s3 offen')
        a('s_mov_b64 exec, -1')
    a(f'v_and_b32 v{vE+8}, 16, v{vBE0}')
    a(f's_cmp_eq_u32 s{sLNEXT}, 0')
    a(f'v_lshlrev_b32 v{vMAX}, 4, v{vE+8}')
    a('s_cbranch_scc1 L_last')
    def g3(c, i):
        u = 2*c + (i >> 1); dt = i & 1
        acc = R('v', vY + 16*dt, 16)
        return mfma(acc, R('a', aW2 + (dt*8+u)*4, 4), R('v', vE + 8*(c & 1) + 4*(i >> 1), 4), acc if u else '0')
    b1r = [f'ds_read_b128 {R("v", vQ+4*i, 4)}, v{vMAX} offset:{B1T + 16*i}' for i in range(16)]
    b2r = [f'ds_read_b128 {R("v", vD+4*i, 4)}, v{vMAX} offset:{B2T + 16*i}' for i in range(8)]
    rcp = lambda c: [f'v_rcp_f32 v{vD+16*c+i}, v{vD+16*c+i}' for i in range(16)]
    hcv = lambda c: [f'v_cvt_pk_bf16_f32 v{vE+8*(c&1)+p}, v{vN+16*c+2*p}, v{vN+16*c+2*p+1}' for p in range(8)]
    mul = [f'v_mul_f32 v{vD+i}, v{vD+i}, v{vDEG}' for i in range(32)]
    dpp = [f'v_add_f32_dpp v{vD+i}, v{vD+i}, v{vD+i} quad_perm:[1,0,3,2] row_mask:0xf bank_mask:0xf' for i in range(32)]
    cvt = [f'v_cvt_pk_bf16_f32 v{vE+p}, v{vD+2*p}, v{vD+2*p+1}' for p in range(16)]
    sto = [f'buffer_store_dwordx4 {R("v", vE+4*i, 4)}, v{vINFO}, {srdn(SO)}, 0 offen offset:{16*i}{P.pol_out}' for i in range(4)]
    def window(M, G):
        assert len(M) == len(G)
        for m, g in zip(M, G):
            if m: a(m)
            for x in g: a(x)
    def flush(more):
        a('.p2align 3')
        if more:
            for x in b1r[:4] + baddr: a(x)
        a(f'v_bfe_u32 v{vE+9}, v{vINFO}, 22, 2')
        a(f'v_lshlrev_b32 v{vE+8}, 2, v{vE+8}')
        a(f'v_cmp_ne_u32 s[58:59], 0, v{vE+9}')
        a(f'v_cmp_ne_u32 s[60:61], 3, v{vE+9}')
        a(f'v_cmp_ne_u32 s[62:63], 0, v{vDEG}')
        a(f'v_mad_u32_u16 v{vINFO}, v{vINFO}, s{s128}, v{vE+8}')
        a(f'v_cvt_f32_u32 v{vDEG}, v{vDEG}')
        a(f's_mov_b32 s3, {f32(2.0**120)}')
        align8(a)
        for i in range(16):
            acc = R('v', vE + 2*(i & 1), 2)
            if i < 2: a(f'v_pk_mul_f32 {acc}, {R("v", vD+4*i, 2)}, {R("v", vD+4*i+2, 2)}')
            else: a(f'v_pk_fma_f32 {acc}, {R("v", vD+4*i, 2)}, {R("v", vD+4*i+2, 2)}, {acc}')
        a(f'v_pk_add_f32 {R("v", vE, 2)}, {R("v", vE, 2)}, {R("v", vE+2, 2)}')
        chk = [f'v_add_f32 v{vE}, v{vE}, v{vE+1}', f'v_cmp_nge_f32 s[56:57], s3, v{vE}']
        for c in range(4):
            r = rcp(c)
            if c == 0 and more:
                a('s_waitcnt lgkmcnt(0)')
                rd = bread + b1r[4:11]
                window([qm(0, k, aQB) for k in range(4)], [rd[3*k:3*k+3] + r[4*k:4*k+4] + chk[k:k+1] for k in range(4)])
            elif c == 0:
                for x in r[:4] + chk[:1] + r[4:8] + chk[1:] + r[8:]: a(x)
            elif more:
                h = hcv(c - 1)
                M = [qm(c, 0, aQB), qm(c, 1, aQB), g3(c-1, 0), g3(c-1, 1), qm(c, 2, aQB), g3(c-1, 2), qm(c, 3, aQB), g3(c-1, 3)]
                Vv = [h[:4], h[4:], r[:2], r[2:4], r[4:6], r[6:9], r[9:12], r[12:]]
                if c == 1:
                    a('s_waitcnt lgkmcnt(3)')
                    Pre = [[m0e, b1r[11]], [dmae], [m0x], dmax[:2], dmax[2:], [jump[0]] + ell_read, [jump[1]], ['s_waitcnt lgkmcnt(2)']]
                    Post = [[eaddr], xaddr[:2], xaddr[2:], [], [], [], adv, ell_adv + baddr]
                if c == 2:
                    Pre = [b1r[12:14], b1r[14:], b2r[:2], b2r[2:4], b2r[4:6], b2r[6:7], b2r[7:], ['s_waitcnt lgkmcnt(8)']]
                    Post = [[]] * 8
                if c == 3:
                    Pre = [[], ['s_waitcnt lgkmcnt(0)'], [], [], [], [], [], []]
                    Post = [[], [], mul[:1], mul[1:2], [], [], [], mul[2:3]]
                window(M, [Pre[i] + Vv[i] + Post[i] for i in range(8)])
            else:
                for x in hcv(c - 1): a(x)
                Pre = [b2r[2*q:2*q+2] if c == 2 else [] for q in range(4)]
                Post = [[], [], [], []]
                if c == 3: Pre[1] = ['s_waitcnt lgkmcnt(0)']; Post[3] = mul[:3]
                window([g3(c-1, q) for q in range(4)], [Pre[q] + r[4*q:4*q+4] + Post[q] for q in range(4)])
            align8(a)
            for p in range(8):
                nn, dd = R('v', vN+16*c+2*p, 2), R('v', vD+16*c+2*p, 2)
                a(f'v_pk_mul_f32 {nn}, {nn}, {dd}')
        for x in hcv(3): a(x)
        window([g3(3, q) for q in range(4)],
               [['s_and_b64 s[56:57], s[56:57], s[62:63]'] + mul[3:9], [f's_or_b64 s[{sBAD}:{sBAD+1}], s[{sBAD}:{sBAD+1}], s[56:57]'] + mul[9:15],
                ['s_movk_i32 s3, 0x207'] + mul[15:21], mul[21:] + ['s_mov_b64 exec, s[62:63]']])
        align8(a)
        for p in range(16):
            yy, dd = R('v', vY+2*p, 2), R('v', vD+2*p, 2)
            a(f'v_pk_fma_f32 {dd}, {yy}, s[{sLN2}:{sLN2+1}], {dd}')
        a(f'v_cmp_class_f32_e64 vcc, v{vD}, s3')
        bad = f's_or_b64 s[{sBAD}:{sBAD+1}], s[{sBAD}:{sBAD+1}], vcc'
        if more:
            window([m1(0, k, vN, vQ) for k in range(5)],
                   [['s_mov_b64 exec, s[58:59]', bad] + dpp[:6], [f's_mov_b32 s{sL}, s{sLNEXT}', f's_mov_b32 s{sLNEXT}, 0'] + dpp[6:12],
                    dpp[12:18], dpp[18:24], dpp[24:]])
        else:
            for x in ['s_mov_b64 exec, s[58:59]', bad] + dpp: a(x)
        a('s_mov_b64 exec, s[60:61]'); a('s_mov_b32 s55, 0')
        for x in cvt[:8] + sto[:2] + cvt[8:] + sto[2:]: a(x)
        a('s_mov_b64 exec, -1')
    flush(True)
    a(f'v_accvgpr_read_b32 v{vINFO}, a{aINFO}')
    a('s_branch L_first')
    a.label('L_last')
    flush(False)
    if P.stamp:
        a('s_waitcnt vmcnt(0)'); stamp(12); stamp(13, True)
        for i in range(14): a(f'v_writelane_b32 v1, s{88+i}, {i}')
        a(f'v_writelane_b32 v1, s{sCNT}, 14')
        a('s_getreg_b32 s3, hwreg(HW_REG_XCC_ID, 0, 4)'); a('v_writelane_b32 v1, s3, 15')
        a('v_mbcnt_lo_u32_b32 v2, -1, 0'); a('v_mbcnt_hi_u32_b32 v2, -1, v2'); a('v_lshlrev_b32 v2, 2, v2')
        a('s_lshl_b32 s3, s2, 2'); a(f's_add_u32 s3, s3, s{sWAVE}'); a('s_lshl_b32 s3, s3, 6'); a(f's_add_u32 s3, s3, {WS_STAMP}')
        a('s_mov_b64 exec, 0xffff')
        a(f'buffer_store_dword v1, v2, {srdn(SW)}, s3 offen')
        a('s_mov_b64 exec, -1')
    a(f's_cmp_eq_u64 s[{sBAD}:{sBAD+1}], 0')
    a('v_mov_b32 v1, 0'); a('v_mov_b32 v2, 1')
    a('s_cbranch_scc1 L_nobad')
    a(f'ds_write_b32 v1, v2 offset:{FLAG}')
    a.label('L_nobad')
    a('s_waitcnt lgkmcnt(0)')
    a('s_barrier')
    a(f'ds_read_b32 v2, v1 offset:{FLAG}')
    a('s_waitcnt lgkmcnt(0)')
    a('v_readfirstlane_b32 s3, v2')
    a('s_cmp_lg_u32 s3, 0'); a('s_cbranch_scc1 L_slow')
    if P.diag:
        if P.diagx:
            a('s_getreg_b32 s3, hwreg(HW_REG_XCC_ID, 0, 4)'); a('s_xor_b32 s3, s3, s2'); a(f's_and_b32 s3, s3, {P.diagx}'); a('s_cbranch_scc0 L_end')
        a.label('L_diag')
        a('s_memrealtime s[86:87]'); a('s_waitcnt lgkmcnt(0)')
        a(f's_sub_u32 s86, s86, s{sTAG}'); a(f's_cmp_lt_u32 s86, {P.diag}'); a('s_cbranch_scc1 L_diag')
    a.label('L_end')
    a('s_endpgm')

    for b, lo, hi in retry:
        a.label(f'L_retry{b}')
        for i in range(lo, hi): rec(i)
        a('s_waitcnt vmcnt(0)')
        a(f's_sub_u32 s{sCNT}, s{sCNT}, 1')
        a(f's_cbranch_scc0 L_chk{b}')
        a(f's_mov_b32 s{sSLOW}, 1')
        a('s_branch L_skipB')
    a.label('L_prep_load')
    srd(a, SD, 52, 144 * 128 * 2); srd(a, SS, 56, 128 * 64 * 2)
    prep_offsets(a, 2, 26, 27, 28, 29)
    a(f's_sub_u32 s85, s2, {NCH}'); a('s_lshl_b32 s85, s85, 2'); a(f's_add_u32 s85, s85, s{sWAVE}')
    prep_w1_load(a, 85, 26, 32, 34, 35)
    a('s_add_u32 s3, s85, 24'); a('s_min_u32 s3, s3, 35')
    prep_w1_load(a, 3, 26, 40, 34, 35)
    a('s_add_u32 s3, s85, 28'); a('s_max_u32 s3, s3, 36')
    prep_w2_load(a, 3, 27, 48, 34, 35)
    a('s_branch L_setup')
    a.label('L_prep_store')
    a('s_waitcnt vmcnt(0)')
    tagload()
    prep_w1_pack(a, 32); prep_w1_pack(a, 40); prep_w2_pack(a, 48)
    for add, lim, vd in ((0, None, 32), (24, 's_min_u32 s3, s3, 35', 40), (28, 's_max_u32 s3, s3, 36', 48)):
        a(f's_add_u32 s3, s85, {add}')
        if lim: a(lim)
        a('s_lshl_b32 s3, s3, 10'); a(f's_add_u32 s3, s3, {WS_W}')
        a(f'buffer_store_dwordx4 {R("v", vd, 4)}, v9, {srdn(SW)}, s3 offen sc1')
    a('v_lshlrev_b32 v10, 16, v10')
    a('v_mul_f32 v10, s34, v10')
    a(f'ds_write_b32 v15, v10 offset:{B1T}')
    a(f'ds_write_b32 v15, v11 offset:{TT}')
    for i in range(4): a(f'v_mov_b32 v{26+i}, 0'); a(f'v_mov_b32 v{4+i}, 0')
    gettag('L_ptag2', first_issued=True)
    a('s_barrier')
    pubrow('L_norow2')
    tload()
    if not P.probe: wload()
    for x in init2: a(x)
    a('s_waitcnt vmcnt(0)')
    a('s_branch L_consume')

    a.label('L_slow')
    a('s_mov_b64 exec, -1')
    a('s_waitcnt vmcnt(0) lgkmcnt(0)')
    a('s_load_dwordx2 s[52:53], s[0:1], 32')
    a('s_load_dwordx2 s[56:57], s[0:1], 48')
    a('s_load_dwordx4 s[8:11], s[0:1], 16')
    a('s_barrier')
    vL, vS, vH, vT0, vT1, vOA, vD4 = 240, 241, 242, 244, 245, 246, 252
    a(f'v_mbcnt_lo_u32_b32 v{vL}, -1, 0'); a(f'v_mbcnt_hi_u32_b32 v{vL}, -1, v{vL}')
    a(f'v_and_b32 v{vS}, 31, v{vL}')
    a(f'v_lshrrev_b32 v{vH}, 5, v{vL}')
    a(f's_lshl_b32 s3, s{sWAVE}, 10')
    a(f'v_lshl_add_u32 v4, v{vL}, 4, s3')
    for i in range(4): a(f'v_mov_b32 v{i}, 0')
    for i in range(13): a(f'ds_write_b128 v4, v[0:3] offset:{OACC + 4096*i}')
    a('s_waitcnt lgkmcnt(0)')
    srd(a, SD, 52, 144 * 128 * 2); srd(a, SS, 56, 128 * 64 * 2)
    prep_offsets(a, vL, 26, 27, 28, 29)
    a(f'v_add_u32 v4, {WST}, v4')
    a(f's_mov_b32 s85, s{sWAVE}')
    a.label('L_s_w1')
    prep_w1_load(a, 85, 26, 32, 34, 35)
    a('s_waitcnt vmcnt(0)')
    prep_w1_pack(a, 32)
    a('ds_write_b128 v4, v[32:35]')
    a('v_add_u32 v4, 4096, v4')
    a('s_add_u32 s85, s85, 4'); a('s_waitcnt lgkmcnt(0)'); a('s_cmp_lt_u32 s85, 36'); a('s_cbranch_scc1 L_s_w1')
    a.label('L_s_w2')
    prep_w2_load(a, 85, 27, 32, 34, 35)
    a('s_waitcnt vmcnt(0)')
    prep_w2_pack(a, 32)
    a('ds_write_b128 v4, v[32:35]')
    a('v_add_u32 v4, 4096, v4')
    a('s_add_u32 s85, s85, 4'); a('s_waitcnt lgkmcnt(0)'); a('s_cmp_lt_u32 s85, 52'); a('s_cbranch_scc1 L_s_w2')
    a('s_barrier')
    a(f'v_lshlrev_b32 v4, 4, v{vL}'); a(f'v_add_u32 v4, {WST}, v4')
    for i in range(52): a(f'ds_read_b128 {R("a", 4*i, 4)}, v4 offset:{1024*i}')
    srd(a, SD, 10, E * 4); srd(a, SS, 8, E * 4)
    sE0, sJj = 56, 57
    a(f's_lshl_b32 s{sE0}, s{sWAVE}, 9')
    a(f'v_lshlrev_b32 v243, 4, v{vS}')
    a.label('L_s_blk')
    a(f'buffer_load_dwordx4 {R("v", vD4, 4)}, v243, {srdn(SD)}, s{sE0} offen')
    a(f's_mov_b32 s{sJj}, 0')
    a('s_waitcnt vmcnt(0)')
    a.label('L_s_sub')
    a(f'v_subrev_u32 v248, s{sNB0}, v{vD4}')
    a(f'v_cmp_gt_u32 s[60:61], s{sNNODE}, v248')
    a('s_cmp_eq_u64 s[60:61], 0'); a('s_cbranch_scc1 L_s_next')
    a(f's_add_u32 s3, s{sE0}, s{sJj}')
    a(f'buffer_load_dword v{vT0}, v243, {srdn(SS)}, s3 offen')
    a(f'v_lshlrev_b32 v247, 8, v{vH}')
    for i in range(16): a(f'ds_read_b128 {R("v", vQ+4*i, 4)}, v247 offset:{B1T + 16*i}')
    a(f'v_lshlrev_b32 v247, 4, v{vH}')
    a(f'v_add_lshl_u32 v{vT1}, v243, s3, 3')
    a(f'v_add_u32 v{vT1}, v{vT1}, v247')
    a(f'v_lshl_add_u32 v249, v{vD4}, 7, v247')
    a(f'v_mul_u32_u24 v{vOA}, 260, v248')
    a(f'v_lshl_add_u32 v{vOA}, v{vH}, 7, v{vOA}')
    a('s_waitcnt vmcnt(0)')
    a(f'v_lshl_add_u32 v{vT0}, v{vT0}, 7, v247')
    a('s_mov_b64 exec, s[60:61]')
    for k in range(4): a(f'buffer_load_dwordx4 {R("a", aBX+4*k, 4)}, v{vT0}, {srdn(SX)}, s{sXO} offen offset:{32*k}')
    a(f'buffer_load_dwordx4 {R("a", aBE, 4)}, v{vT1}, {srdn(SE)}, 0 offen')
    for k in range(4): a(f'buffer_load_dwordx4 {R("v", vE+4*k, 4)}, v249, {srdn(SX)}, s{sXO} offen offset:{32*k}')
    a('s_waitcnt vmcnt(0) lgkmcnt(0)')
    for c in range(4):
        q = R('v', vQ+16*c, 16)
        for k in range(4): a(mfma(q, R('a', aW1B + (c*4+k)*4, 4), R('v', vE+4*k, 4), q))
        for k in range(5): a(m1(c, k, vQ+16*c, vQ+16*c))
    for i in range(64): a(f'v_exp_f32 v{vD+i}, v{vQ+i}')
    for i in range(64): a(f'v_add_f32 v{vD+i}, 1.0, v{vD+i}')
    for i in range(64): a(f'v_rcp_f32 v{vD+i}, v{vD+i}')
    for i in range(64): a(f'v_mul_f32 v{vD+i}, v{vD+i}, v{vQ+i}')
    for i in range(32): a(f'v_cvt_pk_bf16_f32 v{vN+i}, v{vD+2*i}, v{vD+2*i+1}')
    a(f'v_lshlrev_b32 v247, 7, v{vH}')
    for i in range(8): a(f'ds_read_b128 {R("v", vQ+4*i, 4)}, v247 offset:{B2T + 16*i}')
    for dt in range(2):
        acc = R('v', vY + 16*dt, 16)
        for u in range(8): a(mfma(acc, R('a', aW2 + (dt*8+u)*4, 4), R('v', vN + 4*u, 4), acc if u else '0'))
    a('s_waitcnt lgkmcnt(0)')
    for i in range(32): a(f'v_fma_f32 v{vY+i}, v{vY+i}, s{sLN2}, v{vQ+i}')
    for i in range(32): a(f'ds_add_f32 v{vOA}, v{vY+i} offset:{OACC + 4*i}')
    a('s_mov_b64 exec, -1')
    a('s_waitcnt lgkmcnt(0)')
    a.label('L_s_next')
    for i in range(3): a(f'v_mov_b32 v{vD4+i}, v{vD4+i+1}')
    a(f's_add_u32 s{sJj}, s{sJj}, 4')
    a(f's_cmp_lt_u32 s{sJj}, 16'); a('s_cbranch_scc1 L_s_sub')
    a(f's_add_u32 s{sE0}, s{sE0}, 2048')
    a(f's_cmp_lt_u32 s{sE0}, {E*4}'); a('s_cbranch_scc1 L_s_blk')
    a('s_barrier')
    a(f's_lshl_b32 s3, s{sWAVE}, 1')
    a(f'v_add_u32 v1, s3, v{vH}')
    a.label('L_s_out')
    a(f'v_cmp_gt_u32 vcc, s{sNNODE}, v1')
    a('v_mul_u32_u24 v4, 260, v1')
    a(f'v_lshl_add_u32 v4, v{vS}, 3, v4')
    a(f'v_add_u32 v4, {OACC}, v4')
    a(f'v_add_u32 v5, s{sNB0}, v1')
    a('v_lshlrev_b32 v5, 7, v5')
    a(f'v_lshl_add_u32 v5, v{vS}, 2, v5')
    a('s_and_b64 exec, exec, vcc')
    a('s_cbranch_execz L_s_end')
    a('ds_read2_b32 v[2:3], v4 offset0:0 offset1:1')
    a('s_waitcnt lgkmcnt(0)')
    a('v_cvt_pk_bf16_f32 v2, v2, v3')
    a(f'buffer_store_dword v2, v5, {srdn(SO)}, 0 offen')
    a('v_add_u32 v1, 8, v1')
    a('s_branch L_s_out')
    a.label('L_s_end')
    a('s_endpgm')
    a('.p2align 7')
    a.raw('.type L_table,@object')
    a.label('L_table')
    T = pattern_table(BN0) + pattern_table(BN1)
    for i in range(0, 512, 8): a.raw('.long ' + ', '.join(hex(x) for x in T[i:i+8]))
    a.raw('.size L_table, 2048')
    return a

if __name__ == '__main__':
    for kv in sys.argv[2:]:
        k, v = kv.split('=')
        cur = getattr(P, k)
        setattr(P, k, int(v) if isinstance(cur, int) else (' ' + v.replace('+', ' ') if v else ''))
    k = gen()
    for p in check_all_edges(k): print('HAZARD on branch edge', p, file=sys.stderr)
    print('instrs', sum(1 for x in k.items if not isinstance(x, str)), 'auto nops', k.nops, file=sys.stderr)
    out = open('cdna_kernels/' + NAME + '.s.ref').read().split('; Override launch')[0]
    out += f'; @launch grid=({NB},1,1) block=(256,1,1) lds={lds_bytes()}\n'
    out += '.amdgcn_target "amdgcn-amd-amdhsa--gfx950"\n.text\n'
    out += f'.globl {NAME}_kernel\n.type {NAME}_kernel,@function\n' + k.text()
    out += f'''.section .rodata,"a"
.p2align 6
.amdhsa_kernel {NAME}_kernel
  .amdhsa_next_free_vgpr 512
  .amdhsa_next_free_sgpr 102
  .amdhsa_accum_offset 256
  .amdhsa_group_segment_fixed_size 0
  .amdhsa_kernarg_size 88
  .amdhsa_user_sgpr_count 2
  .amdhsa_user_sgpr_kernarg_segment_ptr 1
  .amdhsa_system_sgpr_workgroup_id_x 1
.end_amdhsa_kernel
'''
    open(sys.argv[1], 'w').write(out)
```

```python
import sys, struct
from asmlib import Asm, Ins, check_all_edges

NAME = 'standalone__edge_featured_mpnn_mpnn__graph'
N, E = 50000, 800000
NB = 256
NCH, CH = 250, 3200
WS_REC, WS_TAB, WS_W = 0, 8 << 20, 9 << 20
WS_SIZE = 10 << 20
WS_STAMP = (9 << 20) + (512 << 10)
DUMMY = 0x4000FFFF
def f32(x): return struct.unpack('<I', struct.pack('<f', x))[0]
NLOG2E = f32(-1.4426950408889634)
NLN2 = f32(-0.6931471805599453)

class P:
    depth = 2
    stamp = 0
    efrac = 100
    xfrac = 100
    limit = 3000
    efirst = 0
    peek = 0
    only = 1
    lvs = 1
    lv = 1
    tk = 2
    tp = 4
    pc = 2
    diagx = 0
    bn0 = 199
    par = 0
    stag = 1
    st1 = 0
    tpos = 1
    probe = 1
    tagst = 0
    wpos = 1
    ninit = 6
    pol_st = ' sc1'
    xpre = ''
    svm = 4
    thr = 9
    xpos = 4
    two = 0
    classes = 4
    codepre = 2
    estr = 128
    srcpos = 8
    epre = ''
    diag = 0
    force = 0
    pol_in = ' nt'
    pol_e = ''
    pol_x = ''
    pol_out = ''

CNT, HB, HIST, FLAG = 0, 4096, 5120, 5376
B1T, B2T, TT = 6144, 6656, 7168
START = TT
EX, EE = 8192, 40960
RING = 73728
NSLOT = 15
MAP = RING
STAGE = MAP + 16384
LDS_TOTAL = 163840
WST = LDS_TOTAL - 52 * 1024
XP = 1056
SLOT = 4 * XP + 1024
OACC = 8192
def lds_bytes(): return LDS_TOTAL

PATTERNS = {
 191: [(0,0,'H',1),(2,0,'H',2),(3,0,'H',3),(3,1,'H',16),(2,1,'H',13),(0,0,'S',30),(1,1,'H',14),(1,0,'S',32),(2,0,'S',28),(3,0,'S',26),(0,1,'H',16),(2,1,'S',6),(1,1,'S',4)],
 192: [(0,0,'H',1),(2,0,'H',1),(3,0,'H',5),(3,1,'H',15),(2,1,'H',12),(0,0,'S',30),(1,1,'H',14),(1,0,'S',32),(2,0,'S',30),(3,0,'S',22),(0,1,'H',16),(3,1,'S',2),(2,1,'S',8),(1,1,'S',4)],
 193: [(0,0,'H',1),(2,0,'H',2),(3,0,'H',3),(3,1,'H',16),(2,1,'H',11),(0,0,'S',30),(1,1,'H',14),(1,0,'S',32),(2,0,'S',28),(3,0,'S',26),(0,1,'H',16),(2,1,'S',10),(1,1,'S',4)],
 194: [(0,0,'H',1),(2,0,'H',2),(3,0,'H',3),(3,1,'H',16),(2,1,'H',10),(0,0,'S',30),(1,1,'H',14),(1,0,'S',32),(2,0,'S',28),(3,0,'S',26),(0,1,'H',16),(2,1,'S',12),(1,1,'S',4)],
 195: [(0,0,'H',1),(2,0,'H',2),(3,0,'H',2),(3,1,'H',16),(2,1,'H',10),(0,0,'S',30),(1,1,'H',14),(1,0,'S',32),(2,0,'S',28),(3,0,'S',28),(0,1,'H',16),(2,1,'S',12),(1,1,'S',4)],
 196: [(0,0,'H',1),(2,0,'H',2),(3,0,'H',2),(3,1,'H',16),(2,1,'H',9),(0,0,'S',30),(1,1,'H',14),(1,0,'S',32),(2,0,'S',28),(3,0,'S',28),(0,1,'H',16),(2,1,'S',14),(1,1,'S',4)],
 197: [(0,0,'H',1),(2,0,'H',2),(3,0,'H',2),(3,1,'H',16),(2,1,'H',9),(0,0,'S',30),(1,1,'H',13),(1,0,'S',32),(2,0,'S',28),(3,0,'S',28),(0,1,'H',16),(2,1,'S',14),(1,1,'S',6)],
 198: [(0,0,'H',1),(2,0,'H',4),(3,1,'H',12),(2,1,'H',12),(0,0,'S',30),(1,1,'H',13),(1,0,'S',32),(2,0,'S',24),(3,0,'S',32),(0,1,'H',16),(3,1,'S',8),(2,1,'S',8),(1,1,'S',6)],
 199: [(1,0,'H',1),(2,0,'H',1),(3,0,'H',3),(3,1,'H',12),(2,1,'H',11),(0,0,'S',32),(1,1,'H',13),(1,0,'S',30),(2,0,'S',30),(3,0,'S',26),(0,1,'H',16),(3,1,'S',8),(2,1,'S',10),(1,1,'S',6)],
 200: [(0,0,'H',1),(2,0,'H',1),(3,0,'H',2),(3,1,'H',12),(2,1,'H',11),(0,0,'S',30),(1,1,'H',13),(1,0,'S',32),(2,0,'S',30),(3,0,'S',28),(3,1,'S',8),(0,1,'H',16),(2,1,'S',10),(1,1,'S',6)],
}
def pattern_table(BN):
    free = {(w, ph): list(range(32)) for w in range(4) for ph in range(2)}
    T = [None] * BN; p = 0; segs = []
    for w, ph, t, n in PATTERNS[BN]: segs.append((w, ph, t, p, n)); p += n
    assert p == BN
    for t0 in 'HS':
        for w, ph, t, p0, n in segs:
            if t != t0: continue
            for i in range(n):
                pos = free[(w, ph)].pop(0)
                if t == 'H': assert pos < 16; free[(w, ph)].remove(pos + 16)
                T[p0 + i] = (((w * 2 + ph) * 4096 + pos * 4 + 128) << 16) | (64 if t == 'H' else 128)
    assert all(not v for v in free.values())
    return T + [128] * (256 - BN)
def bucket_map():
    b0, b1 = P.bn0, 391 - P.bn0
    A = 128 * b0; M0 = -(-(1 << 24) // b0); M1 = -(-(1 << 24) // b1)
    for dn in range(N):
        f = dn * M0 + max(dn - A, 0) * (M1 - M0)
        assert f < 1 << 32 and f >> 24 == (dn // b0 if dn < A else 128 + (dn - A) // b1), dn
    return b0, b1, A, M0, M1

vN, vD, vQ, vY, vE = 0, 64, 128, 192, 224
vEX, vEE, vCX, vAX, vAE, vCE, vBX0, vBE0, vBX, vBE, vINFO, vDEG, vMAX = 240, 244, 245, 246, 247, 248, 249, 250, 251, 252, 253, 254, 255
aW1A, aW1C, aW1B, aW2, aBX, aBE, aJUNK = 0, 64, 80, 144, 208, 224, 228
aQB, aINFO = 232, 229
SX, SE, SW, SO, SD, SS = 12, 16, 20, 24, 68, 72
sB, sNB0, sNNODE, sWAVE, sMAP, sCOL = 28, 29, 30, 31, 32, 33
sXO = 36
s128, sSLOT, sRING0, sRING1, sT, sL, sLNEXT, sQROW = 40, 41, 42, 43, 44, 45, 46, 47
sLN2, sBAD = 48, 50
sJ, sSUM, sOTH = 52, 53, 54
sINC, sJUMP, sSTEP = 4, 6, 8
sSLOW, sCNT = 66, 67
mLO, mBN, mNN, mCH = 's[76:77]', 's[78:79]', 's[80:81]', 's[42:43]'
sTAG, sTAG8, sTAGH = 82, 83, 84
def R(p, b, n): return f'{p}[{b}:{b+n-1}]'
def srdn(s): return f's[{s}:{s+3}]'
SDWA = 'dst_sel:DWORD dst_unused:UNUSED_PAD src0_sel:DWORD src1_sel:'

def srd(a, d, lo, size):
    a(f's_mov_b32 s{d}, s{lo}'); a(f's_and_b32 s{d+1}, s{lo+1}, 0xffff')
    a(f's_mov_b32 s{d+2}, {size}'); a(f's_mov_b32 s{d+3}, 0x20000')
def wave_scan(a, v, fill=()):
    fill = list(fill)
    steps = [f'row_shr:{sh} row_mask:0xf bank_mask:0xf bound_ctrl:0' for sh in (1, 2, 4, 8)]
    steps += ['row_bcast:15 row_mask:0xa bank_mask:0xf', 'row_bcast:31 row_mask:0xc bank_mask:0xf']
    for s in steps:
        for x in fill[:2]: a(x)
        fill = fill[2:]
        a(f'v_add_u32_dpp v{v}, v{v}, v{v} {s}')
    for x in fill: a(x)
def mfma(d, A, B, C): return f'v_mfma_f32_32x32x16_bf16 {d}, {A}, {B}, {C}'
def m1(c, k, dst, first_c):
    first = k == 0
    if P.efirst: k = (k + 4) % 5
    A = R('a', aW1A + (c * 4 + k) * 4, 4) if k < 4 else R('a', aW1C + c * 4, 4)
    B = R('a', aBX + k * 4, 4) if k < 4 else R('a', aBE, 4)
    return mfma(R('v', dst, 16), A, B, R('v', first_c if first else dst, 16))
def isize(x):
    if x.endswith(':'): return 0
    op = x.split()[0]
    if op.startswith(('v_mfma', 'v_pk_', 'buffer_', 'ds_', 'global_', 'v_mad_', 'v_max3', 'v_cvt_pk', 'v_lshl_add', 'v_lshl_or', 'v_bfe', 'v_writelane',
                      'v_readlane', 's_mem', 'v_accvgpr', 'v_mbcnt', 'v_add_lshl', 'v_or3', 'v_and_or', 'v_bfi')) or op.endswith(('_e64', '_dpp', '_sdwa')): return 8
    if op.startswith('v_cmp') and not x.split()[1].startswith('vcc'): return 8
    for t in x.replace(',', ' ').split()[1:]:
        try: v = int(t, 0)
        except ValueError: continue
        if not -16 <= v <= 64 and not op.startswith(('s_movk', 's_waitcnt', 's_nop')): return 8
    return 4
def align8(a):
    n = 0; cand = None
    for i in range(len(a.items) - 1, -1, -1):
        it = a.items[i]
        if isinstance(it, str):
            if it.startswith(('.p2align', '; aligned')): break
            continue
        n += isize(it.text)
        if cand is None and isize(it.text) == 4 and it.op in ('v_exp_f32', 'v_rcp_f32', 'v_mul_f32', 'v_add_u32', 'v_lshlrev_b32', 'v_cvt_f32_u32'): cand = i
    if n % 8:
        if cand is None: a('s_nop 0')
        else: a.items[cand] = Ins(a.items[cand].text.replace(a.items[cand].op, a.items[cand].op + '_e64', 1))
    a.raw('; aligned')

def prep_offsets(a, vl, v1, v2, t0, t1):
    a(f'v_and_b32 v{t0}, 31, v{vl}'); a(f'v_lshrrev_b32 v{t1}, 5, v{vl}')
    a(f'v_lshlrev_b32 v{v1}, 11, v{t1}'); a(f'v_lshl_add_u32 v{v1}, v{t0}, 1, v{v1}')
    a(f'v_lshlrev_b32 v{v2}, 9, v{t1}')
    a(f'v_bfe_u32 v{t1}, v{t0}, 2, 1'); a(f'v_lshl_add_u32 v{v2}, v{t1}, 6, v{v2}')
    a(f'v_and_b32 v{t1}, 3, v{t0}'); a(f'v_lshl_add_u32 v{v2}, v{t1}, 1, v{v2}')
    a(f'v_lshrrev_b32 v{t1}, 3, v{t0}'); a(f'v_lshl_add_u32 v{v2}, v{t1}, 3, v{v2}')
def prep_w1_load(a, sidx, voff, vd, s0, s1):
    a(f's_and_b32 s{s0}, s{sidx}, 3'); a(f's_lshr_b32 s{s1}, s{sidx}, 2')
    a(f's_cmp_eq_u32 s{s1}, 4')
    a(f's_cselect_b32 s{s1}, s{s0}, s{s1}'); a(f's_cselect_b32 s{s0}, 8, s{s0}')
    a(f's_lshl_b32 s{s0}, s{s0}, 12'); a(f's_lshl_b32 s{s1}, s{s1}, 6'); a(f's_add_u32 s{s0}, s{s0}, s{s1}')
    a(f's_cmp_ge_u32 s{sidx}, 20'); a(f's_cselect_b32 s{s1}, {64*256 - 5*64}, 0'); a(f's_add_u32 s{s0}, s{s0}, s{s1}')
    for j in range(8): a(f'buffer_load_ushort v{vd+j}, v{voff}, {srdn(SD)}, s{s0} offen offset:{256*j}')
def prep_w2_load(a, sidx, voff, vd, s0, s1):
    a(f's_sub_u32 s{s0}, s{sidx}, 36'); a(f's_lshr_b32 s{s1}, s{s0}, 3'); a(f's_and_b32 s{s0}, s{s0}, 7')
    a(f's_lshl_b32 s{s0}, s{s0}, 11'); a(f's_lshl_b32 s{s1}, s{s1}, 5'); a(f's_add_u32 s{s0}, s{s0}, s{s1}')
    for j in range(8): a(f'buffer_load_ushort v{vd+j}, v{voff}, {srdn(SS)}, s{s0} offen offset:{128*((j&3)+8*(j>>2))}')
def prep_w1_pack(a, vd):
    for j in range(8): a(f'v_lshlrev_b32 v{vd+j}, 16, v{vd+j}')
    for j in range(8): a(f'v_mul_f32 v{vd+j}, {NLOG2E}, v{vd+j}')
    for j in range(4): a(f'v_cvt_pk_bf16_f32 v{vd+j}, v{vd+2*j}, v{vd+2*j+1}')
def prep_w2_pack(a, vd):
    for j in range(4): a(f'v_lshl_or_b32 v{vd+j}, v{vd+2*j+1}, 16, v{vd+2*j}')

def gen():
    D = P.depth
    BN0, BN1, NA, M0, M1 = bucket_map()
    assert D == 2 and RING + 7 * SLOT <= WST and RING + 8 * SLOT <= WST + 5 * 1024
    VW = 5 * (D - 1)
    a = Asm()
    def stamp(i, real=False):
        if not P.stamp: return
        if P.stamp == 6:
            if i in (2, 3, 4): return
            if i >= 20: i -= 18
        elif i >= 20: return
        if P.stamp == 3: real = True
        if P.stamp == 4 and i not in (0, 13): return
        if P.stamp == 5:
            if i not in (0, 8, 13): return
            real = True
        a(f's_mem{"real" if real else ""}time s[86:87]'); a('s_waitcnt lgkmcnt(0)'); a(f's_mov_b32 s{88+i}, s86')
    def poll(name, load, check, first_issued=False, first_wait=None, only=False):
        a(f's_movk_i32 s{sCNT}, {P.limit}')
        if first_wait is not None:
            if first_wait: a(first_wait)
            check()
            a(f's_cbranch_scc0 {name}_ok')
        elif first_issued: a(f's_branch {name}_chk')
        a.label(name)
        if only: a('s_mov_b64 exec, vcc')
        load()
        if only: a('s_mov_b64 exec, -1')
        a.label(name + '_chk')
        a('s_waitcnt vmcnt(0)')
        check()
        a(f's_cbranch_scc0 {name}_ok')
        a(f's_sub_u32 s{sCNT}, s{sCNT}, 1')
        a(f's_cbranch_scc0 {name}')
        a(f's_mov_b32 s{sSLOW}, 1')
        a.label(name + '_ok')

    epre = [int(ch) for ch in P.epre.strip()]
    xpre = [int(ch) for ch in P.xpre.strip()]
    def warm(pos):
        n = 0
        for i, p in enumerate(epre):
            if p != pos: continue
            a(f'v_add_u32 v124, {i*256*P.estr}, v126')
            if (i + 1) * 256 * P.estr > CH * 32: a(f'v_min_u32 v124, v124, v125')
            a(f'buffer_load_dword a{aJUNK}, v124, {srdn(SE)}, 0 offen')
            n += 1
        for i, p in enumerate(xpre):
            if p != pos: continue
            a('s_lshr_b32 s3, s2, 3'); a('s_lshl_b32 s35, s2, 2'); a('s_add_u32 s3, s3, s35'); a('s_and_b32 s3, s3, 31')
            a(f's_add_u32 s3, s3, {32*i}'); a('s_lshl_b32 s3, s3, 8')
            a('v_add_lshl_u32 v124, v0, s3, 7')
            a(f'buffer_load_dword a{aJUNK}, v124, {srdn(SX)}, s{sXO} offen')
            n += 1
        return n
    a('.p2align 8'); a.label(NAME + '_kernel')
    a(f's_cmp_ge_u32 s2, {NB}'); a('s_cbranch_scc1 L_end')
    stamp(0, True); stamp(1)
    a('s_load_dwordx8 s[4:11], s[0:1], 0')
    a('s_load_dwordx4 s[60:63], s[0:1], 64')
    a('s_load_dwordx2 s[64:65], s[0:1], 80')
    a('s_load_dwordx8 s[52:59], s[0:1], 32')
    a(f's_memrealtime s[{sTAG}:{sTAG+1}]')
    a('s_getpc_b64 s[14:15]')
    a.label('L_pc')
    a('v_lshlrev_b32 v15, 2, v0')
    if P.codepre == 2:
        a('v_min_u32 v3, 4, v0'); a('s_lshr_b32 s3, s2, 3'); a('v_lshl_add_u32 v3, v3, 5, s3'); a('v_lshlrev_b32 v3, 7, v3')
    elif P.codepre: a('v_lshlrev_b32 v3, 7, v0')
    if P.codepre:
        a('v_min_u32 v3, L_slow-L_pc, v3')
        a(f'global_load_dword a{aJUNK}, v3, s[14:15]')
    a('s_add_u32 s14, s14, L_table-L_pc')
    a('s_addc_u32 s15, s15, 0')
    a(f's_xor_b32 s85, s2, {P.par}'); a('s_and_b32 s85, s85, 1')
    a('v_lshl_add_u32 v3, s85, 10, v15')
    a('global_load_dword v11, v3, s[14:15]')
    a('v_lshrrev_b32 v1, 6, v0')
    a('v_and_b32 v2, 63, v0')
    a(f'v_readfirstlane_b32 s{sWAVE}, v1')
    a('v_lshlrev_b32 v21, 4, v0')
    for i in range(4): a(f'v_mov_b32 v{4+i}, 0')
    a('ds_write_b128 v21, v[4:7]')
    a('v_lshlrev_b32 v3, 3, v0')
    a(f'ds_write_b64 v3, v[4:5] offset:{HB}')
    a('v_mov_b32 v12, 0')
    a('v_mov_b32 v13, 1')
    a('v_lshlrev_b32 v9, 4, v2')
    a('v_cmp_gt_u32 vcc, 128, v0')
    a(f's_mul_i32 s3, s2, {CH*4}')
    for s in (SD, SS): a(f's_mov_b32 s{s+2}, {E*4}'); a(f's_mov_b32 s{s+3}, 0x20000')
    a(f's_mov_b64 {mLO}, vcc')
    a(f's_mov_b32 s{sSLOW}, 0')
    a('s_waitcnt lgkmcnt(0)')
    vDs, vSr, vB, vRk, vRec = 32, 48, 64, 80, 96
    a(f's_mov_b32 s{SD}, s10'); a(f's_and_b32 s{SD+1}, s11, 0xffff')
    a(f's_mov_b32 s{SS}, s8'); a(f's_and_b32 s{SS+1}, s9, 0xffff')
    for i in range(4): a(f's_add_u32 s{8+i}, s3, {4096*i}')
    a(f's_lshr_b32 s37, s2, {0 if P.tagst else 3}')
    a(f's_or_b32 s37, s37, s{sWAVE}')
    a('s_cbranch_scc1 L_notag')
    if P.force != 1:
        a(f's_or_b32 s{sTAG}, s{sTAG}, 1')
        a(f'v_mov_b32 v4, s{sTAG}'); a(f'v_mov_b32 v5, s{sTAG+1}')
        a('s_mov_b64 exec, 1')
        if P.tagst: a('global_store_dwordx2 v12, v[4:5], s[62:63] sc1')
        else: a('global_atomic_cmpswap_x2 v12, v[4:7], s[62:63] sc1')
        a('s_mov_b64 exec, -1')
    a.label('L_notag')
    a(f's_cmp_ge_u32 s2, {NCH}'); a('s_cbranch_scc1 L_prep_load')
    def edge_loads(srdn_, vb, so):
        for i in range(3): a(f'buffer_load_dwordx4 {R("v", vb+4*i, 4)}, v21, {srdn(srdn_)}, s{so+i} offen{P.pol_in}')
        a(f'buffer_load_dword v{vb+12}, v15, {srdn(srdn_)}, s{so+3} offen{P.pol_in}')
    edge_loads(SD, vDs, 8)
    a.label('L_setup')
    a('v_and_b32 v10, 3, v0')
    a('v_bfe_u32 v16, v0, 2, 4')
    a('v_lshl_add_u32 v10, v16, 3, v10')
    a('v_lshl_add_u32 v10, v1, 2, v10')
    a('v_lshrrev_b32 v16, 1, v0'); a('v_and_b32 v16, 32, v16'); a('v_xor_b32 v16, v16, v2')
    a(f'v_cndmask_b32 v10, v16, v10, {mLO}')
    a('v_lshlrev_b32 v10, 1, v10')
    a(f's_cmp_lt_u32 s{sWAVE}, 2')
    a('s_cselect_b64 s[54:55], s[54:55], s[58:59]')
    a(f's_cselect_b32 s34, {NLOG2E}, 1.0')
    a('global_load_ushort v10, v10, s[54:55]')
    for i in range(4): a(f'v_mov_b32 v{128+i}, {DUMMY}')
    a(f'v_add_u32 v132, {EX + 16384}, v21')
    init = [f'ds_write_b128 v132, v[128:131] offset:{4096*i}' for i in range(15, -1, -1)]
    init += [f'ds_write_b128 v21, v[128:131] offset:{EX + 4096*i}' for i in range(4)]
    assert P.ninit >= 4
    init, init2 = init[:P.ninit], init[P.ninit:]
    C = []
    C += [f's_bfe_u32 s{sB}, s2, 0x20001', f's_lshl_b32 s{sB}, s{sB}, 5', 's_lshr_b32 s3, s2, 3', f's_add_u32 s{sB}, s{sB}, s3',
          f's_bitcmp{1 - P.par}_b32 s2, 0', f's_cselect_b32 s59, {BN1}, s38', f's_cselect_b32 s3, {NA}, 0', 's_cselect_b32 s35, 128, 0',
          f's_mul_i32 s{sNB0}, s{sB}, s59', f's_add_u32 s{sNB0}, s{sNB0}, s3', f's_add_u32 s{sB}, s{sB}, s35',
          f's_sub_u32 s{sNNODE}, {N}, s{sNB0}', f's_min_u32 s{sNNODE}, s{sNNODE}, s59',
          f's_lshl_b32 s{sCOL}, s{sB}, 3', f's_add_u32 s{sCOL}, s{sCOL}, {WS_TAB}']
    a(f's_movk_i32 s38, {BN0}')
    for x in C: a(x)
    C = []
    C += [f's_sub_u32 s{SX}, s4, {3*XP}', f's_subb_u32 s{SX+1}, s5, 0', f's_and_b32 s{SX+1}, s{SX+1}, 0xffff',
          f's_mov_b32 s{SX+2}, {(N*128 + 3*XP) * P.xfrac // 100}', f's_mov_b32 s{SX+3}, 0x20000']
    for d, lo, size in ((SE, 6, E * 32 * P.efrac // 100), (SO, 60, N * 128), (SW, 64, WS_SIZE)):
        C += [f's_mov_b32 s{d}, s{lo}', f's_and_b32 s{d+1}, s{lo+1}, 0xffff', f's_mov_b32 s{d+2}, {size}', f's_mov_b32 s{d+3}, 0x20000']
    C += [f's_movk_i32 s{sXO+j}, {(3-j)*XP}' for j in range(4)]
    C += [f's_movk_i32 s{s128}, 128', f's_mov_b32 s{sLN2}, {NLN2}', f's_mov_b32 s{sLN2+1}, {NLN2}', f's_mov_b64 s[{sBAD}:{sBAD+1}], 0']
    C += [f's_lshl_b32 s{sMAP}, s{sWAVE}, 12', f's_add_u32 s{sMAP}, s{sMAP}, {MAP}']
    C += [f's_lshl_b32 s{sQROW}, s{sWAVE}, 13', f's_add_u32 s{sQROW}, s{sQROW}, {EX}']
    C += [f's_mul_i32 s{sSLOT}, s{sWAVE}, {D*SLOT}', f's_add_u32 s{sSLOT}, s{sSLOT}, {RING}']
    C += ['v_and_b32 v16, 7, v2', 'v_lshrrev_b32 v18, 5, v2', 'v_xor_b32 v16, v16, v18', f'v_lshlrev_b32 v{vCX}, 4, v16']
    C += ['v_and_b32 v17, 1, v2', f'v_lshlrev_b32 v{vCE}, 4, v17']
    C += ['v_bfe_u32 v16, v2, 1, 2', f'v_mul_u32_u24 v16, {XP}, v16', 'v_bfe_u32 v20, v2, 3, 2', 'v_lshl_add_u32 v16, v20, 7, v16',
          'v_lshl_add_u32 v16, v17, 9, v16', 'v_xor_b32 v20, v17, v18', f'v_lshl_add_u32 v{vBX0}, v20, 4, v16']
    C += ['v_bfe_u32 v16, v2, 1, 4', 'v_lshl_add_u32 v16, v17, 4, v16', 'v_lshlrev_b32 v16, 5, v16', 'v_lshl_add_u32 v16, v18, 4, v16',
          f'v_add_u32 v{vBE0}, {4*XP}, v16']
    C += ['v_lshrrev_b32 v16, 3, v2', f'v_lshl_add_u32 v{vAX}, v16, 4, s{sQROW}']
    C += ['v_lshrrev_b32 v16, 1, v2', f'v_lshl_add_u32 v{vAE}, v16, 2, s{sQROW}']
    C += ['v_and_b32 v16, 31, v2', 'v_lshlrev_b32 v16, 2, v16', 'v_lshl_add_u32 v16, v18, 12, v16', f'v_add_u32 v25, s{sQROW}, v16']
    C += [f'v_add_u32 v24, s{sNB0}, v0', f'v_cmp_gt_u32 {mBN}, s59, v0', f'v_cmp_gt_u32 {mNN}, s{sNNODE}, v0',
          'v_and_b32 v134, 255, v24', 'v_lshlrev_b32 v134, 4, v134',
          f's_add_u32 s3, s{sNB0}, 240', 's_and_b32 s3, s3, 255', 's_lshl_b32 s3, s3, 4', 'v_mov_b32 v135, s3']
    C += ['v_lshlrev_b32 v19, 2, v2', 'v_lshlrev_b32 v14, 3, v2', 'v_lshlrev_b32 v30, 11, v0', f'v_cmp_gt_u32 vcc, {NCH}, v0', 's_nop 0', f's_mov_b64 {mCH}, vcc', 'v_cndmask_b32 v30, v128, v30, vcc', 'v_and_b32 v31, 31, v0', 'v_lshlrev_b32 v31, 4, v31', 'v_lshl_add_u32 v31, v0, 12, v31']
    C += ['v_min_u32 v3, 5, v2', f'v_add_u32 v3, {NCH}, v3', 'v_lshlrev_b32 v133, 11, v3']
    C += [f's_mov_b32 s55, {M0}', f's_movk_i32 s56, {M1 - M0}', 's_movk_i32 s57, 335', f'v_mov_b32 v23, {NA}',
          f's_mov_b32 s58, { {1: 0, 2: 0x80000}.get(P.classes, 0xc0000)}']
    k = 0
    while init or C:
        if init: a(init.pop(0))
        for x in C[:6]: a(x)
        C = C[6:]
        k += 1
        if k == P.srcpos:
            a(f's_cmp_ge_u32 s2, {NCH}'); a('s_cbranch_scc1 L_nosrc')
            edge_loads(SS, vSr, 8)
            a.label('L_nosrc')
    if epre:
        a(f's_mul_i32 s3, s2, {CH*32}'); a(f'v_mul_u32_u24 v126, {P.estr}, v0'); a('v_add_u32 v126, s3, v126')
        a(f's_add_u32 s3, s3, {CH*32-128}'); a('v_mov_b32 v125, s3')
    n0 = warm(0)
    a('s_waitcnt lgkmcnt(0)')
    a('s_barrier')
    tagload = lambda: a('global_load_dwordx2 v[16:17], v12, s[62:63] sc1')
    def tagcheck():
        a(f'v_readfirstlane_b32 s{sTAG}, v16'); a(f'v_readfirstlane_b32 s{sTAG8}, v17')
        a(f's_cmp_eq_u32 s{sTAG}, 0')
    a(f's_cmp_ge_u32 s2, {NCH}'); a('s_cbranch_scc1 L_prep_store')
    for b, (lo, hi) in enumerate(((0, 4), (4, 8), (8, 13)) if P.stag else ((0, 13),)):
        a(f's_waitcnt vmcnt({5 + n0 + ((3, 2, 0)[b] if P.stag else 0)})')
        if hi == 13: stamp(2); tagload()
        for i in range(lo, hi): a(f'v_mul_u32_u24 v{vB+i}, s55, v{vDs+i}')
        for i in range(lo, hi): a(f'v_sub_u32_e64 v{vRk+i}, v{vDs+i}, v23 clamp')
        for i in range(lo, hi): a(f'v_mad_u32_u24 v{vB+i}, v{vRk+i}, s56, v{vB+i}')
        for i in range(lo, hi): a(f'v_lshlrev_b32_sdwa v{vB+i}, 2, v{vB+i} {SDWA}BYTE_3')
        for i in range(lo, hi):
            if i == 12: a(f's_mov_b64 exec, {mLO}')
            a(f'ds_add_rtn_u32 v{vRk+i}, v{vB+i}, v13 offset:{HB}')
    a('s_mov_b64 exec, -1')
    for i in range(13): a(f'v_lshlrev_b32_sdwa v{vDs+i}, 20, v{vDs+i} {SDWA}BYTE_0')
    a(f's_mov_b32 s3, {STAGE // 8}')
    a('s_waitcnt lgkmcnt(0)')
    a('s_barrier')
    a(f'ds_read_b128 v[26:29], v9 offset:{HB}')
    for i in range(13): a(f'v_add_u32 v{vRk+i}, s3, v{vRk+i}')
    F = [f'v_mul_u32_u24 v{vRec+2*i}, s57, v{vSr+i}' for i in range(13)]
    F += [f'v_lshrrev_b32 v{vRec+2*i}, 4, v{vRec+2*i}' for i in range(13)]
    F += [f'v_and_or_b32 v{vRec+2*i}, v{vRec+2*i}, s58, v{vSr+i}' for i in range(13)]
    a(f's_waitcnt vmcnt({1+n0}) lgkmcnt(0)')
    a('v_add_u32 v5, v26, v27'); a('v_add_u32 v6, v5, v28'); a('v_add_u32 v7, v6, v29')
    a('v_mov_b32 v3, v7')
    wave_scan(a, 3, F[:12])
    a('v_sub_u32 v4, v3, v7'); a('v_add_u32 v7, v4, v6'); a('v_add_u32 v6, v4, v5'); a('v_add_u32 v5, v4, v26')
    a(f'ds_write_b128 v9, v[4:7] offset:{START}')
    for i in range(13): a(f'ds_read_b32 v{vB+i}, v{vB+i} offset:{START}')
    for x in F[12:]: a(x)
    def gettag(name, **kw):
        poll(name, tagload, tagcheck, **kw)
        a(f's_and_b32 s{sTAG8}, s{sTAG8}, 0xff')
        a(f's_lshl_b32 s{sTAGH}, s{sTAG}, 4')
        a(f's_and_b32 s{sTAGH}, s{sTAGH}, 0xfffff000')
    def pubrow(name):
        a.raw("; wave 3 writes this chunk's table row: 256 x {start | cnt<<12 | tag8<<24, tag}")
        a(f's_sub_u32 s3, 3, s{sWAVE}'); a(f's_or_b32 s3, s3, s{sSLOW}'); a(f's_cbranch_scc1 {name}')
        if P.force == 2: a('s_cmp_eq_u32 s2, 7'); a(f's_cbranch_scc1 {name}')
        for i in range(4):
            a(f'v_lshl_or_b32 v{136+2*i}, v{26+i}, 12, v{4+i}')
            a(f'v_mov_b32 v{137+2*i}, s{sTAG}')
        for i in range(4): a(f'v_lshl_or_b32 v{136+2*i}, s{sTAG8}, 24, v{136+2*i}')
        a('s_lshl_b32 s3, s2, 11'); a(f's_add_u32 s3, s3, {WS_TAB}')
        a('v_lshlrev_b32 v3, 5, v2')
        a(f'buffer_store_dwordx4 v[136:139], v3, {srdn(SW)}, s3 offen sc1')
        a(f'buffer_store_dwordx4 v[140:143], v3, {srdn(SW)}, s3 offen offset:16 sc1')
        a.label(name)
    gettag('L_ptag', first_wait='s_waitcnt vmcnt(0)')
    if P.stamp == 3 and P.st1 == 0: stamp(1)
    pubrow('L_norow')
    a(f's_lshl_b32 s3, s{sTAGH}, 16')
    if P.force == 3: a('s_cmp_eq_u32 s2, 9'); a('s_cselect_b32 s35, 0x10000000, 0'); a('s_xor_b32 s3, s3, s35')
    a(f'v_add_u32 v22, s{sTAGH}, v15')
    a(f'v_add_u32 v20, s{sTAGH}, v0')
    a('s_waitcnt lgkmcnt(0)')
    for lo, hi in (((0, 4), (4, 8), (8, 13)) if P.stag else ((0, 13),)):
        for i in range(lo, hi):
            a(f'v_or3_b32 v{vRec+2*i}, v{vRec+2*i}, v{vDs+i}, s3')
            a(f'v_add_u32 v{vRec+2*i+1}, {(i>>2)*1024 + (i&3)}, v{22 if i < 12 else 20}')
        for i in range(lo, hi):
            a(f'v_add_lshl_u32 v{vB+i}, v{vB+i}, v{vRk+i}, 3')
        for i in range(lo, hi):
            if i == 12: a(f's_mov_b64 exec, {mLO}')
            a(f'ds_write_b64 v{vB+i}, {R("v", vRec+2*i, 2)}')
    a('s_mov_b64 exec, -1')
    a('v_lshlrev_b32 v10, 16, v10')
    a('v_mul_f32 v10, s34, v10')
    a(f'ds_write_b32 v15, v10 offset:{B1T}')
    a(f'v_add_u32 v3, {STAGE}, v21')
    a('v_lshl_add_u32 v20, v1, 8, v9')
    a(f'v_add_u32 v22, {STAGE + 24576}, v20')
    a('s_and_b32 s3, s2, 31'); a('s_lshl_b32 s35, s2, 8'); a('s_add_u32 s3, s3, s35'); a('s_lshl_b32 s3, s3, 7')
    wload = lambda: a(f'buffer_load_dwordx2 v[122:123], v133, {srdn(SW)}, s{sCOL} offen sc1')
    tload = lambda: a(f'buffer_load_dwordx2 v[16:17], v30, {srdn(SW)}, s{sCOL} offen sc1')
    a('s_waitcnt lgkmcnt(0)')
    a('s_barrier')
    if P.stamp == 3 and P.st1 == 1: stamp(1)
    for i in range(6): a(f'ds_read_b128 {R("v", 32+4*i, 4)}, v3 offset:{4096*i}')
    a('ds_read_b128 v[56:59], v22')
    if P.tpos == 0: tload()
    for i in range(7):
        a(f's_waitcnt lgkmcnt({6-i})')
        if i == 6: a('s_mov_b64 exec, 0xffff')
        a(f'buffer_store_dwordx4 {R("v", 32+4*i, 4)}, v{21 if i < 6 else 20}, {srdn(SW)}, s3 offen{P.pol_st}')
        if i < 6: a('s_add_u32 s3, s3, 4096')
    a('s_mov_b64 exec, -1')
    if P.peek: a(f'v_not_b32 v17, s{sTAG}'); a(f's_xor_b32 s35, s{sTAG8}, 1'); a('v_lshlrev_b32_e64 v16, 24, s35')
    if P.tpos == 1: tload()
    if not P.probe: wload()
    a('s_barrier')
    stamp(3)
    a(f'ds_write_b32 v15, v11 offset:{TT}')
    for x in init2: a(x)
    if P.peek:
        a.label('L_peek')
        a(f'v_cmp_ne_u32 s[56:57], s{sTAG}, v17')
        a(f'v_cmp_ne_u32_sdwa vcc, v16, s{sTAG8} src0_sel:BYTE_3 src1_sel:DWORD')
        a('s_or_b64 vcc, vcc, s[56:57]'); a(f's_and_b64 vcc, vcc, {mCH}')
        a('s_cbranch_scc0 L_peeked')
        a('s_getreg_b32 s3, hwreg(HW_REG_IB_STS, 0, 4)')
        a('s_cmp_lg_u32 s3, 0'); a('s_cbranch_scc1 L_peek')
        a.label('L_peeked')
        if P.stamp == 3: stamp(1)
    a(f's_waitcnt vmcnt({7 if P.tpos == 0 else 0})')
    a.label('L_consume')
    a(f's_cmp_lg_u32 s{sSLOW}, 0'); a('s_cbranch_scc1 L_skipB')
    def tcheck(v, mask=None):
        def f():
            a(f'v_cmp_ne_u32 s[56:57], s{sTAG}, v{v+1}')
            a(f'v_cmp_ne_u32_sdwa vcc, v{v}, s{sTAG8} src0_sel:BYTE_3 src1_sel:DWORD')
            a('s_or_b64 vcc, vcc, s[56:57]')
            if mask: a(f's_and_b64 vcc, vcc, {mask}')
        return f
    poll('L_pt', tload, tcheck(16, mCH), first_wait='', only=P.only)
    stamp(4)
    def weights():
        poll('L_pw', wload, tcheck(122), first_wait='')
        a(f's_mul_i32 s3, s{sWAVE}, {13*1024}')
        a(f's_add_u32 s35, s3, {WS_W}')
        a(f's_add_u32 m0, s3, {WST}')
        for i in range(13):
            if i and i % 4 == 0: a('s_add_u32 m0, m0, 4096'); a('s_add_u32 s35, s35, 4096')
            a(f'buffer_load_dwordx4 v9, {srdn(SW)}, s35 offen offset:{(i%4)*1024} sc1 lds')
        return 13
    if P.wpos == 3: assert not P.probe; weights()
    a('v_bfe_u32 v17, v16, 12, 12')
    a('v_and_b32 v16, 0xfff, v16')
    a('v_mov_b32 v18, v17')
    a('v_add_u32 v16, v16, v31')
    a('v_add_lshl_u32 v22, v16, v17, 3')
    a('v_sub_u32_e64 v22, v22, 4 clamp')
    pload = lambda: a(f'buffer_load_dword v23, v22, {srdn(SW)}, 0 offen sc1')
    if P.probe: pload(); wload()
    wave_scan(a, 18, ['v_cmp_lt_u32 s[56:57], 16, v17', 'v_cmp_lt_u32 s[58:59], 8, v17',
                      'v_cmp_lt_u32 s[60:61], 0, v17', 'v_cmp_lt_u32 vcc, 24, v17', f'v_add_u32 v20, s{sMAP}, v19'])
    a('v_sub_u32 v3, v18, v17')
    a('v_readlane_b32 s3, v18, 63')
    a('v_sub_u32 v16, v16, v3')
    a(f'v_lshl_add_u32 v18, v3, 2, s{sMAP}')
    a('v_lshlrev_b32 v16, 3, v16')
    a(f's_cmp_gt_u32 s3, {NSLOT*64}')
    a(f's_cselect_b32 s{sSLOW}, 1, s{sSLOW}')
    a(f's_cmp_lg_u32 s{sSLOW}, 0'); a('s_cbranch_scc1 L_skipB')
    a('v_lshl_add_u32 v3, s3, 2, v20')
    for m, j0 in (('s[56:57]', 16), ('s[58:59]', 8), ('s[60:61]', 0)):
        a(f's_mov_b64 exec, {m}')
        for j in range(j0 + 7, j0 - 1, -1): a(f'ds_write_b32 v18, v16 offset:{4*j}')
    a('s_mov_b64 exec, -1')
    a('ds_write_b32 v3, v128')
    a('s_cbranch_vccz L_nomap')
    a.label('L_map')
    for j in range(24, 28):
        a(f'v_cmpx_lt_u32 vcc, {j}, v17')
        a(f'ds_write_b32 v18, v16 offset:{4*j}')
    a('v_add_u32 v18, 16, v18')
    a('v_subrev_u32 v17, 4, v17')
    a('s_cbranch_execnz L_map')
    a('s_mov_b64 exec, -1')
    a.label('L_nomap')
    vR, vI, vK, vP, vA, vT, vCB = 32, 64, 80, 96, 144, 160, 176
    for i in range(NSLOT): a(f'ds_read_b32 v{vA+i}, v20 offset:{256*i}')
    def pcheck():
        a(f'v_xor_b32 v3, s{sTAGH}, v23')
        a('v_cmp_lt_u32 vcc, 0xfff, v3')
        a('s_and_b64 vcc, vcc, s[60:61]')
    a('s_movk_i32 s34, 4096')
    a('s_waitcnt lgkmcnt(0)')
    for i in range(NSLOT): a(f'v_add_u32 v{vA+i}, v{vA+i}, v14')
    if P.probe: a('s_waitcnt vmcnt(0)')
    if P.wpos == 0: weights()
    if P.probe: poll('L_pp', pload, pcheck, first_wait='', only=P.only)
    stamp(5)
    a(f's_cmp_lg_u32 s{sSLOW}, 0'); a('s_cbranch_scc1 L_skipB')
    rec = lambda i: a(f'buffer_load_dwordx2 {R("v", vR+2*i, 2)}, v{vA+i}, {srdn(SW)}, {"s34" if i >= 8 else "0"} offen offset:{512*(i%8)} sc1')
    for i in range(NSLOT): rec(i)
    def ownx():
        a('v_lshlrev_b32 v29, 7, v24')
        a(f'buffer_load_dword a{aJUNK}, v29, {srdn(SX)}, s{sXO} offen')
        return 1
    n3 = 0
    if P.wpos == 1: n3 += weights()
    nx = 0
    if P.xpos == 3: nx += ownx()
    nx += warm(3)
    n3 += nx
    for i in range(NSLOT): a(f'v_bfe_i32 v{vT+i}, v{vA+i}, 30, 1')
    for i in range(NSLOT): a(f'v_bfi_b32 v{vT+i}, v{vT+i}, v135, s{sTAGH}')
    stamp(6)
    retry = []
    for b, (lo, hi) in enumerate(((0, 6), (6, 11), (11, 15))):
        a(f's_movk_i32 s{sCNT}, {P.limit}')
        a(f's_waitcnt vmcnt({NSLOT-hi+n3})')
        a.label(f'L_chk{b}')
        for i in range(lo, hi): a(f'v_xor_b32 v{vR+2*i+1}, v{vT+i}, v{vR+2*i+1}')
        for i in range(lo, hi): a(f'v_xor_b32_sdwa v{vI+i}, v{vT+i}, v{vR+2*i} dst_sel:DWORD dst_unused:UNUSED_PAD src0_sel:WORD_0 src1_sel:WORD_1')
        for i in range(lo, hi): a(f'v_or3_b32 v3, v{vI+i}, v{vR+2*i+1}, {"v3" if i > lo else "0"}')
        a('v_cmp_lt_u32 vcc, 0xfff, v3')
        if lo == 11:
            for i in range(lo, hi): a(f'v_cmp_ne_u32 s[{58+2*(i-lo)}:{59+2*(i-lo)}], v135, v{vI+i}')
        a(f's_cbranch_vccnz L_retry{b}')
        retry.append((b, lo, hi))
        for i in range(lo, hi):
            if lo == 11: a(f's_mov_b64 exec, s[{58+2*(i-lo)}:{59+2*(i-lo)}]')
            a(f'ds_add_rtn_u32 v{vK+i}, v{vI+i}, v13 offset:{CNT}')
    a('s_mov_b64 exec, -1')
    if P.wpos == 2: weights(); nx = 0
    if P.xpos == 4: nx += ownx()
    nx += warm(4)
    a.label('L_skipB')
    EO = []
    for i in range(NSLOT):
        if i: EO.append(f'v_add_u32 v{vA+i}, {512*i}, v{vA+i}')
    EO += [f'v_lshrrev_b32 v{vA+i}, 15, v{vA+i}' for i in range(NSLOT)]
    EO += [f'v_mad_u32_u24 v{vR+2*i+1}, v{vA+i}, s3, v{vR+2*i+1}' for i in range(NSLOT)]
    EO += [f'v_lshlrev_b32 v{vR+2*i+1}, 5, v{vR+2*i+1}' for i in range(NSLOT)]
    a(f's_movk_i32 s3, {CH}')
    for x in EO[:24]: a(x)
    a(f's_mov_b64 exec, {mBN}')
    a('s_waitcnt lgkmcnt(0)')
    a('s_barrier')
    stamp(7)
    a(f'ds_read_b128 v[4:7], v134 offset:{CNT}')
    a('s_waitcnt lgkmcnt(0)')
    a('v_add_u32 v5, v4, v5'); a('v_add_u32 v6, v5, v6'); a('v_add_u32 v16, v6, v7')
    a('v_min_u32 v17, 63, v16')
    a('v_sub_u32 v17, 63, v17')
    a('v_lshlrev_b32 v17, 2, v17')
    a(f'ds_add_rtn_u32 v18, v17, v13 offset:{HIST}')
    a('v_sub_u32 v26, v16, v4'); a('v_sub_u32 v27, v16, v5'); a('v_sub_u32 v28, v16, v6')
    a('v_lshrrev_b32 v23, 1, v16')
    a('v_lshl_or_b32 v23, v23, 16, v24')
    a('v_or_b32 v23, 0xc00000, v23')
    a('s_mov_b64 exec, -1')
    for x in EO[24:40]: a(x)
    a('s_waitcnt lgkmcnt(0)')
    a('s_barrier')
    stamp(20)
    a(f'ds_read_b32 v20, v19 offset:{HIST}')
    a(f'v_mov_b32 v3, {(32768 - 4) << 16}')
    a(f'ds_write_b32 v135, v3 offset:{CNT}')
    for x in EO[40:]: a(x)
    a('s_waitcnt lgkmcnt(1)')
    a('v_mov_b32 v3, v20')
    wave_scan(a, 3)
    a('v_sub_u32 v20, v3, v20')
    a('ds_bpermute_b32 v20, v17, v20')
    a(f's_mov_b64 exec, {mNN}')
    a('s_waitcnt lgkmcnt(0)')
    a('v_add_lshl_u32 v20, v20, v18, 2')
    a(f'ds_read_b32 v22, v20 offset:{TT}')
    a('s_waitcnt lgkmcnt(0)')
    a('v_and_b32 v3, 0x10000000, v22')
    a('v_lshlrev_b32 v29, 16, v22')
    a('v_cmp_ne_u32 vcc, 0, v3')
    a('v_bfe_u32 v3, v22, 6, 1')
    a('v_add_u32 v16, v16, v3')
    a('v_cndmask_b32 v7, v6, v12, vcc'); a('v_cndmask_b32 v6, v5, v28, vcc')
    a('v_cndmask_b32 v5, v4, v27, vcc'); a('v_cndmask_b32 v4, v12, v26, vcc')
    for i in range(4): a(f'v_mad_u32_u24 v{4+i}, v{4+i}, v29, v22')
    a('v_lshrrev_b32 v16, v3, v16')
    a('v_lshrrev_b32 v22, 16, v22')
    a('v_lshl_or_b32 v24, v3, 22, v24')
    a('v_cmp_lt_u32 s[56:57], 30, v16')
    a('v_lshl_or_b32 v24, v16, 16, v24')
    a('v_cmp_ne_u32 vcc, 0, v3')
    a(f'ds_write_b128 v134, v[4:7] offset:{CNT}')
    a(f'ds_write_b32 v22, v24 offset:{EX - 128}')
    a('s_mov_b64 exec, vcc')
    a(f'ds_write_b32 v22, v23 offset:{EX - 64}')
    a(f's_or_b32 s56, s56, s{sSLOW}')
    a('s_mov_b64 exec, s[56:57]')
    a(f'ds_write_b32 v12, v13 offset:{FLAG}')
    a('s_mov_b64 exec, -1')
    a(f'v_add_u32 v3, {WST}, v9')
    a(f's_waitcnt vmcnt({nx}) lgkmcnt(0)')
    a('s_barrier')

    ell_read = [f'ds_read_b128 {R("v", vEX, 4)}, v{vAX}', f'ds_read_b32 v{vEE}, v{vAE} offset:{EE-EX}']
    jump = [f's_sub_u32 s{sJ}, s{sJ}, 1', f's_cselect_b64 s[{sINC}:{sINC+1}], s[{sJUMP}:{sJUMP+1}], s[{sSTEP}:{sSTEP+1}]']
    ell_adv = [f'v_lshl_add_u64 v[{vAX}:{vAE}], v[{vAX}:{vAE}], 0, s[{sINC}:{sINC+1}]']
    xaddr = [f'v_mad_u32_u16 v{vEX+j}, v{vEX+j}, s{s128}, v{vCX}' for j in range(4)]
    eaddr = f'v_add_u32 v{vEE}, v{vEE}, v{vCE}'
    m0x = f's_mov_b32 m0, s{sSLOT}'; m0e = f's_add_u32 m0, s{sSLOT}, {4*XP}'
    dmax = [f'buffer_load_dwordx4 v{vEX+j}, {srdn(SX)}, s{sXO+j} offen offset:{j*XP}{P.pol_x} lds' for j in range(4)]
    dmae = f'buffer_load_dwordx4 v{vEE}, {srdn(SE)}, 0 offen{P.pol_e} lds'
    adv = [f's_sub_u32 s{sSLOT}, s{sSUM}, s{sSLOT}']
    baddr = [f'v_add_u32 v{vBX}, s{sSLOT}, v{vBX0}', f'v_add_u32 v{vBE}, s{sSLOT}, v{vBE0}']
    bread = [f'ds_read_b128 {R("a", aBX+4*k, 4)}, v{vBX} offset:{32*k}' for k in range(4)] + [f'ds_read_b128 {R("a", aBE, 4)}, v{vBE}']
    breadk = bread[4:] + bread[:4] if P.efirst else bread
    PFa = [m0x] + xaddr + [eaddr] + dmax + [m0e] + [adv[0]] + [dmae] + adv[1:]
    PFb = ell_read + jump + ell_adv
    PF = PFa + PFb + baddr

    stamp(21)
    vG = 112
    a(f'ds_read_b32 v16, v12 offset:{FLAG}')
    a(ell_read[0])
    a(f'ds_read_b128 {R("v", vG, 4)}, v{vAX} offset:4096')
    for i in range(NSLOT - 3): a(f'ds_read_b32 v{vP+i}, v{vI+i} offset:{CNT}')
    a(f's_mul_i32 s35, s{sWAVE}, {8*XP}'); a(f's_add_u32 s35, s35, {RING}'); a('s_mov_b32 m0, s35')
    a(f's_waitcnt lgkmcnt({NSLOT - 4})')
    for i in range(NSLOT - 3, NSLOT): a(f'ds_read_b32 v{vP+i}, v{vI+i} offset:{CNT}')
    a('ds_read_b32 v17, v25')
    a('v_readfirstlane_b32 s3, v16')
    alt = lambda L: [x.replace(R('v', vEX, 4), R('v', vG, 4)).replace(f'v{vEX}', f'v{vG}').replace(f'v{vEX+1}', f'v{vG+1}').replace(f'v{vEX+2}', f'v{vG+2}')
                      .replace(f'v{vEX+3}', f'v{vG+3}').replace(f'v{vEE}', f'v{vG+4}') for x in L]
    for x in xaddr + alt(xaddr): a(x)
    a('s_cmp_lg_u32 s3, 0'); a('s_cbranch_scc1 L_slow')
    def celladdr(lo, hi):
        for i in range(lo, hi): a(f'v_mul_u32_u24_sdwa v{vK+i}, v{vK+i}, v{vP+i} {SDWA}WORD_0')
        for i in range(lo, hi): a(f'v_add_u32_sdwa v{vP+i}, v{vK+i}, v{vP+i} {SDWA}WORD_1')
    if not P.pc:
        for x in dmax: a(x)
        a(f's_add_u32 m0, s35, {4*XP}')
        for x in alt(dmax): a(x)
        for lo, hi in ((0, 8), (8, 15)):
            a(f's_waitcnt lgkmcnt({NSLOT - hi + 1 if hi < NSLOT else 0})')
            celladdr(lo, hi)
    ellw = lambda i: a(f'ds_write2st64_b32 v{vP+i}, v{vR+2*i}, v{vR+2*i+1} offset0:{EX//256} offset1:{EE//256}')
    def fill_all():
        for i in range(NSLOT):
            if i >= 11: a(f's_mov_b64 exec, s[{58+2*(i-11)}:{59+2*(i-11)}]')
            ellw(i)
        a('s_mov_b64 exec, -1')
    if P.two:
        MS = [4, 6, 8, 10, 68, 70, 72, 74]
        a('s_movk_i32 s3, 0x180')
        for lo, hi in ((0, 8), (8, 15)):
            for i in range(lo, hi): a(f'v_and_b32 v{vK+i}, 0x1fff, v{vP+i}')
            for i in range(lo, hi): a(f'v_cmp_gt_u32 s[{MS[i-lo]}:{MS[i-lo]+1}], s3, v{vK+i}')
            for i in range(lo, hi): a(f's_mov_b64 exec, s[{MS[i-lo]}:{MS[i-lo]+1}]'); ellw(i)
            a('s_mov_b64 exec, -1')
    elif P.pc:
        dm = dmax + [f's_add_u32 m0, s35, {4*XP}', 's_nop 0'] + alt(dmax)
        for lo, hi, nd in ((0, 4, 3), (4, 8, 5), (8, 11, 2), (11, 15, 0)) if P.pc == 1 else ((0, 5, 4), (5, 10, 6), (10, 15, 0)):
            for x in dm[:nd]: a(x)
            dm = dm[nd:]
            a(f's_waitcnt lgkmcnt({min(NSLOT - hi + 1 + lo, 15)})')
            celladdr(lo, hi)
            for i in range(lo, hi):
                if i >= 11: a(f's_mov_b64 exec, s[{58+2*(i-11)}:{59+2*(i-11)}]')
                ellw(i)
        assert not dm
        a('s_mov_b64 exec, -1')
        a('s_waitcnt lgkmcnt(10)')
    else: fill_all()
    wread = [f'ds_read_b128 {R("a", 4*i, 4)}, v3 offset:{1024*i}' for i in range(52)]
    for x in wread[:5]: a(x)
    a('v_bfe_u32 v17, v17, 16, 6')
    a(f'v_add_u32 v{vBX}, s35, v{vBX0}')
    a(f'v_add_u32 v{vAX}, 128, v{vAX}')
    for sh in (1, 2, 4, 8): a(f'v_max_u32_dpp v17, v17, v17 row_shr:{sh} row_mask:0xf bank_mask:0xf bound_ctrl:0')
    a('v_max_u32_dpp v17, v17, v17 row_bcast:15 row_mask:0xa bank_mask:0xf')
    a(f'v_add_u32 v{vAE}, 128, v{vAE}')
    a(f'v_readlane_b32 s{sL}, v17, 31')
    a(f'v_readlane_b32 s{sLNEXT}, v17, 63')
    stamp(22)
    a('s_waitcnt vmcnt(0)')
    for x in bread[:4]: a(x)
    for k in range(4): a(f'ds_read_b128 {R("a", aQB+4*k, 4)}, v{vBX} offset:{4*XP + 32*k}')
    a(f's_max_u32 s{sL}, s{sL}, 1')
    a(f's_max_u32 s{sLNEXT}, s{sLNEXT}, 1')
    if P.thr and P.tk:
        a(f's_add_u32 s55, s{sL}, s{sLNEXT}'); a(f's_mul_i32 s55, s55, {-P.tk}'); a(f's_add_i32 s55, s55, {P.thr + 26*P.tk}')
        if P.tp: a(f's_and_b32 s3, s2, 1'); a(f's_mul_i32 s3, s3, {P.tp}'); a('s_sub_i32 s55, s55, s3')
        a('s_max_i32 s55, s55, 0')
    elif P.thr: a(f's_movk_i32 s55, {P.thr}')
    if P.thr: a(f's_min_u32 s55, s55, s{sL}')
    if P.stamp: a(f's_add_u32 s{sCNT}, s{sL}, s{sLNEXT}')
    a(f's_lshl_b32 s3, s{sL}, 7')
    a(f's_sub_u32 s{sJUMP}, {4096 + 128}, s3'); a(f's_mov_b32 s{sJUMP+1}, s{sJUMP}')
    a(f's_movk_i32 s{sSTEP}, 128'); a(f's_movk_i32 s{sSTEP+1}, 128')
    a(f's_lshl_b32 s{sSUM}, s{sSLOT}, 1'); a(f's_add_u32 s{sSUM}, s{sSUM}, {SLOT}')
    a(f's_sub_u32 s{sJ}, s{sL}, 1')
    if P.stamp: a(f's_mov_b32 s{88+10}, 0')
    for x in jump: a(x)
    a('s_waitcnt lgkmcnt(0)')
    a('s_barrier')
    stamp(8)
    for x in alt(ell_read) + ell_adv + PFb: a(x)
    a('s_waitcnt lgkmcnt(2)')
    for x in alt(PFa): a(x)
    a('s_waitcnt lgkmcnt(0)')
    if P.two:
        a.raw("; a group of one row makes the second row read above a second group's row: read it again after the full fill")
        a(f's_cmp_eq_u32 s{sL}, 1'); a('s_cbranch_scc1 L_one')
        for x in PFa: a(x)
        a.label('L_one')
        fill_all()
    else:
        for x in PF: a(x)

    a.raw('; Q = W1b x[dst] + b1')
    a(f'v_lshrrev_b32 v{vE+1}, 3, v{vBE0}')
    a(f'v_and_b32 v{vE}, 16, v{vBE0}')
    a(f'v_and_b32 v{vE+1}, -4, v{vE+1}')
    a(f'v_lshlrev_b32 v{vE}, 4, v{vE}')
    a(f's_sub_u32 s3, s{sQROW}, {4*XP//8}')
    a(f'v_add_u32 v{vE+1}, s3, v{vE+1}')
    a(f'ds_read_b32 v{vINFO}, v{vE+1}')
    a(f'ds_read_b32 a{aINFO}, v{vE+1} offset:4096')
    for x in wread[20:36]: a(x)
    for i in range(16): a(f'ds_read_b128 {R("v", vQ+4*i, 4)}, v{vE} offset:{B1T + 16*i}')
    a('s_waitcnt lgkmcnt(0)')
    pf = wread[5:20] + wread[36:]
    if P.two:
        a('s_barrier')
        a(f's_cmp_lg_u32 s{sL}, 1'); a('s_cbranch_scc1 L_notone')
        a(f'v_subrev_u32 v{vE+2}, 128, v{vAX}'); a(f'v_subrev_u32 v{vE+3}, 128, v{vAE}')
        a(ell_read[0].replace(f'v{vAX}', f'v{vE+2}')); a(ell_read[1].replace(f'v{vAE}', f'v{vE+3}'))
        a('s_waitcnt lgkmcnt(0)')
        for x in PFa: a(x)
        a.label('L_notone')
        pf = PFb + baddr + pf
    qm = lambda c, k, b: mfma(R('v', vQ+16*c, 16), R('a', aW1B + (c*4+k)*4, 4), R('a', b+4*k, 4), R('v', vQ+16*c, 16))
    for c in range(4):
        for k in range(4):
            a(qm(c, k, aBX))
            for x in pf[:4]: a(x)
            pf = pf[4:]
    assert not pf
    a(f's_waitcnt vmcnt({VW})')
    for x in bread: a(x)
    stamp(9)
    a('s_waitcnt lgkmcnt(0)')
    pf = list(PF)
    for k in range(5):
        a(m1(0, k, vN, vQ))
        n = 3 if k < 4 else 99
        for x in pf[:n]: a(x)
        pf = pf[n:]
    a('.p2align 3')
    a.label('L_first')
    a(f'v_bfe_u32 v{vDEG}, v{vINFO}, 16, 6')
    a(f's_mov_b32 s{sT}, 1')
    for c in range(4):
        cn = (c + 1) & 3
        if c == 3: a('s_waitcnt lgkmcnt(0)')
        for k in range(5):
            a(m1(cn, k, vN + 16*cn if c < 3 else vY, vQ + 16*cn))
            if c == 2:
                if k == 0:
                    a(f's_waitcnt vmcnt({VW+4})'); a(f's_cmp_eq_u32 s{sLNEXT}, 0'); a('s_cbranch_scc1 L_w2')
                    a(f's_waitcnt vmcnt({VW})'); a.label('L_w2')
                a(breadk[k])
            for i in range(3*k, 3*k + (3 if k < 4 else 4)): a(f'v_exp_f32 v{vD+16*c+i}, v{vN+16*c+i}')
        align8(a)
        for p in range(8):
            d = R('v', vD + 16*c + 2*p, 2)
            a(f'v_pk_add_f32 {d}, {d}, 1.0 op_sel_hi:[1,0]')
    a(f's_cmp_ge_u32 s{sT}, s{sL}'); a('s_cbranch_scc1 L_flush')
    oth = f's_sub_u32 s{sOTH}, s{sSUM}, s{sSLOT}'
    bnext = f'v_add_u32 v{vBE}, s{sOTH}, v{vBE0}'
    m0top = lambda lv: m0e if lv == 1 else m0x
    def rows(name, lv, vm, send):
        a('.p2align 3')
        a.label(name)
        for c in range(4):
            cn = (c + 1) & 3
            y = vY + 16 * (c & 1); yn = vY + 16 * (cn & 1)
            S = [[] for _ in range(5)]
            V = [[] for _ in range(5)]
            cmpx = f'v_cmpx_lt_u32 vcc, s{sT}, v{vDEG}'
            if c == 0:
                S[1] = ['s_mov_b64 exec, -1']; S[2] = [jump[0]]; S[3] = [jump[1]]
                if lv == 0:
                    V[1] = xaddr[:2]; V[2] = xaddr[2:]; V[3] = [eaddr]
                    V[4] = dmax + [m0e, ell_read[0], dmae, ell_read[1]] + ell_adv + [cmpx]
                if lv == 1:
                    V[1] = [eaddr] + xaddr[:2]; V[2] = xaddr[2:]; S[3] += [dmae]; S[4] = [m0x, ell_read[1]]
                    V[4] = dmax + ell_read[:1] + ell_adv + [cmpx]
            if c == 1:
                S[0] = [adv[0]]
                S[3] = [f's_add_u32 s{sT}, s{sT}, 1']
                V[4] = [baddr[0]]
            if c == 2:
                for k in range(5): S[k] = [breadk[k]]
                S[0].insert(0, f's_waitcnt vmcnt({vm})')
                S[4].insert(0, 's_waitcnt lgkmcnt(3)')
            if c == 3:
                S[0] = ['s_waitcnt lgkmcnt(0)']
                if P.stamp == 2: S[0] = ['s_memrealtime s[86:87]', 's_waitcnt lgkmcnt(0)', f's_mov_b32 m0, s{sT}', 's_nop 0', f'v_writelane_b32 v{vMAX}, s86, m0']
                S[1] = [oth]
                S[2] = [m0top(lv)]
                S[3] = [f's_cmp_lt_u32 s{sT}, s{send}']
                V[4] = [bnext]
            for k in range(5):
                if (c, k) != (0, 0): a(m1(cn, k, yn, vQ + 16*cn))
                for x in S[k]: a(x)
                for i in range(3*k, 3*k + (3 if k < 4 else 4)): a(f'v_exp_f32 v{vE+i}, v{y+i}')
                for x in V[k]: a(x)
            align8(a)
            for p in range(8):
                yy, nn, dd, ee = R('v', y+2*p, 2), R('v', vN+16*c+2*p, 2), R('v', vD+16*c+2*p, 2), R('v', vE+2*p, 2)
                a(f'v_pk_fma_f32 {yy}, {yy}, {dd}, {nn}')
                a(f'v_pk_fma_f32 {dd}, {dd}, {ee}, {dd}')
                a(f'v_pk_fma_f32 {nn}, {nn}, {ee}, {yy}')
        a(m1(1, 0, vY + 16, vQ + 16))
        a(f's_cbranch_scc1 {name}')
    a(oth); a(m0top(P.lv)); a(bnext)
    if P.thr: a(f's_cmp_ge_u32 s{sT}, s55')
    a(m1(1, 0, vY + 16, vQ + 16))
    if P.thr:
        a.raw('; the first rows run with a shorter look-ahead')
        a('s_cbranch_scc1 L_row')
        a(m0top(P.lvs))
        rows('L_srow', P.lvs, P.svm, 55)
        a(m0top(P.lv))
        a(f's_cmp_ge_u32 s{sT}, s{sL}'); a('s_cbranch_scc1 L_flush')
    rows('L_row', P.lv, VW, sL)
    a.label('L_flush')
    if P.stamp:
        a(f's_cmp_lg_u32 s{88+10}, 0'); a('s_cbranch_scc1 L_st10'); stamp(10); a.label('L_st10')
        stamp(11)
    a('s_mov_b64 exec, -1')
    if P.stamp == 2:
        a(f'v_writelane_b32 v{vMAX}, s{sL}, 0')
        a(f'v_mbcnt_lo_u32_b32 v{vE}, -1, 0'); a(f'v_mbcnt_hi_u32_b32 v{vE}, -1, v{vE}'); a(f'v_lshlrev_b32 v{vE}, 2, v{vE}')
        a('s_lshl_b32 s3, s2, 2'); a(f's_add_u32 s3, s3, s{sWAVE}'); a('s_lshl_b32 s3, s3, 8'); a(f's_add_u32 s3, s3, {WS_STAMP + 65536}')
        a(f's_cmp_eq_u32 s{sLNEXT}, 0'); a('s_cselect_b32 s56, 128, 0'); a('s_add_u32 s3, s3, s56')
        a('s_mov_b32 exec_hi, 0')
        a(f'buffer_store_dword v{vMAX}, v{vE}, {srdn(SW)}, s3 offen')
        a('s_mov_b64 exec, -1')
    a(f'v_and_b32 v{vE+8}, 16, v{vBE0}')
    a(f's_cmp_eq_u32 s{sLNEXT}, 0')
    a(f'v_lshlrev_b32 v{vMAX}, 4, v{vE+8}')
    a('s_cbranch_scc1 L_last')
    def g3(c, i):
        u = 2*c + (i >> 1); dt = i & 1
        acc = R('v', vY + 16*dt, 16)
        return mfma(acc, R('a', aW2 + (dt*8+u)*4, 4), R('v', vE + 8*(c & 1) + 4*(i >> 1), 4), acc if u else '0')
    b1r = [f'ds_read_b128 {R("v", vQ+4*i, 4)}, v{vMAX} offset:{B1T + 16*i}' for i in range(16)]
    b2r = [f'ds_read_b128 {R("v", vD+4*i, 4)}, v{vMAX} offset:{B2T + 16*i}' for i in range(8)]
    rcp = lambda c: [f'v_rcp_f32 v{vD+16*c+i}, v{vD+16*c+i}' for i in range(16)]
    hcv = lambda c: [f'v_cvt_pk_bf16_f32 v{vE+8*(c&1)+p}, v{vN+16*c+2*p}, v{vN+16*c+2*p+1}' for p in range(8)]
    mul = [f'v_mul_f32 v{vD+i}, v{vD+i}, v{vDEG}' for i in range(32)]
    dpp = [f'v_add_f32_dpp v{vD+i}, v{vD+i}, v{vD+i} quad_perm:[1,0,3,2] row_mask:0xf bank_mask:0xf' for i in range(32)]
    cvt = [f'v_cvt_pk_bf16_f32 v{vE+p}, v{vD+2*p}, v{vD+2*p+1}' for p in range(16)]
    sto = [f'buffer_store_dwordx4 {R("v", vE+4*i, 4)}, v{vINFO}, {srdn(SO)}, 0 offen offset:{16*i}{P.pol_out}' for i in range(4)]
    def window(M, G):
        assert len(M) == len(G)
        for m, g in zip(M, G):
            if m: a(m)
            for x in g: a(x)
    def flush(more):
        a('.p2align 3')
        if more:
            for x in b1r[:4] + baddr: a(x)
        a(f'v_bfe_u32 v{vE+9}, v{vINFO}, 22, 2')
        a(f'v_lshlrev_b32 v{vE+8}, 2, v{vE+8}')
        a(f'v_cmp_ne_u32 s[58:59], 0, v{vE+9}')
        a(f'v_cmp_ne_u32 s[60:61], 3, v{vE+9}')
        a(f'v_cmp_ne_u32 s[62:63], 0, v{vDEG}')
        a(f'v_mad_u32_u16 v{vINFO}, v{vINFO}, s{s128}, v{vE+8}')
        a(f'v_cvt_f32_u32 v{vDEG}, v{vDEG}')
        a(f's_mov_b32 s3, {f32(2.0**120)}')
        align8(a)
        for i in range(16):
            acc = R('v', vE + 2*(i & 1), 2)
            if i < 2: a(f'v_pk_mul_f32 {acc}, {R("v", vD+4*i, 2)}, {R("v", vD+4*i+2, 2)}')
            else: a(f'v_pk_fma_f32 {acc}, {R("v", vD+4*i, 2)}, {R("v", vD+4*i+2, 2)}, {acc}')
        a(f'v_pk_add_f32 {R("v", vE, 2)}, {R("v", vE, 2)}, {R("v", vE+2, 2)}')
        chk = [f'v_add_f32 v{vE}, v{vE}, v{vE+1}', f'v_cmp_nge_f32 s[56:57], s3, v{vE}']
        for c in range(4):
            r = rcp(c)
            if c == 0 and more:
                a('s_waitcnt lgkmcnt(0)')
                rd = bread + b1r[4:11]
                window([qm(0, k, aQB) for k in range(4)], [rd[3*k:3*k+3] + r[4*k:4*k+4] + chk[k:k+1] for k in range(4)])
            elif c == 0:
                for x in r[:4] + chk[:1] + r[4:8] + chk[1:] + r[8:]: a(x)
            elif more:
                h = hcv(c - 1)
                M = [qm(c, 0, aQB), qm(c, 1, aQB), g3(c-1, 0), g3(c-1, 1), qm(c, 2, aQB), g3(c-1, 2), qm(c, 3, aQB), g3(c-1, 3)]
                Vv = [h[:4], h[4:], r[:2], r[2:4], r[4:6], r[6:9], r[9:12], r[12:]]
                if c == 1:
                    a('s_waitcnt lgkmcnt(3)')
                    Pre = [[m0e, b1r[11]], [dmae], [m0x], dmax[:2], dmax[2:], [jump[0]] + ell_read, [jump[1]], ['s_waitcnt lgkmcnt(2)']]
                    Post = [[eaddr], xaddr[:2], xaddr[2:], [], [], [], adv, ell_adv + baddr]
                if c == 2:
                    Pre = [b1r[12:14], b1r[14:], b2r[:2], b2r[2:4], b2r[4:6], b2r[6:7], b2r[7:], ['s_waitcnt lgkmcnt(8)']]
                    Post = [[]] * 8
                if c == 3:
                    Pre = [[], ['s_waitcnt lgkmcnt(0)'], [], [], [], [], [], []]
                    Post = [[], [], mul[:1], mul[1:2], [], [], [], mul[2:3]]
                window(M, [Pre[i] + Vv[i] + Post[i] for i in range(8)])
            else:
                for x in hcv(c - 1): a(x)
                Pre = [b2r[2*q:2*q+2] if c == 2 else [] for q in range(4)]
                Post = [[], [], [], []]
                if c == 3: Pre[1] = ['s_waitcnt lgkmcnt(0)']; Post[3] = mul[:3]
                window([g3(c-1, q) for q in range(4)], [Pre[q] + r[4*q:4*q+4] + Post[q] for q in range(4)])
            align8(a)
            for p in range(8):
                nn, dd = R('v', vN+16*c+2*p, 2), R('v', vD+16*c+2*p, 2)
                a(f'v_pk_mul_f32 {nn}, {nn}, {dd}')
        for x in hcv(3): a(x)
        window([g3(3, q) for q in range(4)],
               [['s_and_b64 s[56:57], s[56:57], s[62:63]'] + mul[3:9], [f's_or_b64 s[{sBAD}:{sBAD+1}], s[{sBAD}:{sBAD+1}], s[56:57]'] + mul[9:15],
                ['s_movk_i32 s3, 0x207'] + mul[15:21], mul[21:] + ['s_mov_b64 exec, s[62:63]']])
        align8(a)
        for p in range(16):
            yy, dd = R('v', vY+2*p, 2), R('v', vD+2*p, 2)
            a(f'v_pk_fma_f32 {dd}, {yy}, s[{sLN2}:{sLN2+1}], {dd}')
        a(f'v_cmp_class_f32_e64 vcc, v{vD}, s3')
        bad = f's_or_b64 s[{sBAD}:{sBAD+1}], s[{sBAD}:{sBAD+1}], vcc'
        if more:
            window([m1(0, k, vN, vQ) for k in range(5)],
                   [['s_mov_b64 exec, s[58:59]', bad] + dpp[:6], [f's_mov_b32 s{sL}, s{sLNEXT}', f's_mov_b32 s{sLNEXT}, 0'] + dpp[6:12],
                    dpp[12:18], dpp[18:24], dpp[24:]])
        else:
            for x in ['s_mov_b64 exec, s[58:59]', bad] + dpp: a(x)
        a('s_mov_b64 exec, s[60:61]'); a('s_mov_b32 s55, 0')
        for x in cvt[:8] + sto[:2] + cvt[8:] + sto[2:]: a(x)
        a('s_mov_b64 exec, -1')
    flush(True)
    a(f'v_accvgpr_read_b32 v{vINFO}, a{aINFO}')
    a('s_branch L_first')
    a.label('L_last')
    flush(False)
    if P.stamp:
        a('s_waitcnt vmcnt(0)'); stamp(12); stamp(13, True)
        for i in range(14): a(f'v_writelane_b32 v1, s{88+i}, {i}')
        a(f'v_writelane_b32 v1, s{sCNT}, 14')
        a('s_getreg_b32 s3, hwreg(HW_REG_XCC_ID, 0, 4)'); a('v_writelane_b32 v1, s3, 15')
        a('v_mbcnt_lo_u32_b32 v2, -1, 0'); a('v_mbcnt_hi_u32_b32 v2, -1, v2'); a('v_lshlrev_b32 v2, 2, v2')
        a('s_lshl_b32 s3, s2, 2'); a(f's_add_u32 s3, s3, s{sWAVE}'); a('s_lshl_b32 s3, s3, 6'); a(f's_add_u32 s3, s3, {WS_STAMP}')
        a('s_mov_b64 exec, 0xffff')
        a(f'buffer_store_dword v1, v2, {srdn(SW)}, s3 offen')
        a('s_mov_b64 exec, -1')
    a(f's_cmp_eq_u64 s[{sBAD}:{sBAD+1}], 0')
    a('v_mov_b32 v1, 0'); a('v_mov_b32 v2, 1')
    a('s_cbranch_scc1 L_nobad')
    a(f'ds_write_b32 v1, v2 offset:{FLAG}')
    a.label('L_nobad')
    a('s_waitcnt lgkmcnt(0)')
    a('s_barrier')
    a(f'ds_read_b32 v2, v1 offset:{FLAG}')
    a('s_waitcnt lgkmcnt(0)')
    a('v_readfirstlane_b32 s3, v2')
    a('s_cmp_lg_u32 s3, 0'); a('s_cbranch_scc1 L_slow')
    if P.diag:
        if P.diagx:
            a('s_getreg_b32 s3, hwreg(HW_REG_XCC_ID, 0, 4)'); a('s_xor_b32 s3, s3, s2'); a(f's_and_b32 s3, s3, {P.diagx}'); a('s_cbranch_scc0 L_end')
        a.label('L_diag')
        a('s_memrealtime s[86:87]'); a('s_waitcnt lgkmcnt(0)')
        a(f's_sub_u32 s86, s86, s{sTAG}'); a(f's_cmp_lt_u32 s86, {P.diag}'); a('s_cbranch_scc1 L_diag')
    a.label('L_end')
    a('s_endpgm')

    for b, lo, hi in retry:
        a.label(f'L_retry{b}')
        for i in range(lo, hi): rec(i)
        a('s_waitcnt vmcnt(0)')
        a(f's_sub_u32 s{sCNT}, s{sCNT}, 1')
        a(f's_cbranch_scc0 L_chk{b}')
        a(f's_mov_b32 s{sSLOW}, 1')
        a('s_branch L_skipB')
    a.label('L_prep_load')
    srd(a, SD, 52, 144 * 128 * 2); srd(a, SS, 56, 128 * 64 * 2)
    prep_offsets(a, 2, 26, 27, 28, 29)
    a(f's_sub_u32 s85, s2, {NCH}'); a('s_lshl_b32 s85, s85, 2'); a(f's_add_u32 s85, s85, s{sWAVE}')
    prep_w1_load(a, 85, 26, 32, 34, 35)
    a('s_add_u32 s3, s85, 24'); a('s_min_u32 s3, s3, 35')
    prep_w1_load(a, 3, 26, 40, 34, 35)
    a('s_add_u32 s3, s85, 28'); a('s_max_u32 s3, s3, 36')
    prep_w2_load(a, 3, 27, 48, 34, 35)
    a('s_branch L_setup')
    a.label('L_prep_store')
    a('s_waitcnt vmcnt(0)')
    tagload()
    prep_w1_pack(a, 32); prep_w1_pack(a, 40); prep_w2_pack(a, 48)
    for add, lim, vd in ((0, None, 32), (24, 's_min_u32 s3, s3, 35', 40), (28, 's_max_u32 s3, s3, 36', 48)):
        a(f's_add_u32 s3, s85, {add}')
        if lim: a(lim)
        a('s_lshl_b32 s3, s3, 10'); a(f's_add_u32 s3, s3, {WS_W}')
        a(f'buffer_store_dwordx4 {R("v", vd, 4)}, v9, {srdn(SW)}, s3 offen sc1')
    a('v_lshlrev_b32 v10, 16, v10')
    a('v_mul_f32 v10, s34, v10')
    a(f'ds_write_b32 v15, v10 offset:{B1T}')
    a(f'ds_write_b32 v15, v11 offset:{TT}')
    for i in range(4): a(f'v_mov_b32 v{26+i}, 0'); a(f'v_mov_b32 v{4+i}, 0')
    gettag('L_ptag2', first_issued=True)
    a('s_barrier')
    pubrow('L_norow2')
    tload()
    if not P.probe: wload()
    for x in init2: a(x)
    a('s_waitcnt vmcnt(0)')
    a('s_branch L_consume')

    a.label('L_slow')
    a('s_mov_b64 exec, -1')
    a('s_waitcnt vmcnt(0) lgkmcnt(0)')
    a('s_load_dwordx2 s[52:53], s[0:1], 32')
    a('s_load_dwordx2 s[56:57], s[0:1], 48')
    a('s_load_dwordx4 s[8:11], s[0:1], 16')
    a('s_barrier')
    vL, vS, vH, vT0, vT1, vOA, vD4 = 240, 241, 242, 244, 245, 246, 252
    a(f'v_mbcnt_lo_u32_b32 v{vL}, -1, 0'); a(f'v_mbcnt_hi_u32_b32 v{vL}, -1, v{vL}')
    a(f'v_and_b32 v{vS}, 31, v{vL}')
    a(f'v_lshrrev_b32 v{vH}, 5, v{vL}')
    a(f's_lshl_b32 s3, s{sWAVE}, 10')
    a(f'v_lshl_add_u32 v4, v{vL}, 4, s3')
    for i in range(4): a(f'v_mov_b32 v{i}, 0')
    for i in range(13): a(f'ds_write_b128 v4, v[0:3] offset:{OACC + 4096*i}')
    a('s_waitcnt lgkmcnt(0)')
    srd(a, SD, 52, 144 * 128 * 2); srd(a, SS, 56, 128 * 64 * 2)
    prep_offsets(a, vL, 26, 27, 28, 29)
    a(f'v_add_u32 v4, {WST}, v4')
    a(f's_mov_b32 s85, s{sWAVE}')
    a.label('L_s_w1')
    prep_w1_load(a, 85, 26, 32, 34, 35)
    a('s_waitcnt vmcnt(0)')
    prep_w1_pack(a, 32)
    a('ds_write_b128 v4, v[32:35]')
    a('v_add_u32 v4, 4096, v4')
    a('s_add_u32 s85, s85, 4'); a('s_waitcnt lgkmcnt(0)'); a('s_cmp_lt_u32 s85, 36'); a('s_cbranch_scc1 L_s_w1')
    a.label('L_s_w2')
    prep_w2_load(a, 85, 27, 32, 34, 35)
    a('s_waitcnt vmcnt(0)')
    prep_w2_pack(a, 32)
    a('ds_write_b128 v4, v[32:35]')
    a('v_add_u32 v4, 4096, v4')
    a('s_add_u32 s85, s85, 4'); a('s_waitcnt lgkmcnt(0)'); a('s_cmp_lt_u32 s85, 52'); a('s_cbranch_scc1 L_s_w2')
    a('s_barrier')
    a(f'v_lshlrev_b32 v4, 4, v{vL}'); a(f'v_add_u32 v4, {WST}, v4')
    for i in range(52): a(f'ds_read_b128 {R("a", 4*i, 4)}, v4 offset:{1024*i}')
    srd(a, SD, 10, E * 4); srd(a, SS, 8, E * 4)
    sE0, sJj = 56, 57
    a(f's_lshl_b32 s{sE0}, s{sWAVE}, 9')
    a(f'v_lshlrev_b32 v243, 4, v{vS}')
    a.label('L_s_blk')
    a(f'buffer_load_dwordx4 {R("v", vD4, 4)}, v243, {srdn(SD)}, s{sE0} offen')
    a(f's_mov_b32 s{sJj}, 0')
    a('s_waitcnt vmcnt(0)')
    a.label('L_s_sub')
    a(f'v_subrev_u32 v248, s{sNB0}, v{vD4}')
    a(f'v_cmp_gt_u32 s[60:61], s{sNNODE}, v248')
    a('s_cmp_eq_u64 s[60:61], 0'); a('s_cbranch_scc1 L_s_next')
    a(f's_add_u32 s3, s{sE0}, s{sJj}')
    a(f'buffer_load_dword v{vT0}, v243, {srdn(SS)}, s3 offen')
    a(f'v_lshlrev_b32 v247, 8, v{vH}')
    for i in range(16): a(f'ds_read_b128 {R("v", vQ+4*i, 4)}, v247 offset:{B1T + 16*i}')
    a(f'v_lshlrev_b32 v247, 4, v{vH}')
    a(f'v_add_lshl_u32 v{vT1}, v243, s3, 3')
    a(f'v_add_u32 v{vT1}, v{vT1}, v247')
    a(f'v_lshl_add_u32 v249, v{vD4}, 7, v247')
    a(f'v_mul_u32_u24 v{vOA}, 260, v248')
    a(f'v_lshl_add_u32 v{vOA}, v{vH}, 7, v{vOA}')
    a('s_waitcnt vmcnt(0)')
    a(f'v_lshl_add_u32 v{vT0}, v{vT0}, 7, v247')
    a('s_mov_b64 exec, s[60:61]')
    for k in range(4): a(f'buffer_load_dwordx4 {R("a", aBX+4*k, 4)}, v{vT0}, {srdn(SX)}, s{sXO} offen offset:{32*k}')
    a(f'buffer_load_dwordx4 {R("a", aBE, 4)}, v{vT1}, {srdn(SE)}, 0 offen')
    for k in range(4): a(f'buffer_load_dwordx4 {R("v", vE+4*k, 4)}, v249, {srdn(SX)}, s{sXO} offen offset:{32*k}')
    a('s_waitcnt vmcnt(0) lgkmcnt(0)')
    for c in range(4):
        q = R('v', vQ+16*c, 16)
        for k in range(4): a(mfma(q, R('a', aW1B + (c*4+k)*4, 4), R('v', vE+4*k, 4), q))
        for k in range(5): a(m1(c, k, vQ+16*c, vQ+16*c))
    for i in range(64): a(f'v_exp_f32 v{vD+i}, v{vQ+i}')
    for i in range(64): a(f'v_add_f32 v{vD+i}, 1.0, v{vD+i}')
    for i in range(64): a(f'v_rcp_f32 v{vD+i}, v{vD+i}')
    for i in range(64): a(f'v_mul_f32 v{vD+i}, v{vD+i}, v{vQ+i}')
    for i in range(32): a(f'v_cvt_pk_bf16_f32 v{vN+i}, v{vD+2*i}, v{vD+2*i+1}')
    a(f'v_lshlrev_b32 v247, 7, v{vH}')
    for i in range(8): a(f'ds_read_b128 {R("v", vQ+4*i, 4)}, v247 offset:{B2T + 16*i}')
    for dt in range(2):
        acc = R('v', vY + 16*dt, 16)
        for u in range(8): a(mfma(acc, R('a', aW2 + (dt*8+u)*4, 4), R('v', vN + 4*u, 4), acc if u else '0'))
    a('s_waitcnt lgkmcnt(0)')
    for i in range(32): a(f'v_fma_f32 v{vY+i}, v{vY+i}, s{sLN2}, v{vQ+i}')
    for i in range(32): a(f'ds_add_f32 v{vOA}, v{vY+i} offset:{OACC + 4*i}')
    a('s_mov_b64 exec, -1')
    a('s_waitcnt lgkmcnt(0)')
    a.label('L_s_next')
    for i in range(3): a(f'v_mov_b32 v{vD4+i}, v{vD4+i+1}')
    a(f's_add_u32 s{sJj}, s{sJj}, 4')
    a(f's_cmp_lt_u32 s{sJj}, 16'); a('s_cbranch_scc1 L_s_sub')
    a(f's_add_u32 s{sE0}, s{sE0}, 2048')
    a(f's_cmp_lt_u32 s{sE0}, {E*4}'); a('s_cbranch_scc1 L_s_blk')
    a('s_barrier')
    a(f's_lshl_b32 s3, s{sWAVE}, 1')
    a(f'v_add_u32 v1, s3, v{vH}')
    a.label('L_s_out')
    a(f'v_cmp_gt_u32 vcc, s{sNNODE}, v1')
    a('v_mul_u32_u24 v4, 260, v1')
    a(f'v_lshl_add_u32 v4, v{vS}, 3, v4')
    a(f'v_add_u32 v4, {OACC}, v4')
    a(f'v_add_u32 v5, s{sNB0}, v1')
    a('v_lshlrev_b32 v5, 7, v5')
    a(f'v_lshl_add_u32 v5, v{vS}, 2, v5')
    a('s_and_b64 exec, exec, vcc')
    a('s_cbranch_execz L_s_end')
    a('ds_read2_b32 v[2:3], v4 offset0:0 offset1:1')
    a('s_waitcnt lgkmcnt(0)')
    a('v_cvt_pk_bf16_f32 v2, v2, v3')
    a(f'buffer_store_dword v2, v5, {srdn(SO)}, 0 offen')
    a('v_add_u32 v1, 8, v1')
    a('s_branch L_s_out')
    a.label('L_s_end')
    a('s_endpgm')
    a('.p2align 7')
    a.raw('.type L_table,@object')
    a.label('L_table')
    T = pattern_table(BN0) + pattern_table(BN1)
    for i in range(0, 512, 8): a.raw('.long ' + ', '.join(hex(x) for x in T[i:i+8]))
    a.raw('.size L_table, 2048')
    return a

HEADER = """;
;
;     and a table row {start, count} per bucket to d_ws; 250..255 lay out the weights as MFMA operands
"""
if __name__ == '__main__':
    for kv in sys.argv[2:]:
        k, v = kv.split('=')
        cur = getattr(P, k)
        setattr(P, k, int(v) if isinstance(cur, int) else (' ' + v.replace('+', ' ') if v else ''))
    k = gen()
    for p in check_all_edges(k): print('HAZARD on branch edge', p, file=sys.stderr)
    print('instrs', sum(1 for x in k.items if not isinstance(x, str)), 'auto nops', k.nops, file=sys.stderr)
    out = open('cdna_kernels/' + NAME + '.s.ref').read().split('; Override launch')[0]
    out += f'; @launch grid=({NB},1,1) block=(256,1,1) lds={lds_bytes()}\n'
    out += HEADER + '.amdgcn_target "amdgcn-amd-amdhsa--gfx950"\n.text\n'
    out += f'.globl {NAME}_kernel\n.type {NAME}_kernel,@function\n' + k.text().replace('; aligned\n', '')
    out += f'''.section .rodata,"a"
.p2align 6
.amdhsa_kernel {NAME}_kernel
  .amdhsa_next_free_vgpr 512
  .amdhsa_next_free_sgpr 102
  .amdhsa_accum_offset 256
  .amdhsa_group_segment_fixed_size 0
  .amdhsa_kernarg_size 88
  .amdhsa_user_sgpr_count 2
  .amdhsa_user_sgpr_kernarg_segment_ptr 1
  .amdhsa_system_sgpr_workgroup_id_x 1
.end_amdhsa_kernel
'''
    open(sys.argv[1], 'w').write(out)
```

```python
import sys, struct
from asmlib import Asm, Ins, check_all_edges

NAME = 'standalone__edge_featured_mpnn_mpnn__graph'
N, E = 50000, 800000
NB = 256
NCH, CH = 256, 3125
WS_REC, WS_TAB = 0, 8 << 20
WS_SIZE = 10 << 20
WS_STAMP = (9 << 20) + (512 << 10)
DUMMY = 0x4000FFFF
def f32(x): return struct.unpack('<I', struct.pack('<f', x))[0]
NLOG2E = f32(-1.4426950408889634)
NLN2 = f32(-0.6931471805599453)

class P:
    depth = 2
    stamp = 0
    efrac = 100
    xfrac = 100
    limit = 3000
    late = 0
    w1 = 4
    w2 = 9
    iw = 1
    bat = 0
    fs = 5
    efirst = 0
    peek = 0
    only = 1
    lvs = 1
    lv = 1
    tk = 2
    tp = 4
    pc = 2
    diagx = 0
    bn0 = 199
    par = 0
    stag = 1
    st1 = 0
    tpos = 1
    probe = 1
    tagst = 0
    wpos = 1
    ninit = 20
    pol_st = ' sc1'
    xpre = ''
    svm = 4
    thr = 9
    xpos = 4
    two = 0
    classes = 4
    codepre = 2
    estr = 128
    srcpos = 8
    epre = ''
    diag = 0
    force = 0
    pol_in = ' nt'
    pol_e = ''
    pol_x = ''
    pol_out = ''

CNT, HB, HIST, FLAG = 0, 4096, 5120, 5376
B1T, B2T, TT = 6144, 6656, 7168
START = TT
EX, EE = 8192, 40960
RING = 73728
NSLOT = 15
MAP = RING
STAGE = MAP + 16384
LDS_TOTAL = 163840
WST = LDS_TOTAL - 52 * 1024
XP = 1056
SLOT = 4 * XP + 1024
XO = RING + 8 * SLOT
OACC = 8192
def lds_bytes(): return LDS_TOTAL

PATTERNS = {
 191: [(0,0,'H',1),(2,0,'H',2),(3,0,'H',3),(3,1,'H',16),(2,1,'H',13),(0,0,'S',30),(1,1,'H',14),(1,0,'S',32),(2,0,'S',28),(3,0,'S',26),(0,1,'H',16),(2,1,'S',6),(1,1,'S',4)],
 192: [(0,0,'H',1),(2,0,'H',1),(3,0,'H',5),(3,1,'H',15),(2,1,'H',12),(0,0,'S',30),(1,1,'H',14),(1,0,'S',32),(2,0,'S',30),(3,0,'S',22),(0,1,'H',16),(3,1,'S',2),(2,1,'S',8),(1,1,'S',4)],
 193: [(0,0,'H',1),(2,0,'H',2),(3,0,'H',3),(3,1,'H',16),(2,1,'H',11),(0,0,'S',30),(1,1,'H',14),(1,0,'S',32),(2,0,'S',28),(3,0,'S',26),(0,1,'H',16),(2,1,'S',10),(1,1,'S',4)],
 194: [(0,0,'H',1),(2,0,'H',2),(3,0,'H',3),(3,1,'H',16),(2,1,'H',10),(0,0,'S',30),(1,1,'H',14),(1,0,'S',32),(2,0,'S',28),(3,0,'S',26),(0,1,'H',16),(2,1,'S',12),(1,1,'S',4)],
 195: [(0,0,'H',1),(2,0,'H',2),(3,0,'H',2),(3,1,'H',16),(2,1,'H',10),(0,0,'S',30),(1,1,'H',14),(1,0,'S',32),(2,0,'S',28),(3,0,'S',28),(0,1,'H',16),(2,1,'S',12),(1,1,'S',4)],
 196: [(0,0,'H',1),(2,0,'H',2),(3,0,'H',2),(3,1,'H',16),(2,1,'H',9),(0,0,'S',30),(1,1,'H',14),(1,0,'S',32),(2,0,'S',28),(3,0,'S',28),(0,1,'H',16),(2,1,'S',14),(1,1,'S',4)],
 197: [(0,0,'H',1),(2,0,'H',2),(3,0,'H',2),(3,1,'H',16),(2,1,'H',9),(0,0,'S',30),(1,1,'H',13),(1,0,'S',32),(2,0,'S',28),(3,0,'S',28),(0,1,'H',16),(2,1,'S',14),(1,1,'S',6)],
 198: [(0,0,'H',1),(2,0,'H',4),(3,1,'H',12),(2,1,'H',12),(0,0,'S',30),(1,1,'H',13),(1,0,'S',32),(2,0,'S',24),(3,0,'S',32),(0,1,'H',16),(3,1,'S',8),(2,1,'S',8),(1,1,'S',6)],
 199: [(1,0,'H',1),(2,0,'H',1),(3,0,'H',3),(3,1,'H',12),(2,1,'H',11),(0,0,'S',32),(1,1,'H',13),(1,0,'S',30),(2,0,'S',30),(3,0,'S',26),(0,1,'H',16),(3,1,'S',8),(2,1,'S',10),(1,1,'S',6)],
 200: [(0,0,'H',1),(2,0,'H',1),(3,0,'H',2),(3,1,'H',12),(2,1,'H',11),(0,0,'S',30),(1,1,'H',13),(1,0,'S',32),(2,0,'S',30),(3,0,'S',28),(3,1,'S',8),(0,1,'H',16),(2,1,'S',10),(1,1,'S',6)],
}
def pattern_table(BN):
    free = {(w, ph): list(range(32)) for w in range(4) for ph in range(2)}
    T = [None] * BN; p = 0; segs = []
    for w, ph, t, n in PATTERNS[BN]: segs.append((w, ph, t, p, n)); p += n
    assert p == BN
    for t0 in 'HS':
        for w, ph, t, p0, n in segs:
            if t != t0: continue
            for i in range(n):
                pos = free[(w, ph)].pop(0)
                if t == 'H': assert pos < 16; free[(w, ph)].remove(pos + 16)
                T[p0 + i] = (((w * 2 + ph) * 4096 + pos * 4 + 128) << 16) | (64 if t == 'H' else 128)
    assert all(not v for v in free.values())
    return T + [128] * (256 - BN)
def bucket_map():
    b0, b1 = P.bn0, 391 - P.bn0
    A = 128 * b0; M0 = -(-(1 << 24) // b0); M1 = -(-(1 << 24) // b1)
    for dn in range(N):
        f = dn * M0 + max(dn - A, 0) * (M1 - M0)
        assert f < 1 << 32 and f >> 24 == (dn // b0 if dn < A else 128 + (dn - A) // b1), dn
    return b0, b1, A, M0, M1

vN, vD, vQ, vY, vE = 0, 64, 128, 192, 224
vEX, vEE, vCX, vAX, vAE, vCE, vBX0, vBE0, vBX, vBE, vINFO, vDEG, vMAX = 240, 244, 245, 246, 247, 248, 249, 250, 251, 252, 253, 254, 255
aW1A, aW1C, aW1B, aW2, aBX, aBE, aJUNK = 0, 64, 80, 144, 208, 224, 228
aQB, aINFO = 232, 229
SX, SE, SW, SO, SD, SS = 12, 16, 20, 24, 68, 72
sB, sNB0, sNNODE, sWAVE, sMAP, sCOL = 28, 29, 30, 31, 32, 33
sXO = 36
s128, sSLOT, sRING0, sRING1, sT, sL, sLNEXT, sQROW = 40, 41, 42, 43, 44, 45, 46, 47
sLN2, sBAD = 48, 50
sJ, sSUM, sOTH = 52, 53, 54
sINC, sJUMP, sSTEP = 4, 6, 8
sSLOW, sCNT = 66, 67
mLO, mBN, mNN, mCH = 's[76:77]', 's[78:79]', 's[80:81]', 's[42:43]'
sTAG, sTAG8, sTAGH = 82, 83, 84
def R(p, b, n): return f'{p}[{b}:{b+n-1}]'
def srdn(s): return f's[{s}:{s+3}]'
SDWA = 'dst_sel:DWORD dst_unused:UNUSED_PAD src0_sel:DWORD src1_sel:'

def srd(a, d, lo, size):
    a(f's_mov_b32 s{d}, s{lo}'); a(f's_and_b32 s{d+1}, s{lo+1}, 0xffff')
    a(f's_mov_b32 s{d+2}, {size}'); a(f's_mov_b32 s{d+3}, 0x20000')
def wave_scan(a, v, fill=()):
    fill = list(fill)
    steps = [f'row_shr:{sh} row_mask:0xf bank_mask:0xf bound_ctrl:0' for sh in (1, 2, 4, 8)]
    steps += ['row_bcast:15 row_mask:0xa bank_mask:0xf', 'row_bcast:31 row_mask:0xc bank_mask:0xf']
    for s in steps:
        for x in fill[:2]: a(x)
        fill = fill[2:]
        a(f'v_add_u32_dpp v{v}, v{v}, v{v} {s}')
    for x in fill: a(x)
def mfma(d, A, B, C): return f'v_mfma_f32_32x32x16_bf16 {d}, {A}, {B}, {C}'
def m1(c, k, dst, first_c):
    first = k == 0
    if P.efirst: k = (k + 4) % 5
    A = R('a', aW1A + (c * 4 + k) * 4, 4) if k < 4 else R('a', aW1C + c * 4, 4)
    B = R('a', aBX + k * 4, 4) if k < 4 else R('a', aBE, 4)
    return mfma(R('v', dst, 16), A, B, R('v', first_c if first else dst, 16))
def isize(x):
    if x.endswith(':'): return 0
    op = x.split()[0]
    if op.startswith(('v_mfma', 'v_pk_', 'buffer_', 'ds_', 'global_', 'v_mad_', 'v_max3', 'v_cvt_pk', 'v_lshl_add', 'v_lshl_or', 'v_bfe', 'v_writelane',
                      'v_readlane', 's_mem', 'v_accvgpr', 'v_mbcnt', 'v_add_lshl', 'v_or3', 'v_and_or', 'v_bfi')) or op.endswith(('_e64', '_dpp', '_sdwa')): return 8
    if op.startswith('v_cmp') and not x.split()[1].startswith('vcc'): return 8
    for t in x.replace(',', ' ').split()[1:]:
        try: v = int(t, 0)
        except ValueError: continue
        if not -16 <= v <= 64 and not op.startswith(('s_movk', 's_waitcnt', 's_nop')): return 8
    return 4
def align8(a):
    n = 0; cand = None
    for i in range(len(a.items) - 1, -1, -1):
        it = a.items[i]
        if isinstance(it, str):
            if it.startswith(('.p2align', '; aligned')): break
            continue
        n += isize(it.text)
        if cand is None and isize(it.text) == 4 and it.op in ('v_exp_f32', 'v_rcp_f32', 'v_mul_f32', 'v_add_u32', 'v_lshlrev_b32', 'v_cvt_f32_u32'): cand = i
    if n % 8:
        if cand is None: a('s_nop 0')
        else: a.items[cand] = Ins(a.items[cand].text.replace(a.items[cand].op, a.items[cand].op + '_e64', 1))
    a.raw('; aligned')

def gen():
    D = P.depth
    BN0, BN1, NA, M0, M1 = bucket_map()
    assert D == 2
    VW = 5 * (D - 1)
    a = Asm()
    def stamp(i, real=False):
        if not P.stamp: return
        if P.stamp == 6:
            if i in (2, 3, 4): return
            if i >= 20: i -= 18
        elif i >= 20: return
        if P.stamp == 3: real = True
        if P.stamp == 4 and i not in (0, 13): return
        if P.stamp == 5:
            if i not in (0, 8, 13): return
            real = True
        a(f's_mem{"real" if real else ""}time s[86:87]'); a('s_waitcnt lgkmcnt(0)'); a(f's_mov_b32 s{88+i}, s86')
    def poll(name, load, check, first_issued=False, first_wait=None, only=False):
        a(f's_movk_i32 s{sCNT}, {P.limit}')
        if first_wait is not None:
            if first_wait: a(first_wait)
            check()
            a(f's_cbranch_scc0 {name}_ok')
        elif first_issued: a(f's_branch {name}_chk')
        a.label(name)
        if only: a('s_mov_b64 exec, vcc')
        load()
        if only: a('s_mov_b64 exec, -1')
        a.label(name + '_chk')
        a('s_waitcnt vmcnt(0)')
        check()
        a(f's_cbranch_scc0 {name}_ok')
        a(f's_sub_u32 s{sCNT}, s{sCNT}, 1')
        a(f's_cbranch_scc0 {name}')
        a(f's_mov_b32 s{sSLOW}, 1')
        a.label(name + '_ok')

    epre = [int(ch) for ch in P.epre.strip()]
    xpre = [int(ch) for ch in P.xpre.strip()]
    def warm(pos):
        n = 0
        for i, p in enumerate(epre):
            if p != pos: continue
            a(f'v_add_u32 v124, {i*256*P.estr}, v126')
            if (i + 1) * 256 * P.estr > CH * 32: a(f'v_min_u32 v124, v124, v125')
            a(f'buffer_load_dword a{aJUNK}, v124, {srdn(SE)}, 0 offen')
            n += 1
        for i, p in enumerate(xpre):
            if p != pos: continue
            a('s_lshr_b32 s3, s2, 3'); a('s_lshl_b32 s35, s2, 2'); a('s_add_u32 s3, s3, s35'); a('s_and_b32 s3, s3, 31')
            a(f's_add_u32 s3, s3, {32*i}'); a('s_lshl_b32 s3, s3, 8')
            a('v_add_lshl_u32 v124, v0, s3, 7')
            a(f'buffer_load_dword a{aJUNK}, v124, {srdn(SX)}, s{sXO} offen')
            n += 1
        return n
    a('.p2align 8'); a.label(NAME + '_kernel')
    a(f's_cmp_ge_u32 s2, {NB}'); a('s_cbranch_scc1 L_end')
    stamp(0, True); stamp(1)
    a('s_load_dwordx8 s[4:11], s[0:1], 0')
    a('s_load_dwordx4 s[60:63], s[0:1], 64')
    a('s_load_dwordx2 s[64:65], s[0:1], 80')
    a('s_load_dwordx8 s[52:59], s[0:1], 32')
    a(f's_memrealtime s[{sTAG}:{sTAG+1}]')
    a('s_getpc_b64 s[14:15]')
    a.label('L_pc')
    a('v_lshlrev_b32 v15, 2, v0')
    if P.codepre == 2:
        a('v_min_u32 v3, 4, v0'); a('s_lshr_b32 s3, s2, 3'); a('v_lshl_add_u32 v3, v3, 5, s3'); a('v_lshlrev_b32 v3, 7, v3')
    elif P.codepre: a('v_lshlrev_b32 v3, 7, v0')
    if P.codepre:
        a('v_min_u32 v3, L_slow0-L_pc, v3')
        a(f'global_load_dword a{aJUNK}, v3, s[14:15]')
    a('s_add_u32 s14, s14, L_table-L_pc')
    a('s_addc_u32 s15, s15, 0')
    a(f's_xor_b32 s85, s2, {P.par}'); a('s_and_b32 s85, s85, 1')
    a('v_lshl_add_u32 v3, s85, 10, v15')
    a('global_load_dword v11, v3, s[14:15]')
    a('v_lshrrev_b32 v1, 6, v0')
    a('v_and_b32 v2, 63, v0')
    a(f'v_readfirstlane_b32 s{sWAVE}, v1')
    a('v_lshlrev_b32 v21, 4, v0')
    for i in range(4): a(f'v_mov_b32 v{4+i}, 0')
    a('ds_write_b128 v21, v[4:7]')
    a('v_lshlrev_b32 v3, 3, v0')
    a(f'ds_write_b64 v3, v[4:5] offset:{HB}')
    a('v_mov_b32 v12, 0')
    a('v_mov_b32 v13, 1')
    a('v_lshlrev_b32 v9, 4, v2')
    a(f'v_cmp_gt_u32 vcc, {CH - 3072}, v0')
    a(f's_mul_i32 s3, s2, {CH*4}')
    for s in (SD, SS): a(f's_mov_b32 s{s+2}, {E*4}'); a(f's_mov_b32 s{s+3}, 0x20000')
    a(f's_mov_b64 {mLO}, vcc')
    a(f's_mov_b32 s{sSLOW}, 0')
    a('s_waitcnt lgkmcnt(0)')
    vDs, vSr, vB, vRk, vRec = 32, 48, 64, 80, 96
    a(f's_mov_b32 s{SD}, s10'); a(f's_and_b32 s{SD+1}, s11, 0xffff')
    a(f's_mov_b32 s{SS}, s8'); a(f's_and_b32 s{SS+1}, s9, 0xffff')
    for i in range(4): a(f's_add_u32 s{8+i}, s3, {4096*i}')
    a(f's_lshr_b32 s37, s2, {0 if P.tagst else 3}')
    a(f's_or_b32 s37, s37, s{sWAVE}')
    a('s_cbranch_scc1 L_notag')
    if P.force != 1:
        a(f's_or_b32 s{sTAG}, s{sTAG}, 1')
        a(f'v_mov_b32 v4, s{sTAG}'); a(f'v_mov_b32 v5, s{sTAG+1}')
        a('s_mov_b64 exec, 1')
        if P.tagst: a('global_store_dwordx2 v12, v[4:5], s[62:63] sc1')
        else: a('global_atomic_cmpswap_x2 v12, v[4:7], s[62:63] sc1')
        a('s_mov_b64 exec, -1')
    a.label('L_notag')
    def edge_loads(srdn_, vb, so):
        for i in range(3): a(f'buffer_load_dwordx4 {R("v", vb+4*i, 4)}, v21, {srdn(srdn_)}, s{so+i} offen{P.pol_in}')
        a(f'buffer_load_dword v{vb+12}, v15, {srdn(srdn_)}, s{so+3} offen{P.pol_in}')
    edge_loads(SD, vDs, 8)
    a('v_and_b32 v10, 3, v0')
    a('v_bfe_u32 v16, v0, 2, 4')
    a('v_lshl_add_u32 v10, v16, 3, v10')
    a('v_lshl_add_u32 v10, v1, 2, v10')
    a('v_lshrrev_b32 v16, 1, v0'); a('v_and_b32 v16, 32, v16'); a('v_xor_b32 v16, v16, v2')
    a(f's_cmp_lt_u32 s{sWAVE}, 2')
    a('s_cselect_b64 vcc, -1, 0')
    a('v_cndmask_b32 v10, v16, v10, vcc')
    a('v_lshlrev_b32 v10, 1, v10')
    a('s_cselect_b64 s[54:55], s[54:55], s[58:59]')
    a(f's_cselect_b32 s34, {NLOG2E}, 1.0')
    a('global_load_ushort v10, v10, s[54:55]')
    for i in range(4): a(f'v_mov_b32 v{128+i}, {DUMMY}')
    a(f'v_add_u32 v132, {EX + 16384}, v21')
    init = [f'ds_write_b128 v132, v[128:131] offset:{4096*i}' for i in range(15, -1, -1)]
    init += [f'ds_write_b128 v21, v[128:131] offset:{EX + 4096*i}' for i in range(4)]
    assert P.ninit >= 4
    init, init2 = init[:P.ninit], init[P.ninit:]
    C = []
    C += [f's_bfe_u32 s{sB}, s2, 0x20001', f's_lshl_b32 s{sB}, s{sB}, 5', 's_lshr_b32 s3, s2, 3', f's_add_u32 s{sB}, s{sB}, s3',
          f's_bitcmp{1 - P.par}_b32 s2, 0', f's_cselect_b32 s59, {BN1}, s38', f's_cselect_b32 s3, {NA}, 0', 's_cselect_b32 s35, 128, 0',
          f's_mul_i32 s{sNB0}, s{sB}, s59', f's_add_u32 s{sNB0}, s{sNB0}, s3', f's_add_u32 s{sB}, s{sB}, s35',
          f's_sub_u32 s{sNNODE}, {N}, s{sNB0}', f's_min_u32 s{sNNODE}, s{sNNODE}, s59',
          f's_lshl_b32 s{sCOL}, s{sB}, 3', f's_add_u32 s{sCOL}, s{sCOL}, {WS_TAB}']
    a(f's_movk_i32 s38, {BN0}')
    for x in C: a(x)
    C = []
    C += [f's_sub_u32 s{SX}, s4, {3*XP}', f's_subb_u32 s{SX+1}, s5, 0', f's_and_b32 s{SX+1}, s{SX+1}, 0xffff',
          f's_mov_b32 s{SX+2}, {(N*128 + 3*XP) * P.xfrac // 100}', f's_mov_b32 s{SX+3}, 0x20000']
    for d, lo, size in ((SE, 6, E * 32 * P.efrac // 100), (SO, 60, N * 128), (SW, 64, WS_SIZE)):
        C += [f's_mov_b32 s{d}, s{lo}', f's_and_b32 s{d+1}, s{lo+1}, 0xffff', f's_mov_b32 s{d+2}, {size}', f's_mov_b32 s{d+3}, 0x20000']
    C += [f's_movk_i32 s{sXO+j}, {(3-j)*XP}' for j in range(4)]
    C += [f's_movk_i32 s{s128}, 128', f's_mov_b32 s{sLN2}, {NLN2}', f's_mov_b32 s{sLN2+1}, {NLN2}', f's_mov_b64 s[{sBAD}:{sBAD+1}], 0']
    C += [f's_lshl_b32 s{sMAP}, s{sWAVE}, 12', f's_add_u32 s{sMAP}, s{sMAP}, {MAP}']
    C += [f's_lshl_b32 s{sQROW}, s{sWAVE}, 13', f's_add_u32 s{sQROW}, s{sQROW}, {EX}']
    C += [f's_mul_i32 s{sSLOT}, s{sWAVE}, {D*SLOT}', f's_add_u32 s{sSLOT}, s{sSLOT}, {RING}']
    C += ['v_and_b32 v16, 7, v2', 'v_lshrrev_b32 v18, 5, v2', 'v_xor_b32 v16, v16, v18', f'v_lshlrev_b32 v{vCX}, 4, v16']
    C += ['v_and_b32 v17, 1, v2', f'v_lshlrev_b32 v{vCE}, 4, v17']
    C += ['v_bfe_u32 v16, v2, 1, 2', f'v_mul_u32_u24 v16, {XP}, v16', 'v_bfe_u32 v20, v2, 3, 2', 'v_lshl_add_u32 v16, v20, 7, v16',
          'v_lshl_add_u32 v16, v17, 9, v16', 'v_xor_b32 v20, v17, v18', f'v_lshl_add_u32 v{vBX0}, v20, 4, v16']
    C += ['v_bfe_u32 v16, v2, 1, 4', 'v_lshl_add_u32 v16, v17, 4, v16', 'v_lshlrev_b32 v16, 5, v16', 'v_lshl_add_u32 v16, v18, 4, v16',
          f'v_add_u32 v{vBE0}, {4*XP}, v16']
    C += ['v_lshrrev_b32 v16, 3, v2', f'v_lshl_add_u32 v{vAX}, v16, 4, s{sQROW}']
    C += ['v_lshrrev_b32 v16, 1, v2', f'v_lshl_add_u32 v{vAE}, v16, 2, s{sQROW}']
    C += ['v_and_b32 v16, 31, v2', 'v_lshlrev_b32 v16, 2, v16', 'v_lshl_add_u32 v16, v18, 12, v16', f'v_add_u32 v25, s{sQROW}, v16']
    C += [f'v_add_u32 v24, s{sNB0}, v0', f'v_cmp_gt_u32 {mBN}, s59, v0', f'v_cmp_gt_u32 {mNN}, s{sNNODE}, v0',
          'v_and_b32 v134, 255, v24', 'v_lshlrev_b32 v134, 4, v134',
          f's_add_u32 s3, s{sNB0}, 240', 's_and_b32 s3, s3, 255', 's_lshl_b32 s3, s3, 4', 'v_mov_b32 v135, s3']
    C += ['v_lshlrev_b32 v19, 2, v2', 'v_lshlrev_b32 v14, 3, v2', 'v_lshlrev_b32 v30, 11, v0', 'v_and_b32 v31, 31, v0', 'v_lshlrev_b32 v31, 4, v31', 'v_lshl_add_u32 v31, v0, 12, v31']
    C += [f's_mov_b32 s55, {M0}', f's_movk_i32 s56, {M1 - M0}', 's_movk_i32 s57, 335', f'v_mov_b32 v23, {NA}',
          f's_mov_b32 s58, { {1: 0, 2: 0x80000}.get(P.classes, 0xc0000)}']
    vW = 144
    def wraw(i):
        if i in (0, 9): a('s_mov_b32 s35, 0')
        a(f'buffer_load_dwordx4 {R("v", vW+4*i, 4)}, v21, {srdn(SD if i < 9 else SS)}, s35 offen')
        a('s_add_u32 s35, s35, 4096')
    tagload = lambda: a('global_load_dwordx2 v[122:123], v12, s[62:63] sc1')
    k = 0
    while init or C:
        if init: a(init.pop(0))
        for x in C[:6]: a(x)
        C = C[6:]
        k += 1
        if k == P.srcpos:
            edge_loads(SS, vSr, 8)
            srd(a, SD, 52, 144 * 128 * 2); srd(a, SS, 56, 128 * 64 * 2)
            a('s_lshr_b32 s3, s2, 3'); a('v_min_u32 v3, 8, v0'); a('v_lshl_add_u32 v3, v3, 5, s3'); a('v_lshlrev_b32 v3, 7, v3')
            a(f'buffer_load_dword a{aJUNK}, v3, {srdn(SD)}, 0 offen')
            a(f'buffer_load_dword a{aJUNK}, v3, {srdn(SS)}, 0 offen')
    if epre:
        a(f's_mul_i32 s3, s2, {CH*32}'); a(f'v_mul_u32_u24 v126, {P.estr}, v0'); a('v_add_u32 v126, s3, v126')
        a(f's_add_u32 s3, s3, {CH*32-128}'); a('v_mov_b32 v125, s3')
    n0 = 2 + warm(0)
    a('s_waitcnt lgkmcnt(0)')
    a('s_barrier')
    def tagcheck():
        a(f'v_readfirstlane_b32 s{sTAG}, v122'); a(f'v_readfirstlane_b32 s{sTAG8}, v123')
        a(f's_cmp_eq_u32 s{sTAG}, 0')
    for b, (lo, hi) in enumerate(((0, 4), (4, 8), (8, 13)) if P.stag else ((0, 13),)):
        a(f's_waitcnt vmcnt({5 + n0 + ((3, 2, 0)[b] if P.stag else 0)})')
        if hi == 13: stamp(2); tagload()
        for i in range(lo, hi): a(f'v_mul_u32_u24 v{vB+i}, s55, v{vDs+i}')
        for i in range(lo, hi): a(f'v_sub_u32_e64 v{vRk+i}, v{vDs+i}, v23 clamp')
        for i in range(lo, hi): a(f'v_mad_u32_u24 v{vB+i}, v{vRk+i}, s56, v{vB+i}')
        for i in range(lo, hi): a(f'v_lshlrev_b32_sdwa v{vB+i}, 2, v{vB+i} {SDWA}BYTE_3')
        for i in range(lo, hi):
            if i == 12: a(f's_mov_b64 exec, {mLO}')
            a(f'ds_add_rtn_u32 v{vRk+i}, v{vB+i}, v13 offset:{HB}')
    a('s_mov_b64 exec, -1')
    for i in range(13): a(f'v_lshlrev_b32_sdwa v{vDs+i}, 20, v{vDs+i} {SDWA}BYTE_0')
    a(f's_mov_b32 s3, {STAGE // 8}')
    for i in range(P.w1): wraw(i)
    a('s_waitcnt lgkmcnt(0)')
    a('s_barrier')
    a(f'ds_read_b128 v[26:29], v9 offset:{HB}')
    for i in range(13): a(f'v_add_u32 v{vRk+i}, s3, v{vRk+i}')
    F = [f'v_mul_u32_u24 v{vRec+2*i}, s57, v{vSr+i}' for i in range(13)]
    F += [f'v_lshrrev_b32 v{vRec+2*i}, 4, v{vRec+2*i}' for i in range(13)]
    F += [f'v_and_or_b32 v{vRec+2*i}, v{vRec+2*i}, s58, v{vSr+i}' for i in range(13)]
    a(f's_waitcnt vmcnt({n0 + 1 + P.w1}) lgkmcnt(0)')
    a('v_add_u32 v5, v26, v27'); a('v_add_u32 v6, v5, v28'); a('v_add_u32 v7, v6, v29')
    a('v_mov_b32 v3, v7')
    wave_scan(a, 3, F[:12])
    a('v_sub_u32 v4, v3, v7'); a('v_add_u32 v7, v4, v6'); a('v_add_u32 v6, v4, v5'); a('v_add_u32 v5, v4, v26')
    a(f'ds_write_b128 v9, v[4:7] offset:{START}')
    for i in range(13): a(f'ds_read_b32 v{vB+i}, v{vB+i} offset:{START}')
    for i in range(P.w1, P.w2): wraw(i)
    for x in F[12:]: a(x)
    def gettag(name, **kw):
        poll(name, tagload, tagcheck, **kw)
        a(f's_and_b32 s{sTAG8}, s{sTAG8}, 0xff')
        a(f's_lshl_b32 s{sTAGH}, s{sTAG}, 4')
        a(f's_and_b32 s{sTAGH}, s{sTAGH}, 0xfffff000')
    def pubrow(name):
        a.raw("; wave 3 writes this chunk's table row: 256 x {start | cnt<<12 | tag8<<24, tag}")
        a(f's_sub_u32 s3, 3, s{sWAVE}'); a(f's_or_b32 s3, s3, s{sSLOW}'); a(f's_cbranch_scc1 {name}')
        if P.force == 2: a('s_cmp_eq_u32 s2, 7'); a(f's_cbranch_scc1 {name}')
        for i in range(4):
            a(f'v_lshl_or_b32 v{136+2*i}, v{26+i}, 12, v{4+i}')
            a(f'v_mov_b32 v{137+2*i}, s{sTAG}')
        for i in range(4): a(f'v_lshl_or_b32 v{136+2*i}, s{sTAG8}, 24, v{136+2*i}')
        a('s_lshl_b32 s3, s2, 11'); a(f's_add_u32 s3, s3, {WS_TAB}')
        a('v_lshlrev_b32 v3, 5, v2')
        a(f'buffer_store_dwordx4 v[136:139], v3, {srdn(SW)}, s3 offen sc1')
        a(f'buffer_store_dwordx4 v[140:143], v3, {srdn(SW)}, s3 offen offset:16 sc1')
        a.label(name)
    gettag('L_ptag', first_wait=f's_waitcnt vmcnt({P.w2})')
    if P.stamp == 3 and P.st1 == 0: stamp(1)
    pubrow('L_norow')
    a(f's_lshl_b32 s3, s{sTAGH}, 16')
    if P.force == 3: a('s_cmp_eq_u32 s2, 9'); a('s_cselect_b32 s85, 0x10000000, 0'); a('s_xor_b32 s3, s3, s85')
    a(f'v_add_u32 v22, s{sTAGH}, v15')
    a(f'v_add_u32 v20, s{sTAGH}, v0')
    a('s_waitcnt lgkmcnt(0)')
    for b, (lo, hi) in enumerate(((0, 4), (4, 8), (8, 13))):
        for i in range(lo, hi):
            a(f'v_or3_b32 v{vRec+2*i}, v{vRec+2*i}, v{vDs+i}, s3')
            a(f'v_add_u32 v{vRec+2*i+1}, {(i>>2)*1024 + (i&3)}, v{22 if i < 12 else 20}')
        for i in range(lo, hi):
            a(f'v_add_lshl_u32 v{vB+i}, v{vB+i}, v{vRk+i}, 3')
        for i in range(lo, hi):
            if i == 12: a(f's_mov_b64 exec, {mLO}')
            a(f'ds_write_b64 v{vB+i}, {R("v", vRec+2*i, 2)}')
    a('s_mov_b64 exec, -1')
    a('v_lshlrev_b32 v10, 16, v10')
    a('v_mul_f32 v10, s34, v10')
    a(f'ds_write_b32 v15, v10 offset:{B1T}')
    for i in range(P.w2, 9): wraw(i)
    a(f'v_add_u32 v3, {STAGE}, v21')
    a('v_lshl_add_u32 v20, v1, 7, v9')
    a(f'v_add_u32 v22, {STAGE + 24576}, v20')
    a('s_and_b32 s3, s2, 31'); a('s_lshl_b32 s35, s2, 8'); a('s_add_u32 s3, s3, s35'); a('s_lshl_b32 s3, s3, 7')
    tload = lambda: a(f'buffer_load_dwordx2 v[16:17], v30, {srdn(SW)}, s{sCOL} offen sc1')
    a('s_waitcnt lgkmcnt(0)')
    a('s_barrier')
    if P.stamp == 3 and P.st1 == 1: stamp(1)
    for i in range(6): a(f'ds_read_b128 {R("v", 32+4*i, 4)}, v3 offset:{4096*i}')
    a('ds_read_b128 v[56:59], v22')
    for i in range(7):
        a(f's_waitcnt lgkmcnt({6-i})')
        if i == 6: a('s_mov_b64 exec, 0xff')
        a(f'buffer_store_dwordx4 {R("v", 32+4*i, 4)}, v{21 if i < 6 else 20}, {srdn(SW)}, s3 offen{P.pol_st}')
        if i < 6: a('s_add_u32 s3, s3, 4096')
    a('s_mov_b64 exec, -1')
    a(f's_lshl_b32 s35, s{sWAVE}, 12'); a(f's_add_u32 m0, s35, {WST + 36864}')
    tload()
    for i in range(4): a(f'buffer_load_dwordx4 v9, {srdn(SS)}, s35 offen offset:{1024*i} lds')
    a('s_barrier')
    stamp(3)
    a(f'ds_write_b32 v15, v11 offset:{TT}')
    a('v_and_b32 v3, 0x30, v0'); a('v_lshlrev_b32 v3, 2, v3'); a('v_xor_b32 v3, v3, v21')
    a(f'v_add_u32 v3, {WST}, v3')
    a(f's_mov_b32 s56, {NLOG2E}'); a('s_mov_b32 s57, s56'); a('s_mov_b32 s3, 0xffff0000')
    a('s_waitcnt vmcnt(12)')
    for i in range(9):
        for j in range(4):
            a(f'v_lshlrev_b32 v{64+2*j}, 16, v{vW+4*i+j}'); a(f'v_and_b32 v{65+2*j}, s3, v{vW+4*i+j}')
        for j in range(4): a(f'v_pk_mul_f32 v[{64+2*j}:{65+2*j}], v[{64+2*j}:{65+2*j}], s[56:57]')
        for j in range(4): a(f'v_cvt_pk_bf16_f32 v{vW+4*i+j}, v{64+2*j}, v{65+2*j}')
        a(f'ds_write_b128 v3, {R("v", vW+4*i, 4)} offset:{4096*i}')
        if init2 and P.iw: a(init2.pop(0))
    a('v_lshrrev_b32 v64, 5, v2'); a('v_bfe_u32 v65, v2, 2, 2'); a('v_bfe_u32 v66, v2, 4, 1'); a('v_and_b32 v67, 3, v2')
    a('v_lshl_add_u32 v200, v64, 3, v65'); a('v_lshlrev_b32 v200, 8, v200'); a('v_lshl_add_u32 v200, v66, 5, v200'); a('v_lshl_add_u32 v200, v67, 3, v200')
    a('v_lshl_add_u32 v200, v65, 6, v200'); a(f'v_add_u32 v200, {WST}, v200')
    for c in range(1, 4): a(f'v_xor_b32 v{200+c}, {64*c}, v200')
    a('v_lshl_add_u32 v204, v64, 2, v65'); a('v_lshlrev_b32 v204, 7, v204'); a('v_lshl_add_u32 v204, v66, 4, v204')
    a('v_and_b32 v64, 1, v2'); a('v_lshl_add_u32 v204, v64, 6, v204'); a('v_bfe_u32 v64, v2, 1, 1'); a('v_lshl_add_u32 v204, v64, 3, v204')
    a(f'v_add_u32 v204, {WST + 36864}, v204')
    a('s_waitcnt lgkmcnt(0)')
    a('s_barrier')
    TR = {}
    vTA = 200
    for kk in range(9):
        TR[kk] = []
        for c in range(4):
            d = aW1A + 16*c + 4*kk if kk < 4 else (aW1B + 16*c + 4*(kk-4) if kk < 8 else aW1C + 4*c)
            for r in range(2): TR[kk].append(f'ds_read_b64_tr_b16 {R("a", d+2*r, 2)}, v{vTA+c} offset:{4096*kk + 1024*r}')
    TR[9] = [f'ds_read_b64_tr_b16 {R("a", aW2+(dt*8+u)*4+2*r, 2)}, v{vTA+4} offset:{2048*u + 1024*r + 32*dt}' for dt in range(2) for u in range(8) for r in range(2)]
    early = {0: range(9), 1: (0, 1), 2: (0, 1, 4, 5, 6, 7)}[P.late]; assert P.probe == 1
    for kk in early:
        for x in TR[kk]: a(x)
    lateq = [x for kk in (4, 5, 6, 7) if kk not in early for x in TR[kk]]
    later = [x for kk in (2, 3, 8, 9) if kk not in early for x in TR[kk]]
    for x in init2: a(x)
    assert P.late == 0 and XO % 128 == 0 and XO + 28672 <= WST + 36864
    a('v_lshrrev_b32 v29, 3, v2'); a('v_xor_b32 v29, v29, v2'); a('v_lshlrev_b32 v29, 4, v29')
    a(f's_mul_i32 s85, s{sWAVE}, 7168'); a(f's_lshl_b32 s3, s{sNB0}, 7'); a('s_add_u32 s3, s3, s85'); a('v_add_u32 v29, s3, v29')
    a('s_waitcnt lgkmcnt(0)')
    a('s_barrier')
    if P.stamp == 3 and P.st1 == 2: stamp(1)
    a('s_waitcnt vmcnt(4)')
    a.label('L_consume')
    a(f's_cmp_lg_u32 s{sSLOW}, 0'); a('s_cbranch_scc1 L_skipB')
    def tcheck(v, mask=None):
        def f():
            a(f'v_cmp_ne_u32 s[56:57], s{sTAG}, v{v+1}')
            a(f'v_cmp_ne_u32_sdwa vcc, v{v}, s{sTAG8} src0_sel:BYTE_3 src1_sel:DWORD')
            a('s_or_b64 vcc, vcc, s[56:57]')
            if mask: a(f's_and_b64 vcc, vcc, {mask}')
        return f
    poll('L_pt', tload, tcheck(16), first_wait='', only=P.only)
    stamp(4)
    a('v_bfe_u32 v17, v16, 12, 12')
    a('v_and_b32 v16, 0xfff, v16')
    a('v_mov_b32 v18, v17')
    a('v_add_u32 v16, v16, v31')
    a('v_add_lshl_u32 v22, v16, v17, 3')
    a('v_sub_u32_e64 v22, v22, 4 clamp')
    pload = lambda: a(f'buffer_load_dword v23, v22, {srdn(SW)}, 0 offen sc1')
    if P.probe: pload()
    if P.probe == 2:
        a('v_lshlrev_b32 v3, 3, v16'); a(f'buffer_load_dword a{aJUNK}, v3, {srdn(SW)}, 0 offen sc1')
    wave_scan(a, 18, ['v_cmp_lt_u32 s[56:57], 16, v17', 'v_cmp_lt_u32 s[58:59], 8, v17',
                      'v_cmp_lt_u32 s[60:61], 0, v17', 'v_cmp_lt_u32 vcc, 24, v17', f'v_add_u32 v20, s{sMAP}, v19'])
    a('v_sub_u32 v3, v18, v17')
    a('v_readlane_b32 s3, v18, 63')
    a('v_sub_u32 v16, v16, v3')
    a(f'v_lshl_add_u32 v18, v3, 2, s{sMAP}')
    a('v_lshlrev_b32 v16, 3, v16')
    a(f's_cmp_gt_u32 s3, {NSLOT*64}')
    a(f's_cselect_b32 s{sSLOW}, 1, s{sSLOW}')
    a(f's_cmp_lg_u32 s{sSLOW}, 0'); a('s_cbranch_scc1 L_skipB')
    a('v_lshl_add_u32 v3, s3, 2, v20')
    for m, j0 in (('s[56:57]', 16), ('s[58:59]', 8), ('s[60:61]', 0)):
        a(f's_mov_b64 exec, {m}')
        for j in range(j0 + 7, j0 - 1, -1): a(f'ds_write_b32 v18, v16 offset:{4*j}')
    a('s_mov_b64 exec, -1')
    a('ds_write_b32 v3, v128')
    a('s_cbranch_vccz L_nomap')
    a.label('L_map')
    for j in range(24, 28):
        a(f'v_cmpx_lt_u32 vcc, {j}, v17')
        a(f'ds_write_b32 v18, v16 offset:{4*j}')
    a('v_add_u32 v18, 16, v18')
    a('v_subrev_u32 v17, 4, v17')
    a('s_cbranch_execnz L_map')
    a('s_mov_b64 exec, -1')
    a.label('L_nomap')
    vR, vI, vK, vP, vA, vT, vCB = 32, 64, 80, 96, 144, 160, 176
    for i in range(NSLOT): a(f'ds_read_b32 v{vA+i}, v20 offset:{256*i}')
    def pcheck():
        a(f'v_xor_b32 v3, s{sTAGH}, v23')
        a('v_cmp_lt_u32 vcc, 0xfff, v3')
        a('s_and_b64 vcc, vcc, s[60:61]')
    a('s_movk_i32 s34, 4096')
    a('s_waitcnt lgkmcnt(0)')
    for i in range(NSLOT): a(f'v_add_u32 v{vA+i}, v{vA+i}, v14')
    if P.probe: a(f's_waitcnt vmcnt({P.probe - 1})')
    if P.probe: poll('L_pp', pload, pcheck, first_wait='', only=P.only)
    stamp(5)
    a(f's_cmp_lg_u32 s{sSLOW}, 0'); a('s_cbranch_scc1 L_skipB')
    rec = lambda i: a(f'buffer_load_dwordx2 {R("v", vR+2*i, 2)}, v{vA+i}, {srdn(SW)}, {"s34" if i >= 8 else "0"} offen offset:{512*(i%8)} sc1')
    for i in range(NSLOT): rec(i)
    def ownx():
        a.raw("; this bucket's own x rows -> LDS")
        a(f's_add_u32 m0, s85, {XO}'); a(f's_movk_i32 s35, {3*XP + 4096}')
        for i in range(7):
            if i == 4: a('s_add_u32 m0, m0, 4096')
            a(f'buffer_load_dwordx4 v29, {srdn(SX)}, s{sXO if i < 4 else 35} offen offset:{1024*(i%4)} lds')
        return 7
    n3 = 0
    nx = 0
    if P.xpos == 3: nx += ownx()
    nx += warm(3)
    n3 += nx
    for i in range(NSLOT): a(f'v_bfe_i32 v{vT+i}, v{vA+i}, 30, 1')
    for i in range(NSLOT): a(f'v_bfi_b32 v{vT+i}, v{vT+i}, v135, s{sTAGH}')
    stamp(6)
    retry = []
    for b, (lo, hi) in enumerate(((0, 6), (6, 11), (11, 15)) if P.bat == 0 else ((0, 4), (4, 8), (8, 11), (11, 15))):
        a(f's_movk_i32 s{sCNT}, {P.limit}')
        a(f's_waitcnt vmcnt({NSLOT-hi+n3})')
        a.label(f'L_chk{b}')
        for i in range(lo, hi): a(f'v_xor_b32 v{vR+2*i+1}, v{vT+i}, v{vR+2*i+1}')
        for i in range(lo, hi): a(f'v_xor_b32_sdwa v{vI+i}, v{vT+i}, v{vR+2*i} dst_sel:DWORD dst_unused:UNUSED_PAD src0_sel:WORD_0 src1_sel:WORD_1')
        for i in range(lo, hi): a(f'v_or3_b32 v3, v{vI+i}, v{vR+2*i+1}, {"v3" if i > lo else "0"}')
        a('v_cmp_lt_u32 vcc, 0xfff, v3')
        if lo == 11:
            for i in range(lo, hi): a(f'v_cmp_ne_u32 s[{58+2*(i-lo)}:{59+2*(i-lo)}], v135, v{vI+i}')
        a(f's_cbranch_vccnz L_retry{b}')
        retry.append((b, lo, hi))
        for i in range(lo, hi):
            if lo == 11: a(f's_mov_b64 exec, s[{58+2*(i-lo)}:{59+2*(i-lo)}]')
            a(f'ds_add_rtn_u32 v{vK+i}, v{vI+i}, v13 offset:{CNT}')
    a('s_mov_b64 exec, -1')
    if P.xpos == 4: nx += ownx()
    nx += warm(4)
    a.label('L_skipB')
    EO = []
    for i in range(NSLOT):
        if i: EO.append(f'v_add_u32 v{vA+i}, {512*i}, v{vA+i}')
    EO += [f'v_lshrrev_b32 v{vA+i}, 15, v{vA+i}' for i in range(NSLOT)]
    EO += [f'v_mad_u32_u24 v{vR+2*i+1}, v{vA+i}, s3, v{vR+2*i+1}' for i in range(NSLOT)]
    EO += [f'v_lshlrev_b32 v{vR+2*i+1}, 5, v{vR+2*i+1}' for i in range(NSLOT)]
    a(f's_movk_i32 s3, {CH}')
    for x in EO[:24]: a(x)
    a(f's_mov_b64 exec, {mBN}')
    a('s_waitcnt lgkmcnt(0)')
    a('s_barrier')
    stamp(7)
    a(f'ds_read_b128 v[4:7], v134 offset:{CNT}')
    a('s_waitcnt lgkmcnt(0)')
    a('v_add_u32 v5, v4, v5'); a('v_add_u32 v6, v5, v6'); a('v_add_u32 v16, v6, v7')
    a('v_min_u32 v17, 63, v16')
    a('v_sub_u32 v17, 63, v17')
    a('v_lshlrev_b32 v17, 2, v17')
    a(f'ds_add_rtn_u32 v18, v17, v13 offset:{HIST}')
    a('v_sub_u32 v26, v16, v4'); a('v_sub_u32 v27, v16, v5'); a('v_sub_u32 v28, v16, v6')
    a('v_lshrrev_b32 v23, 1, v16')
    a('v_lshl_or_b32 v23, v23, 16, v24')
    a('v_or_b32 v23, 0xc00000, v23')
    a('s_mov_b64 exec, -1')
    for x in EO[24:40]: a(x)
    a('s_waitcnt lgkmcnt(0)')
    a('s_barrier')
    stamp(20)
    a(f'ds_read_b32 v20, v19 offset:{HIST}')
    a(f'v_mov_b32 v3, {(32768 - 4) << 16}')
    a(f'ds_write_b32 v135, v3 offset:{CNT}')
    for x in EO[40:]: a(x)
    a('s_waitcnt lgkmcnt(1)')
    a('v_mov_b32 v3, v20')
    wave_scan(a, 3)
    a('v_sub_u32 v20, v3, v20')
    a('ds_bpermute_b32 v20, v17, v20')
    a(f's_mov_b64 exec, {mNN}')
    a('s_waitcnt lgkmcnt(0)')
    a('v_add_lshl_u32 v20, v20, v18, 2')
    a(f'ds_read_b32 v22, v20 offset:{TT}')
    a('s_waitcnt lgkmcnt(0)')
    a('v_and_b32 v3, 0x10000000, v22')
    a('v_lshlrev_b32 v29, 16, v22')
    a('v_cmp_ne_u32 vcc, 0, v3')
    a('v_bfe_u32 v3, v22, 6, 1')
    a('v_add_u32 v16, v16, v3')
    a('v_cndmask_b32 v7, v6, v12, vcc'); a('v_cndmask_b32 v6, v5, v28, vcc')
    a('v_cndmask_b32 v5, v4, v27, vcc'); a('v_cndmask_b32 v4, v12, v26, vcc')
    for i in range(4): a(f'v_mad_u32_u24 v{4+i}, v{4+i}, v29, v22')
    a('v_lshrrev_b32 v16, v3, v16')
    a('v_lshrrev_b32 v22, 16, v22')
    a('v_lshl_or_b32 v24, v3, 22, v24')
    a('v_cmp_lt_u32 s[56:57], 30, v16')
    a('v_lshl_or_b32 v24, v16, 16, v24')
    a('v_cmp_ne_u32 vcc, 0, v3')
    a(f'ds_write_b128 v134, v[4:7] offset:{CNT}')
    a(f'ds_write_b32 v22, v24 offset:{EX - 128}')
    a('s_mov_b64 exec, vcc')
    a(f'ds_write_b32 v22, v23 offset:{EX - 64}')
    a(f's_or_b32 s56, s56, s{sSLOW}')
    a('s_mov_b64 exec, s[56:57]')
    a(f'ds_write_b32 v12, v13 offset:{FLAG}')
    a('s_mov_b64 exec, -1')
    a('s_waitcnt lgkmcnt(0)')
    a('s_barrier')

    ell_read = [f'ds_read_b128 {R("v", vEX, 4)}, v{vAX}', f'ds_read_b32 v{vEE}, v{vAE} offset:{EE-EX}']
    jump = [f's_sub_u32 s{sJ}, s{sJ}, 1', f's_cselect_b64 s[{sINC}:{sINC+1}], s[{sJUMP}:{sJUMP+1}], s[{sSTEP}:{sSTEP+1}]']
    ell_adv = [f'v_lshl_add_u64 v[{vAX}:{vAE}], v[{vAX}:{vAE}], 0, s[{sINC}:{sINC+1}]']
    xaddr = [f'v_mad_u32_u16 v{vEX+j}, v{vEX+j}, s{s128}, v{vCX}' for j in range(4)]
    eaddr = f'v_add_u32 v{vEE}, v{vEE}, v{vCE}'
    m0x = f's_mov_b32 m0, s{sSLOT}'; m0e = f's_add_u32 m0, s{sSLOT}, {4*XP}'
    dmax = [f'buffer_load_dwordx4 v{vEX+j}, {srdn(SX)}, s{sXO+j} offen offset:{j*XP}{P.pol_x} lds' for j in range(4)]
    dmae = f'buffer_load_dwordx4 v{vEE}, {srdn(SE)}, 0 offen{P.pol_e} lds'
    adv = [f's_sub_u32 s{sSLOT}, s{sSUM}, s{sSLOT}']
    baddr = [f'v_add_u32 v{vBX}, s{sSLOT}, v{vBX0}', f'v_add_u32 v{vBE}, s{sSLOT}, v{vBE0}']
    bread = [f'ds_read_b128 {R("a", aBX+4*k, 4)}, v{vBX} offset:{32*k}' for k in range(4)] + [f'ds_read_b128 {R("a", aBE, 4)}, v{vBE}']
    breadk = bread[4:] + bread[:4] if P.efirst else bread
    PFa = [m0x] + xaddr + [eaddr] + dmax + [m0e] + [adv[0]] + [dmae] + adv[1:]
    PFb = ell_read + jump + ell_adv
    PF = PFa + PFb + baddr

    stamp(21)
    vG = 112
    a(f'ds_read_b32 v16, v12 offset:{FLAG}')
    for i in range(NSLOT - 1): a(f'ds_read_b32 v{vP+i}, v{vI+i} offset:{CNT}')
    a(f's_waitcnt lgkmcnt({NSLOT - 3})')
    a(f'ds_read_b32 v{vP+NSLOT-1}, v{vI+NSLOT-1} offset:{CNT}')
    a('ds_read_b32 v17, v25')
    a('v_readfirstlane_b32 s3, v16')
    alt = lambda L: [x.replace(R('v', vEX, 4), R('v', vG, 4)).replace(f'v{vEX}', f'v{vG}').replace(f'v{vEX+1}', f'v{vG+1}').replace(f'v{vEX+2}', f'v{vG+2}')
                      .replace(f'v{vEX+3}', f'v{vG+3}').replace(f'v{vEE}', f'v{vG+4}') for x in L]
    a('s_cmp_lg_u32 s3, 0'); a('s_cbranch_scc1 L_slow0')
    for lo, hi in ((0, 4), (4, 8), (8, 11), (11, 15)):
        a(f's_waitcnt lgkmcnt({NSLOT - hi + 1 + lo})')
        for i in range(lo, hi): a(f'v_mul_u32_u24_sdwa v{vK+i}, v{vK+i}, v{vP+i} {SDWA}WORD_0')
        for i in range(lo, hi): a(f'v_add_u32_sdwa v{vP+i}, v{vK+i}, v{vP+i} {SDWA}WORD_1')
        for i in range(lo, hi):
            if i >= 11: a(f's_mov_b64 exec, s[{58+2*(i-11)}:{59+2*(i-11)}]')
            a(f'ds_write2st64_b32 v{vP+i}, v{vR+2*i}, v{vR+2*i+1} offset0:{EX//256} offset1:{EE//256}')
    a('s_mov_b64 exec, -1')
    a('s_waitcnt lgkmcnt(10)')
    a('v_bfe_u32 v17, v17, 16, 6')
    F = [f'v_add_u32 v{vAX}, 128, v{vAX}', f'v_add_u32 v{vAE}, 128, v{vAE}',
         f'v_lshrrev_b32 v{vE+1}, 3, v{vBE0}', f'v_and_b32 v{vE+2}, 16, v{vBE0}', f'v_and_b32 v{vE+1}, -4, v{vE+1}',
         f'v_lshlrev_b32 v{vE}, 4, v{vE+2}', f's_sub_u32 s3, s{sQROW}, {4*XP//8}', f'v_add_u32 v{vE+1}, s3, v{vE+1}']
    for sh in ('row_shr:1', 'row_shr:2', 'row_shr:4', 'row_shr:8', 'row_bcast:15'):
        for x in F[:2]: a(x)
        F = F[2:]
        a(f'v_max_u32_dpp v17, v17, v17 {sh} ' + ('row_mask:0xf bank_mask:0xf bound_ctrl:0' if 'shr' in sh else 'row_mask:0xa bank_mask:0xf'))
    a(f'ds_read2st64_b32 v[{vE+4}:{vE+5}], v{vE+1} offset0:0 offset1:16')
    a(f'v_readlane_b32 s{sL}, v17, 31')
    a(f'v_readlane_b32 s{sLNEXT}, v17, 63')
    stamp(22)
    a(f's_max_u32 s{sL}, s{sL}, 1')
    a(f's_max_u32 s{sLNEXT}, s{sLNEXT}, 1')
    if P.thr and P.tk:
        a(f's_add_u32 s55, s{sL}, s{sLNEXT}'); a(f's_mul_i32 s55, s55, {-P.tk}'); a(f's_add_i32 s55, s55, {P.thr + 26*P.tk}')
        if P.tp: a(f's_and_b32 s3, s2, 1'); a(f's_mul_i32 s3, s3, {P.tp}'); a('s_sub_i32 s55, s55, s3')
        a('s_max_i32 s55, s55, 0')
    elif P.thr: a(f's_movk_i32 s55, {P.thr}')
    if P.thr: a(f's_min_u32 s55, s55, s{sL}')
    if P.stamp: a(f's_add_u32 s{sCNT}, s{sL}, s{sLNEXT}')
    a(f's_lshl_b32 s3, s{sL}, 7')
    a(f's_sub_u32 s{sJUMP}, {4096 + 128}, s3'); a(f's_mov_b32 s{sJUMP+1}, s{sJUMP}')
    a(f's_movk_i32 s{sSTEP}, 128'); a(f's_movk_i32 s{sSTEP+1}, 128')
    a(f's_lshl_b32 s{sSUM}, s{sSLOT}, 1'); a(f's_add_u32 s{sSUM}, s{sSUM}, {SLOT}')
    a(f's_sub_u32 s{sJ}, s{sL}, 1')
    if P.stamp: a(f's_mov_b32 s{88+10}, 0')
    for x in jump: a(x)
    a('s_waitcnt vmcnt(0) lgkmcnt(0)')
    a('s_barrier')
    stamp(8)
    for x in alt(ell_read) + ell_adv + PFb: a(x)
    a('s_waitcnt lgkmcnt(2)')
    for x in alt(PFa): a(x)
    a('s_waitcnt lgkmcnt(0)')
    for x in PF: a(x)

    for i in range(16): a(f'ds_read_b128 {R("v", vQ+4*i, 4)}, v{vE} offset:{B1T + 16*i}')
    a(f'v_mov_b32 v{vINFO}, v{vE+4}')
    a(f'v_accvgpr_write_b32 a{aINFO}, v{vE+5}')
    for g, dst in ((0, aBX), (1, aQB)):
        t = vE + 8 + 4*g
        a(f'v_and_b32 v{t}, 0xffff, v{vE+4+g}'); a(f'v_subrev_u32 v{t}, s{sNB0}, v{t}'); a(f'v_min_u32 v{t}, 223, v{t}')
        a(f'v_and_b32 v{t+1}, 7, v{t}'); a(f'v_lshl_add_u32 v{t}, v{t}, 3, v{t+1}'); a(f'v_lshlrev_b32 v{t}, 4, v{t}')
        a(f'v_xor_b32 v{t}, v{t}, v{vE+2}'); a(f'v_add_u32 v{t}, {XO}, v{t}')
        for k in range(1, 4): a(f'v_xor_b32 v{t+k}, {32*k}, v{t}')
        for k in range(4): a(f'ds_read_b128 {R("a", dst+4*k, 4)}, v{t+k}')
    a('s_waitcnt lgkmcnt(4)')
    pf = list(later)
    qm = lambda c, k, b: mfma(R('v', vQ+16*c, 16), R('a', aW1B + (c*4+k)*4, 4), R('a', b+4*k, 4), R('v', vQ+16*c, 16))
    for c in range(4):
        for k in range(4):
            a(qm(c, k, aBX))
            for x in pf[:4]: a(x)
            pf = pf[4:]
    assert not pf
    a(f's_waitcnt vmcnt({VW})')
    for x in bread: a(x)
    stamp(9)
    a('s_waitcnt lgkmcnt(0)')
    pf = list(PF)
    for k in range(5):
        a(m1(0, k, vN, vQ))
        n = 3 if k < 4 else 99
        for x in pf[:n]: a(x)
        pf = pf[n:]
    a('.p2align 3')
    a.label('L_first')
    a(f'v_bfe_u32 v{vDEG}, v{vINFO}, 16, 6')
    a(f's_mov_b32 s{sT}, 1')
    for c in range(4):
        cn = (c + 1) & 3
        if c == 3: a('s_waitcnt lgkmcnt(0)')
        for k in range(5):
            a(m1(cn, k, vN + 16*cn if c < 3 else vY, vQ + 16*cn))
            if c == 2:
                if k == 0:
                    a(f's_waitcnt vmcnt({VW+4})'); a(f's_cmp_eq_u32 s{sLNEXT}, 0'); a('s_cbranch_scc1 L_w2')
                    a(f's_waitcnt vmcnt({P.fs})'); a.label('L_w2')
                a(breadk[k])
            for i in range(3*k, 3*k + (3 if k < 4 else 4)): a(f'v_exp_f32 v{vD+16*c+i}, v{vN+16*c+i}')
        align8(a)
        for p in range(8):
            d = R('v', vD + 16*c + 2*p, 2)
            a(f'v_pk_add_f32 {d}, {d}, 1.0 op_sel_hi:[1,0]')
    a(f's_cmp_ge_u32 s{sT}, s{sL}'); a('s_cbranch_scc1 L_flush')
    oth = f's_sub_u32 s{sOTH}, s{sSUM}, s{sSLOT}'
    bnext = f'v_add_u32 v{vBE}, s{sOTH}, v{vBE0}'
    m0top = lambda lv: m0e if lv == 1 else m0x
    def rows(name, lv, vm, send):
        a('.p2align 3')
        a.label(name)
        for c in range(4):
            cn = (c + 1) & 3
            y = vY + 16 * (c & 1); yn = vY + 16 * (cn & 1)
            S = [[] for _ in range(5)]
            V = [[] for _ in range(5)]
            cmpx = f'v_cmpx_lt_u32 vcc, s{sT}, v{vDEG}'
            if c == 0:
                S[1] = ['s_mov_b64 exec, -1']; S[2] = [jump[0]]; S[3] = [jump[1]]
                if lv == 0:
                    V[1] = xaddr[:2]; V[2] = xaddr[2:]; V[3] = [eaddr]
                    V[4] = dmax + [m0e, ell_read[0], dmae, ell_read[1]] + ell_adv + [cmpx]
                if lv == 1:
                    V[1] = [eaddr] + xaddr[:2]; V[2] = xaddr[2:]; S[3] += [dmae]; S[4] = [m0x, ell_read[1]]
                    V[4] = dmax + ell_read[:1] + ell_adv + [cmpx]
            if c == 1:
                S[0] = [adv[0]]
                S[3] = [f's_add_u32 s{sT}, s{sT}, 1']
                V[4] = [baddr[0]]
            if c == 2:
                for k in range(5): S[k] = [breadk[k]]
                S[0].insert(0, f's_waitcnt vmcnt({vm})')
                S[4].insert(0, 's_waitcnt lgkmcnt(3)')
            if c == 3:
                S[0] = ['s_waitcnt lgkmcnt(0)']
                if P.stamp == 2: S[0] = ['s_memrealtime s[86:87]', 's_waitcnt lgkmcnt(0)', f's_mov_b32 m0, s{sT}', 's_nop 0', f'v_writelane_b32 v{vMAX}, s86, m0']
                S[1] = [oth]
                S[2] = [m0top(lv)]
                S[3] = [f's_cmp_lt_u32 s{sT}, s{send}']
                V[4] = [bnext]
            for k in range(5):
                if (c, k) != (0, 0): a(m1(cn, k, yn, vQ + 16*cn))
                for x in S[k]: a(x)
                for i in range(3*k, 3*k + (3 if k < 4 else 4)): a(f'v_exp_f32 v{vE+i}, v{y+i}')
                for x in V[k]: a(x)
            align8(a)
            for p in range(8):
                yy, nn, dd, ee = R('v', y+2*p, 2), R('v', vN+16*c+2*p, 2), R('v', vD+16*c+2*p, 2), R('v', vE+2*p, 2)
                a(f'v_pk_fma_f32 {yy}, {yy}, {dd}, {nn}')
                a(f'v_pk_fma_f32 {dd}, {dd}, {ee}, {dd}')
                a(f'v_pk_fma_f32 {nn}, {nn}, {ee}, {yy}')
        a(m1(1, 0, vY + 16, vQ + 16))
        a(f's_cbranch_scc1 {name}')
    a(oth); a(m0top(P.lv)); a(bnext)
    if P.thr: a(f's_cmp_ge_u32 s{sT}, s55')
    a(m1(1, 0, vY + 16, vQ + 16))
    if P.thr:
        a.raw('; the first rows run with a shorter look-ahead')
        a('s_cbranch_scc1 L_row')
        a(m0top(P.lvs))
        rows('L_srow', P.lvs, P.svm, 55)
        a(m0top(P.lv))
        a(f's_cmp_ge_u32 s{sT}, s{sL}'); a('s_cbranch_scc1 L_flush')
    rows('L_row', P.lv, VW, sL)
    a.label('L_flush')
    if P.stamp:
        a(f's_cmp_lg_u32 s{88+10}, 0'); a('s_cbranch_scc1 L_st10'); stamp(10); a.label('L_st10')
        stamp(11)
    a('s_mov_b64 exec, -1')
    if P.stamp == 2:
        a(f'v_writelane_b32 v{vMAX}, s{sL}, 0')
        a(f'v_mbcnt_lo_u32_b32 v{vE}, -1, 0'); a(f'v_mbcnt_hi_u32_b32 v{vE}, -1, v{vE}'); a(f'v_lshlrev_b32 v{vE}, 2, v{vE}')
        a('s_lshl_b32 s3, s2, 2'); a(f's_add_u32 s3, s3, s{sWAVE}'); a('s_lshl_b32 s3, s3, 8'); a(f's_add_u32 s3, s3, {WS_STAMP + 65536}')
        a(f's_cmp_eq_u32 s{sLNEXT}, 0'); a('s_cselect_b32 s56, 128, 0'); a('s_add_u32 s3, s3, s56')
        a('s_mov_b32 exec_hi, 0')
        a(f'buffer_store_dword v{vMAX}, v{vE}, {srdn(SW)}, s3 offen')
        a('s_mov_b64 exec, -1')
    a(f'v_and_b32 v{vE+8}, 16, v{vBE0}')
    a(f's_cmp_eq_u32 s{sLNEXT}, 0')
    a(f'v_lshlrev_b32 v{vMAX}, 4, v{vE+8}')
    a('s_cbranch_scc1 L_last')
    def g3(c, i):
        u = 2*c + (i >> 1); dt = i & 1
        acc = R('v', vY + 16*dt, 16)
        return mfma(acc, R('a', aW2 + (dt*8+u)*4, 4), R('v', vE + 8*(c & 1) + 4*(i >> 1), 4), acc if u else '0')
    b1r = [f'ds_read_b128 {R("v", vQ+4*i, 4)}, v{vMAX} offset:{B1T + 16*i}' for i in range(16)]
    b2r = [f'ds_read_b128 {R("v", vD+4*i, 4)}, v{vMAX} offset:{B2T + 16*i}' for i in range(8)]
    rcp = lambda c: [f'v_rcp_f32 v{vD+16*c+i}, v{vD+16*c+i}' for i in range(16)]
    hcv = lambda c: [f'v_cvt_pk_bf16_f32 v{vE+8*(c&1)+p}, v{vN+16*c+2*p}, v{vN+16*c+2*p+1}' for p in range(8)]
    mul = [f'v_mul_f32 v{vD+i}, v{vD+i}, v{vDEG}' for i in range(32)]
    dpp = [f'v_add_f32_dpp v{vD+i}, v{vD+i}, v{vD+i} quad_perm:[1,0,3,2] row_mask:0xf bank_mask:0xf' for i in range(32)]
    cvt = [f'v_cvt_pk_bf16_f32 v{vE+p}, v{vD+2*p}, v{vD+2*p+1}' for p in range(16)]
    sto = [f'buffer_store_dwordx4 {R("v", vE+4*i, 4)}, v{vINFO}, {srdn(SO)}, 0 offen offset:{16*i}{P.pol_out}' for i in range(4)]
    def window(M, G):
        assert len(M) == len(G)
        for m, g in zip(M, G):
            if m: a(m)
            for x in g: a(x)
    def flush(more):
        a('.p2align 3')
        if more:
            for x in b1r[:4] + baddr: a(x)
        a(f'v_bfe_u32 v{vE+9}, v{vINFO}, 22, 2')
        a(f'v_lshlrev_b32 v{vE+8}, 2, v{vE+8}')
        a(f'v_cmp_ne_u32 s[58:59], 0, v{vE+9}')
        a(f'v_cmp_ne_u32 s[60:61], 3, v{vE+9}')
        a(f'v_cmp_ne_u32 s[62:63], 0, v{vDEG}')
        a(f'v_mad_u32_u16 v{vINFO}, v{vINFO}, s{s128}, v{vE+8}')
        a(f'v_cvt_f32_u32 v{vDEG}, v{vDEG}')
        a(f's_mov_b32 s3, {f32(2.0**120)}')
        align8(a)
        for i in range(16):
            acc = R('v', vE + 2*(i & 1), 2)
            if i < 2: a(f'v_pk_mul_f32 {acc}, {R("v", vD+4*i, 2)}, {R("v", vD+4*i+2, 2)}')
            else: a(f'v_pk_fma_f32 {acc}, {R("v", vD+4*i, 2)}, {R("v", vD+4*i+2, 2)}, {acc}')
        a(f'v_pk_add_f32 {R("v", vE, 2)}, {R("v", vE, 2)}, {R("v", vE+2, 2)}')
        chk = [f'v_add_f32 v{vE}, v{vE}, v{vE+1}', f'v_cmp_nge_f32 s[56:57], s3, v{vE}']
        for c in range(4):
            r = rcp(c)
            if c == 0 and more:
                a('s_waitcnt lgkmcnt(0)')
                rd = bread + b1r[4:11]
                window([qm(0, k, aQB) for k in range(4)], [rd[3*k:3*k+3] + r[4*k:4*k+4] + chk[k:k+1] for k in range(4)])
            elif c == 0:
                for x in r[:4] + chk[:1] + r[4:8] + chk[1:] + r[8:]: a(x)
            elif more:
                h = hcv(c - 1)
                M = [qm(c, 0, aQB), qm(c, 1, aQB), g3(c-1, 0), g3(c-1, 1), qm(c, 2, aQB), g3(c-1, 2), qm(c, 3, aQB), g3(c-1, 3)]
                Vv = [h[:4], h[4:], r[:2], r[2:4], r[4:6], r[6:9], r[9:12], r[12:]]
                if c == 1:
                    a('s_waitcnt lgkmcnt(3)')
                    Pre = [[m0e, b1r[11]], [dmae], [m0x], dmax[:2], dmax[2:], [jump[0]] + ell_read, [jump[1]], ['s_waitcnt lgkmcnt(2)']]
                    Post = [[eaddr], xaddr[:2], xaddr[2:], [], [], [], adv, ell_adv + baddr]
                if c == 2:
                    Pre = [b1r[12:14], b1r[14:], b2r[:2], b2r[2:4], b2r[4:6], b2r[6:7], b2r[7:], ['s_waitcnt lgkmcnt(8)']]
                    Post = [[]] * 8
                if c == 3:
                    Pre = [[], ['s_waitcnt lgkmcnt(0)'], [], [], [], [], [], []]
                    Post = [[], [], mul[:1], mul[1:2], [], [], [], mul[2:3]]
                window(M, [Pre[i] + Vv[i] + Post[i] for i in range(8)])
            else:
                for x in hcv(c - 1): a(x)
                Pre = [b2r[2*q:2*q+2] if c == 2 else [] for q in range(4)]
                Post = [[], [], [], []]
                if c == 3: Pre[1] = ['s_waitcnt lgkmcnt(0)']; Post[3] = mul[:3]
                window([g3(c-1, q) for q in range(4)], [Pre[q] + r[4*q:4*q+4] + Post[q] for q in range(4)])
            align8(a)
            for p in range(8):
                nn, dd = R('v', vN+16*c+2*p, 2), R('v', vD+16*c+2*p, 2)
                a(f'v_pk_mul_f32 {nn}, {nn}, {dd}')
        for x in hcv(3): a(x)
        window([g3(3, q) for q in range(4)],
               [['s_and_b64 s[56:57], s[56:57], s[62:63]'] + mul[3:9], [f's_or_b64 s[{sBAD}:{sBAD+1}], s[{sBAD}:{sBAD+1}], s[56:57]'] + mul[9:15],
                ['s_movk_i32 s3, 0x207'] + mul[15:21], mul[21:] + ['s_mov_b64 exec, s[62:63]']])
        align8(a)
        for p in range(16):
            yy, dd = R('v', vY+2*p, 2), R('v', vD+2*p, 2)
            a(f'v_pk_fma_f32 {dd}, {yy}, s[{sLN2}:{sLN2+1}], {dd}')
        a(f'v_cmp_class_f32_e64 vcc, v{vD}, s3')
        bad = f's_or_b64 s[{sBAD}:{sBAD+1}], s[{sBAD}:{sBAD+1}], vcc'
        if more:
            window([m1(0, k, vN, vQ) for k in range(5)],
                   [['s_mov_b64 exec, s[58:59]', bad] + dpp[:6], [f's_mov_b32 s{sL}, s{sLNEXT}', f's_mov_b32 s{sLNEXT}, 0'] + dpp[6:12],
                    dpp[12:18], dpp[18:24], dpp[24:]])
        else:
            for x in ['s_mov_b64 exec, s[58:59]', bad] + dpp: a(x)
        a('s_mov_b64 exec, s[60:61]'); a('s_mov_b32 s55, 0')
        for x in cvt[:8] + sto[:2] + cvt[8:] + sto[2:]: a(x)
        a('s_mov_b64 exec, -1')
    flush(True)
    a(f'v_accvgpr_read_b32 v{vINFO}, a{aINFO}')
    a('s_branch L_first')
    a.label('L_last')
    flush(False)
    if P.stamp:
        a('s_waitcnt vmcnt(0)'); stamp(12); stamp(13, True)
        for i in range(14): a(f'v_writelane_b32 v1, s{88+i}, {i}')
        a(f'v_writelane_b32 v1, s{sCNT}, 14')
        a('s_getreg_b32 s3, hwreg(HW_REG_XCC_ID, 0, 4)'); a('v_writelane_b32 v1, s3, 15')
        a('v_mbcnt_lo_u32_b32 v2, -1, 0'); a('v_mbcnt_hi_u32_b32 v2, -1, v2'); a('v_lshlrev_b32 v2, 2, v2')
        a('s_lshl_b32 s3, s2, 2'); a(f's_add_u32 s3, s3, s{sWAVE}'); a('s_lshl_b32 s3, s3, 6'); a(f's_add_u32 s3, s3, {WS_STAMP}')
        a('s_mov_b64 exec, 0xffff')
        a(f'buffer_store_dword v1, v2, {srdn(SW)}, s3 offen')
        a('s_mov_b64 exec, -1')
    a(f's_cmp_eq_u64 s[{sBAD}:{sBAD+1}], 0')
    a('v_mov_b32 v1, 0'); a('v_mov_b32 v2, 1')
    a('s_cbranch_scc1 L_nobad')
    a(f'ds_write_b32 v1, v2 offset:{FLAG}')
    a.label('L_nobad')
    a('s_waitcnt lgkmcnt(0)')
    a('s_barrier')
    a(f'ds_read_b32 v2, v1 offset:{FLAG}')
    a('s_waitcnt lgkmcnt(0)')
    a('v_readfirstlane_b32 s3, v2')
    a('s_cmp_lg_u32 s3, 0'); a('s_cbranch_scc1 L_slow')
    if P.diag:
        if P.diagx:
            a('s_getreg_b32 s3, hwreg(HW_REG_XCC_ID, 0, 4)'); a('s_xor_b32 s3, s3, s2'); a(f's_and_b32 s3, s3, {P.diagx}'); a('s_cbranch_scc0 L_end')
        a.label('L_diag')
        a('s_memrealtime s[86:87]'); a('s_waitcnt lgkmcnt(0)')
        a(f's_sub_u32 s86, s86, s{sTAG}'); a(f's_cmp_lt_u32 s86, {P.diag}'); a('s_cbranch_scc1 L_diag')
    a.label('L_end')
    a('s_endpgm')

    for b, lo, hi in retry:
        a.label(f'L_retry{b}')
        for i in range(lo, hi): rec(i)
        a('s_waitcnt vmcnt(0)')
        a(f's_sub_u32 s{sCNT}, s{sCNT}, 1')
        a(f's_cbranch_scc0 L_chk{b}')
        a(f's_mov_b32 s{sSLOW}, 1')
        a('s_branch L_skipB')
    a.label('L_slow0')
    a('s_waitcnt vmcnt(0)')
    a('s_barrier')
    for x in lateq + later: a(x)
    a.label('L_slow')
    a('s_mov_b64 exec, -1')
    a('s_waitcnt vmcnt(0) lgkmcnt(0)')
    a('s_load_dwordx4 s[8:11], s[0:1], 16')
    a('s_barrier')
    vL, vS, vH, vT0, vT1, vOA, vD4 = 240, 241, 242, 244, 245, 246, 252
    a(f'v_mbcnt_lo_u32_b32 v{vL}, -1, 0'); a(f'v_mbcnt_hi_u32_b32 v{vL}, -1, v{vL}')
    a(f'v_and_b32 v{vS}, 31, v{vL}')
    a(f'v_lshrrev_b32 v{vH}, 5, v{vL}')
    a(f's_lshl_b32 s3, s{sWAVE}, 10')
    a(f'v_lshl_add_u32 v4, v{vL}, 4, s3')
    for i in range(4): a(f'v_mov_b32 v{i}, 0')
    for i in range(13): a(f'ds_write_b128 v4, v[0:3] offset:{OACC + 4096*i}')
    a('s_waitcnt lgkmcnt(0)')
    a('s_barrier')
    srd(a, SD, 10, E * 4); srd(a, SS, 8, E * 4)
    sE0, sJj = 56, 57
    a(f's_lshl_b32 s{sE0}, s{sWAVE}, 9')
    a(f'v_lshlrev_b32 v243, 4, v{vS}')
    a.label('L_s_blk')
    a(f'buffer_load_dwordx4 {R("v", vD4, 4)}, v243, {srdn(SD)}, s{sE0} offen')
    a(f's_mov_b32 s{sJj}, 0')
    a('s_waitcnt vmcnt(0)')
    a.label('L_s_sub')
    a(f'v_subrev_u32 v248, s{sNB0}, v{vD4}')
    a(f'v_cmp_gt_u32 s[60:61], s{sNNODE}, v248')
    a('s_cmp_eq_u64 s[60:61], 0'); a('s_cbranch_scc1 L_s_next')
    a(f's_add_u32 s3, s{sE0}, s{sJj}')
    a(f'buffer_load_dword v{vT0}, v243, {srdn(SS)}, s3 offen')
    a(f'v_lshlrev_b32 v247, 8, v{vH}')
    for i in range(16): a(f'ds_read_b128 {R("v", vQ+4*i, 4)}, v247 offset:{B1T + 16*i}')
    a(f'v_lshlrev_b32 v247, 4, v{vH}')
    a(f'v_add_lshl_u32 v{vT1}, v243, s3, 3')
    a(f'v_add_u32 v{vT1}, v{vT1}, v247')
    a(f'v_lshl_add_u32 v249, v{vD4}, 7, v247')
    a(f'v_mul_u32_u24 v{vOA}, 260, v248')
    a(f'v_lshl_add_u32 v{vOA}, v{vH}, 7, v{vOA}')
    a('s_waitcnt vmcnt(0)')
    a(f'v_lshl_add_u32 v{vT0}, v{vT0}, 7, v247')
    a('s_mov_b64 exec, s[60:61]')
    for k in range(4): a(f'buffer_load_dwordx4 {R("a", aBX+4*k, 4)}, v{vT0}, {srdn(SX)}, s{sXO} offen offset:{32*k}')
    a(f'buffer_load_dwordx4 {R("a", aBE, 4)}, v{vT1}, {srdn(SE)}, 0 offen')
    for k in range(4): a(f'buffer_load_dwordx4 {R("v", vE+4*k, 4)}, v249, {srdn(SX)}, s{sXO} offen offset:{32*k}')
    a('s_waitcnt vmcnt(0) lgkmcnt(0)')
    for c in range(4):
        q = R('v', vQ+16*c, 16)
        for k in range(4): a(mfma(q, R('a', aW1B + (c*4+k)*4, 4), R('v', vE+4*k, 4), q))
        for k in range(5): a(m1(c, k, vQ+16*c, vQ+16*c))
    for i in range(64): a(f'v_exp_f32 v{vD+i}, v{vQ+i}')
    for i in range(64): a(f'v_add_f32 v{vD+i}, 1.0, v{vD+i}')
    for i in range(64): a(f'v_rcp_f32 v{vD+i}, v{vD+i}')
    for i in range(64): a(f'v_mul_f32 v{vD+i}, v{vD+i}, v{vQ+i}')
    for i in range(32): a(f'v_cvt_pk_bf16_f32 v{vN+i}, v{vD+2*i}, v{vD+2*i+1}')
    a(f'v_lshlrev_b32 v247, 7, v{vH}')
    for i in range(8): a(f'ds_read_b128 {R("v", vQ+4*i, 4)}, v247 offset:{B2T + 16*i}')
    for dt in range(2):
        acc = R('v', vY + 16*dt, 16)
        for u in range(8): a(mfma(acc, R('a', aW2 + (dt*8+u)*4, 4), R('v', vN + 4*u, 4), acc if u else '0'))
    a('s_waitcnt lgkmcnt(0)')
    for i in range(32): a(f'v_fma_f32 v{vY+i}, v{vY+i}, s{sLN2}, v{vQ+i}')
    for i in range(32): a(f'ds_add_f32 v{vOA}, v{vY+i} offset:{OACC + 4*i}')
    a('s_mov_b64 exec, -1')
    a('s_waitcnt lgkmcnt(0)')
    a.label('L_s_next')
    for i in range(3): a(f'v_mov_b32 v{vD4+i}, v{vD4+i+1}')
    a(f's_add_u32 s{sJj}, s{sJj}, 4')
    a(f's_cmp_lt_u32 s{sJj}, 16'); a('s_cbranch_scc1 L_s_sub')
    a(f's_add_u32 s{sE0}, s{sE0}, 2048')
    a(f's_cmp_lt_u32 s{sE0}, {E*4}'); a('s_cbranch_scc1 L_s_blk')
    a('s_barrier')
    a(f's_lshl_b32 s3, s{sWAVE}, 1')
    a(f'v_add_u32 v1, s3, v{vH}')
    a.label('L_s_out')
    a(f'v_cmp_gt_u32 vcc, s{sNNODE}, v1')
    a('v_mul_u32_u24 v4, 260, v1')
    a(f'v_lshl_add_u32 v4, v{vS}, 3, v4')
    a(f'v_add_u32 v4, {OACC}, v4')
    a(f'v_add_u32 v5, s{sNB0}, v1')
    a('v_lshlrev_b32 v5, 7, v5')
    a(f'v_lshl_add_u32 v5, v{vS}, 2, v5')
    a('s_and_b64 exec, exec, vcc')
    a('s_cbranch_execz L_s_end')
    a('ds_read2_b32 v[2:3], v4 offset0:0 offset1:1')
    a('s_waitcnt lgkmcnt(0)')
    a('v_cvt_pk_bf16_f32 v2, v2, v3')
    a(f'buffer_store_dword v2, v5, {srdn(SO)}, 0 offen')
    a('v_add_u32 v1, 8, v1')
    a('s_branch L_s_out')
    a.label('L_s_end')
    a('s_endpgm')
    a('.p2align 7')
    a.raw('.type L_table,@object')
    a.label('L_table')
    T = pattern_table(BN0) + pattern_table(BN1)
    for i in range(0, 512, 8): a.raw('.long ' + ', '.join(hex(x) for x in T[i:i+8]))
    a.raw('.size L_table, 2048')
    return a

HEADER = """;
;
;     a table row {start, count} per bucket to d_ws.  Everything handed over carries this launch's tag
"""
if __name__ == '__main__':
    for kv in sys.argv[2:]:
        k, v = kv.split('=')
        cur = getattr(P, k)
        setattr(P, k, int(v) if isinstance(cur, int) else (' ' + v.replace('+', ' ') if v else ''))
    k = gen()
    for p in check_all_edges(k): print('HAZARD on branch edge', p, file=sys.stderr)
    print('instrs', sum(1 for x in k.items if not isinstance(x, str)), 'auto nops', k.nops, file=sys.stderr)
    out = open('cdna_kernels/' + NAME + '.s.ref').read().split('; Override launch')[0]
    out += f'; @launch grid=({NB},1,1) block=(256,1,1) lds={lds_bytes()}\n'
    out += HEADER + '.amdgcn_target "amdgcn-amd-amdhsa--gfx950"\n.text\n'
    out += f'.globl {NAME}_kernel\n.type {NAME}_kernel,@function\n' + k.text().replace('; aligned\n', '')
    out += f'''.section .rodata,"a"
.p2align 6
.amdhsa_kernel {NAME}_kernel
  .amdhsa_next_free_vgpr 512
  .amdhsa_next_free_sgpr 102
  .amdhsa_accum_offset 256
  .amdhsa_group_segment_fixed_size 0
  .amdhsa_kernarg_size 88
  .amdhsa_user_sgpr_count 2
  .amdhsa_user_sgpr_kernarg_segment_ptr 1
  .amdhsa_system_sgpr_workgroup_id_x 1
.end_amdhsa_kernel
'''
    open(sys.argv[1], 'w').write(out)
```

```python
import sys, struct
from asmlib import Asm, Ins, check_all_edges

NAME = 'standalone__edge_featured_mpnn_mpnn__graph'
N, E = 50000, 800000
NB = 256
NCH, CH = 256, 3125
WS_REC, WS_TAB = 0, 8 << 20
WS_SIZE = 10 << 20
WS_STAMP = (9 << 20) + (512 << 10)
DUMMY = 0x4000FFFF
def f32(x): return struct.unpack('<I', struct.pack('<f', x))[0]
NLOG2E = f32(-1.4426950408889634)
NLN2 = f32(-0.6931471805599453)

class P:
    depth = 2
    stamp = 0
    efrac = 100
    xfrac = 100
    limit = 3000
    w2p = 1
    pad = 0
    late = 0
    w1 = 4
    w2 = 9
    iw = 1
    bat = 0
    fs = 5
    efirst = 0
    peek = 0
    only = 1
    lvs = 1
    lv = 1
    tk = 2
    tp = 4
    pc = 2
    diagx = 0
    bn0 = 199
    par = 0
    stag = 1
    st1 = 0
    tpos = 1
    probe = 1
    tagst = 0
    wpos = 1
    ninit = 14
    pol_st = ' sc1'
    xpre = ''
    svm = 4
    thr = 9
    xpos = 4
    two = 0
    classes = 4
    codepre = 2
    estr = 128
    srcpos = 8
    epre = ''
    diag = 0
    force = 0
    pol_in = ' nt'
    pol_e = ''
    pol_x = ''
    pol_out = ''

CNT, HB, HIST, FLAG = 0, 4096, 5120, 5376
B1T, B2T, TT = 6144, 6656, 7168
START = TT
EX, EE = 8192, 40960
RING = 73728
NSLOT = 15
MAP = RING
STAGE = MAP + 16384
LDS_TOTAL = 163840
WST = LDS_TOTAL - 52 * 1024
XP = 1056
SLOT = 4 * XP + 1024
XO = RING + 8 * SLOT
OACC = 8192
def lds_bytes(): return LDS_TOTAL

PATTERNS = {
 191: [(0,0,'H',1),(2,0,'H',2),(3,0,'H',3),(3,1,'H',16),(2,1,'H',13),(0,0,'S',30),(1,1,'H',14),(1,0,'S',32),(2,0,'S',28),(3,0,'S',26),(0,1,'H',16),(2,1,'S',6),(1,1,'S',4)],
 192: [(0,0,'H',1),(2,0,'H',1),(3,0,'H',5),(3,1,'H',15),(2,1,'H',12),(0,0,'S',30),(1,1,'H',14),(1,0,'S',32),(2,0,'S',30),(3,0,'S',22),(0,1,'H',16),(3,1,'S',2),(2,1,'S',8),(1,1,'S',4)],
 193: [(0,0,'H',1),(2,0,'H',2),(3,0,'H',3),(3,1,'H',16),(2,1,'H',11),(0,0,'S',30),(1,1,'H',14),(1,0,'S',32),(2,0,'S',28),(3,0,'S',26),(0,1,'H',16),(2,1,'S',10),(1,1,'S',4)],
 194: [(0,0,'H',1),(2,0,'H',2),(3,0,'H',3),(3,1,'H',16),(2,1,'H',10),(0,0,'S',30),(1,1,'H',14),(1,0,'S',32),(2,0,'S',28),(3,0,'S',26),(0,1,'H',16),(2,1,'S',12),(1,1,'S',4)],
 195: [(0,0,'H',1),(2,0,'H',2),(3,0,'H',2),(3,1,'H',16),(2,1,'H',10),(0,0,'S',30),(1,1,'H',14),(1,0,'S',32),(2,0,'S',28),(3,0,'S',28),(0,1,'H',16),(2,1,'S',12),(1,1,'S',4)],
 196: [(0,0,'H',1),(2,0,'H',2),(3,0,'H',2),(3,1,'H',16),(2,1,'H',9),(0,0,'S',30),(1,1,'H',14),(1,0,'S',32),(2,0,'S',28),(3,0,'S',28),(0,1,'H',16),(2,1,'S',14),(1,1,'S',4)],
 197: [(0,0,'H',1),(2,0,'H',2),(3,0,'H',2),(3,1,'H',16),(2,1,'H',9),(0,0,'S',30),(1,1,'H',13),(1,0,'S',32),(2,0,'S',28),(3,0,'S',28),(0,1,'H',16),(2,1,'S',14),(1,1,'S',6)],
 198: [(0,0,'H',1),(2,0,'H',4),(3,1,'H',12),(2,1,'H',12),(0,0,'S',30),(1,1,'H',13),(1,0,'S',32),(2,0,'S',24),(3,0,'S',32),(0,1,'H',16),(3,1,'S',8),(2,1,'S',8),(1,1,'S',6)],
 199: [(1,0,'H',1),(2,0,'H',1),(3,0,'H',3),(3,1,'H',12),(2,1,'H',11),(0,0,'S',32),(1,1,'H',13),(1,0,'S',30),(2,0,'S',30),(3,0,'S',26),(0,1,'H',16),(3,1,'S',8),(2,1,'S',10),(1,1,'S',6)],
 200: [(0,0,'H',1),(2,0,'H',1),(3,0,'H',2),(3,1,'H',12),(2,1,'H',11),(0,0,'S',30),(1,1,'H',13),(1,0,'S',32),(2,0,'S',30),(3,0,'S',28),(3,1,'S',8),(0,1,'H',16),(2,1,'S',10),(1,1,'S',6)],
}
def pattern_table(BN):
    free = {(w, ph): list(range(32)) for w in range(4) for ph in range(2)}
    T = [None] * BN; p = 0; segs = []
    for w, ph, t, n in PATTERNS[BN]: segs.append((w, ph, t, p, n)); p += n
    assert p == BN
    for t0 in 'HS':
        for w, ph, t, p0, n in segs:
            if t != t0: continue
            for i in range(n):
                pos = free[(w, ph)].pop(0)
                if t == 'H': assert pos < 16; free[(w, ph)].remove(pos + 16)
                T[p0 + i] = (((w * 2 + ph) * 4096 + pos * 4 + 128) << 16) | (64 if t == 'H' else 128)
    assert all(not v for v in free.values())
    return T + [128] * (256 - BN)
def bucket_map():
    b0, b1 = P.bn0, 391 - P.bn0
    A = 128 * b0; M0 = -(-(1 << 24) // b0); M1 = -(-(1 << 24) // b1)
    for dn in range(N):
        f = dn * M0 + max(dn - A, 0) * (M1 - M0)
        assert f < 1 << 32 and f >> 24 == (dn // b0 if dn < A else 128 + (dn - A) // b1), dn
    return b0, b1, A, M0, M1

vN, vD, vQ, vY, vE = 0, 64, 128, 192, 224
vEX, vEE, vCX, vAX, vAE, vCE, vBX0, vBE0, vBX, vBE, vINFO, vDEG, vMAX = 240, 244, 245, 246, 247, 248, 249, 250, 251, 252, 253, 254, 255
aW1A, aW1C, aW1B, aW2, aBX, aBE, aJUNK = 0, 64, 80, 144, 208, 224, 228
aQB, aINFO = 232, 229
SX, SE, SW, SO, SD, SS = 12, 16, 20, 24, 68, 72
sB, sNB0, sNNODE, sWAVE, sMAP, sCOL = 28, 29, 30, 31, 32, 33
sXO = 36
s128, sSLOT, sRING0, sRING1, sT, sL, sLNEXT, sQROW = 40, 41, 42, 43, 44, 45, 46, 47
sLN2, sBAD = 48, 50
sJ, sSUM, sOTH = 52, 53, 54
sINC, sJUMP, sSTEP = 4, 6, 8
sSLOW, sCNT = 66, 67
mLO, mBN, mNN, mCH = 's[76:77]', 's[78:79]', 's[80:81]', 's[42:43]'
sTAG, sTAG8, sTAGH = 82, 83, 84
def R(p, b, n): return f'{p}[{b}:{b+n-1}]'
def srdn(s): return f's[{s}:{s+3}]'
SDWA = 'dst_sel:DWORD dst_unused:UNUSED_PAD src0_sel:DWORD src1_sel:'

def srd(a, d, lo, size):
    a(f's_mov_b32 s{d}, s{lo}'); a(f's_and_b32 s{d+1}, s{lo+1}, 0xffff')
    a(f's_mov_b32 s{d+2}, {size}'); a(f's_mov_b32 s{d+3}, 0x20000')
def wave_scan(a, v, fill=()):
    fill = list(fill)
    steps = [f'row_shr:{sh} row_mask:0xf bank_mask:0xf bound_ctrl:0' for sh in (1, 2, 4, 8)]
    steps += ['row_bcast:15 row_mask:0xa bank_mask:0xf', 'row_bcast:31 row_mask:0xc bank_mask:0xf']
    for s in steps:
        for x in fill[:2]: a(x)
        fill = fill[2:]
        a(f'v_add_u32_dpp v{v}, v{v}, v{v} {s}')
    for x in fill: a(x)
def mfma(d, A, B, C): return f'v_mfma_f32_32x32x16_bf16 {d}, {A}, {B}, {C}'
def m1(c, k, dst, first_c):
    first = k == 0
    if P.efirst: k = (k + 4) % 5
    A = R('a', aW1A + (c * 4 + k) * 4, 4) if k < 4 else R('a', aW1C + c * 4, 4)
    B = R('a', aBX + k * 4, 4) if k < 4 else R('a', aBE, 4)
    return mfma(R('v', dst, 16), A, B, R('v', first_c if first else dst, 16))
def isize(x):
    if x.endswith(':'): return 0
    op = x.split()[0]
    if op.startswith(('v_mfma', 'v_pk_', 'buffer_', 'ds_', 'global_', 'v_mad_', 'v_max3', 'v_cvt_pk', 'v_lshl_add', 'v_lshl_or', 'v_bfe', 'v_writelane',
                      'v_readlane', 's_mem', 'v_accvgpr', 'v_mbcnt', 'v_add_lshl', 'v_or3', 'v_and_or', 'v_bfi')) or op.endswith(('_e64', '_dpp', '_sdwa')): return 8
    if op.startswith('v_cmp') and not x.split()[1].startswith('vcc'): return 8
    for t in x.replace(',', ' ').split()[1:]:
        try: v = int(t, 0)
        except ValueError: continue
        if not -16 <= v <= 64 and not op.startswith(('s_movk', 's_waitcnt', 's_nop')): return 8
    return 4
def align8(a):
    n = 0; cand = None
    for i in range(len(a.items) - 1, -1, -1):
        it = a.items[i]
        if isinstance(it, str):
            if it.startswith(('.p2align', '; aligned')): break
            continue
        n += isize(it.text)
        if cand is None and isize(it.text) == 4 and it.op in ('v_exp_f32', 'v_rcp_f32', 'v_mul_f32', 'v_add_u32', 'v_lshlrev_b32', 'v_cvt_f32_u32'): cand = i
    if n % 8:
        if cand is None: a('s_nop 0')
        else: a.items[cand] = Ins(a.items[cand].text.replace(a.items[cand].op, a.items[cand].op + '_e64', 1))
    a.raw('; aligned')

def gen():
    D = P.depth
    BN0, BN1, NA, M0, M1 = bucket_map()
    assert D == 2
    VW = 5 * (D - 1)
    a = Asm()
    def stamp(i, real=False):
        if not P.stamp: return
        if P.stamp == 6:
            if i in (2, 3, 4): return
            if i >= 20: i -= 18
        elif i >= 20: return
        if P.stamp == 3: real = True
        if P.stamp == 4 and i not in (0, 13): return
        if P.stamp == 5:
            if i not in (0, 8, 13): return
            real = True
        a(f's_mem{"real" if real else ""}time s[86:87]'); a('s_waitcnt lgkmcnt(0)'); a(f's_mov_b32 s{88+i}, s86')
    def poll(name, load, check, first_issued=False, first_wait=None, only=False):
        a(f's_movk_i32 s{sCNT}, {P.limit}')
        if first_wait is not None:
            if first_wait: a(first_wait)
            check()
            a(f's_cbranch_scc0 {name}_ok')
        elif first_issued: a(f's_branch {name}_chk')
        a.label(name)
        if only: a('s_mov_b64 exec, vcc')
        load()
        if only: a('s_mov_b64 exec, -1')
        a.label(name + '_chk')
        a('s_waitcnt vmcnt(0)')
        check()
        a(f's_cbranch_scc0 {name}_ok')
        a(f's_sub_u32 s{sCNT}, s{sCNT}, 1')
        a(f's_cbranch_scc0 {name}')
        a(f's_mov_b32 s{sSLOW}, 1')
        a.label(name + '_ok')

    epre = [int(ch) for ch in P.epre.strip()]
    xpre = [int(ch) for ch in P.xpre.strip()]
    def warm(pos):
        n = 0
        for i, p in enumerate(epre):
            if p != pos: continue
            a(f'v_add_u32 v124, {i*256*P.estr}, v126')
            if (i + 1) * 256 * P.estr > CH * 32: a(f'v_min_u32 v124, v124, v125')
            a(f'buffer_load_dword a{aJUNK}, v124, {srdn(SE)}, 0 offen')
            n += 1
        for i, p in enumerate(xpre):
            if p != pos: continue
            a('s_lshr_b32 s3, s2, 3'); a('s_lshl_b32 s35, s2, 2'); a('s_add_u32 s3, s3, s35'); a('s_and_b32 s3, s3, 31')
            a(f's_add_u32 s3, s3, {32*i}'); a('s_lshl_b32 s3, s3, 8')
            a('v_add_lshl_u32 v124, v0, s3, 7')
            a(f'buffer_load_dword a{aJUNK}, v124, {srdn(SX)}, s{sXO} offen')
            n += 1
        return n
    a('.p2align 8'); a.label(NAME + '_kernel')
    a(f's_cmp_ge_u32 s2, {NB}'); a('s_cbranch_scc1 L_end')
    stamp(0, True); stamp(1)
    a('s_load_dwordx8 s[4:11], s[0:1], 0')
    a('s_load_dwordx4 s[60:63], s[0:1], 64')
    a('s_load_dwordx2 s[64:65], s[0:1], 80')
    a('s_load_dwordx8 s[52:59], s[0:1], 32')
    a(f's_memrealtime s[{sTAG}:{sTAG+1}]')
    a('s_getpc_b64 s[14:15]')
    a.label('L_pc')
    a('v_lshlrev_b32 v15, 2, v0')
    if P.codepre == 2:
        a('v_min_u32 v3, 4, v0'); a('s_lshr_b32 s3, s2, 3'); a('v_lshl_add_u32 v3, v3, 5, s3'); a('v_lshlrev_b32 v3, 7, v3')
    elif P.codepre: a('v_lshlrev_b32 v3, 7, v0')
    if P.codepre:
        a('v_min_u32 v3, L_slow0-L_pc, v3')
        a(f'global_load_dword a{aJUNK}, v3, s[14:15]')
    a('s_add_u32 s14, s14, L_table-L_pc')
    a('s_addc_u32 s15, s15, 0')
    a(f's_xor_b32 s85, s2, {P.par}'); a('s_and_b32 s85, s85, 1')
    a('v_lshl_add_u32 v3, s85, 10, v15')
    a('global_load_dword v11, v3, s[14:15]')
    a('v_lshrrev_b32 v1, 6, v0')
    a('v_and_b32 v2, 63, v0')
    a(f'v_readfirstlane_b32 s{sWAVE}, v1')
    a('v_lshlrev_b32 v21, 4, v0')
    for i in range(4): a(f'v_mov_b32 v{4+i}, 0')
    a('ds_write_b128 v21, v[4:7]')
    a('v_lshlrev_b32 v3, 3, v0')
    a(f'ds_write_b64 v3, v[4:5] offset:{HB}')
    a('v_mov_b32 v12, 0')
    a('v_mov_b32 v13, 1')
    a('v_lshlrev_b32 v9, 4, v2')
    a(f'v_cmp_gt_u32 vcc, {CH - 3072}, v0')
    a(f's_mul_i32 s3, s2, {CH*4}')
    for s in (SD, SS): a(f's_mov_b32 s{s+2}, {E*4}'); a(f's_mov_b32 s{s+3}, 0x20000')
    a(f's_mov_b64 {mLO}, vcc')
    a(f's_mov_b32 s{sSLOW}, 0')
    if P.stamp == 4: a('s_mov_b32 s89, 0'); a('s_mov_b32 s90, 0')
    a('s_waitcnt lgkmcnt(0)')
    vDs, vSr, vB, vRk, vRec = 32, 48, 64, 80, 96
    a(f's_mov_b32 s{SD}, s10'); a(f's_and_b32 s{SD+1}, s11, 0xffff')
    a(f's_mov_b32 s{SS}, s8'); a(f's_and_b32 s{SS+1}, s9, 0xffff')
    for i in range(4): a(f's_add_u32 s{8+i}, s3, {4096*i}')
    a(f's_lshr_b32 s37, s2, {0 if P.tagst else 3}')
    a(f's_or_b32 s37, s37, s{sWAVE}')
    a('s_cbranch_scc1 L_notag')
    if P.force != 1:
        a(f's_or_b32 s{sTAG}, s{sTAG}, 1')
        a(f'v_mov_b32 v4, s{sTAG}'); a(f'v_mov_b32 v5, s{sTAG+1}')
        a('s_mov_b64 exec, 1')
        if P.tagst: a('global_store_dwordx2 v12, v[4:5], s[62:63] sc1')
        else: a('global_atomic_cmpswap_x2 v12, v[4:7], s[62:63] sc1')
        a('s_mov_b64 exec, -1')
    a.label('L_notag')
    def edge_loads(srdn_, vb, so):
        for i in range(3): a(f'buffer_load_dwordx4 {R("v", vb+4*i, 4)}, v21, {srdn(srdn_)}, s{so+i} offen{P.pol_in}')
        a(f'buffer_load_dword v{vb+12}, v15, {srdn(srdn_)}, s{so+3} offen{P.pol_in}')
    edge_loads(SD, vDs, 8)
    a('v_and_b32 v10, 3, v0')
    a('v_bfe_u32 v16, v0, 2, 4')
    a('v_lshl_add_u32 v10, v16, 3, v10')
    a('v_lshl_add_u32 v10, v1, 2, v10')
    a('v_lshrrev_b32 v16, 1, v0'); a('v_and_b32 v16, 32, v16'); a('v_xor_b32 v16, v16, v2')
    a(f's_cmp_lt_u32 s{sWAVE}, 2')
    a('s_cselect_b64 vcc, -1, 0')
    a('v_cndmask_b32 v10, v16, v10, vcc')
    a('v_lshlrev_b32 v10, 1, v10')
    a('s_cselect_b64 s[54:55], s[54:55], s[58:59]')
    a(f's_cselect_b32 s34, {NLOG2E}, 1.0')
    a('global_load_ushort v10, v10, s[54:55]')
    for i in range(4): a(f'v_mov_b32 v{128+i}, {DUMMY}')
    a(f'v_add_u32 v132, {EX + 16384}, v21')
    init = [f'ds_write_b128 v132, v[128:131] offset:{4096*i}' for i in range(15, -1, -1)]
    init += [f'ds_write_b128 v21, v[128:131] offset:{EX + 4096*i}' for i in range(4)]
    assert P.ninit >= 4
    if P.pad: init = init[:4]
    init, init2 = init[:P.ninit], init[P.ninit:]
    C = []
    C += [f's_bfe_u32 s{sB}, s2, 0x20001', f's_lshl_b32 s{sB}, s{sB}, 5', 's_lshr_b32 s3, s2, 3', f's_add_u32 s{sB}, s{sB}, s3',
          f's_bitcmp{1 - P.par}_b32 s2, 0', f's_cselect_b32 s59, {BN1}, s38', f's_cselect_b32 s3, {NA}, 0', 's_cselect_b32 s35, 128, 0',
          f's_mul_i32 s{sNB0}, s{sB}, s59', f's_add_u32 s{sNB0}, s{sNB0}, s3', f's_add_u32 s{sB}, s{sB}, s35',
          f's_sub_u32 s{sNNODE}, {N}, s{sNB0}', f's_min_u32 s{sNNODE}, s{sNNODE}, s59',
          f's_lshl_b32 s{sCOL}, s{sB}, 3', f's_add_u32 s{sCOL}, s{sCOL}, {WS_TAB}']
    a(f's_movk_i32 s38, {BN0}')
    for x in C: a(x)
    C = []
    C += [f's_sub_u32 s{SX}, s4, {3*XP}', f's_subb_u32 s{SX+1}, s5, 0', f's_and_b32 s{SX+1}, s{SX+1}, 0xffff',
          f's_mov_b32 s{SX+2}, {(N*128 + 3*XP) * P.xfrac // 100}', f's_mov_b32 s{SX+3}, 0x20000']
    for d, lo, size in ((SE, 6, E * 32 * P.efrac // 100), (SO, 60, N * 128), (SW, 64, WS_SIZE)):
        C += [f's_mov_b32 s{d}, s{lo}', f's_and_b32 s{d+1}, s{lo+1}, 0xffff', f's_mov_b32 s{d+2}, {size}', f's_mov_b32 s{d+3}, 0x20000']
    C += [f's_movk_i32 s{sXO+j}, {(3-j)*XP}' for j in range(4)]
    C += [f's_movk_i32 s{s128}, 128', f's_mov_b32 s{sLN2}, {NLN2}', f's_mov_b32 s{sLN2+1}, {NLN2}', f's_mov_b64 s[{sBAD}:{sBAD+1}], 0']
    C += [f's_lshl_b32 s{sMAP}, s{sWAVE}, 12', f's_add_u32 s{sMAP}, s{sMAP}, {MAP}']
    C += [f's_lshl_b32 s{sQROW}, s{sWAVE}, 13', f's_add_u32 s{sQROW}, s{sQROW}, {EX}']
    C += [f's_mul_i32 s{sSLOT}, s{sWAVE}, {D*SLOT}', f's_add_u32 s{sSLOT}, s{sSLOT}, {RING}']
    C += ['v_and_b32 v16, 7, v2', 'v_lshrrev_b32 v18, 5, v2', 'v_xor_b32 v16, v16, v18', f'v_lshlrev_b32 v{vCX}, 4, v16']
    C += ['v_and_b32 v17, 1, v2', f'v_lshlrev_b32 v{vCE}, 4, v17']
    C += ['v_bfe_u32 v16, v2, 1, 2', f'v_mul_u32_u24 v16, {XP}, v16', 'v_bfe_u32 v20, v2, 3, 2', 'v_lshl_add_u32 v16, v20, 7, v16',
          'v_lshl_add_u32 v16, v17, 9, v16', 'v_xor_b32 v20, v17, v18', f'v_lshl_add_u32 v{vBX0}, v20, 4, v16']
    C += ['v_bfe_u32 v16, v2, 1, 4', 'v_lshl_add_u32 v16, v17, 4, v16', 'v_lshlrev_b32 v16, 5, v16', 'v_lshl_add_u32 v16, v18, 4, v16',
          f'v_add_u32 v{vBE0}, {4*XP}, v16']
    C += ['v_lshrrev_b32 v16, 3, v2', f'v_lshl_add_u32 v{vAX}, v16, 4, s{sQROW}']
    C += ['v_lshrrev_b32 v16, 1, v2', f'v_lshl_add_u32 v{vAE}, v16, 2, s{sQROW}']
    C += ['v_and_b32 v16, 31, v2', 'v_lshlrev_b32 v16, 2, v16', 'v_lshl_add_u32 v16, v18, 12, v16', f'v_add_u32 v25, s{sQROW}, v16']
    C += [f'v_add_u32 v24, s{sNB0}, v0', f'v_cmp_gt_u32 {mBN}, s59, v0', f'v_cmp_gt_u32 {mNN}, s{sNNODE}, v0',
          'v_and_b32 v134, 255, v24', 'v_lshlrev_b32 v134, 4, v134',
          f's_add_u32 s3, s{sNB0}, 240', 's_and_b32 s3, s3, 255', 's_lshl_b32 s3, s3, 4', 'v_mov_b32 v135, s3']
    C += ['v_lshlrev_b32 v19, 2, v2', 'v_lshlrev_b32 v14, 3, v2', 'v_lshlrev_b32 v30, 11, v0', 'v_and_b32 v31, 31, v0', 'v_lshlrev_b32 v31, 4, v31', 'v_lshl_add_u32 v31, v0, 12, v31']
    C += [f's_mov_b32 s55, {M0}', f's_movk_i32 s56, {M1 - M0}', 's_movk_i32 s57, 335', f'v_mov_b32 v23, {NA}',
          f's_mov_b32 s58, { {1: 0, 2: 0x80000}.get(P.classes, 0xc0000)}']
    vW = 144
    def wraw(i):
        if i in (0, 9): a('s_mov_b32 s35, 0')
        a(f'buffer_load_dwordx4 {R("v", vW+4*i, 4)}, v21, {srdn(SD if i < 9 else SS)}, s35 offen')
        a('s_add_u32 s35, s35, 4096')
    tagload = lambda: a('global_load_dwordx2 v[122:123], v12, s[62:63] sc1')
    k = 0
    while init or C:
        if init: a(init.pop(0))
        for x in C[:6]: a(x)
        C = C[6:]
        k += 1
        if k == P.srcpos:
            edge_loads(SS, vSr, 8)
            srd(a, SD, 52, 144 * 128 * 2); srd(a, SS, 56, 128 * 64 * 2)
            a('s_lshr_b32 s3, s2, 3'); a('v_min_u32 v3, 8, v0'); a('v_lshl_add_u32 v3, v3, 5, s3'); a('v_lshlrev_b32 v3, 7, v3')
            a(f'buffer_load_dword a{aJUNK}, v3, {srdn(SD)}, 0 offen')
            a(f'buffer_load_dword a{aJUNK}, v3, {srdn(SS)}, 0 offen')
    if epre:
        a(f's_mul_i32 s3, s2, {CH*32}'); a(f'v_mul_u32_u24 v126, {P.estr}, v0'); a('v_add_u32 v126, s3, v126')
        a(f's_add_u32 s3, s3, {CH*32-128}'); a('v_mov_b32 v125, s3')
    if P.pad: a('ds_write_b32 v25, v128')
    n0 = 2 + warm(0)
    a('s_waitcnt lgkmcnt(0)')
    a('s_barrier')
    def tagcheck():
        a(f'v_readfirstlane_b32 s{sTAG}, v122'); a(f'v_readfirstlane_b32 s{sTAG8}, v123')
        a(f's_cmp_eq_u32 s{sTAG}, 0')
    for b, (lo, hi) in enumerate(((0, 4), (4, 8), (8, 13)) if P.stag else ((0, 13),)):
        a(f's_waitcnt vmcnt({5 + n0 + ((3, 2, 0)[b] if P.stag else 0)})')
        if hi == 13: stamp(2); tagload()
        for i in range(lo, hi): a(f'v_mul_u32_u24 v{vB+i}, s55, v{vDs+i}')
        for i in range(lo, hi): a(f'v_sub_u32_e64 v{vRk+i}, v{vDs+i}, v23 clamp')
        for i in range(lo, hi): a(f'v_mad_u32_u24 v{vB+i}, v{vRk+i}, s56, v{vB+i}')
        for i in range(lo, hi): a(f'v_lshlrev_b32_sdwa v{vB+i}, 2, v{vB+i} {SDWA}BYTE_3')
        for i in range(lo, hi):
            if i == 12: a(f's_mov_b64 exec, {mLO}')
            a(f'ds_add_rtn_u32 v{vRk+i}, v{vB+i}, v13 offset:{HB}')
    a('s_mov_b64 exec, -1')
    for i in range(13): a(f'v_lshlrev_b32_sdwa v{vDs+i}, 20, v{vDs+i} {SDWA}BYTE_0')
    a(f's_mov_b32 s3, {STAGE // 8}')
    for i in range(P.w1): wraw(i)
    a('s_waitcnt lgkmcnt(0)')
    a('s_barrier')
    a(f'ds_read_b128 v[26:29], v9 offset:{HB}')
    for i in range(13): a(f'v_add_u32 v{vRk+i}, s3, v{vRk+i}')
    F = [f'v_mul_u32_u24 v{vRec+2*i}, s57, v{vSr+i}' for i in range(13)]
    F += [f'v_lshrrev_b32 v{vRec+2*i}, 4, v{vRec+2*i}' for i in range(13)]
    F += [f'v_and_or_b32 v{vRec+2*i}, v{vRec+2*i}, s58, v{vSr+i}' for i in range(13)]
    a(f's_waitcnt vmcnt({n0 + 1 + P.w1}) lgkmcnt(0)')
    a('v_add_u32 v5, v26, v27'); a('v_add_u32 v6, v5, v28'); a('v_add_u32 v7, v6, v29')
    a('v_mov_b32 v3, v7')
    wave_scan(a, 3, F[:12])
    a('v_sub_u32 v4, v3, v7'); a('v_add_u32 v7, v4, v6'); a('v_add_u32 v6, v4, v5'); a('v_add_u32 v5, v4, v26')
    a(f'ds_write_b128 v9, v[4:7] offset:{START}')
    for i in range(13): a(f'ds_read_b32 v{vB+i}, v{vB+i} offset:{START}')
    for i in range(P.w1, P.w2): wraw(i)
    for x in F[12:]: a(x)
    def gettag(name, **kw):
        poll(name, tagload, tagcheck, **kw)
        a(f's_and_b32 s{sTAG8}, s{sTAG8}, 0xff')
        a(f's_lshl_b32 s{sTAGH}, s{sTAG}, 4')
        a(f's_and_b32 s{sTAGH}, s{sTAGH}, 0xfffff000')
    def pubrow(name):
        a.raw("; wave 3 writes this chunk's table row: 256 x {start | cnt<<12 | tag8<<24, tag}")
        a(f's_sub_u32 s3, 3, s{sWAVE}'); a(f's_or_b32 s3, s3, s{sSLOW}'); a(f's_cbranch_scc1 {name}')
        if P.force == 2: a('s_cmp_eq_u32 s2, 7'); a(f's_cbranch_scc1 {name}')
        for i in range(4):
            a(f'v_lshl_or_b32 v{136+2*i}, v{26+i}, 12, v{4+i}')
            a(f'v_mov_b32 v{137+2*i}, s{sTAG}')
        for i in range(4): a(f'v_lshl_or_b32 v{136+2*i}, s{sTAG8}, 24, v{136+2*i}')
        a('s_lshl_b32 s3, s2, 11'); a(f's_add_u32 s3, s3, {WS_TAB}')
        a('v_lshlrev_b32 v3, 5, v2')
        a(f'buffer_store_dwordx4 v[136:139], v3, {srdn(SW)}, s3 offen sc1')
        a(f'buffer_store_dwordx4 v[140:143], v3, {srdn(SW)}, s3 offen offset:16 sc1')
        a.label(name)
    gettag('L_ptag', first_wait=f's_waitcnt vmcnt({P.w2})')
    if P.stamp == 3 and P.st1 == 0: stamp(1)
    pubrow('L_norow')
    a(f's_lshl_b32 s3, s{sTAGH}, 16')
    if P.force == 3: a('s_cmp_eq_u32 s2, 9'); a('s_cselect_b32 s85, 0x10000000, 0'); a('s_xor_b32 s3, s3, s85')
    a(f'v_add_u32 v22, s{sTAGH}, v15')
    a(f'v_add_u32 v20, s{sTAGH}, v0')
    a('s_waitcnt lgkmcnt(0)')
    for b, (lo, hi) in enumerate(((0, 4), (4, 8), (8, 13))):
        for i in range(lo, hi):
            a(f'v_or3_b32 v{vRec+2*i}, v{vRec+2*i}, v{vDs+i}, s3')
            a(f'v_add_u32 v{vRec+2*i+1}, {(i>>2)*1024 + (i&3)}, v{22 if i < 12 else 20}')
        for i in range(lo, hi):
            a(f'v_add_lshl_u32 v{vB+i}, v{vB+i}, v{vRk+i}, 3')
        for i in range(lo, hi):
            if i == 12: a(f's_mov_b64 exec, {mLO}')
            a(f'ds_write_b64 v{vB+i}, {R("v", vRec+2*i, 2)}')
    a('s_mov_b64 exec, -1')
    a('v_lshlrev_b32 v10, 16, v10')
    a('v_mul_f32 v10, s34, v10')
    a(f'ds_write_b32 v15, v10 offset:{B1T}')
    for i in range(P.w2, 9): wraw(i)
    a(f'v_add_u32 v3, {STAGE}, v21')
    a('v_lshl_add_u32 v20, v1, 7, v9')
    a(f'v_add_u32 v22, {STAGE + 24576}, v20')
    a('s_and_b32 s3, s2, 31'); a('s_lshl_b32 s35, s2, 8'); a('s_add_u32 s3, s3, s35'); a('s_lshl_b32 s3, s3, 7')
    tload = lambda: a(f'buffer_load_dwordx2 v[16:17], v30, {srdn(SW)}, s{sCOL} offen sc1')
    a('s_waitcnt lgkmcnt(0)')
    a('s_barrier')
    if P.stamp == 3 and P.st1 == 1: stamp(1)
    for i in range(6): a(f'ds_read_b128 {R("v", 32+4*i, 4)}, v3 offset:{4096*i}')
    a('ds_read_b128 v[56:59], v22')
    for i in range(7):
        a(f's_waitcnt lgkmcnt({6-i})')
        if i == 6: a('s_mov_b64 exec, 0xff')
        a(f'buffer_store_dwordx4 {R("v", 32+4*i, 4)}, v{21 if i < 6 else 20}, {srdn(SW)}, s3 offen{P.pol_st}')
        if i < 6: a('s_add_u32 s3, s3, 4096')
    a('s_mov_b64 exec, -1')
    a(f's_lshl_b32 s35, s{sWAVE}, 12'); a(f's_add_u32 m0, s35, {WST + 36864}')
    tload()
    def w2dma():
        for i in range(4): a(f'buffer_load_dwordx4 v9, {srdn(SS)}, s35 offen offset:{1024*i} lds')
    if P.w2p == 0: w2dma()
    a('s_barrier')
    stamp(3)
    a(f'ds_write_b32 v15, v11 offset:{TT}')
    a('v_and_b32 v3, 0x30, v0'); a('v_lshlrev_b32 v3, 2, v3'); a('v_xor_b32 v3, v3, v21')
    a(f'v_add_u32 v3, {WST}, v3')
    a(f's_mov_b32 s56, {NLOG2E}'); a('s_mov_b32 s57, s56'); a('s_mov_b32 s3, 0xffff0000')
    a(f's_waitcnt vmcnt({12 if P.w2p == 0 else 8})')
    for i in range(9):
        for j in range(4):
            a(f'v_lshlrev_b32 v{64+2*j}, 16, v{vW+4*i+j}'); a(f'v_and_b32 v{65+2*j}, s3, v{vW+4*i+j}')
        for j in range(4): a(f'v_pk_mul_f32 v[{64+2*j}:{65+2*j}], v[{64+2*j}:{65+2*j}], s[56:57]')
        for j in range(4): a(f'v_cvt_pk_bf16_f32 v{vW+4*i+j}, v{64+2*j}, v{65+2*j}')
        a(f'ds_write_b128 v3, {R("v", vW+4*i, 4)} offset:{4096*i}')
        if init2 and P.iw: a(init2.pop(0))
    a('v_lshrrev_b32 v64, 5, v2'); a('v_bfe_u32 v65, v2, 2, 2'); a('v_bfe_u32 v66, v2, 4, 1'); a('v_and_b32 v67, 3, v2')
    a('v_lshl_add_u32 v200, v64, 3, v65'); a('v_lshlrev_b32 v200, 8, v200'); a('v_lshl_add_u32 v200, v66, 5, v200'); a('v_lshl_add_u32 v200, v67, 3, v200')
    a('v_lshl_add_u32 v200, v65, 6, v200'); a(f'v_add_u32 v200, {WST}, v200')
    for c in range(1, 4): a(f'v_xor_b32 v{200+c}, {64*c}, v200')
    a('v_lshl_add_u32 v204, v64, 2, v65'); a('v_lshlrev_b32 v204, 7, v204'); a('v_lshl_add_u32 v204, v66, 4, v204')
    a('v_and_b32 v64, 1, v2'); a('v_lshl_add_u32 v204, v64, 6, v204'); a('v_bfe_u32 v64, v2, 1, 1'); a('v_lshl_add_u32 v204, v64, 3, v204')
    a(f'v_add_u32 v204, {WST + 36864}, v204')
    a('s_waitcnt lgkmcnt(0)')
    a('s_barrier')
    TR = {}
    vTA = 200
    for kk in range(9):
        TR[kk] = []
        for c in range(4):
            d = aW1A + 16*c + 4*kk if kk < 4 else (aW1B + 16*c + 4*(kk-4) if kk < 8 else aW1C + 4*c)
            for r in range(2): TR[kk].append(f'ds_read_b64_tr_b16 {R("a", d+2*r, 2)}, v{vTA+c} offset:{4096*kk + 1024*r}')
    TR[9] = [f'ds_read_b64_tr_b16 {R("a", aW2+(dt*8+u)*4+2*r, 2)}, v{vTA+4} offset:{2048*u + 1024*r + 32*dt}' for dt in range(2) for u in range(8) for r in range(2)]
    early = {0: range(9), 1: (0, 1), 2: (0, 1, 4, 5, 6, 7)}[P.late]
    for kk in early:
        for x in TR[kk]: a(x)
    lateq = [x for kk in (4, 5, 6, 7) if kk not in early for x in TR[kk]]
    later = [x for kk in (2, 3, 8, 9) if kk not in early for x in TR[kk]]
    for x in init2: a(x)
    assert P.late == 0 and XO % 128 == 0 and XO + 28672 <= WST + 36864
    a('v_lshrrev_b32 v29, 3, v2'); a('v_xor_b32 v29, v29, v2'); a('v_lshlrev_b32 v29, 4, v29')
    a(f's_mul_i32 s85, s{sWAVE}, 7168'); a(f's_lshl_b32 s3, s{sNB0}, 7'); a('s_add_u32 s3, s3, s85'); a('v_add_u32 v29, s3, v29')
    a('s_waitcnt lgkmcnt(0)')
    a('s_barrier')
    if P.w2p == 1: w2dma()
    if P.stamp == 3 and P.st1 == 2: stamp(1)
    a(f's_waitcnt vmcnt({4 if P.w2p < 2 else 0})')
    a.label('L_consume')
    a(f's_cmp_lg_u32 s{sSLOW}, 0'); a('s_cbranch_scc1 L_skipB')
    def tcheck(v, mask=None):
        def f():
            a(f'v_cmp_ne_u32 s[56:57], s{sTAG}, v{v+1}')
            a(f'v_cmp_ne_u32_sdwa vcc, v{v}, s{sTAG8} src0_sel:BYTE_3 src1_sel:DWORD')
            a('s_or_b64 vcc, vcc, s[56:57]')
            if mask: a(f's_and_b64 vcc, vcc, {mask}')
        return f
    poll('L_pt', tload, tcheck(16), first_wait='', only=P.only)
    stamp(4)
    a('v_bfe_u32 v17, v16, 12, 12')
    a('v_and_b32 v16, 0xfff, v16')
    a('v_mov_b32 v18, v17')
    a('v_add_u32 v16, v16, v31')
    a('v_add_lshl_u32 v22, v16, v17, 3')
    a('v_sub_u32_e64 v22, v22, 4 clamp')
    pload = lambda: a(f'buffer_load_dword v23, v22, {srdn(SW)}, 0 offen sc1')
    if P.probe: pload()
    if P.probe == 2:
        a('v_lshlrev_b32 v3, 3, v16'); a(f'buffer_load_dword a{aJUNK}, v3, {srdn(SW)}, 0 offen sc1')
    wave_scan(a, 18, ['v_cmp_lt_u32 s[56:57], 16, v17', 'v_cmp_lt_u32 s[58:59], 8, v17',
                      'v_cmp_lt_u32 s[60:61], 0, v17', 'v_cmp_lt_u32 vcc, 24, v17', f'v_add_u32 v20, s{sMAP}, v19'])
    a('v_sub_u32 v3, v18, v17')
    a('v_readlane_b32 s3, v18, 63')
    a('v_sub_u32 v16, v16, v3')
    a(f'v_lshl_add_u32 v18, v3, 2, s{sMAP}')
    a('v_lshlrev_b32 v16, 3, v16')
    a(f's_cmp_gt_u32 s3, {NSLOT*64}')
    a(f's_cselect_b32 s{sSLOW}, 1, s{sSLOW}')
    a(f's_cmp_lg_u32 s{sSLOW}, 0'); a('s_cbranch_scc1 L_skipB')
    a('v_lshl_add_u32 v3, s3, 2, v20')
    for m, j0 in (('s[56:57]', 16), ('s[58:59]', 8), ('s[60:61]', 0)):
        a(f's_mov_b64 exec, {m}')
        for j in range(j0 + 7, j0 - 1, -1): a(f'ds_write_b32 v18, v16 offset:{4*j}')
    a('s_mov_b64 exec, -1')
    a('ds_write_b32 v3, v128')
    a('s_cbranch_vccz L_nomap')
    a.label('L_map')
    for j in range(24, 28):
        a(f'v_cmpx_lt_u32 vcc, {j}, v17')
        a(f'ds_write_b32 v18, v16 offset:{4*j}')
    a('v_add_u32 v18, 16, v18')
    a('v_subrev_u32 v17, 4, v17')
    a('s_cbranch_execnz L_map')
    a('s_mov_b64 exec, -1')
    a.label('L_nomap')
    vR, vI, vK, vP, vA, vT, vCB = 32, 64, 80, 96, 144, 160, 176
    for i in range(NSLOT): a(f'ds_read_b32 v{vA+i}, v20 offset:{256*i}')
    def pcheck():
        a(f'v_xor_b32 v3, s{sTAGH}, v23')
        a('v_cmp_lt_u32 vcc, 0xfff, v3')
        a('s_and_b64 vcc, vcc, s[60:61]')
    a('s_movk_i32 s34, 4096')
    a('s_waitcnt lgkmcnt(0)')
    for i in range(NSLOT): a(f'v_add_u32 v{vA+i}, v{vA+i}, v14')
    if P.probe: a(f's_waitcnt vmcnt({P.probe - 1})')
    if P.probe: poll('L_pp', pload, pcheck, first_wait='', only=P.only)
    stamp(5)
    a(f's_cmp_lg_u32 s{sSLOW}, 0'); a('s_cbranch_scc1 L_skipB')
    rec = lambda i: a(f'buffer_load_dwordx2 {R("v", vR+2*i, 2)}, v{vA+i}, {srdn(SW)}, {"s34" if i >= 8 else "0"} offen offset:{512*(i%8)} sc1')
    for i in range(NSLOT): rec(i)
    def ownx():
        a.raw("; this bucket's own x rows -> LDS")
        a(f's_add_u32 m0, s85, {XO}'); a(f's_movk_i32 s35, {3*XP + 4096}')
        for i in range(7):
            if i == 4: a('s_add_u32 m0, m0, 4096')
            a(f'buffer_load_dwordx4 v29, {srdn(SX)}, s{sXO if i < 4 else 35} offen offset:{1024*(i%4)} lds')
        return 7
    n3 = 0
    nx = 0
    if P.xpos == 3: nx += ownx()
    nx += warm(3)
    n3 += nx
    for i in range(NSLOT): a(f'v_bfe_i32 v{vT+i}, v{vA+i}, 30, 1')
    for i in range(NSLOT): a(f'v_bfi_b32 v{vT+i}, v{vT+i}, v135, s{sTAGH}')
    stamp(6)
    retry = []
    for b, (lo, hi) in enumerate(((0, 6), (6, 11), (11, 15)) if P.bat == 0 else ((0, 4), (4, 8), (8, 11), (11, 15))):
        a(f's_movk_i32 s{sCNT}, {P.limit}')
        a(f's_waitcnt vmcnt({NSLOT-hi+n3})')
        a.label(f'L_chk{b}')
        for i in range(lo, hi): a(f'v_xor_b32 v{vR+2*i+1}, v{vT+i}, v{vR+2*i+1}')
        for i in range(lo, hi): a(f'v_xor_b32_sdwa v{vI+i}, v{vT+i}, v{vR+2*i} dst_sel:DWORD dst_unused:UNUSED_PAD src0_sel:WORD_0 src1_sel:WORD_1')
        for i in range(lo, hi): a(f'v_or3_b32 v3, v{vI+i}, v{vR+2*i+1}, {"v3" if i > lo else "0"}')
        a('v_cmp_lt_u32 vcc, 0xfff, v3')
        if lo == 11:
            for i in range(lo, hi): a(f'v_cmp_ne_u32 s[{58+2*(i-lo)}:{59+2*(i-lo)}], v135, v{vI+i}')
        a(f's_cbranch_vccnz L_retry{b}')
        retry.append((b, lo, hi))
        for i in range(lo, hi):
            if lo == 11: a(f's_mov_b64 exec, s[{58+2*(i-lo)}:{59+2*(i-lo)}]')
            a(f'ds_add_rtn_u32 v{vK+i}, v{vI+i}, v13 offset:{CNT}')
    a('s_mov_b64 exec, -1')
    if P.xpos == 4: nx += ownx()
    nx += warm(4)
    a.label('L_skipB')
    if P.w2p == 2: a(f's_lshl_b32 s35, s{sWAVE}, 12'); a(f's_add_u32 m0, s35, {WST + 36864}'); w2dma()
    EO = []
    for i in range(NSLOT):
        if i: EO.append(f'v_add_u32 v{vA+i}, {512*i}, v{vA+i}')
    EO += [f'v_lshrrev_b32 v{vA+i}, 15, v{vA+i}' for i in range(NSLOT)]
    EO += [f'v_mad_u32_u24 v{vR+2*i+1}, v{vA+i}, s3, v{vR+2*i+1}' for i in range(NSLOT)]
    EO += [f'v_lshlrev_b32 v{vR+2*i+1}, 5, v{vR+2*i+1}' for i in range(NSLOT)]
    a(f's_movk_i32 s3, {CH}')
    for x in EO[:24]: a(x)
    a(f's_mov_b64 exec, {mBN}')
    a('s_waitcnt lgkmcnt(0)')
    a('s_barrier')
    stamp(7)
    a(f'ds_read_b128 v[4:7], v134 offset:{CNT}')
    a('s_waitcnt lgkmcnt(0)')
    a('v_add_u32 v5, v4, v5'); a('v_add_u32 v6, v5, v6'); a('v_add_u32 v16, v6, v7')
    a('v_min_u32 v17, 63, v16')
    a('v_sub_u32 v17, 63, v17')
    a('v_lshlrev_b32 v17, 2, v17')
    a(f'ds_add_rtn_u32 v18, v17, v13 offset:{HIST}')
    a('v_sub_u32 v26, v16, v4'); a('v_sub_u32 v27, v16, v5'); a('v_sub_u32 v28, v16, v6')
    a('v_lshrrev_b32 v23, 1, v16')
    a('v_lshl_or_b32 v23, v23, 16, v24')
    a('v_or_b32 v23, 0xc00000, v23')
    a('s_mov_b64 exec, -1')
    for x in EO[24:40]: a(x)
    a('s_waitcnt lgkmcnt(0)')
    a('s_barrier')
    stamp(20)
    a(f'ds_read_b32 v20, v19 offset:{HIST}')
    a(f'v_mov_b32 v3, {(32768 - 4) << 16}')
    a(f'ds_write_b32 v135, v3 offset:{CNT}')
    for x in EO[40:]: a(x)
    a('s_waitcnt lgkmcnt(1)')
    a('v_mov_b32 v3, v20')
    wave_scan(a, 3)
    a('v_sub_u32 v20, v3, v20')
    a('ds_bpermute_b32 v20, v17, v20')
    a(f's_mov_b64 exec, {mNN}')
    a('s_waitcnt lgkmcnt(0)')
    a('v_add_lshl_u32 v20, v20, v18, 2')
    a(f'ds_read_b32 v22, v20 offset:{TT}')
    a('s_waitcnt lgkmcnt(0)')
    a('v_and_b32 v3, 0x10000000, v22')
    a('v_lshlrev_b32 v29, 16, v22')
    a('v_cmp_ne_u32 vcc, 0, v3')
    a('v_bfe_u32 v3, v22, 6, 1')
    a('v_add_u32 v16, v16, v3')
    a('v_cndmask_b32 v7, v6, v12, vcc'); a('v_cndmask_b32 v6, v5, v28, vcc')
    a('v_cndmask_b32 v5, v4, v27, vcc'); a('v_cndmask_b32 v4, v12, v26, vcc')
    for i in range(4): a(f'v_mad_u32_u24 v{4+i}, v{4+i}, v29, v22')
    a('v_lshrrev_b32 v16, v3, v16')
    a('v_lshrrev_b32 v22, 16, v22')
    a('v_lshl_or_b32 v24, v3, 22, v24')
    a('v_cmp_lt_u32 s[56:57], 30, v16')
    a('v_lshl_or_b32 v24, v16, 16, v24')
    a('v_cmp_ne_u32 vcc, 0, v3')
    a(f'ds_write_b128 v134, v[4:7] offset:{CNT}')
    a(f'ds_write_b32 v22, v24 offset:{EX - 128}')
    a('s_mov_b64 exec, vcc')
    a(f'ds_write_b32 v22, v23 offset:{EX - 64}')
    a(f's_or_b32 s56, s56, s{sSLOW}')
    a('s_mov_b64 exec, s[56:57]')
    a(f'ds_write_b32 v12, v13 offset:{FLAG}')
    a('s_mov_b64 exec, -1')
    a('s_waitcnt lgkmcnt(0)')
    a('s_barrier')

    ell_read = [f'ds_read_b128 {R("v", vEX, 4)}, v{vAX}', f'ds_read_b32 v{vEE}, v{vAE} offset:{EE-EX}']
    jump = [f's_sub_u32 s{sJ}, s{sJ}, 1', f's_cselect_b64 s[{sINC}:{sINC+1}], s[{sJUMP}:{sJUMP+1}], s[{sSTEP}:{sSTEP+1}]']
    ell_adv = [f'v_lshl_add_u64 v[{vAX}:{vAE}], v[{vAX}:{vAE}], 0, s[{sINC}:{sINC+1}]']
    xaddr = [f'v_mad_u32_u16 v{vEX+j}, v{vEX+j}, s{s128}, v{vCX}' for j in range(4)]
    eaddr = f'v_add_u32 v{vEE}, v{vEE}, v{vCE}'
    m0x = f's_mov_b32 m0, s{sSLOT}'; m0e = f's_add_u32 m0, s{sSLOT}, {4*XP}'
    dmax = [f'buffer_load_dwordx4 v{vEX+j}, {srdn(SX)}, s{sXO+j} offen offset:{j*XP}{P.pol_x} lds' for j in range(4)]
    dmae = f'buffer_load_dwordx4 v{vEE}, {srdn(SE)}, 0 offen{P.pol_e} lds'
    adv = [f's_sub_u32 s{sSLOT}, s{sSUM}, s{sSLOT}']
    baddr = [f'v_add_u32 v{vBX}, s{sSLOT}, v{vBX0}', f'v_add_u32 v{vBE}, s{sSLOT}, v{vBE0}']
    bread = [f'ds_read_b128 {R("a", aBX+4*k, 4)}, v{vBX} offset:{32*k}' for k in range(4)] + [f'ds_read_b128 {R("a", aBE, 4)}, v{vBE}']
    breadk = bread[4:] + bread[:4] if P.efirst else bread
    PFa = [m0x] + xaddr + [eaddr] + dmax + [m0e] + [adv[0]] + [dmae] + adv[1:]
    PFb = ell_read + jump + ell_adv
    PF = PFa + PFb + baddr

    stamp(21)
    vG = 112
    a(f'ds_read_b32 v16, v12 offset:{FLAG}')
    for i in range(NSLOT - 1): a(f'ds_read_b32 v{vP+i}, v{vI+i} offset:{CNT}')
    a(f's_waitcnt lgkmcnt({NSLOT - 3})')
    a(f'ds_read_b32 v{vP+NSLOT-1}, v{vI+NSLOT-1} offset:{CNT}')
    a('ds_read_b32 v17, v25')
    a('v_readfirstlane_b32 s3, v16')
    alt = lambda L: [x.replace(R('v', vEX, 4), R('v', vG, 4)).replace(f'v{vEX}', f'v{vG}').replace(f'v{vEX+1}', f'v{vG+1}').replace(f'v{vEX+2}', f'v{vG+2}')
                      .replace(f'v{vEX+3}', f'v{vG+3}').replace(f'v{vEE}', f'v{vG+4}') for x in L]
    a('s_cmp_lg_u32 s3, 0'); a('s_cbranch_scc1 L_slow0')
    for lo, hi in ((0, 4), (4, 8), (8, 11), (11, 15)):
        a(f's_waitcnt lgkmcnt({NSLOT - hi + 1 + lo})')
        for i in range(lo, hi): a(f'v_mul_u32_u24_sdwa v{vK+i}, v{vK+i}, v{vP+i} {SDWA}WORD_0')
        for i in range(lo, hi): a(f'v_add_u32_sdwa v{vP+i}, v{vK+i}, v{vP+i} {SDWA}WORD_1')
        for i in range(lo, hi):
            if i >= 11: a(f's_mov_b64 exec, s[{58+2*(i-11)}:{59+2*(i-11)}]')
            a(f'ds_write2st64_b32 v{vP+i}, v{vR+2*i}, v{vR+2*i+1} offset0:{EX//256} offset1:{EE//256}')
    a('s_mov_b64 exec, -1')
    a('s_waitcnt lgkmcnt(10)')
    a('v_bfe_u32 v17, v17, 16, 6')
    if P.pad: a('v_mov_b32 v18, v17')
    F = [f'v_add_u32 v{vAX}, 128, v{vAX}', f'v_add_u32 v{vAE}, 128, v{vAE}',
         f'v_lshrrev_b32 v{vE+1}, 3, v{vBE0}', f'v_and_b32 v{vE+2}, 16, v{vBE0}', f'v_and_b32 v{vE+1}, -4, v{vE+1}',
         f'v_lshlrev_b32 v{vE}, 4, v{vE+2}', f's_sub_u32 s3, s{sQROW}, {4*XP//8}', f'v_add_u32 v{vE+1}, s3, v{vE+1}']
    for sh in ('row_shr:1', 'row_shr:2', 'row_shr:4', 'row_shr:8', 'row_bcast:15'):
        for x in F[:2]: a(x)
        F = F[2:]
        a(f'v_max_u32_dpp v17, v17, v17 {sh} ' + ('row_mask:0xf bank_mask:0xf bound_ctrl:0' if 'shr' in sh else 'row_mask:0xa bank_mask:0xf'))
    a(f'ds_read2st64_b32 v[{vE+4}:{vE+5}], v{vE+1} offset0:0 offset1:16')
    a(f'v_readlane_b32 s{sL}, v17, 31')
    a(f'v_readlane_b32 s{sLNEXT}, v17, 63')
    stamp(22)
    a(f's_max_u32 s{sL}, s{sL}, 1')
    a(f's_max_u32 s{sLNEXT}, s{sLNEXT}, 1')
    if P.pad:
        a.raw('; cells past the end of a chain (and two rows of look-ahead past the second group) load nothing')
        a(f's_add_u32 s3, s{sLNEXT}, 2'); a(f'v_mov_b32 v20, s{sL}'); a('s_mov_b32 exec_lo, 0')
        a('v_mov_b32 v20, s3'); a('s_mov_b64 exec, -1')
        a('v_lshl_add_u32 v22, v20, 7, v25')
        a('v_sub_u32 v20, v20, v18')
        a.label('L_pad')
        a('v_subrev_u32 v22, 512, v22')
        for j in range(4):
            a(f'v_cmpx_lt_u32 vcc, {j}, v20')
            a(f'ds_write_b32 v22, v128 offset:{512 - 128*j}')
            a(f'ds_write_b32 v22, v128 offset:{512 - 128*j + EE - EX}')
        a('v_subrev_u32 v20, 4, v20')
        a('s_cbranch_execnz L_pad')
        a('s_mov_b64 exec, -1')
    if P.thr and P.tk:
        a(f's_add_u32 s55, s{sL}, s{sLNEXT}'); a(f's_mul_i32 s55, s55, {-P.tk}'); a(f's_add_i32 s55, s55, {P.thr + 26*P.tk}')
        if P.tp: a(f's_and_b32 s3, s2, 1'); a(f's_mul_i32 s3, s3, {P.tp}'); a('s_sub_i32 s55, s55, s3')
        a('s_max_i32 s55, s55, 0')
    elif P.thr: a(f's_movk_i32 s55, {P.thr}')
    if P.thr: a(f's_min_u32 s55, s55, s{sL}')
    if P.stamp: a(f's_add_u32 s{sCNT}, s{sL}, s{sLNEXT}')
    a(f's_lshl_b32 s3, s{sL}, 7')
    a(f's_sub_u32 s{sJUMP}, {4096 + 128}, s3'); a(f's_mov_b32 s{sJUMP+1}, s{sJUMP}')
    a(f's_movk_i32 s{sSTEP}, 128'); a(f's_movk_i32 s{sSTEP+1}, 128')
    a(f's_lshl_b32 s{sSUM}, s{sSLOT}, 1'); a(f's_add_u32 s{sSUM}, s{sSUM}, {SLOT}')
    a(f's_sub_u32 s{sJ}, s{sL}, 1')
    if P.stamp: a(f's_mov_b32 s{88+10}, 0')
    for x in jump: a(x)
    a('s_waitcnt vmcnt(0) lgkmcnt(0)')
    a('s_barrier')
    stamp(8)
    for x in alt(ell_read) + ell_adv + PFb: a(x)
    a('s_waitcnt lgkmcnt(2)')
    for x in alt(PFa): a(x)
    a('s_waitcnt lgkmcnt(0)')
    for x in PF: a(x)

    for i in range(16): a(f'ds_read_b128 {R("v", vQ+4*i, 4)}, v{vE} offset:{B1T + 16*i}')
    a(f'v_mov_b32 v{vINFO}, v{vE+4}')
    a(f'v_accvgpr_write_b32 a{aINFO}, v{vE+5}')
    for g, dst in ((0, aBX), (1, aQB)):
        t = vE + 8 + 4*g
        a(f'v_and_b32 v{t}, 0xffff, v{vE+4+g}'); a(f'v_subrev_u32 v{t}, s{sNB0}, v{t}'); a(f'v_min_u32 v{t}, 223, v{t}')
        a(f'v_and_b32 v{t+1}, 7, v{t}'); a(f'v_lshl_add_u32 v{t}, v{t}, 3, v{t+1}'); a(f'v_lshlrev_b32 v{t}, 4, v{t}')
        a(f'v_xor_b32 v{t}, v{t}, v{vE+2}'); a(f'v_add_u32 v{t}, {XO}, v{t}')
        for k in range(1, 4): a(f'v_xor_b32 v{t+k}, {32*k}, v{t}')
        for k in range(4): a(f'ds_read_b128 {R("a", dst+4*k, 4)}, v{t+k}')
    a('s_waitcnt lgkmcnt(4)')
    pf = list(later)
    qm = lambda c, k, b: mfma(R('v', vQ+16*c, 16), R('a', aW1B + (c*4+k)*4, 4), R('a', b+4*k, 4), R('v', vQ+16*c, 16))
    for c in range(4):
        for k in range(4):
            a(qm(c, k, aBX))
            for x in pf[:4]: a(x)
            pf = pf[4:]
    assert not pf
    a(f's_waitcnt vmcnt({VW})')
    for x in bread: a(x)
    stamp(9)
    a('s_waitcnt lgkmcnt(0)')
    pf = list(PF)
    for k in range(5):
        a(m1(0, k, vN, vQ))
        n = 3 if k < 4 else 99
        for x in pf[:n]: a(x)
        pf = pf[n:]
    a('.p2align 3')
    a.label('L_first')
    a(f'v_bfe_u32 v{vDEG}, v{vINFO}, 16, 6')
    a(f's_mov_b32 s{sT}, 1')
    for c in range(4):
        cn = (c + 1) & 3
        if c == 3: a('s_waitcnt lgkmcnt(0)')
        for k in range(5):
            a(m1(cn, k, vN + 16*cn if c < 3 else vY, vQ + 16*cn))
            if c == 2:
                if k == 0:
                    a(f's_waitcnt vmcnt({VW+4})'); a(f's_cmp_eq_u32 s{sLNEXT}, 0'); a('s_cbranch_scc1 L_w2')
                    a(f's_waitcnt vmcnt({P.fs})'); a.label('L_w2')
                a(breadk[k])
            for i in range(3*k, 3*k + (3 if k < 4 else 4)): a(f'v_exp_f32 v{vD+16*c+i}, v{vN+16*c+i}')
        align8(a)
        for p in range(8):
            d = R('v', vD + 16*c + 2*p, 2)
            a(f'v_pk_add_f32 {d}, {d}, 1.0 op_sel_hi:[1,0]')
    a(f's_cmp_ge_u32 s{sT}, s{sL}'); a('s_cbranch_scc1 L_flush')
    oth = f's_sub_u32 s{sOTH}, s{sSUM}, s{sSLOT}'
    bnext = f'v_add_u32 v{vBE}, s{sOTH}, v{vBE0}'
    m0top = lambda lv: m0e if lv == 1 else m0x
    def rows(name, lv, vm, send):
        a('.p2align 3')
        a.label(name)
        for c in range(4):
            cn = (c + 1) & 3
            y = vY + 16 * (c & 1); yn = vY + 16 * (cn & 1)
            S = [[] for _ in range(5)]
            V = [[] for _ in range(5)]
            cmpx = f'v_cmpx_lt_u32 vcc, s{sT}, v{vDEG}'
            if c == 0:
                S[1] = ['s_mov_b64 exec, -1']; S[2] = [jump[0]]; S[3] = [jump[1]]
                if lv == 0:
                    V[1] = xaddr[:2]; V[2] = xaddr[2:]; V[3] = [eaddr]
                    V[4] = dmax + [m0e, ell_read[0], dmae, ell_read[1]] + ell_adv + [cmpx]
                if lv == 1:
                    V[1] = [eaddr] + xaddr[:2]; V[2] = xaddr[2:]; S[3] += [dmae]; S[4] = [m0x, ell_read[1]]
                    V[4] = dmax + ell_read[:1] + ell_adv + [cmpx]
            if c == 1:
                S[0] = [adv[0]]
                S[3] = [f's_add_u32 s{sT}, s{sT}, 1']
                V[4] = [baddr[0]]
            if c == 2:
                for k in range(5): S[k] = [breadk[k]]
                S[0].insert(0, f's_waitcnt vmcnt({vm})')
                S[4].insert(0, 's_waitcnt lgkmcnt(3)')
            if c == 3:
                S[0] = ['s_waitcnt lgkmcnt(0)']
                if P.stamp == 2: S[0] = ['s_memrealtime s[86:87]', 's_waitcnt lgkmcnt(0)', f's_mov_b32 m0, s{sT}', 's_nop 0', f'v_writelane_b32 v{vMAX}, s86, m0']
                S[1] = [oth]
                S[2] = [m0top(lv)]
                S[3] = [f's_cmp_lt_u32 s{sT}, s{send}']
                V[4] = [bnext]
            for k in range(5):
                if (c, k) != (0, 0): a(m1(cn, k, yn, vQ + 16*cn))
                for x in S[k]: a(x)
                for i in range(3*k, 3*k + (3 if k < 4 else 4)): a(f'v_exp_f32 v{vE+i}, v{y+i}')
                for x in V[k]: a(x)
            align8(a)
            for p in range(8):
                yy, nn, dd, ee = R('v', y+2*p, 2), R('v', vN+16*c+2*p, 2), R('v', vD+16*c+2*p, 2), R('v', vE+2*p, 2)
                a(f'v_pk_fma_f32 {yy}, {yy}, {dd}, {nn}')
                a(f'v_pk_fma_f32 {dd}, {dd}, {ee}, {dd}')
                a(f'v_pk_fma_f32 {nn}, {nn}, {ee}, {yy}')
        a(m1(1, 0, vY + 16, vQ + 16))
        a(f's_cbranch_scc1 {name}')
    a(oth); a(m0top(P.lv)); a(bnext)
    if P.thr: a(f's_cmp_ge_u32 s{sT}, s55')
    a(m1(1, 0, vY + 16, vQ + 16))
    if P.thr:
        a.raw('; the first rows run with a shorter look-ahead')
        a('s_cbranch_scc1 L_row')
        a(m0top(P.lvs))
        rows('L_srow', P.lvs, P.svm, 55)
        a(m0top(P.lv))
        a(f's_cmp_ge_u32 s{sT}, s{sL}'); a('s_cbranch_scc1 L_flush')
    rows('L_row', P.lv, VW, sL)
    a.label('L_flush')
    if P.stamp:
        a(f's_cmp_lg_u32 s{88+10}, 0'); a('s_cbranch_scc1 L_st10'); stamp(10); a.label('L_st10')
        stamp(11)
    a('s_mov_b64 exec, -1')
    if P.stamp == 2:
        a(f'v_writelane_b32 v{vMAX}, s{sL}, 0')
        a(f'v_mbcnt_lo_u32_b32 v{vE}, -1, 0'); a(f'v_mbcnt_hi_u32_b32 v{vE}, -1, v{vE}'); a(f'v_lshlrev_b32 v{vE}, 2, v{vE}')
        a('s_lshl_b32 s3, s2, 2'); a(f's_add_u32 s3, s3, s{sWAVE}'); a('s_lshl_b32 s3, s3, 8'); a(f's_add_u32 s3, s3, {WS_STAMP + 65536}')
        a(f's_cmp_eq_u32 s{sLNEXT}, 0'); a('s_cselect_b32 s56, 128, 0'); a('s_add_u32 s3, s3, s56')
        a('s_mov_b32 exec_hi, 0')
        a(f'buffer_store_dword v{vMAX}, v{vE}, {srdn(SW)}, s3 offen')
        a('s_mov_b64 exec, -1')
    a(f'v_and_b32 v{vE+8}, 16, v{vBE0}')
    a(f's_cmp_eq_u32 s{sLNEXT}, 0')
    a(f'v_lshlrev_b32 v{vMAX}, 4, v{vE+8}')
    a('s_cbranch_scc1 L_last')
    def g3(c, i):
        u = 2*c + (i >> 1); dt = i & 1
        acc = R('v', vY + 16*dt, 16)
        return mfma(acc, R('a', aW2 + (dt*8+u)*4, 4), R('v', vE + 8*(c & 1) + 4*(i >> 1), 4), acc if u else '0')
    b1r = [f'ds_read_b128 {R("v", vQ+4*i, 4)}, v{vMAX} offset:{B1T + 16*i}' for i in range(16)]
    b2r = [f'ds_read_b128 {R("v", vD+4*i, 4)}, v{vMAX} offset:{B2T + 16*i}' for i in range(8)]
    rcp = lambda c: [f'v_rcp_f32 v{vD+16*c+i}, v{vD+16*c+i}' for i in range(16)]
    hcv = lambda c: [f'v_cvt_pk_bf16_f32 v{vE+8*(c&1)+p}, v{vN+16*c+2*p}, v{vN+16*c+2*p+1}' for p in range(8)]
    mul = [f'v_mul_f32 v{vD+i}, v{vD+i}, v{vDEG}' for i in range(32)]
    dpp = [f'v_add_f32_dpp v{vD+i}, v{vD+i}, v{vD+i} quad_perm:[1,0,3,2] row_mask:0xf bank_mask:0xf' for i in range(32)]
    cvt = [f'v_cvt_pk_bf16_f32 v{vE+p}, v{vD+2*p}, v{vD+2*p+1}' for p in range(16)]
    sto = [f'buffer_store_dwordx4 {R("v", vE+4*i, 4)}, v{vINFO}, {srdn(SO)}, 0 offen offset:{16*i}{P.pol_out}' for i in range(4)]
    def window(M, G):
        assert len(M) == len(G)
        for m, g in zip(M, G):
            if m: a(m)
            for x in g: a(x)
    def flush(more):
        a('.p2align 3')
        if more:
            for x in b1r[:4] + baddr: a(x)
        a(f'v_bfe_u32 v{vE+9}, v{vINFO}, 22, 2')
        a(f'v_lshlrev_b32 v{vE+8}, 2, v{vE+8}')
        a(f'v_cmp_ne_u32 s[58:59], 0, v{vE+9}')
        a(f'v_cmp_ne_u32 s[60:61], 3, v{vE+9}')
        a(f'v_cmp_ne_u32 s[62:63], 0, v{vDEG}')
        a(f'v_mad_u32_u16 v{vINFO}, v{vINFO}, s{s128}, v{vE+8}')
        a(f'v_cvt_f32_u32 v{vDEG}, v{vDEG}')
        a(f's_mov_b32 s3, {f32(2.0**120)}')
        align8(a)
        for i in range(16):
            acc = R('v', vE + 2*(i & 1), 2)
            if i < 2: a(f'v_pk_mul_f32 {acc}, {R("v", vD+4*i, 2)}, {R("v", vD+4*i+2, 2)}')
            else: a(f'v_pk_fma_f32 {acc}, {R("v", vD+4*i, 2)}, {R("v", vD+4*i+2, 2)}, {acc}')
        a(f'v_pk_add_f32 {R("v", vE, 2)}, {R("v", vE, 2)}, {R("v", vE+2, 2)}')
        chk = [f'v_add_f32 v{vE}, v{vE}, v{vE+1}', f'v_cmp_nge_f32 s[56:57], s3, v{vE}']
        for c in range(4):
            r = rcp(c)
            if c == 0 and more:
                a('s_waitcnt lgkmcnt(0)')
                rd = bread + b1r[4:11]
                window([qm(0, k, aQB) for k in range(4)], [rd[3*k:3*k+3] + r[4*k:4*k+4] + chk[k:k+1] for k in range(4)])
            elif c == 0:
                for x in r[:4] + chk[:1] + r[4:8] + chk[1:] + r[8:]: a(x)
            elif more:
                h = hcv(c - 1)
                M = [qm(c, 0, aQB), qm(c, 1, aQB), g3(c-1, 0), g3(c-1, 1), qm(c, 2, aQB), g3(c-1, 2), qm(c, 3, aQB), g3(c-1, 3)]
                Vv = [h[:4], h[4:], r[:2], r[2:4], r[4:6], r[6:9], r[9:12], r[12:]]
                if c == 1:
                    a('s_waitcnt lgkmcnt(3)')
                    Pre = [[m0e, b1r[11]], [dmae], [m0x], dmax[:2], dmax[2:], [jump[0]] + ell_read, [jump[1]], ['s_waitcnt lgkmcnt(2)']]
                    Post = [[eaddr], xaddr[:2], xaddr[2:], [], [], [], adv, ell_adv + baddr]
                if c == 2:
                    Pre = [b1r[12:14], b1r[14:], b2r[:2], b2r[2:4], b2r[4:6], b2r[6:7], b2r[7:], ['s_waitcnt lgkmcnt(8)']]
                    Post = [[]] * 8
                if c == 3:
                    Pre = [[], ['s_waitcnt lgkmcnt(0)'], [], [], [], [], [], []]
                    Post = [[], [], mul[:1], mul[1:2], [], [], [], mul[2:3]]
                window(M, [Pre[i] + Vv[i] + Post[i] for i in range(8)])
            else:
                for x in hcv(c - 1): a(x)
                Pre = [b2r[2*q:2*q+2] if c == 2 else [] for q in range(4)]
                Post = [[], [], [], []]
                if c == 3: Pre[1] = ['s_waitcnt lgkmcnt(0)']; Post[3] = mul[:3]
                window([g3(c-1, q) for q in range(4)], [Pre[q] + r[4*q:4*q+4] + Post[q] for q in range(4)])
            align8(a)
            for p in range(8):
                nn, dd = R('v', vN+16*c+2*p, 2), R('v', vD+16*c+2*p, 2)
                a(f'v_pk_mul_f32 {nn}, {nn}, {dd}')
        for x in hcv(3): a(x)
        window([g3(3, q) for q in range(4)],
               [['s_and_b64 s[56:57], s[56:57], s[62:63]'] + mul[3:9], [f's_or_b64 s[{sBAD}:{sBAD+1}], s[{sBAD}:{sBAD+1}], s[56:57]'] + mul[9:15],
                ['s_movk_i32 s3, 0x207'] + mul[15:21], mul[21:] + ['s_mov_b64 exec, s[62:63]']])
        align8(a)
        for p in range(16):
            yy, dd = R('v', vY+2*p, 2), R('v', vD+2*p, 2)
            a(f'v_pk_fma_f32 {dd}, {yy}, s[{sLN2}:{sLN2+1}], {dd}')
        a(f'v_cmp_class_f32_e64 vcc, v{vD}, s3')
        bad = f's_or_b64 s[{sBAD}:{sBAD+1}], s[{sBAD}:{sBAD+1}], vcc'
        if more:
            window([m1(0, k, vN, vQ) for k in range(5)],
                   [['s_mov_b64 exec, s[58:59]', bad] + dpp[:6], [f's_mov_b32 s{sL}, s{sLNEXT}', f's_mov_b32 s{sLNEXT}, 0'] + dpp[6:12],
                    dpp[12:18], dpp[18:24], dpp[24:]])
        else:
            for x in ['s_mov_b64 exec, s[58:59]', bad] + dpp: a(x)
        a('s_mov_b64 exec, s[60:61]'); a('s_mov_b32 s55, 0')
        for x in cvt[:8] + sto[:2] + cvt[8:] + sto[2:]: a(x)
        a('s_mov_b64 exec, -1')
    flush(True)
    a(f'v_accvgpr_read_b32 v{vINFO}, a{aINFO}')
    a('s_branch L_first')
    a.label('L_last')
    flush(False)
    if P.stamp:
        a('s_waitcnt vmcnt(0)'); stamp(12); stamp(13, True)
        for i in range(14): a(f'v_writelane_b32 v1, s{88+i}, {i}')
        a(f'v_writelane_b32 v1, s{sCNT}, 14')
        a('s_getreg_b32 s3, hwreg(HW_REG_XCC_ID, 0, 4)'); a('v_writelane_b32 v1, s3, 15')
        a('v_mbcnt_lo_u32_b32 v2, -1, 0'); a('v_mbcnt_hi_u32_b32 v2, -1, v2'); a('v_lshlrev_b32 v2, 2, v2')
        a('s_lshl_b32 s3, s2, 2'); a(f's_add_u32 s3, s3, s{sWAVE}'); a('s_lshl_b32 s3, s3, 6'); a(f's_add_u32 s3, s3, {WS_STAMP}')
        a('s_mov_b64 exec, 0xffff')
        a(f'buffer_store_dword v1, v2, {srdn(SW)}, s3 offen')
        a('s_mov_b64 exec, -1')
    a(f's_cmp_eq_u64 s[{sBAD}:{sBAD+1}], 0')
    a('v_mov_b32 v1, 0'); a('v_mov_b32 v2, 1')
    a('s_cbranch_scc1 L_nobad')
    a(f'ds_write_b32 v1, v2 offset:{FLAG}')
    a.label('L_nobad')
    a('s_waitcnt lgkmcnt(0)')
    a('s_barrier')
    a(f'ds_read_b32 v2, v1 offset:{FLAG}')
    a('s_waitcnt lgkmcnt(0)')
    a('v_readfirstlane_b32 s3, v2')
    a('s_cmp_lg_u32 s3, 0'); a('s_cbranch_scc1 L_slow')
    if P.diag:
        if P.diagx:
            a('s_getreg_b32 s3, hwreg(HW_REG_XCC_ID, 0, 4)'); a('s_xor_b32 s3, s3, s2'); a(f's_and_b32 s3, s3, {P.diagx}'); a('s_cbranch_scc0 L_end')
        a.label('L_diag')
        a('s_memrealtime s[86:87]'); a('s_waitcnt lgkmcnt(0)')
        a(f's_sub_u32 s86, s86, s{sTAG}'); a(f's_cmp_lt_u32 s86, {P.diag}'); a('s_cbranch_scc1 L_diag')
    a.label('L_end')
    a('s_endpgm')

    for b, lo, hi in retry:
        a.label(f'L_retry{b}')
        if P.stamp == 4:
            a('s_add_u32 s89, s89, 1'); a('s_bcnt1_i32_b64 s3, vcc'); a('s_cmp_eq_u32 s3, 1'); a('s_addc_u32 s90, s90, 0')
        for i in range(lo, hi): rec(i)
        a('s_waitcnt vmcnt(0)')
        a(f's_sub_u32 s{sCNT}, s{sCNT}, 1')
        a(f's_cbranch_scc0 L_chk{b}')
        a(f's_mov_b32 s{sSLOW}, 1')
        a('s_branch L_skipB')
    a.label('L_slow0')
    a('s_waitcnt vmcnt(0)')
    a('s_barrier')
    for x in lateq + later: a(x)
    a.label('L_slow')
    a('s_mov_b64 exec, -1')
    a('s_waitcnt vmcnt(0) lgkmcnt(0)')
    a('s_load_dwordx4 s[8:11], s[0:1], 16')
    a('s_barrier')
    vL, vS, vH, vT0, vT1, vOA, vD4 = 240, 241, 242, 244, 245, 246, 252
    a(f'v_mbcnt_lo_u32_b32 v{vL}, -1, 0'); a(f'v_mbcnt_hi_u32_b32 v{vL}, -1, v{vL}')
    a(f'v_and_b32 v{vS}, 31, v{vL}')
    a(f'v_lshrrev_b32 v{vH}, 5, v{vL}')
    a(f's_lshl_b32 s3, s{sWAVE}, 10')
    a(f'v_lshl_add_u32 v4, v{vL}, 4, s3')
    for i in range(4): a(f'v_mov_b32 v{i}, 0')
    for i in range(13): a(f'ds_write_b128 v4, v[0:3] offset:{OACC + 4096*i}')
    a('s_waitcnt lgkmcnt(0)')
    a('s_barrier')
    srd(a, SD, 10, E * 4); srd(a, SS, 8, E * 4)
    sE0, sJj = 56, 57
    a(f's_lshl_b32 s{sE0}, s{sWAVE}, 9')
    a(f'v_lshlrev_b32 v243, 4, v{vS}')
    a.label('L_s_blk')
    a(f'buffer_load_dwordx4 {R("v", vD4, 4)}, v243, {srdn(SD)}, s{sE0} offen')
    a(f's_mov_b32 s{sJj}, 0')
    a('s_waitcnt vmcnt(0)')
    a.label('L_s_sub')
    a(f'v_subrev_u32 v248, s{sNB0}, v{vD4}')
    a(f'v_cmp_gt_u32 s[60:61], s{sNNODE}, v248')
    a('s_cmp_eq_u64 s[60:61], 0'); a('s_cbranch_scc1 L_s_next')
    a(f's_add_u32 s3, s{sE0}, s{sJj}')
    a(f'buffer_load_dword v{vT0}, v243, {srdn(SS)}, s3 offen')
    a(f'v_lshlrev_b32 v247, 8, v{vH}')
    for i in range(16): a(f'ds_read_b128 {R("v", vQ+4*i, 4)}, v247 offset:{B1T + 16*i}')
    a(f'v_lshlrev_b32 v247, 4, v{vH}')
    a(f'v_add_lshl_u32 v{vT1}, v243, s3, 3')
    a(f'v_add_u32 v{vT1}, v{vT1}, v247')
    a(f'v_lshl_add_u32 v249, v{vD4}, 7, v247')
    a(f'v_mul_u32_u24 v{vOA}, 260, v248')
    a(f'v_lshl_add_u32 v{vOA}, v{vH}, 7, v{vOA}')
    a('s_waitcnt vmcnt(0)')
    a(f'v_lshl_add_u32 v{vT0}, v{vT0}, 7, v247')
    a('s_mov_b64 exec, s[60:61]')
    for k in range(4): a(f'buffer_load_dwordx4 {R("a", aBX+4*k, 4)}, v{vT0}, {srdn(SX)}, s{sXO} offen offset:{32*k}')
    a(f'buffer_load_dwordx4 {R("a", aBE, 4)}, v{vT1}, {srdn(SE)}, 0 offen')
    for k in range(4): a(f'buffer_load_dwordx4 {R("v", vE+4*k, 4)}, v249, {srdn(SX)}, s{sXO} offen offset:{32*k}')
    a('s_waitcnt vmcnt(0) lgkmcnt(0)')
    for c in range(4):
        q = R('v', vQ+16*c, 16)
        for k in range(4): a(mfma(q, R('a', aW1B + (c*4+k)*4, 4), R('v', vE+4*k, 4), q))
        for k in range(5): a(m1(c, k, vQ+16*c, vQ+16*c))
    for i in range(64): a(f'v_exp_f32 v{vD+i}, v{vQ+i}')
    for i in range(64): a(f'v_add_f32 v{vD+i}, 1.0, v{vD+i}')
    for i in range(64): a(f'v_rcp_f32 v{vD+i}, v{vD+i}')
    for i in range(64): a(f'v_mul_f32 v{vD+i}, v{vD+i}, v{vQ+i}')
    for i in range(32): a(f'v_cvt_pk_bf16_f32 v{vN+i}, v{vD+2*i}, v{vD+2*i+1}')
    a(f'v_lshlrev_b32 v247, 7, v{vH}')
    for i in range(8): a(f'ds_read_b128 {R("v", vQ+4*i, 4)}, v247 offset:{B2T + 16*i}')
    for dt in range(2):
        acc = R('v', vY + 16*dt, 16)
        for u in range(8): a(mfma(acc, R('a', aW2 + (dt*8+u)*4, 4), R('v', vN + 4*u, 4), acc if u else '0'))
    a('s_waitcnt lgkmcnt(0)')
    for i in range(32): a(f'v_fma_f32 v{vY+i}, v{vY+i}, s{sLN2}, v{vQ+i}')
    for i in range(32): a(f'ds_add_f32 v{vOA}, v{vY+i} offset:{OACC + 4*i}')
    a('s_mov_b64 exec, -1')
    a('s_waitcnt lgkmcnt(0)')
    a.label('L_s_next')
    for i in range(3): a(f'v_mov_b32 v{vD4+i}, v{vD4+i+1}')
    a(f's_add_u32 s{sJj}, s{sJj}, 4')
    a(f's_cmp_lt_u32 s{sJj}, 16'); a('s_cbranch_scc1 L_s_sub')
    a(f's_add_u32 s{sE0}, s{sE0}, 2048')
    a(f's_cmp_lt_u32 s{sE0}, {E*4}'); a('s_cbranch_scc1 L_s_blk')
    a('s_barrier')
    a(f's_lshl_b32 s3, s{sWAVE}, 1')
    a(f'v_add_u32 v1, s3, v{vH}')
    a.label('L_s_out')
    a(f'v_cmp_gt_u32 vcc, s{sNNODE}, v1')
    a('v_mul_u32_u24 v4, 260, v1')
    a(f'v_lshl_add_u32 v4, v{vS}, 3, v4')
    a(f'v_add_u32 v4, {OACC}, v4')
    a(f'v_add_u32 v5, s{sNB0}, v1')
    a('v_lshlrev_b32 v5, 7, v5')
    a(f'v_lshl_add_u32 v5, v{vS}, 2, v5')
    a('s_and_b64 exec, exec, vcc')
    a('s_cbranch_execz L_s_end')
    a('ds_read2_b32 v[2:3], v4 offset0:0 offset1:1')
    a('s_waitcnt lgkmcnt(0)')
    a('v_cvt_pk_bf16_f32 v2, v2, v3')
    a(f'buffer_store_dword v2, v5, {srdn(SO)}, 0 offen')
    a('v_add_u32 v1, 8, v1')
    a('s_branch L_s_out')
    a.label('L_s_end')
    a('s_endpgm')
    a('.p2align 7')
    a.raw('.type L_table,@object')
    a.label('L_table')
    T = pattern_table(BN0) + pattern_table(BN1)
    for i in range(0, 512, 8): a.raw('.long ' + ', '.join(hex(x) for x in T[i:i+8]))
    a.raw('.size L_table, 2048')
    return a

HEADER = """;
;
;     a table row {start, count} per bucket to d_ws.  Everything handed over carries this launch's tag
"""
if __name__ == '__main__':
    for kv in sys.argv[2:]:
        k, v = kv.split('=')
        cur = getattr(P, k)
        setattr(P, k, int(v) if isinstance(cur, int) else (' ' + v.replace('+', ' ') if v else ''))
    k = gen()
    for p in check_all_edges(k): print('HAZARD on branch edge', p, file=sys.stderr)
    print('instrs', sum(1 for x in k.items if not isinstance(x, str)), 'auto nops', k.nops, file=sys.stderr)
    out = open('cdna_kernels/' + NAME + '.s.ref').read().split('; Override launch')[0]
    out += f'; @launch grid=({NB},1,1) block=(256,1,1) lds={lds_bytes()}\n'
    out += HEADER + '.amdgcn_target "amdgcn-amd-amdhsa--gfx950"\n.text\n'
    out += f'.globl {NAME}_kernel\n.type {NAME}_kernel,@function\n' + k.text().replace('; aligned\n', '')
    out += f'''.section .rodata,"a"
.p2align 6
.amdhsa_kernel {NAME}_kernel
  .amdhsa_next_free_vgpr 512
  .amdhsa_next_free_sgpr 102
  .amdhsa_accum_offset 256
  .amdhsa_group_segment_fixed_size 0
  .amdhsa_kernarg_size 88
  .amdhsa_user_sgpr_count 2
  .amdhsa_user_sgpr_kernarg_segment_ptr 1
  .amdhsa_system_sgpr_workgroup_id_x 1
.end_amdhsa_kernel
'''
    open(sys.argv[1], 'w').write(out)
```

```python
import sys, struct
from asmlib import Asm, Ins, check_all_edges

NAME = 'standalone__edge_featured_mpnn_mpnn__graph'
N, E = 50000, 800000
NB = 256
NCH, CH = 256, 3125
WS_REC, WS_TAB = 0, 8 << 20
WS_SIZE = 10 << 20
WS_STAMP = (9 << 20) + (512 << 10)
DUMMY = 0x4000FFFF
def f32(x): return struct.unpack('<I', struct.pack('<f', x))[0]
NLOG2E = f32(-1.4426950408889634)
NLN2 = f32(-0.6931471805599453)

class P:
    depth = 2
    stamp = 0
    efrac = 100
    xfrac = 100
    limit = 3000
    trs = 2304
    tl = 2
    w3 = 0
    tearly = 0
    e1 = 0
    e2 = 3
    e3 = 3
    d3 = 0
    w2p = 1
    pad = 0
    late = 0
    w1 = 4
    w2 = 9
    iw = 1
    bat = 1
    fs = 5
    efirst = 0
    peek = 0
    only = 1
    lvs = 1
    lv = 1
    tk = 2
    tp = 4
    pc = 2
    diagx = 0
    bn0 = 199
    par = 0
    stag = 1
    st1 = 0
    tpos = 1
    probe = 1
    tagst = 0
    wpos = 1
    ninit = 13
    pol_st = ' sc1'
    xpre = ''
    svm = 4
    thr = 9
    xpos = 4
    two = 0
    classes = 4
    codepre = 2
    estr = 128
    srcpos = 8
    epre = ''
    diag = 0
    force = 0
    pol_in = ' nt'
    pol_e = ''
    pol_x = ''
    pol_out = ''

CNT, HB, HIST, FLAG = 0, 4096, 5120, 5376
B1T, B2T, TT = 6144, 6656, 7168
START = TT
EX, EE = 8192, 40960
RING = 73728
NSLOT = 15
MAP = RING
STAGE = EX
LDS_TOTAL = 163840
WST = LDS_TOTAL - 52 * 1024
XP = 1056
SLOT = 4 * XP + 1024
XO = RING + 8 * SLOT
OACC = 8192
def lds_bytes(): return LDS_TOTAL

PATTERNS = {
 191: [(0,0,'H',1),(2,0,'H',2),(3,0,'H',3),(3,1,'H',16),(2,1,'H',13),(0,0,'S',30),(1,1,'H',14),(1,0,'S',32),(2,0,'S',28),(3,0,'S',26),(0,1,'H',16),(2,1,'S',6),(1,1,'S',4)],
 192: [(0,0,'H',1),(2,0,'H',1),(3,0,'H',5),(3,1,'H',15),(2,1,'H',12),(0,0,'S',30),(1,1,'H',14),(1,0,'S',32),(2,0,'S',30),(3,0,'S',22),(0,1,'H',16),(3,1,'S',2),(2,1,'S',8),(1,1,'S',4)],
 193: [(0,0,'H',1),(2,0,'H',2),(3,0,'H',3),(3,1,'H',16),(2,1,'H',11),(0,0,'S',30),(1,1,'H',14),(1,0,'S',32),(2,0,'S',28),(3,0,'S',26),(0,1,'H',16),(2,1,'S',10),(1,1,'S',4)],
 194: [(0,0,'H',1),(2,0,'H',2),(3,0,'H',3),(3,1,'H',16),(2,1,'H',10),(0,0,'S',30),(1,1,'H',14),(1,0,'S',32),(2,0,'S',28),(3,0,'S',26),(0,1,'H',16),(2,1,'S',12),(1,1,'S',4)],
 195: [(0,0,'H',1),(2,0,'H',2),(3,0,'H',2),(3,1,'H',16),(2,1,'H',10),(0,0,'S',30),(1,1,'H',14),(1,0,'S',32),(2,0,'S',28),(3,0,'S',28),(0,1,'H',16),(2,1,'S',12),(1,1,'S',4)],
 196: [(0,0,'H',1),(2,0,'H',2),(3,0,'H',2),(3,1,'H',16),(2,1,'H',9),(0,0,'S',30),(1,1,'H',14),(1,0,'S',32),(2,0,'S',28),(3,0,'S',28),(0,1,'H',16),(2,1,'S',14),(1,1,'S',4)],
 197: [(0,0,'H',1),(2,0,'H',2),(3,0,'H',2),(3,1,'H',16),(2,1,'H',9),(0,0,'S',30),(1,1,'H',13),(1,0,'S',32),(2,0,'S',28),(3,0,'S',28),(0,1,'H',16),(2,1,'S',14),(1,1,'S',6)],
 198: [(0,0,'H',1),(2,0,'H',4),(3,1,'H',12),(2,1,'H',12),(0,0,'S',30),(1,1,'H',13),(1,0,'S',32),(2,0,'S',24),(3,0,'S',32),(0,1,'H',16),(3,1,'S',8),(2,1,'S',8),(1,1,'S',6)],
 199: [(1,0,'H',1),(2,0,'H',1),(3,0,'H',3),(3,1,'H',12),(2,1,'H',11),(0,0,'S',32),(1,1,'H',13),(1,0,'S',30),(2,0,'S',30),(3,0,'S',26),(0,1,'H',16),(3,1,'S',8),(2,1,'S',10),(1,1,'S',6)],
 200: [(0,0,'H',1),(2,0,'H',1),(3,0,'H',2),(3,1,'H',12),(2,1,'H',11),(0,0,'S',30),(1,1,'H',13),(1,0,'S',32),(2,0,'S',30),(3,0,'S',28),(3,1,'S',8),(0,1,'H',16),(2,1,'S',10),(1,1,'S',6)],
}
def pattern_table(BN):
    free = {(w, ph): list(range(32)) for w in range(4) for ph in range(2)}
    T = [None] * BN; p = 0; segs = []
    for w, ph, t, n in PATTERNS[BN]: segs.append((w, ph, t, p, n)); p += n
    assert p == BN
    for t0 in 'HS':
        for w, ph, t, p0, n in segs:
            if t != t0: continue
            for i in range(n):
                pos = free[(w, ph)].pop(0)
                if t == 'H': assert pos < 16; free[(w, ph)].remove(pos + 16)
                T[p0 + i] = (((w * 2 + ph) * 4096 + pos * 4 + 128) << 16) | (64 if t == 'H' else 128)
    assert all(not v for v in free.values())
    return T + [128] * (256 - BN)
def bucket_map():
    b0, b1 = P.bn0, 391 - P.bn0
    A = 128 * b0; M0 = -(-(1 << 24) // b0); M1 = -(-(1 << 24) // b1)
    for dn in range(N):
        f = dn * M0 + max(dn - A, 0) * (M1 - M0)
        assert f < 1 << 32 and f >> 24 == (dn // b0 if dn < A else 128 + (dn - A) // b1), dn
    return b0, b1, A, M0, M1

vN, vD, vQ, vY, vE = 0, 64, 128, 192, 224
vEX, vEE, vCX, vAX, vAE, vCE, vBX0, vBE0, vBX, vBE, vINFO, vDEG, vMAX = 240, 244, 245, 246, 247, 248, 249, 250, 251, 252, 253, 254, 255
aW1A, aW1C, aW1B, aW2, aBX, aBE, aJUNK = 0, 64, 80, 144, 208, 224, 228
aQB, aINFO = 232, 229
SX, SE, SW, SO, SD, SS = 12, 16, 20, 24, 68, 72
sB, sNB0, sNNODE, sWAVE, sMAP, sCOL = 28, 29, 30, 31, 32, 33
sXO = 36
s128, sSLOT, sRING0, sRING1, sT, sL, sLNEXT, sQROW = 40, 41, 42, 43, 44, 45, 46, 47
sLN2, sBAD = 48, 50
sJ, sSUM, sOTH = 52, 53, 54
sINC, sJUMP, sSTEP = 4, 6, 8
sSLOW, sCNT = 66, 67
mLO, mBN, mNN, mCH = 's[76:77]', 's[78:79]', 's[80:81]', 's[42:43]'
sTAG, sTAG8, sTAGH = 82, 83, 84
def R(p, b, n): return f'{p}[{b}:{b+n-1}]'
def srdn(s): return f's[{s}:{s+3}]'
SDWA = 'dst_sel:DWORD dst_unused:UNUSED_PAD src0_sel:DWORD src1_sel:'

def srd(a, d, lo, size):
    a(f's_mov_b32 s{d}, s{lo}'); a(f's_and_b32 s{d+1}, s{lo+1}, 0xffff')
    a(f's_mov_b32 s{d+2}, {size}'); a(f's_mov_b32 s{d+3}, 0x20000')
def wave_scan(a, v, fill=()):
    fill = list(fill)
    steps = [f'row_shr:{sh} row_mask:0xf bank_mask:0xf bound_ctrl:0' for sh in (1, 2, 4, 8)]
    steps += ['row_bcast:15 row_mask:0xa bank_mask:0xf', 'row_bcast:31 row_mask:0xc bank_mask:0xf']
    for s in steps:
        for x in fill[:2]: a(x)
        fill = fill[2:]
        a(f'v_add_u32_dpp v{v}, v{v}, v{v} {s}')
    for x in fill: a(x)
def mfma(d, A, B, C): return f'v_mfma_f32_32x32x16_bf16 {d}, {A}, {B}, {C}'
def m1(c, k, dst, first_c):
    first = k == 0
    if P.efirst: k = (k + 4) % 5
    A = R('a', aW1A + (c * 4 + k) * 4, 4) if k < 4 else R('a', aW1C + c * 4, 4)
    B = R('a', aBX + k * 4, 4) if k < 4 else R('a', aBE, 4)
    return mfma(R('v', dst, 16), A, B, R('v', first_c if first else dst, 16))
def isize(x):
    if x.endswith(':'): return 0
    op = x.split()[0]
    if op.startswith(('v_mfma', 'v_pk_', 'buffer_', 'ds_', 'global_', 'v_mad_', 'v_max3', 'v_cvt_pk', 'v_lshl_add', 'v_lshl_or', 'v_bfe', 'v_writelane',
                      'v_readlane', 's_mem', 'v_accvgpr', 'v_mbcnt', 'v_add_lshl', 'v_or3', 'v_and_or', 'v_bfi')) or op.endswith(('_e64', '_dpp', '_sdwa')): return 8
    if op.startswith('v_cmp') and not x.split()[1].startswith('vcc'): return 8
    for t in x.replace(',', ' ').split()[1:]:
        try: v = int(t, 0)
        except ValueError: continue
        if not -16 <= v <= 64 and not op.startswith(('s_movk', 's_waitcnt', 's_nop')): return 8
    return 4
def align8(a):
    n = 0; cand = None
    for i in range(len(a.items) - 1, -1, -1):
        it = a.items[i]
        if isinstance(it, str):
            if it.startswith(('.p2align', '; aligned')): break
            continue
        n += isize(it.text)
        if cand is None and isize(it.text) == 4 and it.op in ('v_exp_f32', 'v_rcp_f32', 'v_mul_f32', 'v_add_u32', 'v_lshlrev_b32', 'v_cvt_f32_u32'): cand = i
    if n % 8:
        if cand is None: a('s_nop 0')
        else: a.items[cand] = Ins(a.items[cand].text.replace(a.items[cand].op, a.items[cand].op + '_e64', 1))
    a.raw('; aligned')

def gen():
    D = P.depth
    BN0, BN1, NA, M0, M1 = bucket_map()
    assert D == 2
    VW = 5 * (D - 1)
    a = Asm()
    def stamp(i, real=False):
        if not P.stamp: return
        if P.stamp == 6:
            if i in (2, 3, 4): return
            if i >= 20: i -= 18
        elif i >= 20: return
        if P.stamp == 3: real = True
        if P.stamp == 4 and i not in (0, 13): return
        if P.stamp == 5:
            if i not in (0, 8, 13): return
            real = True
        a(f's_mem{"real" if real else ""}time s[86:87]'); a('s_waitcnt lgkmcnt(0)'); a(f's_mov_b32 s{88+i}, s86')
    def poll(name, load, check, first_issued=False, first_wait=None, only=False):
        a(f's_movk_i32 s{sCNT}, {P.limit}')
        if first_wait is not None:
            if first_wait: a(first_wait)
            check()
            a(f's_cbranch_scc0 {name}_ok')
        elif first_issued: a(f's_branch {name}_chk')
        a.label(name)
        if only: a('s_mov_b64 exec, vcc')
        load()
        if only: a('s_mov_b64 exec, -1')
        a.label(name + '_chk')
        a('s_waitcnt vmcnt(0)')
        check()
        a(f's_cbranch_scc0 {name}_ok')
        a(f's_sub_u32 s{sCNT}, s{sCNT}, 1')
        a(f's_cbranch_scc0 {name}')
        a(f's_mov_b32 s{sSLOW}, 1')
        a.label(name + '_ok')

    epre = [int(ch) for ch in P.epre.strip()]
    xpre = [int(ch) for ch in P.xpre.strip()]
    def warm(pos):
        n = 0
        for i, p in enumerate(epre):
            if p != pos: continue
            a(f'v_add_u32 v124, {i*256*P.estr}, v126')
            if (i + 1) * 256 * P.estr > CH * 32: a(f'v_min_u32 v124, v124, v125')
            a(f'buffer_load_dword a{aJUNK}, v124, {srdn(SE)}, 0 offen')
            n += 1
        for i, p in enumerate(xpre):
            if p != pos: continue
            a('s_lshr_b32 s3, s2, 3'); a('s_lshl_b32 s35, s2, 2'); a('s_add_u32 s3, s3, s35'); a('s_and_b32 s3, s3, 31')
            a(f's_add_u32 s3, s3, {32*i}'); a('s_lshl_b32 s3, s3, 8')
            a('v_add_lshl_u32 v124, v0, s3, 7')
            a(f'buffer_load_dword a{aJUNK}, v124, {srdn(SX)}, s{sXO} offen')
            n += 1
        return n
    a('.p2align 8'); a.label(NAME + '_kernel')
    a(f's_cmp_ge_u32 s2, {NB}'); a('s_cbranch_scc1 L_end')
    stamp(0, True); stamp(1)
    a('s_load_dwordx8 s[4:11], s[0:1], 0')
    a('s_load_dwordx4 s[60:63], s[0:1], 64')
    a('s_load_dwordx2 s[64:65], s[0:1], 80')
    a('s_load_dwordx8 s[52:59], s[0:1], 32')
    a(f's_memrealtime s[{sTAG}:{sTAG+1}]')
    a('s_getpc_b64 s[14:15]')
    a.label('L_pc')
    a('v_lshlrev_b32 v15, 2, v0')
    if P.codepre == 2:
        a('v_min_u32 v3, 4, v0'); a('s_lshr_b32 s3, s2, 3'); a('v_lshl_add_u32 v3, v3, 5, s3'); a('v_lshlrev_b32 v3, 7, v3')
    elif P.codepre: a('v_lshlrev_b32 v3, 7, v0')
    if P.codepre:
        a('v_min_u32 v3, L_slow0-L_pc, v3')
        a(f'global_load_dword a{aJUNK}, v3, s[14:15]')
    a('s_add_u32 s14, s14, L_table-L_pc')
    a('s_addc_u32 s15, s15, 0')
    a(f's_xor_b32 s85, s2, {P.par}'); a('s_and_b32 s85, s85, 1')
    a('v_lshl_add_u32 v3, s85, 10, v15')
    a('global_load_dword v11, v3, s[14:15]')
    a('v_lshrrev_b32 v1, 6, v0')
    a('v_and_b32 v2, 63, v0')
    a(f'v_readfirstlane_b32 s{sWAVE}, v1')
    a('v_lshlrev_b32 v21, 4, v0')
    for i in range(4): a(f'v_mov_b32 v{4+i}, 0')
    a('ds_write_b128 v21, v[4:7]')
    a('v_lshlrev_b32 v3, 3, v0')
    a(f'ds_write_b64 v3, v[4:5] offset:{HB}')
    a('v_mov_b32 v12, 0')
    a('v_mov_b32 v13, 1')
    a('v_lshlrev_b32 v9, 4, v2')
    a(f'v_cmp_gt_u32 vcc, {CH - 3072}, v0')
    a(f's_mul_i32 s3, s2, {CH*4}')
    for s in (SD, SS): a(f's_mov_b32 s{s+2}, {E*4}'); a(f's_mov_b32 s{s+3}, 0x20000')
    a(f's_mov_b64 {mLO}, vcc')
    a(f's_mov_b32 s{sSLOW}, 0')
    if P.stamp == 4: a('s_mov_b32 s89, 0'); a('s_mov_b32 s90, 0')
    a('s_waitcnt lgkmcnt(0)')
    vDs, vSr, vB, vRk, vRec = 32, 48, 64, 80, 96
    a(f's_mov_b32 s{SD}, s10'); a(f's_and_b32 s{SD+1}, s11, 0xffff')
    a(f's_mov_b32 s{SS}, s8'); a(f's_and_b32 s{SS+1}, s9, 0xffff')
    for i in range(4): a(f's_add_u32 s{8+i}, s3, {4096*i}')
    a(f's_lshr_b32 s37, s2, {0 if P.tagst else 3}')
    a(f's_or_b32 s37, s37, s{sWAVE}')
    a('s_cbranch_scc1 L_notag')
    if P.force != 1:
        a(f's_or_b32 s{sTAG}, s{sTAG}, 1')
        a(f'v_mov_b32 v4, s{sTAG}'); a(f'v_mov_b32 v5, s{sTAG+1}')
        a('s_mov_b64 exec, 1')
        if P.tagst: a('global_store_dwordx2 v12, v[4:5], s[62:63] sc1')
        else: a('global_atomic_cmpswap_x2 v12, v[4:7], s[62:63] sc1')
        a('s_mov_b64 exec, -1')
    a.label('L_notag')
    def edge_loads(srdn_, vb, so):
        for i in range(3): a(f'buffer_load_dwordx4 {R("v", vb+4*i, 4)}, v21, {srdn(srdn_)}, s{so+i} offen{P.pol_in}')
        a(f'buffer_load_dword v{vb+12}, v15, {srdn(srdn_)}, s{so+3} offen{P.pol_in}')
    edge_loads(SD, vDs, 8)
    a('v_and_b32 v10, 3, v0')
    a('v_bfe_u32 v16, v0, 2, 4')
    a('v_lshl_add_u32 v10, v16, 3, v10')
    a('v_lshl_add_u32 v10, v1, 2, v10')
    a('v_lshrrev_b32 v16, 1, v0'); a('v_and_b32 v16, 32, v16'); a('v_xor_b32 v16, v16, v2')
    a(f's_cmp_lt_u32 s{sWAVE}, 2')
    a('s_cselect_b64 vcc, -1, 0')
    a('v_cndmask_b32 v10, v16, v10, vcc')
    a('v_lshlrev_b32 v10, 1, v10')
    a('s_cselect_b64 s[54:55], s[54:55], s[58:59]')
    a(f's_cselect_b32 s34, {NLOG2E}, 1.0')
    a('global_load_ushort v10, v10, s[54:55]')
    for i in range(4): a(f'v_mov_b32 v{128+i}, {DUMMY}')
    a(f'v_add_u32 v132, {EX + 16384}, v21')
    init = [f'ds_write_b128 v132, v[128:131] offset:{4096*i}' for i in range(15, -1, -1)]
    init += [f'ds_write_b128 v21, v[128:131] offset:{EX + 4096*i}' for i in range(4)]
    assert 4 <= P.ninit <= 13
    if P.pad: init = init[:4]
    init, init2 = init[:P.ninit], init[P.ninit:]
    C = []
    C += [f's_bfe_u32 s{sB}, s2, 0x20001', f's_lshl_b32 s{sB}, s{sB}, 5', 's_lshr_b32 s3, s2, 3', f's_add_u32 s{sB}, s{sB}, s3',
          f's_bitcmp{1 - P.par}_b32 s2, 0', f's_cselect_b32 s59, {BN1}, s38', f's_cselect_b32 s3, {NA}, 0', 's_cselect_b32 s35, 128, 0',
          f's_mul_i32 s{sNB0}, s{sB}, s59', f's_add_u32 s{sNB0}, s{sNB0}, s3', f's_add_u32 s{sB}, s{sB}, s35',
          f's_sub_u32 s{sNNODE}, {N}, s{sNB0}', f's_min_u32 s{sNNODE}, s{sNNODE}, s59',
          f's_lshl_b32 s{sCOL}, s{sB}, 3', f's_add_u32 s{sCOL}, s{sCOL}, {WS_TAB}']
    a(f's_movk_i32 s38, {BN0}')
    for x in C: a(x)
    C = []
    C += [f's_sub_u32 s{SX}, s4, {3*XP}', f's_subb_u32 s{SX+1}, s5, 0', f's_and_b32 s{SX+1}, s{SX+1}, 0xffff',
          f's_mov_b32 s{SX+2}, {(N*128 + 3*XP) * P.xfrac // 100}', f's_mov_b32 s{SX+3}, 0x20000']
    for d, lo, size in ((SE, 6, E * 32 * P.efrac // 100), (SO, 60, N * 128), (SW, 64, WS_SIZE)):
        C += [f's_mov_b32 s{d}, s{lo}', f's_and_b32 s{d+1}, s{lo+1}, 0xffff', f's_mov_b32 s{d+2}, {size}', f's_mov_b32 s{d+3}, 0x20000']
    C += [f's_movk_i32 s{sXO+j}, {(3-j)*XP}' for j in range(4)]
    C += [f's_movk_i32 s{s128}, 128', f's_mov_b32 s{sLN2}, {NLN2}', f's_mov_b32 s{sLN2+1}, {NLN2}', f's_mov_b64 s[{sBAD}:{sBAD+1}], 0']
    C += [f's_lshl_b32 s{sMAP}, s{sWAVE}, 12', f's_add_u32 s{sMAP}, s{sMAP}, {MAP}']
    C += [f's_lshl_b32 s{sQROW}, s{sWAVE}, 13', f's_add_u32 s{sQROW}, s{sQROW}, {EX}']
    C += [f's_mul_i32 s{sSLOT}, s{sWAVE}, {D*SLOT}', f's_add_u32 s{sSLOT}, s{sSLOT}, {RING}']
    C += ['v_and_b32 v16, 7, v2', 'v_lshrrev_b32 v18, 5, v2', 'v_xor_b32 v16, v16, v18', f'v_lshlrev_b32 v{vCX}, 4, v16']
    C += ['v_and_b32 v17, 1, v2', f'v_lshlrev_b32 v{vCE}, 4, v17']
    C += ['v_bfe_u32 v16, v2, 1, 2', f'v_mul_u32_u24 v16, {XP}, v16', 'v_bfe_u32 v20, v2, 3, 2', 'v_lshl_add_u32 v16, v20, 7, v16',
          'v_lshl_add_u32 v16, v17, 9, v16', 'v_xor_b32 v20, v17, v18', f'v_lshl_add_u32 v{vBX0}, v20, 4, v16']
    C += ['v_bfe_u32 v16, v2, 1, 4', 'v_lshl_add_u32 v16, v17, 4, v16', 'v_lshlrev_b32 v16, 5, v16', 'v_lshl_add_u32 v16, v18, 4, v16',
          f'v_add_u32 v{vBE0}, {4*XP}, v16']
    C += ['v_lshrrev_b32 v16, 3, v2', f'v_lshl_add_u32 v{vAX}, v16, 4, s{sQROW}']
    C += ['v_lshrrev_b32 v16, 1, v2', f'v_lshl_add_u32 v{vAE}, v16, 2, s{sQROW}']
    C += ['v_and_b32 v16, 31, v2', 'v_lshlrev_b32 v16, 2, v16', 'v_lshl_add_u32 v16, v18, 12, v16', f'v_add_u32 v25, s{sQROW}, v16']
    C += [f'v_add_u32 v24, s{sNB0}, v0', f'v_cmp_gt_u32 {mBN}, s59, v0', f'v_cmp_gt_u32 {mNN}, s{sNNODE}, v0',
          'v_and_b32 v134, 255, v24', 'v_lshlrev_b32 v134, 4, v134',
          f's_add_u32 s3, s{sNB0}, 240', 's_and_b32 s3, s3, 255', 's_lshl_b32 s3, s3, 4', 'v_mov_b32 v135, s3']
    C += ['v_lshlrev_b32 v19, 2, v2', 'v_lshlrev_b32 v14, 3, v2', f'v_mul_u32_u24 v30, {P.trs}, v0', 'v_and_b32 v31, 31, v0', 'v_lshlrev_b32 v31, 4, v31', 'v_lshl_add_u32 v31, v0, 12, v31']
    C += [f's_mov_b32 s55, {M0}', f's_movk_i32 s56, {M1 - M0}', 's_movk_i32 s57, 335', f'v_mov_b32 v23, {NA}',
          f's_mov_b32 s58, { {1: 0, 2: 0x80000}.get(P.classes, 0xc0000)}']
    vW = 144
    def wraw(i):
        if i in (0, 9): a('s_mov_b32 s35, 0')
        a(f'buffer_load_dwordx4 {R("v", vW+4*i, 4)}, v21, {srdn(SD if i < 9 else SS)}, s35 offen')
        a('s_add_u32 s35, s35, 4096')
    tagload = lambda: a('global_load_dwordx2 v[122:123], v12, s[62:63] sc1')
    k = 0
    while init or C:
        if init: a(init.pop(0))
        for x in C[:6]: a(x)
        C = C[6:]
        k += 1
        if k == P.srcpos:
            edge_loads(SS, vSr, 8)
            srd(a, SD, 52, 144 * 128 * 2); srd(a, SS, 56, 128 * 64 * 2)
            a('s_lshr_b32 s3, s2, 3'); a('v_min_u32 v3, 8, v0'); a('v_lshl_add_u32 v3, v3, 5, s3'); a('v_lshlrev_b32 v3, 7, v3')
            a(f'buffer_load_dword a{aJUNK}, v3, {srdn(SD)}, 0 offen')
            a(f'buffer_load_dword a{aJUNK}, v3, {srdn(SS)}, 0 offen')
    if epre:
        a(f's_mul_i32 s3, s2, {CH*32}'); a(f'v_mul_u32_u24 v126, {P.estr}, v0'); a('v_add_u32 v126, s3, v126')
        a(f's_add_u32 s3, s3, {CH*32-128}'); a('v_mov_b32 v125, s3')
    if P.pad: a('ds_write_b32 v25, v128')
    n0 = 2 + warm(0)
    a('s_waitcnt lgkmcnt(0)')
    a('s_barrier')
    def tagcheck():
        a(f'v_readfirstlane_b32 s{sTAG}, v122'); a(f'v_readfirstlane_b32 s{sTAG8}, v123')
        a(f's_cmp_eq_u32 s{sTAG}, 0')
    for b, (lo, hi) in enumerate(((0, 4), (4, 8), (8, 13)) if P.stag else ((0, 13),)):
        a(f's_waitcnt vmcnt({5 + n0 + ((3, 2, 0)[b] if P.stag else 0)})')
        if hi == 13: stamp(2); tagload()
        for i in range(lo, hi): a(f'v_mul_u32_u24 v{vB+i}, s55, v{vDs+i}')
        for i in range(lo, hi): a(f'v_sub_u32_e64 v{vRk+i}, v{vDs+i}, v23 clamp')
        for i in range(lo, hi): a(f'v_mad_u32_u24 v{vB+i}, v{vRk+i}, s56, v{vB+i}')
        for i in range(lo, hi): a(f'v_lshlrev_b32_sdwa v{vB+i}, 2, v{vB+i} {SDWA}BYTE_3')
        for i in range(lo, hi):
            if i == 12: a(f's_mov_b64 exec, {mLO}')
            a(f'ds_add_rtn_u32 v{vRk+i}, v{vB+i}, v13 offset:{HB}')
    a('s_mov_b64 exec, -1')
    for i in range(13): a(f'v_lshlrev_b32_sdwa v{vDs+i}, 20, v{vDs+i} {SDWA}BYTE_0')
    for i in range(P.w1): wraw(i)
    a('s_waitcnt lgkmcnt(0)')
    a('s_barrier')
    a(f'ds_read_b128 v[26:29], v9 offset:{HB}')
    F = [f'v_mul_u32_u24 v{vRec+2*i}, s57, v{vSr+i}' for i in range(13)]
    F += [f'v_lshrrev_b32 v{vRec+2*i}, 4, v{vRec+2*i}' for i in range(13)]
    F += [f'v_and_or_b32 v{vRec+2*i}, v{vRec+2*i}, s58, v{vSr+i}' for i in range(13)]
    a(f's_waitcnt vmcnt({n0 + 1 + P.w1}) lgkmcnt(0)')
    a('v_add_u32 v5, v26, v27'); a('v_add_u32 v6, v5, v28'); a('v_add_u32 v7, v6, v29')
    a('v_mov_b32 v3, v7')
    wave_scan(a, 3, F[:12])
    a('v_sub_u32 v4, v3, v7'); a('v_add_u32 v7, v4, v6'); a('v_add_u32 v6, v4, v5'); a('v_add_u32 v5, v4, v26')
    a(f'ds_write_b128 v9, v[4:7] offset:{START}')
    for i in range(13): a(f'ds_read_b32 v{vB+i}, v{vB+i} offset:{START}')
    for i in range(P.w1, P.w2): wraw(i)
    for x in F[12:]: a(x)
    def gettag(name, **kw):
        poll(name, tagload, tagcheck, **kw)
        a(f's_and_b32 s{sTAG8}, s{sTAG8}, 0xff')
        a(f's_lshl_b32 s{sTAGH}, s{sTAG}, 4')
        a(f's_and_b32 s{sTAGH}, s{sTAGH}, 0xfffff000')
    def pubrow(name):
        a.raw("; wave 3 writes this chunk's table row: 256 x {start | cnt<<12 | tag8<<24, tag}")
        a(f's_sub_u32 s3, 3, s{sWAVE}'); a(f's_or_b32 s3, s3, s{sSLOW}'); a(f's_cbranch_scc1 {name}')
        if P.force == 2: a('s_cmp_eq_u32 s2, 7'); a(f's_cbranch_scc1 {name}')
        for i in range(4):
            a(f'v_lshl_or_b32 v{136+2*i}, v{26+i}, 12, v{4+i}')
            a(f'v_mov_b32 v{137+2*i}, s{sTAG}')
        for i in range(4): a(f'v_lshl_or_b32 v{136+2*i}, s{sTAG8}, 24, v{136+2*i}')
        a(f's_mul_i32 s3, s2, {P.trs}'); a(f's_add_u32 s3, s3, {WS_TAB}')
        a('v_lshlrev_b32 v3, 5, v2')
        a(f'buffer_store_dwordx4 v[136:139], v3, {srdn(SW)}, s3 offen sc1')
        a(f'buffer_store_dwordx4 v[140:143], v3, {srdn(SW)}, s3 offen offset:16 sc1')
        a.label(name)
    gettag('L_ptag', first_wait=f's_waitcnt vmcnt({P.w2})')
    if P.stamp == 3 and P.st1 == 0: stamp(1)
    pubrow('L_norow')
    a(f's_lshl_b32 s3, s{sTAGH}, 16')
    if P.force == 3: a('s_cmp_eq_u32 s2, 9'); a('s_cselect_b32 s85, 0x10000000, 0'); a('s_xor_b32 s3, s3, s85')
    a(f'v_add_u32 v22, s{sTAGH}, v15')
    a(f'v_add_u32 v20, s{sTAGH}, v0')
    a('s_waitcnt lgkmcnt(0)')
    for b, (lo, hi) in enumerate(((0, 4), (4, 8), (8, 13))):
        for i in range(lo, hi):
            a(f'v_or3_b32 v{vRec+2*i}, v{vRec+2*i}, v{vDs+i}, s3')
            a(f'v_add_u32 v{vRec+2*i+1}, {(i>>2)*1024 + (i&3)}, v{22 if i < 12 else 20}')
        for i in range(lo, hi):
            a(f'v_add_lshl_u32 v{vB+i}, v{vB+i}, v{vRk+i}, 3')
        for i in range(lo, hi):
            if i == 12: a(f's_mov_b64 exec, {mLO}')
            a(f'ds_write_b64 v{vB+i}, {R("v", vRec+2*i, 2)} offset:{STAGE}')
    a('s_mov_b64 exec, -1')
    a('v_lshlrev_b32 v10, 16, v10')
    a('v_mul_f32 v10, s34, v10')
    a(f'ds_write_b32 v15, v10 offset:{B1T}')
    for i in range(P.w2, 9): wraw(i)
    a('v_lshl_add_u32 v20, v1, 7, v9')
    a('s_and_b32 s3, s2, 31'); a('s_lshl_b32 s35, s2, 8'); a('s_add_u32 s3, s3, s35'); a('s_lshl_b32 s3, s3, 7')
    tload = lambda: a(f'buffer_load_dwordx2 v[16:17], v30, {srdn(SW)}, s{sCOL} offen sc1')
    a('s_waitcnt lgkmcnt(0)')
    a('s_barrier')
    if P.stamp == 3 and P.st1 == 1: stamp(1)
    for i in range(6): a(f'ds_read_b128 {R("v", 32+4*i, 4)}, v21 offset:{STAGE + 4096*i}')
    a(f'ds_read_b128 v[56:59], v20 offset:{STAGE + 24576}')
    for i in range(7):
        a(f's_waitcnt lgkmcnt({6-i})')
        if i == 6: a('s_mov_b64 exec, 0xff')
        a(f'buffer_store_dwordx4 {R("v", 32+4*i, 4)}, v{21 if i < 6 else 20}, {srdn(SW)}, s3 offen{P.pol_st}')
        if i < 6: a('s_add_u32 s3, s3, 4096')
    a('s_mov_b64 exec, -1')
    a(f's_lshl_b32 s35, s{sWAVE}, 12'); a(f's_add_u32 m0, s35, {WST + 36864}')
    if P.tl == 0: tload()
    def w2dma():
        for i in range(4): a(f'buffer_load_dwordx4 v9, {srdn(SS)}, s35 offen offset:{1024*i} lds')
    if P.w2p == 0: w2dma()
    a('s_barrier')
    stamp(3)
    a(f'ds_write_b32 v15, v11 offset:{TT}')
    a('v_and_b32 v3, 0x30, v0'); a('v_lshlrev_b32 v3, 2, v3'); a('v_xor_b32 v3, v3, v21')
    a(f'v_add_u32 v3, {WST}, v3')
    a(f's_mov_b32 s56, {NLOG2E}'); a('s_mov_b32 s57, s56'); a('s_mov_b32 s3, 0xffff0000')
    assert P.w2p and P.w2 == 9
    if P.force != 2 and P.w3:
        a('s_waitcnt vmcnt(10)'); a(f's_cmp_eq_u32 s{sWAVE}, 3'); a('s_cbranch_scc1 L_wok')
    a(f's_waitcnt vmcnt({7 if P.tl else 8})')
    a.label('L_wok')
    for i in range(9):
        for j in range(4):
            a(f'v_lshlrev_b32 v{64+2*j}, 16, v{vW+4*i+j}'); a(f'v_and_b32 v{65+2*j}, s3, v{vW+4*i+j}')
        for j in range(4): a(f'v_pk_mul_f32 v[{64+2*j}:{65+2*j}], v[{64+2*j}:{65+2*j}], s[56:57]')
        for j in range(4): a(f'v_cvt_pk_bf16_f32 v{vW+4*i+j}, v{64+2*j}, v{65+2*j}')
        a(f'ds_write_b128 v3, {R("v", vW+4*i, 4)} offset:{4096*i}')
        if init2 and P.iw: a(init2.pop(0))
        if P.tl == 1 and i == 4: tload()
    a('v_lshrrev_b32 v64, 5, v2'); a('v_bfe_u32 v65, v2, 2, 2'); a('v_bfe_u32 v66, v2, 4, 1'); a('v_and_b32 v67, 3, v2')
    a('v_lshl_add_u32 v200, v64, 3, v65'); a('v_lshlrev_b32 v200, 8, v200'); a('v_lshl_add_u32 v200, v66, 5, v200'); a('v_lshl_add_u32 v200, v67, 3, v200')
    a('v_lshl_add_u32 v200, v65, 6, v200'); a(f'v_add_u32 v200, {WST}, v200')
    for c in range(1, 4): a(f'v_xor_b32 v{200+c}, {64*c}, v200')
    a('v_lshl_add_u32 v204, v64, 2, v65'); a('v_lshlrev_b32 v204, 7, v204'); a('v_lshl_add_u32 v204, v66, 4, v204')
    a('v_and_b32 v64, 1, v2'); a('v_lshl_add_u32 v204, v64, 6, v204'); a('v_bfe_u32 v64, v2, 1, 1'); a('v_lshl_add_u32 v204, v64, 3, v204')
    a(f'v_add_u32 v204, {WST + 36864}, v204')
    a('s_waitcnt lgkmcnt(0)')
    a('s_barrier')
    if P.tl == 2: tload()
    TR = {}
    vTA = 200
    for kk in range(9):
        TR[kk] = []
        for c in range(4):
            d = aW1A + 16*c + 4*kk if kk < 4 else (aW1B + 16*c + 4*(kk-4) if kk < 8 else aW1C + 4*c)
            for r in range(2): TR[kk].append(f'ds_read_b64_tr_b16 {R("a", d+2*r, 2)}, v{vTA+c} offset:{4096*kk + 1024*r}')
    TR[9] = [f'ds_read_b64_tr_b16 {R("a", aW2+(dt*8+u)*4+2*r, 2)}, v{vTA+4} offset:{2048*u + 1024*r + 32*dt}' for dt in range(2) for u in range(8) for r in range(2)]
    early = {0: range(9), 1: (0, 1), 2: (0, 1, 4, 5, 6, 7)}[P.late]
    for kk in early:
        for x in TR[kk]: a(x)
    lateq = [x for kk in (4, 5, 6, 7) if kk not in early for x in TR[kk]]
    later = [x for kk in (2, 3, 8, 9) if kk not in early for x in TR[kk]]
    for x in init2: a(x)
    assert P.late == 0 and XO % 128 == 0 and XO + 28672 <= WST + 36864
    a('v_lshrrev_b32 v29, 3, v2'); a('v_xor_b32 v29, v29, v2'); a('v_lshlrev_b32 v29, 4, v29')
    a(f's_mul_i32 s85, s{sWAVE}, 7168'); a(f's_lshl_b32 s3, s{sNB0}, 7'); a('s_add_u32 s3, s3, s85'); a('v_add_u32 v29, s3, v29')
    a('s_waitcnt lgkmcnt(0)')
    a('s_barrier')
    if P.tl == 3: tload()
    if P.w2p == 1: w2dma()
    if P.stamp == 3 and P.st1 == 2: stamp(1)
    a(f's_waitcnt vmcnt({4 if P.w2p < 2 else 0})')
    a.label('L_consume')
    a(f's_cmp_lg_u32 s{sSLOW}, 0'); a('s_cbranch_scc1 L_skipB')
    def tcheck(v, mask=None):
        def f():
            a(f'v_cmp_ne_u32 s[56:57], s{sTAG}, v{v+1}')
            a(f'v_cmp_ne_u32_sdwa vcc, v{v}, s{sTAG8} src0_sel:BYTE_3 src1_sel:DWORD')
            a('s_or_b64 vcc, vcc, s[56:57]')
            if mask: a(f's_and_b64 vcc, vcc, {mask}')
        return f
    poll('L_pt', tload, tcheck(16), first_wait='', only=P.only)
    stamp(4)
    a('v_bfe_u32 v17, v16, 12, 12')
    a('v_and_b32 v16, 0xfff, v16')
    a('v_mov_b32 v18, v17')
    a('v_add_u32 v16, v16, v31')
    a('v_add_lshl_u32 v22, v16, v17, 3')
    a('v_sub_u32_e64 v22, v22, 4 clamp')
    pload = lambda: a(f'buffer_load_dword v23, v22, {srdn(SW)}, 0 offen sc1')
    if P.probe: pload()
    if P.probe == 2:
        a('v_lshlrev_b32 v3, 3, v16'); a(f'buffer_load_dword a{aJUNK}, v3, {srdn(SW)}, 0 offen sc1')
    wave_scan(a, 18, ['v_cmp_lt_u32 s[56:57], 16, v17', 'v_cmp_lt_u32 s[58:59], 8, v17',
                      'v_cmp_lt_u32 s[60:61], 0, v17', 'v_cmp_lt_u32 vcc, 24, v17', f'v_add_u32 v20, s{sMAP}, v19'])
    a('v_sub_u32 v3, v18, v17')
    a('v_readlane_b32 s3, v18, 63')
    a('v_sub_u32 v16, v16, v3')
    a(f'v_lshl_add_u32 v18, v3, 2, s{sMAP}')
    a('v_lshlrev_b32 v16, 3, v16')
    a(f's_cmp_gt_u32 s3, {NSLOT*64}')
    a(f's_cselect_b32 s{sSLOW}, 1, s{sSLOW}')
    a(f's_cmp_lg_u32 s{sSLOW}, 0'); a('s_cbranch_scc1 L_skipB')
    a('v_lshl_add_u32 v3, s3, 2, v20')
    for m, j0 in (('s[56:57]', 16), ('s[58:59]', 8), ('s[60:61]', 0)):
        a(f's_mov_b64 exec, {m}')
        for j in range(j0 + 7, j0 - 1, -1): a(f'ds_write_b32 v18, v16 offset:{4*j}')
    a('s_mov_b64 exec, -1')
    a('ds_write_b32 v3, v128')
    a('s_cbranch_vccz L_nomap')
    a.label('L_map')
    for j in range(24, 28):
        a(f'v_cmpx_lt_u32 vcc, {j}, v17')
        a(f'ds_write_b32 v18, v16 offset:{4*j}')
    a('v_add_u32 v18, 16, v18')
    a('v_subrev_u32 v17, 4, v17')
    a('s_cbranch_execnz L_map')
    a('s_mov_b64 exec, -1')
    a.label('L_nomap')
    vR, vI, vK, vP, vA, vT, vCB = 32, 64, 80, 96, 144, 160, 176
    for i in range(NSLOT): a(f'ds_read_b32 v{vA+i}, v20 offset:{256*i}')
    def pcheck():
        a(f'v_xor_b32 v3, s{sTAGH}, v23')
        a('v_cmp_lt_u32 vcc, 0xfff, v3')
        a('s_and_b64 vcc, vcc, s[60:61]')
    a('s_movk_i32 s34, 4096')
    a('s_waitcnt lgkmcnt(0)')
    for i in range(NSLOT): a(f'v_add_u32 v{vA+i}, v{vA+i}, v14')
    def treg():
        for i in range(NSLOT): a(f'v_bfe_i32 v{vT+i}, v{vA+i}, 30, 1')
        for i in range(NSLOT): a(f'v_bfi_b32 v{vT+i}, v{vT+i}, v135, s{sTAGH}')
    if P.tearly: treg()
    if P.probe: a(f's_waitcnt vmcnt({P.probe - 1})')
    if P.probe: poll('L_pp', pload, pcheck, first_wait='', only=P.only)
    stamp(5)
    a(f's_cmp_lg_u32 s{sSLOW}, 0'); a('s_cbranch_scc1 L_skipB')
    rec = lambda i: a(f'buffer_load_dwordx2 {R("v", vR+2*i, 2)}, v{vA+i}, {srdn(SW)}, {"s34" if i >= 8 else "0"} offen offset:{512*(i%8)} sc1')
    for i in range(NSLOT): rec(i)
    def ownx():
        a.raw("; this bucket's own x rows -> LDS")
        a(f's_add_u32 m0, s85, {XO}'); a(f's_movk_i32 s35, {3*XP + 4096}')
        for i in range(7):
            if i == 4: a('s_add_u32 m0, m0, 4096')
            a(f'buffer_load_dwordx4 v29, {srdn(SX)}, s{sXO if i < 4 else 35} offen offset:{1024*(i%4)} lds')
        return 7
    n3 = 0
    nx = 0
    if P.xpos == 3: nx += ownx()
    nx += warm(3)
    n3 += nx
    if not P.tearly: treg()
    a(f's_mov_b32 s3, {CH*32}')
    for i in range(NSLOT): a(f'v_add_u32 v{vCB+i}, {512*i}, v{vA+i}')
    for i in range(NSLOT): a(f'v_lshrrev_b32 v{vCB+i}, 15, v{vCB+i}')
    for i in range(NSLOT): a(f'v_mul_u32_u24 v{vCB+i}, s3, v{vCB+i}')
    stamp(6)
    retry = []
    for b, (lo, hi) in enumerate(((0, 6), (6, 11), (11, 15)) if P.bat == 0 else ((0, 4), (4, 8), (8, 11), (11, 15))):
        a(f's_movk_i32 s{sCNT}, {P.limit}')
        a(f's_waitcnt vmcnt({NSLOT-hi+n3})')
        a.label(f'L_chk{b}')
        for i in range(lo, hi): a(f'v_xor_b32 v{vR+2*i+1}, v{vT+i}, v{vR+2*i+1}')
        for i in range(lo, hi): a(f'v_xor_b32_sdwa v{vI+i}, v{vT+i}, v{vR+2*i} dst_sel:DWORD dst_unused:UNUSED_PAD src0_sel:WORD_0 src1_sel:WORD_1')
        for i in range(lo, hi): a(f'v_or3_b32 v3, v{vI+i}, v{vR+2*i+1}, {"v3" if i > lo else "0"}')
        a('v_cmp_lt_u32 vcc, 0xfff, v3')
        if lo == 11:
            for i in range(lo, hi): a(f'v_cmp_ne_u32 s[{58+2*(i-lo)}:{59+2*(i-lo)}], v135, v{vI+i}')
        a(f's_cbranch_vccnz L_retry{b}')
        retry.append((b, lo, hi))
        for i in range(lo, hi):
            if lo == 11: a(f's_mov_b64 exec, s[{58+2*(i-lo)}:{59+2*(i-lo)}]')
            a(f'ds_add_rtn_u32 v{vK+i}, v{vI+i}, v13 offset:{CNT}')
    a('s_mov_b64 exec, -1')
    if P.xpos == 4: nx += ownx()
    nx += warm(4)
    a.label('L_skipB')
    if P.w2p == 2: a(f's_lshl_b32 s35, s{sWAVE}, 12'); a(f's_add_u32 m0, s35, {WST + 36864}'); w2dma()
    EO = [f'v_lshl_add_u32 v{vR+2*i+1}, v{vR+2*i+1}, 5, v{vCB+i}' for i in range(NSLOT)]
    E1, E2, E3 = P.e1, P.e2, P.e3
    for x in EO[:E1]: a(x)
    a(f's_mov_b64 exec, {mBN}')
    a('s_waitcnt lgkmcnt(0)')
    a('s_barrier')
    stamp(7)
    a(f'ds_read_b128 v[4:7], v134 offset:{CNT}')
    a('s_waitcnt lgkmcnt(0)')
    a('v_add_u32 v5, v4, v5'); a('v_add_u32 v6, v5, v6'); a('v_add_u32 v16, v6, v7')
    a('v_min_u32 v17, 63, v16')
    a('v_sub_u32 v17, 63, v17')
    a('v_lshlrev_b32 v17, 2, v17')
    a(f'ds_add_rtn_u32 v18, v17, v13 offset:{HIST}')
    a('v_sub_u32 v26, v16, v4'); a('v_sub_u32 v27, v16, v5'); a('v_sub_u32 v28, v16, v6')
    a('v_lshrrev_b32 v23, 1, v16')
    a('v_lshl_or_b32 v23, v23, 16, v24')
    a('v_or_b32 v23, 0xc00000, v23')
    a('s_mov_b64 exec, -1')
    for x in EO[E1:E2]: a(x)
    a('s_waitcnt lgkmcnt(0)')
    a('s_barrier')
    stamp(20)
    a(f'ds_read_b32 v20, v19 offset:{HIST}')
    a(f'ds_read_b32 v3, v19 offset:{HIST}')
    for x in EO[E2:E3]: a(x)
    a('s_waitcnt lgkmcnt(0)')
    wave_scan(a, 3, EO[E3:E3+12])
    a('v_sub_u32 v20, v3, v20')
    a('ds_bpermute_b32 v20, v17, v20')
    a(f'v_mov_b32 v3, {(32768 - 4) << 16}')
    a(f'ds_write_b32 v135, v3 offset:{CNT}')
    for x in EO[E3+12:]: a(x)
    a(f's_mov_b64 exec, {mNN}')
    a('s_waitcnt lgkmcnt(1)')
    a('v_add_lshl_u32 v20, v20, v18, 2')
    a(f'ds_read_b32 v22, v20 offset:{TT}')
    a('s_waitcnt lgkmcnt(0)')
    a('v_and_b32 v3, 0x10000000, v22')
    a('v_lshlrev_b32 v29, 16, v22')
    a('v_cmp_ne_u32 vcc, 0, v3')
    a('v_bfe_u32 v3, v22, 6, 1')
    a('v_add_u32 v16, v16, v3')
    a('v_cndmask_b32 v7, v6, v12, vcc'); a('v_cndmask_b32 v6, v5, v28, vcc')
    a('v_cndmask_b32 v5, v4, v27, vcc'); a('v_cndmask_b32 v4, v12, v26, vcc')
    for i in range(4): a(f'v_mad_u32_u24 v{4+i}, v{4+i}, v29, v22')
    a(f'ds_write_b128 v134, v[4:7] offset:{CNT}')
    a('v_lshrrev_b32 v16, v3, v16')
    a('v_lshrrev_b32 v22, 16, v22')
    a('v_lshl_or_b32 v24, v3, 22, v24')
    a('v_cmp_lt_u32 s[56:57], 30, v16')
    a('v_lshl_or_b32 v24, v16, 16, v24')
    a('v_cmp_ne_u32 vcc, 0, v3')
    a(f'ds_write_b32 v22, v24 offset:{EX - 128}')
    a('s_mov_b64 exec, vcc')
    a(f'ds_write_b32 v22, v23 offset:{EX - 64}')
    a(f's_or_b32 s56, s56, s{sSLOW}')
    a('s_mov_b64 exec, s[56:57]')
    a(f'ds_write_b32 v12, v13 offset:{FLAG}')
    a('s_mov_b64 exec, -1')
    a('s_waitcnt lgkmcnt(0)')
    a('s_barrier')

    ell_read = [f'ds_read_b128 {R("v", vEX, 4)}, v{vAX}', f'ds_read_b32 v{vEE}, v{vAE} offset:{EE-EX}']
    jump = [f's_sub_u32 s{sJ}, s{sJ}, 1', f's_cselect_b64 s[{sINC}:{sINC+1}], s[{sJUMP}:{sJUMP+1}], s[{sSTEP}:{sSTEP+1}]']
    ell_adv = [f'v_lshl_add_u64 v[{vAX}:{vAE}], v[{vAX}:{vAE}], 0, s[{sINC}:{sINC+1}]']
    xaddr = [f'v_mad_u32_u16 v{vEX+j}, v{vEX+j}, s{s128}, v{vCX}' for j in range(4)]
    eaddr = f'v_add_u32 v{vEE}, v{vEE}, v{vCE}'
    m0x = f's_mov_b32 m0, s{sSLOT}'; m0e = f's_add_u32 m0, s{sSLOT}, {4*XP}'
    dmax = [f'buffer_load_dwordx4 v{vEX+j}, {srdn(SX)}, s{sXO+j} offen offset:{j*XP}{P.pol_x} lds' for j in range(4)]
    dmae = f'buffer_load_dwordx4 v{vEE}, {srdn(SE)}, 0 offen{P.pol_e} lds'
    adv = [f's_sub_u32 s{sSLOT}, s{sSUM}, s{sSLOT}']
    baddr = [f'v_add_u32 v{vBX}, s{sSLOT}, v{vBX0}', f'v_add_u32 v{vBE}, s{sSLOT}, v{vBE0}']
    bread = [f'ds_read_b128 {R("a", aBX+4*k, 4)}, v{vBX} offset:{32*k}' for k in range(4)] + [f'ds_read_b128 {R("a", aBE, 4)}, v{vBE}']
    breadk = bread[4:] + bread[:4] if P.efirst else bread
    adv3 = [f's_sub_u32 s34, s{sSUM}, s{sSLOT}', f's_mov_b32 s{sSLOT}, s{sOTH}', f's_sub_u32 s{sOTH}, s34, s{sSLOT}']
    VW3 = 10 if P.d3 else VW
    PFa = [m0x] + xaddr + [eaddr] + dmax + [m0e] + [adv[0]] + [dmae] + adv[1:]
    PFb = ell_read + jump + ell_adv
    PF = PFa + PFb + baddr

    stamp(21)
    vG = 112
    a(f'ds_read_b32 v16, v12 offset:{FLAG}')
    for i in range(NSLOT - 1): a(f'ds_read_b32 v{vP+i}, v{vI+i} offset:{CNT}')
    a(f's_waitcnt lgkmcnt({NSLOT - 3})')
    a(f'ds_read_b32 v{vP+NSLOT-1}, v{vI+NSLOT-1} offset:{CNT}')
    a('ds_read_b32 v17, v25')
    a('v_readfirstlane_b32 s3, v16')
    alt = lambda L: [x.replace(R('v', vEX, 4), R('v', vG, 4)).replace(f'v{vEX}', f'v{vG}').replace(f'v{vEX+1}', f'v{vG+1}').replace(f'v{vEX+2}', f'v{vG+2}')
                      .replace(f'v{vEX+3}', f'v{vG+3}').replace(f'v{vEE}', f'v{vG+4}') for x in L]
    a('s_cmp_lg_u32 s3, 0'); a('s_cbranch_scc1 L_slow0')
    for lo, hi in ((0, 4), (4, 8), (8, 11), (11, 15)):
        a(f's_waitcnt lgkmcnt({NSLOT - hi + 1 + lo})')
        for i in range(lo, hi): a(f'v_mul_u32_u24_sdwa v{vK+i}, v{vK+i}, v{vP+i} {SDWA}WORD_0')
        for i in range(lo, hi): a(f'v_add_u32_sdwa v{vP+i}, v{vK+i}, v{vP+i} {SDWA}WORD_1')
        for i in range(lo, hi):
            if i >= 11: a(f's_mov_b64 exec, s[{58+2*(i-11)}:{59+2*(i-11)}]')
            a(f'ds_write2st64_b32 v{vP+i}, v{vR+2*i}, v{vR+2*i+1} offset0:{EX//256} offset1:{EE//256}')
    a('s_mov_b64 exec, -1')
    a('s_waitcnt lgkmcnt(10)')
    a('v_bfe_u32 v17, v17, 16, 6')
    if P.pad: a('v_mov_b32 v18, v17')
    F = [f'v_add_u32 v{vAX}, 128, v{vAX}', f'v_add_u32 v{vAE}, 128, v{vAE}',
         f'v_lshrrev_b32 v{vE+1}, 3, v{vBE0}', f'v_and_b32 v{vE+2}, 16, v{vBE0}', f'v_and_b32 v{vE+1}, -4, v{vE+1}',
         f'v_lshlrev_b32 v{vE}, 4, v{vE+2}', f's_sub_u32 s3, s{sQROW}, {4*XP//8}', f'v_add_u32 v{vE+1}, s3, v{vE+1}']
    for sh in ('row_shr:1', 'row_shr:2', 'row_shr:4', 'row_shr:8', 'row_bcast:15'):
        for x in F[:2]: a(x)
        F = F[2:]
        a(f'v_max_u32_dpp v17, v17, v17 {sh} ' + ('row_mask:0xf bank_mask:0xf bound_ctrl:0' if 'shr' in sh else 'row_mask:0xa bank_mask:0xf'))
    a(f'ds_read2st64_b32 v[{vE+4}:{vE+5}], v{vE+1} offset0:0 offset1:16')
    a(f'v_readlane_b32 s{sL}, v17, 31')
    a(f'v_readlane_b32 s{sLNEXT}, v17, 63')
    stamp(22)
    a(f's_max_u32 s{sL}, s{sL}, 1')
    a(f's_max_u32 s{sLNEXT}, s{sLNEXT}, 1')
    if P.pad:
        a.raw('; cells past the end of a chain (and two rows of look-ahead past the second group) load nothing')
        a(f's_add_u32 s3, s{sLNEXT}, 2'); a(f'v_mov_b32 v20, s{sL}'); a('s_mov_b32 exec_lo, 0')
        a('v_mov_b32 v20, s3'); a('s_mov_b64 exec, -1')
        a('v_lshl_add_u32 v22, v20, 7, v25')
        a('v_sub_u32 v20, v20, v18')
        a.label('L_pad')
        a('v_subrev_u32 v22, 512, v22')
        for j in range(4):
            a(f'v_cmpx_lt_u32 vcc, {j}, v20')
            a(f'ds_write_b32 v22, v128 offset:{512 - 128*j}')
            a(f'ds_write_b32 v22, v128 offset:{512 - 128*j + EE - EX}')
        a('v_subrev_u32 v20, 4, v20')
        a('s_cbranch_execnz L_pad')
        a('s_mov_b64 exec, -1')
    if P.thr and P.tk:
        a(f's_add_u32 s55, s{sL}, s{sLNEXT}'); a(f's_mul_i32 s55, s55, {-P.tk}'); a(f's_add_i32 s55, s55, {P.thr + 26*P.tk}')
        if P.tp: a(f's_and_b32 s3, s2, 1'); a(f's_mul_i32 s3, s3, {P.tp}'); a('s_sub_i32 s55, s55, s3')
        a('s_max_i32 s55, s55, 0')
    elif P.thr: a(f's_movk_i32 s55, {P.thr}')
    if P.thr: a(f's_min_u32 s55, s55, s{sL}')
    if P.stamp: a(f's_add_u32 s{sCNT}, s{sL}, s{sLNEXT}')
    a(f's_lshl_b32 s3, s{sL}, 7')
    a(f's_sub_u32 s{sJUMP}, {4096 + 128}, s3'); a(f's_mov_b32 s{sJUMP+1}, s{sJUMP}')
    a(f's_movk_i32 s{sSTEP}, 128'); a(f's_movk_i32 s{sSTEP+1}, 128')
    a(f's_lshl_b32 s{sSUM}, s{sSLOT}, 1'); a(f's_add_u32 s{sSUM}, s{sSUM}, {SLOT}')
    a(f's_sub_u32 s{sJ}, s{sL}, 1')
    if P.stamp: a(f's_mov_b32 s{88+10}, 0')
    for x in jump: a(x)
    a('s_waitcnt vmcnt(0) lgkmcnt(0)')
    a('s_barrier')
    stamp(8)
    for x in alt(ell_read) + ell_adv + PFb: a(x)
    a('s_waitcnt lgkmcnt(2)')
    for x in alt(PFa): a(x)
    a('s_waitcnt lgkmcnt(0)')
    for x in PF: a(x)

    for i in range(16): a(f'ds_read_b128 {R("v", vQ+4*i, 4)}, v{vE} offset:{B1T + 16*i}')
    a(f'v_mov_b32 v{vINFO}, v{vE+4}')
    a(f'v_accvgpr_write_b32 a{aINFO}, v{vE+5}')
    for g, dst in ((0, aBX), (1, aQB)):
        t = vE + 8 + 4*g
        a(f'v_and_b32 v{t}, 0xffff, v{vE+4+g}'); a(f'v_subrev_u32 v{t}, s{sNB0}, v{t}'); a(f'v_min_u32 v{t}, 223, v{t}')
        a(f'v_and_b32 v{t+1}, 7, v{t}'); a(f'v_lshl_add_u32 v{t}, v{t}, 3, v{t+1}'); a(f'v_lshlrev_b32 v{t}, 4, v{t}')
        a(f'v_xor_b32 v{t}, v{t}, v{vE+2}'); a(f'v_add_u32 v{t}, {XO}, v{t}')
        for k in range(1, 4): a(f'v_xor_b32 v{t+k}, {32*k}, v{t}')
        for k in range(4): a(f'ds_read_b128 {R("a", dst+4*k, 4)}, v{t+k}')
    a('s_waitcnt lgkmcnt(4)')
    pf = list(later)
    qm = lambda c, k, b: mfma(R('v', vQ+16*c, 16), R('a', aW1B + (c*4+k)*4, 4), R('a', b+4*k, 4), R('v', vQ+16*c, 16))
    for c in range(4):
        for k in range(4):
            a(qm(c, k, aBX))
            for x in pf[:4]: a(x)
            pf = pf[4:]
    assert not pf
    if P.d3: a('s_waitcnt lgkmcnt(0)'); a('s_barrier')
    a(f's_waitcnt vmcnt({VW})')
    for x in bread: a(x)
    stamp(9)
    a('s_waitcnt lgkmcnt(0)')
    pf = list(PF)
    for k in range(5):
        a(m1(0, k, vN, vQ))
        n = 3 if k < 4 else 99
        for x in pf[:n]: a(x)
        pf = pf[n:]
    a('.p2align 3')
    a.label('L_first')
    a(f'v_bfe_u32 v{vDEG}, v{vINFO}, 16, 6')
    a(f's_mov_b32 s{sT}, 1')
    for c in range(4):
        cn = (c + 1) & 3
        if c == 3: a('s_waitcnt lgkmcnt(0)')
        for k in range(5):
            a(m1(cn, k, vN + 16*cn if c < 3 else vY, vQ + 16*cn))
            if c == 2:
                if k == 0:
                    a(f's_waitcnt vmcnt({VW3+4})'); a(f's_cmp_eq_u32 s{sLNEXT}, 0'); a('s_cbranch_scc1 L_w2')
                    a(f's_waitcnt vmcnt({P.fs})'); a.label('L_w2')
                a(breadk[k])
            for i in range(3*k, 3*k + (3 if k < 4 else 4)): a(f'v_exp_f32 v{vD+16*c+i}, v{vN+16*c+i}')
        align8(a)
        for p in range(8):
            d = R('v', vD + 16*c + 2*p, 2)
            a(f'v_pk_add_f32 {d}, {d}, 1.0 op_sel_hi:[1,0]')
    if P.d3: a(f's_cmp_eq_u32 s{sLNEXT}, 0'); a('s_cbranch_scc1 L_second')
    else: a(f's_cmp_ge_u32 s{sT}, s{sL}'); a('s_cbranch_scc1 L_flush')
    oth = f's_sub_u32 s{sOTH}, s{sSUM}, s{sSLOT}'
    bnext = f'v_add_u32 v{vBE}, s{sOTH}, v{vBE0}'
    m0top = lambda lv: m0e if lv == 1 else m0x
    def rows(name, lv, vm, send, three=False):
        a('.p2align 3')
        a.label(name)
        for c in range(4):
            cn = (c + 1) & 3
            y = vY + 16 * (c & 1); yn = vY + 16 * (cn & 1)
            S = [[] for _ in range(5)]
            V = [[] for _ in range(5)]
            cmpx = f'v_cmpx_lt_u32 vcc, s{sT}, v{vDEG}'
            if c == 0:
                S[1] = ['s_mov_b64 exec, -1']; S[2] = [jump[0]]; S[3] = [jump[1]]
                if lv == 0:
                    V[1] = xaddr[:2]; V[2] = xaddr[2:]; V[3] = [eaddr]
                    V[4] = dmax + [m0e, ell_read[0], dmae, ell_read[1]] + ell_adv + [cmpx]
                if lv == 1:
                    V[1] = [eaddr] + xaddr[:2]; V[2] = xaddr[2:]; S[3] += [dmae]; S[4] = [m0x, ell_read[1]]
                    V[4] = dmax + ell_read[:1] + ell_adv + [cmpx]
            if c == 1:
                S[0] = [adv[0]]
                if three: S[0], S[1], S[2] = [adv3[0]], [adv3[1]], [adv3[2]]
                S[3] = [f's_add_u32 s{sT}, s{sT}, 1']
                V[4] = [baddr[0]]
            if c == 2:
                for k in range(5): S[k] = [breadk[k]]
                S[0].insert(0, f's_waitcnt vmcnt({vm})')
                S[4].insert(0, 's_waitcnt lgkmcnt(3)')
            if c == 3:
                S[0] = ['s_waitcnt lgkmcnt(0)']
                if P.stamp == 2: S[0] = ['s_memrealtime s[86:87]', 's_waitcnt lgkmcnt(0)', f's_mov_b32 m0, s{sT}', 's_nop 0', f'v_writelane_b32 v{vMAX}, s86, m0']
                S[1] = [] if three else [oth]
                S[2] = [m0top(lv)]
                S[3] = [f's_cmp_lt_u32 s{sT}, s{send}']
                V[4] = [bnext]
            for k in range(5):
                if (c, k) != (0, 0): a(m1(cn, k, yn, vQ + 16*cn))
                for x in S[k]: a(x)
                for i in range(3*k, 3*k + (3 if k < 4 else 4)): a(f'v_exp_f32 v{vE+i}, v{y+i}')
                for x in V[k]: a(x)
            align8(a)
            for p in range(8):
                yy, nn, dd, ee = R('v', y+2*p, 2), R('v', vN+16*c+2*p, 2), R('v', vD+16*c+2*p, 2), R('v', vE+2*p, 2)
                a(f'v_pk_fma_f32 {yy}, {yy}, {dd}, {nn}')
                a(f'v_pk_fma_f32 {dd}, {dd}, {ee}, {dd}')
                a(f'v_pk_fma_f32 {nn}, {nn}, {ee}, {yy}')
        a(m1(1, 0, vY + 16, vQ + 16))
        a(f's_cbranch_scc1 {name}')
    if P.d3:
        a(oth); a(m0top(P.lvs)); a(bnext)
        a(f's_cmp_ge_u32 s{sT}, s55')
        a(m1(1, 0, vY + 16, vQ + 16))
        a('s_cbranch_scc1 L_deepen')
        rows('L_srow', P.lvs, P.svm, 55)
        a.label('L_deepen')
        a('s_mov_b64 exec, -1')
        a(f's_mul_i32 s34, s{sWAVE}, {SLOT}'); a(f's_add_u32 s34, s34, {XO}'); a('s_mov_b32 m0, s34')
        for x in xaddr + [eaddr] + dmax + [f's_add_u32 m0, s34, {4*XP}', ell_read[0], dmae, ell_read[1]] + jump + ell_adv: a(x)
        a(f's_add_u32 s{sSUM}, s{sSUM}, s34')
        a(m0top(P.lv))
        a(f's_cmp_ge_u32 s{sT}, s{sL}')
        a('s_waitcnt lgkmcnt(0)')
        a('s_cbranch_scc1 L_flush')
        rows('L_row', P.lv, VW3, sL, True)
    else:
        a(oth); a(m0top(P.lv)); a(bnext)
        if P.thr: a(f's_cmp_ge_u32 s{sT}, s55')
        a(m1(1, 0, vY + 16, vQ + 16))
        if P.thr:
            a.raw('; the first rows run with a shorter look-ahead')
            a('s_cbranch_scc1 L_row')
            a(m0top(P.lvs))
            rows('L_srow', P.lvs, P.svm, 55)
            a(m0top(P.lv))
            a(f's_cmp_ge_u32 s{sT}, s{sL}'); a('s_cbranch_scc1 L_flush')
        rows('L_row', P.lv, VW, sL)
    a.label('L_flush')
    if P.stamp:
        a(f's_cmp_lg_u32 s{88+10}, 0'); a('s_cbranch_scc1 L_st10'); stamp(10); a.label('L_st10')
        stamp(11)
    a('s_mov_b64 exec, -1')
    if P.stamp == 2:
        a(f'v_writelane_b32 v{vMAX}, s{sL}, 0')
        a(f'v_mbcnt_lo_u32_b32 v{vE}, -1, 0'); a(f'v_mbcnt_hi_u32_b32 v{vE}, -1, v{vE}'); a(f'v_lshlrev_b32 v{vE}, 2, v{vE}')
        a('s_lshl_b32 s3, s2, 2'); a(f's_add_u32 s3, s3, s{sWAVE}'); a('s_lshl_b32 s3, s3, 8'); a(f's_add_u32 s3, s3, {WS_STAMP + 65536}')
        a(f's_cmp_eq_u32 s{sLNEXT}, 0'); a('s_cselect_b32 s56, 128, 0'); a('s_add_u32 s3, s3, s56')
        a('s_mov_b32 exec_hi, 0')
        a(f'buffer_store_dword v{vMAX}, v{vE}, {srdn(SW)}, s3 offen')
        a('s_mov_b64 exec, -1')
    a(f'v_and_b32 v{vE+8}, 16, v{vBE0}')
    a(f's_cmp_eq_u32 s{sLNEXT}, 0')
    a(f'v_lshlrev_b32 v{vMAX}, 4, v{vE+8}')
    a('s_cbranch_scc1 L_last')
    def g3(c, i):
        u = 2*c + (i >> 1); dt = i & 1
        acc = R('v', vY + 16*dt, 16)
        return mfma(acc, R('a', aW2 + (dt*8+u)*4, 4), R('v', vE + 8*(c & 1) + 4*(i >> 1), 4), acc if u else '0')
    b1r = [f'ds_read_b128 {R("v", vQ+4*i, 4)}, v{vMAX} offset:{B1T + 16*i}' for i in range(16)]
    b2r = [f'ds_read_b128 {R("v", vD+4*i, 4)}, v{vMAX} offset:{B2T + 16*i}' for i in range(8)]
    rcp = lambda c: [f'v_rcp_f32 v{vD+16*c+i}, v{vD+16*c+i}' for i in range(16)]
    hcv = lambda c: [f'v_cvt_pk_bf16_f32 v{vE+8*(c&1)+p}, v{vN+16*c+2*p}, v{vN+16*c+2*p+1}' for p in range(8)]
    mul = [f'v_mul_f32 v{vD+i}, v{vD+i}, v{vDEG}' for i in range(32)]
    dpp = [f'v_add_f32_dpp v{vD+i}, v{vD+i}, v{vD+i} quad_perm:[1,0,3,2] row_mask:0xf bank_mask:0xf' for i in range(32)]
    cvt = [f'v_cvt_pk_bf16_f32 v{vE+p}, v{vD+2*p}, v{vD+2*p+1}' for p in range(16)]
    sto = [f'buffer_store_dwordx4 {R("v", vE+4*i, 4)}, v{vINFO}, {srdn(SO)}, 0 offen offset:{16*i}{P.pol_out}' for i in range(4)]
    def window(M, G):
        assert len(M) == len(G)
        for m, g in zip(M, G):
            if m: a(m)
            for x in g: a(x)
    def flush(more):
        a('.p2align 3')
        if more:
            for x in b1r[:4] + baddr: a(x)
        a(f'v_bfe_u32 v{vE+9}, v{vINFO}, 22, 2')
        a(f'v_lshlrev_b32 v{vE+8}, 2, v{vE+8}')
        a(f'v_cmp_ne_u32 s[58:59], 0, v{vE+9}')
        a(f'v_cmp_ne_u32 s[60:61], 3, v{vE+9}')
        a(f'v_cmp_ne_u32 s[62:63], 0, v{vDEG}')
        a(f'v_mad_u32_u16 v{vINFO}, v{vINFO}, s{s128}, v{vE+8}')
        a(f'v_cvt_f32_u32 v{vDEG}, v{vDEG}')
        a(f's_mov_b32 s3, {f32(2.0**120)}')
        align8(a)
        for i in range(16):
            acc = R('v', vE + 2*(i & 1), 2)
            if i < 2: a(f'v_pk_mul_f32 {acc}, {R("v", vD+4*i, 2)}, {R("v", vD+4*i+2, 2)}')
            else: a(f'v_pk_fma_f32 {acc}, {R("v", vD+4*i, 2)}, {R("v", vD+4*i+2, 2)}, {acc}')
        a(f'v_pk_add_f32 {R("v", vE, 2)}, {R("v", vE, 2)}, {R("v", vE+2, 2)}')
        chk = [f'v_add_f32 v{vE}, v{vE}, v{vE+1}', f'v_cmp_nge_f32 s[56:57], s3, v{vE}']
        for c in range(4):
            r = rcp(c)
            if c == 0 and more:
                a('s_waitcnt lgkmcnt(0)')
                rd = bread + b1r[4:11]
                window([qm(0, k, aQB) for k in range(4)], [rd[3*k:3*k+3] + r[4*k:4*k+4] + chk[k:k+1] for k in range(4)])
            elif c == 0:
                for x in r[:4] + chk[:1] + r[4:8] + chk[1:] + r[8:]: a(x)
            elif more:
                h = hcv(c - 1)
                M = [qm(c, 0, aQB), qm(c, 1, aQB), g3(c-1, 0), g3(c-1, 1), qm(c, 2, aQB), g3(c-1, 2), qm(c, 3, aQB), g3(c-1, 3)]
                Vv = [h[:4], h[4:], r[:2], r[2:4], r[4:6], r[6:9], r[9:12], r[12:]]
                if c == 1:
                    a('s_waitcnt lgkmcnt(3)')
                    Pre = [[m0e, b1r[11]], [dmae], [m0x], dmax[:2], dmax[2:], [jump[0]] + ell_read, [jump[1]], ['s_waitcnt lgkmcnt(2)']]
                    Post = [[eaddr], xaddr[:2], xaddr[2:], [], [], [], adv3 if P.d3 else adv, ell_adv + baddr]
                if c == 2:
                    Pre = [b1r[12:14], b1r[14:], b2r[:2], b2r[2:4], b2r[4:6], b2r[6:7], b2r[7:], ['s_waitcnt lgkmcnt(8)']]
                    Post = [[]] * 8
                if c == 3:
                    Pre = [[], ['s_waitcnt lgkmcnt(0)'], [], [], [], [], [], []]
                    Post = [[], [], mul[:1], mul[1:2], [], [], [], mul[2:3]]
                window(M, [Pre[i] + Vv[i] + Post[i] for i in range(8)])
            else:
                for x in hcv(c - 1): a(x)
                Pre = [b2r[2*q:2*q+2] if c == 2 else [] for q in range(4)]
                Post = [[], [], [], []]
                if c == 3: Pre[1] = ['s_waitcnt lgkmcnt(0)']; Post[3] = mul[:3]
                window([g3(c-1, q) for q in range(4)], [Pre[q] + r[4*q:4*q+4] + Post[q] for q in range(4)])
            align8(a)
            for p in range(8):
                nn, dd = R('v', vN+16*c+2*p, 2), R('v', vD+16*c+2*p, 2)
                a(f'v_pk_mul_f32 {nn}, {nn}, {dd}')
        for x in hcv(3): a(x)
        window([g3(3, q) for q in range(4)],
               [['s_and_b64 s[56:57], s[56:57], s[62:63]'] + mul[3:9], [f's_or_b64 s[{sBAD}:{sBAD+1}], s[{sBAD}:{sBAD+1}], s[56:57]'] + mul[9:15],
                ['s_movk_i32 s3, 0x207'] + mul[15:21], mul[21:] + ['s_mov_b64 exec, s[62:63]']])
        align8(a)
        for p in range(16):
            yy, dd = R('v', vY+2*p, 2), R('v', vD+2*p, 2)
            a(f'v_pk_fma_f32 {dd}, {yy}, s[{sLN2}:{sLN2+1}], {dd}')
        a(f'v_cmp_class_f32_e64 vcc, v{vD}, s3')
        bad = f's_or_b64 s[{sBAD}:{sBAD+1}], s[{sBAD}:{sBAD+1}], vcc'
        if more:
            window([m1(0, k, vN, vQ) for k in range(5)],
                   [['s_mov_b64 exec, s[58:59]', bad] + dpp[:6], [f's_mov_b32 s{sL}, s{sLNEXT}', f's_mov_b32 s{sLNEXT}, 0'] + dpp[6:12],
                    dpp[12:18], dpp[18:24], dpp[24:]])
        else:
            for x in ['s_mov_b64 exec, s[58:59]', bad] + dpp: a(x)
        a('s_mov_b64 exec, s[60:61]'); a('s_mov_b32 s55, 0')
        for x in cvt[:8] + sto[:2] + cvt[8:] + sto[2:]: a(x)
        a('s_mov_b64 exec, -1')
    flush(True)
    a(f'v_accvgpr_read_b32 v{vINFO}, a{aINFO}')
    a('s_branch L_first')
    if P.d3:
        a.label('L_second')
        a(m0top(P.lv)); a(bnext)
        a(f's_cmp_ge_u32 s{sT}, s{sL}'); a('s_cbranch_scc1 L_flush')
        a(m1(1, 0, vY + 16, vQ + 16))
        a('s_branch L_row')
    a.label('L_last')
    flush(False)
    if P.stamp:
        a('s_waitcnt vmcnt(0)'); stamp(12); stamp(13, True)
        for i in range(14): a(f'v_writelane_b32 v1, s{88+i}, {i}')
        a(f'v_writelane_b32 v1, s{sCNT}, 14')
        a('s_getreg_b32 s3, hwreg(HW_REG_XCC_ID, 0, 4)'); a('v_writelane_b32 v1, s3, 15')
        a('v_mbcnt_lo_u32_b32 v2, -1, 0'); a('v_mbcnt_hi_u32_b32 v2, -1, v2'); a('v_lshlrev_b32 v2, 2, v2')
        a('s_lshl_b32 s3, s2, 2'); a(f's_add_u32 s3, s3, s{sWAVE}'); a('s_lshl_b32 s3, s3, 6'); a(f's_add_u32 s3, s3, {WS_STAMP}')
        a('s_mov_b64 exec, 0xffff')
        a(f'buffer_store_dword v1, v2, {srdn(SW)}, s3 offen')
        a('s_mov_b64 exec, -1')
    a(f's_cmp_eq_u64 s[{sBAD}:{sBAD+1}], 0')
    a('v_mov_b32 v1, 0'); a('v_mov_b32 v2, 1')
    a('s_cbranch_scc1 L_nobad')
    a(f'ds_write_b32 v1, v2 offset:{FLAG}')
    a.label('L_nobad')
    a('s_waitcnt lgkmcnt(0)')
    a('s_barrier')
    a(f'ds_read_b32 v2, v1 offset:{FLAG}')
    a('s_waitcnt lgkmcnt(0)')
    a('v_readfirstlane_b32 s3, v2')
    a('s_cmp_lg_u32 s3, 0'); a('s_cbranch_scc1 L_slow')
    if P.diag:
        if P.diagx:
            a('s_getreg_b32 s3, hwreg(HW_REG_XCC_ID, 0, 4)'); a('s_xor_b32 s3, s3, s2'); a(f's_and_b32 s3, s3, {P.diagx}'); a('s_cbranch_scc0 L_end')
        a.label('L_diag')
        a('s_memrealtime s[86:87]'); a('s_waitcnt lgkmcnt(0)')
        a(f's_sub_u32 s86, s86, s{sTAG}'); a(f's_cmp_lt_u32 s86, {P.diag}'); a('s_cbranch_scc1 L_diag')
    a.label('L_end')
    a('s_endpgm')

    for b, lo, hi in retry:
        a.label(f'L_retry{b}')
        if P.stamp == 4:
            a('s_add_u32 s89, s89, 1'); a('s_bcnt1_i32_b64 s3, vcc'); a('s_cmp_eq_u32 s3, 1'); a('s_addc_u32 s90, s90, 0')
        for i in range(lo, hi): rec(i)
        a('s_waitcnt vmcnt(0)')
        a(f's_sub_u32 s{sCNT}, s{sCNT}, 1')
        a(f's_cbranch_scc0 L_chk{b}')
        a(f's_mov_b32 s{sSLOW}, 1')
        a('s_branch L_skipB')
    a.label('L_slow0')
    a('s_waitcnt vmcnt(0)')
    a('s_barrier')
    for x in lateq + later: a(x)
    a.label('L_slow')
    a('s_mov_b64 exec, -1')
    a('s_waitcnt vmcnt(0) lgkmcnt(0)')
    a('s_load_dwordx4 s[8:11], s[0:1], 16')
    a('s_barrier')
    vL, vS, vH, vT0, vT1, vOA, vD4 = 240, 241, 242, 244, 245, 246, 252
    a(f'v_mbcnt_lo_u32_b32 v{vL}, -1, 0'); a(f'v_mbcnt_hi_u32_b32 v{vL}, -1, v{vL}')
    a(f'v_and_b32 v{vS}, 31, v{vL}')
    a(f'v_lshrrev_b32 v{vH}, 5, v{vL}')
    a(f's_lshl_b32 s3, s{sWAVE}, 10')
    a(f'v_lshl_add_u32 v4, v{vL}, 4, s3')
    for i in range(4): a(f'v_mov_b32 v{i}, 0')
    for i in range(13): a(f'ds_write_b128 v4, v[0:3] offset:{OACC + 4096*i}')
    a('s_waitcnt lgkmcnt(0)')
    a('s_barrier')
    srd(a, SD, 10, E * 4); srd(a, SS, 8, E * 4)
    sE0, sJj = 56, 57
    a(f's_lshl_b32 s{sE0}, s{sWAVE}, 9')
    a(f'v_lshlrev_b32 v243, 4, v{vS}')
    a.label('L_s_blk')
    a(f'buffer_load_dwordx4 {R("v", vD4, 4)}, v243, {srdn(SD)}, s{sE0} offen')
    a(f's_mov_b32 s{sJj}, 0')
    a('s_waitcnt vmcnt(0)')
    a.label('L_s_sub')
    a(f'v_subrev_u32 v248, s{sNB0}, v{vD4}')
    a(f'v_cmp_gt_u32 s[60:61], s{sNNODE}, v248')
    a('s_cmp_eq_u64 s[60:61], 0'); a('s_cbranch_scc1 L_s_next')
    a(f's_add_u32 s3, s{sE0}, s{sJj}')
    a(f'buffer_load_dword v{vT0}, v243, {srdn(SS)}, s3 offen')
    a(f'v_lshlrev_b32 v247, 8, v{vH}')
    for i in range(16): a(f'ds_read_b128 {R("v", vQ+4*i, 4)}, v247 offset:{B1T + 16*i}')
    a(f'v_lshlrev_b32 v247, 4, v{vH}')
    a(f'v_add_lshl_u32 v{vT1}, v243, s3, 3')
    a(f'v_add_u32 v{vT1}, v{vT1}, v247')
    a(f'v_lshl_add_u32 v249, v{vD4}, 7, v247')
    a(f'v_mul_u32_u24 v{vOA}, 260, v248')
    a(f'v_lshl_add_u32 v{vOA}, v{vH}, 7, v{vOA}')
    a('s_waitcnt vmcnt(0)')
    a(f'v_lshl_add_u32 v{vT0}, v{vT0}, 7, v247')
    a('s_mov_b64 exec, s[60:61]')
    for k in range(4): a(f'buffer_load_dwordx4 {R("a", aBX+4*k, 4)}, v{vT0}, {srdn(SX)}, s{sXO} offen offset:{32*k}')
    a(f'buffer_load_dwordx4 {R("a", aBE, 4)}, v{vT1}, {srdn(SE)}, 0 offen')
    for k in range(4): a(f'buffer_load_dwordx4 {R("v", vE+4*k, 4)}, v249, {srdn(SX)}, s{sXO} offen offset:{32*k}')
    a('s_waitcnt vmcnt(0) lgkmcnt(0)')
    for c in range(4):
        q = R('v', vQ+16*c, 16)
        for k in range(4): a(mfma(q, R('a', aW1B + (c*4+k)*4, 4), R('v', vE+4*k, 4), q))
        for k in range(5): a(m1(c, k, vQ+16*c, vQ+16*c))
    for i in range(64): a(f'v_exp_f32 v{vD+i}, v{vQ+i}')
    for i in range(64): a(f'v_add_f32 v{vD+i}, 1.0, v{vD+i}')
    for i in range(64): a(f'v_rcp_f32 v{vD+i}, v{vD+i}')
    for i in range(64): a(f'v_mul_f32 v{vD+i}, v{vD+i}, v{vQ+i}')
    for i in range(32): a(f'v_cvt_pk_bf16_f32 v{vN+i}, v{vD+2*i}, v{vD+2*i+1}')
    a(f'v_lshlrev_b32 v247, 7, v{vH}')
    for i in range(8): a(f'ds_read_b128 {R("v", vQ+4*i, 4)}, v247 offset:{B2T + 16*i}')
    for dt in range(2):
        acc = R('v', vY + 16*dt, 16)
        for u in range(8): a(mfma(acc, R('a', aW2 + (dt*8+u)*4, 4), R('v', vN + 4*u, 4), acc if u else '0'))
    a('s_waitcnt lgkmcnt(0)')
    for i in range(32): a(f'v_fma_f32 v{vY+i}, v{vY+i}, s{sLN2}, v{vQ+i}')
    for i in range(32): a(f'ds_add_f32 v{vOA}, v{vY+i} offset:{OACC + 4*i}')
    a('s_mov_b64 exec, -1')
    a('s_waitcnt lgkmcnt(0)')
    a.label('L_s_next')
    for i in range(3): a(f'v_mov_b32 v{vD4+i}, v{vD4+i+1}')
    a(f's_add_u32 s{sJj}, s{sJj}, 4')
    a(f's_cmp_lt_u32 s{sJj}, 16'); a('s_cbranch_scc1 L_s_sub')
    a(f's_add_u32 s{sE0}, s{sE0}, 2048')
    a(f's_cmp_lt_u32 s{sE0}, {E*4}'); a('s_cbranch_scc1 L_s_blk')
    a('s_barrier')
    a(f's_lshl_b32 s3, s{sWAVE}, 1')
    a(f'v_add_u32 v1, s3, v{vH}')
    a.label('L_s_out')
    a(f'v_cmp_gt_u32 vcc, s{sNNODE}, v1')
    a('v_mul_u32_u24 v4, 260, v1')
    a(f'v_lshl_add_u32 v4, v{vS}, 3, v4')
    a(f'v_add_u32 v4, {OACC}, v4')
    a(f'v_add_u32 v5, s{sNB0}, v1')
    a('v_lshlrev_b32 v5, 7, v5')
    a(f'v_lshl_add_u32 v5, v{vS}, 2, v5')
    a('s_and_b64 exec, exec, vcc')
    a('s_cbranch_execz L_s_end')
    a('ds_read2_b32 v[2:3], v4 offset0:0 offset1:1')
    a('s_waitcnt lgkmcnt(0)')
    a('v_cvt_pk_bf16_f32 v2, v2, v3')
    a(f'buffer_store_dword v2, v5, {srdn(SO)}, 0 offen')
    a('v_add_u32 v1, 8, v1')
    a('s_branch L_s_out')
    a.label('L_s_end')
    a('s_endpgm')
    a('.p2align 7')
    a.raw('.type L_table,@object')
    a.label('L_table')
    T = pattern_table(BN0) + pattern_table(BN1)
    for i in range(0, 512, 8): a.raw('.long ' + ', '.join(hex(x) for x in T[i:i+8]))
    a.raw('.size L_table, 2048')
    return a

HEADER = """;
;
;     a table row {start, count} per bucket to d_ws.  Everything handed over carries this launch's tag
"""
if __name__ == '__main__':
    for kv in sys.argv[2:]:
        k, v = kv.split('=')
        cur = getattr(P, k)
        setattr(P, k, int(v) if isinstance(cur, int) else (' ' + v.replace('+', ' ') if v else ''))
    k = gen()
    for p in check_all_edges(k): print('HAZARD on branch edge', p, file=sys.stderr)
    print('instrs', sum(1 for x in k.items if not isinstance(x, str)), 'auto nops', k.nops, file=sys.stderr)
    out = open('cdna_kernels/' + NAME + '.s.ref').read().split('; Override launch')[0]
    out += f'; @launch grid=({NB},1,1) block=(256,1,1) lds={lds_bytes()}\n'
    out += HEADER + '.amdgcn_target "amdgcn-amd-amdhsa--gfx950"\n.text\n'
    out += f'.globl {NAME}_kernel\n.type {NAME}_kernel,@function\n' + k.text().replace('; aligned\n', '')
    out += f'''.section .rodata,"a"
.p2align 6
.amdhsa_kernel {NAME}_kernel
  .amdhsa_next_free_vgpr 512
  .amdhsa_next_free_sgpr 102
  .amdhsa_accum_offset 256
  .amdhsa_group_segment_fixed_size 0
  .amdhsa_kernarg_size 88
  .amdhsa_user_sgpr_count 2
  .amdhsa_user_sgpr_kernarg_segment_ptr 1
  .amdhsa_system_sgpr_workgroup_id_x 1
.end_amdhsa_kernel
'''
    open(sys.argv[1], 'w').write(out)
```

```python
import sys, struct
from asmlib import Asm, Ins, check_all_edges

NAME = 'standalone__edge_featured_mpnn_mpnn__graph'
N, E = 50000, 800000
NB = 256
NCH, CH = 256, 3125
WS_REC, WS_TAB = 0, 8 << 20
WS_SIZE = 10 << 20
WS_STAMP = (9 << 20) + (512 << 10)
DUMMY = 0x4000FFFF
def f32(x): return struct.unpack('<I', struct.pack('<f', x))[0]
NLOG2E = f32(-1.4426950408889634)
NLN2 = f32(-0.6931471805599453)

class P:
    depth = 2
    stamp = 0
    efrac = 100
    xfrac = 100
    limit = 3000
    r2 = 1
    trs = 2304
    tl = 2
    w3 = 0
    tearly = 0
    e1 = 0
    e2 = 3
    e3 = 3
    d3 = 0
    w2p = 1
    pad = 0
    late = 0
    w1 = 4
    w2 = 9
    iw = 1
    bat = 1
    fs = 2
    efirst = 0
    peek = 0
    only = 1
    lvs = 1
    lv = 1
    tk = 2
    tp = 4
    pc = 2
    diagx = 0
    bn0 = 199
    par = 0
    stag = 1
    st1 = 0
    tpos = 1
    probe = 1
    tagst = 0
    wpos = 1
    ninit = 13
    pol_st = ' sc1'
    xpre = ''
    svm = 4
    thr = 10
    xpos = 4
    two = 0
    classes = 4
    codepre = 2
    estr = 128
    srcpos = 8
    epre = ''
    diag = 0
    force = 0
    pol_in = ' nt'
    pol_e = ''
    pol_x = ''
    pol_out = ''

CNT, HB, HIST, FLAG = 0, 4096, 5120, 5376
B1T, B2T, TT = 6144, 6656, 7168
START = TT
EX, EE = 8192, 40960
RING = 73728
NSLOT = 15
MAP = RING
STAGE = EX
LDS_TOTAL = 163840
WST = LDS_TOTAL - 52 * 1024
XP = 1056
SLOT = 4 * XP + 1024
XO = RING + 8 * SLOT
OACC = 8192
def lds_bytes(): return LDS_TOTAL

PATTERNS = {
 191: [(0,0,'H',1),(2,0,'H',2),(3,0,'H',3),(3,1,'H',16),(2,1,'H',13),(0,0,'S',30),(1,1,'H',14),(1,0,'S',32),(2,0,'S',28),(3,0,'S',26),(0,1,'H',16),(2,1,'S',6),(1,1,'S',4)],
 192: [(0,0,'H',1),(2,0,'H',1),(3,0,'H',5),(3,1,'H',15),(2,1,'H',12),(0,0,'S',30),(1,1,'H',14),(1,0,'S',32),(2,0,'S',30),(3,0,'S',22),(0,1,'H',16),(3,1,'S',2),(2,1,'S',8),(1,1,'S',4)],
 193: [(0,0,'H',1),(2,0,'H',2),(3,0,'H',3),(3,1,'H',16),(2,1,'H',11),(0,0,'S',30),(1,1,'H',14),(1,0,'S',32),(2,0,'S',28),(3,0,'S',26),(0,1,'H',16),(2,1,'S',10),(1,1,'S',4)],
 194: [(0,0,'H',1),(2,0,'H',2),(3,0,'H',3),(3,1,'H',16),(2,1,'H',10),(0,0,'S',30),(1,1,'H',14),(1,0,'S',32),(2,0,'S',28),(3,0,'S',26),(0,1,'H',16),(2,1,'S',12),(1,1,'S',4)],
 195: [(0,0,'H',1),(2,0,'H',2),(3,0,'H',2),(3,1,'H',16),(2,1,'H',10),(0,0,'S',30),(1,1,'H',14),(1,0,'S',32),(2,0,'S',28),(3,0,'S',28),(0,1,'H',16),(2,1,'S',12),(1,1,'S',4)],
 196: [(0,0,'H',1),(2,0,'H',2),(3,0,'H',2),(3,1,'H',16),(2,1,'H',9),(0,0,'S',30),(1,1,'H',14),(1,0,'S',32),(2,0,'S',28),(3,0,'S',28),(0,1,'H',16),(2,1,'S',14),(1,1,'S',4)],
 197: [(0,0,'H',1),(2,0,'H',2),(3,0,'H',2),(3,1,'H',16),(2,1,'H',9),(0,0,'S',30),(1,1,'H',13),(1,0,'S',32),(2,0,'S',28),(3,0,'S',28),(0,1,'H',16),(2,1,'S',14),(1,1,'S',6)],
 198: [(0,0,'H',1),(2,0,'H',4),(3,1,'H',12),(2,1,'H',12),(0,0,'S',30),(1,1,'H',13),(1,0,'S',32),(2,0,'S',24),(3,0,'S',32),(0,1,'H',16),(3,1,'S',8),(2,1,'S',8),(1,1,'S',6)],
 199: [(1,0,'H',1),(2,0,'H',1),(3,0,'H',3),(3,1,'H',12),(2,1,'H',11),(0,0,'S',32),(1,1,'H',13),(1,0,'S',30),(2,0,'S',30),(3,0,'S',26),(0,1,'H',16),(3,1,'S',8),(2,1,'S',10),(1,1,'S',6)],
 200: [(0,0,'H',1),(2,0,'H',1),(3,0,'H',2),(3,1,'H',12),(2,1,'H',11),(0,0,'S',30),(1,1,'H',13),(1,0,'S',32),(2,0,'S',30),(3,0,'S',28),(3,1,'S',8),(0,1,'H',16),(2,1,'S',10),(1,1,'S',6)],
}
def pattern_table(BN):
    free = {(w, ph): list(range(32)) for w in range(4) for ph in range(2)}
    T = [None] * BN; p = 0; segs = []
    for w, ph, t, n in PATTERNS[BN]: segs.append((w, ph, t, p, n)); p += n
    assert p == BN
    for t0 in 'HS':
        for w, ph, t, p0, n in segs:
            if t != t0: continue
            for i in range(n):
                pos = free[(w, ph)].pop(0)
                if t == 'H': assert pos < 16; free[(w, ph)].remove(pos + 16)
                T[p0 + i] = (((w * 2 + ph) * 4096 + pos * 4 + 128) << 16) | (64 if t == 'H' else 128)
    assert all(not v for v in free.values())
    return T + [128] * (256 - BN)
def bucket_map():
    b0, b1 = P.bn0, 391 - P.bn0
    A = 128 * b0; M0 = -(-(1 << 24) // b0); M1 = -(-(1 << 24) // b1)
    for dn in range(N):
        f = dn * M0 + max(dn - A, 0) * (M1 - M0)
        assert f < 1 << 32 and f >> 24 == (dn // b0 if dn < A else 128 + (dn - A) // b1), dn
    return b0, b1, A, M0, M1

vN, vD, vQ, vY, vE = 0, 64, 128, 192, 224
vEX, vEE, vCX, vAX, vAE, vCE, vBX0, vBE0, vBX, vBE, vINFO, vDEG, vMAX = 240, 244, 245, 246, 247, 248, 249, 250, 251, 252, 253, 254, 255
aW1A, aW1C, aW1B, aW2, aBX, aBE, aJUNK = 0, 64, 80, 144, 208, 224, 228
aQB, aINFO = 232, 229
SX, SE, SW, SO, SD, SS = 12, 16, 20, 24, 68, 72
sB, sNB0, sNNODE, sWAVE, sMAP, sCOL = 28, 29, 30, 31, 32, 33
sXO = 36
s128, sSLOT, sRING0, sRING1, sT, sL, sLNEXT, sQROW = 40, 41, 42, 43, 44, 45, 46, 47
sLN2, sBAD = 48, 50
sJ, sSUM, sOTH = 52, 53, 54
sINC, sJUMP, sSTEP = 4, 6, 8
sSLOW, sCNT = 66, 67
mLO, mBN, mNN, mCH = 's[76:77]', 's[78:79]', 's[80:81]', 's[42:43]'
sTAG, sTAG8, sTAGH = 82, 83, 84
def R(p, b, n): return f'{p}[{b}:{b+n-1}]'
def srdn(s): return f's[{s}:{s+3}]'
SDWA = 'dst_sel:DWORD dst_unused:UNUSED_PAD src0_sel:DWORD src1_sel:'

def srd(a, d, lo, size):
    a(f's_mov_b32 s{d}, s{lo}'); a(f's_and_b32 s{d+1}, s{lo+1}, 0xffff')
    a(f's_mov_b32 s{d+2}, {size}'); a(f's_mov_b32 s{d+3}, 0x20000')
def wave_scan(a, v, fill=()):
    fill = list(fill)
    steps = [f'row_shr:{sh} row_mask:0xf bank_mask:0xf bound_ctrl:0' for sh in (1, 2, 4, 8)]
    steps += ['row_bcast:15 row_mask:0xa bank_mask:0xf', 'row_bcast:31 row_mask:0xc bank_mask:0xf']
    for s in steps:
        for x in fill[:2]: a(x)
        fill = fill[2:]
        a(f'v_add_u32_dpp v{v}, v{v}, v{v} {s}')
    for x in fill: a(x)
def mfma(d, A, B, C): return f'v_mfma_f32_32x32x16_bf16 {d}, {A}, {B}, {C}'
def m1(c, k, dst, first_c):
    first = k == 0
    if P.efirst: k = (k + 4) % 5
    A = R('a', aW1A + (c * 4 + k) * 4, 4) if k < 4 else R('a', aW1C + c * 4, 4)
    B = R('a', aBX + k * 4, 4) if k < 4 else R('a', aBE, 4)
    return mfma(R('v', dst, 16), A, B, R('v', first_c if first else dst, 16))
def isize(x):
    if x.endswith(':'): return 0
    op = x.split()[0]
    if op.startswith(('v_mfma', 'v_pk_', 'buffer_', 'ds_', 'global_', 'v_mad_', 'v_max3', 'v_cvt_pk', 'v_lshl_add', 'v_lshl_or', 'v_bfe', 'v_writelane',
                      'v_readlane', 's_mem', 'v_accvgpr', 'v_mbcnt', 'v_add_lshl', 'v_or3', 'v_and_or', 'v_bfi')) or op.endswith(('_e64', '_dpp', '_sdwa')): return 8
    if op.startswith('v_cmp') and not x.split()[1].startswith('vcc'): return 8
    for t in x.replace(',', ' ').split()[1:]:
        try: v = int(t, 0)
        except ValueError: continue
        if not -16 <= v <= 64 and not op.startswith(('s_movk', 's_waitcnt', 's_nop')): return 8
    return 4
def align8(a):
    n = 0; cand = None
    for i in range(len(a.items) - 1, -1, -1):
        it = a.items[i]
        if isinstance(it, str):
            if it.startswith(('.p2align', '; aligned')): break
            continue
        n += isize(it.text)
        if cand is None and isize(it.text) == 4 and it.op in ('v_exp_f32', 'v_rcp_f32', 'v_mul_f32', 'v_add_u32', 'v_lshlrev_b32', 'v_cvt_f32_u32'): cand = i
    if n % 8:
        if cand is None: a('s_nop 0')
        else: a.items[cand] = Ins(a.items[cand].text.replace(a.items[cand].op, a.items[cand].op + '_e64', 1))
    a.raw('; aligned')

def gen():
    D = P.depth
    BN0, BN1, NA, M0, M1 = bucket_map()
    assert D == 2
    VW = 5 * (D - 1)
    a = Asm()
    def stamp(i, real=False):
        if not P.stamp: return
        if P.stamp == 6:
            if i in (2, 3, 4): return
            if i >= 20: i -= 18
        elif i >= 20: return
        if P.stamp == 3: real = True
        if P.stamp == 4 and i not in (0, 13): return
        if P.stamp == 5:
            if i not in (0, 8, 13): return
            real = True
        a(f's_mem{"real" if real else ""}time s[86:87]'); a('s_waitcnt lgkmcnt(0)'); a(f's_mov_b32 s{88+i}, s86')
    def poll(name, load, check, first_issued=False, first_wait=None, only=False):
        a(f's_movk_i32 s{sCNT}, {P.limit}')
        if first_wait is not None:
            if first_wait: a(first_wait)
            check()
            a(f's_cbranch_scc0 {name}_ok')
        elif first_issued: a(f's_branch {name}_chk')
        a.label(name)
        if only: a('s_mov_b64 exec, vcc')
        load()
        if only: a('s_mov_b64 exec, -1')
        a.label(name + '_chk')
        a('s_waitcnt vmcnt(0)')
        check()
        a(f's_cbranch_scc0 {name}_ok')
        a(f's_sub_u32 s{sCNT}, s{sCNT}, 1')
        a(f's_cbranch_scc0 {name}')
        a(f's_mov_b32 s{sSLOW}, 1')
        a.label(name + '_ok')

    epre = [int(ch) for ch in P.epre.strip()]
    xpre = [int(ch) for ch in P.xpre.strip()]
    def warm(pos):
        n = 0
        for i, p in enumerate(epre):
            if p != pos: continue
            a(f'v_add_u32 v124, {i*256*P.estr}, v126')
            if (i + 1) * 256 * P.estr > CH * 32: a(f'v_min_u32 v124, v124, v125')
            a(f'buffer_load_dword a{aJUNK}, v124, {srdn(SE)}, 0 offen')
            n += 1
        for i, p in enumerate(xpre):
            if p != pos: continue
            a('s_lshr_b32 s3, s2, 3'); a('s_lshl_b32 s35, s2, 2'); a('s_add_u32 s3, s3, s35'); a('s_and_b32 s3, s3, 31')
            a(f's_add_u32 s3, s3, {32*i}'); a('s_lshl_b32 s3, s3, 8')
            a('v_add_lshl_u32 v124, v0, s3, 7')
            a(f'buffer_load_dword a{aJUNK}, v124, {srdn(SX)}, s{sXO} offen')
            n += 1
        return n
    a('.p2align 8'); a.label(NAME + '_kernel')
    a(f's_cmp_ge_u32 s2, {NB}'); a('s_cbranch_scc1 L_end')
    stamp(0, True); stamp(1)
    a('s_load_dwordx8 s[4:11], s[0:1], 0')
    a('s_load_dwordx4 s[60:63], s[0:1], 64')
    a('s_load_dwordx2 s[64:65], s[0:1], 80')
    a('s_load_dwordx8 s[52:59], s[0:1], 32')
    a(f's_memrealtime s[{sTAG}:{sTAG+1}]')
    a('s_getpc_b64 s[14:15]')
    a.label('L_pc')
    a('v_lshlrev_b32 v15, 2, v0')
    if P.codepre == 2:
        a('v_min_u32 v3, 4, v0'); a('s_lshr_b32 s3, s2, 3'); a('v_lshl_add_u32 v3, v3, 5, s3'); a('v_lshlrev_b32 v3, 7, v3')
    elif P.codepre: a('v_lshlrev_b32 v3, 7, v0')
    if P.codepre:
        a('v_min_u32 v3, L_slow0-L_pc, v3')
        a(f'global_load_dword a{aJUNK}, v3, s[14:15]')
    a('s_add_u32 s14, s14, L_table-L_pc')
    a('s_addc_u32 s15, s15, 0')
    a(f's_xor_b32 s85, s2, {P.par}'); a('s_and_b32 s85, s85, 1')
    a('v_lshl_add_u32 v3, s85, 10, v15')
    a('global_load_dword v11, v3, s[14:15]')
    a('v_lshrrev_b32 v1, 6, v0')
    a('v_and_b32 v2, 63, v0')
    a(f'v_readfirstlane_b32 s{sWAVE}, v1')
    a('v_lshlrev_b32 v21, 4, v0')
    for i in range(4): a(f'v_mov_b32 v{4+i}, 0')
    a('ds_write_b128 v21, v[4:7]')
    a('v_lshlrev_b32 v3, 3, v0')
    a(f'ds_write_b64 v3, v[4:5] offset:{HB}')
    a('v_mov_b32 v12, 0')
    a('v_mov_b32 v13, 1')
    a('v_lshlrev_b32 v9, 4, v2')
    a(f'v_cmp_gt_u32 vcc, {CH - 3072}, v0')
    a(f's_mul_i32 s3, s2, {CH*4}')
    for s in (SD, SS): a(f's_mov_b32 s{s+2}, {E*4}'); a(f's_mov_b32 s{s+3}, 0x20000')
    a(f's_mov_b64 {mLO}, vcc')
    a(f's_mov_b32 s{sSLOW}, 0')
    if P.stamp == 4: a('s_mov_b32 s89, 0'); a('s_mov_b32 s90, 0')
    a('s_waitcnt lgkmcnt(0)')
    vDs, vSr, vB, vRk, vRec = 32, 48, 64, 80, 96
    a(f's_mov_b32 s{SD}, s10'); a(f's_and_b32 s{SD+1}, s11, 0xffff')
    a(f's_mov_b32 s{SS}, s8'); a(f's_and_b32 s{SS+1}, s9, 0xffff')
    for i in range(4): a(f's_add_u32 s{8+i}, s3, {4096*i}')
    a(f's_lshr_b32 s37, s2, {0 if P.tagst else 3}')
    a(f's_or_b32 s37, s37, s{sWAVE}')
    a('s_cbranch_scc1 L_notag')
    if P.force != 1:
        a(f's_or_b32 s{sTAG}, s{sTAG}, 1')
        a(f'v_mov_b32 v4, s{sTAG}'); a(f'v_mov_b32 v5, s{sTAG+1}')
        a('s_mov_b64 exec, 1')
        if P.tagst: a('global_store_dwordx2 v12, v[4:5], s[62:63] sc1')
        else: a('global_atomic_cmpswap_x2 v12, v[4:7], s[62:63] sc1')
        a('s_mov_b64 exec, -1')
    a.label('L_notag')
    def edge_loads(srdn_, vb, so):
        for i in range(3): a(f'buffer_load_dwordx4 {R("v", vb+4*i, 4)}, v21, {srdn(srdn_)}, s{so+i} offen{P.pol_in}')
        a(f'buffer_load_dword v{vb+12}, v15, {srdn(srdn_)}, s{so+3} offen{P.pol_in}')
    edge_loads(SD, vDs, 8)
    a('v_and_b32 v10, 3, v0')
    a('v_bfe_u32 v16, v0, 2, 4')
    a('v_lshl_add_u32 v10, v16, 3, v10')
    a('v_lshl_add_u32 v10, v1, 2, v10')
    a('v_lshrrev_b32 v16, 1, v0'); a('v_and_b32 v16, 32, v16'); a('v_xor_b32 v16, v16, v2')
    a(f's_cmp_lt_u32 s{sWAVE}, 2')
    a('s_cselect_b64 vcc, -1, 0')
    a('v_cndmask_b32 v10, v16, v10, vcc')
    a('v_lshlrev_b32 v10, 1, v10')
    a('s_cselect_b64 s[54:55], s[54:55], s[58:59]')
    a(f's_cselect_b32 s34, {NLOG2E}, 1.0')
    a('global_load_ushort v10, v10, s[54:55]')
    for i in range(4): a(f'v_mov_b32 v{128+i}, {DUMMY}')
    a(f'v_add_u32 v132, {EX + 16384}, v21')
    init = [f'ds_write_b128 v132, v[128:131] offset:{4096*i}' for i in range(15, -1, -1)]
    init += [f'ds_write_b128 v21, v[128:131] offset:{EX + 4096*i}' for i in range(4)]
    assert 4 <= P.ninit <= 13
    if P.pad: init = init[:4]
    init, init2 = init[:P.ninit], init[P.ninit:]
    C = []
    C += [f's_bfe_u32 s{sB}, s2, 0x20001', f's_lshl_b32 s{sB}, s{sB}, 5', 's_lshr_b32 s3, s2, 3', f's_add_u32 s{sB}, s{sB}, s3',
          f's_bitcmp{1 - P.par}_b32 s2, 0', f's_cselect_b32 s59, {BN1}, s38', f's_cselect_b32 s3, {NA}, 0', 's_cselect_b32 s35, 128, 0',
          f's_mul_i32 s{sNB0}, s{sB}, s59', f's_add_u32 s{sNB0}, s{sNB0}, s3', f's_add_u32 s{sB}, s{sB}, s35',
          f's_sub_u32 s{sNNODE}, {N}, s{sNB0}', f's_min_u32 s{sNNODE}, s{sNNODE}, s59',
          f's_lshl_b32 s{sCOL}, s{sB}, 3', f's_add_u32 s{sCOL}, s{sCOL}, {WS_TAB}']
    a(f's_movk_i32 s38, {BN0}')
    for x in C: a(x)
    C = []
    C += [f's_sub_u32 s{SX}, s4, {3*XP}', f's_subb_u32 s{SX+1}, s5, 0', f's_and_b32 s{SX+1}, s{SX+1}, 0xffff',
          f's_mov_b32 s{SX+2}, {(N*128 + 3*XP) * P.xfrac // 100}', f's_mov_b32 s{SX+3}, 0x20000']
    for d, lo, size in ((SE, 6, E * 32 * P.efrac // 100), (SO, 60, N * 128), (SW, 64, WS_SIZE)):
        C += [f's_mov_b32 s{d}, s{lo}', f's_and_b32 s{d+1}, s{lo+1}, 0xffff', f's_mov_b32 s{d+2}, {size}', f's_mov_b32 s{d+3}, 0x20000']
    C += [f's_movk_i32 s{sXO+j}, {(3-j)*XP}' for j in range(4)]
    C += [f's_movk_i32 s{s128}, 128', f's_mov_b32 s{sLN2}, {NLN2}', f's_mov_b32 s{sLN2+1}, {NLN2}', f's_mov_b64 s[{sBAD}:{sBAD+1}], 0']
    C += [f's_lshl_b32 s{sMAP}, s{sWAVE}, 12', f's_add_u32 s{sMAP}, s{sMAP}, {MAP}']
    C += [f's_lshl_b32 s{sQROW}, s{sWAVE}, 13', f's_add_u32 s{sQROW}, s{sQROW}, {EX}']
    C += [f's_mul_i32 s{sSLOT}, s{sWAVE}, {D*SLOT}', f's_add_u32 s{sSLOT}, s{sSLOT}, {RING}']
    C += ['v_and_b32 v16, 7, v2', 'v_lshrrev_b32 v18, 5, v2', 'v_xor_b32 v16, v16, v18', f'v_lshlrev_b32 v{vCX}, 4, v16']
    C += ['v_and_b32 v17, 1, v2', f'v_lshlrev_b32 v{vCE}, 4, v17']
    C += ['v_bfe_u32 v16, v2, 1, 2', f'v_mul_u32_u24 v16, {XP}, v16', 'v_bfe_u32 v20, v2, 3, 2', 'v_lshl_add_u32 v16, v20, 7, v16',
          'v_lshl_add_u32 v16, v17, 9, v16', 'v_xor_b32 v20, v17, v18', f'v_lshl_add_u32 v{vBX0}, v20, 4, v16']
    C += ['v_bfe_u32 v16, v2, 1, 4', 'v_lshl_add_u32 v16, v17, 4, v16', 'v_lshlrev_b32 v16, 5, v16', 'v_lshl_add_u32 v16, v18, 4, v16',
          f'v_add_u32 v{vBE0}, {4*XP}, v16']
    C += ['v_lshrrev_b32 v16, 3, v2', f'v_lshl_add_u32 v{vAX}, v16, 4, s{sQROW}']
    C += ['v_lshrrev_b32 v16, 1, v2', f'v_lshl_add_u32 v{vAE}, v16, 2, s{sQROW}']
    C += ['v_and_b32 v16, 31, v2', 'v_lshlrev_b32 v16, 2, v16', 'v_lshl_add_u32 v16, v18, 12, v16', f'v_add_u32 v25, s{sQROW}, v16']
    C += [f'v_add_u32 v24, s{sNB0}, v0', f'v_cmp_gt_u32 {mBN}, s59, v0', f'v_cmp_gt_u32 {mNN}, s{sNNODE}, v0',
          'v_and_b32 v134, 255, v24', 'v_lshlrev_b32 v134, 4, v134',
          f's_add_u32 s3, s{sNB0}, 240', 's_and_b32 s3, s3, 255', 's_lshl_b32 s3, s3, 4', 'v_mov_b32 v135, s3']
    C += ['v_lshlrev_b32 v19, 2, v2', 'v_lshlrev_b32 v14, 3, v2', f'v_mul_u32_u24 v30, {P.trs}, v0', 'v_and_b32 v31, 31, v0', 'v_lshlrev_b32 v31, 4, v31', 'v_lshl_add_u32 v31, v0, 12, v31']
    C += [f's_mov_b32 s55, {M0}', f's_movk_i32 s56, {M1 - M0}', 's_movk_i32 s57, 335', f'v_mov_b32 v23, {NA}',
          f's_mov_b32 s58, { {1: 0, 2: 0x80000}.get(P.classes, 0xc0000)}']
    vW = 144
    def wraw(i):
        if i in (0, 9): a('s_mov_b32 s35, 0')
        a(f'buffer_load_dwordx4 {R("v", vW+4*i, 4)}, v21, {srdn(SD if i < 9 else SS)}, s35 offen')
        a('s_add_u32 s35, s35, 4096')
    tagload = lambda: a('global_load_dwordx2 v[122:123], v12, s[62:63] sc1')
    k = 0
    while init or C:
        if init: a(init.pop(0))
        for x in C[:6]: a(x)
        C = C[6:]
        k += 1
        if k == P.srcpos:
            edge_loads(SS, vSr, 8)
            srd(a, SD, 52, 144 * 128 * 2); srd(a, SS, 56, 128 * 64 * 2)
            a('s_lshr_b32 s3, s2, 3'); a('v_min_u32 v3, 8, v0'); a('v_lshl_add_u32 v3, v3, 5, s3'); a('v_lshlrev_b32 v3, 7, v3')
            a(f'buffer_load_dword a{aJUNK}, v3, {srdn(SD)}, 0 offen')
            a(f'buffer_load_dword a{aJUNK}, v3, {srdn(SS)}, 0 offen')
    if epre:
        a(f's_mul_i32 s3, s2, {CH*32}'); a(f'v_mul_u32_u24 v126, {P.estr}, v0'); a('v_add_u32 v126, s3, v126')
        a(f's_add_u32 s3, s3, {CH*32-128}'); a('v_mov_b32 v125, s3')
    if P.pad: a('ds_write_b32 v25, v128')
    n0 = 2 + warm(0)
    a('s_waitcnt lgkmcnt(0)')
    a('s_barrier')
    def tagcheck():
        a(f'v_readfirstlane_b32 s{sTAG}, v122'); a(f'v_readfirstlane_b32 s{sTAG8}, v123')
        a(f's_cmp_eq_u32 s{sTAG}, 0')
    for b, (lo, hi) in enumerate(((0, 4), (4, 8), (8, 13)) if P.stag else ((0, 13),)):
        a(f's_waitcnt vmcnt({5 + n0 + ((3, 2, 0)[b] if P.stag else 0)})')
        if hi == 13: stamp(2); tagload()
        for i in range(lo, hi): a(f'v_mul_u32_u24 v{vB+i}, s55, v{vDs+i}')
        for i in range(lo, hi): a(f'v_sub_u32_e64 v{vRk+i}, v{vDs+i}, v23 clamp')
        for i in range(lo, hi): a(f'v_mad_u32_u24 v{vB+i}, v{vRk+i}, s56, v{vB+i}')
        for i in range(lo, hi): a(f'v_lshlrev_b32_sdwa v{vB+i}, 2, v{vB+i} {SDWA}BYTE_3')
        for i in range(lo, hi):
            if i == 12: a(f's_mov_b64 exec, {mLO}')
            a(f'ds_add_rtn_u32 v{vRk+i}, v{vB+i}, v13 offset:{HB}')
    a('s_mov_b64 exec, -1')
    for i in range(13): a(f'v_lshlrev_b32_sdwa v{vDs+i}, 20, v{vDs+i} {SDWA}BYTE_0')
    for i in range(P.w1): wraw(i)
    a('s_waitcnt lgkmcnt(0)')
    a('s_barrier')
    a(f'ds_read_b128 v[26:29], v9 offset:{HB}')
    F = [f'v_mul_u32_u24 v{vRec+2*i}, s57, v{vSr+i}' for i in range(13)]
    F += [f'v_lshrrev_b32 v{vRec+2*i}, 4, v{vRec+2*i}' for i in range(13)]
    F += [f'v_and_or_b32 v{vRec+2*i}, v{vRec+2*i}, s58, v{vSr+i}' for i in range(13)]
    a(f's_waitcnt vmcnt({n0 + 1 + P.w1}) lgkmcnt(0)')
    a('v_add_u32 v5, v26, v27'); a('v_add_u32 v6, v5, v28'); a('v_add_u32 v7, v6, v29')
    a('v_mov_b32 v3, v7')
    wave_scan(a, 3, F[:12])
    a('v_sub_u32 v4, v3, v7'); a('v_add_u32 v7, v4, v6'); a('v_add_u32 v6, v4, v5'); a('v_add_u32 v5, v4, v26')
    a(f'ds_write_b128 v9, v[4:7] offset:{START}')
    for i in range(13): a(f'ds_read_b32 v{vB+i}, v{vB+i} offset:{START}')
    for i in range(P.w1, P.w2): wraw(i)
    for x in F[12:]: a(x)
    def gettag(name, **kw):
        poll(name, tagload, tagcheck, **kw)
        a(f's_and_b32 s{sTAG8}, s{sTAG8}, 0xff')
        a(f's_lshl_b32 s{sTAGH}, s{sTAG}, 4')
        a(f's_and_b32 s{sTAGH}, s{sTAGH}, 0xfffff000')
    def pubrow(name):
        a.raw("; wave 3 writes this chunk's table row: 256 x {start | cnt<<12 | tag8<<24, tag}")
        a(f's_sub_u32 s3, 3, s{sWAVE}'); a(f's_or_b32 s3, s3, s{sSLOW}'); a(f's_cbranch_scc1 {name}')
        if P.force == 2: a('s_cmp_eq_u32 s2, 7'); a(f's_cbranch_scc1 {name}')
        for i in range(4):
            a(f'v_lshl_or_b32 v{136+2*i}, v{26+i}, 12, v{4+i}')
            a(f'v_mov_b32 v{137+2*i}, s{sTAG}')
        for i in range(4): a(f'v_lshl_or_b32 v{136+2*i}, s{sTAG8}, 24, v{136+2*i}')
        a(f's_mul_i32 s3, s2, {P.trs}'); a(f's_add_u32 s3, s3, {WS_TAB}')
        a('v_lshlrev_b32 v3, 5, v2')
        a(f'buffer_store_dwordx4 v[136:139], v3, {srdn(SW)}, s3 offen sc1')
        a(f'buffer_store_dwordx4 v[140:143], v3, {srdn(SW)}, s3 offen offset:16 sc1')
        a.label(name)
    gettag('L_ptag', first_wait=f's_waitcnt vmcnt({P.w2})')
    if P.stamp == 3 and P.st1 == 0: stamp(1)
    pubrow('L_norow')
    a(f's_lshl_b32 s3, s{sTAGH}, 16')
    if P.force == 3: a('s_cmp_eq_u32 s2, 9'); a('s_cselect_b32 s85, 0x10000000, 0'); a('s_xor_b32 s3, s3, s85')
    a(f'v_add_u32 v22, s{sTAGH}, v15')
    a(f'v_add_u32 v20, s{sTAGH}, v0')
    a('s_waitcnt lgkmcnt(0)')
    for b, (lo, hi) in enumerate(((0, 4), (4, 8), (8, 13))):
        for i in range(lo, hi):
            a(f'v_or3_b32 v{vRec+2*i}, v{vRec+2*i}, v{vDs+i}, s3')
            a(f'v_add_u32 v{vRec+2*i+1}, {(i>>2)*1024 + (i&3)}, v{22 if i < 12 else 20}')
        for i in range(lo, hi):
            a(f'v_add_lshl_u32 v{vB+i}, v{vB+i}, v{vRk+i}, 3')
        for i in range(lo, hi):
            if i == 12: a(f's_mov_b64 exec, {mLO}')
            a(f'ds_write_b64 v{vB+i}, {R("v", vRec+2*i, 2)} offset:{STAGE}')
    a('s_mov_b64 exec, -1')
    a('v_lshlrev_b32 v10, 16, v10')
    a('v_mul_f32 v10, s34, v10')
    a(f'ds_write_b32 v15, v10 offset:{B1T}')
    for i in range(P.w2, 9): wraw(i)
    a('v_lshl_add_u32 v20, v1, 7, v9')
    a('s_and_b32 s3, s2, 31'); a('s_lshl_b32 s35, s2, 8'); a('s_add_u32 s3, s3, s35'); a('s_lshl_b32 s3, s3, 7')
    tload = lambda: a(f'buffer_load_dwordx2 v[16:17], v30, {srdn(SW)}, s{sCOL} offen sc1')
    a('s_waitcnt lgkmcnt(0)')
    a('s_barrier')
    if P.stamp == 3 and P.st1 == 1: stamp(1)
    for i in range(6): a(f'ds_read_b128 {R("v", 32+4*i, 4)}, v21 offset:{STAGE + 4096*i}')
    a(f'ds_read_b128 v[56:59], v20 offset:{STAGE + 24576}')
    for i in range(7):
        a(f's_waitcnt lgkmcnt({6-i})')
        if i == 6: a('s_mov_b64 exec, 0xff')
        a(f'buffer_store_dwordx4 {R("v", 32+4*i, 4)}, v{21 if i < 6 else 20}, {srdn(SW)}, s3 offen{P.pol_st}')
        if i < 6: a('s_add_u32 s3, s3, 4096')
    a('s_mov_b64 exec, -1')
    a(f's_lshl_b32 s35, s{sWAVE}, 12'); a(f's_add_u32 m0, s35, {WST + 36864}')
    if P.tl == 0: tload()
    def w2dma():
        for i in range(4): a(f'buffer_load_dwordx4 v9, {srdn(SS)}, s35 offen offset:{1024*i} lds')
    if P.w2p == 0: w2dma()
    a('s_barrier')
    stamp(3)
    a(f'ds_write_b32 v15, v11 offset:{TT}')
    a('v_and_b32 v3, 0x30, v0'); a('v_lshlrev_b32 v3, 2, v3'); a('v_xor_b32 v3, v3, v21')
    a(f'v_add_u32 v3, {WST}, v3')
    a(f's_mov_b32 s56, {NLOG2E}'); a('s_mov_b32 s57, s56'); a('s_mov_b32 s3, 0xffff0000')
    assert P.w2p and P.w2 == 9
    if P.force != 2 and P.w3:
        a('s_waitcnt vmcnt(10)'); a(f's_cmp_eq_u32 s{sWAVE}, 3'); a('s_cbranch_scc1 L_wok')
    a(f's_waitcnt vmcnt({7 if P.tl else 8})')
    a.label('L_wok')
    for i in range(9):
        for j in range(4):
            a(f'v_lshlrev_b32 v{64+2*j}, 16, v{vW+4*i+j}'); a(f'v_and_b32 v{65+2*j}, s3, v{vW+4*i+j}')
        for j in range(4): a(f'v_pk_mul_f32 v[{64+2*j}:{65+2*j}], v[{64+2*j}:{65+2*j}], s[56:57]')
        for j in range(4): a(f'v_cvt_pk_bf16_f32 v{vW+4*i+j}, v{64+2*j}, v{65+2*j}')
        a(f'ds_write_b128 v3, {R("v", vW+4*i, 4)} offset:{4096*i}')
        if init2 and P.iw: a(init2.pop(0))
        if P.tl == 1 and i == 4: tload()
    a('v_lshrrev_b32 v64, 5, v2'); a('v_bfe_u32 v65, v2, 2, 2'); a('v_bfe_u32 v66, v2, 4, 1'); a('v_and_b32 v67, 3, v2')
    a('v_lshl_add_u32 v200, v64, 3, v65'); a('v_lshlrev_b32 v200, 8, v200'); a('v_lshl_add_u32 v200, v66, 5, v200'); a('v_lshl_add_u32 v200, v67, 3, v200')
    a('v_lshl_add_u32 v200, v65, 6, v200'); a(f'v_add_u32 v200, {WST}, v200')
    for c in range(1, 4): a(f'v_xor_b32 v{200+c}, {64*c}, v200')
    a('v_lshl_add_u32 v204, v64, 2, v65'); a('v_lshlrev_b32 v204, 7, v204'); a('v_lshl_add_u32 v204, v66, 4, v204')
    a('v_and_b32 v64, 1, v2'); a('v_lshl_add_u32 v204, v64, 6, v204'); a('v_bfe_u32 v64, v2, 1, 1'); a('v_lshl_add_u32 v204, v64, 3, v204')
    a(f'v_add_u32 v204, {WST + 36864}, v204')
    a('s_waitcnt lgkmcnt(0)')
    a('s_barrier')
    if P.tl == 2: tload()
    TR = {}
    vTA = 200
    for kk in range(9):
        TR[kk] = []
        for c in range(4):
            d = aW1A + 16*c + 4*kk if kk < 4 else (aW1B + 16*c + 4*(kk-4) if kk < 8 else aW1C + 4*c)
            for r in range(2): TR[kk].append(f'ds_read_b64_tr_b16 {R("a", d+2*r, 2)}, v{vTA+c} offset:{4096*kk + 1024*r}')
    TR[9] = [f'ds_read_b64_tr_b16 {R("a", aW2+(dt*8+u)*4+2*r, 2)}, v{vTA+4} offset:{2048*u + 1024*r + 32*dt}' for dt in range(2) for u in range(8) for r in range(2)]
    early = {0: range(9), 1: (0, 1), 2: (0, 1, 4, 5, 6, 7)}[P.late]
    for kk in early:
        for x in TR[kk]: a(x)
    lateq = [x for kk in (4, 5, 6, 7) if kk not in early for x in TR[kk]]
    later = [x for kk in (2, 3, 8, 9) if kk not in early for x in TR[kk]]
    for x in init2: a(x)
    assert P.late == 0 and XO % 128 == 0 and XO + 28672 <= WST + 36864
    a('v_lshrrev_b32 v29, 3, v2'); a('v_xor_b32 v29, v29, v2'); a('v_lshlrev_b32 v29, 4, v29')
    a(f's_mul_i32 s85, s{sWAVE}, 7168'); a(f's_lshl_b32 s3, s{sNB0}, 7'); a('s_add_u32 s3, s3, s85'); a('v_add_u32 v29, s3, v29')
    a('s_waitcnt lgkmcnt(0)')
    a('s_barrier')
    if P.tl == 3: tload()
    if P.w2p == 1: w2dma()
    if P.stamp == 3 and P.st1 == 2: stamp(1)
    a(f's_waitcnt vmcnt({4 if P.w2p < 2 else 0})')
    a.label('L_consume')
    a(f's_cmp_lg_u32 s{sSLOW}, 0'); a('s_cbranch_scc1 L_skipB')
    def tcheck(v, mask=None):
        def f():
            a(f'v_cmp_ne_u32 s[56:57], s{sTAG}, v{v+1}')
            a(f'v_cmp_ne_u32_sdwa vcc, v{v}, s{sTAG8} src0_sel:BYTE_3 src1_sel:DWORD')
            a('s_or_b64 vcc, vcc, s[56:57]')
            if mask: a(f's_and_b64 vcc, vcc, {mask}')
        return f
    poll('L_pt', tload, tcheck(16), first_wait='', only=P.only)
    stamp(4)
    a('v_bfe_u32 v17, v16, 12, 12')
    a('v_and_b32 v16, 0xfff, v16')
    a('v_mov_b32 v18, v17')
    a('v_add_u32 v16, v16, v31')
    a('v_add_lshl_u32 v22, v16, v17, 3')
    a('v_sub_u32_e64 v22, v22, 4 clamp')
    pload = lambda: a(f'buffer_load_dword v23, v22, {srdn(SW)}, 0 offen sc1')
    if P.probe: pload()
    if P.probe == 2:
        a('v_lshlrev_b32 v3, 3, v16'); a(f'buffer_load_dword a{aJUNK}, v3, {srdn(SW)}, 0 offen sc1')
    wave_scan(a, 18, ['v_cmp_lt_u32 s[56:57], 16, v17', 'v_cmp_lt_u32 s[58:59], 8, v17',
                      'v_cmp_lt_u32 s[60:61], 0, v17', 'v_cmp_lt_u32 vcc, 24, v17', f'v_add_u32 v20, s{sMAP}, v19'])
    a('v_sub_u32 v3, v18, v17')
    a('v_readlane_b32 s3, v18, 63')
    a('v_sub_u32 v16, v16, v3')
    a(f'v_lshl_add_u32 v18, v3, 2, s{sMAP}')
    a('v_lshlrev_b32 v16, 3, v16')
    a(f's_cmp_gt_u32 s3, {NSLOT*64}')
    a(f's_cselect_b32 s{sSLOW}, 1, s{sSLOW}')
    a(f's_cmp_lg_u32 s{sSLOW}, 0'); a('s_cbranch_scc1 L_skipB')
    a('v_lshl_add_u32 v3, s3, 2, v20')
    for m, j0 in (('s[56:57]', 16), ('s[58:59]', 8), ('s[60:61]', 0)):
        a(f's_mov_b64 exec, {m}')
        for j in range(j0 + 7, j0 - 1, -1): a(f'ds_write_b32 v18, v16 offset:{4*j}')
    a('s_mov_b64 exec, -1')
    a('ds_write_b32 v3, v128')
    a('s_cbranch_vccz L_nomap')
    a.label('L_map')
    for j in range(24, 28):
        a(f'v_cmpx_lt_u32 vcc, {j}, v17')
        a(f'ds_write_b32 v18, v16 offset:{4*j}')
    a('v_add_u32 v18, 16, v18')
    a('v_subrev_u32 v17, 4, v17')
    a('s_cbranch_execnz L_map')
    a('s_mov_b64 exec, -1')
    a.label('L_nomap')
    vR, vI, vK, vP, vA, vT, vCB = 32, 64, 80, 96, 144, 160, 176
    for i in range(NSLOT): a(f'ds_read_b32 v{vA+i}, v20 offset:{256*i}')
    def pcheck():
        a(f'v_xor_b32 v3, s{sTAGH}, v23')
        a('v_cmp_lt_u32 vcc, 0xfff, v3')
        a('s_and_b64 vcc, vcc, s[60:61]')
    a('s_movk_i32 s34, 4096')
    a('s_waitcnt lgkmcnt(0)')
    for i in range(NSLOT): a(f'v_add_u32 v{vA+i}, v{vA+i}, v14')
    def treg():
        for i in range(NSLOT): a(f'v_bfe_i32 v{vT+i}, v{vA+i}, 30, 1')
        for i in range(NSLOT): a(f'v_bfi_b32 v{vT+i}, v{vT+i}, v135, s{sTAGH}')
    if P.tearly: treg()
    if P.probe: a(f's_waitcnt vmcnt({P.probe - 1})')
    if P.probe: poll('L_pp', pload, pcheck, first_wait='', only=P.only)
    stamp(5)
    a(f's_cmp_lg_u32 s{sSLOW}, 0'); a('s_cbranch_scc1 L_skipB')
    rec = lambda i: a(f'buffer_load_dwordx2 {R("v", vR+2*i, 2)}, v{vA+i}, {srdn(SW)}, {"s34" if i >= 8 else "0"} offen offset:{512*(i%8)} sc1')
    for i in range(NSLOT): rec(i)
    def ownx():
        a.raw("; this bucket's own x rows -> LDS")
        a(f's_add_u32 m0, s85, {XO}'); a(f's_movk_i32 s35, {3*XP + 4096}')
        for i in range(7):
            if i == 4: a('s_add_u32 m0, m0, 4096')
            a(f'buffer_load_dwordx4 v29, {srdn(SX)}, s{sXO if i < 4 else 35} offen offset:{1024*(i%4)} lds')
        return 7
    n3 = 0
    nx = 0
    if P.xpos == 3: nx += ownx()
    nx += warm(3)
    n3 += nx
    if not P.tearly: treg()
    a(f's_mov_b32 s3, {CH*32}')
    for i in range(NSLOT): a(f'v_add_u32 v{vCB+i}, {512*i}, v{vA+i}')
    for i in range(NSLOT): a(f'v_lshrrev_b32 v{vCB+i}, 15, v{vCB+i}')
    for i in range(NSLOT): a(f'v_mul_u32_u24 v{vCB+i}, s3, v{vCB+i}')
    stamp(6)
    retry = []
    for b, (lo, hi) in enumerate(((0, 6), (6, 11), (11, 15)) if P.bat == 0 else ((0, 4), (4, 8), (8, 11), (11, 15))):
        a(f's_movk_i32 s{sCNT}, {P.limit}')
        a(f's_waitcnt vmcnt({NSLOT-hi+n3})')
        a.label(f'L_chk{b}')
        for i in range(lo, hi): a(f'v_xor_b32 v{vR+2*i+1}, v{vT+i}, v{vR+2*i+1}')
        for i in range(lo, hi): a(f'v_xor_b32_sdwa v{vI+i}, v{vT+i}, v{vR+2*i} dst_sel:DWORD dst_unused:UNUSED_PAD src0_sel:WORD_0 src1_sel:WORD_1')
        for i in range(lo, hi): a(f'v_or3_b32 v3, v{vI+i}, v{vR+2*i+1}, {"v3" if i > lo else "0"}')
        a('v_cmp_lt_u32 vcc, 0xfff, v3')
        if lo == 11:
            for i in range(lo, hi): a(f'v_cmp_ne_u32 s[{58+2*(i-lo)}:{59+2*(i-lo)}], v135, v{vI+i}')
        a(f's_cbranch_vccnz L_retry{b}')
        retry.append((b, lo, hi))
        for i in range(lo, hi):
            if lo == 11: a(f's_mov_b64 exec, s[{58+2*(i-lo)}:{59+2*(i-lo)}]')
            a(f'ds_add_rtn_u32 v{vK+i}, v{vI+i}, v13 offset:{CNT}')
    a('s_mov_b64 exec, -1')
    if P.xpos == 4: nx += ownx()
    nx += warm(4)
    a.label('L_skipB')
    if P.w2p == 2: a(f's_lshl_b32 s35, s{sWAVE}, 12'); a(f's_add_u32 m0, s35, {WST + 36864}'); w2dma()
    EO = [f'v_lshl_add_u32 v{vR+2*i+1}, v{vR+2*i+1}, 5, v{vCB+i}' for i in range(NSLOT)]
    E1, E2, E3 = P.e1, P.e2, P.e3
    for x in EO[:E1]: a(x)
    a(f's_mov_b64 exec, {mBN}')
    a('s_waitcnt lgkmcnt(0)')
    a('s_barrier')
    stamp(7)
    a(f'ds_read_b128 v[4:7], v134 offset:{CNT}')
    a('s_waitcnt lgkmcnt(0)')
    a('v_add_u32 v5, v4, v5'); a('v_add_u32 v6, v5, v6'); a('v_add_u32 v16, v6, v7')
    a('v_min_u32 v17, 63, v16')
    a('v_sub_u32 v17, 63, v17')
    a('v_lshlrev_b32 v17, 2, v17')
    a(f'ds_add_rtn_u32 v18, v17, v13 offset:{HIST}')
    a('v_sub_u32 v26, v16, v4'); a('v_sub_u32 v27, v16, v5'); a('v_sub_u32 v28, v16, v6')
    a('v_lshrrev_b32 v23, 1, v16')
    a('v_lshl_or_b32 v23, v23, 16, v24')
    a('v_or_b32 v23, 0xc00000, v23')
    a('s_mov_b64 exec, -1')
    for x in EO[E1:E2]: a(x)
    a('s_waitcnt lgkmcnt(0)')
    a('s_barrier')
    stamp(20)
    a(f'ds_read_b32 v20, v19 offset:{HIST}')
    a(f'ds_read_b32 v3, v19 offset:{HIST}')
    for x in EO[E2:E3]: a(x)
    a('s_waitcnt lgkmcnt(0)')
    wave_scan(a, 3, EO[E3:E3+12])
    a('v_sub_u32 v20, v3, v20')
    a('ds_bpermute_b32 v20, v17, v20')
    a(f'v_mov_b32 v3, {(32768 - 4) << 16}')
    a(f'ds_write_b32 v135, v3 offset:{CNT}')
    for x in EO[E3+12:]: a(x)
    a(f's_mov_b64 exec, {mNN}')
    a('s_waitcnt lgkmcnt(1)')
    a('v_add_lshl_u32 v20, v20, v18, 2')
    a(f'ds_read_b32 v22, v20 offset:{TT}')
    a('s_waitcnt lgkmcnt(0)')
    a('v_and_b32 v3, 0x10000000, v22')
    a('v_lshlrev_b32 v29, 16, v22')
    a('v_cmp_ne_u32 vcc, 0, v3')
    a('v_bfe_u32 v3, v22, 6, 1')
    a('v_add_u32 v16, v16, v3')
    a('v_cndmask_b32 v7, v6, v12, vcc'); a('v_cndmask_b32 v6, v5, v28, vcc')
    a('v_cndmask_b32 v5, v4, v27, vcc'); a('v_cndmask_b32 v4, v12, v26, vcc')
    for i in range(4): a(f'v_mad_u32_u24 v{4+i}, v{4+i}, v29, v22')
    a(f'ds_write_b128 v134, v[4:7] offset:{CNT}')
    a('v_lshrrev_b32 v16, v3, v16')
    a('v_lshrrev_b32 v22, 16, v22')
    a('v_lshl_or_b32 v24, v3, 22, v24')
    a('v_cmp_lt_u32 s[56:57], 30, v16')
    a('v_lshl_or_b32 v24, v16, 16, v24')
    a('v_cmp_ne_u32 vcc, 0, v3')
    a(f'ds_write_b32 v22, v24 offset:{EX - 128}')
    a('s_mov_b64 exec, vcc')
    a(f'ds_write_b32 v22, v23 offset:{EX - 64}')
    a(f's_or_b32 s56, s56, s{sSLOW}')
    a('s_mov_b64 exec, s[56:57]')
    a(f'ds_write_b32 v12, v13 offset:{FLAG}')
    a('s_mov_b64 exec, -1')
    a('s_waitcnt lgkmcnt(0)')
    a('s_barrier')

    ell_read = [f'ds_read_b128 {R("v", vEX, 4)}, v{vAX}', f'ds_read_b32 v{vEE}, v{vAE} offset:{EE-EX}']
    jump = [f's_sub_u32 s{sJ}, s{sJ}, 1', f's_cselect_b64 s[{sINC}:{sINC+1}], s[{sJUMP}:{sJUMP+1}], s[{sSTEP}:{sSTEP+1}]']
    ell_adv = [f'v_lshl_add_u64 v[{vAX}:{vAE}], v[{vAX}:{vAE}], 0, s[{sINC}:{sINC+1}]']
    xaddr = [f'v_mad_u32_u16 v{vEX+j}, v{vEX+j}, s{s128}, v{vCX}' for j in range(4)]
    eaddr = f'v_add_u32 v{vEE}, v{vEE}, v{vCE}'
    m0x = f's_mov_b32 m0, s{sSLOT}'; m0e = f's_add_u32 m0, s{sSLOT}, {4*XP}'
    dmax = [f'buffer_load_dwordx4 v{vEX+j}, {srdn(SX)}, s{sXO+j} offen offset:{j*XP}{P.pol_x} lds' for j in range(4)]
    dmae = f'buffer_load_dwordx4 v{vEE}, {srdn(SE)}, 0 offen{P.pol_e} lds'
    adv = [f's_sub_u32 s{sSLOT}, s{sSUM}, s{sSLOT}']
    baddr = [f'v_add_u32 v{vBX}, s{sSLOT}, v{vBX0}', f'v_add_u32 v{vBE}, s{sSLOT}, v{vBE0}']
    bread = [f'ds_read_b128 {R("a", aBX+4*k, 4)}, v{vBX} offset:{32*k}' for k in range(4)] + [f'ds_read_b128 {R("a", aBE, 4)}, v{vBE}']
    breadk = bread[4:] + bread[:4] if P.efirst else bread
    adv3 = [f's_sub_u32 s34, s{sSUM}, s{sSLOT}', f's_mov_b32 s{sSLOT}, s{sOTH}', f's_sub_u32 s{sOTH}, s34, s{sSLOT}']
    VW3 = 10 if P.d3 else VW
    PFa = [m0x] + xaddr + [eaddr] + dmax + [m0e] + [adv[0]] + [dmae] + adv[1:]
    PFb = ell_read + jump + ell_adv
    PF = PFa + PFb + baddr

    stamp(21)
    vG = 112
    a(f'ds_read_b32 v16, v12 offset:{FLAG}')
    for i in range(NSLOT - 1): a(f'ds_read_b32 v{vP+i}, v{vI+i} offset:{CNT}')
    a(f's_waitcnt lgkmcnt({NSLOT - 3})')
    a(f'ds_read_b32 v{vP+NSLOT-1}, v{vI+NSLOT-1} offset:{CNT}')
    a('ds_read_b32 v17, v25')
    a('v_readfirstlane_b32 s3, v16')
    alt = lambda L: [x.replace(R('v', vEX, 4), R('v', vG, 4)).replace(f'v{vEX}', f'v{vG}').replace(f'v{vEX+1}', f'v{vG+1}').replace(f'v{vEX+2}', f'v{vG+2}')
                      .replace(f'v{vEX+3}', f'v{vG+3}').replace(f'v{vEE}', f'v{vG+4}') for x in L]
    a('s_cmp_lg_u32 s3, 0'); a('s_cbranch_scc1 L_slow0')
    for lo, hi in ((0, 4), (4, 8), (8, 11), (11, 15)):
        a(f's_waitcnt lgkmcnt({NSLOT - hi + 1 + lo})')
        for i in range(lo, hi): a(f'v_mul_u32_u24_sdwa v{vK+i}, v{vK+i}, v{vP+i} {SDWA}WORD_0')
        for i in range(lo, hi): a(f'v_add_u32_sdwa v{vP+i}, v{vK+i}, v{vP+i} {SDWA}WORD_1')
        for i in range(lo, hi):
            if i >= 11: a(f's_mov_b64 exec, s[{58+2*(i-11)}:{59+2*(i-11)}]')
            a(f'ds_write2st64_b32 v{vP+i}, v{vR+2*i}, v{vR+2*i+1} offset0:{EX//256} offset1:{EE//256}')
    a('s_mov_b64 exec, -1')
    a('s_waitcnt lgkmcnt(10)')
    a('v_bfe_u32 v17, v17, 16, 6')
    if P.pad: a('v_mov_b32 v18, v17')
    F = [f'v_add_u32 v{vAX}, 128, v{vAX}', f'v_add_u32 v{vAE}, 128, v{vAE}',
         f'v_lshrrev_b32 v{vE+1}, 3, v{vBE0}', f'v_and_b32 v{vE+2}, 16, v{vBE0}', f'v_and_b32 v{vE+1}, -4, v{vE+1}',
         f'v_lshlrev_b32 v{vE}, 4, v{vE+2}', f's_sub_u32 s3, s{sQROW}, {4*XP//8}', f'v_add_u32 v{vE+1}, s3, v{vE+1}']
    for sh in ('row_shr:1', 'row_shr:2', 'row_shr:4', 'row_shr:8', 'row_bcast:15'):
        for x in F[:2]: a(x)
        F = F[2:]
        a(f'v_max_u32_dpp v17, v17, v17 {sh} ' + ('row_mask:0xf bank_mask:0xf bound_ctrl:0' if 'shr' in sh else 'row_mask:0xa bank_mask:0xf'))
    a(f'ds_read2st64_b32 v[{vE+4}:{vE+5}], v{vE+1} offset0:0 offset1:16')
    a(f'v_readlane_b32 s{sL}, v17, 31')
    a(f'v_readlane_b32 s{sLNEXT}, v17, 63')
    stamp(22)
    a(f's_max_u32 s{sL}, s{sL}, 1')
    a(f's_max_u32 s{sLNEXT}, s{sLNEXT}, 1')
    if P.pad:
        a.raw('; cells past the end of a chain (and two rows of look-ahead past the second group) load nothing')
        a(f's_add_u32 s3, s{sLNEXT}, 2'); a(f'v_mov_b32 v20, s{sL}'); a('s_mov_b32 exec_lo, 0')
        a('v_mov_b32 v20, s3'); a('s_mov_b64 exec, -1')
        a('v_lshl_add_u32 v22, v20, 7, v25')
        a('v_sub_u32 v20, v20, v18')
        a.label('L_pad')
        a('v_subrev_u32 v22, 512, v22')
        for j in range(4):
            a(f'v_cmpx_lt_u32 vcc, {j}, v20')
            a(f'ds_write_b32 v22, v128 offset:{512 - 128*j}')
            a(f'ds_write_b32 v22, v128 offset:{512 - 128*j + EE - EX}')
        a('v_subrev_u32 v20, 4, v20')
        a('s_cbranch_execnz L_pad')
        a('s_mov_b64 exec, -1')
    if P.thr and P.tk:
        a(f's_add_u32 s55, s{sL}, s{sLNEXT}'); a(f's_mul_i32 s55, s55, {-P.tk}'); a(f's_add_i32 s55, s55, {P.thr + 26*P.tk}')
        if P.tp: a(f's_and_b32 s3, s2, 1'); a(f's_mul_i32 s3, s3, {P.tp}'); a('s_sub_i32 s55, s55, s3')
        a('s_max_i32 s55, s55, 0')
    elif P.thr: a(f's_movk_i32 s55, {P.thr}')
    if P.thr: a(f's_min_u32 s55, s55, s{sL}')
    if P.stamp: a(f's_add_u32 s{sCNT}, s{sL}, s{sLNEXT}')
    a(f's_lshl_b32 s3, s{sL}, 7')
    a(f's_sub_u32 s{sJUMP}, {4096 + 128}, s3'); a(f's_mov_b32 s{sJUMP+1}, s{sJUMP}')
    a(f's_movk_i32 s{sSTEP}, 128'); a(f's_movk_i32 s{sSTEP+1}, 128')
    a(f's_lshl_b32 s{sSUM}, s{sSLOT}, 1'); a(f's_add_u32 s{sSUM}, s{sSUM}, {SLOT}')
    a(f's_sub_u32 s{sJ}, s{sL}, 1')
    if P.stamp: a(f's_mov_b32 s{88+10}, 0')
    for x in jump: a(x)
    a('s_waitcnt vmcnt(0) lgkmcnt(0)')
    a('s_barrier')
    stamp(8)
    for x in alt(ell_read) + ell_adv + PFb: a(x)
    a('s_waitcnt lgkmcnt(2)')
    for x in alt(PFa): a(x)
    if not P.r2:
        a('s_waitcnt lgkmcnt(0)')
        for x in PF: a(x)

    for i in range(16): a(f'ds_read_b128 {R("v", vQ+4*i, 4)}, v{vE} offset:{B1T + 16*i}')
    a(f'v_mov_b32 v{vINFO}, v{vE+4}')
    a(f'v_accvgpr_write_b32 a{aINFO}, v{vE+5}')
    for g, dst in ((0, aBX), (1, aQB)):
        t = vE + 8 + 4*g
        a(f'v_and_b32 v{t}, 0xffff, v{vE+4+g}'); a(f'v_subrev_u32 v{t}, s{sNB0}, v{t}'); a(f'v_min_u32 v{t}, 223, v{t}')
        a(f'v_and_b32 v{t+1}, 7, v{t}'); a(f'v_lshl_add_u32 v{t}, v{t}, 3, v{t+1}'); a(f'v_lshlrev_b32 v{t}, 4, v{t}')
        a(f'v_xor_b32 v{t}, v{t}, v{vE+2}'); a(f'v_add_u32 v{t}, {XO}, v{t}')
        for k in range(1, 4): a(f'v_xor_b32 v{t+k}, {32*k}, v{t}')
        for k in range(4): a(f'ds_read_b128 {R("a", dst+4*k, 4)}, v{t+k}')
    a('s_waitcnt lgkmcnt(4)')
    pf = list(later)
    qm = lambda c, k, b: mfma(R('v', vQ+16*c, 16), R('a', aW1B + (c*4+k)*4, 4), R('a', b+4*k, 4), R('v', vQ+16*c, 16))
    for c in range(4):
        for k in range(4):
            a(qm(c, k, aBX))
            for x in pf[:4]: a(x)
            pf = pf[4:]
    assert not pf
    if P.d3: a('s_waitcnt lgkmcnt(0)'); a('s_barrier')
    if P.r2 == 2: a('s_waitcnt vmcnt(0)')
    if P.r2:
        for x in PF: a(x)
    a(f's_waitcnt vmcnt({VW})')
    for x in bread: a(x)
    stamp(9)
    a('s_waitcnt lgkmcnt(0)')
    pf = list(PF)
    for k in range(5):
        a(m1(0, k, vN, vQ))
        n = 3 if k < 4 else 99
        for x in pf[:n]: a(x)
        pf = pf[n:]
    a('.p2align 3')
    a.label('L_first')
    a(f'v_bfe_u32 v{vDEG}, v{vINFO}, 16, 6')
    a(f's_mov_b32 s{sT}, 1')
    for c in range(4):
        cn = (c + 1) & 3
        if c == 3: a('s_waitcnt lgkmcnt(0)')
        for k in range(5):
            a(m1(cn, k, vN + 16*cn if c < 3 else vY, vQ + 16*cn))
            if c == 2:
                if k == 0:
                    a(f's_waitcnt vmcnt({VW3+4})'); a(f's_cmp_eq_u32 s{sLNEXT}, 0'); a('s_cbranch_scc1 L_w2')
                    a(f's_waitcnt vmcnt({P.fs})'); a.label('L_w2')
                a(breadk[k])
            for i in range(3*k, 3*k + (3 if k < 4 else 4)): a(f'v_exp_f32 v{vD+16*c+i}, v{vN+16*c+i}')
        align8(a)
        for p in range(8):
            d = R('v', vD + 16*c + 2*p, 2)
            a(f'v_pk_add_f32 {d}, {d}, 1.0 op_sel_hi:[1,0]')
    if P.d3: a(f's_cmp_eq_u32 s{sLNEXT}, 0'); a('s_cbranch_scc1 L_second')
    else: a(f's_cmp_ge_u32 s{sT}, s{sL}'); a('s_cbranch_scc1 L_flush')
    oth = f's_sub_u32 s{sOTH}, s{sSUM}, s{sSLOT}'
    bnext = f'v_add_u32 v{vBE}, s{sOTH}, v{vBE0}'
    m0top = lambda lv: m0e if lv == 1 else m0x
    def rows(name, lv, vm, send, three=False):
        a('.p2align 3')
        a.label(name)
        for c in range(4):
            cn = (c + 1) & 3
            y = vY + 16 * (c & 1); yn = vY + 16 * (cn & 1)
            S = [[] for _ in range(5)]
            V = [[] for _ in range(5)]
            cmpx = f'v_cmpx_lt_u32 vcc, s{sT}, v{vDEG}'
            if c == 0:
                S[1] = ['s_mov_b64 exec, -1']; S[2] = [jump[0]]; S[3] = [jump[1]]
                if lv == 0:
                    V[1] = xaddr[:2]; V[2] = xaddr[2:]; V[3] = [eaddr]
                    V[4] = dmax + [m0e, ell_read[0], dmae, ell_read[1]] + ell_adv + [cmpx]
                if lv == 1:
                    V[1] = [eaddr] + xaddr[:2]; V[2] = xaddr[2:]; S[3] += [dmae]; S[4] = [m0x, ell_read[1]]
                    V[4] = dmax + ell_read[:1] + ell_adv + [cmpx]
            if c == 1:
                S[0] = [adv[0]]
                if three: S[0], S[1], S[2] = [adv3[0]], [adv3[1]], [adv3[2]]
                S[3] = [f's_add_u32 s{sT}, s{sT}, 1']
                V[4] = [baddr[0]]
            if c == 2:
                for k in range(5): S[k] = [breadk[k]]
                S[0].insert(0, f's_waitcnt vmcnt({vm})')
                S[4].insert(0, 's_waitcnt lgkmcnt(3)')
            if c == 3:
                S[0] = ['s_waitcnt lgkmcnt(0)']
                if P.stamp == 2: S[0] = ['s_memrealtime s[86:87]', 's_waitcnt lgkmcnt(0)', f's_mov_b32 m0, s{sT}', 's_nop 0', f'v_writelane_b32 v{vMAX}, s86, m0']
                S[1] = [] if three else [oth]
                S[2] = [m0top(lv)]
                S[3] = [f's_cmp_lt_u32 s{sT}, s{send}']
                V[4] = [bnext]
            for k in range(5):
                if (c, k) != (0, 0): a(m1(cn, k, yn, vQ + 16*cn))
                for x in S[k]: a(x)
                for i in range(3*k, 3*k + (3 if k < 4 else 4)): a(f'v_exp_f32 v{vE+i}, v{y+i}')
                for x in V[k]: a(x)
            align8(a)
            for p in range(8):
                yy, nn, dd, ee = R('v', y+2*p, 2), R('v', vN+16*c+2*p, 2), R('v', vD+16*c+2*p, 2), R('v', vE+2*p, 2)
                a(f'v_pk_fma_f32 {yy}, {yy}, {dd}, {nn}')
                a(f'v_pk_fma_f32 {dd}, {dd}, {ee}, {dd}')
                a(f'v_pk_fma_f32 {nn}, {nn}, {ee}, {yy}')
        a(m1(1, 0, vY + 16, vQ + 16))
        a(f's_cbranch_scc1 {name}')
    if P.d3:
        a(oth); a(m0top(P.lvs)); a(bnext)
        a(f's_cmp_ge_u32 s{sT}, s55')
        a(m1(1, 0, vY + 16, vQ + 16))
        a('s_cbranch_scc1 L_deepen')
        rows('L_srow', P.lvs, P.svm, 55)
        a.label('L_deepen')
        a('s_mov_b64 exec, -1')
        a(f's_mul_i32 s34, s{sWAVE}, {SLOT}'); a(f's_add_u32 s34, s34, {XO}'); a('s_mov_b32 m0, s34')
        for x in xaddr + [eaddr] + dmax + [f's_add_u32 m0, s34, {4*XP}', ell_read[0], dmae, ell_read[1]] + jump + ell_adv: a(x)
        a(f's_add_u32 s{sSUM}, s{sSUM}, s34')
        a(m0top(P.lv))
        a(f's_cmp_ge_u32 s{sT}, s{sL}')
        a('s_waitcnt lgkmcnt(0)')
        a('s_cbranch_scc1 L_flush')
        rows('L_row', P.lv, VW3, sL, True)
    else:
        a(oth); a(m0top(P.lv)); a(bnext)
        if P.thr: a(f's_cmp_ge_u32 s{sT}, s55')
        a(m1(1, 0, vY + 16, vQ + 16))
        if P.thr:
            a.raw('; the first rows run with a shorter look-ahead')
            a('s_cbranch_scc1 L_row')
            a(m0top(P.lvs))
            rows('L_srow', P.lvs, P.svm, 55)
            a(m0top(P.lv))
            a(f's_cmp_ge_u32 s{sT}, s{sL}'); a('s_cbranch_scc1 L_flush')
        rows('L_row', P.lv, VW, sL)
    a.label('L_flush')
    if P.stamp:
        a(f's_cmp_lg_u32 s{88+10}, 0'); a('s_cbranch_scc1 L_st10'); stamp(10); a.label('L_st10')
        stamp(11)
    a('s_mov_b64 exec, -1')
    if P.stamp == 2:
        a(f'v_writelane_b32 v{vMAX}, s{sL}, 0')
        a(f'v_mbcnt_lo_u32_b32 v{vE}, -1, 0'); a(f'v_mbcnt_hi_u32_b32 v{vE}, -1, v{vE}'); a(f'v_lshlrev_b32 v{vE}, 2, v{vE}')
        a('s_lshl_b32 s3, s2, 2'); a(f's_add_u32 s3, s3, s{sWAVE}'); a('s_lshl_b32 s3, s3, 8'); a(f's_add_u32 s3, s3, {WS_STAMP + 65536}')
        a(f's_cmp_eq_u32 s{sLNEXT}, 0'); a('s_cselect_b32 s56, 128, 0'); a('s_add_u32 s3, s3, s56')
        a('s_mov_b32 exec_hi, 0')
        a(f'buffer_store_dword v{vMAX}, v{vE}, {srdn(SW)}, s3 offen')
        a('s_mov_b64 exec, -1')
    a(f'v_and_b32 v{vE+8}, 16, v{vBE0}')
    a(f's_cmp_eq_u32 s{sLNEXT}, 0')
    a(f'v_lshlrev_b32 v{vMAX}, 4, v{vE+8}')
    a('s_cbranch_scc1 L_last')
    def g3(c, i):
        u = 2*c + (i >> 1); dt = i & 1
        acc = R('v', vY + 16*dt, 16)
        return mfma(acc, R('a', aW2 + (dt*8+u)*4, 4), R('v', vE + 8*(c & 1) + 4*(i >> 1), 4), acc if u else '0')
    b1r = [f'ds_read_b128 {R("v", vQ+4*i, 4)}, v{vMAX} offset:{B1T + 16*i}' for i in range(16)]
    b2r = [f'ds_read_b128 {R("v", vD+4*i, 4)}, v{vMAX} offset:{B2T + 16*i}' for i in range(8)]
    rcp = lambda c: [f'v_rcp_f32 v{vD+16*c+i}, v{vD+16*c+i}' for i in range(16)]
    hcv = lambda c: [f'v_cvt_pk_bf16_f32 v{vE+8*(c&1)+p}, v{vN+16*c+2*p}, v{vN+16*c+2*p+1}' for p in range(8)]
    mul = [f'v_mul_f32 v{vD+i}, v{vD+i}, v{vDEG}' for i in range(32)]
    dpp = [f'v_add_f32_dpp v{vD+i}, v{vD+i}, v{vD+i} quad_perm:[1,0,3,2] row_mask:0xf bank_mask:0xf' for i in range(32)]
    cvt = [f'v_cvt_pk_bf16_f32 v{vE+p}, v{vD+2*p}, v{vD+2*p+1}' for p in range(16)]
    sto = [f'buffer_store_dwordx4 {R("v", vE+4*i, 4)}, v{vINFO}, {srdn(SO)}, 0 offen offset:{16*i}{P.pol_out}' for i in range(4)]
    def window(M, G):
        assert len(M) == len(G)
        for m, g in zip(M, G):
            if m: a(m)
            for x in g: a(x)
    def flush(more):
        a('.p2align 3')
        if more:
            for x in b1r[:4] + baddr: a(x)
        a(f'v_bfe_u32 v{vE+9}, v{vINFO}, 22, 2')
        a(f'v_lshlrev_b32 v{vE+8}, 2, v{vE+8}')
        a(f'v_cmp_ne_u32 s[58:59], 0, v{vE+9}')
        a(f'v_cmp_ne_u32 s[60:61], 3, v{vE+9}')
        a(f'v_cmp_ne_u32 s[62:63], 0, v{vDEG}')
        a(f'v_mad_u32_u16 v{vINFO}, v{vINFO}, s{s128}, v{vE+8}')
        a(f'v_cvt_f32_u32 v{vDEG}, v{vDEG}')
        a(f's_mov_b32 s3, {f32(2.0**120)}')
        align8(a)
        for i in range(16):
            acc = R('v', vE + 2*(i & 1), 2)
            if i < 2: a(f'v_pk_mul_f32 {acc}, {R("v", vD+4*i, 2)}, {R("v", vD+4*i+2, 2)}')
            else: a(f'v_pk_fma_f32 {acc}, {R("v", vD+4*i, 2)}, {R("v", vD+4*i+2, 2)}, {acc}')
        a(f'v_pk_add_f32 {R("v", vE, 2)}, {R("v", vE, 2)}, {R("v", vE+2, 2)}')
        chk = [f'v_add_f32 v{vE}, v{vE}, v{vE+1}', f'v_cmp_nge_f32 s[56:57], s3, v{vE}']
        for c in range(4):
            r = rcp(c)
            if c == 0 and more:
                a('s_waitcnt lgkmcnt(0)')
                rd = bread + b1r[4:11]
                window([qm(0, k, aQB) for k in range(4)], [rd[3*k:3*k+3] + r[4*k:4*k+4] + chk[k:k+1] for k in range(4)])
            elif c == 0:
                for x in r[:4] + chk[:1] + r[4:8] + chk[1:] + r[8:]: a(x)
            elif more:
                h = hcv(c - 1)
                M = [qm(c, 0, aQB), qm(c, 1, aQB), g3(c-1, 0), g3(c-1, 1), qm(c, 2, aQB), g3(c-1, 2), qm(c, 3, aQB), g3(c-1, 3)]
                Vv = [h[:4], h[4:], r[:2], r[2:4], r[4:6], r[6:9], r[9:12], r[12:]]
                if c == 1:
                    a('s_waitcnt lgkmcnt(3)')
                    Pre = [[m0e, b1r[11]], [dmae], [m0x], dmax[:2], dmax[2:], [jump[0]] + ell_read, [jump[1]], ['s_waitcnt lgkmcnt(2)']]
                    Post = [[eaddr], xaddr[:2], xaddr[2:], [], [], [], adv3 if P.d3 else adv, ell_adv + baddr]
                if c == 2:
                    Pre = [b1r[12:14], b1r[14:], b2r[:2], b2r[2:4], b2r[4:6], b2r[6:7], b2r[7:], ['s_waitcnt lgkmcnt(8)']]
                    Post = [[]] * 8
                if c == 3:
                    Pre = [[], ['s_waitcnt lgkmcnt(0)'], [], [], [], [], [], []]
                    Post = [[], [], mul[:1], mul[1:2], [], [], [], mul[2:3]]
                window(M, [Pre[i] + Vv[i] + Post[i] for i in range(8)])
            else:
                for x in hcv(c - 1): a(x)
                Pre = [b2r[2*q:2*q+2] if c == 2 else [] for q in range(4)]
                Post = [[], [], [], []]
                if c == 3: Pre[1] = ['s_waitcnt lgkmcnt(0)']; Post[3] = mul[:3]
                window([g3(c-1, q) for q in range(4)], [Pre[q] + r[4*q:4*q+4] + Post[q] for q in range(4)])
            align8(a)
            for p in range(8):
                nn, dd = R('v', vN+16*c+2*p, 2), R('v', vD+16*c+2*p, 2)
                a(f'v_pk_mul_f32 {nn}, {nn}, {dd}')
        for x in hcv(3): a(x)
        window([g3(3, q) for q in range(4)],
               [['s_and_b64 s[56:57], s[56:57], s[62:63]'] + mul[3:9], [f's_or_b64 s[{sBAD}:{sBAD+1}], s[{sBAD}:{sBAD+1}], s[56:57]'] + mul[9:15],
                ['s_movk_i32 s3, 0x207'] + mul[15:21], mul[21:] + ['s_mov_b64 exec, s[62:63]']])
        align8(a)
        for p in range(16):
            yy, dd = R('v', vY+2*p, 2), R('v', vD+2*p, 2)
            a(f'v_pk_fma_f32 {dd}, {yy}, s[{sLN2}:{sLN2+1}], {dd}')
        a(f'v_cmp_class_f32_e64 vcc, v{vD}, s3')
        bad = f's_or_b64 s[{sBAD}:{sBAD+1}], s[{sBAD}:{sBAD+1}], vcc'
        if more:
            window([m1(0, k, vN, vQ) for k in range(5)],
                   [['s_mov_b64 exec, s[58:59]', bad] + dpp[:6], [f's_mov_b32 s{sL}, s{sLNEXT}', f's_mov_b32 s{sLNEXT}, 0'] + dpp[6:12],
                    dpp[12:18], dpp[18:24], dpp[24:]])
        else:
            for x in ['s_mov_b64 exec, s[58:59]', bad] + dpp: a(x)
        a('s_mov_b64 exec, s[60:61]'); a('s_mov_b32 s55, 0')
        for x in cvt[:8] + sto[:2] + cvt[8:] + sto[2:]: a(x)
        a('s_mov_b64 exec, -1')
    flush(True)
    a(f'v_accvgpr_read_b32 v{vINFO}, a{aINFO}')
    a('s_branch L_first')
    if P.d3:
        a.label('L_second')
        a(m0top(P.lv)); a(bnext)
        a(f's_cmp_ge_u32 s{sT}, s{sL}'); a('s_cbranch_scc1 L_flush')
        a(m1(1, 0, vY + 16, vQ + 16))
        a('s_branch L_row')
    a.label('L_last')
    flush(False)
    if P.stamp:
        a('s_waitcnt vmcnt(0)'); stamp(12); stamp(13, True)
        for i in range(14): a(f'v_writelane_b32 v1, s{88+i}, {i}')
        a(f'v_writelane_b32 v1, s{sCNT}, 14')
        a('s_getreg_b32 s3, hwreg(HW_REG_XCC_ID, 0, 4)'); a('v_writelane_b32 v1, s3, 15')
        a('v_mbcnt_lo_u32_b32 v2, -1, 0'); a('v_mbcnt_hi_u32_b32 v2, -1, v2'); a('v_lshlrev_b32 v2, 2, v2')
        a('s_lshl_b32 s3, s2, 2'); a(f's_add_u32 s3, s3, s{sWAVE}'); a('s_lshl_b32 s3, s3, 6'); a(f's_add_u32 s3, s3, {WS_STAMP}')
        a('s_mov_b64 exec, 0xffff')
        a(f'buffer_store_dword v1, v2, {srdn(SW)}, s3 offen')
        a('s_mov_b64 exec, -1')
    a(f's_cmp_eq_u64 s[{sBAD}:{sBAD+1}], 0')
    a('v_mov_b32 v1, 0'); a('v_mov_b32 v2, 1')
    a('s_cbranch_scc1 L_nobad')
    a(f'ds_write_b32 v1, v2 offset:{FLAG}')
    a.label('L_nobad')
    a('s_waitcnt lgkmcnt(0)')
    a('s_barrier')
    a(f'ds_read_b32 v2, v1 offset:{FLAG}')
    a('s_waitcnt lgkmcnt(0)')
    a('v_readfirstlane_b32 s3, v2')
    a('s_cmp_lg_u32 s3, 0'); a('s_cbranch_scc1 L_slow')
    if P.diag:
        if P.diagx:
            a('s_getreg_b32 s3, hwreg(HW_REG_XCC_ID, 0, 4)'); a('s_xor_b32 s3, s3, s2'); a(f's_and_b32 s3, s3, {P.diagx}'); a('s_cbranch_scc0 L_end')
        a.label('L_diag')
        a('s_memrealtime s[86:87]'); a('s_waitcnt lgkmcnt(0)')
        a(f's_sub_u32 s86, s86, s{sTAG}'); a(f's_cmp_lt_u32 s86, {P.diag}'); a('s_cbranch_scc1 L_diag')
    a.label('L_end')
    a('s_endpgm')

    for b, lo, hi in retry:
        a.label(f'L_retry{b}')
        if P.stamp == 4:
            a('s_add_u32 s89, s89, 1'); a('s_bcnt1_i32_b64 s3, vcc'); a('s_cmp_eq_u32 s3, 1'); a('s_addc_u32 s90, s90, 0')
        for i in range(lo, hi): rec(i)
        a('s_waitcnt vmcnt(0)')
        a(f's_sub_u32 s{sCNT}, s{sCNT}, 1')
        a(f's_cbranch_scc0 L_chk{b}')
        a(f's_mov_b32 s{sSLOW}, 1')
        a('s_branch L_skipB')
    a.label('L_slow0')
    a('s_waitcnt vmcnt(0)')
    a('s_barrier')
    for x in lateq + later: a(x)
    a.label('L_slow')
    a('s_mov_b64 exec, -1')
    a('s_waitcnt vmcnt(0) lgkmcnt(0)')
    a('s_load_dwordx4 s[8:11], s[0:1], 16')
    a('s_barrier')
    vL, vS, vH, vT0, vT1, vOA, vD4 = 240, 241, 242, 244, 245, 246, 252
    a(f'v_mbcnt_lo_u32_b32 v{vL}, -1, 0'); a(f'v_mbcnt_hi_u32_b32 v{vL}, -1, v{vL}')
    a(f'v_and_b32 v{vS}, 31, v{vL}')
    a(f'v_lshrrev_b32 v{vH}, 5, v{vL}')
    a(f's_lshl_b32 s3, s{sWAVE}, 10')
    a(f'v_lshl_add_u32 v4, v{vL}, 4, s3')
    for i in range(4): a(f'v_mov_b32 v{i}, 0')
    for i in range(13): a(f'ds_write_b128 v4, v[0:3] offset:{OACC + 4096*i}')
    a('s_waitcnt lgkmcnt(0)')
    a('s_barrier')
    srd(a, SD, 10, E * 4); srd(a, SS, 8, E * 4)
    sE0, sJj = 56, 57
    a(f's_lshl_b32 s{sE0}, s{sWAVE}, 9')
    a(f'v_lshlrev_b32 v243, 4, v{vS}')
    a.label('L_s_blk')
    a(f'buffer_load_dwordx4 {R("v", vD4, 4)}, v243, {srdn(SD)}, s{sE0} offen')
    a(f's_mov_b32 s{sJj}, 0')
    a('s_waitcnt vmcnt(0)')
    a.label('L_s_sub')
    a(f'v_subrev_u32 v248, s{sNB0}, v{vD4}')
    a(f'v_cmp_gt_u32 s[60:61], s{sNNODE}, v248')
    a('s_cmp_eq_u64 s[60:61], 0'); a('s_cbranch_scc1 L_s_next')
    a(f's_add_u32 s3, s{sE0}, s{sJj}')
    a(f'buffer_load_dword v{vT0}, v243, {srdn(SS)}, s3 offen')
    a(f'v_lshlrev_b32 v247, 8, v{vH}')
    for i in range(16): a(f'ds_read_b128 {R("v", vQ+4*i, 4)}, v247 offset:{B1T + 16*i}')
    a(f'v_lshlrev_b32 v247, 4, v{vH}')
    a(f'v_add_lshl_u32 v{vT1}, v243, s3, 3')
    a(f'v_add_u32 v{vT1}, v{vT1}, v247')
    a(f'v_lshl_add_u32 v249, v{vD4}, 7, v247')
    a(f'v_mul_u32_u24 v{vOA}, 260, v248')
    a(f'v_lshl_add_u32 v{vOA}, v{vH}, 7, v{vOA}')
    a('s_waitcnt vmcnt(0)')
    a(f'v_lshl_add_u32 v{vT0}, v{vT0}, 7, v247')
    a('s_mov_b64 exec, s[60:61]')
    for k in range(4): a(f'buffer_load_dwordx4 {R("a", aBX+4*k, 4)}, v{vT0}, {srdn(SX)}, s{sXO} offen offset:{32*k}')
    a(f'buffer_load_dwordx4 {R("a", aBE, 4)}, v{vT1}, {srdn(SE)}, 0 offen')
    for k in range(4): a(f'buffer_load_dwordx4 {R("v", vE+4*k, 4)}, v249, {srdn(SX)}, s{sXO} offen offset:{32*k}')
    a('s_waitcnt vmcnt(0) lgkmcnt(0)')
    for c in range(4):
        q = R('v', vQ+16*c, 16)
        for k in range(4): a(mfma(q, R('a', aW1B + (c*4+k)*4, 4), R('v', vE+4*k, 4), q))
        for k in range(5): a(m1(c, k, vQ+16*c, vQ+16*c))
    for i in range(64): a(f'v_exp_f32 v{vD+i}, v{vQ+i}')
    for i in range(64): a(f'v_add_f32 v{vD+i}, 1.0, v{vD+i}')
    for i in range(64): a(f'v_rcp_f32 v{vD+i}, v{vD+i}')
    for i in range(64): a(f'v_mul_f32 v{vD+i}, v{vD+i}, v{vQ+i}')
    for i in range(32): a(f'v_cvt_pk_bf16_f32 v{vN+i}, v{vD+2*i}, v{vD+2*i+1}')
    a(f'v_lshlrev_b32 v247, 7, v{vH}')
    for i in range(8): a(f'ds_read_b128 {R("v", vQ+4*i, 4)}, v247 offset:{B2T + 16*i}')
    for dt in range(2):
        acc = R('v', vY + 16*dt, 16)
        for u in range(8): a(mfma(acc, R('a', aW2 + (dt*8+u)*4, 4), R('v', vN + 4*u, 4), acc if u else '0'))
    a('s_waitcnt lgkmcnt(0)')
    for i in range(32): a(f'v_fma_f32 v{vY+i}, v{vY+i}, s{sLN2}, v{vQ+i}')
    for i in range(32): a(f'ds_add_f32 v{vOA}, v{vY+i} offset:{OACC + 4*i}')
    a('s_mov_b64 exec, -1')
    a('s_waitcnt lgkmcnt(0)')
    a.label('L_s_next')
    for i in range(3): a(f'v_mov_b32 v{vD4+i}, v{vD4+i+1}')
    a(f's_add_u32 s{sJj}, s{sJj}, 4')
    a(f's_cmp_lt_u32 s{sJj}, 16'); a('s_cbranch_scc1 L_s_sub')
    a(f's_add_u32 s{sE0}, s{sE0}, 2048')
    a(f's_cmp_lt_u32 s{sE0}, {E*4}'); a('s_cbranch_scc1 L_s_blk')
    a('s_barrier')
    a(f's_lshl_b32 s3, s{sWAVE}, 1')
    a(f'v_add_u32 v1, s3, v{vH}')
    a.label('L_s_out')
    a(f'v_cmp_gt_u32 vcc, s{sNNODE}, v1')
    a('v_mul_u32_u24 v4, 260, v1')
    a(f'v_lshl_add_u32 v4, v{vS}, 3, v4')
    a(f'v_add_u32 v4, {OACC}, v4')
    a(f'v_add_u32 v5, s{sNB0}, v1')
    a('v_lshlrev_b32 v5, 7, v5')
    a(f'v_lshl_add_u32 v5, v{vS}, 2, v5')
    a('s_and_b64 exec, exec, vcc')
    a('s_cbranch_execz L_s_end')
    a('ds_read2_b32 v[2:3], v4 offset0:0 offset1:1')
    a('s_waitcnt lgkmcnt(0)')
    a('v_cvt_pk_bf16_f32 v2, v2, v3')
    a(f'buffer_store_dword v2, v5, {srdn(SO)}, 0 offen')
    a('v_add_u32 v1, 8, v1')
    a('s_branch L_s_out')
    a.label('L_s_end')
    a('s_endpgm')
    a('.p2align 7')
    a.raw('.type L_table,@object')
    a.label('L_table')
    T = pattern_table(BN0) + pattern_table(BN1)
    for i in range(0, 512, 8): a.raw('.long ' + ', '.join(hex(x) for x in T[i:i+8]))
    a.raw('.size L_table, 2048')
    return a

HEADER = """;
;
;     a table row {start, count} per bucket to d_ws.  Everything handed over carries this launch's tag
"""
if __name__ == '__main__':
    for kv in sys.argv[2:]:
        k, v = kv.split('=')
        cur = getattr(P, k)
        setattr(P, k, int(v) if isinstance(cur, int) else (' ' + v.replace('+', ' ') if v else ''))
    k = gen()
    for p in check_all_edges(k): print('HAZARD on branch edge', p, file=sys.stderr)
    print('instrs', sum(1 for x in k.items if not isinstance(x, str)), 'auto nops', k.nops, file=sys.stderr)
    out = open('cdna_kernels/' + NAME + '.s.ref').read().split('; Override launch')[0]
    out += f'; @launch grid=({NB},1,1) block=(256,1,1) lds={lds_bytes()}\n'
    out += HEADER + '.amdgcn_target "amdgcn-amd-amdhsa--gfx950"\n.text\n'
    out += f'.globl {NAME}_kernel\n.type {NAME}_kernel,@function\n' + k.text().replace('; aligned\n', '')
    out += f'''.section .rodata,"a"
.p2align 6
.amdhsa_kernel {NAME}_kernel
  .amdhsa_next_free_vgpr 512
  .amdhsa_next_free_sgpr 102
  .amdhsa_accum_offset 256
  .amdhsa_group_segment_fixed_size 0
  .amdhsa_kernarg_size 88
  .amdhsa_user_sgpr_count 2
  .amdhsa_user_sgpr_kernarg_segment_ptr 1
  .amdhsa_system_sgpr_workgroup_id_x 1
.end_amdhsa_kernel
'''
    open(sys.argv[1], 'w').write(out)
```
